```python
import torch

def _softmax(x, axis=-1):
    return torch.softmax(x, dim=axis)
def _gelu(x):
    return torch.nn.functional.gelu(x, approximate="tanh")
def _silu(x):
    return torch.nn.functional.silu(x)
def _sigmoid(x):
    return torch.sigmoid(x)
def _layernorm(x, axis=-1, eps=1e-5):
    m = x.mean(dim=axis, keepdim=True)
    v = x.var(dim=axis, keepdim=True, unbiased=False)
    return (x - m) / torch.sqrt(v + eps)
def _scatter_add(tgt, idx, src, axis=0):
    return tgt.clone().index_add_(axis, idx, src)
def _segment_sum(src, seg, n):
    out = torch.zeros((n,) + src.shape[1:], dtype=src.dtype)
    return out.index_add_(0, seg, src)
def _pad(x, pw):
    flat = tuple(v for pair in reversed(pw) for v in pair)
    return torch.nn.functional.pad(x, flat)

kernel_name = 'standalone__hybrid_graph_tf_nagphormer__graph'

def setup_inputs():

    _w = (lambda a: (lambda t: t.to(torch.bfloat16) if t.is_floating_point() else t)(torch.as_tensor(a)))
    N, deg, D = 25000, 16, 128
    E = N * deg
    src = (lambda lo, hi, *s: torch.randint(lo, hi, s))(0, N, E).to(torch.int64)
    dst = (lambda lo, hi, *s: torch.randint(lo, hi, s))(0, N, E).to(torch.int64)
    deg_cnt = torch.bincount(dst, minlength=N).to(float) + 1.0
    sc = 1.0 / D ** 0.5
    return {
        "x": _w((lambda *s: torch.randn(*s, dtype=torch.bfloat16) * 0.1)(N, D)),
        "src": _w(src),
        "dst": _w(dst),
        "deg_inv_sqrt": _w(1.0 / (lambda _x: torch.sqrt(torch.as_tensor(_x)))(deg_cnt)),
        "wq": _w((lambda *s: torch.randn(*s, dtype=torch.bfloat16) * 1.6)(D, D) * sc),
        "wk": _w((lambda *s: torch.randn(*s, dtype=torch.bfloat16) * 1.6)(D, D) * sc),
        "wv": _w((lambda *s: torch.randn(*s, dtype=torch.bfloat16) * 0.1)(D, D) * sc),
        "wo": _w((lambda *s: torch.randn(*s, dtype=torch.bfloat16) * 0.1)(D, D) * sc),
        "w_r": _w((lambda *s: torch.randn(*s, dtype=torch.bfloat16) * 0.1)(D)),
    }

def reference(x, src, dst, deg_inv_sqrt, wq, wk, wv, wo, w_r):
    N, D = x.shape[0], x.shape[1]
    K = 7
    h = x
    toks = [x]
    for _ in range(K):
        msg = h[src] * deg_inv_sqrt[src, None] * deg_inv_sqrt[dst, None]
        h = _segment_sum(msg, dst, N)
        toks.append(h)
    tok = torch.stack(toks, axis=1)
    t = _layernorm(tok, axis=-1)
    q   = torch.einsum('nkd,de->nke', t, wq)
    key = torch.einsum('nkd,de->nke', t, wk)
    v   = torch.einsum('nkd,de->nke', t, wv)
    scale = 1.0 / (D ** 0.5)
    attn = _softmax(torch.einsum('nkd,nld->nkl', q, key) * scale, axis=-1)
    o = torch.einsum('nkl,nld->nkd', attn, v)
    o = tok + torch.einsum('nkd,de->nke', o, wo)
    r = _layernorm(o, axis=-1)
    alpha = _softmax(torch.einsum('nkd,d->nk', r, w_r), axis=-1)
    return torch.einsum('nk,nkd->nd', alpha, o)
```

```python
class Asm:
    def __init__(self):
        self.head = []; self.lines = []; self.kds = []
    def launch(self, kernel, grid, block, lds):
        self.head.append(f"; @launch kernel={kernel} grid=({grid},1,1) block=({block},1,1) lds={lds}")
    def __call__(self, s):
        for l in s.split('\n'):
            l = l.strip()
            if l: self.lines.append(('' if l.endswith(':') else '    ') + l)
    def kernel(self, name):
        self.lines += [f".globl {name}", ".p2align 8", f".type {name},@function", f"{name}:"]
    def kd(self, name, vgpr, sgpr=102, accum=None):
        if accum is None: accum = (vgpr + 3) // 4 * 4
        self.kds.append(f""".amdhsa_kernel {name}
  .amdhsa_next_free_vgpr {vgpr}
  .amdhsa_next_free_sgpr {sgpr}
  .amdhsa_accum_offset {accum}
  .amdhsa_group_segment_fixed_size 0
  .amdhsa_kernarg_size 96
  .amdhsa_user_sgpr_count 2
  .amdhsa_user_sgpr_kernarg_segment_ptr 1
  .amdhsa_system_sgpr_workgroup_id_x 1
  .amdhsa_float_denorm_mode_32 3
.end_amdhsa_kernel""")
    def text(self, pre=''):
        out = pre + '\n'.join(self.head) + '\n.amdgcn_target "amdgcn-amd-amdhsa--gfx950"\n.text\n' + '\n'.join(self.lines) + '\n.section .rodata,"a"\n'
        for k in self.kds: out += '.p2align 6\n' + k + '\n'
        return out
    def srd(self, d, base, nbytes):
        self(f"s_mov_b32 s{d}, s{base}\ns_and_b32 s{d+1}, s{base+1}, 0xffff\ns_mov_b32 s{d+2}, {nbytes}\ns_mov_b32 s{d+3}, 0x20000")
```

```python
import re
REG = re.compile(r'^(-|abs\()?([vas])(\d+)\)?$')
RNG = re.compile(r'^(-|abs\()?([vas])\[(\d+):(\d+)\]\)?$')
def regs(op):
    op = op.strip()
    m = REG.match(op)
    if m: return {(m.group(2), int(m.group(3)))}
    m = RNG.match(op)
    if m: return {(m.group(2), i) for i in range(int(m.group(3)), int(m.group(4))+1)}
    if op == 'vcc': return {('s', 'vcc_lo'), ('s', 'vcc_hi')}
    if op in ('vcc_lo', 'vcc_hi'): return {('s', op)}
    if op == 'exec': return {('s', 'exec_lo'), ('s', 'exec_hi')}
    if op in ('exec_lo', 'exec_hi'): return {('s', op)}
    if op == 'm0': return {('s', 'm0')}
    return set()
TRANS = ('v_exp_f32', 'v_log_f32', 'v_rcp_f32', 'v_rsq_f32', 'v_sqrt_f32', 'v_sin_f32', 'v_cos_f32', 'v_rcp_iflag_f32')
def passes(mn):
    if '4x4x4' in mn: return 2
    if '16x16x' in mn: return 4
    if '32x32x' in mn: return 8
    raise ValueError(mn)
class I:
    def __init__(s, text):
        s.text = text
        t = text.split(';')[0].strip()
        s.label = t[:-1] if t.endswith(':') else None
        s.dirv = t.startswith('.')
        s.mn = None
        s.w = set(); s.r = set(); s.kind = None
        if s.label or s.dirv or not t: return
        p = t.split(None, 1)
        s.mn = mn = p[0]
        rest = p[1] if len(p) > 1 else ''
        ops = [o.strip() for o in re.split(r',\s*(?![^\[]*\])', rest)] if rest else []
        if ops:
            last = ops[-1].split()
            s.mods = ' '.join(last[1:]); ops[-1] = last[0] if last else ''
        else: s.mods = ''
        s.ops = ops
        s.dpp = ('_dpp' in mn) or any(k in s.mods for k in ('quad_perm', 'row_', 'wave_'))
        if mn.startswith('v_mfma'):
            s.kind = 'mfma'; s.np = passes(mn)
            s.D = regs(ops[0]); s.A = regs(ops[1]); s.B = regs(ops[2]); s.C = regs(ops[3])
            s.w = s.D; s.r = s.A | s.B | s.C
        elif mn.startswith('v_'):
            s.kind = 'valu'
            if mn.startswith('v_cmp'):
                s.w = regs(ops[0]); s.r = set().union(*[regs(o) for o in ops[1:]])
                if mn.startswith('v_cmpx'): s.w |= regs('exec')
            elif mn.startswith(('v_swap', 'v_permlane32_swap', 'v_permlane16_swap')):
                s.w = regs(ops[0]) | regs(ops[1]); s.r = set(s.w)
            elif mn.startswith(('v_add_co', 'v_sub_co', 'v_addc_co', 'v_subb_co', 'v_subrev_co', 'v_mad_u64_u32', 'v_div_scale')):
                s.w = regs(ops[0]) | regs(ops[1]); s.r = set().union(*[regs(o) for o in ops[2:]])
            elif mn == 'v_nop': pass
            else:
                s.w = regs(ops[0]); s.r = set().union(set(), *[regs(o) for o in ops[1:]])
                if mn.startswith(('v_fmac', 'v_dot2c', 'v_writelane', 'v_mac')) or 'UNUSED_PRESERVE' in s.mods or (s.dpp and 'bound_ctrl' not in s.mods) or ('row_mask:0xf bank_mask:0xf' not in s.mods and s.dpp):
                    s.r |= regs(ops[0])
            s.trans = mn.startswith(TRANS)
            s.dot = mn.startswith('v_dot')
        elif mn.startswith('ds_'):
            s.kind = 'ds'
            allr = [regs(o) for o in ops]
            if mn.startswith(('ds_read', 'ds_bpermute', 'ds_permute', 'ds_swizzle')) or '_rtn' in mn:
                s.w = allr[0]; s.r = set().union(set(), *allr[1:])
            else: s.r = set().union(set(), *allr)
        elif mn.startswith(('buffer_', 'global_', 'flat_')):
            s.kind = 'vmem'
            allr = [regs(o) for o in ops]
            lds = ' lds' in (' ' + s.mods) or '_lds_' in mn
            s.lds = lds
            if mn in ('buffer_wbl2', 'buffer_inv'): pass
            elif 'load' in mn and not lds:
                s.w = allr[0]; s.r = set().union(set(), *allr[1:])
                if 'd16' in mn: s.r |= allr[0]
            elif 'atomic' in mn and ('sc0' in s.mods):
                s.w = allr[0]; s.r = set().union(set(), *allr)
            else: s.r = set().union(set(), *allr)
            if lds: s.r |= regs('m0')
            s.widestore = ('store' in mn and ('x3' in mn or 'x4' in mn))
            if s.widestore: s.data = allr[0] if mn.startswith('buffer') else allr[1]
        elif mn.startswith('s_'):
            s.kind = 'salu'
            if mn.startswith(('s_cmp', 's_bitcmp', 's_cbranch', 's_branch', 's_waitcnt', 's_nop', 's_barrier', 's_endpgm', 's_sleep', 's_setprio', 's_setpc', 's_set_gpr_idx_off')):
                s.r = set().union(set(), *[regs(o) for o in ops])
            elif mn.startswith('s_set_gpr_idx_on'):
                s.w = regs('m0'); s.r = regs(ops[0])
            else:
                s.w = regs(ops[0]); s.r = set().union(set(), *[regs(o) for o in ops[1:]])
                if 'saveexec' in mn: s.w |= regs('exec')
        else:
            raise ValueError('unknown instr ' + text)
    def states(s):
        if s.mn is None: return 0
        if s.mn == 's_nop': return int(s.ops[0], 0) + 1
        return 1
V = lambda S: {x for x in S if x[0] in 'va'}
SG = lambda S: {x for x in S if x[0] == 's'}
def need(p, c):
    n = 0
    if p.kind == 'valu':
        vw = V(p.w); sw = SG(p.w)
        if c.kind == 'mfma' and vw & c.r: n = max(n, 2)
        if c.kind == 'valu':
            if c.dpp and vw & V(c.r): n = max(n, 2)
            if c.mn.startswith('v_permlane') and vw & c.r: n = max(n, 2)
            if c.mn.startswith(('v_readlane', 'v_readfirstlane')) and vw & V(c.r): n = max(n, 1)
            if p.trans and vw & V(c.r): n = max(n, 1)
            if sw & SG(c.r):
                n = max(n, 4 if c.mn.startswith(('v_readlane', 'v_writelane', 'v_div_fmas')) else 2)
            if p.dot and vw & (V(c.r) | V(c.w)):
                if c.mn == p.mn and not (vw & (regs(c.ops[1]) | regs(c.ops[2]))): pass
                else: n = max(n, 3)
            if ('s', 'exec_lo') in sw:
                if c.dpp: n = max(n, 5)
                if c.mn.startswith(('v_readlane', 'v_readfirstlane', 'v_writelane', 'v_permlane')): n = max(n, 4)
        if p.dot and c.kind in ('mfma', 'ds', 'vmem') and vw & c.r: n = max(n, 3)
        if p.trans and c.kind in ('ds', 'vmem') and vw & c.r: n = max(n, 1)
        if c.kind == 'vmem' and sw & c.r: n = max(n, 5)
        if c.kind == 'mfma' and ('s', 'exec_lo') in sw: n = max(n, 4)
    elif p.kind == 'mfma':
        k = {2: 0, 4: 1, 8: 2, 16: 3}[p.np]
        if c.kind == 'mfma':
            if p.D & c.C:
                if p.D == c.C and p.np == c.np: n = max(n, (2, 0, 0, 0)[k])
                else: n = max(n, (4, 6, 10, 18)[k])
            if p.D & (c.A | c.B): n = max(n, (5, 8, 12, 20)[k])
            if (p.D & c.D) and not (p.D & c.C): n = max(n, (4, 6, 10, 18)[k])
        elif c.kind == 'valu':
            if p.D & (c.r | c.w): n = max(n, (5, 8, 12, 20)[k])
            if p.C & c.w: n = max(n, (1, 3, 7, 15)[k])
        elif c.kind in ('ds', 'vmem'):
            if p.D & (c.r | c.w): n = max(n, (5, 8, 12, 20)[k])
    elif p.kind == 'salu':
        if ('s', 'm0') in p.w:
            if c.kind == 'vmem' and c.lds: n = max(n, 1)
            if c.mn and c.mn.startswith(('s_movrel', 'v_movrel')): n = max(n, 1)
        if p.mn.startswith('s_setreg') and c.mn and c.mn.startswith(('s_getreg', 's_setreg')): n = max(n, 2)
    elif p.kind == 'vmem':
        if getattr(p, 'widestore', False) and c.kind in ('valu', 'mfma', 'ds', 'vmem') and p.data & c.w: n = max(n, 2)
    return n
MAXD = 20
def fix(lines, verbose=False):
    ins = [I(l) for l in lines]
    pre = [0]*len(ins)
    lab = {x.label: i for i, x in enumerate(ins) if x.label}
    jumps = {}
    rets = [i for i, x in enumerate(ins) if x.mn == 's_setpc_b64']
    for i, x in enumerate(ins):
        if x.mn and x.mn.startswith(('s_cbranch', 's_branch')): jumps.setdefault(lab[x.ops[0]], []).append(i)
        if x.mn == 's_call_b64':
            jumps.setdefault(lab[x.ops[1]], []).append(i)
            jumps.setdefault(i+1, []).extend(rets)
    P = []
    for i in range(len(ins)):
        out = list(jumps.get(i, []))
        if i > 0 and ins[i-1].mn not in ('s_branch', 's_endpgm', 's_setpc_b64', 's_call_b64'): out.append(i-1)
        P.append(out)
    changed = True
    while changed:
        changed = False
        for i, c in enumerate(ins):
            if c.kind is None: continue
            if c.kind == 'salu' and not (c.mn.startswith(('s_movrel', 's_getreg', 's_setreg'))): continue
            deficit = 0
            best = {}
            stack = [(j, pre[i]) for j in P[i]]
            while stack:
                j, d = stack.pop()
                if j in best and best[j] <= d: continue
                best[j] = d
                p = ins[j]
                if p.kind:
                    n = need(p, c)
                    if n > d: deficit = max(deficit, n - d)
                d2 = d + p.states() + pre[j]
                if d2 < MAXD:
                    stack += [(q, d2) for q in P[j]]
            if deficit:
                if verbose: print('nop', deficit, 'before', c.text.strip())
                pre[i] += deficit
                changed = True
    out = []
    for i, x in enumerate(ins):
        k = pre[i]
        while k > 0:
            t = min(k, 16); out.append(f'    s_nop {t-1}'); k -= t
        out.append(x.text)
    return out, sum(pre)
```

```python
import sys
from asmlib import Asm
import hazard

N = 25000; NP = 25088; E = 400000; WIN = 448; NWIN = 56; NLEV = 392; QLEV = 98; QN = 6272
NCH = 250; CH = 1600
ZB = 55*448
WS_FLAGS = 0; WS_NEWID = 0x10000; WS_PERM = 0x20000; WS_DISP = 0x40000; WS_TQ = 0x60000; WS_OFFS = 0x70000
WS_WFR = 0x80000; WS_PART = 0x100000; WS_IDX = 0x300000; WS_G = 0x800000; WS_TOK = 0x3400000
GS = NP*4
KS = NP*256
WS_SIZE = 0x10000000
SD = "dst_sel:DWORD dst_unused:UNUSED_PAD src0_sel:DWORD"
DPPF = "row_mask:0xf bank_mask:0xf"
SLACK = 2
OPT = dict(sched=0)

class K(Asm):
    def __init__(self):
        super().__init__(); self.uid = 0
    def lab(self, s='L'):
        self.uid += 1; return f"{s}_{self.uid}"
    def begin(self, name):
        self.kernel(name); self.k0 = len(self.lines)
    def end(self, name, vgpr, sgpr=102, accum=None):
        body, n = hazard.fix(self.lines[self.k0:])
        self.lines[self.k0:] = body
        print(f"{name}: {len(body)} lines, {n} nop states", file=sys.stderr)
        self.kd(name, vgpr, sgpr, accum)
    def scan_incl(self, v):
        for s in (1, 2, 4, 8): self(f"v_add_u32_dpp v{v}, v{v}, v{v} row_shr:{s} {DPPF} bound_ctrl:0")
        self(f"v_add_u32_dpp v{v}, v{v}, v{v} row_bcast:15 row_mask:0xa bank_mask:0xf")
        self(f"v_add_u32_dpp v{v}, v{v}, v{v} row_bcast:31 row_mask:0xc bank_mask:0xf")
    def red63(self, op, v):
        for s in (1, 2, 4, 8): self(f"{op}_dpp v{v}, v{v}, v{v} row_shr:{s} {DPPF} bound_ctrl:0")
        self(f"{op}_dpp v{v}, v{v}, v{v} row_bcast:15 row_mask:0xa bank_mask:0xf")
        self(f"{op}_dpp v{v}, v{v}, v{v} row_bcast:31 row_mask:0xc bank_mask:0xf")

def k1(a):
    name = 'p1_kernel'
    a.launch(name, NCH + NWIN, 448, 8192)
    a.begin(name)
    a(f"s_cmp_ge_u32 s2, {NCH+NWIN}\ns_cbranch_scc1 K1_end")
    a("s_load_dwordx4 s[4:7], s[0:1], 8\ns_load_dwordx2 s[12:13], s[0:1], 24\ns_load_dwordx2 s[14:15], s[0:1], 88")
    a("v_lshlrev_b32 v1, 2, v0\nv_mov_b32 v2, 0\nv_mov_b32 v24, 1\nv_readfirstlane_b32 s37, v0")
    a("ds_write_b32 v1, v2")
    a("s_waitcnt lgkmcnt(0)")
    a.srd(16, 4, E*4); a.srd(20, 6, E*4); a.srd(24, 12, N*2); a.srd(28, 14, WS_SIZE)
    a("s_cmp_ge_u32 s2, 64\ns_cbranch_scc1 K1_noz\ns_cmp_ge_u32 s37, 128\ns_cbranch_scc1 K1_noz")
    a("s_lshl_b32 s3, s2, 9\nbuffer_store_dword v2, v1, s[28:31], s3 offen")
    a("K1_noz:")
    a(f"s_cmp_ge_u32 s2, {NCH}\ns_cbranch_scc1 K1_perm")
    def scan(store):
        skip = a.lab('K1_sk')
        a(f"s_cmp_ge_u32 s37, 64\ns_cbranch_scc1 {skip}")
        a("ds_read_b32 v20, v1\ns_waitcnt lgkmcnt(0)\nv_mov_b32 v21, v20")
        a.scan_incl(21)
        a("v_sub_u32 v21, v21, v20\nds_write_b32 v1, v21 offset:256")
        if store: a(f"s_lshl_b32 s3, s2, 8\ns_add_u32 s3, s3, {WS_OFFS}\nbuffer_store_dword v21, v1, s[28:31], s3 offen")
        a(f"s_waitcnt lgkmcnt(0)\n{skip}:")
    a("v_cmp_gt_u32 vcc, 400, v0\ns_and_saveexec_b64 s[34:35], vcc")
    a(f"v_lshlrev_b32 v3, 4, v0\ns_mul_i32 s38, s2, {CH*4}")
    a("buffer_load_dwordx4 v[4:7], v3, s[16:19], s38 offen\nbuffer_load_dwordx4 v[8:11], v3, s[20:23], s38 offen")
    a("s_barrier\ns_mov_b32 s36, 37450\ns_waitcnt vmcnt(0)")
    for i in range(4):
        a(f"v_mul_u32_u24 v{12+i}, s36, v{8+i}\nv_lshrrev_b32 v{12+i}, 24, v{12+i}")
        a(f"v_mul_u32_u24 v16, {WIN}, v{12+i}\nv_sub_u32 v16, v{8+i}, v16\nv_lshl_or_b32 v{4+i}, v16, 16, v{4+i}")
        a(f"v_lshlrev_b32 v{12+i}, 2, v{12+i}\nds_add_rtn_u32 v{8+i}, v{12+i}, v24")
    a("s_waitcnt lgkmcnt(0)\ns_barrier")
    scan(True)
    a("s_barrier")
    for i in range(4): a(f"ds_read_b32 v{16+i}, v{12+i} offset:256")
    for i in range(4):
        a(f"s_waitcnt lgkmcnt({3})" if i == 0 else f"s_waitcnt lgkmcnt(3)")
        a(f"v_add_lshl_u32 v{16+i}, v{16+i}, v{8+i}, 2\nds_write_b32 v{16+i}, v{4+i} offset:512")
    a("s_waitcnt lgkmcnt(0)\ns_barrier")
    a(f"ds_read_b128 v[4:7], v3 offset:512\ns_add_u32 s38, s38, {WS_PART}\ns_waitcnt lgkmcnt(0)")
    a("buffer_store_dwordx4 v[4:7], v3, s[28:31], s38 offen\ns_endpgm")
    a("K1_perm:")
    a(f"s_sub_u32 s38, s2, {NCH}\ns_mul_i32 s38, s38, {WIN}\nv_add_u32 v3, s38, v0\nv_lshlrev_b32 v5, 1, v3")
    a("buffer_load_ushort v4, v5, s[24:27], 0 offen")
    a("s_barrier\ns_waitcnt vmcnt(0)")
    a("v_lshlrev_b32 v4, 16, v4\nv_mul_f32 v6, v4, v4\nv_rcp_f32 v6, v6\nv_rndne_f32 v6, v6\nv_cvt_u32_f32 v6, v6\nv_med3_u32 v6, v6, 1, 63")
    a(f"v_cmp_gt_u32 vcc, {N}, v3\nv_cndmask_b32 v6, 0, v6, vcc\nv_lshlrev_b32 v6, 2, v6\nds_add_rtn_u32 v7, v6, v24")
    a("s_waitcnt lgkmcnt(0)\ns_barrier")
    scan(False)
    a("s_barrier\nds_read_b32 v8, v6 offset:256\ns_waitcnt lgkmcnt(0)")
    a(f"v_add3_u32 v8, v8, v7, s38\nv_lshlrev_b32 v9, 2, v8")
    a(f"s_mov_b32 s3, {WS_NEWID}\nbuffer_store_short v8, v5, s[28:31], s3 offen")
    a(f"s_mov_b32 s3, {WS_PERM}\nbuffer_store_dword v3, v9, s[28:31], s3 offen")
    a(f"s_mov_b32 s3, {WS_DISP}\nbuffer_store_dword v4, v9, s[28:31], s3 offen")
    a("K1_end:\ns_endpgm")
    a.end(name, 32, 48)

L2_CNT = 0; L2_BU = 2048; L2_NEW = 5632; L2_O = 55808; L2_L = 84480; L2_SIZE = 84480 + 57344
NTR = 98
def k2(a):
    name = 'p2_kernel'
    a.launch(name, NWIN + NTR + 2, 1024, L2_SIZE)
    a.begin(name)
    a(f"s_cmp_ge_u32 s2, {NWIN+NTR+2}\ns_cbranch_scc1 K2_end")
    a("s_load_dwordx2 s[4:5], s[0:1], 0\ns_load_dwordx2 s[14:15], s[0:1], 88")
    a("v_lshrrev_b32 v1, 6, v0\nv_and_b32 v2, 63, v0\nv_readfirstlane_b32 s33, v1")
    a("s_waitcnt lgkmcnt(0)")
    a.srd(16, 4, N*256); a.srd(28, 14, WS_SIZE)
    a(f"s_cmp_ge_u32 s2, {NWIN+NTR}\ns_cbranch_scc1 K2_wts\ns_cmp_ge_u32 s2, {NWIN}\ns_cbranch_scc1 K2_tr")
    k2_window(a)
    a("K2_tr:")
    k2_transpose(a)
    a("K2_wts:")
    k2_weights(a)
    a("K2_end:\ns_endpgm")
    a.end(name, 128, 102)

def k2_window(a):
    NB = 12
    Ev, NS, ND = 20, 32, 44
    MK = lambda j: f"s[{40+2*j}:{41+2*j}]"
    a("v_lshlrev_b32 v3, 4, v2")
    a(f"s_lshl_b32 s34, s33, 10\ns_add_u32 s35, s34, {WS_NEWID}\ns_add_u32 s34, s34, {L2_NEW}")
    for i in range(4):
        if i == 3: a("s_cmp_lg_u32 s33, 0\ns_cbranch_scc1 K2_nd")
        a(f"s_mov_b32 m0, s34\nbuffer_load_dwordx4 v3, s[28:31], s35 offen lds")
        if i < 3: a("s_add_u32 s34, s34, 16384\ns_add_u32 s35, s35, 16384")
    a("K2_nd:")
    a("v_lshrrev_b32 v6, 2, v0\nv_lshlrev_b32 v7, 8, v6")
    a(f"s_lshl_b32 s34, s2, 2\ns_add_u32 s34, s34, {WS_OFFS}\nbuffer_load_dwordx2 v[4:5], v7, s[28:31], s34 offen")
    a("v_lshlrev_b32 v8, 3, v0\nv_mov_b32 v10, 0\nv_mov_b32 v11, 0\nv_cmp_gt_u32 vcc, 704, v0\ns_and_saveexec_b64 s[36:37], vcc")
    a("ds_write_b64 v8, v[10:11]\ns_mov_b64 exec, s[36:37]")
    a(f"v_mov_b32 v12, 1\nv_mov_b32 v13, 0xfc\ns_mul_i32 s38, s2, {WIN}\ns_lshl_b32 s39, s38, 1\ns_mov_b32 s66, {L2_L}")
    a(f"v_mul_u32_u24 v9, {CH*4}, v6\nv_and_b32 v8, 3, v0\nv_cmp_gt_u32 vcc, {NCH*4}, v0")
    a("s_waitcnt vmcnt(0)")
    a("v_cndmask_b32 v5, 0, v5, vcc\nv_add_u32 v4, v4, v8")
    a(f"s_mov_b32 s64, 1\ns_mov_b32 s65, {WS_PART}")
    a("K2_loop:")
    a("v_lshl_add_u32 v14, v4, 2, v9")
    for j in range(NB): a(f"v_add_u32 v15, {4*j}, v4\nv_cmp_lt_u32 {MK(j)}, v15, v5")
    for j in range(NB):
        a(f"s_mov_b64 exec, {MK(j)}\ns_cbranch_execz K2_s1\nbuffer_load_dword v{Ev+j}, v14, s[28:31], s65 offen offset:{16*j}")
    a("K2_s1:\ns_waitcnt vmcnt(0) lgkmcnt(0)\ns_cmp_eq_u32 s64, 0\ns_cbranch_scc1 K2_nb\ns_barrier\ns_mov_b32 s64, 0\nK2_nb:")
    for j in range(NB):
        a(f"s_mov_b64 exec, {MK(j)}\ns_cbranch_execz K2_s2")
        a(f"v_lshlrev_b32_sdwa v15, 1, v{Ev+j} {SD} src1_sel:WORD_0\nv_lshrrev_b32 v16, 15, v{Ev+j}\nv_add_u32 v16, s39, v16")
        a(f"ds_read_u16 v{NS+j}, v15 offset:{L2_NEW}\nds_read_u16 v{ND+j}, v16 offset:{L2_NEW}")
    a("K2_s2:\ns_waitcnt lgkmcnt(0)")
    for j in range(NB):
        a(f"s_mov_b64 exec, {MK(j)}\ns_cbranch_execz K2_s3")
        a(f"v_subrev_u32 v{ND+j}, s38, v{ND+j}\nv_lshlrev_b32 v{ND+j}, 2, v{ND+j}\nds_add_rtn_u32 v{Ev+j}, v{ND+j}, v12 offset:{L2_CNT}")
    a("K2_s3:\ns_waitcnt lgkmcnt(0)")
    for j in range(NB):
        a(f"s_mov_b64 exec, {MK(j)}\ns_cbranch_execz K2_s4")
        a(f"v_and_or_b32 v15, v{ND+j}, v13, s66\nv_lshrrev_b32 v16, 8, v{ND+j}\nv_lshl_add_u32 v15, v16, 13, v15")
        a(f"v_lshrrev_b32 v16, 1, v{Ev+j}\nv_lshl_add_u32 v15, v16, 8, v15\nv_and_b32 v16, 1, v{Ev+j}\nv_lshl_add_u32 v15, v16, 1, v15")
        a(f"v_cmp_gt_u32 vcc, 64, v{Ev+j}\ns_and_b64 exec, exec, vcc\nds_write_b16 v15, v{NS+j}")
    a("K2_s4:\ns_mov_b64 exec, -1")
    a(f"v_add_u32 v4, {4*NB}, v4\nv_cmp_lt_u32 vcc, v4, v5\ns_cbranch_vccnz K2_loop")
    a("s_waitcnt lgkmcnt(0)\ns_barrier")
    a("s_cmp_ge_u32 s33, 7\ns_cbranch_scc1 K2_end")
    a("s_lshl_b32 s34, s33, 8\nv_lshl_add_u32 v4, v2, 2, s34\nds_read_b32 v5, v4\ns_waitcnt lgkmcnt(0)")
    a("v_mov_b32 v6, v5"); a.red63('v_max_u32', 6)
    a("v_readlane_b32 s35, v6, 63")
    a(f"s_add_u32 s36, s35, {SLACK+1}\ns_lshr_b32 s36, s36, 1\ns_min_u32 s36, s36, 32")
    a("s_cmp_gt_u32 s35, 64\ns_cselect_b32 s37, 0x10000, 0\ns_or_b32 s37, s37, s36")
    a(f"s_mul_i32 s38, s2, 7\ns_add_u32 s38, s38, s33")
    a(f"s_lshl_b32 s39, s38, 2\ns_add_u32 s39, s39, {WS_TQ}\nv_mov_b32 v7, s37\nv_mov_b32 v8, 0\ns_mov_b64 exec, 1")
    a("buffer_store_dword v7, v8, s[28:31], s39 offen\ns_mov_b64 exec, -1")
    a("v_min_u32 v5, 64, v5\nv_mov_b32 v8, 1\nv_mov_b32 v9, 0\nv_lshlrev_b64 v[10:11], v5, v[8:9]")
    a("v_add_co_u32 v10, vcc, -1, v10\nv_addc_co_u32 v11, vcc, -1, v11, vcc")
    a("v_cmp_eq_u32 vcc, 64, v5\nv_cndmask_b32 v10, v10, -1, vcc\nv_cndmask_b32 v11, v11, -1, vcc".replace("v10, v10, -1, vcc", "v10, v10, v40, vcc").replace("v11, v11, -1, vcc", "v11, v11, v40, vcc").replace("v_cmp_eq", "v_mov_b32 v40, -1\nv_cmp_eq"))
    a(f"s_lshl_b32 s34, s33, 13\ns_add_u32 s34, s34, {L2_L}\nv_lshl_add_u32 v12, v2, 2, s34")
    a(f"v_mov_b32 v13, 0xffff\nv_mov_b32 v14, {ZB | (ZB << 16)}\nv_lshlrev_b32 v15, 2, v2")
    a(f"s_lshl_b32 s39, s38, 13\ns_add_u32 s39, s39, {WS_IDX}")
    for c in range(8):
        for p in range(4*c, 4*c+4): a(f"ds_read_b32 v{20+(p&3)}, v12 offset:{p*256}")
        for p in range(4*c, 4*c+4):
            u = 10 if p < 16 else 11
            a(f"v_bfe_i32 v16, v{u}, {(2*p)&31}, 1\nv_bfe_i32 v17, v{u}, {(2*p+1)&31}, 1\nv_bfi_b32 v16, v13, v16, v17")
            a(f"s_waitcnt lgkmcnt({3-(p&3)})\nv_bfi_b32 v{24+(p&3)}, v16, v{20+(p&3)}, v14")
            if p == 16: a("s_add_u32 s39, s39, 4096")
            a(f"buffer_store_dword v{24+(p&3)}, v15, s[28:31], s39 offen offset:{(p&15)*256}")
        if c < 7: a(f"s_cmp_le_u32 s36, {4*c+4}\ns_cbranch_scc1 K2_end")
    a("s_endpgm")

def k2_transpose(a):
    a(f"s_sub_u32 s34, s2, {NWIN}\ns_lshl_b32 s34, s34, 2\ns_lshr_b32 s35, s33, 2\ns_add_u32 s34, s34, s35\ns_and_b32 s36, s33, 3")
    a(f"s_mul_i32 s37, s35, {64*65*4}")
    a("v_lshrrev_b32 v3, 4, v2\nv_and_b32 v4, 15, v2")
    a(f"s_lshl_b32 s38, s34, 8\ns_lshl_b32 s39, s36, 6\ns_add_u32 s39, s39, s38\ns_add_u32 s39, s39, {WS_PERM}\nv_lshlrev_b32 v5, 2, v3")
    for it in range(4): a(f"buffer_load_dword v{8+it}, v5, s[28:31], s39 offen offset:{it*16}")
    a(f"s_add_u32 s40, s38, {WS_DISP}\nv_lshlrev_b32 v6, 2, v2\nbuffer_load_dword v7, v6, s[28:31], s40 offen")
    a("v_lshlrev_b32 v12, 4, v4")
    for it in range(4):
        a(f"s_waitcnt vmcnt({4})\nv_lshl_add_u32 v{8+it}, v{8+it}, 8, v12\nbuffer_load_dwordx4 v[{16+4*it}:{19+4*it}], v{8+it}, s[16:19], 0 offen")
    a(f"v_mul_u32_u24 v13, {4*65*4}, v4\nv_lshl_add_u32 v13, v3, 2, v13\ns_lshl_b32 s41, s36, 6\ns_add_u32 s41, s41, s37\nv_add_u32 v13, s41, v13")
    for it in range(4):
        a(f"s_waitcnt vmcnt({3-it})")
        for i in range(4): a(f"ds_write_b32 v13, v{16+4*it+i} offset:{i*260+it*16}")
    a("s_waitcnt lgkmcnt(0)\ns_barrier")
    a(f"s_mul_i32 s41, s36, {16*260}\ns_add_u32 s41, s41, s37\nv_add_u32 v13, s41, v6")
    for i in range(16): a(f"ds_read_b32 v{16+i}, v13 offset:{i*260}")
    a("v_lshrrev_b32 v8, 2, v2\nv_lshlrev_b32 v8, 10, v8\nv_and_b32 v9, 3, v2\nv_lshl_add_u32 v8, v9, 2, v8")
    a(f"s_lshl_b32 s41, s34, 14\ns_lshl_b32 s42, s36, 8\ns_add_u32 s41, s41, s42\ns_add_u32 s41, s41, {WS_TOK}")
    a(f"s_mul_i32 s42, s36, {16*GS}\ns_add_u32 s42, s42, s38\ns_add_u32 s42, s42, {WS_G}")
    for i in range(16):
        a(f"s_waitcnt lgkmcnt({15-i})\nbuffer_store_dword v{16+i}, v8, s[28:31], s41 offen offset:{i*16}")
        a(f"v_lshlrev_b32 v10, 16, v{16+i}\nv_and_b32 v11, 0xffff0000, v{16+i}\nv_mul_f32 v10, v7, v10\nv_mul_f32 v11, v7, v11\nv_cvt_pk_bf16_f32 v{32+i}, v10, v11")
        a(f"buffer_store_dword v{32+i}, v6, s[28:31], s42 offen")
        if i < 15: a(f"s_add_u32 s42, s42, {GS}")
    a("s_endpgm")

import math, struct
def f2u(x): return struct.unpack('<I', struct.pack('<f', x))[0]
SCL = f2u(math.log2(math.e)/math.sqrt(128.0))
WFR_E = 65536; WFR_SW = 73728
def k2_weights(a):
    S0 = 66048; WO = S0 + 2048
    a(f"s_sub_u32 s34, s2, {NWIN+NTR}")
    a("s_load_dwordx8 s[40:47], s[0:1], 32\ns_load_dwordx2 s[48:49], s[0:1], 64")
    a("s_lshr_b32 s35, s33, 2\ns_and_b32 s36, s33, 3\nv_and_b32 v3, 31, v2\nv_lshrrev_b32 v4, 5, v2")
    a("v_lshlrev_b32 v5, 2, v0\nv_mov_b32 v6, 0\nv_cmp_gt_u32 vcc, 512, v0\ns_and_saveexec_b64 s[50:51], vcc")
    a(f"v_add_u32 v5, {S0}, v5\nds_write_b32 v5, v6\ns_mov_b64 exec, s[50:51]")
    a("s_waitcnt lgkmcnt(0)\ns_cmp_eq_u32 s34, 0\ns_cselect_b32 s52, s40, s44\ns_cselect_b32 s53, s41, s45\ns_cselect_b32 s54, s42, s46\ns_cselect_b32 s55, s43, s47")
    a.srd(20, 52, 32768); a.srd(24, 54, 32768); a.srd(56, 48, 256)
    a("v_lshlrev_b32 v5, 8, v3\nv_lshl_add_u32 v5, v4, 4, v5\ns_lshl_b32 s37, s35, 13\ns_lshl_b32 s38, s36, 13")
    for u in range(8): a(f"buffer_load_dwordx4 v[{16+4*u}:{19+4*u}], v5, s[20:23], s37 offen offset:{u*32}")
    a("s_cmp_eq_u32 s34, 0\ns_cbranch_scc0 K2w_b")
    for u in range(8): a(f"buffer_load_dwordx4 v[{48+4*u}:{51+4*u}], v5, s[24:27], s38 offen offset:{u*32}")
    a("s_waitcnt vmcnt(0)\ns_barrier\ns_branch K2w_mm\nK2w_b:")
    a(f"v_lshlrev_b32 v6, 4, v2\ns_lshl_b32 s39, s33, 11\ns_add_u32 s60, s39, {WO}\ns_mov_b32 m0, s60")
    a("buffer_load_dwordx4 v6, s[24:27], s39 offen lds\nbuffer_load_dwordx4 v6, s[24:27], s39 offen offset:1024 lds")
    a("s_barrier")
    a("s_cmp_ge_u32 s33, 2\ns_cbranch_scc1 K2w_nw\nv_lshlrev_b32 v7, 1, v0\nbuffer_load_ushort v8, v7, s[56:59], 0 offen")
    a(f"v_lshlrev_b32 v7, 2, v0\nv_add_u32 v7, {S0}, v7\ns_waitcnt vmcnt(0)\nv_lshlrev_b32 v8, 16, v8\nds_write_b32 v7, v8\nK2w_nw:")
    a("s_waitcnt vmcnt(0) lgkmcnt(0)\ns_barrier")
    a(f"v_lshlrev_b32 v6, 11, v4\nv_lshl_add_u32 v6, v3, 1, v6\ns_lshl_b32 s39, s36, 6\ns_add_u32 s39, s39, {WO}\nv_add_u32 v6, s39, v6")
    for u in range(8):
        for t in range(8):
            a(f"ds_read_u16 v{(96 if t&1 else 48)+4*u+t//2}, v6 offset:{(16*u+t)*256}")
    a("s_waitcnt lgkmcnt(0)")
    for i in range(32): a(f"v_lshl_or_b32 v{48+i}, v{96+i}, 16, v{48+i}")
    a("s_waitcnt lgkmcnt(0)\nK2w_mm:")
    for u in range(8): a(f"v_mfma_f32_32x32x16_bf16 v[80:95], v[{16+4*u}:{19+4*u}], v[{48+4*u}:{51+4*u}], {'0' if u == 0 else 'v[80:95]'}")
    a(f"s_mul_i32 s39, s35, {32*516}\ns_lshl_b32 s60, s36, 7\ns_add_u32 s39, s39, s60\nv_mul_u32_u24 v6, {4*516}, v4\nv_lshl_add_u32 v6, v3, 2, v6\nv_add_u32 v6, s39, v6")
    for r in range(16): a(f"ds_write_b32 v6, v{80+r} offset:{(8*(r>>2)+(r&3))*516}")
    a("s_waitcnt lgkmcnt(0)\ns_barrier")
    a("v_and_b32 v5, 127, v0\ns_lshr_b32 s39, s33, 1\ns_and_b32 s39, s39, 3\ns_cmp_ge_u32 s33, 8\ns_cbranch_scc1 K2w_col")
    a(f"v_mul_u32_u24 v6, 516, v5\ns_lshl_b32 s60, s39, 7\nv_add_u32 v6, s60, v6\ns_add_u32 s60, s60, {S0}\nv_mov_b32 v7, s60")
    for i in range(16): a(f"ds_read2_b32 v[{16+2*i}:{17+2*i}], v6 offset0:{2*i} offset1:{2*i+1}")
    for i in range(8): a(f"ds_read_b128 v[{48+4*i}:{51+4*i}], v7 offset:{16*i}")
    a("s_waitcnt lgkmcnt(0)\nv_mov_b32 v8, 0\nv_mov_b32 v9, 0")
    for i in range(32): a(f"v_add_f32 v8, v8, v{16+i}\nv_fmac_f32 v9, v{16+i}, v{48+i}")
    a(f"v_lshlrev_b32 v5, 2, v5\nv_add_u32 v5, {S0}, v5\nds_add_f32 v5, v8 offset:512\nds_add_f32 v5, v9 offset:1024\ns_branch K2w_sd")
    a(f"K2w_col:\ns_mul_i32 s60, s39, {32*516}\nv_lshlrev_b32 v5, 2, v5\nv_add_u32 v6, s60, v5")
    for i in range(32): a(f"ds_read_b32 v{16+i}, v6 offset:{i*516}")
    a("s_waitcnt lgkmcnt(0)\nv_mov_b32 v8, 0")
    for i in range(32): a(f"v_add_f32 v8, v8, v{16+i}")
    a(f"v_add_u32 v5, {S0}, v5\nds_add_f32 v5, v8 offset:1536")
    a("K2w_sd:\ns_waitcnt lgkmcnt(0)\ns_barrier")
    a(f"v_lshlrev_b32 v5, 3, v2\nv_add_u32 v5, {S0}, v5\nds_read_b64 v[8:9], v5\nds_read_b64 v[10:11], v5 offset:512\nds_read_b64 v[12:13], v5 offset:1024\ns_waitcnt lgkmcnt(0)")
    a("v_add_f32 v8, v8, v9\nv_add_f32 v10, v10, v11\nv_add_f32 v12, v12, v13")
    for v in (8, 10, 12): a.red63('v_add_f32', v)
    a("v_readlane_b32 s60, v8, 63\nv_readlane_b32 s61, v10, 63\nv_readlane_b32 s62, v12, 63")
    a(f"s_mov_b32 s63, {f2u(1/128.)}\ns_mov_b32 s64, {f2u(-1/128.)}\ns_mov_b32 s65, {SCL}\nv_lshlrev_b32 v15, 4, v2")
    a(f"s_lshl_b32 s66, s33, 11\ns_lshl_b32 s67, s34, 15\ns_add_u32 s66, s66, s67\ns_add_u32 s66, s66, {WS_WFR}")
    a("s_lshr_b32 s35, s33, 2\ns_and_b32 s36, s33, 3\ns_lshl_b32 s36, s36, 1")
    a("s_cmp_eq_u32 s34, 0\ns_cbranch_scc0 K2w_fb")
    a("v_and_b32 v5, 0x19, v3\nv_bfe_u32 v6, v3, 1, 1\nv_lshl_or_b32 v5, v6, 2, v5\nv_bfe_u32 v6, v3, 2, 1\nv_lshl_or_b32 v5, v6, 1, v5")
    a("s_lshl_b32 s37, s35, 5\nv_add_u32 v5, s37, v5")
    a(f"v_lshlrev_b32 v7, 2, v5\nv_add_u32 v7, {S0}, v7\nds_read_b32 v14, v7 offset:512")
    a(f"s_lshl_b32 s37, s36, 6\nv_lshl_add_u32 v6, v4, 3, s37\nv_mul_u32_u24 v5, 516, v5\nv_add_u32 v5, v5, v6\nv_add_u32 v6, {S0+1536}, v6")
    for h in range(2):
        for i in range(4):
            a(f"ds_read2_b32 v[{16+16*h+2*i}:{17+16*h+2*i}], v5 offset0:{16*h+4*i} offset1:{16*h+4*i+1}")
            a(f"ds_read2_b32 v[{24+16*h+2*i}:{25+16*h+2*i}], v6 offset0:{16*h+4*i} offset1:{16*h+4*i+1}")
    a("v_mov_b32 v8, s61\nv_mul_f32 v8, s63, v8\ns_waitcnt lgkmcnt(0)\nv_sub_f32 v14, v8, v14\nv_mul_f32 v14, s63, v14")
    for h in range(2):
        for j in range(8):
            x = 16+16*h+j
            a(f"v_add_f32 v{x}, v{x}, v14\nv_fmac_f32 v{x}, s64, v{x+8}\nv_mul_f32 v{x}, s65, v{x}")
        for i in range(4): a(f"v_cvt_pk_bf16_f32 v{48+4*h+i}, v{16+16*h+2*i}, v{17+16*h+2*i}")
        a(f"buffer_store_dwordx4 v[{48+4*h}:{51+4*h}], v15, s[28:31], s66 offen offset:{1024*h}")
    a("s_endpgm\nK2w_fb:")
    a("s_lshl_b32 s37, s35, 7\nv_lshl_add_u32 v5, v3, 2, s37")
    a(f"v_add_u32 v7, {S0+1536}, v5\nds_read_b32 v14, v7")
    a(f"s_mul_i32 s37, s36, {16*516}\nv_mul_u32_u24 v6, {2*516}, v4\nv_add3_u32 v5, v5, v6, s37")
    for h in range(2):
        for i in range(4):
            for c in range(2): a(f"ds_read_b32 v{16+8*h+2*i+c}, v5 offset:{(16*h+4*i+c)*516}")
    a("s_waitcnt lgkmcnt(0)")
    for h in range(2):
        for j in range(8): a(f"v_fmac_f32 v{16+8*h+j}, s64, v14")
        for i in range(4): a(f"v_cvt_pk_bf16_f32 v{48+4*h+i}, v{16+8*h+2*i}, v{17+8*h+2*i}")
        a(f"buffer_store_dwordx4 v[{48+4*h}:{51+4*h}], v15, s[28:31], s66 offen offset:{1024*h}")
    a("s_cmp_ge_u32 s33, 8\ns_cbranch_scc1 K2_end")
    a("v_and_b32 v5, 3, v2\nv_lshrrev_b32 v6, 5, v2\nv_max_u32 v7, 1, v5\nv_lshlrev_b32 v7, 9, v7\nv_lshl_add_u32 v7, v6, 3, v7")
    a(f"s_lshl_b32 s37, s33, 6\ns_add_u32 s37, s37, {S0-512}\nv_add_u32 v7, s37, v7")
    for i in range(4): a(f"ds_read2_b32 v[{16+2*i}:{17+2*i}], v7 offset0:{4*i} offset1:{4*i+1}")
    a("v_mov_b32 v8, s61\nv_mov_b32 v9, s62\nv_cmp_eq_u32 s[40:41], 2, v5\nv_cmp_eq_u32 s[42:43], 3, v5\nv_cmp_eq_u32 s[44:45], 0, v5")
    a("v_cndmask_b32 v8, 0, v8, s[40:41]\nv_cndmask_b32 v8, v8, v9, s[42:43]")
    a("v_lshrrev_b32 v10, 2, v2\nv_lshrrev_b32 v11, 4, v2\nv_xor_b32 v10, v10, v11\nv_and_b32 v10, 1, v10\nv_cmp_eq_u32 s[46:47], 0, v10\ns_waitcnt lgkmcnt(0)")
    for j in range(8): a(f"v_fmac_f32 v{16+j}, s64, v8\nv_cndmask_b32 v{16+j}, v{16+j}, 1.0, s[44:45]\nv_cndmask_b32 v{16+j}, 0, v{16+j}, s[46:47]")
    for i in range(4): a(f"v_cvt_pk_bf16_f32 v{48+i}, v{16+2*i}, v{17+2*i}")
    a(f"s_lshl_b32 s37, s33, 10\ns_add_u32 s37, s37, {WS_WFR+WFR_E}\nbuffer_store_dwordx4 v[48:51], v15, s[28:31], s37 offen")
    a(f"v_mov_b32 v8, s60\ns_mov_b32 s37, {WS_WFR+WFR_SW}\ns_mov_b64 exec, 1\nbuffer_store_dword v8, v15, s[28:31], s37 offen")
    a("s_endpgm")


NR = 80; DEP = 5; NBUF = 6
QB = QN*4
L3_SIZE = GS + 64
ACC, AOP, ADR, BUF, DIS, GK, IDX = 4, 8, 10, 14, 26, 33, 48
SPIN = 1 << 20
def k3(a):
    name = 'hop_kernel'
    a.launch(name, 256, 1024, L3_SIZE)
    a.begin(name)
    a("s_cmp_ge_u32 s2, 256\ns_cbranch_scc1 K3_end")
    a("s_load_dwordx2 s[4:5], s[0:1], 88")
    a("v_lshrrev_b32 v4, 6, v0\nv_and_b32 v0, 63, v0\nv_readfirstlane_b32 s19, v4")
    a("s_lshr_b32 s16, s2, 3\ns_and_b32 s16, s16, 3\ns_and_b32 s17, s2, 7\ns_lshl_b32 s17, s17, 3\ns_lshr_b32 s18, s2, 5\ns_or_b32 s18, s18, s17")
    a("s_mul_i32 s20, s19, 98\ns_add_u32 s21, s20, 98\ns_lshr_b32 s20, s20, 4\ns_lshr_b32 s21, s21, 4\ns_sub_u32 s21, s21, s20")
    a("s_mul_i32 s48, s16, 98\ns_add_u32 s48, s48, s20")
    a("v_lshlrev_b32 v1, 2, v0\nv_lshlrev_b32 v3, 4, v0")
    a("s_waitcnt lgkmcnt(0)")
    a.srd(8, 4, WS_SIZE)
    a(f"s_lshl_b32 s49, s48, 2\ns_add_u32 s49, s49, {WS_TQ}\ns_buffer_load_dwordx8 s[40:47], s[8:11], s49")
    a("s_getreg_b32 s50, hwreg(HW_REG_XCC_ID)\ns_and_b32 s50, s50, 0xff\ns_add_u32 s50, s50, 1")
    a("s_lshl_b32 s51, s18, 9\ns_cmp_lg_u32 s19, 0\ns_cbranch_scc1 K3_nox")
    a("s_lshl_b32 s52, s16, 2\ns_add_u32 s52, s52, s51\nv_mov_b32 v4, s50\ns_mov_b64 exec, 1")
    a("buffer_store_dword v4, v1, s[8:11], s52 offen offset:256 sc1\ns_mov_b64 exec, -1\nK3_nox:")
    a(f"s_mul_i32 s39, s18, {GS}\ns_add_u32 s39, s39, {WS_G}")
    a("s_lshl_b32 s52, s19, 10\ns_add_u32 s53, s52, s39")
    for i in range(7):
        if i == 6: a("s_cmp_ge_u32 s19, 2\ns_cbranch_scc1 K3_nt")
        a("s_mov_b32 m0, s52\nbuffer_load_dwordx4 v3, s[8:11], s53 offen lds")
        if i < 6: a("s_add_u32 s52, s52, 16384\ns_add_u32 s53, s53, 16384")
    a("K3_nt:")
    a(f"s_lshl_b32 s52, s48, 8\ns_add_u32 s52, s52, {WS_DISP}")
    for i in range(7): a(f"buffer_load_dword v{DIS+i}, v1, s[8:11], s52 offen offset:{i*256}")
    a("s_waitcnt lgkmcnt(0)")
    a("s_cmp_eq_u32 s21, 7\ns_cselect_b32 s46, s46, 0")
    for i in range(1, 7): a(f"s_add_u32 s{40+i}, s{40+i}, s{39+i}")
    a(f"s_min_u32 s47, s46, {NR}")
    a(f"s_sub_u32 s28, s47, {DEP+1}\ns_mov_b64 s[32:33], 0\ns_mov_b64 s[34:35], 0\ns_mov_b32 s29, 0")
    def setbit(src, d0, d1):
        a(f"s_lshl_b64 s[54:55], 1, s{src}\ns_cmp_lt_u32 s{src}, 64\ns_cselect_b64 s[56:57], s[54:55], 0\ns_cselect_b64 s[54:55], 0, s[54:55]")
        a(f"s_or_b64 s[{d0}:{d0+1}], s[{d0}:{d0+1}], s[56:57]\ns_or_b64 s[{d1}:{d1+1}], s[{d1}:{d1+1}], s[54:55]")
    for i in range(7):
        a(f"s_sub_u32 s{40+i}, s{40+i}, 1"); setbit(40+i, 32, 34)
        a(f"s_sub_i32 s52, s{40+i}, s28\ns_sub_i32 s52, s52, 1\ns_lshl_b32 s53, 1, s52\ns_cmp_ge_i32 s52, 0\ns_cselect_b32 s53, s53, 0\ns_or_b32 s29, s29, s53")
    a("s_mov_b64 s[24:25], s[32:33]\ns_mov_b64 s[26:27], s[34:35]"); setbit(28, 24, 26)
    a(f"s_lshl_b32 s52, s48, 13\ns_add_u32 s52, s52, {WS_IDX}\ns_add_u32 s53, s52, 8192")
    for p in range(NR):
        a(f"buffer_load_dword v{IDX+p}, v1, s[8:11], s52 offen")
        if p == NR-1: break
        F = 32 if p < 64 else 34
        a(f"s_add_u32 s52, s52, 256\ns_bitcmp1_b64 s[{F}:{F+1}], {p&63}\ns_cselect_b32 s52, s53, s52\ns_cselect_b32 s54, 8192, 0\ns_add_u32 s53, s53, s54")
        if p % 2 == 1 and p >= 5: a(f"s_cmp_le_u32 s47, {p+1}\ns_cbranch_scc1 K3_ld")
    a("K3_ld:")
    a("v_lshrrev_b32 v2, 2, v0\nv_lshlrev_b32 v2, 10, v2\nv_and_b32 v4, 3, v0\nv_lshl_add_u32 v2, v4, 2, v2")
    a(f"v_cmp_eq_u32 s[54:55], 0, v4\nv_cmp_eq_u32 s[56:57], 1, v4\nv_mov_b32 v5, 0x3f80\nv_mov_b32 v6, 0x3f800000")
    a(f"v_cndmask_b32 v{AOP}, 0, v5, s[54:55]\nv_cndmask_b32 v{AOP}, v{AOP}, v6, s[56:57]\nv_mov_b32 v{AOP+1}, v{AOP}")
    for i in range(4): a(f"v_mov_b32 v{ACC+i}, 0")
    a("s_lshl_b32 s52, s19, 2\ns_add_u32 s52, s52, s51\nv_lshlrev_b32 v44, 6, v0\nv_add_u32 v44, s52, v44")
    a("s_lshl_b32 s58, s16, 6\ns_add_u32 s58, s58, s52")
    a(f"s_lshl_b32 s59, s20, 8\ns_mul_i32 s60, s16, {QB}\ns_add_u32 s60, s60, s59\nv_add_u32 v45, s60, v1")
    a(f"s_lshl_b32 s61, s48, 14\ns_lshl_b32 s52, s18, 4\ns_add_u32 s61, s61, s52\ns_add_u32 s61, s61, {WS_TOK}")
    a("s_mov_b32 s62, -1\ns_cmp_eq_u32 s21, 7\ns_cselect_b32 s63, 0xffff, 0")
    a("s_mov_b32 s64, 0\ns_mov_b64 exec, 15")
    a(f"K3_xp:\ns_add_u32 s64, s64, 1\ns_cmp_gt_u32 s64, {SPIN}\ns_cbranch_scc1 K3_xb")
    a("buffer_load_dword v46, v1, s[8:11], s51 offen offset:256 sc1\ns_waitcnt vmcnt(0)\nv_cmp_eq_u32 vcc, 0, v46\ns_cbranch_vccnz K3_xp\nK3_xb:")
    a("v_cmp_ne_u32 vcc, s50, v46\ns_cmp_lg_u64 vcc, 0\ns_cselect_b32 s23, 1, 0\ns_mov_b64 exec, -1")
    a("s_mov_b32 s22, 1\ns_waitcnt vmcnt(0)\ns_barrier")
    def adr(p):
        for h in range(2): a(f"v_lshlrev_b32_sdwa v{ADR+2*(p&1)+h}, 2, v{IDX+p} {SD} src1_sel:WORD_{h}")
    def rd(p):
        for h in range(2): a(f"ds_read_b32 v{BUF+2*(p%NBUF)+h}, v{ADR+2*(p&1)+h}")
    def mf(p): a(f"v_mfma_f32_4x4x4_16b_bf16 v[{ACC}:{ACC+3}], v[{AOP}:{AOP+1}], v[{BUF+2*(p%NBUF)}:{BUF+2*(p%NBUF)+1}], v[{ACC}:{ACC+3}]")
    a("K3_hop:")
    a(f"s_add_u32 s39, s39, {KS}\ns_add_u32 s61, s61, {KS}\ns_add_u32 s37, s39, s60\ns_mov_b32 s38, s61\ns_mov_b32 s36, 0")
    a("s_cmp_eq_u32 s22, 7\ns_cselect_b32 s23, 2, s23")
    for p in range(DEP): adr(p); rd(p)
    adr(DEP)
    for p in range(NR-DEP):
        rd(p+DEP); a(f"s_waitcnt lgkmcnt({2*DEP})"); mf(p)
        if p+DEP+1 < NR: adr(p+DEP+1)
        S = 24 if p < 64 else 26
        a(f"s_bitcmp1_b64 s[{S}:{S+1}], {p&63}\ns_cbranch_scc1 K3_st{p}\nK3_bk{p}:")
    a("s_endpgm")
    for p in range(NR-DEP):
        F = 32 if p < 64 else 34
        a(f"K3_st{p}:\ns_bitcmp1_b64 s[{F}:{F+1}], {p&63}\ns_cbranch_scc0 K3_nf{p}\ns_call_b64 s[30:31], K3_flush\nK3_nf{p}:")
        a(f"s_cmp_eq_u32 s28, {p}\ns_cbranch_scc1 K3_dr{(p+1)%NBUF}\ns_branch K3_bk{p}")
    for r in range(NBUF):
        a(f"K3_dr{r}:")
        for i in range(DEP):
            a(f"s_waitcnt lgkmcnt({2*(DEP-1-i)})"); mf(r+i)
            if i < DEP-1: a(f"s_bitcmp1_b32 s29, {i}\ns_cbranch_scc0 K3_dn{r}_{i}\ns_call_b64 s[30:31], K3_flush\nK3_dn{r}_{i}:")
            else: a("s_call_b64 s[30:31], K3_flush\ns_branch K3_hend")
    a("K3_flush:\ns_set_gpr_idx_on s36, gpr_idx(SRC0)")
    a(f"v_mul_f32 v40, v{DIS}, v{ACC}\nv_mul_f32 v41, v{DIS}, v{ACC+1}\nv_mul_f32 v42, v{DIS}, v40\nv_mul_f32 v43, v{DIS}, v41\ns_set_gpr_idx_off")
    a(f"v_cvt_pk_bf16_f32 v46, v42, v43\nv_cvt_pk_bf16_f32 v47, v40, v41\nv_mov_b32 v{ACC}, 0\nv_mov_b32 v{ACC+1}, 0")
    a(f"s_set_gpr_idx_on s36, gpr_idx(DST)\nv_mov_b32 v{GK}, v46\ns_set_gpr_idx_off")
    a("s_cmp_eq_u32 s23, 0\ns_cbranch_scc0 K3_f1\nbuffer_store_dword v46, v1, s[8:11], s37 offen")
    a("K3_f2:\nbuffer_store_dword v47, v2, s[8:11], s38 offen")
    a("s_add_u32 s37, s37, 256\ns_add_u32 s38, s38, 16384\ns_add_u32 s36, s36, 1\ns_setpc_b64 s[30:31]")
    a("K3_f1:\ns_cmp_eq_u32 s23, 1\ns_cbranch_scc0 K3_f2\nbuffer_store_dword v46, v1, s[8:11], s37 offen sc1\ns_branch K3_f2")
    a("K3_hend:\ns_cmp_eq_u32 s22, 7\ns_cbranch_scc1 K3_end")
    a("v_mov_b32 v46, s22\ns_waitcnt vmcnt(1)\ns_mov_b64 exec, 1\ns_cmp_eq_u32 s23, 0\ns_cbranch_scc0 K3_g1")
    a("buffer_store_dword v46, v1, s[8:11], s58 offen\ns_branch K3_g2\nK3_g1:\nbuffer_store_dword v46, v1, s[8:11], s58 offen sc1\nK3_g2:")
    a("s_mov_b64 exec, -1\ns_barrier")
    for i in range(6): a(f"ds_write_b32 v45, v{GK+i} offset:{i*256}")
    a(f"s_cmp_eq_u32 s21, 7\ns_cbranch_scc0 K3_w6\nds_write_b32 v45, v{GK+6} offset:1536\nK3_w6:")
    a("s_mov_b64 exec, 15")
    a(f"K3_poll:\ns_add_u32 s64, s64, 1\ns_cmp_gt_u32 s64, {SPIN}\ns_cbranch_scc1 K3_pb")
    a("buffer_load_dword v46, v44, s[8:11], 0 offen sc1\ns_waitcnt vmcnt(0)\nv_cmp_gt_u32 vcc, s22, v46\ns_cbranch_vccnz K3_poll\nK3_pb:")
    a("s_mov_b64 exec, -1")
    for r in range(1, 4):
        a(f"s_add_u32 s52, s16, {r}\ns_and_b32 s52, s52, 3\ns_mul_i32 s52, s52, {QB}\ns_add_u32 s52, s52, s59\ns_add_u32 s53, s52, s39\ns_mov_b32 m0, s52")
        a("buffer_load_dwordx4 v3, s[8:11], s53 offen sc1 lds")
        a("s_mov_b64 exec, s[62:63]\nbuffer_load_dwordx4 v3, s[8:11], s53 offen offset:1024 sc1 lds\ns_mov_b64 exec, -1")
    a("s_add_u32 s22, s22, 1\ns_waitcnt vmcnt(0) lgkmcnt(0)\ns_barrier\ns_branch K3_hop")
    a("K3_end:\ns_endpgm")
    a.end(name, 128, 102)


class Q:
    def __init__(s, a, name, cap): s.a = a; s.name = name; s.cap = cap; s.n = 0; s.done = 0
    def op(s, text): s.a(text); s.n += 1; return s.n
    def wait(s, t):
        if t > s.done:
            s.a(f"s_waitcnt {s.name}({min(s.n - t, s.cap)})"); s.done = max(t, s.n - s.cap) if s.n - t <= s.cap else s.n - s.cap
            assert s.done >= t
L4_SCR = 73728; L4_SIZE = 73728 + 8192
TK = (16, 48); WF = 80; NWF = 6; AC = (104, 120); PK = (136, 144); SS = 152; OO = 168; SEL = 232; PA = 240; EA = 248
EPS = f2u(1e-5); I128 = f2u(1/128.); LOG2E = f2u(math.log2(math.e))
def k4(a):
    name = 'att_kernel'
    a.launch(name, 256, 512, L4_SIZE)
    a.begin(name)
    lg = Q(a, 'lgkmcnt', 15); vm = Q(a, 'vmcnt', 63)
    a("s_cmp_ge_u32 s2, 256\ns_cbranch_scc1 K4_end")
    a("s_load_dwordx2 s[4:5], s[0:1], 88\ns_load_dwordx2 s[6:7], s[0:1], 72")
    a("v_lshrrev_b32 v4, 6, v0\nv_and_b32 v0, 63, v0\nv_readfirstlane_b32 s19, v4")
    a(f"v_and_b32 v4, 7, v0\ns_mov_b32 s3, {KS}\nv_mul_lo_u32 v1, s3, v4\nv_lshrrev_b32 v5, 5, v0\nv_lshl_add_u32 v1, v5, 4, v1\nv_bfe_u32 v6, v0, 3, 2\nv_lshl_add_u32 v1, v6, 2, v1")
    a("v_lshlrev_b32 v2, 4, v0\nv_lshlrev_b32 v3, 3, v5")
    a("s_lshl_b32 s20, s2, 3\ns_add_u32 s20, s20, s19\ns_mul_i32 s20, s20, 3")
    a("s_waitcnt lgkmcnt(0)")
    a.srd(8, 4, WS_SIZE); a.srd(12, 6, N*256)
    a(f"s_mov_b32 s3, {WS_WFR+WFR_SW}\ns_buffer_load_dword s24, s[8:11], s3")
    PM = (252, 254)
    def loads(buf, squad):
        a(f"s_lshl_b32 s21, s{squad}, 10\ns_add_u32 s21, s21, {WS_TOK}\ns_lshl_b32 s22, s{squad}, 4\ns_add_u32 s22, s22, {WS_PERM}")
        for t in range(32): vm.op(f"buffer_load_dword v{TK[buf]+t}, v1, s[8:11], s21 offen offset:{t*32}")
        return vm.op(f"buffer_load_dwordx2 v[{PM[buf]}:{PM[buf]+1}], v3, s[8:11], s22 offen")
    t0 = loads(0, 20)
    a(f"s_lshl_b32 s25, s19, 10\ns_add_u32 s26, s25, {WS_WFR}")
    for i in range(9):
        a("s_mov_b32 m0, s25"); tw = vm.op("buffer_load_dwordx4 v2, s[8:11], s26 offen lds")
        if i < 8: a("s_add_u32 s25, s25, 8192\ns_add_u32 s26, s26, 8192")
    a("s_add_u32 s23, s20, 1")
    t1 = loads(1, 23)
    for n in range(4): a(f"v_cmp_eq_u32 s[{32+2*n}:{33+2*n}], {n}, v6")
    a("v_and_b32 v7, 31, v0\nv_bfe_u32 v8, v7, 1, 1\nv_cmp_eq_u32 s[40:41], v8, v5")
    a("v_and_b32 v8, 1, v7\nv_lshlrev_b32 v8, 4, v8\nv_mov_b32 v9, 0x3f80\nv_lshlrev_b32 v9, v8, v9\nv_cndmask_b32 v9, 0, v9, s[40:41]\nv_lshrrev_b32 v8, 2, v7")
    for j in range(8): a(f"v_cmp_eq_u32 s[40:41], {j}, v8\nv_cndmask_b32 v{SEL+j}, 0, v9, s[40:41]")
    a(f"s_lshl_b32 s25, s19, 10\ns_add_u32 s25, s25, {L4_SCR}")
    a("v_lshl_add_u32 v4, v7, 2, s25")
    a("v_lshlrev_b32 v8, 5, v6\nv_lshl_add_u32 v8, v5, 4, v8\nv_add_u32 v8, s25, v8")
    a("v_lshl_add_u32 v9, v5, 4, s25")
    a("v_bfe_u32 v10, v0, 2, 2\nv_lshlrev_b32 v10, 5, v10\nv_bfe_u32 v11, v0, 4, 1\nv_lshl_add_u32 v10, v11, 2, v10\nv_add_u32 v10, v10, v9")
    a("v_lshlrev_b32 v7, 1, v7")
    a(f"s_mov_b32 s28, {I128}\ns_mov_b32 s29, {EPS}\ns_mov_b32 s30, {LOG2E}\ns_waitcnt lgkmcnt(0)")
    vm.wait(tw); a("s_barrier")
    frag_off = [WFR_E + u*1024 for u in range(8)] + [f*1024 for f in range(64)]
    def group(buf, tl, after_tok):
        T = lambda u: f"v[{TK[buf]+4*u}:{TK[buf]+4*u+3}]"
        st = {'next': 0, 'h': {}}
        def pre(k):
            while st['next'] <= min(k, 71):
                j = st['next']; r = WF + 4*(j % NWF)
                st['h'][j] = lg.op(f"ds_read_b128 v[{r}:{r+3}], v2 offset:{frag_off[j]}" if frag_off[j] < 65536 else f"ds_read_b128 v[{r}:{r+3}], v15 offset:{frag_off[j]-65536}")
                st['next'] += 1
        def W(j):
            pre(j + NWF - 2); lg.wait(st['h'][j]); r = WF + 4*(j % NWF); return f"v[{r}:{r+3}]"
        R16 = lambda b: f"v[{b}:{b+15}]"
        pre(NWF-2)
        vm.wait(tl)
        a(f"v_lshl_add_u32 v5, v{PM[buf]}, 8, v7\nv_lshl_add_u32 v6, v{PM[buf]+1}, 8, v7")
        for u in range(8): a(f"v_mfma_f32_16x16x32_bf16 v[{EA}:{EA+3}], {W(u)}, {T(u)}, {'0' if u == 0 else f'v[{EA}:{EA+3}]'}")
        a(f"v_mov_b32 v11, 0")
        for t in range(32): a(f"v_dot2_f32_bf16 v11, v{TK[buf]+t}, v{TK[buf]+t}, v11")
        def ychain(t):
            for u in range(8): a(f"v_mfma_f32_32x32x16_bf16 {R16(AC[t&1])}, {W(8+8*t+u)}, {T(u)}, {'0' if u == 0 else R16(AC[t&1])}")
        def zchain(t):
            for u in range(8): a(f"v_mfma_f32_32x32x16_bf16 {R16(AC[t&1])}, {T(u)}, {W(40+8*t+u)}, {'0' if u == 0 else R16(AC[t&1])}")
        def pack(t):
            for d in range(8): a(f"v_cvt_pk_bf16_f32 v{PK[t&1]+d}, v{AC[t&1]+2*d}, v{AC[t&1]+2*d+1}")
        def smf(t):
            for h in range(2): a(f"v_mfma_f32_32x32x16_bf16 {R16(SS)}, v[{PK[t&1]+4*h}:{PK[t&1]+4*h+3}], {T(2*t+h)}, {'0' if t == 0 and h == 0 else R16(SS)}")
        def sel(b):
            for h in range(2): a(f"v_mfma_f32_32x32x16_bf16 {R16(OO+16*b)}, {T(2*b+h)}, v[{SEL+4*h}:{SEL+4*h+3}], {'0' if h == 0 else R16(OO+16*b)}")
        def pz(b):
            for h in range(2): a(f"v_mfma_f32_32x32x16_bf16 {R16(OO+16*b)}, v[{PA+4*h}:{PA+4*h+3}], v[{PK[b&1]+4*h}:{PK[b&1]+4*h+3}], {R16(OO+16*b)}")
        ychain(0)
        a(f"v_mov_b32 v12, v11\nv_permlane32_swap_b32 v11, v12\nv_add_f32 v11, v11, v12\nv_mul_f32 v12, s28, v{EA}\nv_mul_f32 v12, v12, v12\nv_fma_f32 v11, v11, s28, -v12")
        a("v_max_f32 v11, 0, v11\nv_add_f32 v11, s29, v11\nv_rsq_f32 v11, v11")
        lg.op("ds_write_b32 v4, v11"); lg.op(f"ds_write_b32 v4, v{EA+2} offset:128"); lg.op(f"ds_write_b32 v4, v{EA+3} offset:256")
        RL, ZS, ZD = PA, PA+4, OO
        hr = lg.op(f"ds_read_b128 v[{RL}:{RL+3}], v8"); lg.op(f"ds_read_b128 v[{ZS}:{ZS+3}], v8 offset:128"); hz = lg.op(f"ds_read_b128 v[{ZD}:{ZD+3}], v8 offset:256")
        ychain(1); pack(0); smf(0)
        ychain(2); pack(1); smf(1)
        ychain(3); pack(2); smf(2)
        zchain(0); pack(3); smf(3)
        for b in range(1, 4): sel(b)
        pack(0)
        zchain(1)
        X = AC[0]
        for r in range(4):
            a(f"v_cndmask_b32 v{X+r}, v{SS+r}, v{SS+4+r}, s[34:35]\nv_cndmask_b32 v{X+r}, v{X+r}, v{SS+8+r}, s[36:37]\nv_cndmask_b32 v{X+r}, v{X+r}, v{SS+12+r}, s[38:39]")
        lg.wait(hz)
        for r in range(4): a(f"v_mul_f32 v{X+r}, v{X+r}, v{RL+r}")
        a(f"v_max3_f32 v12, v{X}, v{X+1}, v{X+2}\nv_max_f32 v12, v12, v{X+3}\nv_mov_b32 v13, v12\nv_permlane32_swap_b32 v12, v13\nv_max_f32 v12, v12, v13\nv_mul_f32 v12, v12, v11")
        for r in range(4): a(f"v_fma_f32 v{X+r}, v{X+r}, v11, -v12")
        for r in range(4): a(f"v_exp_f32 v{X+r}, v{X+r}")
        a(f"v_add_f32 v12, v{X}, v{X+1}\nv_add_f32 v13, v{X+2}, v{X+3}\nv_add_f32 v12, v12, v13\nv_mov_b32 v13, v12\nv_permlane32_swap_b32 v12, v13\nv_add_f32 v12, v12, v13\nv_rcp_f32 v12, v12")
        for r in range(4): a(f"v_mul_f32 v{X+r}, v{X+r}, v{RL+r}")
        for r in range(4): a(f"v_mul_f32 v{X+r}, v{X+r}, v12")
        a(f"v_mul_f32 v13, v{X}, v{ZS}\nv_mul_f32 v14, v{X}, v{ZD}")
        for r in range(1, 4): a(f"v_fmac_f32 v13, v{X+r}, v{ZS+r}\nv_fmac_f32 v14, v{X+r}, v{ZD+r}")
        a(f"v_cvt_pk_bf16_f32 v{X+4}, v{X}, v{X+1}\nv_cvt_pk_bf16_f32 v{X+5}, v{X+2}, v{X+3}")
        for n in range(4): a(f"v_cndmask_b32 v{PA+2*n}, 0, v{X+4}, s[{32+2*n}:{33+2*n}]\nv_cndmask_b32 v{PA+2*n+1}, 0, v{X+5}, s[{32+2*n}:{33+2*n}]")
        sel(0)
        a(f"v_permlane32_swap_b32 v13, v14\nv_add_f32 v13, v13, v14\nv_mov_b32 v14, v13\nv_permlane32_swap_b32 v13, v14\nv_add_f32 v13, v13, v{EA}\nv_add_f32 v14, v14, v{EA+1}")
        pz(0)
        zchain(2); pack(1); pz(1)
        def sq(b):
            for r in range(16): a(f"v_mul_f32 v{SS+r}, v{OO+r}, v{OO+r}" if b == 0 else f"v_fmac_f32 v{SS+r}, v{OO+16*b+r}, v{OO+16*b+r}")
        sq(0)
        zchain(3); pack(2); pz(2)
        after_tok()
        sq(1)
        pack(3); pz(3)
        sq(2); sq(3)
        q = SS
        for i in range(8): a(f"v_add_f32_dpp v{q+i}, v{q+i}, v{q+i} row_ror:8 row_mask:0xf bank_mask:0x3\nv_add_f32_dpp v{q+i}, v{q+8+i}, v{q+8+i} row_ror:8 row_mask:0xf bank_mask:0xc")
        for i in range(4): a(f"v_add_f32_dpp v{q+i}, v{q+i}, v{q+i} row_half_mirror row_mask:0xf bank_mask:0x5\nv_add_f32_dpp v{q+i}, v{q+4+i}, v{q+4+i} row_half_mirror row_mask:0xf bank_mask:0xa")
        for i in range(4): a(f"v_add_f32_dpp v{q+i}, v{q+i}, v{q+i} quad_perm:[1,0,3,2] {DPPF}")
        for i in range(4): a(f"v_add_f32_dpp v{q+i}, v{q+i}, v{q+i} quad_perm:[2,3,0,1] {DPPF}")
        a(f"v_permlane16_swap_b32 v{q}, v{q+1}\nv_permlane16_swap_b32 v{q+2}, v{q+3}\nv_add_f32 v{q}, v{q}, v{q+1}\nv_add_f32 v{q+2}, v{q+2}, v{q+3}")
        lg.op(f"ds_write_b32 v10, v{q} offset:384"); lg.op(f"ds_write_b32 v10, v{q+2} offset:392")
        hq = lg.op(f"ds_read_b32 v12, v4 offset:384")
        a(f"v_mul_f32 v13, s28, v13\nv_fma_f32 v14, -v13, s24, v14\nv_mul_f32 v13, v13, v13\nv_mul_f32 v14, s30, v14")
        lg.wait(hq)
        a("v_fma_f32 v12, v12, s28, -v13\nv_max_f32 v12, 0, v12\nv_add_f32 v12, s29, v12\nv_rsq_f32 v12, v12\nv_mul_f32 v12, v12, v14")
        a(f"v_max_f32_dpp v13, v12, v12 quad_perm:[1,0,3,2] {DPPF}\nv_max_f32_dpp v13, v13, v13 quad_perm:[2,3,0,1] {DPPF}\nv_max_f32_dpp v13, v13, v13 row_half_mirror {DPPF}")
        a("v_sub_f32 v12, v12, v13\nv_exp_f32 v12, v12")
        a(f"v_add_f32_dpp v13, v12, v12 quad_perm:[1,0,3,2] {DPPF}\nv_add_f32_dpp v13, v13, v13 quad_perm:[2,3,0,1] {DPPF}\nv_add_f32_dpp v13, v13, v13 row_half_mirror {DPPF}")
        a("v_rcp_f32 v13, v13\nv_mul_f32 v12, v12, v13")
        lg.op("ds_write_b32 v4, v12 offset:512")
        AL = AC[0]
        ha = [lg.op(f"ds_read_b128 v[{AL+4*n}:{AL+4*n+3}], v9 offset:{512+32*n}") for n in range(4)]
        for n in range(4):
            lg.wait(ha[n])
            for b in range(4):
                x = SS + 4*b + n
                a(f"v_mul_f32 v{x}, v{AL+4*n}, v{OO+16*b+4*n}")
                for r in range(1, 4): a(f"v_fmac_f32 v{x}, v{AL+4*n+r}, v{OO+16*b+4*n+r}")
        for b in range(4):
            x = SS + 4*b
            a(f"v_permlane32_swap_b32 v{x}, v{x+2}\nv_permlane32_swap_b32 v{x+1}, v{x+3}\nv_add_f32 v{x}, v{x}, v{x+2}\nv_add_f32 v{x+1}, v{x+1}, v{x+3}\nv_cvt_pk_bf16_f32 v{x}, v{x}, v{x+1}")
            vm.op(f"buffer_store_short v{x}, v5, s[12:15], 0 offen offset:{64*b}")
            vm.op(f"buffer_store_short_d16_hi v{x}, v6, s[12:15], 0 offen offset:{64*b}")
    a("v_add_u32 v15, 0x10000, v2")
    hold = {}
    def nxt2(): a("s_add_u32 s23, s20, 2"); hold['t2'] = loads(0, 23)
    group(0, t0, nxt2)
    a(f"s_add_u32 s27, s2, 6144\ns_cmp_lt_u32 s2, 128\ns_cselect_b32 s31, 1, 0\ns_cmp_eq_u32 s19, 0\ns_cselect_b32 s31, s31, 0")
    a(f"s_sub_u32 s3, s27, {ZB//4}\ns_cmp_lt_u32 s3, 22\ns_cselect_b32 s31, 0, s31\ns_cmp_eq_u32 s31, 0\ns_cselect_b32 s27, s20, s27")
    def nxt3(): hold['t3'] = loads(1, 27)
    group(1, t1, nxt3)
    group(0, hold['t2'], lambda: None)
    a("s_cmp_eq_u32 s31, 0\ns_cbranch_scc1 K4_end")
    group(1, hold['t3'], lambda: None)
    a("K4_end:\ns_endpgm")
    a.end(name, 256, 102)

def build(ks, path, pre=''):
    a = K()
    for k in ks: k(a)
    open(path, 'w').write(a.text(pre))

if __name__ == '__main__':
    ref = open('standalone__hybrid_graph_tf_nagphormer__graph.s.ref').read().split('\n')
    pre = '\n'.join(l for l in ref if l.startswith(';') and 'launch' not in l and 'grid=' not in l) + '\n'
    build([k1, k2, k3, k4], 'stage.s', pre)
```

```python
import re
REG = re.compile(r'^(-|abs\()?([vas])(\d+)\)?$')
RNG = re.compile(r'^(-|abs\()?([vas])\[(\d+):(\d+)\]\)?$')
def regs(op):
    op = op.strip()
    m = REG.match(op)
    if m: return {(m.group(2), int(m.group(3)))}
    m = RNG.match(op)
    if m: return {(m.group(2), i) for i in range(int(m.group(3)), int(m.group(4))+1)}
    if op == 'vcc': return {('s', 'vcc_lo'), ('s', 'vcc_hi')}
    if op in ('vcc_lo', 'vcc_hi'): return {('s', op)}
    if op == 'exec': return {('s', 'exec_lo'), ('s', 'exec_hi')}
    if op in ('exec_lo', 'exec_hi'): return {('s', op)}
    if op == 'm0': return {('s', 'm0')}
    return set()
TRANS = ('v_exp_f32', 'v_log_f32', 'v_rcp_f32', 'v_rsq_f32', 'v_sqrt_f32', 'v_sin_f32', 'v_cos_f32', 'v_rcp_iflag_f32')
def passes(mn):
    if '4x4x4' in mn: return 2
    if '16x16x' in mn: return 4
    if '32x32x' in mn: return 8
    raise ValueError(mn)
class I:
    def __init__(s, text):
        s.text = text
        t = text.split(';')[0].strip()
        s.label = t[:-1] if t.endswith(':') else None
        s.dirv = t.startswith('.')
        s.mn = None
        s.w = set(); s.r = set(); s.kind = None
        if s.label or s.dirv or not t: return
        p = t.split(None, 1)
        s.mn = mn = p[0]
        rest = p[1] if len(p) > 1 else ''
        ops = [o.strip() for o in re.split(r',\s*(?![^\[]*\])', rest)] if rest else []
        if ops:
            last = ops[-1].split()
            s.mods = ' '.join(last[1:]); ops[-1] = last[0] if last else ''
        else: s.mods = ''
        s.ops = ops
        s.dpp = ('_dpp' in mn) or any(k in s.mods for k in ('quad_perm', 'row_', 'wave_'))
        if mn.startswith('v_mfma'):
            s.kind = 'mfma'; s.np = passes(mn)
            s.D = regs(ops[0]); s.A = regs(ops[1]); s.B = regs(ops[2]); s.C = regs(ops[3])
            s.w = s.D; s.r = s.A | s.B | s.C
        elif mn.startswith('v_'):
            s.kind = 'valu'
            if mn.startswith('v_cmp'):
                s.w = regs(ops[0]); s.r = set().union(*[regs(o) for o in ops[1:]])
                if mn.startswith('v_cmpx'): s.w |= regs('exec')
            elif mn.startswith(('v_swap', 'v_permlane32_swap', 'v_permlane16_swap')):
                s.w = regs(ops[0]) | regs(ops[1]); s.r = set(s.w)
            elif mn.startswith(('v_add_co', 'v_sub_co', 'v_addc_co', 'v_subb_co', 'v_subrev_co', 'v_mad_u64_u32', 'v_div_scale')):
                s.w = regs(ops[0]) | regs(ops[1]); s.r = set().union(*[regs(o) for o in ops[2:]])
            elif mn == 'v_nop': pass
            else:
                s.w = regs(ops[0]); s.r = set().union(set(), *[regs(o) for o in ops[1:]])
                if mn.startswith(('v_fmac', 'v_dot2c', 'v_writelane', 'v_mac')) or 'UNUSED_PRESERVE' in s.mods or (s.dpp and 'bound_ctrl' not in s.mods) or ('row_mask:0xf bank_mask:0xf' not in s.mods and s.dpp):
                    s.r |= regs(ops[0])
            s.trans = mn.startswith(TRANS)
            s.dot = mn.startswith('v_dot')
        elif mn.startswith('ds_'):
            s.kind = 'ds'
            allr = [regs(o) for o in ops]
            if mn.startswith(('ds_read', 'ds_bpermute', 'ds_permute', 'ds_swizzle')) or '_rtn' in mn:
                s.w = allr[0]; s.r = set().union(set(), *allr[1:])
            else: s.r = set().union(set(), *allr)
        elif mn.startswith(('buffer_', 'global_', 'flat_')):
            s.kind = 'vmem'
            allr = [regs(o) for o in ops]
            lds = ' lds' in (' ' + s.mods) or '_lds_' in mn
            s.lds = lds
            if mn in ('buffer_wbl2', 'buffer_inv'): pass
            elif 'load' in mn and not lds:
                s.w = allr[0]; s.r = set().union(set(), *allr[1:])
                if 'd16' in mn: s.r |= allr[0]
            elif 'atomic' in mn and ('sc0' in s.mods):
                s.w = allr[0]; s.r = set().union(set(), *allr)
            else: s.r = set().union(set(), *allr)
            if lds: s.r |= regs('m0')
            s.widestore = ('store' in mn and ('x3' in mn or 'x4' in mn))
            if s.widestore: s.data = allr[0] if mn.startswith('buffer') else allr[1]
        elif mn.startswith('s_'):
            s.kind = 'salu'
            if mn.startswith(('s_cmp', 's_bitcmp', 's_cbranch', 's_branch', 's_waitcnt', 's_nop', 's_barrier', 's_endpgm', 's_sleep', 's_setprio', 's_setpc', 's_set_gpr_idx_off')):
                s.r = set().union(set(), *[regs(o) for o in ops])
            elif mn.startswith('s_set_gpr_idx_on'):
                s.w = regs('m0'); s.r = regs(ops[0])
            else:
                s.w = regs(ops[0]); s.r = set().union(set(), *[regs(o) for o in ops[1:]])
                if 'saveexec' in mn: s.w |= regs('exec')
        else:
            raise ValueError('unknown instr ' + text)
    def states(s):
        if s.mn is None: return 0
        if s.mn == 's_nop': return int(s.ops[0], 0) + 1
        return 1
V = lambda S: {x for x in S if x[0] in 'va'}
SG = lambda S: {x for x in S if x[0] == 's'}
def need(p, c):
    n = 0
    if p.kind == 'valu':
        vw = V(p.w); sw = SG(p.w)
        if c.kind == 'mfma' and vw & c.r: n = max(n, 2)
        if c.kind == 'valu':
            if c.dpp and vw & V(c.r): n = max(n, 2)
            if c.mn.startswith('v_permlane') and vw & c.r: n = max(n, 2)
            if c.mn.startswith(('v_readlane', 'v_readfirstlane')) and vw & V(c.r): n = max(n, 1)
            if p.trans and vw & V(c.r): n = max(n, 1)
            if sw & SG(c.r):
                n = max(n, 4 if c.mn.startswith(('v_readlane', 'v_writelane', 'v_div_fmas')) else 2)
            if p.dot and vw & (V(c.r) | V(c.w)):
                if c.mn == p.mn and not (vw & (regs(c.ops[1]) | regs(c.ops[2]))): pass
                else: n = max(n, 3)
            if ('s', 'exec_lo') in sw:
                if c.dpp: n = max(n, 5)
                if c.mn.startswith(('v_readlane', 'v_readfirstlane', 'v_writelane', 'v_permlane')): n = max(n, 4)
        if p.dot and c.kind in ('mfma', 'ds', 'vmem') and vw & c.r: n = max(n, 3)
        if p.trans and c.kind in ('ds', 'vmem') and vw & c.r: n = max(n, 1)
        if c.kind == 'vmem' and sw & c.r: n = max(n, 5)
        if c.kind == 'mfma' and ('s', 'exec_lo') in sw: n = max(n, 4)
    elif p.kind == 'mfma':
        k = {2: 0, 4: 1, 8: 2, 16: 3}[p.np]
        if c.kind == 'mfma':
            if p.D & c.C:
                if p.D == c.C and p.mn == c.mn: n = max(n, (2, 0, 0, 0)[k])
                else: n = max(n, (4, 6, 10, 18)[k])
            if p.D & (c.A | c.B): n = max(n, (5, 8, 12, 20)[k])
            if (p.D & c.D) and not (p.D & c.C): n = max(n, (4, 6, 10, 18)[k])
        elif c.kind == 'valu':
            if p.D & (c.r | c.w): n = max(n, (5, 8, 12, 20)[k])
            if p.C & c.w: n = max(n, (1, 3, 7, 15)[k])
        elif c.kind in ('ds', 'vmem'):
            if p.D & (c.r | c.w): n = max(n, (5, 8, 12, 20)[k])
    elif p.kind == 'salu':
        if ('s', 'm0') in p.w:
            if c.kind == 'vmem' and c.lds: n = max(n, 1)
            if c.mn and (c.mn.startswith(('s_movrel', 'v_movrel')) or 'addtid' in c.mn): n = max(n, 1)
        if p.mn.startswith('s_setreg') and c.mn and c.mn.startswith(('s_getreg', 's_setreg')): n = max(n, 2)
    elif p.kind == 'vmem':
        if getattr(p, 'widestore', False) and c.kind in ('valu', 'mfma', 'ds', 'vmem') and p.data & c.w: n = max(n, 2)
    return n
MAXD = 20
def fix(lines, verbose=False):
    ins = [I(l) for l in lines]
    pre = [0]*len(ins)
    lab = {x.label: i for i, x in enumerate(ins) if x.label}
    jumps = {}
    rets = [i for i, x in enumerate(ins) if x.mn == 's_setpc_b64']
    for i, x in enumerate(ins):
        if x.mn and x.mn.startswith(('s_cbranch', 's_branch')): jumps.setdefault(lab[x.ops[0]], []).append(i)
        if x.mn == 's_call_b64':
            jumps.setdefault(lab[x.ops[1]], []).append(i)
            jumps.setdefault(i+1, []).extend(rets)
        if x.mn == 's_swappc_b64':
            pref = x.text.split('targets:')[1].strip()
            for l, j in lab.items():
                if l.startswith(pref): jumps.setdefault(j, []).append(i)
            jumps.setdefault(i+1, []).extend(rets)
    P = []
    for i in range(len(ins)):
        out = list(jumps.get(i, []))
        if i > 0 and ins[i-1].mn not in ('s_branch', 's_endpgm', 's_setpc_b64', 's_call_b64', 's_swappc_b64'): out.append(i-1)
        P.append(out)
    changed = True
    while changed:
        changed = False
        for i, c in enumerate(ins):
            if c.kind is None: continue
            if c.kind == 'salu' and not (c.mn.startswith(('s_movrel', 's_getreg', 's_setreg'))): continue
            deficit = 0
            best = {}
            stack = [(j, pre[i]) for j in P[i]]
            while stack:
                j, d = stack.pop()
                if j in best and best[j] <= d: continue
                best[j] = d
                p = ins[j]
                if p.kind:
                    n = need(p, c)
                    if n > d: deficit = max(deficit, n - d)
                d2 = d + p.states() + pre[j]
                if d2 < MAXD:
                    stack += [(q, d2) for q in P[j]]
            if deficit:
                if verbose: print('nop', deficit, 'before', c.text.strip())
                pre[i] += deficit
                changed = True
    out = []
    for i, x in enumerate(ins):
        k = pre[i]
        while k > 0:
            t = min(k, 16); out.append(f'    s_nop {t-1}'); k -= t
        out.append(x.text)
    return out, sum(pre)
```

```python
import hazard
class Op:
    def __init__(s, text, R=(), W=(), pri=0):
        s.text = text; s.i = hazard.I(text)
        s.r = set(s.i.r) | {('p', x) for x in R}; s.w = set(s.i.w) | {('p', x) for x in W}
        mn = s.i.mn; k = s.i.kind
        if k == 'salu':
            if not mn.startswith(('s_mov', 's_mul_i32', 's_setprio', 's_nop')): s.w.add(('p', 'scc'))
            if mn.startswith(('s_cselect', 's_addc')): s.r.add(('p', 'scc'))
        s.kind = k; s.bias = pri
        s.dot = k == 'valu' and (mn.startswith('v_dot') or mn.startswith('v_pk_'))
        s.cost = 4
        if k == 'mfma': s.cost = 8; s.pipe = s.i.np*4
        elif k == 'valu' and (s.i.trans or mn.startswith(('v_permlane', 'v_swap'))): s.cost = 8
        s.async_ = None
        if k == 'ds': s.async_ = 'lgkmcnt'
        if k == 'vmem': s.async_ = 'vmcnt'
def lat(p, c, kind):
    if kind == 'war':
        if p.kind == 'mfma' and c.kind == 'valu' and (p.i.C & c.w): return p.cost + p.pipe
        return p.cost
    if p.kind == 'mfma':
        if c.kind == 'mfma' and p.i.D == c.i.C and not (p.i.D & (c.i.A | c.i.B)): return p.pipe if p.i.np > 2 else 16
        return p.pipe + 20
    if p.kind == 'ds': return LDS_LAT if p.i.w else p.cost
    if p.kind == 'vmem': return VMEM_LAT if (p.w) else p.cost
    if p.kind == 'valu':
        n = hazard.need(p.i, c.i) if c.i.kind else 0
        if p.dot: return 12 + 4*n
        return p.cost + 4*n
    return p.cost
LDS_LAT = 120; VMEM_LAT = 1500
def schedule(ops, verbose=False):
    n = len(ops)
    succ = [[] for _ in range(n)]; npred = [0]*n
    lw = {}; lr = {}
    for j, c in enumerate(ops):
        e = {}
        for x in c.r:
            if x in lw: e[lw[x]] = max(e.get(lw[x], 0), lat(ops[lw[x]], c, 'raw'))
        for x in c.w:
            if x in lw: e[lw[x]] = max(e.get(lw[x], 0), lat(ops[lw[x]], c, 'raw'))
            for i in lr.get(x, ()):
                if i != j: e[i] = max(e.get(i, 0), lat(ops[i], c, 'war'))
        for i, l in e.items(): succ[i].append((j, l)); npred[j] += 1
        for x in c.r: lr.setdefault(x, []).append(j)
        for x in c.w: lw[x] = j; lr[x] = []
    cp = [0]*n
    for i in range(n-1, -1, -1):
        cp[i] = ops[i].bias + max([l + cp[j] for j, l in succ[i]] + [ops[i].cost])
    ready_t = [0]*n; avail = {i for i in range(n) if npred[i] == 0}
    t = 0; pipe = 0; order = []; stall = 0
    while avail:
        now = [i for i in avail if ready_t[i] <= t]
        pick = None
        mf = [i for i in now if ops[i].kind == 'mfma']
        ot = [i for i in now if ops[i].kind != 'mfma' and not ops[i].dot]
        dt = [i for i in now if ops[i].dot]
        indot = order and ops[order[-1]].dot
        if indot and dt: pick = max(dt, key=lambda i: cp[i])
        elif mf and pipe - t <= 4: pick = max(mf, key=lambda i: cp[i])
        elif ot: pick = max(ot, key=lambda i: (cp[i], -i))
        elif dt and pipe - t <= 4: pick = max(dt, key=lambda i: cp[i])
        if pick is None:
            cand = [max(ready_t[i], pipe - 4) if (ops[i].kind == 'mfma' or ops[i].dot) else ready_t[i] for i in avail]
            nt = max(min(cand), t+1); stall += nt - t; t = nt; continue
        o = ops[pick]
        if o.kind == 'mfma': pipe = max(pipe, t) + o.pipe
        if o.dot: pipe = max(pipe, t) + (4 if indot else 16)
        order.append(pick); avail.discard(pick)
        for j, l in succ[pick]:
            ready_t[j] = max(ready_t[j], t + l); npred[j] -= 1
            if npred[j] == 0: avail.add(j)
        t += o.cost
    assert len(order) == n
    if verbose: print(f"schedule: {n} ops, est {t} cycles, stall {stall}")
    return [ops[i] for i in order]
CAP = {'lgkmcnt': 15, 'vmcnt': 63}
class Waits:
    def __init__(s): s.q = {'lgkmcnt': [], 'vmcnt': []}
    def emit(s, ops):
        out = []
        for o in ops:
            w = []
            for c, q in s.q.items():
                idx = [k for k, d in enumerate(q) if d & (o.r | o.w)]
                if idx:
                    left = len(q) - 1 - idx[-1]
                    left = min(left, CAP[c]); w.append(f"{c}({left})"); s.q[c] = q[len(q)-left:] if left else []
            if w: out.append("s_waitcnt " + " ".join(w))
            out.append(o.text)
            if o.async_:
                d = set(o.w) if (o.i.w or o.kind == 'vmem') else set()
                s.q[o.async_].append({x for x in d if x != ('p', 'ord')})
        return out
    def drain(s, names):
        o = Op("s_nop 0", R=names); return s.emit([o])[:-1]
```

```python
import sys
from asmlib import Asm
import hazard

N = 25000; NP = 25088; E = 400000; WIN = 128; NWIN = 196; NLEV = 392; QLEV = 98; QN = 6272
NCH = 250; CH = 1600
ZB = 195*128
WS_FLAGS = 0; WS_NEWID = 0x10000; WS_PERM = 0x20000; WS_DISP = 0x40000; WS_TQ = 0x60000; WS_LOC = 0x64000; WS_IRR = 0x78000; WS_SINV = 0xA0000
WS_WFR = 0x80000; WS_PART = 0x100000; WS_PARTB = 0x440000; WS_IDX = 0x780000; WS_G = 0xB00000; WS_TOK = 0x3800000
GS = NP*4
TQS = 8192 + 128
PWS = 16384 + 128
KS = NP*256
WS_SIZE = 0x10000000
SD = "dst_sel:DWORD dst_unused:UNUSED_PAD src0_sel:DWORD"
DPPF = "row_mask:0xf bank_mask:0xf"
SLACK = 2
OPT = dict(stamp=0, exp=0, tal=20, tbe=1, prio=2, wprio=0, slg=2, sll=2, tok=1, tsc=0, wb=0, gprio=1, ls=1)
WS_STAMP = 0x7800000

class K(Asm):
    def __init__(self):
        super().__init__(); self.uid = 0
    def lab(self, s='L'):
        self.uid += 1; return f"{s}_{self.uid}"
    def begin(self, name):
        self.kernel(name); self.k0 = len(self.lines)
    def end(self, name, vgpr, sgpr=102, accum=None):
        body, n = hazard.fix(self.lines[self.k0:])
        self.lines[self.k0:] = body
        print(f"{name}: {len(body)} lines, {n} nop states", file=sys.stderr)
        self.kd(name, vgpr, sgpr, accum)
    def st_init(self):
        if not OPT['stamp']: return
        self("s_memrealtime s[84:85]" if OPT['stamp'] == 1 else "s_memtime s[84:85]")
        for i in range(1, 14): self(f"s_mov_b32 s{70+i}, 0")
        self("s_waitcnt lgkmcnt(0)\ns_mov_b32 s70, s84\ns_mov_b32 s86, s84")
    def st(self, i):
        if not OPT['stamp']: return
        self(f"{'s_memrealtime' if OPT['stamp'] == 1 else 's_memtime'} s[84:85]\ns_waitcnt lgkmcnt(0)\ns_sub_u32 s87, s84, s86\ns_mov_b32 s86, s84\ns_add_u32 s{70+i}, s{70+i}, s87")
    def st_out(self, kid, srd, swave, vt):
        if not OPT['stamp']: return
        self(f"s_lshl_b32 s87, s2, 4\ns_add_u32 s87, s87, {swave}\ns_lshl_b32 s87, s87, 6\ns_add_u32 s87, s87, {WS_STAMP + kid*0x80000}\ns_mov_b64 exec, 1\nv_mov_b32 v{vt+1}, 0")
        for i in range(14): self(f"v_mov_b32 v{vt}, s{70+i}\nbuffer_store_dword v{vt}, v{vt+1}, s[{srd}:{srd+3}], s87 offen offset:{4*i}")
    def scan_incl(self, v):
        for s in (1, 2, 4, 8): self(f"v_add_u32_dpp v{v}, v{v}, v{v} row_shr:{s} {DPPF} bound_ctrl:0")
        self(f"v_add_u32_dpp v{v}, v{v}, v{v} row_bcast:15 row_mask:0xa bank_mask:0xf")
        self(f"v_add_u32_dpp v{v}, v{v}, v{v} row_bcast:31 row_mask:0xc bank_mask:0xf")
    def red63(self, op, v):
        for s in (1, 2, 4, 8): self(f"{op}_dpp v{v}, v{v}, v{v} row_shr:{s} {DPPF} bound_ctrl:0")
        self(f"{op}_dpp v{v}, v{v}, v{v} row_bcast:15 row_mask:0xa bank_mask:0xf")
        self(f"{op}_dpp v{v}, v{v}, v{v} row_bcast:31 row_mask:0xc bank_mask:0xf")

SWAPS = ((0, 85), (6, 91), (12, 95))
def levelpos(a, sw, d0, d1):
    t, u = d1+1, d1+2
    a(f"s_mul_i32 s{t}, s{sw}, 1338\ns_lshr_b32 s{t}, s{t}, 16\ns_mul_i32 s{t}, s{t}, 98\ns_lshl_b32 s{d0}, s{sw}, 1\ns_sub_u32 s{u}, s{d0}, s{t}")
    a(f"s_mov_b32 s{d0}, s{u}\ns_add_u32 s{d1}, s{u}, 1")
    for x, y in SWAPS:
        a(f"s_cmp_eq_u32 s{u}, {x}\ns_cselect_b32 s{d0}, {y}, s{d0}\ns_cmp_eq_u32 s{u}, {y-1}\ns_cselect_b32 s{d1}, {x}, s{d1}")
    a(f"s_add_u32 s{d0}, s{d0}, s{t}\ns_add_u32 s{d1}, s{d1}, s{t}")
def k1(a):
    name = 'p1_kernel'
    a.launch(name, NCH + NWIN, 512, 34816)
    a.begin(name)
    a(f"s_cmp_ge_u32 s2, {NCH+NWIN}\ns_cbranch_scc1 K1_end")
    a.st_init()
    a("s_load_dwordx4 s[4:7], s[0:1], 0\ns_load_dwordx4 s[8:11], s[0:1], 16\ns_load_dwordx2 s[14:15], s[0:1], 88")
    a("v_lshlrev_b32 v1, 2, v0\nv_mov_b32 v2, 0\nv_mov_b32 v24, 1\nv_lshrrev_b32 v3, 6, v0\nv_and_b32 v25, 63, v0\nv_readfirstlane_b32 s37, v3")
    a(f"s_cmp_ge_u32 s2, {NCH}\ns_cbranch_scc1 K1_win")
    a(f"v_lshlrev_b32 v3, 4, v0\ns_mul_i32 s38, s2, {CH*4}\ns_waitcnt lgkmcnt(0)")
    a.srd(16, 6, E*4); a.srd(20, 8, E*4); a.srd(28, 14, WS_SIZE)
    a("s_cmp_ge_u32 s37, 7\ns_cbranch_scc1 K1_nl\nv_cmp_gt_u32 vcc, 400, v0\ns_and_saveexec_b64 s[34:35], vcc")
    a("buffer_load_dwordx4 v[4:7], v3, s[16:19], s38 offen\nbuffer_load_dwordx4 v[8:11], v3, s[20:23], s38 offen\ns_mov_b64 exec, s[34:35]\nK1_nl:")
    a("s_cmp_ge_u32 s2, 64\ns_cbranch_scc1 K1_noz\ns_cmp_ge_u32 s37, 2\ns_cbranch_scc1 K1_noz")
    a("s_lshl_b32 s3, s2, 9\nbuffer_store_dword v2, v1, s[28:31], s3 offen\nK1_noz:")
    a("v_mov_b32 v12, -1\nv_mov_b32 v13, -1\nv_mov_b32 v14, -1\nv_mov_b32 v15, -1\nv_mov_b32 v26, 12544\nv_mov_b32 v27, 25088")
    a("ds_write_b128 v3, v[12:15] offset:1024\nds_write_b128 v3, v[12:15] offset:9216\nds_write_b128 v3, v[12:15] offset:17408")
    a("s_cmp_ge_u32 s37, 4\ns_cbranch_scc1 K1_nc\nds_write_b32 v1, v2\ns_cmp_ge_u32 s37, 1\ns_cbranch_scc1 K1_nc\nds_write_b128 v3, v[12:15] offset:25600\nK1_nc:")
    a("s_waitcnt lgkmcnt(0)\ns_barrier")
    a("s_cmp_ge_u32 s37, 7\ns_cbranch_scc1 K1_ns\nv_cmp_gt_u32 vcc, 400, v0\ns_and_saveexec_b64 s[34:35], vcc\ns_waitcnt vmcnt(0)")
    a.st(1)
    for i in range(4):
        a(f"v_lshrrev_b32 v{12+i}, 7, v{8+i}\nv_and_b32 v16, 127, v{8+i}\nv_lshl_or_b32 v{4+i}, v16, 16, v{4+i}\nv_lshlrev_b32 v16, 2, v{12+i}\nds_add_rtn_u32 v{8+i}, v16, v24")
    for i in range(4):
        a(f"s_waitcnt lgkmcnt(3)" if i == 0 else "s_waitcnt lgkmcnt(3)")
        a(f"v_and_b32 v16, 15, v{8+i}\nv_lshlrev_b32 v16, 2, v16\nv_lshl_add_u32 v16, v{12+i}, 6, v16\nv_lshrrev_b32 v17, 4, v{8+i}\nv_mad_u32_u24 v16, v17, s39, v16".replace("s39", "v26"))
        a(f"v_cmp_gt_u32 vcc, 32, v{8+i}\nv_cndmask_b32 v16, v27, v16, vcc\nds_write_b32 v16, v{4+i} offset:1024")
    a("s_mov_b64 exec, s[34:35]\nK1_ns:\ns_waitcnt lgkmcnt(0)\ns_barrier")
    a("s_and_b32 s3, s2, 7\ns_lshl_b32 s3, s3, 5\ns_lshr_b32 s39, s2, 3\ns_add_u32 s3, s3, s39\ns_lshl_b32 s3, s3, 6")
    a(f"s_add_u32 s39, s3, {WS_PART}\ns_add_u32 s40, s3, {WS_PARTB}")
    a("v_lshrrev_b32 v16, 2, v0\nv_and_b32 v17, 3, v0\nv_lshlrev_b32 v17, 4, v17\nv_mov_b32 v18, " + str(PWS) + "\nv_mad_u32_u24 v17, v16, v18, v17\nv_and_b32 v18, 0xfffffffc, v0")
    a("ds_read_b128 v[4:7], v3 offset:1024\nds_read_b128 v[8:11], v3 offset:9216\nds_read_b32 v19, v18\nds_read_b32 v20, v18 offset:512")
    a(f"v_add_u32 v21, {128*PWS}, v17\nv_cmp_gt_u32 vcc, {784-512}, v0\ns_mov_b64 s[42:43], vcc")
    a("s_waitcnt lgkmcnt(3)\nbuffer_store_dwordx4 v[4:7], v17, s[28:31], s39 offen\ns_waitcnt lgkmcnt(0)")
    a("v_cndmask_b32 v20, 0, v20, s[42:43]\nv_max_u32 v22, v19, v20\ns_mov_b64 exec, s[42:43]\ns_cbranch_execz K1_n2")
    a("buffer_store_dwordx4 v[8:11], v21, s[28:31], s39 offen\nK1_n2:\ns_mov_b64 exec, -1")
    a("v_cmp_le_u32 vcc, 16, v22\ns_cbranch_vccz K1_nb")
    a(f"ds_read_b128 v[4:7], v3 offset:{1024+12544}\nds_read_b128 v[8:11], v3 offset:{1024+12544+8192}\ns_waitcnt lgkmcnt(0)")
    a("v_cmp_le_u32 vcc, 16, v19\ns_mov_b64 exec, vcc\ns_cbranch_execz K1_b1\nbuffer_store_dwordx4 v[4:7], v17, s[28:31], s40 offen\nK1_b1:\ns_mov_b64 exec, -1")
    a("v_cmp_le_u32 vcc, 16, v20\ns_mov_b64 exec, vcc\ns_cbranch_execz K1_b2\nbuffer_store_dwordx4 v[8:11], v21, s[28:31], s40 offen\nK1_b2:\ns_mov_b64 exec, -1")
    a("K1_nb:")
    a(f"v_cmp_lt_u32 vcc, 32, v22\ns_cmp_lg_u64 vcc, 0\ns_cselect_b32 s3, 1, 0\nv_mov_b32 v4, s3\ns_lshr_b32 s39, s39, 1\ns_and_b32 s39, s39, 0x1fe0\ns_lshl_b32 s3, s37, 2\ns_add_u32 s39, s39, s3\ns_add_u32 s39, s39, {WS_IRR}")
    a("s_mov_b64 exec, 1\nbuffer_store_dword v4, v2, s[28:31], s39 offen")
    a.st(2); a.st_out(0, 28, 's37', 10); a("s_endpgm")
    B = 32768
    a("K1_win:")
    a(f"s_sub_u32 s36, s2, {NCH}\ns_lshl_b32 s38, s36, 7\ns_waitcnt lgkmcnt(0)")
    a.srd(16, 4, N*256); a.srd(24, 10, N*2); a.srd(28, 14, WS_SIZE)
    a("v_lshlrev_b32 v3, 4, v25\ns_lshl_b32 s39, s36, 15\ns_lshl_b32 s40, s37, 12\ns_add_u32 s39, s39, s40")
    a("v_add_u32 v5, s38, v0\nv_lshlrev_b32 v6, 1, v5\ns_cmp_ge_u32 s37, 2\ns_cbranch_scc1 K1_w0\nbuffer_load_ushort v4, v6, s[24:27], 0 offen\nK1_w0:")
    for it in range(4): a(f"buffer_load_dwordx4 v[{32+4*it}:{35+4*it}], v3, s[16:19], s39 offen offset:{it*1024}")
    a(f"ds_write_b32 v1, v2 offset:{B}")
    levelpos(a, 36, 44, 45)
    a("s_lshl_b32 s44, s44, 6\ns_lshl_b32 s45, s45, 6\ns_sub_u32 s45, s45, 64\ns_waitcnt lgkmcnt(0)\ns_barrier\ns_cmp_ge_u32 s37, 2\ns_cbranch_scc1 K1_w1\ns_waitcnt vmcnt(4)"); a.st(4)
    a("v_lshlrev_b32 v4, 16, v4\nv_mul_f32 v7, v4, v4\nv_rcp_f32 v7, v7\nv_rndne_f32 v7, v7\nv_cvt_u32_f32 v7, v7\nv_med3_u32 v7, v7, 1, 63")
    a(f"v_cmp_gt_u32 vcc, {N}, v5\nv_cndmask_b32 v7, 0, v7, vcc\nv_lshlrev_b32 v7, 2, v7\nds_add_rtn_u32 v8, v7, v24 offset:{B}\ns_waitcnt lgkmcnt(0)\nK1_w1:\ns_barrier")
    a("s_cmp_ge_u32 s37, 2\ns_cbranch_scc1 K1_w2")
    a(f"v_lshlrev_b32 v9, 2, v25\nds_read_b32 v20, v9 offset:{B}\ns_waitcnt lgkmcnt(0)\nv_mov_b32 v21, v20")
    a.scan_incl(21)
    a("v_sub_u32 v21, v21, v20\nds_bpermute_b32 v21, v7, v21\ns_waitcnt lgkmcnt(0)\nv_add_u32 v8, v8, v21")
    a(f"v_lshlrev_b32 v9, 2, v8\nds_write_b32 v1, v9 offset:{B+512}\nds_write_b32 v9, v4 offset:{B+1024}")
    a("v_mov_b32 v23, 1.0\nv_mov_b32 v10, s44\nv_mov_b32 v11, s45\nv_cmp_gt_u32 vcc, 64, v8\nv_cndmask_b32 v10, v11, v10, vcc\nv_add_u32 v10, v10, v8\nv_lshlrev_b32 v11, 2, v10")
    a(f"s_mov_b32 s3, {WS_NEWID}\nbuffer_store_short v10, v6, s[28:31], s3 offen\ns_mov_b32 s3, {WS_LOC}\nbuffer_store_short v8, v6, s[28:31], s3 offen")
    a(f"s_mov_b32 s3, {WS_PERM}\nbuffer_store_dword v5, v11, s[28:31], s3 offen\nv_mul_f32 v12, v4, v4\nv_rcp_f32 v13, v4\nv_cmp_eq_f32 vcc, 0, v4\ns_mov_b32 s3, {WS_DISP}\nbuffer_store_dword v12, v11, s[28:31], s3 offen\nv_cndmask_b32 v13, v13, v23, vcc\ns_mov_b32 s3, {WS_SINV}\nbuffer_store_dword v13, v11, s[28:31], s3 offen")
    a("s_waitcnt lgkmcnt(0)\nK1_w2:\ns_barrier")
    a.st(1)
    a("v_lshrrev_b32 v9, 4, v25\nv_lshlrev_b32 v9, 2, v9\ns_lshl_b32 s3, s37, 6\nv_add_u32 v9, s3, v9\nv_and_b32 v12, 15, v25\nv_lshlrev_b32 v13, 4, v12\nv_lshlrev_b32 v12, 11, v12")
    for it in range(4): a(f"ds_read_b32 v{16+it}, v9 offset:{B+512+16*it}")
    a(f"v_and_b32 v14, 31, v25\nv_lshlrev_b32 v15, 4, v14\nds_read_b128 v[28:31], v15 offset:{B+1024}")
    for it in range(4):
        a(f"s_waitcnt lgkmcnt({4 if it == 0 else 4+3})" if False else "")
    a("s_waitcnt lgkmcnt(0)")
    for it in range(4):
        a(f"v_xor_b32 v{16+it}, v{16+it}, v13\nv_add_u32 v{16+it}, v{16+it}, v12")
    a("s_cmp_ge_u32 s37, 2\ns_cbranch_scc1 K1_w3\ns_waitcnt vmcnt(5)\ns_branch K1_w4\nK1_w3:\ns_waitcnt vmcnt(0)\nK1_w4:"); a.st(5)
    for it in range(4):
        for i in range(4): a(f"ds_write_b32 v{16+it}, v{32+4*it+i} offset:{i*512}")
    a("v_lshrrev_b32 v20, 5, v25\ns_lshl_b32 s3, s37, 5\nv_xor_b32 v21, s3, v15\nv_lshl_add_u32 v21, v20, 9, v21\ns_lshl_b32 s3, s37, 12\nv_add_u32 v21, s3, v21\nv_xor_b32 v22, 16, v21")
    a("v_mov_b32 v10, s44\nv_mov_b32 v11, s45\nv_cmp_gt_u32 vcc, 16, v14\nv_cndmask_b32 v10, v11, v10, vcc\nv_lshl_add_u32 v10, v14, 2, v10")
    a(f"s_mov_b32 s3, {GS}\nv_mul_lo_u32 v20, v20, s3\nv_lshl_add_u32 v10, v10, 2, v20")
    a(f"s_mul_i32 s42, s37, {8*GS}\ns_add_u32 s42, s42, {WS_G}")
    a("s_waitcnt lgkmcnt(0)\ns_barrier")
    a.st(2)
    for j in range(4): a(f"ds_read_b128 v[{32+4*j}:{35+4*j}], v{21 if j < 2 else 22} offset:{j*1024}")
    for j in range(4):
        a(f"s_waitcnt lgkmcnt({3-j})")
        for i in range(4):
            a(f"v_lshlrev_b32 v4, 16, v{32+4*j+i}\nv_and_b32 v5, 0xffff0000, v{32+4*j+i}\nv_mul_f32 v4, v{28+i}, v4\nv_mul_f32 v5, v{28+i}, v5\nv_cvt_pk_bf16_f32 v{48+4*(j&1)+i}, v4, v5")
        a(f"buffer_store_dwordx4 v[{48+4*(j&1)}:{51+4*(j&1)}], v10, s[28:31], s42 offen")
        if j < 3: a(f"s_add_u32 s42, s42, {2*GS}")
    a.st(3); a.st_out(0, 28, 's37', 10)
    a("K1_end:\ns_endpgm")
    a.end(name, 56, 102 if OPT['stamp'] else 56)

L2_CNT = 0; L2_LU = 512; L2_BU = 1024; L2_LOC = 2048; L2_O = 2304; L2_L = 2304 + 16384; L2_NEW = L2_L + 16384; L2_SIZE = L2_NEW + 50176
def k2(a):
    name = 'p2_kernel'
    a.launch(name, NWIN + 2, 1024, L2_SIZE)
    a.begin(name)
    a(f"s_cmp_ge_u32 s2, {NWIN+2}\ns_cbranch_scc1 K2_xend")
    a.st_init()
    a("s_load_dwordx2 s[14:15], s[0:1], 88")
    a("v_lshrrev_b32 v1, 6, v0\nv_and_b32 v2, 63, v0\nv_readfirstlane_b32 s33, v1")
    a("s_waitcnt lgkmcnt(0)")
    a.srd(28, 14, WS_SIZE)
    a(f"s_cmp_ge_u32 s2, {NWIN}\ns_cbranch_scc1 K2_wts")
    k2_window(a)
    a("K2_wts:")
    k2_weights(a)
    a("K2_end:"); a.st(13); a.st_out(1, 28, 's33', 10); a("K2_xend:\ns_endpgm")
    a.end(name, 128, 102)

def k2_window(a):
    Ev, NS, ND = 20, 24, 28
    MK = lambda j: f"s[{40+2*j}:{41+2*j}]"
    a(f"v_lshlrev_b32 v3, 4, v0\ns_mul_i32 s34, s2, {PWS}\ns_add_u32 s65, s34, {WS_PART}\nbuffer_load_dwordx4 v[{Ev}:{Ev+3}], v3, s[28:31], s65 offen")
    a(f"v_lshlrev_b32 v4, 3, v0\ns_mov_b32 s35, {WS_IRR}\nbuffer_load_dwordx2 v[6:7], v4, s[28:31], s35 offen")
    a("v_lshlrev_b32 v5, 4, v2")
    a(f"s_lshl_b32 s34, s33, 10\ns_add_u32 s35, s34, {WS_NEWID}\ns_add_u32 s34, s34, {L2_NEW}")
    for i in range(4):
        if i == 3: a("s_cmp_lg_u32 s33, 0\ns_cbranch_scc1 K2_nd")
        a(f"s_mov_b32 m0, s34\nbuffer_load_dwordx4 v5, s[28:31], s35 offen lds")
        if i < 3: a("s_add_u32 s34, s34, 16384\ns_add_u32 s35, s35, 16384")
    a(f"s_lshl_b32 s35, s2, 8\ns_add_u32 s35, s35, {WS_LOC}\ns_mov_b32 m0, {L2_LOC}\nv_lshlrev_b32 v8, 2, v2\nbuffer_load_dword v8, s[28:31], s35 offen lds")
    a("K2_nd:")
    a("v_lshlrev_b32 v8, 2, v0\nv_mov_b32 v10, 0\ns_cmp_ge_u32 s33, 8\ns_cbranch_scc1 K2_nz\ns_cmp_ge_u32 s33, 2\ns_cselect_b32 s35, -1, 0\nv_mov_b32 v9, s35\nds_write_b32 v8, v9\nK2_nz:")
    a("v_bfe_u32 v9, v0, 2, 5\nv_lshrrev_b32 v11, 7, v0\nv_lshl_add_u32 v9, v9, 3, v11")
    a(f"v_cmp_gt_u32 vcc, {NCH}, v9\ns_mov_b64 s[38:39], vcc\nv_mov_b32 v12, 1\nv_mov_b32 v13, 0xfc\ns_mov_b32 s64, 0\ns_mov_b32 s66, {L2_L}\ns_mov_b32 s67, 0")
    levelpos(a, 2, 60, 61)
    a("s_waitcnt vmcnt(0) lgkmcnt(0)\ns_barrier"); a.st(1)
    a("v_or_b32 v6, v6, v7\nv_cmp_ne_u32 vcc, 0, v6\ns_and_b64 vcc, vcc, s[38:39]\ns_cbranch_vccz K2_reg\nv_mov_b32 v6, 0x100\nds_write_b32 v10, v6\nK2_reg:")
    a("K2_loop:\ns_mov_b64 exec, s[38:39]")
    for j in range(4): a(f"v_cmp_ne_u32 {MK(j)}, -1, v{Ev+j}")
    for j in range(4):
        a(f"s_mov_b64 exec, {MK(j)}")
        a(f"v_lshlrev_b32_sdwa v15, 1, v{Ev+j} {SD} src1_sel:WORD_0\nv_lshrrev_b32 v16, 15, v{Ev+j}")
        a(f"ds_read_u16 v{ND+j}, v16 offset:{L2_LOC}\nds_read_u16 v{NS+j}, v15 offset:{L2_NEW}")
    a("s_waitcnt lgkmcnt(0)")
    for j in range(4):
        a(f"s_mov_b64 exec, {MK(j)}\nv_lshlrev_b32 v{ND+j}, 2, v{ND+j}\nds_add_rtn_u32 v{32+j}, v{ND+j}, v12 offset:{L2_CNT}")
        a(f"v_and_or_b32 v{36+j}, v{ND+j}, v13, s66\nv_lshrrev_b32 v16, 8, v{ND+j}\nv_lshl_add_u32 v{36+j}, v16, 13, v{36+j}")
    a("s_waitcnt lgkmcnt(0)")
    for j in range(4):
        a(f"s_mov_b64 exec, {MK(j)}")
        a(f"v_lshrrev_b32 v16, 1, v{32+j}\nv_lshl_add_u32 v15, v16, 8, v{36+j}\nv_and_b32 v16, 1, v{32+j}\nv_lshl_add_u32 v15, v16, 1, v15")
        a(f"v_cmp_gt_u32 vcc, 64, v{32+j}\ns_and_b64 exec, exec, vcc\nds_write_b16 v15, v{NS+j}")
    a(f"s_mov_b64 exec, -1\ns_cmp_lg_u32 s64, 0\ns_cbranch_scc1 K2_pa\nv_cndmask_b32 v15, 0, v12, {MK(3)}\ns_mov_b32 s64, 1")
    a(f"v_mov_b32_dpp v15, v15 quad_perm:[3,3,3,3] {DPPF}\nv_cmp_ne_u32 s[38:39], 0, v15\ns_cmp_eq_u64 s[38:39], 0\ns_cbranch_scc1 K2_pa")
    a(f"s_mov_b64 exec, s[38:39]\ns_add_u32 s65, s65, {WS_PARTB-WS_PART}\nbuffer_load_dwordx4 v[{Ev}:{Ev+3}], v3, s[28:31], s65 offen\ns_waitcnt vmcnt(0)\ns_branch K2_loop")
    a("K2_pa:\ns_waitcnt lgkmcnt(0)\ns_barrier"); a.st(2)
    a("s_lshr_b32 s34, s33, 3\ns_and_b32 s36, s33, 7\ns_lshl_b32 s35, s34, 8\nv_lshl_add_u32 v4, v2, 2, s35\nds_read_b32 v5, v4")
    a(f"s_lshl_b32 s37, s34, 13\ns_add_u32 s37, s37, {L2_L}\ns_lshr_b32 s46, s36, 1\ns_lshl_b32 s46, s46, 8\ns_and_b32 s47, s36, 1\ns_lshl_b32 s47, s47, 1\ns_add_u32 s46, s46, s47\ns_add_u32 s46, s46, s37\nv_lshl_add_u32 v16, v2, 2, s46")
    for t in range(4): a(f"ds_read_u16 v{20+t}, v16 offset:{t*1024}")
    a("s_waitcnt lgkmcnt(4)\nv_mov_b32 v6, v5\nv_mov_b32 v7, v5")
    for sft in (1, 2, 4, 8): a(f"v_max_u32_dpp v6, v6, v6 row_shr:{sft} {DPPF} bound_ctrl:0\nv_add_u32_dpp v7, v7, v7 row_shr:{sft} {DPPF} bound_ctrl:0")
    for bc, m in ((15, '0xa'), (31, '0xc')): a(f"v_max_u32_dpp v6, v6, v6 row_bcast:{bc} row_mask:{m} bank_mask:0xf\nv_add_u32_dpp v7, v7, v7 row_bcast:{bc} row_mask:{m} bank_mask:0xf")
    a("v_readlane_b32 s40, v6, 63\nv_readlane_b32 s41, v7, 63")
    a(f"s_mul_i32 s41, s41, {OPT['tal']}\ns_lshr_b32 s41, s41, 10\ns_add_u32 s41, s41, {OPT['tbe']}\ns_max_u32 s41, s41, s40\ns_add_u32 s41, s41, 3\ns_lshr_b32 s41, s41, 2\ns_min_u32 s41, s41, 16")
    a("s_lshl_b32 s42, s41, 2\ns_min_u32 s42, s42, 32\ns_lshl_b64 s[44:45], -1, s42\ns_not_b32 s44, s44")
    a("s_cmp_eq_u32 s34, 0\ns_cselect_b32 s60, s60, s61")
    a("s_cmp_lg_u32 s36, 0\ns_cbranch_scc1 K2_ntq")
    a(f"s_cmp_gt_u32 s40, 64\ns_cselect_b32 s43, 0x10000, 0\ns_or_b32 s43, s43, s41\nv_mov_b32 v6, s43\ns_lshl_b32 s43, s60, 2\ns_add_u32 s43, s43, {WS_TQ}\ns_mov_b64 exec, 1")
    a("buffer_store_dword v6, v10, s[28:31], s43 offen\ns_mov_b64 exec, -1\nK2_ntq:")
    a("v_min_u32 v15, 32, v5\nv_subrev_u32 v15, s36, v15\nv_add_u32 v15, 7, v15\nv_lshrrev_b32 v15, 3, v15")
    a("s_lshl_b32 s46, s36, 2\nv_add_u32 v17, s46, v2\nv_and_b32 v17, 31, v17\nv_mul_u32_u24 v17, s42, v17\nv_lshrrev_b32 v17, 5, v17\nv_mov_b32 v18, -1\nv_lshlrev_b32 v17, v17, v18")
    a(f"s_lshl_b32 s46, s34, 9\ns_add_u32 s46, s46, {L2_BU}\nv_lshrrev_b32 v8, 5, v2\nv_lshlrev_b32 v8, 8, v8\nv_add_u32 v8, s46, v8")
    a(f"s_lshl_b32 s47, s34, 13\ns_add_u32 s47, s47, {L2_O}\nv_lshl_add_u32 v19, v2, 2, s47")
    a("v_mov_b32 v24, s44\nv_mov_b32 v26, -1\nv_mov_b32 v27, -1\nv_bfrev_b32 v40, 1\nv_mov_b32 v41, 0x7c\nv_mov_b32 v42, s44\ns_waitcnt lgkmcnt(0)")
    a("v_lshl_or_b32 v20, v21, 16, v20\nv_lshl_or_b32 v21, v23, 16, v22\nv_cmp_lt_u32 vcc, 0, v15")
    a("K2_rd:\ns_mov_b64 exec, vcc\ns_cbranch_execz K2_sd")
    a("v_and_b32 v28, v24, v26\nv_lshlrev_b32 v25, 2, v20\nv_and_b32 v31, v28, v17\nv_cmp_ne_u32 s[48:49], 0, v31\nv_cmp_ne_u32 s[52:53], 0, v28\nv_and_or_b32 v25, v25, v41, v8")
    a("v_cndmask_b32 v31, v28, v31, s[48:49]\nv_sub_u32 v32, 0, v31\nv_and_b32 v34, v31, v32\ns_mov_b64 s[50:51], 0\ns_andn2_b64 s[54:55], exec, s[52:53]\ns_cbranch_scc0 K2_l1")
    a("s_mov_b64 exec, s[54:55]\nv_and_b32 v29, v24, v27\nv_cmp_eq_u32 s[50:51], 0, v29\nv_add_u32 v25, 128, v25\nv_cndmask_b32 v29, v29, v24, s[50:51]\nv_ffbh_u32 v29, v29\nv_lshrrev_b32 v34, v29, v40\ns_mov_b64 exec, vcc\nK2_l1:")
    a(f"v_not_b32 v33, v34\nds_and_rtn_b32 v35, v4, v33 offset:{L2_LU}\nds_and_rtn_b32 v36, v25, v33\nv_ffbl_b32 v37, v34\nv_lshl_add_u32 v37, v37, 8, v19")
    a("s_waitcnt lgkmcnt(0)\nv_and_b32 v24, s44, v35\nv_and_b32 v35, v35, v34\nv_and_b32 v38, v36, v34\nv_cndmask_b32 v39, v38, v34, s[50:51]\nv_and_b32 v39, v39, v35\nv_cmp_ne_u32 s[48:49], 0, v39")
    a(f"s_andn2_b64 exec, exec, s[48:49]\nds_or_b32 v4, v35 offset:{L2_LU}\nds_or_b32 v25, v38\nv_cndmask_b32 v26, v26, v36, s[52:53]\nv_cndmask_b32 v27, v36, v27, s[52:53]")
    a("s_mov_b64 exec, s[48:49]\nds_write_b16 v37, v20\nv_and_b32 v24, v24, v33\nv_alignbit_b32 v20, v21, v20, 16\nv_lshrrev_b32 v21, 16, v21\nv_mov_b32 v26, -1\nv_mov_b32 v27, -1\nv_subrev_u32 v15, 1, v15")
    a("s_mov_b64 exec, vcc\nv_cmp_eq_u32 s[48:49], 0, v24\nv_cmp_lt_u32 vcc, 0, v15\ns_add_u32 s67, s67, 1\nv_cndmask_b32 v24, v24, v42, s[48:49]\ns_cmp_lt_u32 s67, 4096\ns_cbranch_scc1 K2_rd")
    a(f"v_mov_b32 v6, 0x10001\ns_lshl_b32 s43, s60, 2\ns_add_u32 s43, s43, {WS_TQ}\ns_mov_b64 exec, 1\nbuffer_store_dword v6, v10, s[28:31], s43 offen")
    a("K2_sd:\ns_mov_b64 exec, -1")
    if OPT['stamp']: a("s_mov_b32 s82, s67")
    a("s_waitcnt lgkmcnt(0)\ns_barrier"); a.st(3)
    a("s_cmp_ge_u32 s36, s41\ns_cbranch_scc1 K2_end")
    a(f"s_lshl_b32 s46, s36, 10\nv_add_u32 v11, s46, v19\nv_and_b32 v18, 31, v2\nv_lshl_add_u32 v18, v18, 2, v8")
    a(f"ds_read_b32 v16, v4 offset:{L2_LU}\nds_read_b32 v18, v18\nds_read2st64_b32 v[20:21], v11 offset0:0 offset1:1\nds_read2st64_b32 v[22:23], v11 offset0:2 offset1:3")
    a(f"s_lshl_b32 s47, s36, 9\ns_add_u32 s37, s37, s47\nv_lshl_add_u32 v12, v2, 2, s37\nds_read2st64_b32 v[24:25], v12 offset0:16 offset1:17")
    a(f"v_mov_b32 v13, 0xffff\nv_lshlrev_b32 v15, 3, v2\ns_lshl_b32 s39, s60, 13\ns_add_u32 s39, s39, s47\ns_add_u32 s39, s39, {WS_IDX}\ns_lshl_b32 s38, s36, 2\ns_mov_b32 s50, -1\ns_mov_b32 s51, 0\ns_waitcnt lgkmcnt(3)")
    a("v_lshrrev_b32 v16, s38, v16\nv_lshrrev_b32 v18, s38, v18")
    for t in range(4):
        a(f"v_and_b32 v26, {1 << t}, v18\nv_cmp_ne_u32 s[{52+2*t}:{53+2*t}], 0, v26")
    for r in range(52, 60): a(f"s_ff1_i32_b32 s{r}, s{r}\ns_and_b32 s{r}, s{r}, 31\ns_add_u32 s{r}, s{r}, {ZB}")
    a("s_waitcnt lgkmcnt(0)")
    for t in range(4):
        a(f"v_mov_b32 v26, s{52+2*t}\nv_mov_b32 v27, s{53+2*t}\nv_cndmask_b32 v26, v27, v26, s[50:51]\nv_and_b32 v27, {1 << t}, v16\nv_cmp_ne_u32 vcc, 0, v27\nv_cndmask_b32 v{20+t}, v{20+t}, v26, vcc")
    a("v_and_b32 v20, v13, v20\nv_and_b32 v22, v13, v22\nv_lshl_or_b32 v20, v21, 17, v20\nv_lshl_or_b32 v21, v23, 17, v22\nbuffer_store_dwordx2 v[20:21], v15, s[28:31], s39 offen")
    a("s_add_u32 s36, s36, 8\ns_cmp_ge_u32 s36, s41\ns_cbranch_scc1 K2_end")
    a(f"v_mov_b32 v43, -1\ns_add_u32 s38, s38, 32\nv_subrev_u32 v5, s38, v5\nv_mov_b32 v14, {ZB | (ZB << 16)}")
    for h in range(2):
        a(f"v_cmp_lt_i32 vcc, {2*h}, v5\nv_cndmask_b32 v26, 0, v13, vcc\nv_cmp_lt_i32 vcc, {2*h+1}, v5\nv_cndmask_b32 v26, v26, v40, vcc".replace("v40", "v43"))
        a(f"v_bfi_b32 v{24+h}, v26, v{24+h}, v14\nv_and_b32 v26, 0xffff0000, v{24+h}\nv_add_u32 v{24+h}, v{24+h}, v26")
    a("s_add_u32 s39, s39, 4096\nbuffer_store_dwordx2 v[24:25], v15, s[28:31], s39 offen\ns_branch K2_end")

import math, struct
def f2u(x): return struct.unpack('<I', struct.pack('<f', x))[0]
SCL = f2u(math.log2(math.e)/math.sqrt(128.0))
WFR_E = 65536; WFR_SW = 73728
def k2_weights(a):
    S0 = 66048
    a(f"s_sub_u32 s34, s2, {NWIN}")
    a("s_load_dwordx8 s[40:47], s[0:1], 32\ns_load_dwordx2 s[48:49], s[0:1], 64")
    a("s_lshr_b32 s35, s33, 2\ns_and_b32 s36, s33, 3\nv_and_b32 v3, 31, v2\nv_lshrrev_b32 v4, 5, v2")
    a("v_lshlrev_b32 v5, 2, v0\nv_mov_b32 v6, 0\nv_cmp_gt_u32 vcc, 512, v0\ns_and_saveexec_b64 s[50:51], vcc")
    a(f"v_add_u32 v5, {S0}, v5\nds_write_b32 v5, v6\ns_mov_b64 exec, s[50:51]")
    a("s_waitcnt lgkmcnt(0)\ns_cmp_eq_u32 s34, 0\ns_cselect_b32 s52, s40, s44\ns_cselect_b32 s53, s41, s45\ns_cselect_b32 s54, s42, s46\ns_cselect_b32 s55, s43, s47")
    a.srd(20, 52, 32768); a.srd(24, 54, 32768); a.srd(56, 48, 256)
    a("v_lshrrev_b32 v5, 4, v2\nv_and_b32 v6, 15, v2\ns_and_b32 s37, s33, 1\ns_lshl_b32 s37, s37, 3\nv_add_u32 v7, s37, v5\nv_xor_b32 v6, v6, v7")
    a("v_lshlrev_b32 v6, 4, v6\nv_lshl_add_u32 v6, v5, 8, v6\nv_xor_b32 v7, 64, v6\nv_lshlrev_b32 v8, 4, v2")
    a("s_lshl_b32 s39, s33, 11\ns_mov_b32 m0, s39\ns_cmp_eq_u32 s34, 0\ns_cselect_b64 s[60:61], -1, 0")
    a("buffer_load_dwordx4 v6, s[20:23], s39 offen lds\nbuffer_load_dwordx4 v7, s[20:23], s39 offen offset:1024 lds")
    a("v_cndmask_b32 v6, v8, v6, s[60:61]\nv_cndmask_b32 v7, v8, v7, s[60:61]\ns_add_u32 s62, s39, 32768\ns_mov_b32 m0, s62")
    a("buffer_load_dwordx4 v6, s[24:27], s39 offen lds\nbuffer_load_dwordx4 v7, s[24:27], s39 offen offset:1024 lds")
    a("s_barrier")
    a("s_cmp_ge_u32 s33, 2\ns_cbranch_scc1 K2w_nw\nv_lshlrev_b32 v7, 1, v0\nbuffer_load_ushort v8, v7, s[56:59], 0 offen")
    a(f"v_lshlrev_b32 v7, 2, v0\nv_add_u32 v7, {S0}, v7\ns_waitcnt vmcnt(0)\nv_lshlrev_b32 v8, 16, v8\nds_write_b32 v7, v8\nK2w_nw:")
    a("v_and_b32 v5, 15, v3\nv_xor_b32 v5, v5, v4\nv_lshlrev_b32 v5, 4, v5\nv_lshl_add_u32 v5, v3, 8, v5\ns_lshl_b32 s37, s35, 13\ns_lshl_b32 s38, s36, 13\ns_add_u32 s38, s38, 32768")
    a("v_add_u32 v6, s37, v5\nv_add_u32 v7, s38, v5\ns_waitcnt vmcnt(0) lgkmcnt(0)\ns_barrier")
    for u in range(8): a(f"v_xor_b32 v8, {32*u}, v6\nds_read_b128 v[{16+4*u}:{19+4*u}], v8")
    a("s_cmp_eq_u32 s34, 0\ns_cbranch_scc0 K2w_b")
    for u in range(8): a(f"v_xor_b32 v8, {32*u}, v7\nds_read_b128 v[{48+4*u}:{51+4*u}], v8")
    a("s_branch K2w_mm\nK2w_b:")
    a(f"v_lshlrev_b32 v6, 11, v4\nv_lshl_add_u32 v6, v3, 1, v6\ns_lshl_b32 s39, s36, 6\ns_add_u32 s39, s39, 32768\nv_add_u32 v6, s39, v6")
    for u in range(8):
        for t in range(8):
            a(f"ds_read_u16 v{(96 if t&1 else 48)+4*u+t//2}, v6 offset:{(16*u+t)*256}")
    a("s_waitcnt lgkmcnt(0)")
    for i in range(32): a(f"v_lshl_or_b32 v{48+i}, v{96+i}, 16, v{48+i}")
    a("K2w_mm:\ns_waitcnt lgkmcnt(0)\ns_barrier"); a.st(1)
    for u in range(8): a(f"v_mfma_f32_32x32x16_bf16 v[80:95], v[{16+4*u}:{19+4*u}], v[{48+4*u}:{51+4*u}], {'0' if u == 0 else 'v[80:95]'}")
    a(f"s_mul_i32 s39, s35, {32*516}\ns_lshl_b32 s60, s36, 7\ns_add_u32 s39, s39, s60\nv_mul_u32_u24 v6, {4*516}, v4\nv_lshl_add_u32 v6, v3, 2, v6\nv_add_u32 v6, s39, v6")
    for r in range(16): a(f"ds_write_b32 v6, v{80+r} offset:{(8*(r>>2)+(r&3))*516}")
    a("s_waitcnt lgkmcnt(0)\ns_barrier")
    a.st(2)
    a("v_and_b32 v5, 127, v0\ns_lshr_b32 s39, s33, 1\ns_and_b32 s39, s39, 3\ns_cmp_ge_u32 s33, 8\ns_cbranch_scc1 K2w_col")
    a(f"v_mul_u32_u24 v6, 516, v5\ns_lshl_b32 s60, s39, 7\nv_add_u32 v6, s60, v6\ns_add_u32 s60, s60, {S0}\nv_mov_b32 v7, s60")
    for i in range(16): a(f"ds_read2_b32 v[{16+2*i}:{17+2*i}], v6 offset0:{2*i} offset1:{2*i+1}")
    for i in range(8): a(f"ds_read_b128 v[{48+4*i}:{51+4*i}], v7 offset:{16*i}")
    a("s_waitcnt lgkmcnt(0)\nv_mov_b32 v8, 0\nv_mov_b32 v9, 0")
    for i in range(32): a(f"v_add_f32 v8, v8, v{16+i}\nv_fmac_f32 v9, v{16+i}, v{48+i}")
    a(f"v_lshlrev_b32 v5, 2, v5\nv_add_u32 v5, {S0}, v5\nds_add_f32 v5, v8 offset:512\nds_add_f32 v5, v9 offset:1024\ns_branch K2w_sd")
    a(f"K2w_col:\ns_mul_i32 s60, s39, {32*516}\nv_lshlrev_b32 v5, 2, v5\nv_add_u32 v6, s60, v5")
    for i in range(32): a(f"ds_read_b32 v{16+i}, v6 offset:{i*516}")
    a("s_waitcnt lgkmcnt(0)\nv_mov_b32 v8, 0")
    for i in range(32): a(f"v_add_f32 v8, v8, v{16+i}")
    a(f"v_add_u32 v5, {S0}, v5\nds_add_f32 v5, v8 offset:1536")
    a("K2w_sd:\ns_waitcnt lgkmcnt(0)\ns_barrier"); a.st(3)
    a(f"v_lshlrev_b32 v5, 3, v2\nv_add_u32 v5, {S0}, v5\nds_read_b64 v[8:9], v5\nds_read_b64 v[10:11], v5 offset:512\nds_read_b64 v[12:13], v5 offset:1024\ns_waitcnt lgkmcnt(0)")
    a("v_add_f32 v8, v8, v9\nv_add_f32 v10, v10, v11\nv_add_f32 v12, v12, v13")
    for v in (8, 10, 12): a.red63('v_add_f32', v)
    a("v_readlane_b32 s60, v8, 63\nv_readlane_b32 s61, v10, 63\nv_readlane_b32 s62, v12, 63")
    a(f"s_mov_b32 s63, {f2u(1/128.)}\ns_mov_b32 s64, {f2u(-1/128.)}\ns_mov_b32 s65, {SCL}\nv_lshlrev_b32 v15, 4, v2")
    a(f"s_lshl_b32 s66, s33, 11\ns_lshl_b32 s67, s34, 15\ns_add_u32 s66, s66, s67\ns_add_u32 s66, s66, {WS_WFR}")
    a("s_lshr_b32 s35, s33, 2\ns_and_b32 s36, s33, 3\ns_lshl_b32 s36, s36, 1")
    a("s_cmp_eq_u32 s34, 0\ns_cbranch_scc0 K2w_fb")
    a("v_and_b32 v5, 0x19, v3\nv_bfe_u32 v6, v3, 1, 1\nv_lshl_or_b32 v5, v6, 2, v5\nv_bfe_u32 v6, v3, 2, 1\nv_lshl_or_b32 v5, v6, 1, v5")
    a("s_lshl_b32 s37, s35, 5\nv_add_u32 v5, s37, v5")
    a(f"v_lshlrev_b32 v7, 2, v5\nv_add_u32 v7, {S0}, v7\nds_read_b32 v14, v7 offset:512")
    a(f"s_lshl_b32 s37, s36, 6\nv_lshl_add_u32 v6, v4, 3, s37\nv_mul_u32_u24 v5, 516, v5\nv_add_u32 v5, v5, v6\nv_add_u32 v6, {S0+1536}, v6")
    for h in range(2):
        for i in range(4):
            a(f"ds_read2_b32 v[{16+16*h+2*i}:{17+16*h+2*i}], v5 offset0:{16*h+4*i} offset1:{16*h+4*i+1}")
            a(f"ds_read2_b32 v[{24+16*h+2*i}:{25+16*h+2*i}], v6 offset0:{16*h+4*i} offset1:{16*h+4*i+1}")
    a("v_mov_b32 v8, s61\nv_mul_f32 v8, s63, v8\ns_waitcnt lgkmcnt(0)\nv_sub_f32 v14, v8, v14\nv_mul_f32 v14, s63, v14")
    for h in range(2):
        for j in range(8):
            x = 16+16*h+j
            a(f"v_add_f32 v{x}, v{x}, v14\nv_fmac_f32 v{x}, s64, v{x+8}\nv_mul_f32 v{x}, s65, v{x}")
        for i in range(4): a(f"v_cvt_pk_bf16_f32 v{48+4*h+i}, v{16+16*h+2*i}, v{17+16*h+2*i}")
        a(f"buffer_store_dwordx4 v[{48+4*h}:{51+4*h}], v15, s[28:31], s66 offen offset:{1024*h}")
    a("s_branch K2_end\nK2w_fb:")
    a("s_lshl_b32 s37, s35, 7\nv_lshl_add_u32 v5, v3, 2, s37")
    a(f"v_add_u32 v7, {S0+1536}, v5\nds_read_b32 v14, v7")
    a(f"s_mul_i32 s37, s36, {16*516}\nv_mul_u32_u24 v6, {2*516}, v4\nv_add3_u32 v5, v5, v6, s37")
    for h in range(2):
        for i in range(4):
            for c in range(2): a(f"ds_read_b32 v{16+8*h+2*i+c}, v5 offset:{(16*h+4*i+c)*516}")
    a("s_waitcnt lgkmcnt(0)")
    for h in range(2):
        for j in range(8): a(f"v_fmac_f32 v{16+8*h+j}, s64, v14")
        for i in range(4): a(f"v_cvt_pk_bf16_f32 v{48+4*h+i}, v{16+8*h+2*i}, v{17+8*h+2*i}")
        a(f"buffer_store_dwordx4 v[{48+4*h}:{51+4*h}], v15, s[28:31], s66 offen offset:{1024*h}")
    a("s_cmp_ge_u32 s33, 8\ns_cbranch_scc1 K2_end")
    a("v_and_b32 v5, 3, v2\nv_lshrrev_b32 v6, 5, v2\nv_max_u32 v7, 1, v5\nv_lshlrev_b32 v7, 9, v7\nv_lshl_add_u32 v7, v6, 3, v7")
    a(f"s_lshl_b32 s37, s33, 6\ns_add_u32 s37, s37, {S0-512}\nv_add_u32 v7, s37, v7")
    for i in range(4): a(f"ds_read2_b32 v[{16+2*i}:{17+2*i}], v7 offset0:{4*i} offset1:{4*i+1}")
    a("v_mov_b32 v8, s61\nv_mov_b32 v9, s62\nv_cmp_eq_u32 s[40:41], 2, v5\nv_cmp_eq_u32 s[42:43], 3, v5\nv_cmp_eq_u32 s[44:45], 0, v5")
    a("v_cndmask_b32 v8, 0, v8, s[40:41]\nv_cndmask_b32 v8, v8, v9, s[42:43]")
    a("v_lshrrev_b32 v10, 2, v2\nv_lshrrev_b32 v11, 4, v2\nv_xor_b32 v10, v10, v11\nv_and_b32 v10, 1, v10\nv_cmp_eq_u32 s[46:47], 0, v10\ns_waitcnt lgkmcnt(0)")
    for j in range(8): a(f"v_fmac_f32 v{16+j}, s64, v8\nv_cndmask_b32 v{16+j}, v{16+j}, 1.0, s[44:45]\nv_cndmask_b32 v{16+j}, 0, v{16+j}, s[46:47]")
    for i in range(4): a(f"v_cvt_pk_bf16_f32 v{48+i}, v{16+2*i}, v{17+2*i}")
    a(f"s_lshl_b32 s37, s33, 10\ns_add_u32 s37, s37, {WS_WFR+WFR_E}\nbuffer_store_dwordx4 v[48:51], v15, s[28:31], s37 offen")
    a(f"v_mov_b32 v8, s60\ns_mov_b32 s37, {WS_WFR+WFR_SW}\ns_mov_b64 exec, 1\nbuffer_store_dword v8, v15, s[28:31], s37 offen")


NQ = 44; DEP = 2; NBUF = 3
QB = QN*4
L3_SIZE = GS + 64
ACC, AOP, ADR, BUF, TMP, DIS, GK, IDX = 2, 6, 8, 12, 24, 26, 33, 40
SPIN = 1 << 20
TSC = lambda: ('', ' nt', ' sc1', ' sc0 sc1', ' sc0')[OPT['tsc']]
XP = 5
def k3(a):
    name = 'hop_kernel'
    a.launch(name, 256, 1024, L3_SIZE)
    a.begin(name)
    a("s_cmp_ge_u32 s2, 256\ns_cbranch_scc1 K3_end")
    a.st_init()
    a("s_load_dwordx2 s[4:5], s[0:1], 88")
    a("v_lshrrev_b32 v4, 6, v0\nv_and_b32 v5, 63, v0\nv_readfirstlane_b32 s19, v4")
    a("s_lshr_b32 s16, s2, 3\ns_and_b32 s16, s16, 3\ns_and_b32 s17, s2, 7\ns_lshl_b32 s17, s17, 3\ns_lshr_b32 s18, s2, 5\ns_or_b32 s18, s18, s17")
    a("s_mul_i32 s20, s19, 6\ns_cmp_eq_u32 s19, 15\ns_cselect_b32 s20, 91, s20\ns_cmp_ge_u32 s19, 14\ns_cselect_b32 s21, 7, 6")
    a("s_mul_i32 s48, s16, 98\ns_add_u32 s48, s48, s20")
    a("v_lshlrev_b32 v0, 2, v5\nv_lshlrev_b32 v8, 4, v5\nv_lshlrev_b32 v9, 3, v5")
    a("s_waitcnt lgkmcnt(0)")
    a.srd(8, 4, WS_SIZE)
    a(f"s_lshl_b32 s49, s48, 2\ns_add_u32 s49, s49, {WS_TQ}\ns_buffer_load_dwordx8 s[40:47], s[8:11], s49")
    a("s_getreg_b32 s50, hwreg(HW_REG_XCC_ID)\ns_and_b32 s50, s50, 0xff\ns_add_u32 s50, s50, 1")
    a("s_lshl_b32 s51, s18, 9\ns_cmp_lg_u32 s19, 0\ns_cbranch_scc1 K3_nox")
    a(f"s_lshl_b32 s52, s16, 2\ns_add_u32 s52, s52, s51\nv_mov_b32 v4, s50\nv_mov_b32 v6, 0\nv_mov_b32 v7, {GS}\ns_mov_b64 exec, 1")
    a("buffer_store_dword v4, v0, s[8:11], s52 offen offset:256 sc1\nds_write_b32 v7, v6\ns_mov_b64 exec, -1\nK3_nox:")
    a(f"s_mul_i32 s39, s18, {GS}\ns_add_u32 s39, s39, {WS_G}")
    a("s_lshl_b32 s52, s19, 10\ns_add_u32 s53, s52, s39")
    for i in range(7):
        if i == 6: a("s_cmp_ge_u32 s19, 2\ns_cbranch_scc1 K3_nt")
        a("s_mov_b32 m0, s52\nbuffer_load_dwordx4 v8, s[8:11], s53 offen lds")
        if i < 6: a("s_add_u32 s52, s52, 16384\ns_add_u32 s53, s53, 16384")
    a("K3_nt:")
    a(f"s_lshl_b32 s52, s48, 8\ns_add_u32 s52, s52, {WS_DISP}")
    for i in range(7): a(f"buffer_load_dword v{DIS+i}, v0, s[8:11], s52 offen offset:{i*256}")
    a(f"s_lshl_b32 s52, s48, 8\ns_add_u32 s52, s52, s39")
    for i in range(7): a(f"buffer_load_dword v{GK+i}, v0, s[8:11], s52 offen offset:{i*256}")
    a("s_waitcnt lgkmcnt(0)")
    a("s_cmp_eq_u32 s21, 7\ns_cselect_b32 s46, s46, 0")
    for i in range(1, 7): a(f"s_add_u32 s{40+i}, s{40+i}, s{39+i}")
    a(f"s_min_u32 s47, s46, {NQ}")
    a(f"s_sub_u32 s28, s47, {DEP+1}\ns_mov_b64 s[32:33], 0")
    for i in range(7): a(f"s_sub_u32 s{40+i}, s{40+i}, 1\ns_bitset1_b64 s[32:33], s{40+i}")
    a("s_add_u32 s52, s28, 1\ns_lshr_b64 s[34:35], s[32:33], s52\ns_mov_b64 s[24:25], s[32:33]\ns_bitset1_b64 s[24:25], s28")
    a(f"s_lshl_b32 s52, s48, 13\ns_add_u32 s52, s52, {WS_IDX}\ns_add_u32 s53, s52, 8192")
    for p in range(NQ):
        a(f"buffer_load_dwordx2 v[{IDX+2*p}:{IDX+2*p+1}], v9, s[8:11], s52 offen")
        if p == NQ-1: break
        if p == XP: a(f"s_waitcnt vmcnt({XP+1})"); a.st(2); a("s_barrier"); a.st(3)
        if p == XP: a(f"buffer_load_dword v{TMP}, v0, s[8:11], s51 offen offset:256 sc1")
        a(f"s_add_u32 s52, s52, 512\ns_bitcmp1_b64 s[32:33], {p}\ns_cselect_b32 s52, s53, s52\ns_cselect_b32 s54, 8192, 0\ns_add_u32 s53, s53, s54")
        if p >= 5: a(f"s_cmp_le_u32 s47, {p+1}\ns_cbranch_scc1 K3_ld{p+1}")
    a("s_branch K3_ld")
    for p in range(6, NQ):
        a(f"K3_ld{p}:\ns_mov_b64 exec, 1\nbuffer_load_dword v{IDX+2*p}, v0, s[8:11], s49 offen")
    a("s_mov_b64 exec, -1\nK3_ld:"); a.st(1)
    a(f"v_lshrrev_b32 v1, 2, v5\nv_mul_u32_u24 v1, {TQS}, v1\nv_and_b32 v4, 3, v5\nv_lshl_add_u32 v1, v4, 2, v1")
    a(f"v_cmp_eq_u32 s[54:55], 0, v4\nv_cmp_eq_u32 s[56:57], 1, v4\nv_mov_b32 v2, 0x3f80\nv_mov_b32 v3, 0x3f800000")
    a(f"v_cndmask_b32 v{AOP}, 0, v2, s[54:55]\nv_cndmask_b32 v{AOP}, v{AOP}, v3, s[56:57]\nv_mov_b32 v{AOP+1}, v{AOP}")
    for i in range(4): a(f"v_mov_b32 v{ACC+i}, 0")
    a("s_lshl_b32 s52, s19, 2\ns_add_u32 s65, s52, s51")
    a("s_lshl_b32 s58, s16, 6\ns_add_u32 s58, s58, s65")
    a(f"s_lshl_b32 s59, s20, 8\ns_mul_i32 s60, s16, {QB}\ns_add_u32 s60, s60, s59")
    a(f"s_mul_i32 s61, s48, {16*TQS}\ns_lshl_b32 s52, s18, 4\ns_add_u32 s61, s61, s52\ns_add_u32 s61, s61, {WS_TOK}")
    for r in range(1, 4): a(f"s_add_u32 s52, s16, {r}\ns_and_b32 s52, s52, 3\ns_mul_i32 s52, s52, {QB}\ns_add_u32 s{65+r}, s52, s59")
    a(f"s_mov_b32 s22, 1\ns_mov_b32 s64, 0\ns_mov_b32 s62, {KS}")
    def ad1(p, h):
        r = IDX+2*p+(h >> 1)
        a(f"v_lshrrev_b32 v{ADR+h}, 15, v{r}" if h & 1 else f"v_lshlrev_b32_sdwa v{ADR+h}, 2, v{r} {SD} src1_sel:WORD_0")
    def adr(p):
        for h in range(4): ad1(p, h)
    def rd(p):
        for h in range(4): a(f"ds_read_b32 v{BUF+4*(p%NBUF)+h}, v{ADR+h}")
    def mf(p, h):
        b = BUF+4*(p%NBUF)+2*h
        if OPT['exp'] & 2: return
        a(f"v_mfma_f32_4x4x4_16b_bf16 v[{ACC}:{ACC+3}], v[{AOP}:{AOP+1}], v[{b}:{b+1}], v[{ACC}:{ACC+3}]")
    def vw(p):
        if p % 4 == 0 and p > XP: a(f"s_waitcnt vmcnt({max(NQ-4-p, 0)})")
    CALL = "s_swappc_b64 s[30:31], s[26:27]"
    T0, T1 = TMP, TMP+1
    a(f"s_mov_b64 exec, 15\ns_waitcnt vmcnt({NQ-8})\nK3_xp:\nv_cmp_eq_u32 vcc, 0, v{TMP}\ns_cbranch_vccz K3_xb\ns_add_u32 s64, s64, 1\ns_cmp_gt_u32 s64, {SPIN}\ns_cbranch_scc1 K3_xb")
    a(f"buffer_load_dword v{TMP}, v0, s[8:11], s51 offen offset:256 sc1\ns_waitcnt vmcnt(0)\ns_branch K3_xp\nK3_xb:")
    a(f"v_cmp_ne_u32 vcc, s50, v{TMP}\ns_cmp_lg_u64 vcc, 0\ns_cselect_b32 s23, 1, 0\ns_mov_b64 exec, -1")
    a("s_getpc_b64 s[40:41]\nK3_pc:\ns_add_u32 s40, s40, K3_fl0_0-K3_pc\ns_addc_u32 s41, s41, 0\ns_mul_i32 s42, s23, K3_fl1_0-K3_fl0_0\ns_mov_b32 s43, K3_fl2_0-K3_fl0_0\ns_mov_b32 s44, " + str(16*TQS))
    if OPT['exp'] & 4:
        a("s_waitcnt vmcnt(0)\nv_lshrrev_b32 v24, 2, v0\nv_lshl_or_b32 v24, v24, 17, v24")
        for p in range(2*NQ): a(f"v_add_u32 v{IDX+p}, {(p*64) | (p*64+64*99) << 17}, v24")
    a("K3_hop:")
    a(f"s_add_u32 s39, s39, s62\ns_add_u32 s61, s61, 1024\ns_add_u32 s37, s39, s60")
    a("s_cmp_eq_u32 s22, 7\ns_cselect_b32 s42, s43, s42\ns_add_u32 s26, s40, s42\ns_addc_u32 s27, s41, 0")
    if OPT['prio'] == 1: a("s_cmp_ge_u32 s19, 8\ns_cbranch_scc1 K3_p2\ns_setprio 3\ns_branch K3_p3\nK3_p2:\ns_setprio 2\nK3_p3:")
    if OPT['prio'] == 2: a("s_setprio 3")
    if OPT['prio'] == 3: a("s_setprio 1")
    for p in range(DEP): adr(p); rd(p)
    adr(DEP)
    if OPT['wb']: a(f"s_cmp_lg_u32 s19, 0\ns_cbranch_scc1 K3_nwb\ns_bitcmp1_b32 {OPT['wb']}, s22\ns_cbranch_scc0 K3_nwb\nbuffer_wbl2 sc1\nK3_nwb:")
    def tokst():
        a("s_sub_u32 s38, s61, 1024")
        for l in range(7):
            if l == 6: a("s_cmp_eq_u32 s21, 7\ns_cbranch_scc0 K3_t6" + tokst.sfx)
            a(f"buffer_store_dword v{GK+l}, v1, s[8:11], s38 offen{TSC()}")
            if l < 6: a(f"s_add_u32 s38, s38, {16*TQS}")
        a("K3_t6" + tokst.sfx + ":")
    if OPT['tok'] == 0:
        tokst.sfx = 'a'
        a("s_cmp_eq_u32 s22, 1\ns_cbranch_scc1 K3_t6a"); tokst()
    else:
        a(f"s_sub_u32 s38, s61, 1024")
        if not OPT['exp'] & 8: a(f"buffer_store_dword v{GK}, v1, s[8:11], s38 offen{TSC()}")
    for p in range(NQ-DEP):
        rd(p+DEP); a(f"s_waitcnt lgkmcnt({4*DEP})"); mf(p, 0)
        if p+DEP+1 < NQ:
            vw(p+DEP+1)
            ad1(p+DEP+1, 0); ad1(p+DEP+1, 1); mf(p, 1); ad1(p+DEP+1, 2); ad1(p+DEP+1, 3)
        else: mf(p, 1)
        if OPT['prio'] == 2 and p in (9, 18, 27): a(f"s_setprio {2 - (9, 18, 27).index(p)}")
        if OPT['prio'] == 1 and p in (11, 23): a(f"s_cmp_ge_u32 s19, 8\ns_cbranch_scc0 K3_q{p}\ns_setprio {1 if p == 11 else 0}\nK3_q{p}:")
        a(f"s_bitcmp1_b64 s[24:25], {p}\ns_cbranch_scc1 K3_st{p}\nK3_bk{p}:")
    a("s_endpgm")
    for p in range(NQ-DEP):
        a(f"K3_st{p}:\ns_bitcmp1_b64 s[32:33], {p}\ns_cbranch_scc0 K3_nf{p}\n{CALL}\nK3_nf{p}:")
        a(f"s_cmp_eq_u32 s28, {p}\ns_cbranch_scc1 K3_dr{(p+1)%NBUF}\ns_branch K3_bk{p}")
    for r in range(NBUF):
        a(f"K3_dr{r}:")
        for i in range(DEP):
            a(f"s_waitcnt lgkmcnt({4*(DEP-1-i)})"); mf(r+i, 0); mf(r+i, 1)
            if i < DEP-1: a(f"s_bitcmp1_b32 s34, {i}\ns_cbranch_scc0 K3_dn{r}_{i}\n{CALL}\nK3_dn{r}_{i}:")
            else: a(f"{CALL}\ns_branch K3_hend")
    for m in range(3):
        for l in range(7):
            a(f".p2align 7\nK3_fl{m}_{l}:\ns_add_u32 s26, s26, 128\ns_addc_u32 s27, s27, 0")
            if OPT['tok'] and l < 6 and not OPT['exp'] & 8:
                a("s_add_u32 s38, s38, s44")
                if l == 5: a(f"s_cmp_eq_u32 s21, 7\ns_cselect_b32 s38, s38, {WS_SIZE}")
                a(f"buffer_store_dword v{GK+l+1}, v1, s[8:11], s38 offen{TSC()}")
            if OPT['exp'] & 16: a("s_setpc_b64 s[30:31]")
            a(f"v_mul_f32 v{T0}, v{DIS+l}, v{ACC}\nv_mul_f32 v{T1}, v{DIS+l}, v{ACC+1}\nv_mov_b64 v[{ACC}:{ACC+1}], 0\nv_cvt_pk_bf16_f32 v{GK+l}, v{T0}, v{T1}")
            if m < 2: a(f"buffer_store_dword v{GK+l}, v0, s[8:11], s37 offen offset:{l*256}{' sc1' if m else ''}")
            a("s_setpc_b64 s[30:31]")
    a("K3_hend:"); a.st(4)
    if OPT['stamp']: a("s_cmp_eq_u32 s22, 1\ns_cselect_b32 s80, s74, s80\ns_cselect_b32 s74, 0, s74\ns_cmp_eq_u32 s22, 4\ns_cselect_b32 s82, s84, s82")
    a("s_cmp_eq_u32 s22, 7\ns_cbranch_scc1 K3_fin")
    if OPT['prio']: a(f"s_setprio {OPT['wprio']}")
    a(f"v_mov_b32 v{T0}, s22\nv_mov_b32 v{T1}, 1\nv_mov_b32 v{ACC}, {GS}\ns_mov_b64 exec, 1\nds_add_u32 v{ACC}, v{T1}\ns_waitcnt vmcnt(0)"); a.st(5)
    a("s_cmp_eq_u32 s23, 0\ns_cbranch_scc0 K3_g1")
    a(f"buffer_store_dword v{T0}, v0, s[8:11], s58 offen\ns_branch K3_g2\nK3_g1:\nbuffer_store_dword v{T0}, v0, s[8:11], s58 offen sc1\nK3_g2:")
    a(f"s_mov_b64 exec, 15\nv_lshlrev_b32 v{T1}, 4, v0")
    a(f"K3_poll:\ns_add_u32 s64, s64, 1\ns_cmp_gt_u32 s64, {SPIN}\ns_cbranch_scc1 K3_pb")
    a(f"buffer_load_dword v{T0}, v{T1}, s[8:11], s65 offen sc1\ns_waitcnt vmcnt(0)\nv_cmp_gt_u32 vcc, s22, v{T0}\ns_cbranch_vccz K3_pb\ns_sleep {OPT['slg']}\ns_branch K3_poll\nK3_pb:"); a.st(7)
    a(f"s_mov_b64 exec, -1\nv_lshlrev_b32 v{T0}, 2, v0\nv_lshlrev_b32 v{T1}, 1, v0")
    RX = ((8, 12), (14, 18), (20, 4))
    for r in range(3):
        a(f"s_add_u32 s53, s{66+r}, s39\nbuffer_load_dwordx4 v[{RX[r][0]}:{RX[r][0]+3}], v{T0}, s[8:11], s53 offen sc1")
        a(f"buffer_load_dwordx2 v[{RX[r][1]}:{RX[r][1]+1}], v{T1}, s[8:11], s53 offen offset:1024 sc1")
    a(f"s_lshl_b32 s52, s22, 4\ns_mov_b64 exec, 1\nK3_aw:\nds_read_b32 v{ACC+1}, v{ACC}\ns_waitcnt lgkmcnt(0)\nv_readfirstlane_b32 s53, v{ACC+1}\ns_cmp_ge_u32 s53, s52\ns_cbranch_scc1 K3_ad\ns_sleep {OPT['sll']}\ns_branch K3_aw\nK3_ad:\ns_mov_b64 exec, -1"); a.st(6)
    a(f"v_add_u32 v{ACC}, s60, v0")
    for i in range(6): a(f"ds_write_b32 v{ACC}, v{GK+i} offset:{i*256}")
    a(f"s_cmp_eq_u32 s21, 7\ns_cbranch_scc0 K3_w6\nds_write_b32 v{ACC}, v{GK+6} offset:1536")
    for r in range(3): a(f"s_mov_b32 m0, s{66+r}\ns_add_u32 s53, s{66+r}, s39\nbuffer_load_dword v0, s[8:11], s53 offen offset:1536 sc1 lds")
    a("s_waitcnt vmcnt(3)\nK3_w6:")
    for r in range(3):
        a(f"v_add_u32 v{ACC}, s{66+r}, v{T0}\nv_add_u32 v{ACC+1}, s{66+r}, v{T1}\ns_waitcnt vmcnt({5-2*r})\nds_write_b128 v{ACC}, v[{RX[r][0]}:{RX[r][0]+3}]\ns_waitcnt vmcnt({4-2*r})\nds_write_b64 v{ACC+1}, v[{RX[r][1]}:{RX[r][1]+1}] offset:1024")
    for i in range(4): a(f"v_mov_b32 v{ACC+i}, 0")
    a(f"s_cmp_eq_u32 s23, 0\ns_cbranch_scc0 K3_np\ns_cmp_lt_u32 s22, 2\ns_cbranch_scc1 K3_np\ns_sub_u32 s62, 0, s62\nK3_np:")
    a("s_add_u32 s22, s22, 1\ns_waitcnt vmcnt(0) lgkmcnt(0)"); a.st(8); a("s_barrier"); a.st(9)
    if OPT['stamp']: a("s_cmp_eq_u32 s22, 5\ns_cselect_b32 s83, s84, s83")
    a("s_branch K3_hop")
    if OPT['stamp']: a("K3_fin:\ns_mov_b32 s81, s64\nK3_fin2:")
    else: a("K3_fin:")
    a("s_add_u32 s61, s61, 1024"); tokst.sfx = 'b'; tokst(); a.st_out(2, 8, 's19', 10)
    a("K3_end:\ns_endpgm")
    a.end(name, 128, 102)

import sched
L4_SCR = 73728; L4_TB = L4_SCR + 8192; TBS = 8320; L4_SIZE = L4_TB + 8*TBS
TK = 16; QQ = 48; AL = 64; WF = 80; NWF = 5; SV = (100, 101); AC = (104, 120); PK = (136, 144); SS = 152; OO = 168; SEL = 232; PA = 240; EA = 248; PM = (252, 254)
EPS = f2u(1e-5); I128 = f2u(1/128.); LOG2E = f2u(math.log2(math.e))
def k4(a):
    name = 'att_kernel'
    a.launch(name, 256, 512, L4_SIZE)
    a.begin(name)
    W8 = sched.Waits()
    L = []
    def o(text, R=(), W=(), rr=(), pri=0):
        for t in text.split('\n'):
            x = sched.Op(t, R, W, pri); x.r |= {('v', r) for r in rr}; L.append(x)
    def flush(do_sched):
        ops = sched.schedule(L, True) if do_sched else list(L)
        for t in W8.emit(ops): a(t)
        L.clear()
    a("s_cmp_ge_u32 s2, 256\ns_cbranch_scc1 K4_end")
    a.st_init()
    a("s_load_dwordx2 s[4:5], s[0:1], 88\ns_load_dwordx2 s[6:7], s[0:1], 72")
    a("v_lshrrev_b32 v4, 6, v0\nv_and_b32 v0, 63, v0\nv_readfirstlane_b32 s19, v4\nv_lshlrev_b32 v2, 4, v0")
    a("s_lshl_b32 s20, s2, 3\ns_add_u32 s20, s20, s19\ns_mul_i32 s20, s20, 3")
    a(f"s_mul_i32 s44, s19, {TBS}\ns_add_u32 s44, s44, {L4_TB}")
    a(f"v_lshrrev_b32 v5, 5, v0\nv_bfe_u32 v6, v0, 3, 2\nv_lshlrev_b32 v3, 3, v5\nv_lshlrev_b32 v102, 2, v6\nv_add_u32 v102, {WS_SINV-WS_PERM}, v102")
    a("s_waitcnt lgkmcnt(0)")
    a.srd(8, 4, WS_SIZE); a.srd(12, 6, N*256)
    a(f"s_mov_b32 s3, {WS_WFR+WFR_SW}\ns_buffer_load_dword s24, s[8:11], s3")
    def loads(g, squad, after=()):
        o(f"s_mul_i32 s21, s{squad}, {TQS}\ns_add_u32 s21, s21, {WS_TOK}\ns_lshl_b32 s22, s{squad}, 4\ns_add_u32 s22, s22, {WS_PERM}")
        for k in range(8):
            if k == 4: o("s_add_u32 s21, s21, 4096")
            o(f"s_add_u32 m0, s44, {16*k + (4096 if k >= 4 else 0)}")
            o(f"buffer_load_dwordx4 v2, s[8:11], s21 offen offset:{(k&3)*1024} lds", W=[f'lbuf{k}'], rr=after, pri=400)
        o(f"buffer_load_dword v{SV[g&1]}, v102, s[8:11], s22 offen\nbuffer_load_dwordx2 v[{PM[g&1]}:{PM[g&1]+1}], v3, s[8:11], s22 offen")
    def wdma(lo, hi):
        for i in range(lo, hi):
            o(f"s_add_u32 m0, s25, {8192*i}\ns_add_u32 s27, s26, {8192*i}"); o("buffer_load_dwordx4 v2, s[8:11], s27 offen lds", W=['wts'])
    a(f"s_lshl_b32 s25, s19, 10\ns_add_u32 s26, s25, {WS_WFR}")
    wdma(8, 9); wdma(0, 4); loads(0, 20); wdma(4, 8); flush(False)
    a(f"v_and_b32 v4, 7, v0\nv_mul_u32_u24 v1, 1040, v4\nv_lshl_add_u32 v1, v5, 4, v1\nv_lshl_add_u32 v1, v6, 2, v1\nv_add_u32 v1, s44, v1")
    for n in range(4): a(f"v_cmp_eq_u32 s[{32+2*n}:{33+2*n}], {n}, v6")
    a("v_and_b32 v7, 31, v0\nv_bfe_u32 v8, v7, 1, 1\nv_cmp_eq_u32 s[40:41], v8, v5")
    a("v_and_b32 v8, 1, v7\nv_lshlrev_b32 v8, 4, v8\nv_mov_b32 v9, 0x3f80\nv_lshlrev_b32 v9, v8, v9\nv_cndmask_b32 v9, 0, v9, s[40:41]\nv_lshrrev_b32 v8, 2, v7")
    for j in range(8): a(f"v_cmp_eq_u32 s[40:41], {j}, v8\nv_cndmask_b32 v{SEL+j}, 0, v9, s[40:41]")
    a(f"s_lshl_b32 s25, s19, 10\ns_add_u32 s25, s25, {L4_SCR}")
    a("v_lshl_add_u32 v4, v7, 2, s25")
    a("v_lshlrev_b32 v8, 5, v6\nv_lshl_add_u32 v8, v5, 4, v8\nv_add_u32 v8, s25, v8")
    a("v_lshl_add_u32 v9, v5, 4, s25")
    a("v_bfe_u32 v10, v0, 2, 2\nv_lshlrev_b32 v10, 5, v10\nv_bfe_u32 v11, v0, 4, 1\nv_lshl_add_u32 v10, v11, 2, v10\nv_add_u32 v10, v10, v9")
    a("v_lshlrev_b32 v7, 1, v7\nv_add_u32 v15, 0x10000, v2")
    a(f"s_mov_b32 s28, {I128}\ns_mov_b32 s29, {EPS}\ns_mov_b32 s30, {LOG2E}")
    a(f"s_add_u32 s45, s20, 1\ns_add_u32 s46, s20, 2\ns_add_u32 s47, s2, 6144\ns_cmp_lt_u32 s2, 128\ns_cselect_b32 s31, 1, 0\ns_cmp_eq_u32 s19, 0\ns_cselect_b32 s31, s31, 0")
    a(f"s_sub_u32 s3, s47, {ZB//4}\ns_cmp_lt_u32 s3, 22\ns_cselect_b32 s31, 0, s31\ns_cmp_eq_u32 s31, 0\ns_cselect_b32 s47, s20, s47\ns_waitcnt lgkmcnt(0)")
    a.st(1)
    for t in W8.drain(['wts']): a(t)
    a.st(2); a("s_barrier"); a.st(3)
    if OPT['exp'] & 2048: a("s_cmp_ge_u32 s19, 4\ns_cbranch_scc1 K4_fin")
    if OPT['exp'] & 4096: a("s_cmp_ge_u32 s19, 1\ns_cbranch_scc1 K4_fin")
    frag_off = [WFR_E + u*1024 for u in range(8)] + [f*1024 for f in range(64)]
    ring = [0]
    def group(g, nxt):
        T = lambda u: f"v[{TK+4*u}:{TK+4*u+3}]"
        R16 = lambda b: f"v[{b}:{b+15}]"
        sv = SV[g & 1]; pm = PM[g & 1]
        def W(j):
            r = WF + 4*(ring[0] % NWF); ring[0] += 1
            if OPT['exp'] & 128 and ring[0] > 5: return f"v[{r}:{r+3}]"
            o(f"ds_read_b128 v[{r}:{r+3}], v2 offset:{frag_off[j]}" if frag_off[j] < 65536 else f"ds_read_b128 v[{r}:{r+3}], v15 offset:{frag_off[j]-65536}")
            return f"v[{r}:{r+3}]"
        for t in range(16): o(f"ds_read2_b32 v[{TK+2*t}:{TK+2*t+1}], v1 offset0:{16*t} offset1:{16*t+8}", R=[f'lbuf{k}' for k in range(8)])
        if OPT['gprio']: o(f"s_setprio {3-g}", rr=[TK])
        if nxt is not None: loads(g+1, nxt, after=range(TK, TK+32))
        o(f"v_lshl_add_u32 v{pm}, v{pm}, 8, v7\nv_lshl_add_u32 v{pm+1}, v{pm+1}, 8, v7")
        for u in range(8): w = W(u); o(f"v_mfma_f32_16x16x32_bf16 v[{EA}:{EA+3}], {w}, {T(u)}, {'0' if u == 0 else f'v[{EA}:{EA+3}]'}")
        D = AC[1]
        for t in range(4 if OPT['exp'] & 512 else 32): o(f"v_dot2_f32_bf16 v{D+(t&3)}, v{TK+t}, v{TK+t}, {'0' if t < 4 else f'v{D+(t&3)}'}")
        def ychain(t):
            for u in range(8): w = W(8+8*t+u); o(f"v_mfma_f32_32x32x16_bf16 {R16(AC[t&1])}, {w}, {T(u)}, {'0' if u == 0 else R16(AC[t&1])}")
        def zchain(t):
            for u in range(8): w = W(40+8*t+u); o(f"v_mfma_f32_32x32x16_bf16 {R16(AC[t&1])}, {T(u)}, {w}, {'0' if u == 0 else R16(AC[t&1])}")
        def pack(t):
            for d in range(8): o(f"v_cvt_pk_bf16_f32 v{PK[t&1]+d}, v{AC[t&1]+2*d}, v{AC[t&1]+2*d+1}")
        def smf(t):
            for h in range(2): o(f"v_mfma_f32_32x32x16_bf16 {R16(SS)}, v[{PK[t&1]+4*h}:{PK[t&1]+4*h+3}], {T(2*t+h)}, {'0' if t == 0 and h == 0 else R16(SS)}")
        def sel(b):
            for h in range(0 if OPT['exp'] & 256 else 2): o(f"v_mfma_f32_32x32x16_bf16 {R16(OO+16*b)}, {T(2*b+h)}, v[{SEL+4*h}:{SEL+4*h+3}], {'0' if h == 0 else R16(OO+16*b)}")
        def pz(b):
            for h in range(2): o(f"v_mfma_f32_32x32x16_bf16 {R16(OO+16*b)}, v[{PA+4*h}:{PA+4*h+3}], v[{PK[b&1]+4*h}:{PK[b&1]+4*h+3}], {R16(OO+16*b)}")
        o(f"v_add_f32 v11, v{D}, v{D+1}\nv_add_f32 v12, v{D+2}, v{D+3}\nv_add_f32 v11, v11, v12")
        o(f"v_mov_b32 v12, v11\nv_permlane32_swap_b32 v11, v12\nv_add_f32 v11, v11, v12\nv_mul_f32 v12, s28, v{EA}\nv_mul_f32 v12, v12, v12\nv_fma_f32 v11, v11, s28, -v12")
        o(f"v_mul_f32 v12, v{sv}, v{sv}\nv_max_f32 v11, 0, v11\nv_fma_f32 v11, v11, v12, s29\nv_rsq_f32 v11, v11\nv_mul_f32 v11, v11, v{sv}")
        o("ds_write_b32 v4, v11", W=['sa']); o(f"ds_write_b32 v4, v{EA+2} offset:128\nds_write_b32 v4, v{EA+3} offset:256", W=['sb'])
        RL, X, ZS, ZD = PA, SS, SS+8, SS+12
        o(f"ds_read_b128 v[{RL}:{RL+3}], v8", R=['sa'])
        ychain(0); pack(0); smf(0)
        ychain(1); pack(1); smf(1)
        ychain(2); pack(2); smf(2)
        ychain(3); pack(3); smf(3)
        zchain(0); pack(0)
        zchain(1); pack(1)
        for r in range(4):
            o(f"v_cndmask_b32 v{X+r}, v{SS+r}, v{SS+4+r}, s[34:35]\nv_cndmask_b32 v{X+r}, v{X+r}, v{SS+8+r}, s[36:37]\nv_cndmask_b32 v{X+r}, v{X+r}, v{SS+12+r}, s[38:39]")
        o(f"ds_read_b128 v[{ZS}:{ZS+3}], v8 offset:128\nds_read_b128 v[{ZD}:{ZD+3}], v8 offset:256", R=['sb'])
        for r in range(4): o(f"v_mul_f32 v{X+r}, v{X+r}, v{RL+r}")
        t0, t1 = X+4, X+5
        o(f"v_max3_f32 v{t0}, v{X}, v{X+1}, v{X+2}\nv_max_f32 v{t0}, v{t0}, v{X+3}\nv_mov_b32 v{t1}, v{t0}\nv_permlane32_swap_b32 v{t0}, v{t1}\nv_max_f32 v{t0}, v{t0}, v{t1}\nv_mul_f32 v{t0}, v{t0}, v11")
        for r in range(4): o(f"v_fma_f32 v{X+r}, v{X+r}, v11, -v{t0}")
        for r in range(4): o(f"v_exp_f32 v{X+r}, v{X+r}")
        o(f"v_add_f32 v{t0}, v{X}, v{X+1}\nv_add_f32 v{t1}, v{X+2}, v{X+3}\nv_add_f32 v{t0}, v{t0}, v{t1}\nv_mov_b32 v{t1}, v{t0}\nv_permlane32_swap_b32 v{t0}, v{t1}\nv_add_f32 v{t0}, v{t0}, v{t1}\nv_mul_f32 v{t0}, v{t0}, v{sv}\nv_rcp_f32 v{t0}, v{t0}")
        for r in range(4): o(f"v_mul_f32 v{X+r}, v{X+r}, v{RL+r}")
        for r in range(4): o(f"v_mul_f32 v{X+r}, v{X+r}, v{t0}")
        o(f"v_cvt_pk_bf16_f32 v{X+6}, v{X}, v{X+1}\nv_cvt_pk_bf16_f32 v{X+7}, v{X+2}, v{X+3}")
        for n in range(4): o(f"v_cndmask_b32 v{PA+2*n}, 0, v{X+6}, s[{32+2*n}:{33+2*n}]\nv_cndmask_b32 v{PA+2*n+1}, 0, v{X+7}, s[{32+2*n}:{33+2*n}]")
        o(f"v_mul_f32 v13, v{X}, v{ZS}\nv_mul_f32 v14, v{X}, v{ZD}")
        for r in range(1, 4): o(f"v_fmac_f32 v13, v{X+r}, v{ZS+r}\nv_fmac_f32 v14, v{X+r}, v{ZD+r}")
        o(f"v_permlane32_swap_b32 v13, v14\nv_add_f32 v13, v13, v14\nv_mov_b32 v14, v13\nv_permlane32_swap_b32 v13, v14\nv_add_f32 v13, v13, v{EA}\nv_add_f32 v14, v14, v{EA+1}")
        def sq(b):
            for r in range(0 if (OPT['exp'] & 1024 and b) else 16): o(f"v_mul_f32 v{QQ+r}, v{OO+r}, v{OO+r}" if b == 0 else f"v_fmac_f32 v{QQ+r}, v{OO+16*b+r}, v{OO+16*b+r}")
        sel(0); pz(0); sq(0)
        zchain(2); sel(1); pz(1); sq(1); pack(2)
        zchain(3); sel(2); pz(2); sq(2); pack(3)
        sel(3); pz(3); sq(3)
        q = QQ
        for i in range(8): o(f"v_add_f32_dpp v{q+i}, v{q+i}, v{q+i} row_ror:8 row_mask:0xf bank_mask:0x3\nv_add_f32_dpp v{q+i}, v{q+8+i}, v{q+8+i} row_ror:8 row_mask:0xf bank_mask:0xc")
        for i in range(4): o(f"v_add_f32_dpp v{q+i}, v{q+i}, v{q+i} row_half_mirror row_mask:0xf bank_mask:0x5\nv_add_f32_dpp v{q+i}, v{q+4+i}, v{q+4+i} row_half_mirror row_mask:0xf bank_mask:0xa")
        for i in range(4): o(f"v_add_f32_dpp v{q+i}, v{q+i}, v{q+i} quad_perm:[1,0,3,2] {DPPF}")
        for i in range(4): o(f"v_add_f32_dpp v{q+i}, v{q+i}, v{q+i} quad_perm:[2,3,0,1] {DPPF}")
        o(f"v_permlane16_swap_b32 v{q}, v{q+1}\nv_permlane16_swap_b32 v{q+2}, v{q+3}\nv_add_f32 v{q}, v{q}, v{q+1}\nv_add_f32 v{q+2}, v{q+2}, v{q+3}")
        o(f"ds_write_b32 v10, v{q} offset:384\nds_write_b32 v10, v{q+2} offset:392", W=['sc'])
        o(f"ds_read_b32 v5, v4 offset:384", R=['sc'])
        o(f"v_mul_f32 v13, s28, v13\nv_fma_f32 v14, -v13, s24, v14\nv_mul_f32 v13, v13, v13\nv_mul_f32 v14, s30, v14\nv_mul_f32 v6, v{sv}, v{sv}\nv_mul_f32 v14, v14, v{sv}")
        o("v_fma_f32 v5, v5, s28, -v13\nv_max_f32 v5, 0, v5\nv_fma_f32 v5, v5, v6, s29\nv_rsq_f32 v5, v5\nv_mul_f32 v5, v5, v14")
        o(f"v_max_f32_dpp v6, v5, v5 quad_perm:[1,0,3,2] {DPPF}\nv_max_f32_dpp v6, v6, v6 quad_perm:[2,3,0,1] {DPPF}\nv_max_f32_dpp v6, v6, v6 row_half_mirror {DPPF}")
        o("v_sub_f32 v5, v5, v6\nv_exp_f32 v5, v5")
        o(f"v_add_f32_dpp v6, v5, v5 quad_perm:[1,0,3,2] {DPPF}\nv_add_f32_dpp v6, v6, v6 quad_perm:[2,3,0,1] {DPPF}\nv_add_f32_dpp v6, v6, v6 row_half_mirror {DPPF}")
        o(f"v_rcp_f32 v6, v6\nv_mul_f32 v5, v5, v{sv}\nv_mul_f32 v5, v5, v6")
        o("ds_write_b32 v4, v5 offset:512", W=['sd'])
        for n in range(4): o(f"ds_read_b128 v[{AL+4*n}:{AL+4*n+3}], v9 offset:{512+32*n}", R=['sd'])
        for b in range(4):
            for n in range(4):
                x = QQ + 4*b + n
                o(f"v_mul_f32 v{x}, v{AL+4*n}, v{OO+16*b+4*n}")
                for r in range(1, 4): o(f"v_fmac_f32 v{x}, v{AL+4*n+r}, v{OO+16*b+4*n+r}")
            x = QQ + 4*b
            o(f"v_permlane32_swap_b32 v{x}, v{x+2}\nv_permlane32_swap_b32 v{x+1}, v{x+3}\nv_add_f32 v{x}, v{x}, v{x+2}\nv_add_f32 v{x+1}, v{x+1}, v{x+3}\nv_cvt_pk_bf16_f32 v{x}, v{x}, v{x+1}")
            o(f"buffer_store_short v{x}, v{pm}, s[12:15], 0 offen offset:{64*b}\nbuffer_store_short_d16_hi v{x}, v{pm+1}, s[12:15], 0 offen offset:{64*b}")
    if OPT['stamp']: a("s_memtime s[88:89]\ns_waitcnt lgkmcnt(0)")
    group(0, 45); group(1, 46); group(2, 47); flush(OPT['ls']); a.st(4)
    if OPT['stamp']: a("s_memtime s[90:91]\ns_waitcnt lgkmcnt(0)\ns_sub_u32 s82, s90, s88")
    a("s_cmp_eq_u32 s31, 0\ns_cbranch_scc1 K4_fin")
    group(3, None); flush(OPT['ls']); a.st(7)
    a("K4_fin:"); a.st_out(3, 8, 's19', 10)
    a("K4_end:\ns_endpgm")
    a.end(name, 256, 102)

def build(ks, path, pre=''):
    a = K()
    for k in ks: k(a)
    open(path, 'w').write(a.text(pre))

if __name__ == '__main__':
    for x in sys.argv[1:]:
        k, v = x.split('='); OPT[k] = int(v)
    ref = open('standalone__hybrid_graph_tf_nagphormer__graph.s.ref').read().split('\n')
    pre = '\n'.join(l for l in ref if l.startswith(';') and 'launch' not in l and 'grid=' not in l) + '\n'
    build([k1, k2, k3, k4], 'stage.s', pre)
```

```python
import hazard
COST8 = 5
import re
def is8(t):
    mn = t.split()[0]
    if mn.startswith(('ds_', 'buffer_', 'v_mfma', 'v_cvt_pk', 'v_fma_', 'v_dot', 'v_max3', 'v_lshl_add', 'v_pk')) or '_dpp' in mn: return True
    if mn.startswith('v_cndmask') and 'vcc' not in t: return True
    if re.search(r'0x[0-9a-f]{3,}|, \d{3,}', t.split(';')[0]): return True
    return False
class Op:
    def __init__(s, text, R=(), W=(), pri=0):
        s.text = text; s.i = hazard.I(text)
        s.r = set(s.i.r) | {('p', x) for x in R}; s.w = set(s.i.w) | {('p', x) for x in W}
        mn = s.i.mn; k = s.i.kind
        if k == 'salu':
            if not mn.startswith(('s_mov', 's_mul_i32', 's_setprio', 's_nop', 's_barrier')): s.w.add(('p', 'scc'))
            if mn.startswith(('s_cselect', 's_addc')): s.r.add(('p', 'scc'))
        s.kind = k; s.bias = pri
        s.dot = k == 'valu' and (mn.startswith('v_dot') or mn.startswith('v_pk_'))
        s.cost = COST8 if is8(text) else 4
        if k == 'mfma': s.cost = 5; s.pipe = s.i.np*4
        elif k == 'valu' and (s.i.trans or mn.startswith(('v_permlane', 'v_swap'))): s.cost = 8
        s.async_ = None
        if k == 'ds': s.async_ = 'lgkmcnt'
        if k == 'vmem':
            s.async_ = 'vmcnt'
            if s.i.lds: s.cost = DMA_COST
def lat(p, c, kind):
    if kind == 'war':
        if p.kind == 'mfma' and c.kind == 'valu' and (p.i.C & c.w): return p.cost + p.pipe
        return p.cost
    if p.kind == 'mfma':
        if c.kind == 'mfma' and p.i.D == c.i.C and not (p.i.D & (c.i.A | c.i.B)): return p.pipe if p.i.np > 2 else 16
        return p.pipe + 20
    if p.kind == 'ds': return LDS_LAT if p.i.w else p.cost
    if p.kind == 'vmem': return VMEM_LAT if (p.w) else p.cost
    if p.kind == 'valu':
        n = hazard.need(p.i, c.i) if c.i.kind else 0
        if p.dot: return 12 + 4*n
        return p.cost + 4*n
    return p.cost
LDS_LAT = 120; VMEM_LAT = 1500; STRETCH = 1.15; QLAT = 100; DMA_COST = 16
def schedule(ops, verbose=False):
    n = len(ops)
    succ = [[] for _ in range(n)]; npred = [0]*n
    lw = {}; lr = {}
    for j, c in enumerate(ops):
        e = {}
        L = lambda i, x, k: QLAT if x == ('p', 'q') else lat(ops[i], c, k)
        for x in c.r:
            if x in lw: e[lw[x]] = max(e.get(lw[x], 0), L(lw[x], x, 'raw'))
        for x in c.w:
            if x in lw: e[lw[x]] = max(e.get(lw[x], 0), L(lw[x], x, 'raw'))
            for i in lr.get(x, ()):
                if i != j: e[i] = max(e.get(i, 0), L(i, x, 'war'))
        for i, l in e.items(): succ[i].append((j, l)); npred[j] += 1
        for x in c.r: lr.setdefault(x, []).append(j)
        for x in c.w: lw[x] = j; lr[x] = []
    tot = 0; ideal = {}
    for i, o in enumerate(ops):
        if o.kind == 'mfma': ideal[i] = tot; tot += o.pipe*STRETCH
        elif o.dot: ideal[i] = tot; tot += 4*STRETCH
    dl = [0]*n
    for i in range(n-1, -1, -1):
        d = min([dl[j] - l for j, l in succ[i]] + [tot])
        if i in ideal: d = min(d, ideal[i])
        dl[i] = d - ops[i].bias
    cp = [-x for x in dl]
    ready_n = [0]*n; waited = -1; dsq = {}
    pred_ds = [[] for _ in range(n)]
    for i in range(n):
        if ops[i].kind == 'ds' and ops[i].i.w:
            for j, l in succ[i]:
                if ops[i].i.w & (ops[j].r | ops[j].w): pred_ds[j].append(i)
    ready_t = [0]*n; avail = {i for i in range(n) if npred[i] == 0}
    t = 0; pipe = 0; port = 0; order = []; stall = 0
    while avail:
        now = [i for i in avail if ready_t[i] <= t]
        cnt = len(order)
        clean = [i for i in now if ready_n[i] <= cnt]
        if clean and not (len(clean) < len(now) and all(ops[i].kind == 'mfma' or ops[i].dot for i in clean) and pipe - t > 4): now = clean
        pick = None
        mf = [i for i in now if ops[i].kind == 'mfma']
        ot = [i for i in now if ops[i].kind != 'mfma' and not ops[i].dot]
        dt = [i for i in now if ops[i].dot]
        indot = order and ops[order[-1]].dot
        if indot and dt: pick = max(dt, key=lambda i: cp[i])
        elif mf and pipe - t <= 4: pick = max(mf + dt, key=lambda i: cp[i])
        elif ot:
            sh = [i for i in ot if ops[i].kind != 'valu'] if port > t else []
            pick = max(sh or ot, key=lambda i: (cp[i], -i))
            if ops[pick].kind == 'valu': t = max(t, port)
        elif dt and pipe - t <= 4: pick = max(dt, key=lambda i: cp[i])
        if pick is None:
            cand = [max(ready_t[i], pipe - 4) if (ops[i].kind == 'mfma' or ops[i].dot) else ready_t[i] for i in avail]
            nt = max(min(cand), t+1); stall += nt - t; t = nt; continue
        k = max([dsq[i] for i in pred_ds[pick]] + [-1])
        if k > waited: waited = k; t += 4
        t += 4*max(0, ready_n[pick] - cnt)
        if ops[pick].kind == 'ds': dsq[pick] = len(dsq)
        o = ops[pick]; o.t = t; o.idle = max(0, t - pipe) if o.kind == 'mfma' else 0
        if o.kind == 'mfma': port = max(pipe, t) + 8; pipe = max(pipe, t) + o.pipe
        if o.dot: pipe = max(pipe, t) + (4 if indot else 16)
        order.append(pick); avail.discard(pick)
        for j, l in succ[pick]:
            ready_t[j] = max(ready_t[j], t + l); npred[j] -= 1
            if ops[j].i.kind: ready_n[j] = max(ready_n[j], cnt + 1 + hazard.need(o.i, ops[j].i))
            if npred[j] == 0: avail.add(j)
        t += o.cost
    assert len(order) == n
    if verbose:
        with open('sched_%d.txt' % n, 'w') as f:
            for i in order: f.write(f"{ops[i].t:6d} {'IDLE%d' % ops[i].idle if ops[i].idle > 8 else '':8s} {ops[i].text}\n")
    if verbose: print(f"schedule: {n} ops, est {t} cycles, stall {stall}")
    return [ops[i] for i in order]
CAP = {'lgkmcnt': 15, 'vmcnt': 63}
class Waits:
    def __init__(s): s.q = {'lgkmcnt': [], 'vmcnt': []}
    def emit(s, ops):
        out = []
        for o in ops:
            w = []
            for c, q in s.q.items():
                idx = [k for k, d in enumerate(q) if d & (o.r | o.w)]
                if idx:
                    left = len(q) - 1 - idx[-1]
                    left = min(left, CAP[c]); w.append(f"{c}({left})"); s.q[c] = q[len(q)-left:] if left else []
            if w: out.append("s_waitcnt " + " ".join(w))
            out.append(o.text)
            if o.async_:
                d = set(o.w) if (o.i.w or o.kind == 'vmem') else set()
                s.q[o.async_].append({x for x in d if x != ('p', 'q')})
        return out
    def drain(s, names):
        o = Op("s_nop 0", R=names); return s.emit([o])[:-1]
```

```python
import sys
from asmlib import Asm
import hazard

N = 25000; NP = 25088; E = 400000; WIN = 128; NWIN = 196; NLEV = 392; QLEV = 98; QN = 6272
NCH = 250; CH = 1600
ZB = 195*128
WS_FLAGS = 0xC0000; FGS = 17*128; WS_NEWID = 0x10000; WS_PERM = 0x20000; WS_DISP = 0x40000; WS_TQ = 0x60000; WS_LOC = 0x64000; WS_IRR = 0x78000; WS_SINV = 0xA0000
WS_WFR = 0x80000; WS_PART = 0x100000; WS_PARTB = 0x440000; WS_IDX = 0x780000; WS_G = 0xB00000; WS_TOK = 0x3800000
GS = NP*4
TOS = 65536 + 128
PWS = 16384 + 128
KS = NP*256
WS_SIZE = 0x10000000
SD = "dst_sel:DWORD dst_unused:UNUSED_PAD src0_sel:DWORD"
DPPF = "row_mask:0xf bank_mask:0xf"
SLACK = 2
OPT = dict(stamp=0, exp=0, tal=20, tbe=1, prio=2, wprio=0, slg=2, sll=2, tok=1, tsc=2, wb=0, gprio=1, ls=1, tlb=0, wt=0, vl=1500, str=115, dp=0, ql=130, npl=1, px=0, slp=1)
WS_STAMP = 0x7800000

WT = lambda b: (' sc1' if OPT['wt'] & b else '') + (' sc0' if OPT['wt'] & b and OPT['wt'] & 8 else '') + (' nt' if OPT['wt'] & (b << 4) else '')
class K(Asm):
    def __init__(self):
        super().__init__(); self.uid = 0
    def lab(self, s='L'):
        self.uid += 1; return f"{s}_{self.uid}"
    def begin(self, name):
        self.kernel(name); self.k0 = len(self.lines)
    def end(self, name, vgpr, sgpr=102, accum=None):
        body, n = hazard.fix(self.lines[self.k0:])
        self.lines[self.k0:] = body
        print(f"{name}: {len(body)} lines, {n} nop states", file=sys.stderr)
        self.kd(name, vgpr, sgpr, accum)
    def st_init(self):
        if not OPT['stamp']: return
        self("s_memrealtime s[84:85]" if OPT['stamp'] != 2 else "s_memtime s[84:85]")
        if OPT['stamp'] == 3:
            self("s_waitcnt lgkmcnt(0)\ns_mov_b32 s70, s84"); return
        for i in range(1, 14): self(f"s_mov_b32 s{70+i}, 0")
        self("s_waitcnt lgkmcnt(0)\ns_mov_b32 s70, s84\ns_mov_b32 s86, s84")
    def st(self, i):
        if not OPT['stamp'] or OPT['stamp'] == 3: return
        self(f"{'s_memrealtime' if OPT['stamp'] == 1 else 's_memtime'} s[84:85]\ns_waitcnt lgkmcnt(0)\ns_sub_u32 s87, s84, s86\ns_mov_b32 s86, s84\ns_add_u32 s{70+i}, s{70+i}, s87")
    def st_out(self, kid, srd, swave, vt):
        if not OPT['stamp']: return
        self(f"s_lshl_b32 s87, s2, 4\ns_add_u32 s87, s87, {swave}\ns_lshl_b32 s87, s87, 6\ns_add_u32 s87, s87, {WS_STAMP + kid*0x80000}\ns_mov_b64 exec, 1\nv_mov_b32 v{vt+1}, 0")
        if OPT['stamp'] == 3: self("s_memrealtime s[84:85]\ns_waitcnt lgkmcnt(0)\ns_mov_b32 s71, s84")
        for i in range(2 if OPT['stamp'] == 3 else 14): self(f"v_mov_b32 v{vt}, s{70+i}\nbuffer_store_dword v{vt}, v{vt+1}, s[{srd}:{srd+3}], s87 offen offset:{4*i}")
    def scan_incl(self, v):
        for s in (1, 2, 4, 8): self(f"v_add_u32_dpp v{v}, v{v}, v{v} row_shr:{s} {DPPF} bound_ctrl:0")
        self(f"v_add_u32_dpp v{v}, v{v}, v{v} row_bcast:15 row_mask:0xa bank_mask:0xf")
        self(f"v_add_u32_dpp v{v}, v{v}, v{v} row_bcast:31 row_mask:0xc bank_mask:0xf")
    def red63(self, op, v):
        for s in (1, 2, 4, 8): self(f"{op}_dpp v{v}, v{v}, v{v} row_shr:{s} {DPPF} bound_ctrl:0")
        self(f"{op}_dpp v{v}, v{v}, v{v} row_bcast:15 row_mask:0xa bank_mask:0xf")
        self(f"{op}_dpp v{v}, v{v}, v{v} row_bcast:31 row_mask:0xc bank_mask:0xf")

SWAPS = ((0, 85), (6, 91), (12, 95))
def levelpos(a, sw, d0, d1):
    t, u = d1+1, d1+2
    a(f"s_mul_i32 s{t}, s{sw}, 1338\ns_lshr_b32 s{t}, s{t}, 16\ns_mul_i32 s{t}, s{t}, 98\ns_lshl_b32 s{d0}, s{sw}, 1\ns_sub_u32 s{u}, s{d0}, s{t}")
    a(f"s_mov_b32 s{d0}, s{u}\ns_add_u32 s{d1}, s{u}, 1")
    for x, y in SWAPS:
        a(f"s_cmp_eq_u32 s{u}, {x}\ns_cselect_b32 s{d0}, {y}, s{d0}\ns_cmp_eq_u32 s{u}, {y-1}\ns_cselect_b32 s{d1}, {x}, s{d1}")
    a(f"s_add_u32 s{d0}, s{d0}, s{t}\ns_add_u32 s{d1}, s{d1}, s{t}")
def k1(a):
    name = 'p1_kernel'
    a.launch(name, NCH + NWIN, 512, 34816)
    a.begin(name)
    a(f"s_cmp_ge_u32 s2, {NCH+NWIN}\ns_cbranch_scc1 K1_end")
    a.st_init()
    a("s_load_dwordx4 s[4:7], s[0:1], 0\ns_load_dwordx4 s[8:11], s[0:1], 16\ns_load_dwordx2 s[14:15], s[0:1], 88")
    a("v_lshlrev_b32 v1, 2, v0\nv_mov_b32 v2, 0\nv_mov_b32 v24, 1\nv_lshrrev_b32 v3, 6, v0\nv_and_b32 v25, 63, v0\nv_readfirstlane_b32 s37, v3")
    a(f"s_cmp_ge_u32 s2, {NCH}\ns_cbranch_scc1 K1_win")
    a(f"v_lshlrev_b32 v3, 4, v0\ns_mul_i32 s38, s2, {CH*4}\ns_waitcnt lgkmcnt(0)")
    a.srd(16, 6, E*4); a.srd(20, 8, E*4); a.srd(28, 14, WS_SIZE)
    a("s_cmp_ge_u32 s37, 7\ns_cbranch_scc1 K1_nl\nv_cmp_gt_u32 vcc, 400, v0\ns_and_saveexec_b64 s[34:35], vcc")
    a("buffer_load_dwordx4 v[4:7], v3, s[16:19], s38 offen\nbuffer_load_dwordx4 v[8:11], v3, s[20:23], s38 offen\ns_mov_b64 exec, s[34:35]\nK1_nl:")
    a("s_cmp_ge_u32 s2, 64\ns_cbranch_scc1 K1_noz\ns_cmp_ge_u32 s37, 3\ns_cbranch_scc1 K1_noz")
    a(f"s_mul_i32 s3, s2, {FGS}\ns_add_u32 s3, s3, {WS_FLAGS}\nv_lshrrev_b32 v16, 3, v0\nv_min_u32 v16, 16, v16\nv_lshlrev_b32 v16, 7, v16\nv_and_b32 v17, 7, v0\nv_lshl_add_u32 v16, v17, 2, v16\nbuffer_store_dword v2, v16, s[28:31], s3 offen\nK1_noz:")
    a("v_mov_b32 v12, -1\nv_mov_b32 v13, -1\nv_mov_b32 v14, -1\nv_mov_b32 v15, -1\nv_mov_b32 v26, 12544\nv_mov_b32 v27, 25088")
    a("ds_write_b128 v3, v[12:15] offset:1024\nds_write_b128 v3, v[12:15] offset:9216\nds_write_b128 v3, v[12:15] offset:17408")
    a("s_cmp_ge_u32 s37, 4\ns_cbranch_scc1 K1_nc\nds_write_b32 v1, v2\ns_cmp_ge_u32 s37, 1\ns_cbranch_scc1 K1_nc\nds_write_b128 v3, v[12:15] offset:25600\nK1_nc:")
    a("s_waitcnt lgkmcnt(0)\ns_barrier")
    a("s_cmp_ge_u32 s37, 7\ns_cbranch_scc1 K1_ns\nv_cmp_gt_u32 vcc, 400, v0\ns_and_saveexec_b64 s[34:35], vcc\ns_waitcnt vmcnt(0)")
    a.st(1)
    for i in range(4):
        a(f"v_lshrrev_b32 v{12+i}, 7, v{8+i}\nv_and_b32 v16, 127, v{8+i}\nv_lshl_or_b32 v{4+i}, v16, 16, v{4+i}\nv_lshlrev_b32 v16, 2, v{12+i}\nds_add_rtn_u32 v{8+i}, v16, v24")
    for i in range(4):
        a(f"s_waitcnt lgkmcnt(3)" if i == 0 else "s_waitcnt lgkmcnt(3)")
        a(f"v_and_b32 v16, 15, v{8+i}\nv_lshlrev_b32 v16, 2, v16\nv_lshl_add_u32 v16, v{12+i}, 6, v16\nv_lshrrev_b32 v17, 4, v{8+i}\nv_mad_u32_u24 v16, v17, s39, v16".replace("s39", "v26"))
        a(f"v_cmp_gt_u32 vcc, 32, v{8+i}\nv_cndmask_b32 v16, v27, v16, vcc\nds_write_b32 v16, v{4+i} offset:1024")
    a("s_mov_b64 exec, s[34:35]\nK1_ns:\ns_waitcnt lgkmcnt(0)\ns_barrier")
    a("s_and_b32 s3, s2, 7\ns_lshl_b32 s3, s3, 5\ns_lshr_b32 s39, s2, 3\ns_add_u32 s3, s3, s39\ns_lshl_b32 s3, s3, 6")
    a(f"s_add_u32 s39, s3, {WS_PART}\ns_add_u32 s40, s3, {WS_PARTB}")
    a("v_lshrrev_b32 v16, 2, v0\nv_and_b32 v17, 3, v0\nv_lshlrev_b32 v17, 4, v17\nv_mov_b32 v18, " + str(PWS) + "\nv_mad_u32_u24 v17, v16, v18, v17\nv_and_b32 v18, 0xfffffffc, v0")
    a("ds_read_b128 v[4:7], v3 offset:1024\nds_read_b128 v[8:11], v3 offset:9216\nds_read_b32 v19, v18\nds_read_b32 v20, v18 offset:512")
    a(f"v_add_u32 v21, {128*PWS}, v17\nv_cmp_gt_u32 vcc, {784-512}, v0\ns_mov_b64 s[42:43], vcc")
    a("s_waitcnt lgkmcnt(3)\nbuffer_store_dwordx4 v[4:7], v17, s[28:31], s39 offen" + WT(2) + "\ns_waitcnt lgkmcnt(0)")
    a("v_cndmask_b32 v20, 0, v20, s[42:43]\nv_max_u32 v22, v19, v20\ns_mov_b64 exec, s[42:43]\ns_cbranch_execz K1_n2")
    a("buffer_store_dwordx4 v[8:11], v21, s[28:31], s39 offen" + WT(2) + "\nK1_n2:\ns_mov_b64 exec, -1")
    a("v_cmp_le_u32 vcc, 16, v22\ns_cbranch_vccz K1_nb")
    a(f"ds_read_b128 v[4:7], v3 offset:{1024+12544}\nds_read_b128 v[8:11], v3 offset:{1024+12544+8192}\ns_waitcnt lgkmcnt(0)")
    a("v_cmp_le_u32 vcc, 16, v19\ns_mov_b64 exec, vcc\ns_cbranch_execz K1_b1\nbuffer_store_dwordx4 v[4:7], v17, s[28:31], s40 offen\nK1_b1:\ns_mov_b64 exec, -1")
    a("v_cmp_le_u32 vcc, 16, v20\ns_mov_b64 exec, vcc\ns_cbranch_execz K1_b2\nbuffer_store_dwordx4 v[8:11], v21, s[28:31], s40 offen\nK1_b2:\ns_mov_b64 exec, -1")
    a("K1_nb:")
    a(f"v_cmp_lt_u32 vcc, 32, v22\ns_cmp_lg_u64 vcc, 0\ns_cselect_b32 s3, 1, 0\nv_mov_b32 v4, s3\ns_lshr_b32 s39, s39, 1\ns_and_b32 s39, s39, 0x1fe0\ns_lshl_b32 s3, s37, 2\ns_add_u32 s39, s39, s3\ns_add_u32 s39, s39, {WS_IRR}")
    a("s_mov_b64 exec, 1\nbuffer_store_dword v4, v2, s[28:31], s39 offen")
    a.st(2); a.st_out(0, 28, 's37', 10); a("s_endpgm")
    B = 32768
    a("K1_win:")
    a(f"s_sub_u32 s36, s2, {NCH}\ns_lshl_b32 s38, s36, 7\ns_waitcnt lgkmcnt(0)")
    a.srd(16, 4, N*256); a.srd(24, 10, N*2); a.srd(28, 14, WS_SIZE)
    a("v_lshlrev_b32 v3, 4, v25\ns_lshl_b32 s39, s36, 15\ns_lshl_b32 s40, s37, 12\ns_add_u32 s39, s39, s40")
    a("v_add_u32 v5, s38, v0\nv_lshlrev_b32 v6, 1, v5\ns_cmp_ge_u32 s37, 2\ns_cbranch_scc1 K1_w0\nbuffer_load_ushort v4, v6, s[24:27], 0 offen\nK1_w0:")
    for it in range(4): a(f"buffer_load_dwordx4 v[{32+4*it}:{35+4*it}], v3, s[16:19], s39 offen offset:{it*1024}")
    a(f"ds_write_b32 v1, v2 offset:{B}")
    levelpos(a, 36, 44, 45)
    for d, x in ((50, 44), (53, 45)):
        a(f"s_sub_u32 s48, s{x}, s46\ns_mul_i32 s49, s48, 43\ns_lshr_b32 s49, s49, 8\ns_mul_i32 s49, s49, 6\ns_cmp_ge_u32 s48, 84\ns_cselect_b32 s49, 84, s49\ns_cmp_ge_u32 s48, 91\ns_cselect_b32 s49, 91, s49")
        a(f"s_sub_u32 s48, s48, s49\ns_cmp_ge_u32 s48, 4\ns_cselect_b32 s{d+1}, 1, 2\ns_cselect_b32 s{d+2}, 4, 0\ns_cmp_eq_u32 s48, 6\ns_cselect_b32 s{d+1}, 0, s{d+1}\ns_cselect_b32 s{d+2}, 6, s{d+2}")
        a(f"s_sub_u32 s48, s48, s{d+2}\ns_sub_u32 s{d}, s{x}, s48\ns_lshl_b32 s{d}, s{d}, 6\ns_add_u32 s{d}, s{d}, s48")
    a("s_lshl_b32 s44, s44, 6\ns_lshl_b32 s45, s45, 6\ns_sub_u32 s45, s45, 64\ns_waitcnt lgkmcnt(0)\ns_barrier\ns_cmp_ge_u32 s37, 2\ns_cbranch_scc1 K1_w1\ns_waitcnt vmcnt(4)"); a.st(4)
    a("v_lshlrev_b32 v4, 16, v4\nv_mul_f32 v7, v4, v4\nv_rcp_f32 v7, v7\nv_rndne_f32 v7, v7\nv_cvt_u32_f32 v7, v7\nv_med3_u32 v7, v7, 1, 63")
    a(f"v_cmp_gt_u32 vcc, {N}, v5\nv_cndmask_b32 v7, 0, v7, vcc\nv_lshlrev_b32 v7, 2, v7\nds_add_rtn_u32 v8, v7, v24 offset:{B}\ns_waitcnt lgkmcnt(0)\nK1_w1:\ns_barrier")
    a("s_cmp_ge_u32 s37, 2\ns_cbranch_scc1 K1_w2")
    a(f"v_lshlrev_b32 v9, 2, v25\nds_read_b32 v20, v9 offset:{B}\ns_waitcnt lgkmcnt(0)\nv_mov_b32 v21, v20")
    a.scan_incl(21)
    a("v_sub_u32 v21, v21, v20\nds_bpermute_b32 v21, v7, v21\ns_waitcnt lgkmcnt(0)\nv_add_u32 v8, v8, v21")
    a(f"v_lshlrev_b32 v9, 2, v8\nds_write_b32 v1, v9 offset:{B+512}\nds_write_b32 v9, v4 offset:{B+1024}")
    a("v_mov_b32 v23, 1.0\nv_mov_b32 v10, s44\nv_mov_b32 v11, s45\nv_cmp_gt_u32 vcc, 64, v8\nv_cndmask_b32 v10, v11, v10, vcc\nv_add_u32 v10, v10, v8\nv_lshlrev_b32 v11, 2, v10")
    a(f"s_mov_b32 s3, {WS_NEWID}\nbuffer_store_short v10, v6, s[28:31], s3 offen\ns_mov_b32 s3, {WS_LOC}\nbuffer_store_short v8, v6, s[28:31], s3 offen")
    a("v_mov_b32 v14, s50\nv_mov_b32 v15, s53\nv_cndmask_b32 v14, v15, v14, vcc\nv_mov_b32 v15, s51\nv_mov_b32 v16, s54\nv_cndmask_b32 v15, v16, v15, vcc\nv_and_b32 v16, 63, v8\nv_lshlrev_b32 v16, v15, v16\nv_add_lshl_u32 v14, v14, v16, 2")
    a(f"s_mov_b32 s3, {WS_PERM}\nbuffer_store_dword v5, v14, s[28:31], s3 offen\nv_mul_f32 v12, v4, v4\nv_rcp_f32 v13, v4\nv_cmp_eq_f32 vcc, 0, v4\ns_mov_b32 s3, {WS_DISP}\nbuffer_store_dword v12, v11, s[28:31], s3 offen\nv_cndmask_b32 v13, v13, v23, vcc\ns_mov_b32 s3, {WS_SINV}\nbuffer_store_dword v13, v14, s[28:31], s3 offen")
    a("s_waitcnt lgkmcnt(0)\nK1_w2:\ns_barrier")
    a.st(1)
    a("v_lshrrev_b32 v9, 4, v25\nv_lshlrev_b32 v9, 2, v9\ns_lshl_b32 s3, s37, 6\nv_add_u32 v9, s3, v9\nv_and_b32 v12, 15, v25\nv_lshlrev_b32 v13, 4, v12\nv_lshlrev_b32 v12, 11, v12")
    for it in range(4): a(f"ds_read_b32 v{16+it}, v9 offset:{B+512+16*it}")
    a(f"v_and_b32 v14, 31, v25\nv_lshlrev_b32 v15, 4, v14\nds_read_b128 v[28:31], v15 offset:{B+1024}")
    for it in range(4):
        a(f"s_waitcnt lgkmcnt({4 if it == 0 else 4+3})" if False else "")
    a("s_waitcnt lgkmcnt(0)")
    for it in range(4):
        a(f"v_xor_b32 v{16+it}, v{16+it}, v13\nv_add_u32 v{16+it}, v{16+it}, v12")
    a("s_cmp_ge_u32 s37, 2\ns_cbranch_scc1 K1_w3\ns_waitcnt vmcnt(5)\ns_branch K1_w4\nK1_w3:\ns_waitcnt vmcnt(0)\nK1_w4:"); a.st(5)
    for it in range(4):
        for i in range(4): a(f"ds_write_b32 v{16+it}, v{32+4*it+i} offset:{i*512}")
    a("v_lshrrev_b32 v20, 5, v25\ns_lshl_b32 s3, s37, 5\nv_xor_b32 v21, s3, v15\nv_lshl_add_u32 v21, v20, 9, v21\ns_lshl_b32 s3, s37, 12\nv_add_u32 v21, s3, v21\nv_xor_b32 v22, 16, v21")
    a("v_mov_b32 v10, s44\nv_mov_b32 v11, s45\nv_cmp_gt_u32 vcc, 16, v14\nv_cndmask_b32 v10, v11, v10, vcc\nv_lshl_add_u32 v10, v14, 2, v10")
    a(f"s_mov_b32 s3, {GS}\nv_mul_lo_u32 v20, v20, s3\nv_lshl_add_u32 v10, v10, 2, v20")
    a(f"s_mul_i32 s42, s37, {8*GS}\ns_add_u32 s42, s42, {WS_G}")
    a("s_waitcnt lgkmcnt(0)\ns_barrier")
    a.st(2)
    for j in range(4): a(f"ds_read_b128 v[{32+4*j}:{35+4*j}], v{21 if j < 2 else 22} offset:{j*1024}")
    for j in range(4):
        a(f"s_waitcnt lgkmcnt({3-j})")
        for i in range(4):
            a(f"v_lshlrev_b32 v4, 16, v{32+4*j+i}\nv_and_b32 v5, 0xffff0000, v{32+4*j+i}\nv_mul_f32 v4, v{28+i}, v4\nv_mul_f32 v5, v{28+i}, v5\nv_cvt_pk_bf16_f32 v{48+4*(j&1)+i}, v4, v5")
        a(f"buffer_store_dwordx4 v[{48+4*(j&1)}:{51+4*(j&1)}], v10, s[28:31], s42 offen{WT(1)}")
        if j < 3: a(f"s_add_u32 s42, s42, {2*GS}")
    a.st(3); a.st_out(0, 28, 's37', 10)
    a("K1_end:\ns_endpgm")
    a.end(name, 56, 102 if OPT['stamp'] else 64)

L2_CNT = 0; L2_LU = 512; L2_BU = 1024; L2_LOC = 2048; L2_O = 2304; L2_L = 2304 + 16384; L2_NEW = L2_L + 16384; L2_SIZE = L2_NEW + 50176
def k2(a):
    name = 'p2_kernel'
    a.launch(name, NWIN + 2 + 8*OPT['tlb'], 1024, L2_SIZE)
    a.begin(name)
    a(f"s_cmp_ge_u32 s2, {NWIN+2+8*OPT['tlb']}\ns_cbranch_scc1 K2_xend")
    a.st_init()
    a("s_load_dwordx2 s[14:15], s[0:1], 88")
    a("v_lshrrev_b32 v1, 6, v0\nv_and_b32 v2, 63, v0\nv_readfirstlane_b32 s33, v1")
    a("s_waitcnt lgkmcnt(0)")
    a.srd(28, 14, WS_SIZE)
    if OPT['tlb']:
        a(f"s_cmp_lt_u32 s2, {NWIN+2}\ns_cbranch_scc1 K2_nt")
        a(f"v_lshlrev_b32 v3, 16, v0\ns_mov_b32 s34, {WS_TOK}\nbuffer_load_dword v4, v3, s[28:31], s34 offen\nv_lshlrev_b32 v3, 14, v0\ns_mov_b32 s34, {WS_G+KS}\nbuffer_load_dword v5, v3, s[28:31], s34 offen")
        a("s_load_dwordx2 s[4:5], s[0:1], 72\ns_waitcnt lgkmcnt(0)"); a.srd(8, 4, N*256)
        a("buffer_load_dword v6, v3, s[8:11], 0 offen\ns_waitcnt vmcnt(0)\ns_endpgm\nK2_nt:")
    a(f"s_cmp_ge_u32 s2, {NWIN}\ns_cbranch_scc1 K2_wts")
    k2_window(a)
    a("K2_wts:")
    k2_weights(a)
    a("K2_end:"); a.st(13); a.st_out(1, 28, 's33', 10); a("K2_xend:\ns_endpgm")
    a.end(name, 128, 102)

def k2_window(a):
    Ev, NS, ND = 20, 24, 28
    MK = lambda j: f"s[{40+2*j}:{41+2*j}]"
    a(f"v_lshlrev_b32 v3, 4, v0\ns_mul_i32 s34, s2, {PWS}\ns_add_u32 s65, s34, {WS_PART}\nbuffer_load_dwordx4 v[{Ev}:{Ev+3}], v3, s[28:31], s65 offen")
    a(f"v_lshlrev_b32 v4, 3, v0\ns_mov_b32 s35, {WS_IRR}\nbuffer_load_dwordx2 v[6:7], v4, s[28:31], s35 offen")
    a("v_lshlrev_b32 v5, 4, v2")
    a(f"s_lshl_b32 s34, s33, 10\ns_add_u32 s35, s34, {WS_NEWID}\ns_add_u32 s34, s34, {L2_NEW}")
    for i in range(4):
        if i == 3: a("s_cmp_lg_u32 s33, 0\ns_cbranch_scc1 K2_nd")
        a(f"s_mov_b32 m0, s34\nbuffer_load_dwordx4 v5, s[28:31], s35 offen lds")
        if i < 3: a("s_add_u32 s34, s34, 16384\ns_add_u32 s35, s35, 16384")
    a(f"s_lshl_b32 s35, s2, 8\ns_add_u32 s35, s35, {WS_LOC}\ns_mov_b32 m0, {L2_LOC}\nv_lshlrev_b32 v8, 2, v2\nbuffer_load_dword v8, s[28:31], s35 offen lds")
    a("K2_nd:")
    a("v_lshlrev_b32 v8, 2, v0\nv_mov_b32 v10, 0\ns_cmp_ge_u32 s33, 8\ns_cbranch_scc1 K2_nz\ns_cmp_ge_u32 s33, 2\ns_cselect_b32 s35, -1, 0\nv_mov_b32 v9, s35\nds_write_b32 v8, v9\nK2_nz:")
    a("v_bfe_u32 v9, v0, 2, 5\nv_lshrrev_b32 v11, 7, v0\nv_lshl_add_u32 v9, v9, 3, v11")
    a(f"v_cmp_gt_u32 vcc, {NCH}, v9\ns_mov_b64 s[38:39], vcc\nv_mov_b32 v12, 1\nv_mov_b32 v13, 0xfc\ns_mov_b32 s64, 0\ns_mov_b32 s66, {L2_L}\ns_mov_b32 s67, 0")
    levelpos(a, 2, 60, 61)
    a("s_waitcnt vmcnt(0) lgkmcnt(0)\ns_barrier"); a.st(1)
    a("v_or_b32 v6, v6, v7\nv_cmp_ne_u32 vcc, 0, v6\ns_and_b64 vcc, vcc, s[38:39]\ns_cbranch_vccz K2_reg\nv_mov_b32 v6, 0x100\nds_write_b32 v10, v6\nK2_reg:")
    a("K2_loop:\ns_mov_b64 exec, s[38:39]")
    for j in range(4): a(f"v_cmp_ne_u32 {MK(j)}, -1, v{Ev+j}")
    for j in range(4):
        a(f"s_mov_b64 exec, {MK(j)}")
        a(f"v_lshlrev_b32_sdwa v15, 1, v{Ev+j} {SD} src1_sel:WORD_0\nv_lshrrev_b32 v16, 15, v{Ev+j}")
        a(f"ds_read_u16 v{ND+j}, v16 offset:{L2_LOC}\nds_read_u16 v{NS+j}, v15 offset:{L2_NEW}")
    a("s_waitcnt lgkmcnt(0)")
    for j in range(4):
        a(f"s_mov_b64 exec, {MK(j)}\nv_lshlrev_b32 v{ND+j}, 2, v{ND+j}\nds_add_rtn_u32 v{32+j}, v{ND+j}, v12 offset:{L2_CNT}")
        a(f"v_and_or_b32 v{36+j}, v{ND+j}, v13, s66\nv_lshrrev_b32 v16, 8, v{ND+j}\nv_lshl_add_u32 v{36+j}, v16, 13, v{36+j}")
    a("s_waitcnt lgkmcnt(0)")
    for j in range(4):
        a(f"s_mov_b64 exec, {MK(j)}")
        a(f"v_lshrrev_b32 v16, 1, v{32+j}\nv_lshl_add_u32 v15, v16, 8, v{36+j}\nv_and_b32 v16, 1, v{32+j}\nv_lshl_add_u32 v15, v16, 1, v15")
        a(f"v_cmp_gt_u32 vcc, 64, v{32+j}\ns_and_b64 exec, exec, vcc\nds_write_b16 v15, v{NS+j}")
    a(f"s_mov_b64 exec, -1\ns_cmp_lg_u32 s64, 0\ns_cbranch_scc1 K2_pa\nv_cndmask_b32 v15, 0, v12, {MK(3)}\ns_mov_b32 s64, 1")
    a(f"v_mov_b32_dpp v15, v15 quad_perm:[3,3,3,3] {DPPF}\nv_cmp_ne_u32 s[38:39], 0, v15\ns_cmp_eq_u64 s[38:39], 0\ns_cbranch_scc1 K2_pa")
    a(f"s_mov_b64 exec, s[38:39]\ns_add_u32 s65, s65, {WS_PARTB-WS_PART}\nbuffer_load_dwordx4 v[{Ev}:{Ev+3}], v3, s[28:31], s65 offen\ns_waitcnt vmcnt(0)\ns_branch K2_loop")
    a("K2_pa:\ns_waitcnt lgkmcnt(0)\ns_barrier"); a.st(2)
    a("s_lshr_b32 s34, s33, 3\ns_and_b32 s36, s33, 7\ns_lshl_b32 s35, s34, 8\nv_lshl_add_u32 v4, v2, 2, s35\nds_read_b32 v5, v4")
    a(f"s_lshl_b32 s37, s34, 13\ns_add_u32 s37, s37, {L2_L}\ns_lshr_b32 s46, s36, 1\ns_lshl_b32 s46, s46, 8\ns_and_b32 s47, s36, 1\ns_lshl_b32 s47, s47, 1\ns_add_u32 s46, s46, s47\ns_add_u32 s46, s46, s37\nv_lshl_add_u32 v16, v2, 2, s46")
    for t in range(4): a(f"ds_read_u16 v{20+t}, v16 offset:{t*1024}")
    a("s_waitcnt lgkmcnt(4)\nv_mov_b32 v6, v5\nv_mov_b32 v7, v5")
    for sft in (1, 2, 4, 8): a(f"v_max_u32_dpp v6, v6, v6 row_shr:{sft} {DPPF} bound_ctrl:0\nv_add_u32_dpp v7, v7, v7 row_shr:{sft} {DPPF} bound_ctrl:0")
    for bc, m in ((15, '0xa'), (31, '0xc')): a(f"v_max_u32_dpp v6, v6, v6 row_bcast:{bc} row_mask:{m} bank_mask:0xf\nv_add_u32_dpp v7, v7, v7 row_bcast:{bc} row_mask:{m} bank_mask:0xf")
    a("v_readlane_b32 s40, v6, 63\nv_readlane_b32 s41, v7, 63")
    a(f"s_mul_i32 s41, s41, {OPT['tal']}\ns_lshr_b32 s41, s41, 10\ns_add_u32 s41, s41, {OPT['tbe']}\ns_max_u32 s41, s41, s40\ns_add_u32 s41, s41, 3\ns_lshr_b32 s41, s41, 2\ns_min_u32 s41, s41, 16\ns_max_u32 s41, s41, 1")
    a("s_lshl_b32 s42, s41, 2\ns_min_u32 s42, s42, 32\ns_lshl_b64 s[44:45], -1, s42\ns_not_b32 s44, s44")
    a("s_cmp_eq_u32 s34, 0\ns_cselect_b32 s60, s60, s61")
    a("s_cmp_lg_u32 s36, 0\ns_cbranch_scc1 K2_ntq")
    a(f"s_cmp_gt_u32 s40, 64\ns_cselect_b32 s43, 0x10000, 0\ns_or_b32 s43, s43, s41\nv_mov_b32 v6, s43\ns_lshl_b32 s43, s60, 2\ns_add_u32 s43, s43, {WS_TQ}\ns_mov_b64 exec, 1")
    a("buffer_store_dword v6, v10, s[28:31], s43 offen\ns_mov_b64 exec, -1\nK2_ntq:")
    a("v_min_u32 v15, 32, v5\nv_subrev_u32 v15, s36, v15\nv_add_u32 v15, 7, v15\nv_lshrrev_b32 v15, 3, v15")
    a("s_lshl_b32 s46, s36, 2\nv_add_u32 v17, s46, v2\nv_and_b32 v17, 31, v17\nv_mul_u32_u24 v17, s42, v17\nv_lshrrev_b32 v17, 5, v17\nv_mov_b32 v18, -1\nv_lshlrev_b32 v17, v17, v18")
    a(f"s_lshl_b32 s46, s34, 9\ns_add_u32 s46, s46, {L2_BU}\nv_lshrrev_b32 v8, 5, v2\nv_lshlrev_b32 v8, 8, v8\nv_add_u32 v8, s46, v8")
    a(f"s_lshl_b32 s47, s34, 13\ns_add_u32 s47, s47, {L2_O}\nv_lshl_add_u32 v19, v2, 2, s47")
    a("v_mov_b32 v24, s44\nv_mov_b32 v26, -1\nv_mov_b32 v27, -1\nv_bfrev_b32 v40, 1\nv_mov_b32 v41, 0x7c\nv_mov_b32 v42, s44\ns_waitcnt lgkmcnt(0)")
    a("v_lshl_or_b32 v20, v21, 16, v20\nv_lshl_or_b32 v21, v23, 16, v22\nv_cmp_lt_u32 vcc, 0, v15")
    a("K2_rd:\ns_mov_b64 exec, vcc\ns_cbranch_execz K2_sd")
    a("v_and_b32 v28, v24, v26\nv_lshlrev_b32 v25, 2, v20\nv_and_b32 v31, v28, v17\nv_cmp_ne_u32 s[48:49], 0, v31\nv_cmp_ne_u32 s[52:53], 0, v28\nv_and_or_b32 v25, v25, v41, v8")
    a("v_cndmask_b32 v31, v28, v31, s[48:49]\nv_sub_u32 v32, 0, v31\nv_and_b32 v34, v31, v32\ns_mov_b64 s[50:51], 0\ns_andn2_b64 s[54:55], exec, s[52:53]\ns_cbranch_scc0 K2_l1")
    a("s_mov_b64 exec, s[54:55]\nv_and_b32 v29, v24, v27\nv_cmp_eq_u32 s[50:51], 0, v29\nv_add_u32 v25, 128, v25\nv_cndmask_b32 v29, v29, v24, s[50:51]\nv_ffbh_u32 v29, v29\nv_lshrrev_b32 v34, v29, v40\ns_mov_b64 exec, vcc\nK2_l1:")
    a(f"v_not_b32 v33, v34\nds_and_rtn_b32 v35, v4, v33 offset:{L2_LU}\nds_and_rtn_b32 v36, v25, v33\nv_ffbl_b32 v37, v34\nv_lshl_add_u32 v37, v37, 8, v19")
    a("s_waitcnt lgkmcnt(0)\nv_and_b32 v24, s44, v35\nv_and_b32 v35, v35, v34\nv_and_b32 v38, v36, v34\nv_cndmask_b32 v39, v38, v34, s[50:51]\nv_and_b32 v39, v39, v35\nv_cmp_ne_u32 s[48:49], 0, v39")
    a(f"s_andn2_b64 exec, exec, s[48:49]\nds_or_b32 v4, v35 offset:{L2_LU}\nds_or_b32 v25, v38\nv_cndmask_b32 v26, v26, v36, s[52:53]\nv_cndmask_b32 v27, v36, v27, s[52:53]")
    a("s_mov_b64 exec, s[48:49]\nds_write_b16 v37, v20\nv_and_b32 v24, v24, v33\nv_alignbit_b32 v20, v21, v20, 16\nv_lshrrev_b32 v21, 16, v21\nv_mov_b32 v26, -1\nv_mov_b32 v27, -1\nv_subrev_u32 v15, 1, v15")
    a("s_mov_b64 exec, vcc\nv_cmp_eq_u32 s[48:49], 0, v24\nv_cmp_lt_u32 vcc, 0, v15\ns_add_u32 s67, s67, 1\nv_cndmask_b32 v24, v24, v42, s[48:49]\ns_cmp_lt_u32 s67, 4096\ns_cbranch_scc1 K2_rd")
    a(f"v_mov_b32 v6, 0x10001\ns_lshl_b32 s43, s60, 2\ns_add_u32 s43, s43, {WS_TQ}\ns_mov_b64 exec, 1\nbuffer_store_dword v6, v10, s[28:31], s43 offen")
    a("K2_sd:\ns_mov_b64 exec, -1")
    if OPT['stamp'] in (1, 2): a("s_mov_b32 s82, s67")
    a("s_waitcnt lgkmcnt(0)\ns_barrier"); a.st(3)
    a("s_cmp_ge_u32 s36, s41\ns_cbranch_scc1 K2_end")
    a(f"s_lshl_b32 s46, s36, 10\nv_add_u32 v11, s46, v19\nv_and_b32 v18, 31, v2\nv_lshl_add_u32 v18, v18, 2, v8")
    a(f"ds_read_b32 v16, v4 offset:{L2_LU}\nds_read_b32 v18, v18\nds_read2st64_b32 v[20:21], v11 offset0:0 offset1:1\nds_read2st64_b32 v[22:23], v11 offset0:2 offset1:3")
    a(f"s_lshl_b32 s47, s36, 9\ns_add_u32 s37, s37, s47\nv_lshl_add_u32 v12, v2, 2, s37\nds_read2st64_b32 v[24:25], v12 offset0:16 offset1:17")
    a(f"v_mov_b32 v13, 0xffff\nv_lshlrev_b32 v15, 3, v2\ns_lshl_b32 s39, s60, 13\ns_add_u32 s39, s39, s47\ns_add_u32 s39, s39, {WS_IDX}\ns_lshl_b32 s38, s36, 2\ns_mov_b32 s50, -1\ns_mov_b32 s51, 0\ns_waitcnt lgkmcnt(3)")
    a("v_lshrrev_b32 v16, s38, v16\nv_lshrrev_b32 v18, s38, v18")
    for t in range(4):
        a(f"v_and_b32 v26, {1 << t}, v18\nv_cmp_ne_u32 s[{52+2*t}:{53+2*t}], 0, v26")
    for r in range(52, 60): a(f"s_ff1_i32_b32 s{r}, s{r}\ns_and_b32 s{r}, s{r}, 31\ns_add_u32 s{r}, s{r}, {ZB}")
    a("s_waitcnt lgkmcnt(0)")
    for t in range(4):
        a(f"v_mov_b32 v26, s{52+2*t}\nv_mov_b32 v27, s{53+2*t}\nv_cndmask_b32 v26, v27, v26, s[50:51]\nv_and_b32 v27, {1 << t}, v16\nv_cmp_ne_u32 vcc, 0, v27\nv_cndmask_b32 v{20+t}, v{20+t}, v26, vcc")
    a("v_and_b32 v20, v13, v20\nv_and_b32 v22, v13, v22\nv_lshl_or_b32 v20, v21, 17, v20\nv_lshl_or_b32 v21, v23, 17, v22\nbuffer_store_dwordx2 v[20:21], v15, s[28:31], s39 offen" + WT(4))
    a("s_add_u32 s36, s36, 8\ns_cmp_ge_u32 s36, s41\ns_cbranch_scc1 K2_end")
    a(f"v_mov_b32 v43, -1\ns_add_u32 s38, s38, 32\nv_subrev_u32 v5, s38, v5\nv_mov_b32 v14, {ZB | (ZB << 16)}")
    for h in range(2):
        a(f"v_cmp_lt_i32 vcc, {2*h}, v5\nv_cndmask_b32 v26, 0, v13, vcc\nv_cmp_lt_i32 vcc, {2*h+1}, v5\nv_cndmask_b32 v26, v26, v40, vcc".replace("v40", "v43"))
        a(f"v_bfi_b32 v{24+h}, v26, v{24+h}, v14\nv_and_b32 v26, 0xffff0000, v{24+h}\nv_add_u32 v{24+h}, v{24+h}, v26")
    a("s_add_u32 s39, s39, 4096\nbuffer_store_dwordx2 v[24:25], v15, s[28:31], s39 offen\ns_branch K2_end")

import math, struct
def f2u(x): return struct.unpack('<I', struct.pack('<f', x))[0]
SCL = f2u(math.log2(math.e)/math.sqrt(128.0))
WFR_E = 65536; WFR_SW = 73728
FO = lambda i: 16*(i & 1) + 4*(i >> 1)
def k2_weights(a):
    S0 = 66048
    a(f"s_sub_u32 s34, s2, {NWIN}")
    a("s_load_dwordx8 s[40:47], s[0:1], 32\ns_load_dwordx2 s[48:49], s[0:1], 64")
    a("s_lshr_b32 s35, s33, 2\ns_and_b32 s36, s33, 3\nv_and_b32 v3, 31, v2\nv_lshrrev_b32 v4, 5, v2")
    a("v_lshlrev_b32 v5, 2, v0\nv_mov_b32 v6, 0\nv_cmp_gt_u32 vcc, 512, v0\ns_and_saveexec_b64 s[50:51], vcc")
    a(f"v_add_u32 v5, {S0}, v5\nds_write_b32 v5, v6\ns_mov_b64 exec, s[50:51]")
    a("s_waitcnt lgkmcnt(0)\ns_cmp_eq_u32 s34, 0\ns_cselect_b32 s52, s40, s44\ns_cselect_b32 s53, s41, s45\ns_cselect_b32 s54, s42, s46\ns_cselect_b32 s55, s43, s47")
    a.srd(20, 52, 32768); a.srd(24, 54, 32768); a.srd(56, 48, 256)
    a("v_lshrrev_b32 v5, 4, v2\nv_and_b32 v6, 15, v2\ns_and_b32 s37, s33, 1\ns_lshl_b32 s37, s37, 3\nv_add_u32 v7, s37, v5\nv_xor_b32 v6, v6, v7")
    a("v_lshlrev_b32 v6, 4, v6\nv_lshl_add_u32 v6, v5, 8, v6\nv_xor_b32 v7, 64, v6\nv_lshlrev_b32 v8, 4, v2")
    a("s_lshl_b32 s39, s33, 11\ns_mov_b32 m0, s39\ns_cmp_eq_u32 s34, 0\ns_cselect_b64 s[60:61], -1, 0")
    a("buffer_load_dwordx4 v6, s[20:23], s39 offen lds\nbuffer_load_dwordx4 v7, s[20:23], s39 offen offset:1024 lds")
    a("v_cndmask_b32 v6, v8, v6, s[60:61]\nv_cndmask_b32 v7, v8, v7, s[60:61]\ns_add_u32 s62, s39, 32768\ns_mov_b32 m0, s62")
    a("buffer_load_dwordx4 v6, s[24:27], s39 offen lds\nbuffer_load_dwordx4 v7, s[24:27], s39 offen offset:1024 lds")
    a("v_lshlrev_b32 v7, 1, v0\nbuffer_load_ushort v8, v7, s[56:59], 0 offen")
    a("s_barrier")
    a("s_cmp_ge_u32 s33, 2\ns_cbranch_scc1 K2w_nw")
    a(f"v_lshlrev_b32 v7, 2, v0\nv_add_u32 v7, {S0}, v7\ns_waitcnt vmcnt(0)\nv_lshlrev_b32 v8, 16, v8\nds_write_b32 v7, v8\nK2w_nw:")
    a("v_and_b32 v5, 15, v3\nv_xor_b32 v5, v5, v4\nv_lshlrev_b32 v5, 4, v5\nv_lshl_add_u32 v5, v3, 8, v5\ns_lshl_b32 s37, s35, 13\ns_lshl_b32 s38, s36, 13\ns_add_u32 s38, s38, 32768")
    a("v_add_u32 v6, s37, v5\nv_add_u32 v7, s38, v5\ns_waitcnt vmcnt(0) lgkmcnt(0)\ns_barrier")
    for u in range(8): a(f"v_xor_b32 v8, {32*u}, v6\nds_read_b128 v[{16+4*u}:{19+4*u}], v8")
    a("s_cmp_eq_u32 s34, 0\ns_cbranch_scc0 K2w_b")
    for u in range(8): a(f"v_xor_b32 v8, {32*u}, v7\nds_read_b128 v[{48+4*u}:{51+4*u}], v8")
    a("s_branch K2w_mm\nK2w_b:")
    a(f"v_lshlrev_b32 v6, 11, v4\nv_lshl_add_u32 v6, v3, 1, v6\ns_lshl_b32 s39, s36, 6\ns_add_u32 s39, s39, 32768\nv_add_u32 v6, s39, v6")
    for u in range(8):
        for t in range(8):
            a(f"ds_read_u16 v{(96 if t&1 else 48)+4*u+t//2}, v6 offset:{(16*u+t)*256}")
    a("s_waitcnt lgkmcnt(0)")
    for i in range(32): a(f"v_lshl_or_b32 v{48+i}, v{96+i}, 16, v{48+i}")
    a("K2w_mm:\ns_waitcnt lgkmcnt(0)\ns_barrier"); a.st(1)
    for u in range(8): a(f"v_mfma_f32_32x32x16_bf16 v[80:95], v[{16+4*u}:{19+4*u}], v[{48+4*u}:{51+4*u}], {'0' if u == 0 else 'v[80:95]'}")
    a(f"s_mul_i32 s39, s35, {32*516}\ns_lshl_b32 s60, s36, 7\ns_add_u32 s39, s39, s60\nv_mul_u32_u24 v6, {4*516}, v4\nv_lshl_add_u32 v6, v3, 2, v6\nv_add_u32 v6, s39, v6")
    a(f"s_add_u32 s60, s60, {S0}\nv_lshl_add_u32 v7, v3, 2, s60\nds_read_b32 v8, v7")
    a.st(4)
    if OPT['stamp'] in (1, 2): a("v_mov_b32 v12, v95")
    a.st(5)
    for r in range(16): a(f"ds_write_b32 v6, v{80+r} offset:{(8*(r>>2)+(r&3))*516}")
    a.st(2)
    a("v_add_f32 v9, v80, v81")
    for r in range(2, 16): a(f"v_add_f32 v9, v9, v{80+r}")
    a("ds_add_f32 v7, v9 offset:1536\ns_waitcnt lgkmcnt(1)")
    a.st(6)
    for r in range(16): a(f"v_mul_f32 v{48+r}, v8, v{80+r}")
    for q in (80, 48):
        for i in range(8): a(f"v_add_f32_dpp v{q+i}, v{q+i}, v{q+i} row_ror:8 row_mask:0xf bank_mask:0x3")
        for i in range(8): a(f"v_add_f32_dpp v{q+i}, v{q+8+i}, v{q+8+i} row_ror:8 row_mask:0xf bank_mask:0xc")
        for i in range(4): a(f"v_add_f32_dpp v{q+i}, v{q+i}, v{q+i} row_half_mirror row_mask:0xf bank_mask:0x5")
        for i in range(4): a(f"v_add_f32_dpp v{q+i}, v{q+4+i}, v{q+4+i} row_half_mirror row_mask:0xf bank_mask:0xa")
        for i in range(4): a(f"v_add_f32_dpp v{q+i}, v{q+i}, v{q+i} quad_perm:[1,0,3,2] {DPPF}")
        for i in range(4): a(f"v_add_f32_dpp v{q+i}, v{q+i}, v{q+i} quad_perm:[2,3,0,1] {DPPF}")
        a(f"v_permlane16_swap_b32 v{q}, v{q+1}\nv_permlane16_swap_b32 v{q+2}, v{q+3}\nv_add_f32 v{q}, v{q}, v{q+1}\nv_add_f32 v{q+2}, v{q+2}, v{q+3}")
    a.st(7)
    a(f"v_bfe_u32 v10, v2, 2, 2\nv_lshlrev_b32 v10, 5, v10\nv_bfe_u32 v11, v2, 4, 1\nv_lshl_add_u32 v10, v11, 2, v10\nv_lshl_add_u32 v10, v4, 4, v10\ns_lshl_b32 s60, s35, 7\ns_add_u32 s60, s60, {S0}\nv_add_u32 v10, s60, v10")
    a("s_mov_b32 exec_lo, 0x11111111\ns_mov_b32 exec_hi, 0x11111111\nds_add_f32 v10, v80 offset:512\nds_add_f32 v10, v82 offset:520\nds_add_f32 v10, v48 offset:1024\nds_add_f32 v10, v50 offset:1032\ns_mov_b64 exec, -1")
    a("s_waitcnt lgkmcnt(0)"); a.st(8); a("s_barrier"); a.st(3)
    a(f"v_lshlrev_b32 v5, 3, v2\nv_add_u32 v5, {S0}, v5\nds_read_b64 v[8:9], v5\nds_read_b64 v[10:11], v5 offset:512\nds_read_b64 v[12:13], v5 offset:1024\ns_waitcnt lgkmcnt(0)")
    a("v_add_f32 v8, v8, v9\nv_add_f32 v10, v10, v11\nv_add_f32 v12, v12, v13")
    for v in (8, 10, 12): a.red63('v_add_f32', v)
    a("v_readlane_b32 s60, v8, 63\nv_readlane_b32 s61, v10, 63\nv_readlane_b32 s62, v12, 63")
    a(f"s_mov_b32 s63, {f2u(1/128.)}\ns_mov_b32 s64, {f2u(-1/128.)}\ns_mov_b32 s65, {SCL}\nv_lshlrev_b32 v15, 4, v2")
    a(f"s_lshl_b32 s66, s33, 11\ns_lshl_b32 s67, s34, 15\ns_add_u32 s66, s66, s67\ns_add_u32 s66, s66, {WS_WFR}")
    a("s_lshr_b32 s35, s33, 2\ns_and_b32 s36, s33, 3\ns_lshl_b32 s36, s36, 1")
    a("s_cmp_eq_u32 s34, 0\ns_cbranch_scc0 K2w_fb")
    a("v_and_b32 v5, 1, v3\nv_lshrrev_b32 v6, 2, v3\nv_lshl_or_b32 v5, v6, 1, v5\nv_bfe_u32 v6, v3, 1, 1\nv_lshl_or_b32 v5, v6, 4, v5")
    a("s_lshl_b32 s37, s35, 5\nv_add_u32 v5, s37, v5")
    a(f"v_lshlrev_b32 v7, 2, v5\nv_add_u32 v7, {S0}, v7\nds_read_b32 v14, v7 offset:512")
    a(f"s_lshl_b32 s37, s36, 6\nv_lshl_add_u32 v6, v4, 3, s37\nv_mul_u32_u24 v5, 516, v5\nv_add_u32 v5, v5, v6\nv_add_u32 v6, {S0+1536}, v6")
    for h in range(2):
        for i in range(4):
            a(f"ds_read2_b32 v[{16+16*h+2*i}:{17+16*h+2*i}], v5 offset0:{8*h+FO(i)} offset1:{8*h+FO(i)+1}")
            a(f"ds_read2_b32 v[{24+16*h+2*i}:{25+16*h+2*i}], v6 offset0:{8*h+FO(i)} offset1:{8*h+FO(i)+1}")
    a("v_mov_b32 v8, s61\nv_mul_f32 v8, s63, v8\ns_waitcnt lgkmcnt(0)\nv_sub_f32 v14, v8, v14\nv_mul_f32 v14, s63, v14")
    for h in range(2):
        for j in range(8):
            x = 16+16*h+j
            a(f"v_add_f32 v{x}, v{x}, v14\nv_fmac_f32 v{x}, s64, v{x+8}\nv_mul_f32 v{x}, s65, v{x}")
        for i in range(4): a(f"v_cvt_pk_bf16_f32 v{48+4*h+i}, v{16+16*h+2*i}, v{17+16*h+2*i}")
        a(f"buffer_store_dwordx4 v[{48+4*h}:{51+4*h}], v15, s[28:31], s66 offen offset:{1024*h}")
    a("s_branch K2_end\nK2w_fb:")
    a("s_lshr_b32 s37, s35, 1\ns_lshl_b32 s37, s37, 8\ns_and_b32 s38, s35, 1\ns_lshl_b32 s38, s38, 2\ns_add_u32 s37, s37, s38\nv_lshl_add_u32 v5, v3, 3, s37")
    a(f"v_add_u32 v7, {S0+1536}, v5\nds_read_b32 v14, v7")
    a(f"s_mul_i32 s37, s36, {16*516}\nv_mul_u32_u24 v6, {2*516}, v4\nv_add3_u32 v5, v5, v6, s37")
    for h in range(2):
        for i in range(4):
            for c in range(2): a(f"ds_read_b32 v{16+8*h+2*i+c}, v5 offset:{(8*h+FO(i)+c)*516}")
    a("s_waitcnt lgkmcnt(0)")
    for h in range(2):
        for j in range(8): a(f"v_fmac_f32 v{16+8*h+j}, s64, v14")
        for i in range(4): a(f"v_cvt_pk_bf16_f32 v{48+4*h+i}, v{16+8*h+2*i}, v{17+8*h+2*i}")
        a(f"buffer_store_dwordx4 v[{48+4*h}:{51+4*h}], v15, s[28:31], s66 offen offset:{1024*h}")
    a("s_cmp_ge_u32 s33, 8\ns_cbranch_scc1 K2_end")
    a("v_and_b32 v5, 3, v2\nv_lshrrev_b32 v6, 5, v2\nv_max_u32 v7, 1, v5\nv_lshlrev_b32 v7, 9, v7\nv_lshl_add_u32 v7, v6, 3, v7")
    a(f"s_lshr_b32 s37, s33, 1\ns_lshl_b32 s37, s37, 7\ns_and_b32 s38, s33, 1\ns_lshl_b32 s38, s38, 5\ns_add_u32 s37, s37, s38\ns_add_u32 s37, s37, {S0-512}\nv_add_u32 v7, s37, v7")
    for i in range(4): a(f"ds_read2_b32 v[{16+2*i}:{17+2*i}], v7 offset0:{FO(i)} offset1:{FO(i)+1}")
    a("v_mov_b32 v8, s61\nv_mov_b32 v9, s62\nv_cmp_eq_u32 s[40:41], 2, v5\nv_cmp_eq_u32 s[42:43], 3, v5\nv_cmp_eq_u32 s[44:45], 0, v5")
    a("v_cndmask_b32 v8, 0, v8, s[40:41]\nv_cndmask_b32 v8, v8, v9, s[42:43]")
    a("v_lshrrev_b32 v10, 2, v2\nv_lshrrev_b32 v11, 4, v2\nv_xor_b32 v10, v10, v11\nv_and_b32 v10, 1, v10\nv_cmp_eq_u32 s[46:47], 0, v10\ns_waitcnt lgkmcnt(0)")
    for j in range(8): a(f"v_fmac_f32 v{16+j}, s64, v8\nv_cndmask_b32 v{16+j}, v{16+j}, 1.0, s[44:45]\nv_cndmask_b32 v{16+j}, 0, v{16+j}, s[46:47]")
    for i in range(4): a(f"v_cvt_pk_bf16_f32 v{48+i}, v{16+2*i}, v{17+2*i}")
    a(f"s_lshl_b32 s37, s33, 10\ns_add_u32 s37, s37, {WS_WFR+WFR_E}\nbuffer_store_dwordx4 v[48:51], v15, s[28:31], s37 offen")
    a(f"v_mov_b32 v8, s60\ns_mov_b32 s37, {WS_WFR+WFR_SW}\ns_mov_b64 exec, 1\nbuffer_store_dword v8, v15, s[28:31], s37 offen")


NQ = 44; DEP = 2; NBUF = 3
QB = QN*4
L3_SIZE = GS + 64
ACC, AOP, ADR, BUF, TMP, GK, DIS, IDX = 2, 6, 8, 12, 24, 26, 33, 40
SPIN = 1 << 20
TSC = lambda: ('', ' nt', ' sc1', ' sc0 sc1', ' sc0', ' sc1 nt')[OPT['tsc']]
XP = 5
def k3(a):
    name = 'hop_kernel'
    a.launch(name, 256, 1024, L3_SIZE)
    a.begin(name)
    a("s_cmp_ge_u32 s2, 256\ns_cbranch_scc1 K3_end")
    a.st_init()
    a("s_load_dwordx2 s[4:5], s[0:1], 88")
    a("v_lshrrev_b32 v4, 6, v0\nv_and_b32 v5, 63, v0\nv_readfirstlane_b32 s19, v4")
    a("s_lshr_b32 s16, s2, 3\ns_and_b32 s16, s16, 3\ns_and_b32 s17, s2, 7\ns_lshl_b32 s17, s17, 3\ns_lshr_b32 s18, s2, 5\ns_or_b32 s18, s18, s17")
    a("s_mul_i32 s20, s19, 6\ns_cmp_eq_u32 s19, 15\ns_cselect_b32 s20, 91, s20\ns_cmp_ge_u32 s19, 14\ns_cselect_b32 s21, 7, 6")
    a("s_mul_i32 s48, s16, 98\ns_add_u32 s48, s48, s20")
    a("v_lshlrev_b32 v0, 2, v5\nv_lshlrev_b32 v8, 4, v5\nv_lshlrev_b32 v9, 3, v5")
    a("s_waitcnt lgkmcnt(0)")
    a.srd(8, 4, WS_SIZE)
    a(f"s_lshl_b32 s49, s48, 2\ns_add_u32 s49, s49, {WS_TQ}\ns_buffer_load_dwordx8 s[40:47], s[8:11], s49")
    a("s_getreg_b32 s50, hwreg(HW_REG_XCC_ID)\ns_and_b32 s50, s50, 0xff\ns_add_u32 s50, s50, 1")
    a(f"s_mul_i32 s51, s18, {FGS}\ns_add_u32 s51, s51, {WS_FLAGS}\ns_cmp_lg_u32 s19, 0\ns_cbranch_scc1 K3_nox")
    a(f"s_lshl_b32 s52, s16, 2\ns_add_u32 s52, s52, s51\nv_mov_b32 v4, s50\nv_mov_b32 v6, 0\nv_mov_b32 v7, {GS}\ns_mov_b64 exec, 1")
    a("buffer_store_dword v4, v0, s[8:11], s52 offen offset:2048 sc1\nds_write_b32 v7, v6\ns_mov_b64 exec, -1\nK3_nox:")
    a(f"s_mul_i32 s39, s18, {GS}\ns_add_u32 s39, s39, {WS_G}")
    a("s_lshl_b32 s52, s19, 10\ns_add_u32 s53, s52, s39")
    for i in range(7):
        if i == 6: a("s_cmp_ge_u32 s19, 2\ns_cbranch_scc1 K3_nt")
        a("s_mov_b32 m0, s52\nbuffer_load_dwordx4 v8, s[8:11], s53 offen lds")
        if i < 6: a("s_add_u32 s52, s52, 16384\ns_add_u32 s53, s53, 16384")
    a("K3_nt:")
    a(f"s_lshl_b32 s52, s48, 8\ns_add_u32 s52, s52, {WS_DISP}")
    for i in range(7): a(f"buffer_load_dword v{DIS+i}, v0, s[8:11], s52 offen offset:{i*256}")
    a("s_waitcnt lgkmcnt(0)")
    a("s_cmp_eq_u32 s21, 7\ns_cselect_b32 s46, s46, 0")
    for i in range(1, 7): a(f"s_add_u32 s{40+i}, s{40+i}, s{39+i}")
    a(f"s_min_u32 s47, s46, {NQ}")
    a(f"s_sub_u32 s28, s47, {DEP+1}\ns_mov_b64 s[32:33], 0")
    for i in range(7): a(f"s_sub_u32 s{40+i}, s{40+i}, 1\ns_bitset1_b64 s[32:33], s{40+i}")
    a("s_add_u32 s52, s28, 1\ns_lshr_b64 s[34:35], s[32:33], s52\ns_mov_b64 s[24:25], s[32:33]\ns_bitset1_b64 s[24:25], s28")
    a(f"s_lshl_b32 s52, s48, 13\ns_add_u32 s52, s52, {WS_IDX}\ns_add_u32 s53, s52, 8192")
    for p in range(NQ):
        if OPT['exp'] & 8192:
            if p % 2 == 0: a(f"buffer_load_dwordx4 v[{IDX+2*p}:{IDX+2*p+3}], v8, s[8:11], s52 offen")
            else: a(f"s_mov_b64 exec, 1\nbuffer_load_dword v{TMP+1}, v0, s[8:11], s49 offen\ns_mov_b64 exec, -1")
        else: a(f"buffer_load_dwordx2 v[{IDX+2*p}:{IDX+2*p+1}], v9, s[8:11], s52 offen")
        if p == NQ-1: break
        if p == XP: a(f"s_waitcnt vmcnt({XP+1})"); a.st(2); a("s_barrier"); a.st(3)
        if p == XP:
            a("s_lshl_b32 m0, s48, 8")
            for i in range(7): a(f"ds_read_addtid_b32 v{GK+i} offset:{i*256}")
        if p == XP: a(f"buffer_load_dword v{TMP}, v0, s[8:11], s51 offen offset:2048 sc1")
        a(f"s_add_u32 s52, s52, 512\ns_bitcmp1_b64 s[32:33], {p}\ns_cselect_b32 s52, s53, s52\ns_cselect_b32 s54, 8192, 0\ns_add_u32 s53, s53, s54")
        if p >= 5: a(f"s_cmp_le_u32 s47, {p+1}\ns_cbranch_scc1 K3_ld{p+1}")
    a("s_branch K3_ld")
    for p in range(6, NQ):
        a(f"K3_ld{p}:\ns_mov_b64 exec, 1\nbuffer_load_dword v{IDX+2*p}, v0, s[8:11], s49 offen")
    a("s_mov_b64 exec, -1\nK3_ld:"); a.st(1)
    tb = 32; lb = 2; TBS_ = TOS
    a(f"v_lshrrev_b32 v1, {1+lb}, v5\nv_mul_u32_u24 v1, {TBS_}, v1\nv_and_b32 v4, {(2 << lb)-1}, v5\nv_lshl_add_u32 v1, v4, 4, v1\nv_and_b32 v4, 3, v5")
    a(f"v_cmp_eq_u32 s[54:55], 0, v4\nv_cmp_eq_u32 s[56:57], 1, v4\nv_mov_b32 v2, 0x3f80\nv_mov_b32 v3, 0x3f800000")
    a(f"v_cndmask_b32 v{AOP}, 0, v2, s[54:55]\nv_cndmask_b32 v{AOP}, v{AOP}, v3, s[56:57]\nv_mov_b32 v{AOP+1}, v{AOP}")
    for i in range(4): a(f"v_mov_b32 v{ACC+i}, 0")
    a("s_lshl_b32 s52, s19, 7\ns_add_u32 s65, s52, s51")
    a("s_lshl_b32 s58, s16, 2\ns_add_u32 s58, s58, s65")
    a(f"s_lshl_b32 s59, s20, 8\ns_mul_i32 s60, s16, {QB}\ns_add_u32 s60, s60, s59")
    a(f"s_mul_i32 s61, s48, {(64//tb)*TBS_}\ns_lshl_b32 s52, s18, {5+lb}\ns_add_u32 s61, s61, s52\ns_add_u32 s61, s61, {WS_TOK}")
    for r in range(1, 4): a(f"s_add_u32 s52, s16, {r}\ns_and_b32 s52, s52, 3\ns_mul_i32 s52, s52, {QB}\ns_add_u32 s{65+r}, s52, s59")
    a(f"s_mov_b32 s22, 1\ns_mov_b32 s64, 0")
    def ad1(p, h):
        r = IDX+2*p+(h >> 1)
        a(f"v_lshrrev_b32 v{ADR+h}, 15, v{r}" if h & 1 else f"v_lshlrev_b32_sdwa v{ADR+h}, 2, v{r} {SD} src1_sel:WORD_0")
    def adr(p):
        for h in range(4): ad1(p, h)
    def rd(p):
        for h in range(4): a(f"ds_read_b32 v{BUF+4*(p%NBUF)+h}, v{ADR+h}")
    def mf(p, h):
        b = BUF+4*(p%NBUF)+2*h
        if OPT['exp'] & 2: return
        a(f"v_mfma_f32_4x4x4_16b_bf16 v[{ACC}:{ACC+3}], v[{AOP}:{AOP+1}], v[{b}:{b+1}], v[{ACC}:{ACC+3}]")
    def vw(p):
        if p % 4 == 0 and p > XP: a(f"s_waitcnt vmcnt({max(NQ-4-p, 0)})")
    CALL = "s_swappc_b64 s[30:31], s[26:27]"
    T0, T1 = TMP, TMP+1
    a(f"s_mov_b64 exec, 15\ns_waitcnt vmcnt({NQ-8})\nK3_xp:\nv_cmp_eq_u32 vcc, 0, v{TMP}\ns_cbranch_vccz K3_xb\ns_add_u32 s64, s64, 1\ns_cmp_gt_u32 s64, {SPIN}\ns_cbranch_scc1 K3_xb")
    a(f"buffer_load_dword v{TMP}, v0, s[8:11], s51 offen offset:2048 sc1\ns_waitcnt vmcnt(0)\ns_branch K3_xp\nK3_xb:")
    a(f"v_cmp_ne_u32 vcc, s50, v{TMP}\ns_cmp_lg_u64 vcc, 0\ns_cselect_b32 s23, 1, 0\ns_mov_b64 exec, -1")
    a("s_getpc_b64 s[40:41]\nK3_pc:\ns_add_u32 s40, s40, K3_fl0_0-K3_pc\ns_addc_u32 s41, s41, 0\ns_mul_i32 s42, s23, K3_fl1_0-K3_fl0_0\ns_mov_b32 s43, K3_fl2_0-K3_fl0_0")
    a(f"s_add_u32 s45, s39, {KS}\ns_mov_b32 s63, 0x07060302\ns_waitcnt lgkmcnt(0)")
    if OPT['exp'] & 4:
        a("s_waitcnt vmcnt(0)\nv_lshrrev_b32 v24, 2, v0\nv_lshl_or_b32 v24, v24, 17, v24")
        for p in range(2*NQ): a(f"v_add_u32 v{IDX+p}, {(p*64) | (p*64+64*99) << 17}, v24")
    a("K3_hop:")
    a(f"s_mov_b32 s52, s39\ns_mov_b32 s39, s45\ns_add_u32 s53, s39, {KS}\ns_cmp_eq_u32 s22, 1\ns_cselect_b32 s52, s53, s52\ns_cmp_eq_u32 s23, 0\ns_cselect_b32 s45, s52, s53")
    a(f"s_add_u32 s61, s61, {tb*256}\ns_add_u32 s37, s39, s60\ns_add_u32 s36, s45, s60\ns_mov_b32 s35, 0\ns_bfe_u32 s46, s22, 0x10001\ns_xor_b32 s47, s46, 1\ns_lshl_b32 s47, s47, 16\ns_sub_u32 s62, 0, s46")
    a("s_cmp_eq_u32 s22, 7\ns_cselect_b32 s42, s43, s42\ns_add_u32 s26, s40, s42\ns_addc_u32 s27, s41, 0")
    if OPT['prio'] == 1: a("s_cmp_ge_u32 s19, 8\ns_cbranch_scc1 K3_p2\ns_setprio 3\ns_branch K3_p3\nK3_p2:\ns_setprio 2\nK3_p3:")
    if OPT['prio'] == 2: a("s_setprio 3")
    if OPT['prio'] == 3: a("s_setprio 1")
    for p in range(DEP): adr(p); rd(p)
    adr(DEP)
    if OPT['wb']: a(f"s_cmp_lg_u32 s19, 0\ns_cbranch_scc1 K3_nwb\ns_cmp_ge_u32 s2, 8\ns_cbranch_scc1 K3_nwb\ns_bitcmp1_b32 {OPT['wb']}, s22\ns_cbranch_scc0 K3_nwb\nbuffer_wbl2 sc1\nK3_nwb:")
    def tok(part):
        if OPT['exp'] & 8: return
        if part == 0: a(f"buffer_store_dwordx4 v[{GK}:{GK+3}], v1, s[8:11], s38 offen{TSC()}")
        if part == 1:
            a(f"v_lshrrev_b32 v{T0}, {4+lb}, v0\nv_mul_u32_u24 v{T0}, {TBS_}, v{T0}\nv_and_b32 v{T1}, {(16 << lb)-4}, v0\nv_lshl_add_u32 v{T0}, v{T1}, 1, v{T0}\ns_add_u32 s38, s38, {(256//tb)*TBS_}")
            a(f"buffer_store_dwordx2 v[{GK+4}:{GK+5}], v{T0}, s[8:11], s38 offen{TSC()}")
        if part == 2:
            l = a.lab('K3_t')
            a(f"s_cmp_eq_u32 s21, 7\ns_cbranch_scc0 {l}\nv_lshrrev_b32 v{T0}, {5+lb}, v0\nv_mul_u32_u24 v{T0}, {TBS_}, v{T0}\nv_and_b32 v{T1}, {(32 << lb)-4}, v0\nv_add_u32 v{T0}, v{T0}, v{T1}\ns_add_u32 s38, s38, {(128//tb)*TBS_}")
            a(f"buffer_store_dword v{GK+6}, v{T0}, s[8:11], s38 offen{TSC()}\n{l}:")
    a(f"s_sub_u32 s38, s61, {tb*256}"); tok(0)
    for p in range(NQ-DEP):
        rd(p+DEP); a(f"s_waitcnt lgkmcnt({4*DEP})"); mf(p, 0)
        if p+DEP+1 < NQ:
            vw(p+DEP+1)
            ad1(p+DEP+1, 0); ad1(p+DEP+1, 1); mf(p, 1); ad1(p+DEP+1, 2); ad1(p+DEP+1, 3)
        else: mf(p, 1)
        if OPT['prio'] == 2 and p in (9, 18, 27): a(f"s_setprio {2 - (9, 18, 27).index(p)}")
        if OPT['prio'] == 1 and p in (11, 23): a(f"s_cmp_ge_u32 s19, 8\ns_cbranch_scc0 K3_q{p}\ns_setprio {1 if p == 11 else 0}\nK3_q{p}:")
        a(f"s_bitcmp1_b64 s[24:25], {p}\ns_cbranch_scc1 K3_st{p}\nK3_bk{p}:")
    a("s_endpgm")
    for p in range(NQ-DEP):
        a(f"K3_st{p}:\ns_bitcmp1_b64 s[32:33], {p}\ns_cbranch_scc0 K3_nf{p}\n{CALL}\nK3_nf{p}:")
        a(f"s_cmp_eq_u32 s28, {p}\ns_cbranch_scc1 K3_dr{(p+1)%NBUF}\ns_branch K3_bk{p}")
    for r in range(NBUF):
        a(f"K3_dr{r}:")
        for i in range(DEP):
            a(f"s_waitcnt lgkmcnt({4*(DEP-1-i)})"); mf(r+i, 0); mf(r+i, 1)
            if i < DEP-1: a(f"s_bitcmp1_b32 s34, {i}\ns_cbranch_scc0 K3_dn{r}_{i}\n{CALL}\nK3_dn{r}_{i}:")
            else: a(f"{CALL}\ns_branch K3_hend")
    for m in range(3):
        for l in range(7):
            tg = m == 0 and OPT['px']; sc = ' sc1' if m else ''
            a(f".p2align 7\nK3_fl{m}_{l}:\ns_add_u32 s26, s26, 128\ns_addc_u32 s27, s27, 0")
            if tg and l >= 5:
                a(f"s_cmp_eq_u32 s22, 1\ns_cbranch_scc0 K3_nz{l}\ns_waitcnt vmcnt(0)\nK3_nz{l}:")
            if l in (1, 2): tok(l)
            a(f"v_mul_f32 v{T0}, v{DIS+l}, v{ACC}\nv_mul_f32 v{T1}, v{DIS+l}, v{ACC+1}\nv_mov_b64 v[{ACC}:{ACC+1}], 0")
            if tg: a(f"v_add_u32 v{T0}, s47, v{T0}\nv_cvt_pk_bf16_f32 v{T1}, v{T1}, v{T1}\nv_perm_b32 v{T0}, v{T1}, v{T0}, s63\nv_bfi_b32 v{GK+l}, 1, s46, v{T0}")
            else: a(f"v_cvt_pk_bf16_f32 v{GK+l}, v{T0}, v{T1}")
            if m < 2 and l == 3: a(f"v_lshlrev_b32 v{T0}, 2, v0\nbuffer_store_dwordx4 v[{GK}:{GK+3}], v{T0}, s[8:11], s37 offen{sc}")
            if m < 2 and l == 5: a(f"v_lshlrev_b32 v{T0}, 1, v0\nbuffer_store_dwordx2 v[{GK+4}:{GK+5}], v{T0}, s[8:11], s37 offen offset:1024{sc}")
            if m < 2 and l == 6: a(f"buffer_store_dword v{GK+6}, v0, s[8:11], s37 offen offset:1536{sc}")
            if tg and l in (0, 4):
                a(f"s_cmp_eq_u32 s22, 1\ns_cbranch_scc0 K3_nc{l}\nv_mov_b32 v{T1}, 0")
                for x in ((0, 1, 2), (3, 4, 5, 6))[l >> 2]:
                    if x == 6: a(f"s_cmp_eq_u32 s21, 7\ns_cselect_b32 s36, s36, {WS_SIZE}")
                    a(f"buffer_store_dword v{T1}, v0, s[8:11], s36 offen offset:{x*256}")
                a(f"K3_nc{l}:")
            a("s_setpc_b64 s[30:31]")
            a(f".if (. - K3_fl{m}_{l}) > 128\n.error \"flush too long\"\n.endif")
    a("K3_hend:"); a.st(4)
    if OPT['stamp'] in (1, 2): a("s_cmp_eq_u32 s22, 1\ns_cselect_b32 s80, s74, s80\ns_cselect_b32 s74, 0, s74\ns_cmp_eq_u32 s22, 4\ns_cselect_b32 s82, s84, s82")
    a("s_cmp_eq_u32 s22, 7\ns_cbranch_scc1 K3_fin")
    if OPT['prio']: a(f"s_setprio {OPT['wprio']}")
    a(f"v_mov_b32 v{T0}, s22\nv_mov_b32 v{T1}, 1\nv_mov_b32 v{ACC}, {GS}\ns_mov_b64 exec, 1\nds_add_u32 v{ACC}, v{T1}")
    if OPT['px']: a("s_cmp_gt_u32 s22, 1\ns_cselect_b32 s52, s23, 1\ns_cmp_eq_u32 s52, 0\ns_cbranch_scc1 K3_px")
    a("s_waitcnt vmcnt(0)"); a.st(5)
    a("s_cmp_eq_u32 s23, 0\ns_cbranch_scc0 K3_g1")
    a(f"buffer_store_dword v{T0}, v0, s[8:11], s58 offen\ns_branch K3_g2\nK3_g1:\nbuffer_store_dword v{T0}, v0, s[8:11], s58 offen sc1\nK3_g2:")
    a(f"s_mov_b64 exec, 15")
    NPL = OPT['npl']
    PL = lambda i: f"buffer_load_dword v{BUF+i}, v0, s[8:11], s65 offen sc1"
    for i in range(NPL-1): a(PL(i) + f"\ns_sleep {OPT['slg']}")
    a(f"K3_poll:\ns_add_u32 s64, s64, 1\ns_cmp_gt_u32 s64, {SPIN}\ns_cbranch_scc1 K3_pb")
    for i in range(NPL):
        a(PL((i+NPL-1) % NPL) + f"\ns_waitcnt vmcnt({NPL-1})\nv_cmp_gt_u32 vcc, s22, v{BUF+i}\ns_cbranch_vccz K3_pb\ns_sleep {OPT['slg']}")
    a("s_branch K3_poll\nK3_pb:")
    X = AOP+1; AR = (14, 18, 2); B1 = (22, 23, T1)
    a("s_mov_b32 s35, 2")
    a(f"K3_px:\ns_mov_b64 exec, -1\nv_lshlrev_b32 v{T0}, 1, v0")
    for r in range(3): a(f"s_add_u32 s{53+r}, s{66+r}, s39")
    a(f"K3_pA:\nv_lshlrev_b32 v{X}, 2, v0")
    for r in range(3): a(f"buffer_load_dwordx4 v[{AR[r]}:{AR[r]+3}], v{X}, s[8:11], s{53+r} offen sc1")
    a("K3_pB:")
    for r in range(3): a(f"buffer_load_dwordx2 v[{8+2*r}:{9+2*r}], v{T0}, s[8:11], s{53+r} offen offset:1024 sc1")
    a("s_cmp_eq_u32 s21, 7\ns_cbranch_scc0 K3_p6")
    for r in range(3): a(f"buffer_load_dword v{B1[r]}, v0, s[8:11], s{53+r} offen offset:1536 sc1")
    a("K3_p6:")
    if OPT['px']:
        def chk(rs, first=True):
            for i, r in enumerate(rs): a(f"v_xor_b32 v{X}, s62, v{r}" if (first and i == 0) else f"v_bitop3_b32 v{X}, v{X}, v{r}, s62 bitop3:0xf6")
        a("s_cmp_eq_u32 s35, 2\ns_cbranch_scc1 K3_pD\ns_waitcnt vmcnt(0)\ns_cmp_eq_u32 s35, 1\ns_cbranch_scc1 K3_pC")
        chk(list(range(14, 22)) + [2, 3, 4, 5])
        a(f"v_and_b32 v{X}, 1, v{X}\nv_cmp_ne_u32 vcc, 0, v{X}\ns_cbranch_vccz K3_pE\ns_add_u32 s64, s64, 1\ns_cmp_gt_u32 s64, {SPIN}\ns_cbranch_scc1 K3_pD\ns_sleep {OPT['slp']}\ns_branch K3_pA\nK3_pE:\ns_mov_b32 s35, 1\nK3_pC:")
        chk(range(8, 14)); a("s_cmp_eq_u32 s21, 7\ns_cbranch_scc0 K3_p7"); chk(B1, False); a("K3_p7:")
        a(f"v_and_b32 v{X}, 1, v{X}\nv_cmp_ne_u32 vcc, 0, v{X}\ns_cbranch_vccz K3_pD\ns_add_u32 s64, s64, 1\ns_cmp_gt_u32 s64, {SPIN}\ns_cbranch_scc1 K3_pD\ns_sleep {OPT['slp']}\ns_branch K3_pB")
    a("K3_pD:"); a.st(10 if False else 7)
    a(f"s_lshl_b32 s52, s22, 4\nv_mov_b32 v{T0}, {GS}\ns_mov_b64 exec, 1\nK3_aw:\nds_read_b32 v{X}, v{T0}\ns_waitcnt lgkmcnt(0)\nv_readfirstlane_b32 s53, v{X}\ns_cmp_ge_u32 s53, s52\ns_cbranch_scc1 K3_ad\ns_sleep {OPT['sll']}\ns_branch K3_aw\nK3_ad:\ns_mov_b64 exec, -1"); a.st(6)
    a("s_mov_b32 m0, s60")
    for i in range(6): a(f"ds_write_addtid_b32 v{GK+i} offset:{i*256}")
    a(f"s_cmp_eq_u32 s21, 7\ns_cbranch_scc0 K3_w6\nds_write_addtid_b32 v{GK+6} offset:1536\ns_waitcnt vmcnt(0)")
    for r in range(3): a(f"s_mov_b32 m0, s{66+r}\nds_write_addtid_b32 v{B1[r]} offset:1536")
    a("K3_w6:")
    for r in range(3):
        a(f"s_mov_b32 m0, s{66+r}\ns_waitcnt vmcnt({5-r})")
        for i in range(4): a(f"ds_write_addtid_b32 v{AR[r]+i} offset:{i*256}")
    for r in range(3):
        a(f"s_mov_b32 m0, s{66+r}\ns_waitcnt vmcnt({2-r})")
        for i in range(2): a(f"ds_write_addtid_b32 v{8+2*r+i} offset:{1024+i*256}")
    a(f"v_mov_b32 v{X}, v{AOP}")
    for i in range(4): a(f"v_mov_b32 v{ACC+i}, 0")
    a(f"s_add_u32 s22, s22, 1\ns_waitcnt vmcnt(0) lgkmcnt(0)"); a.st(8); a("s_barrier"); a.st(9)
    if OPT['stamp'] in (1, 2): a("s_cmp_eq_u32 s22, 5\ns_cselect_b32 s83, s84, s83")
    a("s_branch K3_hop")
    if OPT['stamp'] in (1, 2): a("K3_fin:\ns_mov_b32 s81, s64\nK3_fin2:")
    else: a("K3_fin:")
    a("s_mov_b32 s38, s61"); tok(0); tok(1); tok(2); a.st_out(2, 8, 's19', 10)
    a("K3_end:\ns_endpgm")
    a.end(name, 128, 102)

import sched
L4_E = 131072; L4_SCR = L4_E + 8192; L4_SIZE = L4_SCR + 4096
TK = 16; QQ = 48; AL = 64; WF = 80; NWF = 2; TA = 88; CA = 92; IB = 96; SV = (100, 101); AC = (104, 120); PK = (136, 144); SS = 152; OO = 168; CT = 232; PA = 240; EA = 248; PM = (252, 254)
EPS = f2u(1e-5); I128 = f2u(1/128.); LOG2E = f2u(math.log2(math.e))
def k4(a):
    name = 'att_kernel'
    a.launch(name, 256, 256, L4_SIZE)
    a.begin(name)
    W8 = sched.Waits(); sched.VMEM_LAT = OPT['vl']; sched.STRETCH = OPT['str']/100; sched.QLAT = OPT['ql']
    L = []
    def o(text, R=(), W=(), rr=(), pri=0):
        for t in text.split('\n'):
            x = sched.Op(t, R, W, pri); x.r |= {('v', r) for r in rr}; L.append(x)
    def flush(do_sched):
        ops = sched.schedule(L, True) if do_sched else list(L)
        for t in W8.emit(ops): a(t)
        L.clear()
    a("s_cmp_ge_u32 s2, 256\ns_cbranch_scc1 K4_end")
    a.st_init()
    a("s_load_dwordx2 s[4:5], s[0:1], 88\ns_load_dwordx2 s[6:7], s[0:1], 72")
    a("v_lshrrev_b32 v4, 6, v0\nv_and_b32 v0, 63, v0\nv_readfirstlane_b32 s19, v4\nv_lshlrev_b32 v2, 4, v0")
    a("v_lshrrev_b32 v5, 3, v0\nv_and_b32 v6, 7, v0\nv_xor_b32 v6, v6, v5\ns_lshl_b32 s3, s19, 1\nv_xor_b32 v6, s3, v6\nv_lshlrev_b32 v6, 4, v6\nv_lshl_add_u32 v103, v5, 7, v6\nv_xor_b32 v12, 16, v103")
    a("s_mul_i32 s20, s2, 3\ns_lshl_b32 s44, s19, 14")
    a(f"v_lshrrev_b32 v5, 5, v0\nv_bfe_u32 v6, v0, 3, 2\nv_lshlrev_b32 v3, 3, v5\nv_lshlrev_b32 v102, 2, v6\nv_add_u32 v102, {WS_SINV-WS_PERM}, v102")
    a("s_waitcnt lgkmcnt(0)")
    a.srd(8, 4, WS_SIZE); a.srd(12, 6, N*256)
    a(f"s_mov_b32 s3, {WS_WFR+WFR_SW}\ns_buffer_load_dword s24, s[8:11], s3")
    QS = lambda g: 52 + g
    def tdma(t, R=()):
        b = t & 1
        o(f"s_mul_i32 s21, s{60+t}, {TOS}\ns_add_u32 s21, s21, s44\ns_add_u32 s21, s21, {WS_TOK}")
        for x in range(0 if (t > 0 and OPT['exp'] & 64) else 4):
            if x: o("s_add_u32 s21, s21, 4096")
            o(f"s_add_u32 m0, s44, {b*65536 + 4096*x}")
            for y in range(4): o(f"buffer_load_dwordx4 {'v103' if x < 2 else 'v12'}, s[8:11], s21 offen offset:{y*1024} lds", W=[f'dma{t}_{x}{y}', 'q'], R=R, pri=OPT['dp'])
    DM = lambda t: [f'dma{t}_{x}{y}' for x in range(4) for y in range(4)]
    def small(g):
        o(f"s_lshl_b32 s23, s{QS(g)}, 4\ns_add_u32 s23, s23, {WS_PERM}")
        o(f"buffer_load_dword v{SV[g&1]}, v102, s[8:11], s23 offen\nbuffer_load_dwordx2 v[{PM[g&1]}:{PM[g&1]+1}], v3, s[8:11], s23 offen", pri=2000)
    def wdma(lo, hi, tag):
        for i in range(lo, hi):
            o(f"s_add_u32 m0, s25, {4096*i}\ns_add_u32 s27, s26, {4096*i}"); o("buffer_load_dwordx4 v2, s[8:11], s27 offen lds", W=[tag + str(i), 'q'])
    for t in range(3): a(f"s_add_u32 s{60+t}, s20, {t}")
    for g in range(6): a(f"s_lshl_b32 s3, s{60+g//2}, 3\ns_add_u32 s3, s3, s19\ns_add_u32 s{QS(g)}, s3, {4*(g&1)}")
    a(f"s_add_u32 s58, s2, 6144\ns_lshr_b32 s63, s58, 3\ns_cmp_lt_u32 s2, 128\ns_cselect_b32 s63, s63, s62\ns_cselect_b32 s58, s58, s57")
    a(f"s_lshl_b32 s25, s19, 10\ns_add_u32 s26, s25, {WS_WFR}\ns_add_u32 s25, s25, 0x10000")
    wdma(0, 8, 'w'); tdma(0); small(0); wdma(16, 18, 'w'); flush(False)
    a(f"v_and_b32 v4, 7, v0\nv_xor_b32 v1, v4, v5\nv_xor_b32 v1, s19, v1\nv_lshlrev_b32 v1, 4, v1\nv_lshl_add_u32 v1, v4, 13, v1\nv_lshl_add_u32 v1, v5, 7, v1\nv_lshl_add_u32 v1, v6, 2, v1")
    for n in range(4): a(f"v_cmp_eq_u32 s[{32+2*n}:{33+2*n}], {n}, v6")
    a("v_and_b32 v7, 31, v0\nv_bfe_u32 v8, v0, 2, 1\nv_cmp_eq_u32 s[40:41], v8, v5\nv_and_b32 v8, 1, v0\nv_lshlrev_b32 v8, 4, v8\nv_mov_b32 v9, 0x3f80\nv_lshlrev_b32 v9, v8, v9\nv_cndmask_b32 v9, 0, v9, s[40:41]")
    a("v_bfe_u32 v8, v0, 1, 1\nv_bfe_u32 v10, v0, 3, 1\nv_lshl_or_b32 v8, v10, 1, v8")
    for j in range(4): a(f"v_cmp_eq_u32 s[40:41], {j}, v8\nv_cndmask_b32 v{IB+j}, 0, v9, s[40:41]")
    a(f"s_lshl_b32 s25, s19, 10\ns_add_u32 s25, s25, {L4_SCR}")
    a("v_lshl_add_u32 v4, v7, 2, s25")
    a("v_lshlrev_b32 v8, 5, v6\nv_lshl_add_u32 v8, v5, 4, v8\nv_add_u32 v8, s25, v8")
    a("v_lshl_add_u32 v9, v5, 4, s25")
    a("v_and_b32 v10, 7, v0\nv_lshlrev_b32 v11, 2, v5\nv_xor_b32 v10, v10, v11\nv_xor_b32 v10, s19, v10\nv_lshlrev_b32 v10, 4, v10\nv_lshl_add_u32 v10, v7, 7, v10\nv_lshl_add_u32 v10, v5, 15, v10")
    a(f"v_lshlrev_b32 v7, 2, v7\nv_add_u32 v15, {L4_E}, v2\ns_mov_b32 s48, 0xffff0000\nv_add_u32 v0, 0x10000, v2")
    a(f"s_mov_b32 s28, {I128}\ns_mov_b32 s29, {EPS}\ns_mov_b32 s30, {LOG2E}")
    a("s_waitcnt lgkmcnt(0)")
    a.st(1)
    for t in W8.drain(['w17']): a(t)
    a.st(2); a("s_barrier"); a.st(3)
    if OPT['exp'] & 4096: a("s_cmp_ge_u32 s19, 1\ns_cbranch_scc1 K4_fin")
    ring = [0]
    def group(g, last):
        T = lambda u: f"v[{TK+4*u}:{TK+4*u+3}]"
        R16 = lambda b: f"v[{b}:{b+15}]"
        sv = SV[g & 1]; pm = PM[g & 1]; t = g >> 1; LB = [f'tile{t}']; xa = (t & 1)*65536 + (64 if g & 1 else 0)
        def W(j):
            if j >= 8:
                r = 4*(j-8)
                if g == 0:
                    if j == 40: o("s_barrier", R=[f'w{i}' for i in range(8, 16)], W=['wb', 'bar'])
                    o(f"ds_read_b128 a[{r}:{r+3}], v0 offset:{(j-8)*1024}", R=['wb'] if j >= 40 else [])
                    if j == 71:
                        o("s_barrier", W=['wfree', 'bar']); L[-1].r |= {('a', x) for x in range(256)}
                        tdma(1, ['wfree'])
                return f"a[{r}:{r+3}]"
            r = WF + 4*(ring[0] % NWF); ring[0] += 1
            o(f"ds_read_b128 v[{r}:{r+3}], v15 offset:{j*1024}")
            return f"v[{r}:{r+3}]"
        if g in (2, 4):
            o("s_barrier", R=DM(t) + ['rd'], W=LB + ['bar'], rr=[OO+32+3, OO+32+2] + list(range(TK, TK+32)))
            tdma(t+1, LB)
        if g == 6: o("v_xor_b32 v1, s49, v1\nv_xor_b32 v10, s49, v10"); xa = 65536
        for x in range(4): o(f"v_xor_b32 v{TA+x}, {xa ^ ((x >> 1)*576) ^ ((x & 1)*288)}, v1")
        for u in range(8):
            for b in range(2): o(f"ds_read2st64_b32 v[{TK+4*u+2*b}:{TK+4*u+2*b+1}], v{TA+2*(u&1)+b} offset0:{8*(u>>1)} offset1:{8*(u>>1)+4}", R=LB)
        if g < last: small(g+1)
        o(f"v_lshl_add_u32 v{pm}, v{pm}, 8, v7\nv_lshl_add_u32 v{pm+1}, v{pm+1}, 8, v7")
        D = AC[1]
        def ychain(t):
            for u in range(8): w = W(8+8*t+u); o(f"v_mfma_f32_32x32x16_bf16 {R16(AC[t&1])}, {w}, {T(u)}, {'0' if u == 0 else R16(AC[t&1])}")
        def zchain(t):
            for u in range(8): w = W(40+8*t+u); o(f"v_mfma_f32_32x32x16_bf16 {R16(AC[t&1])}, {T(u)}, {w}, {'0' if u == 0 else R16(AC[t&1])}")
        def pack(t):
            for d in range(8): o(f"v_cvt_pk_bf16_f32 v{PK[t&1]+d}, v{AC[t&1]+2*d}, v{AC[t&1]+2*d+1}")
        def smf(t):
            for h in range(2): o(f"v_mfma_f32_32x32x16_bf16 {R16(SS)}, v[{PK[t&1]+4*h}:{PK[t&1]+4*h+3}], {T(2*t+h)}, {'0' if t == 0 and h == 0 else R16(SS)}")
        def cinit():
            for j in range(4): o(f"v_xor_b32 v{CA+j}, {xa ^ (j*8192 + j*16)}, v10")
            for B in range(2):
                for j in range(4):
                    c = CT + 4*(j & 1)
                    o(f"ds_read_b128 v[{c}:{c+3}], v{CA+j} offset:{B*4096}", R=LB)
                    for n in range(4): o(f"v_lshlrev_b32 v{OO+32*B+4*n+j}, 16, v{c+n}\nv_and_b32 v{OO+32*B+16+4*n+j}, s48, v{c+n}")
        def pz(b):
            for h in range(2): o(f"v_mfma_f32_32x32x16_bf16 {R16(OO+16*b)}, v[{PA+4*h}:{PA+4*h+3}], v[{PK[b&1]+4*h}:{PK[b&1]+4*h+3}], {R16(OO+16*b)}")
        ychain(0)
        for t in range(4 if OPT['exp'] & 512 else 32): o(f"v_dot2_f32_bf16 v{D+(t&3)}, v{TK+t}, v{TK+t}, {'0' if t < 4 else f'v{D+(t&3)}'}")
        for u in range(8): w = W(u); o(f"v_mfma_f32_16x16x32_bf16 v[{EA}:{EA+3}], {w}, {T(u)}, {'0' if u == 0 else f'v[{EA}:{EA+3}]'}")
        o(f"v_add_f32 v11, v{D}, v{D+1}\nv_add_f32 v2, v{D+2}, v{D+3}\nv_add_f32 v11, v11, v2")
        o(f"v_mov_b32 v2, v11\nv_permlane32_swap_b32 v11, v2\nv_add_f32 v11, v11, v2\nv_mul_f32 v2, s28, v{EA}\nv_mul_f32 v2, v2, v2\nv_fma_f32 v11, v11, s28, -v2")
        o(f"v_mul_f32 v2, v{sv}, v{sv}\nv_max_f32 v11, 0, v11\nv_fma_f32 v11, v11, v2, s29\nv_rsq_f32 v11, v11\nv_mul_f32 v11, v11, v{sv}")
        o("ds_write_b32 v4, v11", W=['sa']); o(f"ds_write_b32 v4, v{EA+2} offset:128\nds_write_b32 v4, v{EA+3} offset:256", W=['sb'])
        RL, X, ZS, ZD = PA, SS, SS+8, SS+12
        o(f"ds_read_b128 v[{RL}:{RL+3}], v8", R=['sa'])
        cinit()
        pack(0); smf(0)
        ychain(1); pack(1); smf(1)
        ychain(2); pack(2); smf(2)
        ychain(3); pack(3); smf(3)
        zchain(0); pack(0)
        zchain(1); pack(1)
        for r in range(4):
            o(f"v_cndmask_b32 v{X+r}, v{SS+r}, v{SS+4+r}, s[34:35]\nv_cndmask_b32 v{X+r}, v{X+r}, v{SS+8+r}, s[36:37]\nv_cndmask_b32 v{X+r}, v{X+r}, v{SS+12+r}, s[38:39]")
        o(f"ds_read_b128 v[{ZS}:{ZS+3}], v8 offset:128\nds_read_b128 v[{ZD}:{ZD+3}], v8 offset:256", R=['sb'])
        for r in range(4): o(f"v_mul_f32 v{X+r}, v{X+r}, v{RL+r}")
        t0, t1 = X+4, X+5
        o(f"v_max3_f32 v{t0}, v{X}, v{X+1}, v{X+2}\nv_max_f32 v{t0}, v{t0}, v{X+3}\nv_mov_b32 v{t1}, v{t0}\nv_permlane32_swap_b32 v{t0}, v{t1}\nv_max_f32 v{t0}, v{t0}, v{t1}\nv_mul_f32 v{t0}, v{t0}, v11")
        for r in range(4): o(f"v_fma_f32 v{X+r}, v{X+r}, v11, -v{t0}")
        for r in range(4): o(f"v_exp_f32 v{X+r}, v{X+r}")
        o(f"v_add_f32 v{t0}, v{X}, v{X+1}\nv_add_f32 v{t1}, v{X+2}, v{X+3}\nv_add_f32 v{t0}, v{t0}, v{t1}\nv_mov_b32 v{t1}, v{t0}\nv_permlane32_swap_b32 v{t0}, v{t1}\nv_add_f32 v{t0}, v{t0}, v{t1}\nv_mul_f32 v{t0}, v{t0}, v{sv}\nv_rcp_f32 v{t0}, v{t0}")
        for r in range(4): o(f"v_mul_f32 v{X+r}, v{X+r}, v{RL+r}")
        for r in range(4): o(f"v_mul_f32 v{X+r}, v{X+r}, v{t0}")
        o(f"v_cvt_pk_bf16_f32 v{X+6}, v{X}, v{X+1}\nv_cvt_pk_bf16_f32 v{X+7}, v{X+2}, v{X+3}")
        for n in range(4): o(f"v_cndmask_b32 v{PA+2*n}, 0, v{X+6}, s[{32+2*n}:{33+2*n}]\nv_cndmask_b32 v{PA+2*n+1}, 0, v{X+7}, s[{32+2*n}:{33+2*n}]")
        o(f"v_mul_f32 v13, v{X}, v{ZS}\nv_mul_f32 v14, v{X}, v{ZD}")
        for r in range(1, 4): o(f"v_fmac_f32 v13, v{X+r}, v{ZS+r}\nv_fmac_f32 v14, v{X+r}, v{ZD+r}")
        o(f"v_permlane32_swap_b32 v13, v14\nv_add_f32 v13, v13, v14\nv_mov_b32 v14, v13\nv_permlane32_swap_b32 v13, v14\nv_add_f32 v13, v13, v{EA}\nv_add_f32 v14, v14, v{EA+1}")
        def sq(b):
            for r in range(0 if (OPT['exp'] & 1024 and b) else 16): o(f"v_mul_f32 v{QQ+r}, v{OO+r}, v{OO+r}" if b == 0 else f"v_fmac_f32 v{QQ+r}, v{OO+16*b+r}, v{OO+16*b+r}")
        pz(0); sq(0)
        zchain(2); pz(1); sq(1); pack(2)
        zchain(3); pz(2); sq(2); pack(3)
        pz(3); sq(3)
        for d in range(8): o(f"v_cvt_pk_bf16_f32 v{AL+d}, v{QQ+2*d}, v{QQ+2*d+1}")
        for v in range(2):
            x = AL+8+4*v
            o(f"v_mfma_f32_16x16x32_bf16 v[{x}:{x+3}], v[{AL+4*v}:{AL+4*v+3}], v[{IB}:{IB+3}], 0")
            o(f"v_add_f32 v{x}, v{x}, v{x+1}\nv_add_f32 v{x+2}, v{x+2}, v{x+3}\nv_add_f32 v{x}, v{x}, v{x+2}")
        o(f"v_permlane16_swap_b32 v{AL+8}, v{AL+12}\nv_add_f32 v5, v{AL+8}, v{AL+12}\nv_mov_b32 v{AL+8}, v5\nv_permlane32_swap_b32 v5, v{AL+8}\nv_add_f32 v5, v5, v{AL+8}")
        o(f"v_mul_f32 v13, s28, v13\nv_fma_f32 v14, -v13, s24, v14\nv_mul_f32 v13, v13, v13\nv_mul_f32 v14, s30, v14\nv_mul_f32 v6, v{sv}, v{sv}\nv_mul_f32 v14, v14, v{sv}")
        o("v_fma_f32 v5, v5, s28, -v13\nv_max_f32 v5, 0, v5\nv_fma_f32 v5, v5, v6, s29\nv_rsq_f32 v5, v5\nv_mul_f32 v5, v5, v14")
        o(f"v_max_f32_dpp v6, v5, v5 quad_perm:[1,0,3,2] {DPPF}\nv_max_f32_dpp v6, v6, v6 quad_perm:[2,3,0,1] {DPPF}\nv_max_f32_dpp v6, v6, v6 row_half_mirror {DPPF}")
        o("v_sub_f32 v5, v5, v6\nv_exp_f32 v5, v5")
        o(f"v_add_f32_dpp v6, v5, v5 quad_perm:[1,0,3,2] {DPPF}\nv_add_f32_dpp v6, v6, v6 quad_perm:[2,3,0,1] {DPPF}\nv_add_f32_dpp v6, v6, v6 row_half_mirror {DPPF}")
        o(f"v_rcp_f32 v6, v6\nv_mul_f32 v5, v5, v{sv}\nv_mul_f32 v5, v5, v6")
        o("ds_write_b32 v4, v5 offset:512", W=['sd'])
        for n in range(4): o(f"ds_read_b128 v[{AL+4*n}:{AL+4*n+3}], v9 offset:{512+32*n}", R=['sd'])
        for b in range(4):
            for n in range(4):
                x = QQ + 4*b + n
                o(f"v_mul_f32 v{x}, v{AL+4*n}, v{OO+16*b+4*n}")
                for r in range(1, 4): o(f"v_fmac_f32 v{x}, v{AL+4*n+r}, v{OO+16*b+4*n+r}")
            x = QQ + 4*b
            o(f"v_permlane32_swap_b32 v{x}, v{x+2}\nv_permlane32_swap_b32 v{x+1}, v{x+3}\nv_add_f32 v{x}, v{x}, v{x+2}\nv_add_f32 v{x+1}, v{x+1}, v{x+3}")
            if b & 1:
                for e in range(2): o(f"v_cvt_pk_bf16_f32 v{x+2+e}, v{x-4+e}, v{x+e}\nbuffer_store_dword v{x+2+e}, v{pm+e}, s[12:15], 0 offen offset:{128*(b>>1)}")
    if OPT['stamp'] in (1, 2): a("s_memtime s[88:89]\ns_waitcnt lgkmcnt(0)")
    a(f"s_lshl_b32 s25, s19, 10\ns_add_u32 s25, s25, 0x10000")
    wdma(8, 16, 'w')
    for g in range(6): group(g, 6)
    flush(OPT['ls']); a.st(4)
    if OPT['stamp'] in (1, 2): a("s_memtime s[90:91]\ns_waitcnt lgkmcnt(0)\ns_sub_u32 s82, s90, s88")
    a("s_cmp_ge_u32 s2, 128\ns_cbranch_scc1 K4_fin")
    for t in W8.drain(DM(3)): a(t)
    a("s_barrier\ns_and_b32 s3, s2, 3\ns_cmp_lg_u32 s19, s3\ns_cbranch_scc1 K4_fin\ns_and_b32 s49, s2, 4\ns_lshl_b32 s49, s49, 4")
    group(6, 6); flush(OPT['ls']); a.st(7)
    a("K4_fin:"); a.st_out(3, 8, 's19', 10)
    a("K4_end:\ns_endpgm")
    a.end(name, 512, 102, 256)

def build(ks, path, pre=''):
    a = K()
    for k in ks: k(a)
    open(path, 'w').write(a.text(pre))

if __name__ == '__main__':
    for x in sys.argv[1:]:
        k, v = x.split('='); OPT[k] = int(v)
    ref = open('standalone__hybrid_graph_tf_nagphormer__graph.s.ref').read().split('\n')
    pre = '\n'.join(l for l in ref if l.startswith(';') and 'launch' not in l and 'grid=' not in l) + '\n'
    build([k1, k2, k3, k4], 'stage.s', pre)
```

```python
import sys
from asmlib import Asm
import hazard

N = 25000; NP = 25088; E = 400000; WIN = 128; NWIN = 196; NLEV = 392; QLEV = 98; QN = 6272
NCH = 250; CH = 1600
ZB = 195*128
WS_FLAGS = 0xC0000; FGS = 17*128; WS_NEWID = 0x10000; WS_PERM = 0x20000; WS_DISP = 0x40000; WS_TQ = 0x60000; WS_LOC = 0x64000; WS_IRR = 0x78000; WS_SINV = 0xA0000
WS_WFR = 0x80000; WS_PART = 0x100000; WS_PARTB = 0x440000; WS_IDX = 0x780000; WS_G = 0xB00000; WS_TOK = 0x3800000
GS = NP*4
TOS = 65536 + 128
PWS = 16384 + 128
KS = NP*256
WS_SIZE = 0x10000000
SD = "dst_sel:DWORD dst_unused:UNUSED_PAD src0_sel:DWORD"
DPPF = "row_mask:0xf bank_mask:0xf"
SLACK = 2
OPT = dict(stamp=0, exp=0, tal=20, tbe=1, prio=2, wprio=0, slg=2, sll=2, tok=1, tsc=2, wb=0, gprio=1, ls=1, tlb=0, wt=0, vl=1500, str=115, dp=0, ql=130, npl=1, px=0, slp=1, cpf=0)
WS_STAMP = 0x7800000

WT = lambda b: (' sc1' if OPT['wt'] & b else '') + (' sc0' if OPT['wt'] & b and OPT['wt'] & 8 else '') + (' nt' if OPT['wt'] & (b << 4) else '')
class K(Asm):
    def __init__(self):
        super().__init__(); self.uid = 0
    def lab(self, s='L'):
        self.uid += 1; return f"{s}_{self.uid}"
    def begin(self, name):
        self.kernel(name); self.k0 = len(self.lines)
    def end(self, name, vgpr, sgpr=102, accum=None):
        body, n = hazard.fix(self.lines[self.k0:])
        self.lines[self.k0:] = body
        print(f"{name}: {len(body)} lines, {n} nop states", file=sys.stderr)
        self.kd(name, vgpr, sgpr, accum)
    def st_init(self):
        if not OPT['stamp']: return
        self("s_memrealtime s[84:85]" if OPT['stamp'] != 2 else "s_memtime s[84:85]")
        if OPT['stamp'] == 3:
            self("s_waitcnt lgkmcnt(0)\ns_mov_b32 s70, s84"); return
        for i in range(1, 14): self(f"s_mov_b32 s{70+i}, 0")
        self("s_waitcnt lgkmcnt(0)\ns_mov_b32 s70, s84\ns_mov_b32 s86, s84")
    def st(self, i):
        if not OPT['stamp'] or OPT['stamp'] == 3: return
        self(f"{'s_memrealtime' if OPT['stamp'] == 1 else 's_memtime'} s[84:85]\ns_waitcnt lgkmcnt(0)\ns_sub_u32 s87, s84, s86\ns_mov_b32 s86, s84\ns_add_u32 s{70+i}, s{70+i}, s87")
    def st_out(self, kid, srd, swave, vt):
        if not OPT['stamp']: return
        self(f"s_lshl_b32 s87, s2, 4\ns_add_u32 s87, s87, {swave}\ns_lshl_b32 s87, s87, 6\ns_add_u32 s87, s87, {WS_STAMP + kid*0x80000}\ns_mov_b64 exec, 1\nv_mov_b32 v{vt+1}, 0")
        if OPT['stamp'] == 3: self("s_memrealtime s[84:85]\ns_waitcnt lgkmcnt(0)\ns_mov_b32 s71, s84")
        for i in range(2 if OPT['stamp'] == 3 else 14): self(f"v_mov_b32 v{vt}, s{70+i}\nbuffer_store_dword v{vt}, v{vt+1}, s[{srd}:{srd+3}], s87 offen offset:{4*i}")
    def codepf(self, first, last, lane4, vt, sp):
        l = self.lab('PF')
        self(f"s_getpc_b64 s[{sp}:{sp+1}]\n{l}:\ns_add_u32 s{sp}, s{sp}, {first}-{l}\ns_addc_u32 s{sp+1}, s{sp+1}, 0\nv_lshlrev_b32 v{vt}, 5, v{lane4}\ns_mov_b32 s{sp+2}, 0")
        self(f"{l}_l:\nv_cmp_gt_u32 vcc, {last}-{first}, v{vt}\ns_and_b64 exec, exec, vcc\ns_cbranch_execz {l}_e\nglobal_load_dword v{vt+1}, v{vt}, s[{sp}:{sp+1}]\nv_add_u32 v{vt}, 8192, v{vt}\ns_branch {l}_l\n{l}_e:\ns_mov_b64 exec, -1")
    def scan_incl(self, v):
        for s in (1, 2, 4, 8): self(f"v_add_u32_dpp v{v}, v{v}, v{v} row_shr:{s} {DPPF} bound_ctrl:0")
        self(f"v_add_u32_dpp v{v}, v{v}, v{v} row_bcast:15 row_mask:0xa bank_mask:0xf")
        self(f"v_add_u32_dpp v{v}, v{v}, v{v} row_bcast:31 row_mask:0xc bank_mask:0xf")
    def red63(self, op, v):
        for s in (1, 2, 4, 8): self(f"{op}_dpp v{v}, v{v}, v{v} row_shr:{s} {DPPF} bound_ctrl:0")
        self(f"{op}_dpp v{v}, v{v}, v{v} row_bcast:15 row_mask:0xa bank_mask:0xf")
        self(f"{op}_dpp v{v}, v{v}, v{v} row_bcast:31 row_mask:0xc bank_mask:0xf")

SWAPS = ((0, 85), (6, 91), (12, 95))
def levelpos(a, sw, d0, d1):
    t, u = d1+1, d1+2
    a(f"s_mul_i32 s{t}, s{sw}, 1338\ns_lshr_b32 s{t}, s{t}, 16\ns_mul_i32 s{t}, s{t}, 98\ns_lshl_b32 s{d0}, s{sw}, 1\ns_sub_u32 s{u}, s{d0}, s{t}")
    a(f"s_mov_b32 s{d0}, s{u}\ns_add_u32 s{d1}, s{u}, 1")
    for x, y in SWAPS:
        a(f"s_cmp_eq_u32 s{u}, {x}\ns_cselect_b32 s{d0}, {y}, s{d0}\ns_cmp_eq_u32 s{u}, {y-1}\ns_cselect_b32 s{d1}, {x}, s{d1}")
    a(f"s_add_u32 s{d0}, s{d0}, s{t}\ns_add_u32 s{d1}, s{d1}, s{t}")
def k1(a):
    name = 'p1_kernel'
    a.launch(name, NCH + NWIN, 512, 34816)
    a.begin(name)
    a(f"s_cmp_ge_u32 s2, {NCH+NWIN}\ns_cbranch_scc1 K1_end")
    a.st_init()
    a("s_load_dwordx4 s[4:7], s[0:1], 0\ns_load_dwordx4 s[8:11], s[0:1], 16\ns_load_dwordx2 s[14:15], s[0:1], 88")
    a("v_lshlrev_b32 v1, 2, v0\nv_mov_b32 v2, 0\nv_mov_b32 v24, 1\nv_lshrrev_b32 v3, 6, v0\nv_and_b32 v25, 63, v0\nv_readfirstlane_b32 s37, v3")
    a(f"s_cmp_ge_u32 s2, {NCH}\ns_cbranch_scc1 K1_win")
    a(f"v_lshlrev_b32 v3, 4, v0\ns_mul_i32 s38, s2, {CH*4}\ns_waitcnt lgkmcnt(0)")
    a.srd(16, 6, E*4); a.srd(20, 8, E*4); a.srd(28, 14, WS_SIZE)
    a("s_cmp_ge_u32 s37, 7\ns_cbranch_scc1 K1_nl\nv_cmp_gt_u32 vcc, 400, v0\ns_and_saveexec_b64 s[34:35], vcc")
    a("buffer_load_dwordx4 v[4:7], v3, s[16:19], s38 offen\nbuffer_load_dwordx4 v[8:11], v3, s[20:23], s38 offen\ns_mov_b64 exec, s[34:35]\nK1_nl:")
    a("s_cmp_ge_u32 s2, 64\ns_cbranch_scc1 K1_noz\ns_cmp_ge_u32 s37, 3\ns_cbranch_scc1 K1_noz")
    a(f"s_mul_i32 s3, s2, {FGS}\ns_add_u32 s3, s3, {WS_FLAGS}\nv_lshrrev_b32 v16, 3, v0\nv_min_u32 v16, 16, v16\nv_lshlrev_b32 v16, 7, v16\nv_and_b32 v17, 7, v0\nv_lshl_add_u32 v16, v17, 2, v16\nbuffer_store_dword v2, v16, s[28:31], s3 offen\nK1_noz:")
    if OPT['cpf'] & 1:
        a("s_cmp_eq_u32 s37, 7\ns_cbranch_scc0 K1_npf\ns_cmp_lt_u32 s2, 16\ns_cbranch_scc0 K1_npf\nv_lshlrev_b32 v28, 2, v25"); a.codepf('p2_kernel', 'K2_xend', 28, 30, 52); a("K1_npf:")
    a("v_mov_b32 v12, -1\nv_mov_b32 v13, -1\nv_mov_b32 v14, -1\nv_mov_b32 v15, -1\nv_mov_b32 v26, 12544\nv_mov_b32 v27, 25088")
    a("ds_write_b128 v3, v[12:15] offset:1024\nds_write_b128 v3, v[12:15] offset:9216\nds_write_b128 v3, v[12:15] offset:17408")
    a("s_cmp_ge_u32 s37, 4\ns_cbranch_scc1 K1_nc\nds_write_b32 v1, v2\ns_cmp_ge_u32 s37, 1\ns_cbranch_scc1 K1_nc\nds_write_b128 v3, v[12:15] offset:25600\nK1_nc:")
    a("s_waitcnt lgkmcnt(0)\ns_barrier")
    a("s_cmp_ge_u32 s37, 7\ns_cbranch_scc1 K1_ns\nv_cmp_gt_u32 vcc, 400, v0\ns_and_saveexec_b64 s[34:35], vcc\ns_waitcnt vmcnt(0)")
    a.st(1)
    for i in range(4):
        a(f"v_lshrrev_b32 v{12+i}, 7, v{8+i}\nv_and_b32 v16, 127, v{8+i}\nv_lshl_or_b32 v{4+i}, v16, 16, v{4+i}\nv_lshlrev_b32 v16, 2, v{12+i}\nds_add_rtn_u32 v{8+i}, v16, v24")
    for i in range(4):
        a(f"s_waitcnt lgkmcnt(3)" if i == 0 else "s_waitcnt lgkmcnt(3)")
        a(f"v_and_b32 v16, 15, v{8+i}\nv_lshlrev_b32 v16, 2, v16\nv_lshl_add_u32 v16, v{12+i}, 6, v16\nv_lshrrev_b32 v17, 4, v{8+i}\nv_mad_u32_u24 v16, v17, s39, v16".replace("s39", "v26"))
        a(f"v_cmp_gt_u32 vcc, 32, v{8+i}\nv_cndmask_b32 v16, v27, v16, vcc\nds_write_b32 v16, v{4+i} offset:1024")
    a("s_mov_b64 exec, s[34:35]\nK1_ns:\ns_waitcnt lgkmcnt(0)\ns_barrier")
    a("s_and_b32 s3, s2, 7\ns_lshl_b32 s3, s3, 5\ns_lshr_b32 s39, s2, 3\ns_add_u32 s3, s3, s39\ns_lshl_b32 s3, s3, 6")
    a(f"s_add_u32 s39, s3, {WS_PART}\ns_add_u32 s40, s3, {WS_PARTB}")
    a("v_lshrrev_b32 v16, 2, v0\nv_and_b32 v17, 3, v0\nv_lshlrev_b32 v17, 4, v17\nv_mov_b32 v18, " + str(PWS) + "\nv_mad_u32_u24 v17, v16, v18, v17\nv_and_b32 v18, 0xfffffffc, v0")
    a("ds_read_b128 v[4:7], v3 offset:1024\nds_read_b128 v[8:11], v3 offset:9216\nds_read_b32 v19, v18\nds_read_b32 v20, v18 offset:512")
    a(f"v_add_u32 v21, {128*PWS}, v17\nv_cmp_gt_u32 vcc, {784-512}, v0\ns_mov_b64 s[42:43], vcc")
    a("s_waitcnt lgkmcnt(3)\nbuffer_store_dwordx4 v[4:7], v17, s[28:31], s39 offen" + WT(2) + "\ns_waitcnt lgkmcnt(0)")
    a("v_cndmask_b32 v20, 0, v20, s[42:43]\nv_max_u32 v22, v19, v20\ns_mov_b64 exec, s[42:43]\ns_cbranch_execz K1_n2")
    a("buffer_store_dwordx4 v[8:11], v21, s[28:31], s39 offen" + WT(2) + "\nK1_n2:\ns_mov_b64 exec, -1")
    a("v_cmp_le_u32 vcc, 16, v22\ns_cbranch_vccz K1_nb")
    a(f"ds_read_b128 v[4:7], v3 offset:{1024+12544}\nds_read_b128 v[8:11], v3 offset:{1024+12544+8192}\ns_waitcnt lgkmcnt(0)")
    a("v_cmp_le_u32 vcc, 16, v19\ns_mov_b64 exec, vcc\ns_cbranch_execz K1_b1\nbuffer_store_dwordx4 v[4:7], v17, s[28:31], s40 offen\nK1_b1:\ns_mov_b64 exec, -1")
    a("v_cmp_le_u32 vcc, 16, v20\ns_mov_b64 exec, vcc\ns_cbranch_execz K1_b2\nbuffer_store_dwordx4 v[8:11], v21, s[28:31], s40 offen\nK1_b2:\ns_mov_b64 exec, -1")
    a("K1_nb:")
    a(f"v_cmp_lt_u32 vcc, 32, v22\ns_cmp_lg_u64 vcc, 0\ns_cselect_b32 s3, 1, 0\nv_mov_b32 v4, s3\ns_lshr_b32 s39, s39, 1\ns_and_b32 s39, s39, 0x1fe0\ns_lshl_b32 s3, s37, 2\ns_add_u32 s39, s39, s3\ns_add_u32 s39, s39, {WS_IRR}")
    a("s_mov_b64 exec, 1\nbuffer_store_dword v4, v2, s[28:31], s39 offen")
    a.st(2); a.st_out(0, 28, 's37', 10); a("s_endpgm")
    B = 32768
    a("K1_win:")
    a(f"s_sub_u32 s36, s2, {NCH}\ns_lshl_b32 s38, s36, 7\ns_waitcnt lgkmcnt(0)")
    a.srd(16, 4, N*256); a.srd(24, 10, N*2); a.srd(28, 14, WS_SIZE)
    a("v_lshlrev_b32 v3, 4, v25\ns_lshl_b32 s39, s36, 15\ns_lshl_b32 s40, s37, 12\ns_add_u32 s39, s39, s40")
    a("v_add_u32 v5, s38, v0\nv_lshlrev_b32 v6, 1, v5\ns_cmp_ge_u32 s37, 2\ns_cbranch_scc1 K1_w0\nbuffer_load_ushort v4, v6, s[24:27], 0 offen\nK1_w0:")
    for it in range(4): a(f"buffer_load_dwordx4 v[{32+4*it}:{35+4*it}], v3, s[16:19], s39 offen offset:{it*1024}")
    a(f"ds_write_b32 v1, v2 offset:{B}")
    levelpos(a, 36, 44, 45)
    for d, x in ((50, 44), (53, 45)):
        a(f"s_sub_u32 s48, s{x}, s46\ns_mul_i32 s49, s48, 43\ns_lshr_b32 s49, s49, 8\ns_mul_i32 s49, s49, 6\ns_cmp_ge_u32 s48, 84\ns_cselect_b32 s49, 84, s49\ns_cmp_ge_u32 s48, 91\ns_cselect_b32 s49, 91, s49")
        a(f"s_sub_u32 s48, s48, s49\ns_cmp_ge_u32 s48, 4\ns_cselect_b32 s{d+1}, 1, 2\ns_cselect_b32 s{d+2}, 4, 0\ns_cmp_eq_u32 s48, 6\ns_cselect_b32 s{d+1}, 0, s{d+1}\ns_cselect_b32 s{d+2}, 6, s{d+2}")
        a(f"s_sub_u32 s48, s48, s{d+2}\ns_sub_u32 s{d}, s{x}, s48\ns_lshl_b32 s{d}, s{d}, 6\ns_add_u32 s{d}, s{d}, s48")
    a("s_lshl_b32 s44, s44, 6\ns_lshl_b32 s45, s45, 6\ns_sub_u32 s45, s45, 64\ns_waitcnt lgkmcnt(0)\ns_barrier\ns_cmp_ge_u32 s37, 2\ns_cbranch_scc1 K1_w1\ns_waitcnt vmcnt(4)"); a.st(4)
    a("v_lshlrev_b32 v4, 16, v4\nv_mul_f32 v7, v4, v4\nv_rcp_f32 v7, v7\nv_rndne_f32 v7, v7\nv_cvt_u32_f32 v7, v7\nv_med3_u32 v7, v7, 1, 63")
    a(f"v_cmp_gt_u32 vcc, {N}, v5\nv_cndmask_b32 v7, 0, v7, vcc\nv_lshlrev_b32 v7, 2, v7\nds_add_rtn_u32 v8, v7, v24 offset:{B}\ns_waitcnt lgkmcnt(0)\nK1_w1:\ns_barrier")
    a("s_cmp_ge_u32 s37, 2\ns_cbranch_scc1 K1_w2")
    a(f"v_lshlrev_b32 v9, 2, v25\nds_read_b32 v20, v9 offset:{B}\ns_waitcnt lgkmcnt(0)\nv_mov_b32 v21, v20")
    a.scan_incl(21)
    a("v_sub_u32 v21, v21, v20\nds_bpermute_b32 v21, v7, v21\ns_waitcnt lgkmcnt(0)\nv_add_u32 v8, v8, v21")
    a(f"v_lshlrev_b32 v9, 2, v8\nds_write_b32 v1, v9 offset:{B+512}\nds_write_b32 v9, v4 offset:{B+1024}")
    a("v_mov_b32 v23, 1.0\nv_mov_b32 v10, s44\nv_mov_b32 v11, s45\nv_cmp_gt_u32 vcc, 64, v8\nv_cndmask_b32 v10, v11, v10, vcc\nv_add_u32 v10, v10, v8\nv_lshlrev_b32 v11, 2, v10")
    a(f"s_mov_b32 s3, {WS_NEWID}\nbuffer_store_short v10, v6, s[28:31], s3 offen\ns_mov_b32 s3, {WS_LOC}\nbuffer_store_short v8, v6, s[28:31], s3 offen")
    a("v_mov_b32 v14, s50\nv_mov_b32 v15, s53\nv_cndmask_b32 v14, v15, v14, vcc\nv_mov_b32 v15, s51\nv_mov_b32 v16, s54\nv_cndmask_b32 v15, v16, v15, vcc\nv_and_b32 v16, 63, v8\nv_lshlrev_b32 v16, v15, v16\nv_add_lshl_u32 v14, v14, v16, 2")
    a(f"s_mov_b32 s3, {WS_PERM}\nbuffer_store_dword v5, v14, s[28:31], s3 offen\nv_mul_f32 v12, v4, v4\nv_rcp_f32 v13, v4\nv_cmp_eq_f32 vcc, 0, v4\ns_mov_b32 s3, {WS_DISP}\nbuffer_store_dword v12, v11, s[28:31], s3 offen\nv_cndmask_b32 v13, v13, v23, vcc\ns_mov_b32 s3, {WS_SINV}\nbuffer_store_dword v13, v14, s[28:31], s3 offen")
    a("s_waitcnt lgkmcnt(0)\nK1_w2:\ns_barrier")
    a.st(1)
    a("v_lshrrev_b32 v9, 4, v25\nv_lshlrev_b32 v9, 2, v9\ns_lshl_b32 s3, s37, 6\nv_add_u32 v9, s3, v9\nv_and_b32 v12, 15, v25\nv_lshlrev_b32 v13, 4, v12\nv_lshlrev_b32 v12, 11, v12")
    for it in range(4): a(f"ds_read_b32 v{16+it}, v9 offset:{B+512+16*it}")
    a(f"v_and_b32 v14, 31, v25\nv_lshlrev_b32 v15, 4, v14\nds_read_b128 v[28:31], v15 offset:{B+1024}")
    for it in range(4):
        a(f"s_waitcnt lgkmcnt({4 if it == 0 else 4+3})" if False else "")
    a("s_waitcnt lgkmcnt(0)")
    for it in range(4):
        a(f"v_xor_b32 v{16+it}, v{16+it}, v13\nv_add_u32 v{16+it}, v{16+it}, v12")
    a("s_cmp_ge_u32 s37, 2\ns_cbranch_scc1 K1_w3\ns_waitcnt vmcnt(5)\ns_branch K1_w4\nK1_w3:\ns_waitcnt vmcnt(0)\nK1_w4:"); a.st(5)
    for it in range(4):
        for i in range(4): a(f"ds_write_b32 v{16+it}, v{32+4*it+i} offset:{i*512}")
    a("v_lshrrev_b32 v20, 5, v25\ns_lshl_b32 s3, s37, 5\nv_xor_b32 v21, s3, v15\nv_lshl_add_u32 v21, v20, 9, v21\ns_lshl_b32 s3, s37, 12\nv_add_u32 v21, s3, v21\nv_xor_b32 v22, 16, v21")
    a("v_mov_b32 v10, s44\nv_mov_b32 v11, s45\nv_cmp_gt_u32 vcc, 16, v14\nv_cndmask_b32 v10, v11, v10, vcc\nv_lshl_add_u32 v10, v14, 2, v10")
    a(f"s_mov_b32 s3, {GS}\nv_mul_lo_u32 v20, v20, s3\nv_lshl_add_u32 v10, v10, 2, v20")
    a(f"s_mul_i32 s42, s37, {8*GS}\ns_add_u32 s42, s42, {WS_G}")
    a("s_waitcnt lgkmcnt(0)\ns_barrier")
    a.st(2)
    for j in range(4): a(f"ds_read_b128 v[{32+4*j}:{35+4*j}], v{21 if j < 2 else 22} offset:{j*1024}")
    for j in range(4):
        a(f"s_waitcnt lgkmcnt({3-j})")
        for i in range(4):
            a(f"v_lshlrev_b32 v4, 16, v{32+4*j+i}\nv_and_b32 v5, 0xffff0000, v{32+4*j+i}\nv_mul_f32 v4, v{28+i}, v4\nv_mul_f32 v5, v{28+i}, v5\nv_cvt_pk_bf16_f32 v{48+4*(j&1)+i}, v4, v5")
        a(f"buffer_store_dwordx4 v[{48+4*(j&1)}:{51+4*(j&1)}], v10, s[28:31], s42 offen{WT(1)}")
        if j < 3: a(f"s_add_u32 s42, s42, {2*GS}")
    a.st(3); a.st_out(0, 28, 's37', 10)
    a("K1_end:\ns_endpgm")
    a.end(name, 56, 102 if OPT['stamp'] else 64)

L2_CNT = 0; L2_LU = 512; L2_BU = 1024; L2_LOC = 2048; L2_O = 2304; L2_L = 2304 + 16384; L2_NEW = L2_L + 16384; L2_SIZE = L2_NEW + 50176
def k2(a):
    name = 'p2_kernel'
    a.launch(name, NWIN + 2 + 8*OPT['tlb'], 1024, L2_SIZE)
    a.begin(name)
    a(f"s_cmp_ge_u32 s2, {NWIN+2+8*OPT['tlb']}\ns_cbranch_scc1 K2_xend")
    a.st_init()
    a("s_load_dwordx2 s[14:15], s[0:1], 88")
    a("v_lshrrev_b32 v1, 6, v0\nv_and_b32 v2, 63, v0\nv_readfirstlane_b32 s33, v1")
    a("s_waitcnt lgkmcnt(0)")
    a.srd(28, 14, WS_SIZE)
    if OPT['tlb']:
        a(f"s_cmp_lt_u32 s2, {NWIN+2}\ns_cbranch_scc1 K2_nt")
        a(f"v_lshlrev_b32 v3, 16, v0\ns_mov_b32 s34, {WS_TOK}\nbuffer_load_dword v4, v3, s[28:31], s34 offen\nv_lshlrev_b32 v3, 14, v0\ns_mov_b32 s34, {WS_G+KS}\nbuffer_load_dword v5, v3, s[28:31], s34 offen")
        a("s_load_dwordx2 s[4:5], s[0:1], 72\ns_waitcnt lgkmcnt(0)"); a.srd(8, 4, N*256)
        a("buffer_load_dword v6, v3, s[8:11], 0 offen\ns_waitcnt vmcnt(0)\ns_endpgm\nK2_nt:")
    a(f"s_cmp_ge_u32 s2, {NWIN}\ns_cbranch_scc1 K2_wts")
    k2_window(a)
    a("K2_wts:")
    k2_weights(a)
    a("K2_end:")
    if OPT['cpf'] & 2:
        a("s_cmp_eq_u32 s33, 15\ns_cbranch_scc0 K2_npf\ns_cmp_lt_u32 s2, 16\ns_cbranch_scc0 K2_npf\ns_mov_b64 exec, -1\nv_lshlrev_b32 v3, 2, v2"); a.codepf('hop_kernel', 'K3_end', 3, 4, 52); a("K2_npf:")
    a.st(13); a.st_out(1, 28, 's33', 10); a("K2_xend:\ns_endpgm")
    a.end(name, 128, 102)

def k2_window(a):
    Ev, NS, ND = 20, 24, 28
    MK = lambda j: f"s[{40+2*j}:{41+2*j}]"
    a(f"v_lshlrev_b32 v3, 4, v0\ns_mul_i32 s34, s2, {PWS}\ns_add_u32 s65, s34, {WS_PART}\nbuffer_load_dwordx4 v[{Ev}:{Ev+3}], v3, s[28:31], s65 offen")
    a(f"v_lshlrev_b32 v4, 3, v0\ns_mov_b32 s35, {WS_IRR}\nbuffer_load_dwordx2 v[6:7], v4, s[28:31], s35 offen")
    a("v_lshlrev_b32 v5, 4, v2")
    a(f"s_lshl_b32 s34, s33, 10\ns_add_u32 s35, s34, {WS_NEWID}\ns_add_u32 s34, s34, {L2_NEW}")
    for i in range(4):
        if i == 3: a("s_cmp_lg_u32 s33, 0\ns_cbranch_scc1 K2_nd")
        a(f"s_mov_b32 m0, s34\nbuffer_load_dwordx4 v5, s[28:31], s35 offen lds")
        if i < 3: a("s_add_u32 s34, s34, 16384\ns_add_u32 s35, s35, 16384")
    a(f"s_lshl_b32 s35, s2, 8\ns_add_u32 s35, s35, {WS_LOC}\ns_mov_b32 m0, {L2_LOC}\nv_lshlrev_b32 v8, 2, v2\nbuffer_load_dword v8, s[28:31], s35 offen lds")
    a("K2_nd:")
    a("v_lshlrev_b32 v8, 2, v0\nv_mov_b32 v10, 0\ns_cmp_ge_u32 s33, 8\ns_cbranch_scc1 K2_nz\ns_cmp_ge_u32 s33, 2\ns_cselect_b32 s35, -1, 0\nv_mov_b32 v9, s35\nds_write_b32 v8, v9\nK2_nz:")
    a("v_bfe_u32 v9, v0, 2, 5\nv_lshrrev_b32 v11, 7, v0\nv_lshl_add_u32 v9, v9, 3, v11")
    a(f"v_cmp_gt_u32 vcc, {NCH}, v9\ns_mov_b64 s[38:39], vcc\nv_mov_b32 v12, 1\nv_mov_b32 v13, 0xfc\ns_mov_b32 s64, 0\ns_mov_b32 s66, {L2_L}\ns_mov_b32 s67, 0")
    levelpos(a, 2, 60, 61)
    a("s_waitcnt vmcnt(0) lgkmcnt(0)\ns_barrier"); a.st(1)
    a("v_or_b32 v6, v6, v7\nv_cmp_ne_u32 vcc, 0, v6\ns_and_b64 vcc, vcc, s[38:39]\ns_cbranch_vccz K2_reg\nv_mov_b32 v6, 0x100\nds_write_b32 v10, v6\nK2_reg:")
    a("K2_loop:\ns_mov_b64 exec, s[38:39]")
    for j in range(4): a(f"v_cmp_ne_u32 {MK(j)}, -1, v{Ev+j}")
    for j in range(4):
        a(f"s_mov_b64 exec, {MK(j)}")
        a(f"v_lshlrev_b32_sdwa v15, 1, v{Ev+j} {SD} src1_sel:WORD_0\nv_lshrrev_b32 v16, 15, v{Ev+j}")
        a(f"ds_read_u16 v{ND+j}, v16 offset:{L2_LOC}\nds_read_u16 v{NS+j}, v15 offset:{L2_NEW}")
    a("s_waitcnt lgkmcnt(0)")
    for j in range(4):
        a(f"s_mov_b64 exec, {MK(j)}\nv_lshlrev_b32 v{ND+j}, 2, v{ND+j}\nds_add_rtn_u32 v{32+j}, v{ND+j}, v12 offset:{L2_CNT}")
        a(f"v_and_or_b32 v{36+j}, v{ND+j}, v13, s66\nv_lshrrev_b32 v16, 8, v{ND+j}\nv_lshl_add_u32 v{36+j}, v16, 13, v{36+j}")
    a("s_waitcnt lgkmcnt(0)")
    for j in range(4):
        a(f"s_mov_b64 exec, {MK(j)}")
        a(f"v_lshrrev_b32 v16, 1, v{32+j}\nv_lshl_add_u32 v15, v16, 8, v{36+j}\nv_and_b32 v16, 1, v{32+j}\nv_lshl_add_u32 v15, v16, 1, v15")
        a(f"v_cmp_gt_u32 vcc, 64, v{32+j}\ns_and_b64 exec, exec, vcc\nds_write_b16 v15, v{NS+j}")
    a(f"s_mov_b64 exec, -1\ns_cmp_lg_u32 s64, 0\ns_cbranch_scc1 K2_pa\nv_cndmask_b32 v15, 0, v12, {MK(3)}\ns_mov_b32 s64, 1")
    a(f"v_mov_b32_dpp v15, v15 quad_perm:[3,3,3,3] {DPPF}\nv_cmp_ne_u32 s[38:39], 0, v15\ns_cmp_eq_u64 s[38:39], 0\ns_cbranch_scc1 K2_pa")
    a(f"s_mov_b64 exec, s[38:39]\ns_add_u32 s65, s65, {WS_PARTB-WS_PART}\nbuffer_load_dwordx4 v[{Ev}:{Ev+3}], v3, s[28:31], s65 offen\ns_waitcnt vmcnt(0)\ns_branch K2_loop")
    a("K2_pa:\ns_waitcnt lgkmcnt(0)\ns_barrier"); a.st(2)
    a("s_lshr_b32 s34, s33, 3\ns_and_b32 s36, s33, 7\ns_lshl_b32 s35, s34, 8\nv_lshl_add_u32 v4, v2, 2, s35\nds_read_b32 v5, v4")
    a(f"s_lshl_b32 s37, s34, 13\ns_add_u32 s37, s37, {L2_L}\ns_lshr_b32 s46, s36, 1\ns_lshl_b32 s46, s46, 8\ns_and_b32 s47, s36, 1\ns_lshl_b32 s47, s47, 1\ns_add_u32 s46, s46, s47\ns_add_u32 s46, s46, s37\nv_lshl_add_u32 v16, v2, 2, s46")
    for t in range(4): a(f"ds_read_u16 v{20+t}, v16 offset:{t*1024}")
    a("s_waitcnt lgkmcnt(4)\nv_mov_b32 v6, v5\nv_mov_b32 v7, v5")
    for sft in (1, 2, 4, 8): a(f"v_max_u32_dpp v6, v6, v6 row_shr:{sft} {DPPF} bound_ctrl:0\nv_add_u32_dpp v7, v7, v7 row_shr:{sft} {DPPF} bound_ctrl:0")
    for bc, m in ((15, '0xa'), (31, '0xc')): a(f"v_max_u32_dpp v6, v6, v6 row_bcast:{bc} row_mask:{m} bank_mask:0xf\nv_add_u32_dpp v7, v7, v7 row_bcast:{bc} row_mask:{m} bank_mask:0xf")
    a("v_readlane_b32 s40, v6, 63\nv_readlane_b32 s41, v7, 63")
    a(f"s_mul_i32 s41, s41, {OPT['tal']}\ns_lshr_b32 s41, s41, 10\ns_add_u32 s41, s41, {OPT['tbe']}\ns_max_u32 s41, s41, s40\ns_add_u32 s41, s41, 3\ns_lshr_b32 s41, s41, 2\ns_min_u32 s41, s41, 16\ns_max_u32 s41, s41, 1")
    a("s_lshl_b32 s42, s41, 2\ns_min_u32 s42, s42, 32\ns_lshl_b64 s[44:45], -1, s42\ns_not_b32 s44, s44")
    a("s_cmp_eq_u32 s34, 0\ns_cselect_b32 s60, s60, s61")
    a("s_cmp_lg_u32 s36, 0\ns_cbranch_scc1 K2_ntq")
    a(f"s_cmp_gt_u32 s40, 64\ns_cselect_b32 s43, 0x10000, 0\ns_or_b32 s43, s43, s41\nv_mov_b32 v6, s43\ns_lshl_b32 s43, s60, 2\ns_add_u32 s43, s43, {WS_TQ}\ns_mov_b64 exec, 1")
    a("buffer_store_dword v6, v10, s[28:31], s43 offen\ns_mov_b64 exec, -1\nK2_ntq:")
    a("v_min_u32 v15, 32, v5\nv_subrev_u32 v15, s36, v15\nv_add_u32 v15, 7, v15\nv_lshrrev_b32 v15, 3, v15")
    a("s_lshl_b32 s46, s36, 2\nv_add_u32 v17, s46, v2\nv_and_b32 v17, 31, v17\nv_mul_u32_u24 v17, s42, v17\nv_lshrrev_b32 v17, 5, v17\nv_mov_b32 v18, -1\nv_lshlrev_b32 v17, v17, v18")
    a(f"s_lshl_b32 s46, s34, 9\ns_add_u32 s46, s46, {L2_BU}\nv_lshrrev_b32 v8, 5, v2\nv_lshlrev_b32 v8, 8, v8\nv_add_u32 v8, s46, v8")
    a(f"s_lshl_b32 s47, s34, 13\ns_add_u32 s47, s47, {L2_O}\nv_lshl_add_u32 v19, v2, 2, s47")
    a("v_mov_b32 v24, s44\nv_mov_b32 v26, -1\nv_mov_b32 v27, -1\nv_bfrev_b32 v40, 1\nv_mov_b32 v41, 0x7c\nv_mov_b32 v42, s44\ns_waitcnt lgkmcnt(0)")
    a("v_lshl_or_b32 v20, v21, 16, v20\nv_lshl_or_b32 v21, v23, 16, v22\nv_cmp_lt_u32 vcc, 0, v15")
    a("K2_rd:\ns_mov_b64 exec, vcc\ns_cbranch_execz K2_sd")
    a("v_and_b32 v28, v24, v26\nv_lshlrev_b32 v25, 2, v20\nv_and_b32 v31, v28, v17\nv_cmp_ne_u32 s[48:49], 0, v31\nv_cmp_ne_u32 s[52:53], 0, v28\nv_and_or_b32 v25, v25, v41, v8")
    a("v_cndmask_b32 v31, v28, v31, s[48:49]\nv_sub_u32 v32, 0, v31\nv_and_b32 v34, v31, v32\ns_mov_b64 s[50:51], 0\ns_andn2_b64 s[54:55], exec, s[52:53]\ns_cbranch_scc0 K2_l1")
    a("s_mov_b64 exec, s[54:55]\nv_and_b32 v29, v24, v27\nv_cmp_eq_u32 s[50:51], 0, v29\nv_add_u32 v25, 128, v25\nv_cndmask_b32 v29, v29, v24, s[50:51]\nv_ffbh_u32 v29, v29\nv_lshrrev_b32 v34, v29, v40\ns_mov_b64 exec, vcc\nK2_l1:")
    a(f"v_not_b32 v33, v34\nds_and_rtn_b32 v35, v4, v33 offset:{L2_LU}\nds_and_rtn_b32 v36, v25, v33\nv_ffbl_b32 v37, v34\nv_lshl_add_u32 v37, v37, 8, v19")
    a("s_waitcnt lgkmcnt(0)\nv_and_b32 v24, s44, v35\nv_and_b32 v35, v35, v34\nv_and_b32 v38, v36, v34\nv_cndmask_b32 v39, v38, v34, s[50:51]\nv_and_b32 v39, v39, v35\nv_cmp_ne_u32 s[48:49], 0, v39")
    a(f"s_andn2_b64 exec, exec, s[48:49]\nds_or_b32 v4, v35 offset:{L2_LU}\nds_or_b32 v25, v38\nv_cndmask_b32 v26, v26, v36, s[52:53]\nv_cndmask_b32 v27, v36, v27, s[52:53]")
    a("s_mov_b64 exec, s[48:49]\nds_write_b16 v37, v20\nv_and_b32 v24, v24, v33\nv_alignbit_b32 v20, v21, v20, 16\nv_lshrrev_b32 v21, 16, v21\nv_mov_b32 v26, -1\nv_mov_b32 v27, -1\nv_subrev_u32 v15, 1, v15")
    a("s_mov_b64 exec, vcc\nv_cmp_eq_u32 s[48:49], 0, v24\nv_cmp_lt_u32 vcc, 0, v15\ns_add_u32 s67, s67, 1\nv_cndmask_b32 v24, v24, v42, s[48:49]\ns_cmp_lt_u32 s67, 4096\ns_cbranch_scc1 K2_rd")
    a(f"v_mov_b32 v6, 0x10001\ns_lshl_b32 s43, s60, 2\ns_add_u32 s43, s43, {WS_TQ}\ns_mov_b64 exec, 1\nbuffer_store_dword v6, v10, s[28:31], s43 offen")
    a("K2_sd:\ns_mov_b64 exec, -1")
    if OPT['stamp'] in (1, 2): a("s_mov_b32 s82, s67")
    a("s_waitcnt lgkmcnt(0)\ns_barrier"); a.st(3)
    a("s_cmp_ge_u32 s36, s41\ns_cbranch_scc1 K2_end")
    a(f"s_lshl_b32 s46, s36, 10\nv_add_u32 v11, s46, v19\nv_and_b32 v18, 31, v2\nv_lshl_add_u32 v18, v18, 2, v8")
    a(f"ds_read_b32 v16, v4 offset:{L2_LU}\nds_read_b32 v18, v18\nds_read2st64_b32 v[20:21], v11 offset0:0 offset1:1\nds_read2st64_b32 v[22:23], v11 offset0:2 offset1:3")
    a(f"s_lshl_b32 s47, s36, 9\ns_add_u32 s37, s37, s47\nv_lshl_add_u32 v12, v2, 2, s37\nds_read2st64_b32 v[24:25], v12 offset0:16 offset1:17")
    a(f"v_mov_b32 v13, 0xffff\nv_lshlrev_b32 v15, 3, v2\ns_lshl_b32 s39, s60, 13\ns_add_u32 s39, s39, s47\ns_add_u32 s39, s39, {WS_IDX}\ns_lshl_b32 s38, s36, 2\ns_mov_b32 s50, -1\ns_mov_b32 s51, 0\ns_waitcnt lgkmcnt(3)")
    a("v_lshrrev_b32 v16, s38, v16\nv_lshrrev_b32 v18, s38, v18")
    for t in range(4):
        a(f"v_and_b32 v26, {1 << t}, v18\nv_cmp_ne_u32 s[{52+2*t}:{53+2*t}], 0, v26")
    for r in range(52, 60): a(f"s_ff1_i32_b32 s{r}, s{r}\ns_and_b32 s{r}, s{r}, 31\ns_add_u32 s{r}, s{r}, {ZB}")
    a("s_waitcnt lgkmcnt(0)")
    for t in range(4):
        a(f"v_mov_b32 v26, s{52+2*t}\nv_mov_b32 v27, s{53+2*t}\nv_cndmask_b32 v26, v27, v26, s[50:51]\nv_and_b32 v27, {1 << t}, v16\nv_cmp_ne_u32 vcc, 0, v27\nv_cndmask_b32 v{20+t}, v{20+t}, v26, vcc")
    a("v_and_b32 v20, v13, v20\nv_and_b32 v22, v13, v22\nv_lshl_or_b32 v20, v21, 17, v20\nv_lshl_or_b32 v21, v23, 17, v22\nbuffer_store_dwordx2 v[20:21], v15, s[28:31], s39 offen" + WT(4))
    a("s_add_u32 s36, s36, 8\ns_cmp_ge_u32 s36, s41\ns_cbranch_scc1 K2_end")
    a(f"v_mov_b32 v43, -1\ns_add_u32 s38, s38, 32\nv_subrev_u32 v5, s38, v5\nv_mov_b32 v14, {ZB | (ZB << 16)}")
    for h in range(2):
        a(f"v_cmp_lt_i32 vcc, {2*h}, v5\nv_cndmask_b32 v26, 0, v13, vcc\nv_cmp_lt_i32 vcc, {2*h+1}, v5\nv_cndmask_b32 v26, v26, v40, vcc".replace("v40", "v43"))
        a(f"v_bfi_b32 v{24+h}, v26, v{24+h}, v14\nv_and_b32 v26, 0xffff0000, v{24+h}\nv_add_u32 v{24+h}, v{24+h}, v26")
    a("s_add_u32 s39, s39, 4096\nbuffer_store_dwordx2 v[24:25], v15, s[28:31], s39 offen\ns_branch K2_end")

import math, struct
def f2u(x): return struct.unpack('<I', struct.pack('<f', x))[0]
SCL = f2u(math.log2(math.e)/math.sqrt(128.0))
WFR_E = 65536; WFR_SW = 73728
FO = lambda i: 16*(i & 1) + 4*(i >> 1)
def k2_weights(a):
    S0 = 66048
    a(f"s_sub_u32 s34, s2, {NWIN}")
    a("s_load_dwordx8 s[40:47], s[0:1], 32\ns_load_dwordx2 s[48:49], s[0:1], 64")
    a("s_lshr_b32 s35, s33, 2\ns_and_b32 s36, s33, 3\nv_and_b32 v3, 31, v2\nv_lshrrev_b32 v4, 5, v2")
    a("v_lshlrev_b32 v5, 2, v0\nv_mov_b32 v6, 0\nv_cmp_gt_u32 vcc, 512, v0\ns_and_saveexec_b64 s[50:51], vcc")
    a(f"v_add_u32 v5, {S0}, v5\nds_write_b32 v5, v6\ns_mov_b64 exec, s[50:51]")
    a("s_waitcnt lgkmcnt(0)\ns_cmp_eq_u32 s34, 0\ns_cselect_b32 s52, s40, s44\ns_cselect_b32 s53, s41, s45\ns_cselect_b32 s54, s42, s46\ns_cselect_b32 s55, s43, s47")
    a.srd(20, 52, 32768); a.srd(24, 54, 32768); a.srd(56, 48, 256)
    a("v_lshrrev_b32 v5, 4, v2\nv_and_b32 v6, 15, v2\ns_and_b32 s37, s33, 1\ns_lshl_b32 s37, s37, 3\nv_add_u32 v7, s37, v5\nv_xor_b32 v6, v6, v7")
    a("v_lshlrev_b32 v6, 4, v6\nv_lshl_add_u32 v6, v5, 8, v6\nv_xor_b32 v7, 64, v6\nv_lshlrev_b32 v8, 4, v2")
    a("s_lshl_b32 s39, s33, 11\ns_mov_b32 m0, s39\ns_cmp_eq_u32 s34, 0\ns_cselect_b64 s[60:61], -1, 0")
    a("buffer_load_dwordx4 v6, s[20:23], s39 offen lds\nbuffer_load_dwordx4 v7, s[20:23], s39 offen offset:1024 lds")
    a("v_cndmask_b32 v6, v8, v6, s[60:61]\nv_cndmask_b32 v7, v8, v7, s[60:61]\ns_add_u32 s62, s39, 32768\ns_mov_b32 m0, s62")
    a("buffer_load_dwordx4 v6, s[24:27], s39 offen lds\nbuffer_load_dwordx4 v7, s[24:27], s39 offen offset:1024 lds")
    a("v_lshlrev_b32 v7, 1, v0\nbuffer_load_ushort v8, v7, s[56:59], 0 offen")
    a("s_barrier")
    a("s_cmp_ge_u32 s33, 2\ns_cbranch_scc1 K2w_nw")
    a(f"v_lshlrev_b32 v7, 2, v0\nv_add_u32 v7, {S0}, v7\ns_waitcnt vmcnt(0)\nv_lshlrev_b32 v8, 16, v8\nds_write_b32 v7, v8\nK2w_nw:")
    a("v_and_b32 v5, 15, v3\nv_xor_b32 v5, v5, v4\nv_lshlrev_b32 v5, 4, v5\nv_lshl_add_u32 v5, v3, 8, v5\ns_lshl_b32 s37, s35, 13\ns_lshl_b32 s38, s36, 13\ns_add_u32 s38, s38, 32768")
    a("v_add_u32 v6, s37, v5\nv_add_u32 v7, s38, v5\ns_waitcnt vmcnt(0) lgkmcnt(0)\ns_barrier")
    for u in range(8): a(f"v_xor_b32 v8, {32*u}, v6\nds_read_b128 v[{16+4*u}:{19+4*u}], v8")
    a("s_cmp_eq_u32 s34, 0\ns_cbranch_scc0 K2w_b")
    for u in range(8): a(f"v_xor_b32 v8, {32*u}, v7\nds_read_b128 v[{48+4*u}:{51+4*u}], v8")
    a("s_branch K2w_mm\nK2w_b:")
    a(f"v_lshlrev_b32 v6, 11, v4\nv_lshl_add_u32 v6, v3, 1, v6\ns_lshl_b32 s39, s36, 6\ns_add_u32 s39, s39, 32768\nv_add_u32 v6, s39, v6")
    for u in range(8):
        for t in range(8):
            a(f"ds_read_u16 v{(96 if t&1 else 48)+4*u+t//2}, v6 offset:{(16*u+t)*256}")
    a("s_waitcnt lgkmcnt(0)")
    for i in range(32): a(f"v_lshl_or_b32 v{48+i}, v{96+i}, 16, v{48+i}")
    a("K2w_mm:\ns_waitcnt lgkmcnt(0)\ns_barrier"); a.st(1)
    for u in range(8): a(f"v_mfma_f32_32x32x16_bf16 v[80:95], v[{16+4*u}:{19+4*u}], v[{48+4*u}:{51+4*u}], {'0' if u == 0 else 'v[80:95]'}")
    a(f"s_mul_i32 s39, s35, {32*516}\ns_lshl_b32 s60, s36, 7\ns_add_u32 s39, s39, s60\nv_mul_u32_u24 v6, {4*516}, v4\nv_lshl_add_u32 v6, v3, 2, v6\nv_add_u32 v6, s39, v6")
    a(f"s_add_u32 s60, s60, {S0}\nv_lshl_add_u32 v7, v3, 2, s60\nds_read_b32 v8, v7")
    a.st(4)
    if OPT['stamp'] in (1, 2): a("v_mov_b32 v12, v95")
    a.st(5)
    for r in range(16): a(f"ds_write_b32 v6, v{80+r} offset:{(8*(r>>2)+(r&3))*516}")
    a.st(2)
    a("v_add_f32 v9, v80, v81")
    for r in range(2, 16): a(f"v_add_f32 v9, v9, v{80+r}")
    a("ds_add_f32 v7, v9 offset:1536\ns_waitcnt lgkmcnt(1)")
    a.st(6)
    for r in range(16): a(f"v_mul_f32 v{48+r}, v8, v{80+r}")
    for q in (80, 48):
        for i in range(8): a(f"v_add_f32_dpp v{q+i}, v{q+i}, v{q+i} row_ror:8 row_mask:0xf bank_mask:0x3")
        for i in range(8): a(f"v_add_f32_dpp v{q+i}, v{q+8+i}, v{q+8+i} row_ror:8 row_mask:0xf bank_mask:0xc")
        for i in range(4): a(f"v_add_f32_dpp v{q+i}, v{q+i}, v{q+i} row_half_mirror row_mask:0xf bank_mask:0x5")
        for i in range(4): a(f"v_add_f32_dpp v{q+i}, v{q+4+i}, v{q+4+i} row_half_mirror row_mask:0xf bank_mask:0xa")
        for i in range(4): a(f"v_add_f32_dpp v{q+i}, v{q+i}, v{q+i} quad_perm:[1,0,3,2] {DPPF}")
        for i in range(4): a(f"v_add_f32_dpp v{q+i}, v{q+i}, v{q+i} quad_perm:[2,3,0,1] {DPPF}")
        a(f"v_permlane16_swap_b32 v{q}, v{q+1}\nv_permlane16_swap_b32 v{q+2}, v{q+3}\nv_add_f32 v{q}, v{q}, v{q+1}\nv_add_f32 v{q+2}, v{q+2}, v{q+3}")
    a.st(7)
    a(f"v_bfe_u32 v10, v2, 2, 2\nv_lshlrev_b32 v10, 5, v10\nv_bfe_u32 v11, v2, 4, 1\nv_lshl_add_u32 v10, v11, 2, v10\nv_lshl_add_u32 v10, v4, 4, v10\ns_lshl_b32 s60, s35, 7\ns_add_u32 s60, s60, {S0}\nv_add_u32 v10, s60, v10")
    a("s_mov_b32 exec_lo, 0x11111111\ns_mov_b32 exec_hi, 0x11111111\nds_add_f32 v10, v80 offset:512\nds_add_f32 v10, v82 offset:520\nds_add_f32 v10, v48 offset:1024\nds_add_f32 v10, v50 offset:1032\ns_mov_b64 exec, -1")
    a("s_waitcnt lgkmcnt(0)"); a.st(8); a("s_barrier"); a.st(3)
    a(f"v_lshlrev_b32 v5, 3, v2\nv_add_u32 v5, {S0}, v5\nds_read_b64 v[8:9], v5\nds_read_b64 v[10:11], v5 offset:512\nds_read_b64 v[12:13], v5 offset:1024\ns_waitcnt lgkmcnt(0)")
    a("v_add_f32 v8, v8, v9\nv_add_f32 v10, v10, v11\nv_add_f32 v12, v12, v13")
    for v in (8, 10, 12): a.red63('v_add_f32', v)
    a("v_readlane_b32 s60, v8, 63\nv_readlane_b32 s61, v10, 63\nv_readlane_b32 s62, v12, 63")
    a(f"s_mov_b32 s63, {f2u(1/128.)}\ns_mov_b32 s64, {f2u(-1/128.)}\ns_mov_b32 s65, {SCL}\nv_lshlrev_b32 v15, 4, v2")
    a(f"s_lshl_b32 s66, s33, 11\ns_lshl_b32 s67, s34, 15\ns_add_u32 s66, s66, s67\ns_add_u32 s66, s66, {WS_WFR}")
    a("s_lshr_b32 s35, s33, 2\ns_and_b32 s36, s33, 3\ns_lshl_b32 s36, s36, 1")
    a("s_cmp_eq_u32 s34, 0\ns_cbranch_scc0 K2w_fb")
    a("v_and_b32 v5, 1, v3\nv_lshrrev_b32 v6, 2, v3\nv_lshl_or_b32 v5, v6, 1, v5\nv_bfe_u32 v6, v3, 1, 1\nv_lshl_or_b32 v5, v6, 4, v5")
    a("s_lshl_b32 s37, s35, 5\nv_add_u32 v5, s37, v5")
    a(f"v_lshlrev_b32 v7, 2, v5\nv_add_u32 v7, {S0}, v7\nds_read_b32 v14, v7 offset:512")
    a(f"s_lshl_b32 s37, s36, 6\nv_lshl_add_u32 v6, v4, 3, s37\nv_mul_u32_u24 v5, 516, v5\nv_add_u32 v5, v5, v6\nv_add_u32 v6, {S0+1536}, v6")
    for h in range(2):
        for i in range(4):
            a(f"ds_read2_b32 v[{16+16*h+2*i}:{17+16*h+2*i}], v5 offset0:{8*h+FO(i)} offset1:{8*h+FO(i)+1}")
            a(f"ds_read2_b32 v[{24+16*h+2*i}:{25+16*h+2*i}], v6 offset0:{8*h+FO(i)} offset1:{8*h+FO(i)+1}")
    a("v_mov_b32 v8, s61\nv_mul_f32 v8, s63, v8\ns_waitcnt lgkmcnt(0)\nv_sub_f32 v14, v8, v14\nv_mul_f32 v14, s63, v14")
    for h in range(2):
        for j in range(8):
            x = 16+16*h+j
            a(f"v_add_f32 v{x}, v{x}, v14\nv_fmac_f32 v{x}, s64, v{x+8}\nv_mul_f32 v{x}, s65, v{x}")
        for i in range(4): a(f"v_cvt_pk_bf16_f32 v{48+4*h+i}, v{16+16*h+2*i}, v{17+16*h+2*i}")
        a(f"buffer_store_dwordx4 v[{48+4*h}:{51+4*h}], v15, s[28:31], s66 offen offset:{1024*h}")
    a("s_branch K2_end\nK2w_fb:")
    a("s_lshr_b32 s37, s35, 1\ns_lshl_b32 s37, s37, 8\ns_and_b32 s38, s35, 1\ns_lshl_b32 s38, s38, 2\ns_add_u32 s37, s37, s38\nv_lshl_add_u32 v5, v3, 3, s37")
    a(f"v_add_u32 v7, {S0+1536}, v5\nds_read_b32 v14, v7")
    a(f"s_mul_i32 s37, s36, {16*516}\nv_mul_u32_u24 v6, {2*516}, v4\nv_add3_u32 v5, v5, v6, s37")
    for h in range(2):
        for i in range(4):
            for c in range(2): a(f"ds_read_b32 v{16+8*h+2*i+c}, v5 offset:{(8*h+FO(i)+c)*516}")
    a("s_waitcnt lgkmcnt(0)")
    for h in range(2):
        for j in range(8): a(f"v_fmac_f32 v{16+8*h+j}, s64, v14")
        for i in range(4): a(f"v_cvt_pk_bf16_f32 v{48+4*h+i}, v{16+8*h+2*i}, v{17+8*h+2*i}")
        a(f"buffer_store_dwordx4 v[{48+4*h}:{51+4*h}], v15, s[28:31], s66 offen offset:{1024*h}")
    a("s_cmp_ge_u32 s33, 8\ns_cbranch_scc1 K2_end")
    a("v_and_b32 v5, 3, v2\nv_lshrrev_b32 v6, 5, v2\nv_max_u32 v7, 1, v5\nv_lshlrev_b32 v7, 9, v7\nv_lshl_add_u32 v7, v6, 3, v7")
    a(f"s_lshr_b32 s37, s33, 1\ns_lshl_b32 s37, s37, 7\ns_and_b32 s38, s33, 1\ns_lshl_b32 s38, s38, 5\ns_add_u32 s37, s37, s38\ns_add_u32 s37, s37, {S0-512}\nv_add_u32 v7, s37, v7")
    for i in range(4): a(f"ds_read2_b32 v[{16+2*i}:{17+2*i}], v7 offset0:{FO(i)} offset1:{FO(i)+1}")
    a("v_mov_b32 v8, s61\nv_mov_b32 v9, s62\nv_cmp_eq_u32 s[40:41], 2, v5\nv_cmp_eq_u32 s[42:43], 3, v5\nv_cmp_eq_u32 s[44:45], 0, v5")
    a("v_cndmask_b32 v8, 0, v8, s[40:41]\nv_cndmask_b32 v8, v8, v9, s[42:43]")
    a("v_lshrrev_b32 v10, 2, v2\nv_lshrrev_b32 v11, 4, v2\nv_xor_b32 v10, v10, v11\nv_and_b32 v10, 1, v10\nv_cmp_eq_u32 s[46:47], 0, v10\ns_waitcnt lgkmcnt(0)")
    for j in range(8): a(f"v_fmac_f32 v{16+j}, s64, v8\nv_cndmask_b32 v{16+j}, v{16+j}, 1.0, s[44:45]\nv_cndmask_b32 v{16+j}, 0, v{16+j}, s[46:47]")
    for i in range(4): a(f"v_cvt_pk_bf16_f32 v{48+i}, v{16+2*i}, v{17+2*i}")
    a(f"s_lshl_b32 s37, s33, 10\ns_add_u32 s37, s37, {WS_WFR+WFR_E}\nbuffer_store_dwordx4 v[48:51], v15, s[28:31], s37 offen")
    a(f"v_mov_b32 v8, s60\ns_mov_b32 s37, {WS_WFR+WFR_SW}\ns_mov_b64 exec, 1\nbuffer_store_dword v8, v15, s[28:31], s37 offen")


NQ = 44; DEP = 2; NBUF = 3
QB = QN*4
L3_SIZE = GS + 64
ACC, AOP, ADR, BUF, TMP, GK, DIS, IDX = 2, 6, 8, 12, 24, 26, 33, 40
SPIN = 1 << 20
TSC = lambda: ('', ' nt', ' sc1', ' sc0 sc1', ' sc0', ' sc1 nt')[OPT['tsc']]
XP = 5
def k3(a):
    name = 'hop_kernel'
    a.launch(name, 256, 1024, L3_SIZE)
    a.begin(name)
    a("s_cmp_ge_u32 s2, 256\ns_cbranch_scc1 K3_end")
    a.st_init()
    a("s_load_dwordx2 s[4:5], s[0:1], 88")
    a("v_lshrrev_b32 v4, 6, v0\nv_and_b32 v5, 63, v0\nv_readfirstlane_b32 s19, v4")
    a("s_lshr_b32 s16, s2, 3\ns_and_b32 s16, s16, 3\ns_and_b32 s17, s2, 7\ns_lshl_b32 s17, s17, 3\ns_lshr_b32 s18, s2, 5\ns_or_b32 s18, s18, s17")
    a("s_mul_i32 s20, s19, 6\ns_cmp_eq_u32 s19, 15\ns_cselect_b32 s20, 91, s20\ns_cmp_ge_u32 s19, 14\ns_cselect_b32 s21, 7, 6")
    a("s_mul_i32 s48, s16, 98\ns_add_u32 s48, s48, s20")
    a("v_lshlrev_b32 v0, 2, v5\nv_lshlrev_b32 v8, 4, v5\nv_lshlrev_b32 v9, 3, v5")
    a("s_waitcnt lgkmcnt(0)")
    a.srd(8, 4, WS_SIZE)
    a(f"s_lshl_b32 s49, s48, 2\ns_add_u32 s49, s49, {WS_TQ}\ns_buffer_load_dwordx8 s[40:47], s[8:11], s49")
    a("s_getreg_b32 s50, hwreg(HW_REG_XCC_ID)\ns_and_b32 s50, s50, 0xff\ns_add_u32 s50, s50, 1")
    a(f"s_mul_i32 s51, s18, {FGS}\ns_add_u32 s51, s51, {WS_FLAGS}\ns_cmp_lg_u32 s19, 0\ns_cbranch_scc1 K3_nox")
    a(f"s_lshl_b32 s52, s16, 2\ns_add_u32 s52, s52, s51\nv_mov_b32 v4, s50\nv_mov_b32 v6, 0\nv_mov_b32 v7, {GS}\ns_mov_b64 exec, 1")
    a("buffer_store_dword v4, v0, s[8:11], s52 offen offset:2048 sc1\nds_write_b32 v7, v6\ns_mov_b64 exec, -1\nK3_nox:")
    a(f"s_mul_i32 s39, s18, {GS}\ns_add_u32 s39, s39, {WS_G}")
    a("s_lshl_b32 s52, s19, 10\ns_add_u32 s53, s52, s39")
    for i in range(7):
        if i == 6: a("s_cmp_ge_u32 s19, 2\ns_cbranch_scc1 K3_nt")
        a("s_mov_b32 m0, s52\nbuffer_load_dwordx4 v8, s[8:11], s53 offen lds")
        if i < 6: a("s_add_u32 s52, s52, 16384\ns_add_u32 s53, s53, 16384")
    a("K3_nt:")
    a(f"s_lshl_b32 s52, s48, 8\ns_add_u32 s52, s52, {WS_DISP}")
    for i in range(7): a(f"buffer_load_dword v{DIS+i}, v0, s[8:11], s52 offen offset:{i*256}")
    a("s_waitcnt lgkmcnt(0)")
    a("s_cmp_eq_u32 s21, 7\ns_cselect_b32 s46, s46, 0")
    for i in range(1, 7): a(f"s_add_u32 s{40+i}, s{40+i}, s{39+i}")
    a(f"s_min_u32 s47, s46, {NQ}")
    a(f"s_sub_u32 s28, s47, {DEP+1}\ns_mov_b64 s[32:33], 0")
    for i in range(7): a(f"s_sub_u32 s{40+i}, s{40+i}, 1\ns_bitset1_b64 s[32:33], s{40+i}")
    a("s_add_u32 s52, s28, 1\ns_lshr_b64 s[34:35], s[32:33], s52\ns_mov_b64 s[24:25], s[32:33]\ns_bitset1_b64 s[24:25], s28")
    a(f"s_lshl_b32 s52, s48, 13\ns_add_u32 s52, s52, {WS_IDX}\ns_add_u32 s53, s52, 8192")
    for p in range(NQ):
        if OPT['exp'] & 8192:
            if p % 2 == 0: a(f"buffer_load_dwordx4 v[{IDX+2*p}:{IDX+2*p+3}], v8, s[8:11], s52 offen")
            else: a(f"s_mov_b64 exec, 1\nbuffer_load_dword v{TMP+1}, v0, s[8:11], s49 offen\ns_mov_b64 exec, -1")
        else: a(f"buffer_load_dwordx2 v[{IDX+2*p}:{IDX+2*p+1}], v9, s[8:11], s52 offen")
        if p == NQ-1: break
        if p == XP: a(f"s_waitcnt vmcnt({XP+1})"); a.st(2); a("s_barrier"); a.st(3)
        if p == XP:
            a("s_lshl_b32 m0, s48, 8")
            for i in range(7): a(f"ds_read_addtid_b32 v{GK+i} offset:{i*256}")
        if p == XP: a(f"buffer_load_dword v{TMP}, v0, s[8:11], s51 offen offset:2048 sc1")
        a(f"s_add_u32 s52, s52, 512\ns_bitcmp1_b64 s[32:33], {p}\ns_cselect_b32 s52, s53, s52\ns_cselect_b32 s54, 8192, 0\ns_add_u32 s53, s53, s54")
        if p >= 5: a(f"s_cmp_le_u32 s47, {p+1}\ns_cbranch_scc1 K3_ld{p+1}")
    a("s_branch K3_ld")
    for p in range(6, NQ):
        a(f"K3_ld{p}:\ns_mov_b64 exec, 1\nbuffer_load_dword v{IDX+2*p}, v0, s[8:11], s49 offen")
    a("s_mov_b64 exec, -1\nK3_ld:"); a.st(1)
    tb = 32; lb = 2; TBS_ = TOS
    a(f"v_lshrrev_b32 v1, {1+lb}, v5\nv_mul_u32_u24 v1, {TBS_}, v1\nv_and_b32 v4, {(2 << lb)-1}, v5\nv_lshl_add_u32 v1, v4, 4, v1\nv_and_b32 v4, 3, v5")
    a(f"v_cmp_eq_u32 s[54:55], 0, v4\nv_cmp_eq_u32 s[56:57], 1, v4\nv_mov_b32 v2, 0x3f80\nv_mov_b32 v3, 0x3f800000")
    a(f"v_cndmask_b32 v{AOP}, 0, v2, s[54:55]\nv_cndmask_b32 v{AOP}, v{AOP}, v3, s[56:57]\nv_mov_b32 v{AOP+1}, v{AOP}")
    for i in range(4): a(f"v_mov_b32 v{ACC+i}, 0")
    a("s_lshl_b32 s52, s19, 7\ns_add_u32 s65, s52, s51")
    a("s_lshl_b32 s58, s16, 2\ns_add_u32 s58, s58, s65")
    a(f"s_lshl_b32 s59, s20, 8\ns_mul_i32 s60, s16, {QB}\ns_add_u32 s60, s60, s59")
    a(f"s_mul_i32 s61, s48, {(64//tb)*TBS_}\ns_lshl_b32 s52, s18, {5+lb}\ns_add_u32 s61, s61, s52\ns_add_u32 s61, s61, {WS_TOK}")
    for r in range(1, 4): a(f"s_add_u32 s52, s16, {r}\ns_and_b32 s52, s52, 3\ns_mul_i32 s52, s52, {QB}\ns_add_u32 s{65+r}, s52, s59")
    a(f"s_mov_b32 s22, 1\ns_mov_b32 s64, 0")
    def ad1(p, h):
        r = IDX+2*p+(h >> 1)
        a(f"v_lshrrev_b32 v{ADR+h}, 15, v{r}" if h & 1 else f"v_lshlrev_b32_sdwa v{ADR+h}, 2, v{r} {SD} src1_sel:WORD_0")
    def adr(p):
        for h in range(4): ad1(p, h)
    def rd(p):
        for h in range(4): a(f"ds_read_b32 v{BUF+4*(p%NBUF)+h}, v{ADR+h}")
    def mf(p, h):
        b = BUF+4*(p%NBUF)+2*h
        if OPT['exp'] & 2: return
        a(f"v_mfma_f32_4x4x4_16b_bf16 v[{ACC}:{ACC+3}], v[{AOP}:{AOP+1}], v[{b}:{b+1}], v[{ACC}:{ACC+3}]")
    def vw(p):
        if p % 4 == 0 and p > XP: a(f"s_waitcnt vmcnt({max(NQ-4-p, 0)})")
    CALL = "s_swappc_b64 s[30:31], s[26:27]"
    T0, T1 = TMP, TMP+1
    a(f"s_mov_b64 exec, 15\ns_waitcnt vmcnt({NQ-8})\nK3_xp:\nv_cmp_eq_u32 vcc, 0, v{TMP}\ns_cbranch_vccz K3_xb\ns_add_u32 s64, s64, 1\ns_cmp_gt_u32 s64, {SPIN}\ns_cbranch_scc1 K3_xb")
    a(f"buffer_load_dword v{TMP}, v0, s[8:11], s51 offen offset:2048 sc1\ns_waitcnt vmcnt(0)\ns_branch K3_xp\nK3_xb:")
    a(f"v_cmp_ne_u32 vcc, s50, v{TMP}\ns_cmp_lg_u64 vcc, 0\ns_cselect_b32 s23, 1, 0\ns_mov_b64 exec, -1")
    a("s_getpc_b64 s[40:41]\nK3_pc:\ns_add_u32 s40, s40, K3_fl0_0-K3_pc\ns_addc_u32 s41, s41, 0\ns_mul_i32 s42, s23, K3_fl1_0-K3_fl0_0\ns_mov_b32 s43, K3_fl2_0-K3_fl0_0")
    a(f"s_add_u32 s45, s39, {KS}\ns_mov_b32 s63, 0x07060302\ns_waitcnt lgkmcnt(0)")
    if OPT['exp'] & 4:
        a("s_waitcnt vmcnt(0)\nv_lshrrev_b32 v24, 2, v0\nv_lshl_or_b32 v24, v24, 17, v24")
        for p in range(2*NQ): a(f"v_add_u32 v{IDX+p}, {(p*64) | (p*64+64*99) << 17}, v24")
    a("K3_hop:")
    a(f"s_mov_b32 s52, s39\ns_mov_b32 s39, s45\ns_add_u32 s53, s39, {KS}\ns_cmp_eq_u32 s22, 1\ns_cselect_b32 s52, s53, s52\ns_cmp_eq_u32 s23, 0\ns_cselect_b32 s45, s52, s53")
    a(f"s_add_u32 s61, s61, {tb*256}\ns_add_u32 s37, s39, s60\ns_add_u32 s36, s45, s60\ns_mov_b32 s35, 0\ns_bfe_u32 s46, s22, 0x10001\ns_xor_b32 s47, s46, 1\ns_lshl_b32 s47, s47, 16\ns_sub_u32 s62, 0, s46")
    a("s_cmp_eq_u32 s22, 7\ns_cselect_b32 s42, s43, s42\ns_add_u32 s26, s40, s42\ns_addc_u32 s27, s41, 0")
    if OPT['prio'] == 1: a("s_cmp_ge_u32 s19, 8\ns_cbranch_scc1 K3_p2\ns_setprio 3\ns_branch K3_p3\nK3_p2:\ns_setprio 2\nK3_p3:")
    if OPT['prio'] == 2: a("s_setprio 3")
    if OPT['prio'] == 3: a("s_setprio 1")
    for p in range(DEP): adr(p); rd(p)
    adr(DEP)
    if OPT['wb']: a(f"s_cmp_lg_u32 s19, 0\ns_cbranch_scc1 K3_nwb\ns_cmp_ge_u32 s2, 8\ns_cbranch_scc1 K3_nwb\ns_bitcmp1_b32 {OPT['wb']}, s22\ns_cbranch_scc0 K3_nwb\nbuffer_wbl2 sc1\nK3_nwb:")
    def tok(part):
        if OPT['exp'] & 8: return
        if part == 0: a(f"buffer_store_dwordx4 v[{GK}:{GK+3}], v1, s[8:11], s38 offen{TSC()}")
        if part == 1:
            a(f"v_lshrrev_b32 v{T0}, {4+lb}, v0\nv_mul_u32_u24 v{T0}, {TBS_}, v{T0}\nv_and_b32 v{T1}, {(16 << lb)-4}, v0\nv_lshl_add_u32 v{T0}, v{T1}, 1, v{T0}\ns_add_u32 s38, s38, {(256//tb)*TBS_}")
            a(f"buffer_store_dwordx2 v[{GK+4}:{GK+5}], v{T0}, s[8:11], s38 offen{TSC()}")
        if part == 2:
            l = a.lab('K3_t')
            a(f"s_cmp_eq_u32 s21, 7\ns_cbranch_scc0 {l}\nv_lshrrev_b32 v{T0}, {5+lb}, v0\nv_mul_u32_u24 v{T0}, {TBS_}, v{T0}\nv_and_b32 v{T1}, {(32 << lb)-4}, v0\nv_add_u32 v{T0}, v{T0}, v{T1}\ns_add_u32 s38, s38, {(128//tb)*TBS_}")
            a(f"buffer_store_dword v{GK+6}, v{T0}, s[8:11], s38 offen{TSC()}\n{l}:")
    a(f"s_sub_u32 s38, s61, {tb*256}"); tok(0)
    if OPT['cpf'] & 4:
        a("s_cmp_eq_u32 s22, 7\ns_cbranch_scc0 K3_npf\ns_cmp_eq_u32 s19, 0\ns_cbranch_scc0 K3_npf"); a.codepf('att_kernel', 'K4_end', 0, T0, 52); a("s_waitcnt vmcnt(0)\nK3_npf:")
    for p in range(NQ-DEP):
        rd(p+DEP); a(f"s_waitcnt lgkmcnt({4*DEP})"); mf(p, 0)
        if p+DEP+1 < NQ:
            vw(p+DEP+1)
            ad1(p+DEP+1, 0); ad1(p+DEP+1, 1); mf(p, 1); ad1(p+DEP+1, 2); ad1(p+DEP+1, 3)
        else: mf(p, 1)
        if OPT['prio'] == 2 and p in (9, 18, 27): a(f"s_setprio {2 - (9, 18, 27).index(p)}")
        if OPT['prio'] == 1 and p in (11, 23): a(f"s_cmp_ge_u32 s19, 8\ns_cbranch_scc0 K3_q{p}\ns_setprio {1 if p == 11 else 0}\nK3_q{p}:")
        a(f"s_bitcmp1_b64 s[24:25], {p}\ns_cbranch_scc1 K3_st{p}\nK3_bk{p}:")
    a("s_endpgm")
    for p in range(NQ-DEP):
        a(f"K3_st{p}:\ns_bitcmp1_b64 s[32:33], {p}\ns_cbranch_scc0 K3_nf{p}\n{CALL}\nK3_nf{p}:")
        a(f"s_cmp_eq_u32 s28, {p}\ns_cbranch_scc1 K3_dr{(p+1)%NBUF}\ns_branch K3_bk{p}")
    for r in range(NBUF):
        a(f"K3_dr{r}:")
        for i in range(DEP):
            a(f"s_waitcnt lgkmcnt({4*(DEP-1-i)})"); mf(r+i, 0); mf(r+i, 1)
            if i < DEP-1: a(f"s_bitcmp1_b32 s34, {i}\ns_cbranch_scc0 K3_dn{r}_{i}\n{CALL}\nK3_dn{r}_{i}:")
            else: a(f"{CALL}\ns_branch K3_hend")
    for m in range(3):
        for l in range(7):
            tg = m == 0 and OPT['px']; sc = ' sc1' if m else ''
            a(f".p2align 7\nK3_fl{m}_{l}:\ns_add_u32 s26, s26, 128\ns_addc_u32 s27, s27, 0")
            if tg and l >= 5:
                a(f"s_cmp_eq_u32 s22, 1\ns_cbranch_scc0 K3_nz{l}\ns_waitcnt vmcnt(0)\nK3_nz{l}:")
            if l in (1, 2): tok(l)
            a(f"v_mul_f32 v{T0}, v{DIS+l}, v{ACC}\nv_mul_f32 v{T1}, v{DIS+l}, v{ACC+1}\nv_mov_b64 v[{ACC}:{ACC+1}], 0")
            if tg: a(f"v_add_u32 v{T0}, s47, v{T0}\nv_cvt_pk_bf16_f32 v{T1}, v{T1}, v{T1}\nv_perm_b32 v{T0}, v{T1}, v{T0}, s63\nv_bfi_b32 v{GK+l}, 1, s46, v{T0}")
            else: a(f"v_cvt_pk_bf16_f32 v{GK+l}, v{T0}, v{T1}")
            if m < 2 and l == 3: a(f"v_lshlrev_b32 v{T0}, 2, v0\nbuffer_store_dwordx4 v[{GK}:{GK+3}], v{T0}, s[8:11], s37 offen{sc}")
            if m < 2 and l == 5: a(f"v_lshlrev_b32 v{T0}, 1, v0\nbuffer_store_dwordx2 v[{GK+4}:{GK+5}], v{T0}, s[8:11], s37 offen offset:1024{sc}")
            if m < 2 and l == 6: a(f"buffer_store_dword v{GK+6}, v0, s[8:11], s37 offen offset:1536{sc}")
            if tg and l in (0, 4):
                a(f"s_cmp_eq_u32 s22, 1\ns_cbranch_scc0 K3_nc{l}\nv_mov_b32 v{T1}, 0")
                for x in ((0, 1, 2), (3, 4, 5, 6))[l >> 2]:
                    if x == 6: a(f"s_cmp_eq_u32 s21, 7\ns_cselect_b32 s36, s36, {WS_SIZE}")
                    a(f"buffer_store_dword v{T1}, v0, s[8:11], s36 offen offset:{x*256}")
                a(f"K3_nc{l}:")
            a("s_setpc_b64 s[30:31]")
            a(f".if (. - K3_fl{m}_{l}) > 128\n.error \"flush too long\"\n.endif")
    a("K3_hend:"); a.st(4)
    if OPT['stamp'] in (1, 2): a("s_cmp_eq_u32 s22, 1\ns_cselect_b32 s80, s74, s80\ns_cselect_b32 s74, 0, s74\ns_cmp_eq_u32 s22, 4\ns_cselect_b32 s82, s84, s82")
    a("s_cmp_eq_u32 s22, 7\ns_cbranch_scc1 K3_fin")
    if OPT['prio']: a(f"s_setprio {OPT['wprio']}")
    a(f"v_mov_b32 v{T0}, s22\nv_mov_b32 v{T1}, 1\nv_mov_b32 v{ACC}, {GS}\ns_mov_b64 exec, 1\nds_add_u32 v{ACC}, v{T1}")
    if OPT['px']: a("s_cmp_gt_u32 s22, 1\ns_cselect_b32 s52, s23, 1\ns_cmp_eq_u32 s52, 0\ns_cbranch_scc1 K3_px")
    a("s_waitcnt vmcnt(0)"); a.st(5)
    a("s_cmp_eq_u32 s23, 0\ns_cbranch_scc0 K3_g1")
    a(f"buffer_store_dword v{T0}, v0, s[8:11], s58 offen\ns_branch K3_g2\nK3_g1:\nbuffer_store_dword v{T0}, v0, s[8:11], s58 offen sc1\nK3_g2:")
    a(f"s_mov_b64 exec, 15")
    NPL = OPT['npl']
    PL = lambda i: f"buffer_load_dword v{BUF+i}, v0, s[8:11], s65 offen sc1"
    for i in range(NPL-1): a(PL(i) + f"\ns_sleep {OPT['slg']}")
    a(f"K3_poll:\ns_add_u32 s64, s64, 1\ns_cmp_gt_u32 s64, {SPIN}\ns_cbranch_scc1 K3_pb")
    for i in range(NPL):
        a(PL((i+NPL-1) % NPL) + f"\ns_waitcnt vmcnt({NPL-1})\nv_cmp_gt_u32 vcc, s22, v{BUF+i}\ns_cbranch_vccz K3_pb\ns_sleep {OPT['slg']}")
    a("s_branch K3_poll\nK3_pb:")
    X = AOP+1; AR = (14, 18, 2); B1 = (22, 23, T1)
    a("s_mov_b32 s35, 2")
    a(f"K3_px:\ns_mov_b64 exec, -1\nv_lshlrev_b32 v{T0}, 1, v0")
    for r in range(3): a(f"s_add_u32 s{53+r}, s{66+r}, s39")
    a(f"K3_pA:\nv_lshlrev_b32 v{X}, 2, v0")
    for r in range(3): a(f"buffer_load_dwordx4 v[{AR[r]}:{AR[r]+3}], v{X}, s[8:11], s{53+r} offen sc1")
    a("K3_pB:")
    for r in range(3): a(f"buffer_load_dwordx2 v[{8+2*r}:{9+2*r}], v{T0}, s[8:11], s{53+r} offen offset:1024 sc1")
    a("s_cmp_eq_u32 s21, 7\ns_cbranch_scc0 K3_p6")
    for r in range(3): a(f"buffer_load_dword v{B1[r]}, v0, s[8:11], s{53+r} offen offset:1536 sc1")
    a("K3_p6:")
    if OPT['px']:
        def chk(rs, first=True):
            for i, r in enumerate(rs): a(f"v_xor_b32 v{X}, s62, v{r}" if (first and i == 0) else f"v_bitop3_b32 v{X}, v{X}, v{r}, s62 bitop3:0xf6")
        a("s_cmp_eq_u32 s35, 2\ns_cbranch_scc1 K3_pD\ns_waitcnt vmcnt(0)\ns_cmp_eq_u32 s35, 1\ns_cbranch_scc1 K3_pC")
        chk(list(range(14, 22)) + [2, 3, 4, 5])
        a(f"v_and_b32 v{X}, 1, v{X}\nv_cmp_ne_u32 vcc, 0, v{X}\ns_cbranch_vccz K3_pE\ns_add_u32 s64, s64, 1\ns_cmp_gt_u32 s64, {SPIN}\ns_cbranch_scc1 K3_pD\ns_sleep {OPT['slp']}\ns_branch K3_pA\nK3_pE:\ns_mov_b32 s35, 1\nK3_pC:")
        chk(range(8, 14)); a("s_cmp_eq_u32 s21, 7\ns_cbranch_scc0 K3_p7"); chk(B1, False); a("K3_p7:")
        a(f"v_and_b32 v{X}, 1, v{X}\nv_cmp_ne_u32 vcc, 0, v{X}\ns_cbranch_vccz K3_pD\ns_add_u32 s64, s64, 1\ns_cmp_gt_u32 s64, {SPIN}\ns_cbranch_scc1 K3_pD\ns_sleep {OPT['slp']}\ns_branch K3_pB")
    a("K3_pD:"); a.st(10 if False else 7)
    a(f"s_lshl_b32 s52, s22, 4\nv_mov_b32 v{T0}, {GS}\ns_mov_b64 exec, 1\nK3_aw:\nds_read_b32 v{X}, v{T0}\ns_waitcnt lgkmcnt(0)\nv_readfirstlane_b32 s53, v{X}\ns_cmp_ge_u32 s53, s52\ns_cbranch_scc1 K3_ad\ns_sleep {OPT['sll']}\ns_branch K3_aw\nK3_ad:\ns_mov_b64 exec, -1"); a.st(6)
    a("s_mov_b32 m0, s60")
    for i in range(6): a(f"ds_write_addtid_b32 v{GK+i} offset:{i*256}")
    a(f"s_cmp_eq_u32 s21, 7\ns_cbranch_scc0 K3_w6\nds_write_addtid_b32 v{GK+6} offset:1536\ns_waitcnt vmcnt(0)")
    for r in range(3): a(f"s_mov_b32 m0, s{66+r}\nds_write_addtid_b32 v{B1[r]} offset:1536")
    a("K3_w6:")
    for r in range(3):
        a(f"s_mov_b32 m0, s{66+r}\ns_waitcnt vmcnt({5-r})")
        for i in range(4): a(f"ds_write_addtid_b32 v{AR[r]+i} offset:{i*256}")
    for r in range(3):
        a(f"s_mov_b32 m0, s{66+r}\ns_waitcnt vmcnt({2-r})")
        for i in range(2): a(f"ds_write_addtid_b32 v{8+2*r+i} offset:{1024+i*256}")
    a(f"v_mov_b32 v{X}, v{AOP}")
    for i in range(4): a(f"v_mov_b32 v{ACC+i}, 0")
    a(f"s_add_u32 s22, s22, 1\ns_waitcnt vmcnt(0) lgkmcnt(0)"); a.st(8); a("s_barrier"); a.st(9)
    if OPT['stamp'] in (1, 2): a("s_cmp_eq_u32 s22, 5\ns_cselect_b32 s83, s84, s83")
    a("s_branch K3_hop")
    if OPT['stamp'] in (1, 2): a("K3_fin:\ns_mov_b32 s81, s64\nK3_fin2:")
    else: a("K3_fin:")
    a("s_mov_b32 s38, s61"); tok(0); tok(1); tok(2); a.st_out(2, 8, 's19', 10)
    a("K3_end:\ns_endpgm")
    a.end(name, 128, 102)

import sched
L4_E = 131072; L4_SCR = L4_E + 8192; L4_SIZE = L4_SCR + 4096
TK = 16; QQ = 48; AL = 64; WF = 80; NWF = 2; TA = 88; CA = 92; IB = 96; SV = (100, 101); AC = (104, 120); PK = (136, 144); SS = 152; OO = 168; CT = 232; PA = 240; EA = 248; PM = (252, 254)
EPS = f2u(1e-5); I128 = f2u(1/128.); LOG2E = f2u(math.log2(math.e))
def k4(a):
    name = 'att_kernel'
    a.launch(name, 256, 256, L4_SIZE)
    a.begin(name)
    W8 = sched.Waits(); sched.VMEM_LAT = OPT['vl']; sched.STRETCH = OPT['str']/100; sched.QLAT = OPT['ql']
    L = []
    def o(text, R=(), W=(), rr=(), pri=0):
        for t in text.split('\n'):
            x = sched.Op(t, R, W, pri); x.r |= {('v', r) for r in rr}; L.append(x)
    def flush(do_sched):
        ops = sched.schedule(L, True) if do_sched else list(L)
        for t in W8.emit(ops): a(t)
        L.clear()
    a("s_cmp_ge_u32 s2, 256\ns_cbranch_scc1 K4_end")
    a.st_init()
    a("s_load_dwordx2 s[4:5], s[0:1], 88\ns_load_dwordx2 s[6:7], s[0:1], 72")
    a("v_lshrrev_b32 v4, 6, v0\nv_and_b32 v0, 63, v0\nv_readfirstlane_b32 s19, v4\nv_lshlrev_b32 v2, 4, v0")
    a("v_lshrrev_b32 v5, 3, v0\nv_and_b32 v6, 7, v0\nv_xor_b32 v6, v6, v5\ns_lshl_b32 s3, s19, 1\nv_xor_b32 v6, s3, v6\nv_lshlrev_b32 v6, 4, v6\nv_lshl_add_u32 v103, v5, 7, v6\nv_xor_b32 v12, 16, v103")
    a("s_mul_i32 s20, s2, 3\ns_lshl_b32 s44, s19, 14")
    a(f"v_lshrrev_b32 v5, 5, v0\nv_bfe_u32 v6, v0, 3, 2\nv_lshlrev_b32 v3, 3, v5\nv_lshlrev_b32 v102, 2, v6\nv_add_u32 v102, {WS_SINV-WS_PERM}, v102")
    a("s_waitcnt lgkmcnt(0)")
    a.srd(8, 4, WS_SIZE); a.srd(12, 6, N*256)
    a(f"s_mov_b32 s3, {WS_WFR+WFR_SW}\ns_buffer_load_dword s24, s[8:11], s3")
    QS = lambda g: 52 + g
    def tdma(t, R=()):
        b = t & 1
        o(f"s_mul_i32 s21, s{60+t}, {TOS}\ns_add_u32 s21, s21, s44\ns_add_u32 s21, s21, {WS_TOK}")
        for x in range(0 if (t > 0 and OPT['exp'] & 64) else 4):
            if x: o("s_add_u32 s21, s21, 4096")
            o(f"s_add_u32 m0, s44, {b*65536 + 4096*x}")
            for y in range(4): o(f"buffer_load_dwordx4 {'v103' if x < 2 else 'v12'}, s[8:11], s21 offen offset:{y*1024} lds", W=[f'dma{t}_{x}{y}', 'q'], R=R, pri=OPT['dp'])
    DM = lambda t: [f'dma{t}_{x}{y}' for x in range(4) for y in range(4)]
    def small(g):
        o(f"s_lshl_b32 s23, s{QS(g)}, 4\ns_add_u32 s23, s23, {WS_PERM}")
        o(f"buffer_load_dword v{SV[g&1]}, v102, s[8:11], s23 offen\nbuffer_load_dwordx2 v[{PM[g&1]}:{PM[g&1]+1}], v3, s[8:11], s23 offen", pri=2000)
    def wdma(lo, hi, tag):
        for i in range(lo, hi):
            o(f"s_add_u32 m0, s25, {4096*i}\ns_add_u32 s27, s26, {4096*i}"); o("buffer_load_dwordx4 v2, s[8:11], s27 offen lds", W=[tag + str(i), 'q'])
    for t in range(3): a(f"s_add_u32 s{60+t}, s20, {t}")
    for g in range(6): a(f"s_lshl_b32 s3, s{60+g//2}, 3\ns_add_u32 s3, s3, s19\ns_add_u32 s{QS(g)}, s3, {4*(g&1)}")
    a(f"s_add_u32 s58, s2, 6144\ns_lshr_b32 s63, s58, 3\ns_cmp_lt_u32 s2, 128\ns_cselect_b32 s63, s63, s62\ns_cselect_b32 s58, s58, s57")
    a(f"s_lshl_b32 s25, s19, 10\ns_add_u32 s26, s25, {WS_WFR}\ns_add_u32 s25, s25, 0x10000")
    wdma(0, 8, 'w'); tdma(0); small(0); wdma(16, 18, 'w'); flush(False)
    a(f"v_and_b32 v4, 7, v0\nv_xor_b32 v1, v4, v5\nv_xor_b32 v1, s19, v1\nv_lshlrev_b32 v1, 4, v1\nv_lshl_add_u32 v1, v4, 13, v1\nv_lshl_add_u32 v1, v5, 7, v1\nv_lshl_add_u32 v1, v6, 2, v1")
    for n in range(4): a(f"v_cmp_eq_u32 s[{32+2*n}:{33+2*n}], {n}, v6")
    a("v_and_b32 v7, 31, v0\nv_bfe_u32 v8, v0, 2, 1\nv_cmp_eq_u32 s[40:41], v8, v5\nv_and_b32 v8, 1, v0\nv_lshlrev_b32 v8, 4, v8\nv_mov_b32 v9, 0x3f80\nv_lshlrev_b32 v9, v8, v9\nv_cndmask_b32 v9, 0, v9, s[40:41]")
    a("v_bfe_u32 v8, v0, 1, 1\nv_bfe_u32 v10, v0, 3, 1\nv_lshl_or_b32 v8, v10, 1, v8")
    for j in range(4): a(f"v_cmp_eq_u32 s[40:41], {j}, v8\nv_cndmask_b32 v{IB+j}, 0, v9, s[40:41]")
    a(f"s_lshl_b32 s25, s19, 10\ns_add_u32 s25, s25, {L4_SCR}")
    a("v_lshl_add_u32 v4, v7, 2, s25")
    a("v_lshlrev_b32 v8, 5, v6\nv_lshl_add_u32 v8, v5, 4, v8\nv_add_u32 v8, s25, v8")
    a("v_lshl_add_u32 v9, v5, 4, s25")
    a("v_and_b32 v10, 7, v0\nv_lshlrev_b32 v11, 2, v5\nv_xor_b32 v10, v10, v11\nv_xor_b32 v10, s19, v10\nv_lshlrev_b32 v10, 4, v10\nv_lshl_add_u32 v10, v7, 7, v10\nv_lshl_add_u32 v10, v5, 15, v10")
    a(f"v_lshlrev_b32 v7, 2, v7\nv_add_u32 v15, {L4_E}, v2\ns_mov_b32 s48, 0xffff0000\nv_add_u32 v0, 0x10000, v2")
    a(f"s_mov_b32 s28, {I128}\ns_mov_b32 s29, {EPS}\ns_mov_b32 s30, {LOG2E}")
    a("s_waitcnt lgkmcnt(0)")
    a.st(1)
    for t in W8.drain(['w17']): a(t)
    a.st(2); a("s_barrier"); a.st(3)
    if OPT['exp'] & 4096: a("s_cmp_ge_u32 s19, 1\ns_cbranch_scc1 K4_fin")
    ring = [0]
    def group(g, last):
        T = lambda u: f"v[{TK+4*u}:{TK+4*u+3}]"
        R16 = lambda b: f"v[{b}:{b+15}]"
        sv = SV[g & 1]; pm = PM[g & 1]; t = g >> 1; LB = [f'tile{t}']; xa = (t & 1)*65536 + (64 if g & 1 else 0)
        def W(j):
            if j >= 8:
                r = 4*(j-8)
                if g == 0:
                    if j == 40: o("s_barrier", R=[f'w{i}' for i in range(8, 16)], W=['wb', 'bar'])
                    o(f"ds_read_b128 a[{r}:{r+3}], v0 offset:{(j-8)*1024}", R=['wb'] if j >= 40 else [])
                    if j == 71:
                        o("s_barrier", W=['wfree', 'bar']); L[-1].r |= {('a', x) for x in range(256)}
                        tdma(1, ['wfree'])
                return f"a[{r}:{r+3}]"
            r = WF + 4*(ring[0] % NWF); ring[0] += 1
            o(f"ds_read_b128 v[{r}:{r+3}], v15 offset:{j*1024}")
            return f"v[{r}:{r+3}]"
        if g in (2, 4):
            o("s_barrier", R=DM(t) + ['rd'], W=LB + ['bar'], rr=[OO+32+3, OO+32+2] + list(range(TK, TK+32)))
            tdma(t+1, LB)
        if g == 6: o("v_xor_b32 v1, s49, v1\nv_xor_b32 v10, s49, v10"); xa = 65536
        for x in range(4): o(f"v_xor_b32 v{TA+x}, {xa ^ ((x >> 1)*576) ^ ((x & 1)*288)}, v1")
        for u in range(8):
            for b in range(2): o(f"ds_read2st64_b32 v[{TK+4*u+2*b}:{TK+4*u+2*b+1}], v{TA+2*(u&1)+b} offset0:{8*(u>>1)} offset1:{8*(u>>1)+4}", R=LB)
        if g < last: small(g+1)
        o(f"v_lshl_add_u32 v{pm}, v{pm}, 8, v7\nv_lshl_add_u32 v{pm+1}, v{pm+1}, 8, v7")
        D = AC[1]
        def ychain(t):
            for u in range(8): w = W(8+8*t+u); o(f"v_mfma_f32_32x32x16_bf16 {R16(AC[t&1])}, {w}, {T(u)}, {'0' if u == 0 else R16(AC[t&1])}")
        def zchain(t):
            for u in range(8): w = W(40+8*t+u); o(f"v_mfma_f32_32x32x16_bf16 {R16(AC[t&1])}, {T(u)}, {w}, {'0' if u == 0 else R16(AC[t&1])}")
        def pack(t):
            for d in range(8): o(f"v_cvt_pk_bf16_f32 v{PK[t&1]+d}, v{AC[t&1]+2*d}, v{AC[t&1]+2*d+1}")
        def smf(t):
            for h in range(2): o(f"v_mfma_f32_32x32x16_bf16 {R16(SS)}, v[{PK[t&1]+4*h}:{PK[t&1]+4*h+3}], {T(2*t+h)}, {'0' if t == 0 and h == 0 else R16(SS)}")
        def cinit():
            for j in range(4): o(f"v_xor_b32 v{CA+j}, {xa ^ (j*8192 + j*16)}, v10")
            for B in range(2):
                for j in range(4):
                    c = CT + 4*(j & 1)
                    o(f"ds_read_b128 v[{c}:{c+3}], v{CA+j} offset:{B*4096}", R=LB)
                    for n in range(4): o(f"v_lshlrev_b32 v{OO+32*B+4*n+j}, 16, v{c+n}\nv_and_b32 v{OO+32*B+16+4*n+j}, s48, v{c+n}")
        def pz(b):
            for h in range(2): o(f"v_mfma_f32_32x32x16_bf16 {R16(OO+16*b)}, v[{PA+4*h}:{PA+4*h+3}], v[{PK[b&1]+4*h}:{PK[b&1]+4*h+3}], {R16(OO+16*b)}")
        ychain(0)
        for t in range(4 if OPT['exp'] & 512 else 32): o(f"v_dot2_f32_bf16 v{D+(t&3)}, v{TK+t}, v{TK+t}, {'0' if t < 4 else f'v{D+(t&3)}'}")
        for u in range(8): w = W(u); o(f"v_mfma_f32_16x16x32_bf16 v[{EA}:{EA+3}], {w}, {T(u)}, {'0' if u == 0 else f'v[{EA}:{EA+3}]'}")
        o(f"v_add_f32 v11, v{D}, v{D+1}\nv_add_f32 v2, v{D+2}, v{D+3}\nv_add_f32 v11, v11, v2")
        o(f"v_mov_b32 v2, v11\nv_permlane32_swap_b32 v11, v2\nv_add_f32 v11, v11, v2\nv_mul_f32 v2, s28, v{EA}\nv_mul_f32 v2, v2, v2\nv_fma_f32 v11, v11, s28, -v2")
        o(f"v_mul_f32 v2, v{sv}, v{sv}\nv_max_f32 v11, 0, v11\nv_fma_f32 v11, v11, v2, s29\nv_rsq_f32 v11, v11\nv_mul_f32 v11, v11, v{sv}")
        o("ds_write_b32 v4, v11", W=['sa']); o(f"ds_write_b32 v4, v{EA+2} offset:128\nds_write_b32 v4, v{EA+3} offset:256", W=['sb'])
        RL, X, ZS, ZD = PA, SS, SS+8, SS+12
        o(f"ds_read_b128 v[{RL}:{RL+3}], v8", R=['sa'])
        cinit()
        pack(0); smf(0)
        ychain(1); pack(1); smf(1)
        ychain(2); pack(2); smf(2)
        ychain(3); pack(3); smf(3)
        zchain(0); pack(0)
        zchain(1); pack(1)
        for r in range(4):
            o(f"v_cndmask_b32 v{X+r}, v{SS+r}, v{SS+4+r}, s[34:35]\nv_cndmask_b32 v{X+r}, v{X+r}, v{SS+8+r}, s[36:37]\nv_cndmask_b32 v{X+r}, v{X+r}, v{SS+12+r}, s[38:39]")
        o(f"ds_read_b128 v[{ZS}:{ZS+3}], v8 offset:128\nds_read_b128 v[{ZD}:{ZD+3}], v8 offset:256", R=['sb'])
        for r in range(4): o(f"v_mul_f32 v{X+r}, v{X+r}, v{RL+r}")
        t0, t1 = X+4, X+5
        o(f"v_max3_f32 v{t0}, v{X}, v{X+1}, v{X+2}\nv_max_f32 v{t0}, v{t0}, v{X+3}\nv_mov_b32 v{t1}, v{t0}\nv_permlane32_swap_b32 v{t0}, v{t1}\nv_max_f32 v{t0}, v{t0}, v{t1}\nv_mul_f32 v{t0}, v{t0}, v11")
        for r in range(4): o(f"v_fma_f32 v{X+r}, v{X+r}, v11, -v{t0}")
        for r in range(4): o(f"v_exp_f32 v{X+r}, v{X+r}")
        o(f"v_add_f32 v{t0}, v{X}, v{X+1}\nv_add_f32 v{t1}, v{X+2}, v{X+3}\nv_add_f32 v{t0}, v{t0}, v{t1}\nv_mov_b32 v{t1}, v{t0}\nv_permlane32_swap_b32 v{t0}, v{t1}\nv_add_f32 v{t0}, v{t0}, v{t1}\nv_mul_f32 v{t0}, v{t0}, v{sv}\nv_rcp_f32 v{t0}, v{t0}")
        for r in range(4): o(f"v_mul_f32 v{X+r}, v{X+r}, v{RL+r}")
        for r in range(4): o(f"v_mul_f32 v{X+r}, v{X+r}, v{t0}")
        o(f"v_cvt_pk_bf16_f32 v{X+6}, v{X}, v{X+1}\nv_cvt_pk_bf16_f32 v{X+7}, v{X+2}, v{X+3}")
        for n in range(4): o(f"v_cndmask_b32 v{PA+2*n}, 0, v{X+6}, s[{32+2*n}:{33+2*n}]\nv_cndmask_b32 v{PA+2*n+1}, 0, v{X+7}, s[{32+2*n}:{33+2*n}]")
        o(f"v_mul_f32 v13, v{X}, v{ZS}\nv_mul_f32 v14, v{X}, v{ZD}")
        for r in range(1, 4): o(f"v_fmac_f32 v13, v{X+r}, v{ZS+r}\nv_fmac_f32 v14, v{X+r}, v{ZD+r}")
        o(f"v_permlane32_swap_b32 v13, v14\nv_add_f32 v13, v13, v14\nv_mov_b32 v14, v13\nv_permlane32_swap_b32 v13, v14\nv_add_f32 v13, v13, v{EA}\nv_add_f32 v14, v14, v{EA+1}")
        def sq(b):
            for r in range(0 if (OPT['exp'] & 1024 and b) else 16): o(f"v_mul_f32 v{QQ+r}, v{OO+r}, v{OO+r}" if b == 0 else f"v_fmac_f32 v{QQ+r}, v{OO+16*b+r}, v{OO+16*b+r}")
        pz(0); sq(0)
        zchain(2); pz(1); sq(1); pack(2)
        zchain(3); pz(2); sq(2); pack(3)
        pz(3); sq(3)
        for d in range(8): o(f"v_cvt_pk_bf16_f32 v{AL+d}, v{QQ+2*d}, v{QQ+2*d+1}")
        for v in range(2):
            x = AL+8+4*v
            o(f"v_mfma_f32_16x16x32_bf16 v[{x}:{x+3}], v[{AL+4*v}:{AL+4*v+3}], v[{IB}:{IB+3}], 0")
            o(f"v_add_f32 v{x}, v{x}, v{x+1}\nv_add_f32 v{x+2}, v{x+2}, v{x+3}\nv_add_f32 v{x}, v{x}, v{x+2}")
        o(f"v_permlane16_swap_b32 v{AL+8}, v{AL+12}\nv_add_f32 v5, v{AL+8}, v{AL+12}\nv_mov_b32 v{AL+8}, v5\nv_permlane32_swap_b32 v5, v{AL+8}\nv_add_f32 v5, v5, v{AL+8}")
        o(f"v_mul_f32 v13, s28, v13\nv_fma_f32 v14, -v13, s24, v14\nv_mul_f32 v13, v13, v13\nv_mul_f32 v14, s30, v14\nv_mul_f32 v6, v{sv}, v{sv}\nv_mul_f32 v14, v14, v{sv}")
        o("v_fma_f32 v5, v5, s28, -v13\nv_max_f32 v5, 0, v5\nv_fma_f32 v5, v5, v6, s29\nv_rsq_f32 v5, v5\nv_mul_f32 v5, v5, v14")
        o(f"v_max_f32_dpp v6, v5, v5 quad_perm:[1,0,3,2] {DPPF}\nv_max_f32_dpp v6, v6, v6 quad_perm:[2,3,0,1] {DPPF}\nv_max_f32_dpp v6, v6, v6 row_half_mirror {DPPF}")
        o("v_sub_f32 v5, v5, v6\nv_exp_f32 v5, v5")
        o(f"v_add_f32_dpp v6, v5, v5 quad_perm:[1,0,3,2] {DPPF}\nv_add_f32_dpp v6, v6, v6 quad_perm:[2,3,0,1] {DPPF}\nv_add_f32_dpp v6, v6, v6 row_half_mirror {DPPF}")
        o(f"v_rcp_f32 v6, v6\nv_mul_f32 v5, v5, v{sv}\nv_mul_f32 v5, v5, v6")
        o("ds_write_b32 v4, v5 offset:512", W=['sd'])
        for n in range(4): o(f"ds_read_b128 v[{AL+4*n}:{AL+4*n+3}], v9 offset:{512+32*n}", R=['sd'])
        for b in range(4):
            for n in range(4):
                x = QQ + 4*b + n
                o(f"v_mul_f32 v{x}, v{AL+4*n}, v{OO+16*b+4*n}")
                for r in range(1, 4): o(f"v_fmac_f32 v{x}, v{AL+4*n+r}, v{OO+16*b+4*n+r}")
            x = QQ + 4*b
            o(f"v_permlane32_swap_b32 v{x}, v{x+2}\nv_permlane32_swap_b32 v{x+1}, v{x+3}\nv_add_f32 v{x}, v{x}, v{x+2}\nv_add_f32 v{x+1}, v{x+1}, v{x+3}")
            if b & 1:
                for e in range(2): o(f"v_cvt_pk_bf16_f32 v{x+2+e}, v{x-4+e}, v{x+e}\nbuffer_store_dword v{x+2+e}, v{pm+e}, s[12:15], 0 offen offset:{128*(b>>1)}")
    if OPT['stamp'] in (1, 2): a("s_memtime s[88:89]\ns_waitcnt lgkmcnt(0)")
    a(f"s_lshl_b32 s25, s19, 10\ns_add_u32 s25, s25, 0x10000")
    wdma(8, 16, 'w')
    for g in range(6): group(g, 6)
    flush(OPT['ls']); a.st(4)
    if OPT['stamp'] in (1, 2): a("s_memtime s[90:91]\ns_waitcnt lgkmcnt(0)\ns_sub_u32 s82, s90, s88")
    a("s_cmp_ge_u32 s2, 128\ns_cbranch_scc1 K4_fin")
    for t in W8.drain(DM(3)): a(t)
    a("s_barrier\ns_and_b32 s3, s2, 3\ns_cmp_lg_u32 s19, s3\ns_cbranch_scc1 K4_fin\ns_and_b32 s49, s2, 4\ns_lshl_b32 s49, s49, 4")
    group(6, 6); flush(OPT['ls']); a.st(7)
    a("K4_fin:"); a.st_out(3, 8, 's19', 10)
    a("K4_end:\ns_endpgm")
    a.end(name, 512, 102, 256)

def build(ks, path, pre=''):
    a = K()
    for k in ks: k(a)
    open(path, 'w').write(a.text(pre))

if __name__ == '__main__':
    for x in sys.argv[1:]:
        k, v = x.split('='); OPT[k] = int(v)
    ref = open('standalone__hybrid_graph_tf_nagphormer__graph.s.ref').read().split('\n')
    pre = '\n'.join(l for l in ref if l.startswith(';') and 'launch' not in l and 'grid=' not in l) + '\n'
    build([k1, k2, k3, k4], 'stage.s', pre)
```

```python
import sys, math, struct
from asmlib import Asm
import hazard

N = 25000; NP = 25088; E = 400000; WIN = 128; NWIN = 196; NLEV = 392; QLEV = 98; QN = 6272
NCH = 250; CH = 1600
ZB = 195*128
WS_FLAGS = 0xC0000; FGS = 17*128; WS_NEWID = 0x10000; WS_PERM = 0x20000; WS_DISP = 0x40000; WS_TQ = 0x60000; WS_LOC = 0x64000; WS_IRR = 0x78000; WS_SINV = 0xA0000; WS_PM = 0x3700000
WS_WFR = 0x80000; WS_PART = 0x100000; WS_PARTB = 0x440000; WS_IDX = 0x780000; WS_G = 0xB00000; RS = 57344; WS_TOK = 0x3800000
GS = NP*4
TOS = 65536 + 128
PWS = 16384 + 128
KS = NP*256
WS_SIZE = 0x10000000
WFR_E = 65536; WFR_SW = 73728
SD = "dst_sel:DWORD dst_unused:UNUSED_PAD src0_sel:DWORD"
DPPF = "row_mask:0xf bank_mask:0xf"
SLACK = 2
OPT = dict(stamp=0, exp=0, tal=20, tbe=1, prio=2, wprio=0, slg=2, sll=2, tok=1, tsc=2, wb=0, gprio=1, ls=1, tlb=0, wt=0, vl=1500, str=115, dp=0, ql=130, npl=1, px=0, slp=1, cpf=4, slow=0)
WS_STAMP = 0x7800000

WT = lambda b: (' sc1' if OPT['wt'] & b else '') + (' sc0' if OPT['wt'] & b and OPT['wt'] & 8 else '') + (' nt' if OPT['wt'] & (b << 4) else '')
class K(Asm):
    def __init__(self):
        super().__init__(); self.uid = 0
    def lab(self, s='L'):
        self.uid += 1; return f"{s}_{self.uid}"
    def begin(self, name):
        self.kernel(name); self.k0 = len(self.lines)
    def end(self, name, vgpr, sgpr=102, accum=None):
        body, n = hazard.fix(self.lines[self.k0:])
        self.lines[self.k0:] = body
        print(f"{name}: {len(body)} lines, {n} nop states", file=sys.stderr)
        self.kd(name, vgpr, sgpr, accum)
    def st_init(self):
        if not OPT['stamp']: return
        self("s_memrealtime s[84:85]" if OPT['stamp'] != 2 else "s_memtime s[84:85]")
        if OPT['stamp'] == 3:
            self("s_waitcnt lgkmcnt(0)\ns_mov_b32 s70, s84"); return
        for i in range(1, 14): self(f"s_mov_b32 s{70+i}, 0")
        self("s_waitcnt lgkmcnt(0)\ns_mov_b32 s70, s84\ns_mov_b32 s86, s84")
    def st(self, i):
        if not OPT['stamp'] or OPT['stamp'] == 3: return
        self(f"{'s_memrealtime' if OPT['stamp'] == 1 else 's_memtime'} s[84:85]\ns_waitcnt lgkmcnt(0)\ns_sub_u32 s87, s84, s86\ns_mov_b32 s86, s84\ns_add_u32 s{70+i}, s{70+i}, s87")
    def st_out(self, kid, srd, swave, vt):
        if not OPT['stamp']: return
        self(f"s_lshl_b32 s87, s2, 4\ns_add_u32 s87, s87, {swave}\ns_lshl_b32 s87, s87, 6\ns_add_u32 s87, s87, {WS_STAMP + kid*0x80000}\ns_mov_b64 exec, 1\nv_mov_b32 v{vt+1}, 0")
        if OPT['stamp'] == 3: self("s_memrealtime s[84:85]\ns_waitcnt lgkmcnt(0)\ns_mov_b32 s71, s84")
        for i in range(2 if OPT['stamp'] == 3 else 14): self(f"v_mov_b32 v{vt}, s{70+i}\nbuffer_store_dword v{vt}, v{vt+1}, s[{srd}:{srd+3}], s87 offen offset:{4*i}")
    def codepf(self, first, last, lane4, vt, sp, vd=None):
        l = self.lab('PF')
        self(f"s_getpc_b64 s[{sp}:{sp+1}]\n{l}:\ns_add_u32 s{sp}, s{sp}, {first}-{l}\ns_addc_u32 s{sp+1}, s{sp+1}, 0\nv_lshlrev_b32 v{vt}, 5, v{lane4}\ns_mov_b32 s{sp+2}, 0")
        self(f"{l}_l:\nv_cmp_gt_u32 vcc, {last}-{first}, v{vt}\ns_and_b64 exec, exec, vcc\ns_cbranch_execz {l}_e\nglobal_load_dword v{vd or vt+1}, v{vt}, s[{sp}:{sp+1}]\nv_add_u32 v{vt}, 8192, v{vt}\ns_branch {l}_l\n{l}_e:\ns_mov_b64 exec, -1")
    def scan_incl(self, v):
        for s in (1, 2, 4, 8): self(f"v_add_u32_dpp v{v}, v{v}, v{v} row_shr:{s} {DPPF} bound_ctrl:0")
        self(f"v_add_u32_dpp v{v}, v{v}, v{v} row_bcast:15 row_mask:0xa bank_mask:0xf")
        self(f"v_add_u32_dpp v{v}, v{v}, v{v} row_bcast:31 row_mask:0xc bank_mask:0xf")
    def red63(self, op, v):
        for s in (1, 2, 4, 8): self(f"{op}_dpp v{v}, v{v}, v{v} row_shr:{s} {DPPF} bound_ctrl:0")
        self(f"{op}_dpp v{v}, v{v}, v{v} row_bcast:15 row_mask:0xa bank_mask:0xf")
        self(f"{op}_dpp v{v}, v{v}, v{v} row_bcast:31 row_mask:0xc bank_mask:0xf")

SWAPS = ((0, 85), (6, 91), (12, 95))
def levelpos(a, sw, d0, d1):
    t, u = d1+1, d1+2
    a(f"s_mul_i32 s{t}, s{sw}, 1338\ns_lshr_b32 s{t}, s{t}, 16\ns_mul_i32 s{t}, s{t}, 98\ns_lshl_b32 s{d0}, s{sw}, 1\ns_sub_u32 s{u}, s{d0}, s{t}")
    a(f"s_mov_b32 s{d0}, s{u}\ns_add_u32 s{d1}, s{u}, 1")
    for x, y in SWAPS:
        a(f"s_cmp_eq_u32 s{u}, {x}\ns_cselect_b32 s{d0}, {y}, s{d0}\ns_cmp_eq_u32 s{u}, {y-1}\ns_cselect_b32 s{d1}, {x}, s{d1}")
    a(f"s_add_u32 s{d0}, s{d0}, s{t}\ns_add_u32 s{d1}, s{d1}, s{t}")
def k1(a):
    name = 'p1_kernel'
    a.launch(name, NCH + NWIN + 8, 512, 40960)
    a.begin(name)
    a(f"s_cmp_ge_u32 s2, {NCH+NWIN+8}\ns_cbranch_scc1 K1_end")
    a.st_init()
    a("s_load_dwordx4 s[4:7], s[0:1], 0\ns_load_dwordx4 s[8:11], s[0:1], 16\ns_load_dwordx2 s[14:15], s[0:1], 88")
    a("v_lshlrev_b32 v1, 2, v0\nv_mov_b32 v2, 0\nv_mov_b32 v24, 1\nv_lshrrev_b32 v3, 6, v0\nv_and_b32 v25, 63, v0\nv_readfirstlane_b32 s37, v3")
    a(f"s_cmp_ge_u32 s2, {NCH+NWIN}\ns_cbranch_scc1 K1_mm\ns_cmp_ge_u32 s2, {NCH}\ns_cbranch_scc1 K1_win")
    a(f"v_lshlrev_b32 v3, 4, v0\ns_mul_i32 s38, s2, {CH*4}\ns_waitcnt lgkmcnt(0)")
    a.srd(16, 6, E*4); a.srd(20, 8, E*4); a.srd(28, 14, WS_SIZE)
    a("s_cmp_ge_u32 s37, 7\ns_cbranch_scc1 K1_nl\nv_cmp_gt_u32 vcc, 400, v0\ns_and_saveexec_b64 s[34:35], vcc")
    a("buffer_load_dwordx4 v[4:7], v3, s[16:19], s38 offen\nbuffer_load_dwordx4 v[8:11], v3, s[20:23], s38 offen\ns_mov_b64 exec, s[34:35]\nK1_nl:")
    a("s_cmp_ge_u32 s2, 64\ns_cbranch_scc1 K1_noz\ns_cmp_ge_u32 s37, 3\ns_cbranch_scc1 K1_noz")
    a(f"s_mul_i32 s3, s2, {FGS}\ns_add_u32 s3, s3, {WS_FLAGS}\nv_lshrrev_b32 v16, 3, v0\nv_min_u32 v16, 16, v16\nv_lshlrev_b32 v16, 7, v16\nv_and_b32 v17, 7, v0\nv_lshl_add_u32 v16, v17, 2, v16\nbuffer_store_dword v2, v16, s[28:31], s3 offen\nK1_noz:")
    if OPT['cpf'] & 1:
        a("s_cmp_eq_u32 s37, 7\ns_cbranch_scc0 K1_npf\ns_cmp_lt_u32 s2, 16\ns_cbranch_scc0 K1_npf\nv_lshlrev_b32 v28, 2, v25"); a.codepf('p2_kernel', 'K2_xend', 28, 30, 52); a("K1_npf:")
    a("v_mov_b32 v12, -1\nv_mov_b32 v13, -1\nv_mov_b32 v14, -1\nv_mov_b32 v15, -1\nv_mov_b32 v26, 12544\nv_mov_b32 v27, 25088")
    a("ds_write_b128 v3, v[12:15] offset:1024\nds_write_b128 v3, v[12:15] offset:9216\nds_write_b128 v3, v[12:15] offset:17408")
    a("s_cmp_ge_u32 s37, 4\ns_cbranch_scc1 K1_nc\nds_write_b32 v1, v2\ns_cmp_ge_u32 s37, 1\ns_cbranch_scc1 K1_nc\nds_write_b128 v3, v[12:15] offset:25600\nK1_nc:")
    a("s_waitcnt lgkmcnt(0)\ns_barrier")
    a("s_cmp_ge_u32 s37, 7\ns_cbranch_scc1 K1_ns\nv_cmp_gt_u32 vcc, 400, v0\ns_and_saveexec_b64 s[34:35], vcc\ns_waitcnt vmcnt(0)")
    a.st(1)
    for i in range(4):
        a(f"v_lshrrev_b32 v{12+i}, 7, v{8+i}\nv_and_b32 v16, 127, v{8+i}\nv_lshl_or_b32 v{4+i}, v16, 16, v{4+i}\nv_lshlrev_b32 v16, 2, v{12+i}\nds_add_rtn_u32 v{8+i}, v16, v24")
    for i in range(4):
        a(f"s_waitcnt lgkmcnt(3)" if i == 0 else "s_waitcnt lgkmcnt(3)")
        a(f"v_and_b32 v16, 15, v{8+i}\nv_lshlrev_b32 v16, 2, v16\nv_lshl_add_u32 v16, v{12+i}, 6, v16\nv_lshrrev_b32 v17, 4, v{8+i}\nv_mad_u32_u24 v16, v17, s39, v16".replace("s39", "v26"))
        a(f"v_cmp_gt_u32 vcc, 32, v{8+i}\nv_cndmask_b32 v16, v27, v16, vcc\nds_write_b32 v16, v{4+i} offset:1024")
    a("s_mov_b64 exec, s[34:35]\nK1_ns:\ns_waitcnt lgkmcnt(0)\ns_barrier")
    a("s_and_b32 s3, s2, 7\ns_lshl_b32 s3, s3, 5\ns_lshr_b32 s39, s2, 3\ns_add_u32 s3, s3, s39\ns_lshl_b32 s3, s3, 6")
    a(f"s_add_u32 s39, s3, {WS_PART}\ns_add_u32 s40, s3, {WS_PARTB}")
    a("v_lshrrev_b32 v16, 2, v0\nv_and_b32 v17, 3, v0\nv_lshlrev_b32 v17, 4, v17\nv_mov_b32 v18, " + str(PWS) + "\nv_mad_u32_u24 v17, v16, v18, v17\nv_and_b32 v18, 0xfffffffc, v0")
    a("ds_read_b128 v[4:7], v3 offset:1024\nds_read_b128 v[8:11], v3 offset:9216\nds_read_b32 v19, v18\nds_read_b32 v20, v18 offset:512")
    a(f"v_add_u32 v21, {128*PWS}, v17\nv_cmp_gt_u32 vcc, {784-512}, v0\ns_mov_b64 s[42:43], vcc")
    a("s_waitcnt lgkmcnt(3)\nbuffer_store_dwordx4 v[4:7], v17, s[28:31], s39 offen" + WT(2) + "\ns_waitcnt lgkmcnt(0)")
    a("v_cndmask_b32 v20, 0, v20, s[42:43]\nv_max_u32 v22, v19, v20\ns_mov_b64 exec, s[42:43]\ns_cbranch_execz K1_n2")
    a("buffer_store_dwordx4 v[8:11], v21, s[28:31], s39 offen" + WT(2) + "\nK1_n2:\ns_mov_b64 exec, -1")
    a("v_cmp_le_u32 vcc, 16, v22\ns_cbranch_vccz K1_nb")
    a(f"ds_read_b128 v[4:7], v3 offset:{1024+12544}\nds_read_b128 v[8:11], v3 offset:{1024+12544+8192}\ns_waitcnt lgkmcnt(0)")
    a("v_cmp_le_u32 vcc, 16, v19\ns_mov_b64 exec, vcc\ns_cbranch_execz K1_b1\nbuffer_store_dwordx4 v[4:7], v17, s[28:31], s40 offen\nK1_b1:\ns_mov_b64 exec, -1")
    a("v_cmp_le_u32 vcc, 16, v20\ns_mov_b64 exec, vcc\ns_cbranch_execz K1_b2\nbuffer_store_dwordx4 v[8:11], v21, s[28:31], s40 offen\nK1_b2:\ns_mov_b64 exec, -1")
    a("K1_nb:")
    a(f"v_cmp_lt_u32 vcc, 32, v22\ns_cmp_lg_u64 vcc, 0\ns_cselect_b32 s3, 1, 0\nv_mov_b32 v4, s3\ns_lshr_b32 s39, s39, 1\ns_and_b32 s39, s39, 0x1fe0\ns_lshl_b32 s3, s37, 2\ns_add_u32 s39, s39, s3\ns_add_u32 s39, s39, {WS_IRR}")
    a("s_mov_b64 exec, 1\nbuffer_store_dword v4, v2, s[28:31], s39 offen")
    a.st(2); a.st_out(0, 28, 's37', 10); a("s_endpgm")
    B = 32768
    a("K1_win:")
    a(f"s_sub_u32 s36, s2, {NCH}\ns_lshl_b32 s38, s36, 7\ns_waitcnt lgkmcnt(0)")
    a.srd(16, 4, N*256); a.srd(24, 10, N*2); a.srd(28, 14, WS_SIZE)
    a("v_lshlrev_b32 v3, 4, v25\ns_lshl_b32 s39, s36, 15\ns_lshl_b32 s40, s37, 12\ns_add_u32 s39, s39, s40")
    a("v_add_u32 v5, s38, v0\nv_lshlrev_b32 v6, 1, v5\ns_cmp_ge_u32 s37, 2\ns_cbranch_scc1 K1_w0\nbuffer_load_ushort v4, v6, s[24:27], 0 offen\nK1_w0:")
    for it in range(4): a(f"buffer_load_dwordx4 v[{32+4*it}:{35+4*it}], v3, s[16:19], s39 offen offset:{it*1024}")
    a(f"ds_write_b32 v1, v2 offset:{B}")
    levelpos(a, 36, 44, 45)
    for d, x in ((50, 44), (53, 45)):
        a(f"s_sub_u32 s48, s{x}, s46\ns_mul_i32 s49, s48, 43\ns_lshr_b32 s49, s49, 8\ns_mul_i32 s49, s49, 6\ns_cmp_ge_u32 s48, 84\ns_cselect_b32 s49, 84, s49\ns_cmp_ge_u32 s48, 91\ns_cselect_b32 s49, 91, s49")
        a(f"s_sub_u32 s48, s48, s49\ns_cmp_ge_u32 s48, 4\ns_cselect_b32 s{d+1}, 1, 2\ns_cselect_b32 s{d+2}, 4, 0\ns_cmp_eq_u32 s48, 6\ns_cselect_b32 s{d+1}, 0, s{d+1}\ns_cselect_b32 s{d+2}, 6, s{d+2}")
        a(f"s_sub_u32 s48, s48, s{d+2}\ns_sub_u32 s{d}, s{x}, s48\ns_lshl_b32 s{d}, s{d}, 6\ns_add_u32 s{d}, s{d}, s48")
    a("s_lshl_b32 s44, s44, 6\ns_lshl_b32 s45, s45, 6\ns_sub_u32 s45, s45, 64\ns_waitcnt lgkmcnt(0)\ns_barrier\ns_cmp_ge_u32 s37, 2\ns_cbranch_scc1 K1_w1\ns_waitcnt vmcnt(4)"); a.st(4)
    a("v_lshlrev_b32 v4, 16, v4\nv_mov_b32 v23, 0x2b800000\nv_cmp_eq_f32 vcc, 0, v4\nv_cndmask_b32 v4, v4, v23, vcc\nv_mul_f32 v7, v4, v4\nv_rcp_f32 v7, v7\nv_rndne_f32 v7, v7\nv_cvt_u32_f32 v7, v7\nv_med3_u32 v7, v7, 1, 63")
    a(f"v_cmp_gt_u32 vcc, {N}, v5\nv_cndmask_b32 v7, 0, v7, vcc\nv_lshlrev_b32 v7, 2, v7\nds_add_rtn_u32 v8, v7, v24 offset:{B}\ns_waitcnt lgkmcnt(0)\nK1_w1:\ns_barrier")
    a("s_cmp_ge_u32 s37, 2\ns_cbranch_scc1 K1_w2")
    a(f"v_lshlrev_b32 v9, 2, v25\nds_read_b32 v20, v9 offset:{B}\ns_waitcnt lgkmcnt(0)\nv_mov_b32 v21, v20")
    a.scan_incl(21)
    a("v_sub_u32 v21, v21, v20\nds_bpermute_b32 v21, v7, v21\ns_waitcnt lgkmcnt(0)\nv_add_u32 v8, v8, v21")
    a(f"v_lshlrev_b32 v9, 2, v8\nds_write_b32 v1, v9 offset:{B+512}\nds_write_b32 v9, v4 offset:{B+1024}\nv_lshrrev_b32 v7, 2, v7\nv_sub_u32 v7, v7, v24 clamp\nds_write_b32 v9, v7 offset:{B+1536}")
    a("v_mov_b32 v10, s44\nv_mov_b32 v11, s45\nv_cmp_gt_u32 vcc, 64, v8\nv_cndmask_b32 v10, v11, v10, vcc\nv_add_u32 v10, v10, v8\nv_lshlrev_b32 v11, 2, v10")
    a(f"s_mov_b32 s3, {WS_NEWID}\nbuffer_store_short v10, v6, s[28:31], s3 offen\ns_mov_b32 s3, {WS_LOC}\nbuffer_store_short v8, v6, s[28:31], s3 offen")
    a("v_mov_b32 v14, s50\nv_mov_b32 v15, s53\nv_cndmask_b32 v14, v15, v14, vcc\nv_mov_b32 v15, s51\nv_mov_b32 v16, s54\nv_cndmask_b32 v15, v16, v15, vcc\nv_and_b32 v16, 63, v8\nv_lshlrev_b32 v16, v15, v16\nv_add_lshl_u32 v14, v14, v16, 2")
    a(f"s_mov_b32 s3, {WS_PERM}\nbuffer_store_dword v5, v14, s[28:31], s3 offen\nv_mul_f32 v12, v4, v4\nv_rcp_f32 v13, v4\ns_mov_b32 s3, {WS_DISP}\nbuffer_store_dword v12, v11, s[28:31], s3 offen\ns_mov_b32 s3, {WS_SINV}\nbuffer_store_dword v13, v14, s[28:31], s3 offen")
    a("s_waitcnt lgkmcnt(0)\nK1_w2:\ns_barrier")
    a.st(1)
    a(f"s_cmp_ge_u32 s37, 2\ns_cbranch_scc1 K1_nt\nds_read_b32 v6, v1 offset:{B+1536}\ns_waitcnt lgkmcnt(0)\nv_mov_b32 v7, v6")
    for sft in (1, 2, 4, 8): a(f"v_max_u32_dpp v6, v6, v6 row_shr:{sft} {DPPF} bound_ctrl:0\nv_add_u32_dpp v7, v7, v7 row_shr:{sft} {DPPF} bound_ctrl:0")
    for bc, m in ((15, '0xa'), (31, '0xc')): a(f"v_max_u32_dpp v6, v6, v6 row_bcast:{bc} row_mask:{m} bank_mask:0xf\nv_add_u32_dpp v7, v7, v7 row_bcast:{bc} row_mask:{m} bank_mask:0xf")
    a("v_readlane_b32 s40, v6, 63\nv_readlane_b32 s41, v7, 63")
    a(f"s_mul_i32 s41, s41, {OPT['tal']}\ns_lshr_b32 s41, s41, 10\ns_add_u32 s41, s41, {OPT['tbe']}\ns_max_u32 s41, s41, s40\ns_add_u32 s41, s41, 3\ns_lshr_b32 s41, s41, 2\ns_min_u32 s41, s41, 16\ns_max_u32 s41, s41, 1")
    a(f"s_add_u32 s3, s45, 64\ns_cmp_eq_u32 s37, 0\ns_cselect_b32 s3, s44, s3\ns_lshr_b32 s3, s3, 4\ns_add_u32 s3, s3, {WS_TQ}\nv_mov_b32 v6, s41\ns_mov_b64 exec, 1\nbuffer_store_dword v6, v2, s[28:31], s3 offen\ns_mov_b64 exec, -1\nK1_nt:")
    a("v_lshrrev_b32 v9, 4, v25\nv_lshlrev_b32 v9, 2, v9\ns_lshl_b32 s3, s37, 6\nv_add_u32 v9, s3, v9\nv_and_b32 v12, 15, v25\nv_lshlrev_b32 v13, 4, v12\nv_lshlrev_b32 v12, 11, v12")
    for it in range(4): a(f"ds_read_b32 v{16+it}, v9 offset:{B+512+16*it}")
    a(f"v_and_b32 v14, 31, v25\nv_lshlrev_b32 v15, 4, v14\nds_read_b128 v[28:31], v15 offset:{B+1024}")
    for it in range(4):
        a(f"s_waitcnt lgkmcnt({4 if it == 0 else 4+3})" if False else "")
    a("s_waitcnt lgkmcnt(0)")
    for it in range(4):
        a(f"v_xor_b32 v{16+it}, v{16+it}, v13\nv_add_u32 v{16+it}, v{16+it}, v12")
    a("s_cmp_ge_u32 s37, 2\ns_cbranch_scc1 K1_w3\ns_waitcnt vmcnt(6)\ns_branch K1_w4\nK1_w3:\ns_waitcnt vmcnt(0)\nK1_w4:"); a.st(5)
    for it in range(4):
        for i in range(4): a(f"ds_write_b32 v{16+it}, v{32+4*it+i} offset:{i*512}")
    a("v_lshrrev_b32 v20, 5, v25\ns_lshl_b32 s3, s37, 5\nv_xor_b32 v21, s3, v15\nv_lshl_add_u32 v21, v20, 9, v21\ns_lshl_b32 s3, s37, 12\nv_add_u32 v21, s3, v21\nv_xor_b32 v22, 16, v21")
    a("v_mov_b32 v10, s44\nv_mov_b32 v11, s45\nv_cmp_gt_u32 vcc, 16, v14\nv_cndmask_b32 v10, v11, v10, vcc\nv_lshl_add_u32 v10, v14, 2, v10")
    a(f"s_mov_b32 s3, {GS}\nv_mul_lo_u32 v20, v20, s3\nv_lshl_add_u32 v10, v10, 2, v20")
    a(f"s_mul_i32 s42, s37, {8*GS}\ns_add_u32 s42, s42, {WS_G}")
    a("s_waitcnt lgkmcnt(0)\ns_barrier")
    a.st(2)
    for j in range(4): a(f"ds_read_b128 v[{32+4*j}:{35+4*j}], v{21 if j < 2 else 22} offset:{j*1024}")
    for j in range(4):
        a(f"s_waitcnt lgkmcnt({3-j})")
        for i in range(4):
            a(f"v_lshlrev_b32 v4, 16, v{32+4*j+i}\nv_and_b32 v5, 0xffff0000, v{32+4*j+i}\nv_mul_f32 v4, v{28+i}, v4\nv_mul_f32 v5, v{28+i}, v5\nv_cvt_pk_bf16_f32 v{48+4*(j&1)+i}, v4, v5")
        a(f"buffer_store_dwordx4 v[{48+4*(j&1)}:{51+4*(j&1)}], v10, s[28:31], s42 offen{WT(1)}")
        if j < 3: a(f"s_add_u32 s42, s42, {2*GS}")
    a.st(3); a.st_out(0, 28, 's37', 10); a("s_endpgm")
    a(f"K1_mm:\ns_sub_u32 s36, s2, {NCH+NWIN}\ns_lshr_b32 s34, s36, 2\ns_and_b32 s35, s36, 3\ns_load_dwordx8 s[40:47], s[0:1], 32\ns_load_dwordx2 s[48:49], s[0:1], 64\nv_lshlrev_b32 v9, 4, v25\nv_lshlrev_b32 v10, 1, v0")
    a("v_lshrrev_b32 v5, 4, v25\nv_and_b32 v6, 15, v25\nv_xor_b32 v6, v6, v5\nv_lshlrev_b32 v6, 4, v6\nv_lshl_add_u32 v6, v5, 8, v6\nv_lshlrev_b32 v8, 4, v25\nv_and_b32 v3, 31, v25\nv_lshrrev_b32 v4, 5, v25")
    a("s_waitcnt lgkmcnt(0)\ns_cmp_eq_u32 s34, 0\ns_cselect_b32 s52, s40, s44\ns_cselect_b32 s53, s41, s45\ns_cselect_b32 s54, s42, s46\ns_cselect_b32 s55, s43, s47\ns_cselect_b64 s[56:57], -1, 0")
    a.srd(20, 52, 32768); a.srd(24, 54, 32768); a.srd(28, 14, WS_SIZE); a.srd(16, 48, 256)
    a("buffer_load_ushort v10, v10, s[16:19], 0 offen")
    a("s_and_b32 s39, s37, 3\ns_lshl_b32 s39, s39, 6\nv_xor_b32 v7, s39, v6\ns_lshl_b32 s39, s37, 10\ns_mov_b32 m0, s39\ns_lshl_b32 s38, s35, 13\ns_add_u32 s38, s38, s39\nbuffer_load_dwordx4 v7, s[20:23], s38 offen lds")
    a("s_lshl_b32 s38, s37, 12\ns_add_u32 m0, s38, 8192")
    for i in range(4): a(f"v_xor_b32 v7, {64*i}, v6\nv_cndmask_b32 v7, v8, v7, s[56:57]\nbuffer_load_dwordx4 v7, s[24:27], s38 offen offset:{1024*i} lds")
    a("s_and_b32 s39, s37, 3\ns_lshr_b32 s40, s37, 2\ns_lshl_b32 s41, s40, 7")
    a("v_and_b32 v5, 15, v3\nv_xor_b32 v5, v5, v4\nv_lshlrev_b32 v5, 4, v5\nv_lshl_add_u32 v5, v3, 8, v5\nv_xor_b32 v5, s41, v5\ns_lshl_b32 s42, s39, 13\ns_add_u32 s42, s42, 8192\nv_add_u32 v7, s42, v5")
    a("s_waitcnt vmcnt(0)\ns_barrier")
    for u in range(4): a(f"v_xor_b32 v8, {32*u}, v5\nds_read_b128 v[{16+4*u}:{19+4*u}], v8")
    a("s_cmp_eq_u32 s34, 0\ns_cbranch_scc0 K1_mb")
    for u in range(4): a(f"v_xor_b32 v8, {32*u}, v7\nds_read_b128 v[{32+4*u}:{35+4*u}], v8")
    a("s_branch K1_mc\nK1_mb:")
    a("v_lshlrev_b32 v6, 11, v4\nv_lshl_add_u32 v6, v3, 1, v6\ns_lshl_b32 s42, s39, 6\ns_lshl_b32 s43, s40, 14\ns_add_u32 s42, s42, s43\ns_add_u32 s42, s42, 8192\nv_add_u32 v6, s42, v6")
    for u in range(4):
        for t in range(8): a(f"ds_read_u16 v{(48 if t&1 else 32)+4*u+t//2}, v6 offset:{(16*u+t)*256}")
    a("s_waitcnt lgkmcnt(0)")
    for i in range(16): a(f"v_lshl_or_b32 v{32+i}, v{48+i}, 16, v{32+i}")
    a("K1_mc:\ns_waitcnt lgkmcnt(0)")
    for u in range(4): a(f"v_mfma_f32_32x32x16_bf16 v[48:63], v[{16+4*u}:{19+4*u}], v[{32+4*u}:{35+4*u}], {'0' if u == 0 else 'v[48:63]'}")
    a(f"s_lshl_b32 s42, s36, 15\ns_lshl_b32 s43, s39, 13\ns_add_u32 s42, s42, s43\ns_lshl_b32 s43, s40, 12\ns_add_u32 s42, s42, s43\ns_add_u32 s42, s42, {WS_PM}")
    a(f"s_mov_b32 s3, {WS_WFR+WFR_SW+256}\nv_lshlrev_b32 v10, 16, v10\ns_cmp_lg_u32 s36, 0\ns_cbranch_scc1 K1_nw\nbuffer_store_dword v10, v1, s[28:31], s3 offen\nK1_nw:")
    for i in range(4): a(f"buffer_store_dwordx4 v[{48+4*i}:{51+4*i}], v9, s[28:31], s42 offen offset:{1024*i}")
    a.st(3); a.st_out(0, 28, 's37', 10)
    a("K1_end:\ns_endpgm")
    a.end(name, 64, 102 if OPT['stamp'] else 64)

L2_CNT = 0; L2_LU = 512; L2_BU = 1024; L2_LOC = 2048; L2_O = 2304; L2_L = 2304 + 16384; L2_NEW = L2_L + 16384; L2_SIZE = L2_NEW + 50176
def k2(a):
    name = 'p2_kernel'
    a.launch(name, NWIN + 2 + 8*OPT['tlb'], 1024, L2_SIZE)
    a.begin(name)
    a(f"s_cmp_ge_u32 s2, {NWIN+2+8*OPT['tlb']}\ns_cbranch_scc1 K2_xend")
    a.st_init()
    a("s_load_dwordx2 s[14:15], s[0:1], 88")
    a("v_lshrrev_b32 v1, 6, v0\nv_and_b32 v2, 63, v0\nv_readfirstlane_b32 s33, v1")
    a("s_waitcnt lgkmcnt(0)")
    a.srd(28, 14, WS_SIZE)
    if OPT['tlb']:
        a(f"s_cmp_lt_u32 s2, {NWIN+2}\ns_cbranch_scc1 K2_nt")
        a(f"v_lshlrev_b32 v3, 16, v0\ns_mov_b32 s34, {WS_TOK}\nbuffer_load_dword v4, v3, s[28:31], s34 offen\nv_lshlrev_b32 v3, 14, v0\ns_mov_b32 s34, {WS_G+KS}\nbuffer_load_dword v5, v3, s[28:31], s34 offen")
        a("s_load_dwordx2 s[4:5], s[0:1], 72\ns_waitcnt lgkmcnt(0)"); a.srd(8, 4, N*256)
        a("buffer_load_dword v6, v3, s[8:11], 0 offen\ns_waitcnt vmcnt(0)\ns_endpgm\nK2_nt:")
    a(f"s_cmp_ge_u32 s2, {NWIN}\ns_cbranch_scc1 K2_wts")
    k2_window(a)
    a("K2_wts:")
    k2_weights(a)
    a("K2_end:")
    if OPT['cpf'] & 2:
        a("s_cmp_eq_u32 s33, 15\ns_cbranch_scc0 K2_npf\ns_cmp_lt_u32 s2, 16\ns_cbranch_scc0 K2_npf\ns_mov_b64 exec, -1\nv_lshlrev_b32 v3, 2, v2"); a.codepf('hop_kernel', 'K3_end', 3, 4, 52); a("K2_npf:")
    a.st(13); a.st_out(1, 28, 's33', 10); a("K2_xend:\ns_endpgm")
    a.end(name, 128, 102)

def k2_window(a):
    Ev, NS, ND = 20, 24, 28
    MK = lambda j: f"s[{40+2*j}:{41+2*j}]"
    a(f"v_lshlrev_b32 v3, 4, v0\ns_mul_i32 s34, s2, {PWS}\ns_add_u32 s65, s34, {WS_PART}\nbuffer_load_dwordx4 v[{Ev}:{Ev+3}], v3, s[28:31], s65 offen")
    a(f"v_lshlrev_b32 v4, 3, v0\ns_mov_b32 s35, {WS_IRR}\nbuffer_load_dwordx2 v[6:7], v4, s[28:31], s35 offen")
    a("v_lshlrev_b32 v5, 4, v2")
    a(f"s_lshl_b32 s34, s33, 10\ns_add_u32 s35, s34, {WS_NEWID}\ns_add_u32 s34, s34, {L2_NEW}")
    for i in range(4):
        if i == 3: a("s_cmp_lg_u32 s33, 0\ns_cbranch_scc1 K2_nd")
        a(f"s_mov_b32 m0, s34\nbuffer_load_dwordx4 v5, s[28:31], s35 offen lds")
        if i < 3: a("s_add_u32 s34, s34, 16384\ns_add_u32 s35, s35, 16384")
    a(f"s_lshl_b32 s35, s2, 8\ns_add_u32 s35, s35, {WS_LOC}\ns_mov_b32 m0, {L2_LOC}\nv_lshlrev_b32 v8, 2, v2\nbuffer_load_dword v8, s[28:31], s35 offen lds")
    a("K2_nd:")
    a("v_lshlrev_b32 v8, 2, v0\nv_mov_b32 v10, 0\ns_cmp_ge_u32 s33, 8\ns_cbranch_scc1 K2_nz\ns_cmp_ge_u32 s33, 2\ns_cselect_b32 s35, -1, 0\nv_mov_b32 v9, s35\nds_write_b32 v8, v9\nK2_nz:")
    a("v_bfe_u32 v9, v0, 2, 5\nv_lshrrev_b32 v11, 7, v0\nv_lshl_add_u32 v9, v9, 3, v11")
    a(f"v_cmp_gt_u32 vcc, {NCH}, v9\ns_mov_b64 s[38:39], vcc\nv_mov_b32 v12, 1\nv_mov_b32 v13, 0xfc\ns_mov_b32 s64, 0\ns_mov_b32 s66, {L2_L}\ns_mov_b32 s67, 0")
    levelpos(a, 2, 60, 61)
    a("s_cmp_lt_u32 s33, 8\ns_cselect_b32 s60, s60, s61\ns_sub_u32 s61, s60, s62\ns_mul_i32 s63, s61, 43\ns_lshr_b32 s63, s63, 8\ns_cmp_ge_u32 s61, 84\ns_cselect_b32 s63, 14, s63\ns_cmp_ge_u32 s61, 91\ns_cselect_b32 s63, 15, s63")
    a("s_mul_i32 s68, s63, 6\ns_cselect_b32 s68, 91, s68\ns_sub_u32 s69, s61, s68\ns_add_u32 s68, s68, s62")
    a(f"s_lshl_b32 s68, s68, 2\ns_add_u32 s68, s68, {WS_TQ}\ns_buffer_load_dwordx8 s[48:55], s[28:31], s68")
    a(f"s_mul_i32 s62, s62, 10700\ns_lshr_b32 s62, s62, 16\ns_add_u32 s62, s62, s63\ns_mul_i32 s68, s62, {RS}\ns_add_u32 s68, s68, {WS_IDX}")
    a("s_waitcnt vmcnt(0) lgkmcnt(0)\ns_barrier"); a.st(1)
    a("s_mov_b32 s56, 0\ns_and_b32 s57, s48, 0xffff")
    for i in range(6): a(f"s_cmp_gt_u32 s69, {i}\ns_cselect_b32 s58, s57, 0\ns_cselect_b32 s57, s{49+i}, s57\ns_add_u32 s56, s56, s58\ns_and_b32 s57, s57, 0xffff")
    a("v_or_b32 v6, v6, v7\nv_cmp_ne_u32 vcc, 0, v6\ns_and_b64 vcc, vcc, s[38:39]\ns_cbranch_vccz K2_reg\nv_mov_b32 v6, 0x100\nds_write_b32 v10, v6\nK2_reg:")
    a("K2_loop:\ns_mov_b64 exec, s[38:39]")
    for j in range(4): a(f"v_cmp_ne_u32 {MK(j)}, -1, v{Ev+j}")
    for j in range(4):
        a(f"s_mov_b64 exec, {MK(j)}")
        a(f"v_lshlrev_b32_sdwa v15, 1, v{Ev+j} {SD} src1_sel:WORD_0\nv_lshrrev_b32 v16, 15, v{Ev+j}")
        a(f"ds_read_u16 v{ND+j}, v16 offset:{L2_LOC}\nds_read_u16 v{NS+j}, v15 offset:{L2_NEW}")
    a("s_waitcnt lgkmcnt(0)")
    for j in range(4):
        a(f"s_mov_b64 exec, {MK(j)}\nv_lshlrev_b32 v{ND+j}, 2, v{ND+j}\nds_add_rtn_u32 v{32+j}, v{ND+j}, v12 offset:{L2_CNT}")
        a(f"v_and_or_b32 v{36+j}, v{ND+j}, v13, s66\nv_lshrrev_b32 v16, 8, v{ND+j}\nv_lshl_add_u32 v{36+j}, v16, 13, v{36+j}")
    a("s_waitcnt lgkmcnt(0)")
    for j in range(4):
        a(f"s_mov_b64 exec, {MK(j)}")
        a(f"v_lshrrev_b32 v16, 1, v{32+j}\nv_lshl_add_u32 v15, v16, 8, v{36+j}\nv_and_b32 v16, 1, v{32+j}\nv_lshl_add_u32 v15, v16, 1, v15")
        a(f"v_cmp_gt_u32 vcc, 64, v{32+j}\ns_and_b64 exec, exec, vcc\nds_write_b16 v15, v{NS+j}")
    a(f"s_mov_b64 exec, -1\ns_cmp_lg_u32 s64, 0\ns_cbranch_scc1 K2_pa\nv_cndmask_b32 v15, 0, v12, {MK(3)}\ns_mov_b32 s64, 1")
    a(f"v_mov_b32_dpp v15, v15 quad_perm:[3,3,3,3] {DPPF}\nv_cmp_ne_u32 s[38:39], 0, v15\ns_cmp_eq_u64 s[38:39], 0\ns_cbranch_scc1 K2_pa")
    a(f"s_mov_b64 exec, s[38:39]\ns_add_u32 s65, s65, {WS_PARTB-WS_PART}\nbuffer_load_dwordx4 v[{Ev}:{Ev+3}], v3, s[28:31], s65 offen\ns_waitcnt vmcnt(0)\ns_branch K2_loop")
    a("K2_pa:\ns_waitcnt lgkmcnt(0)\ns_barrier"); a.st(2)
    a("s_mov_b32 s41, s57\ns_mov_b32 s61, s56\ns_lshr_b32 s34, s33, 3\ns_and_b32 s36, s33, 7\ns_lshl_b32 s35, s34, 8\nv_lshl_add_u32 v4, v2, 2, s35\nds_read_b32 v5, v4")
    a(f"s_lshl_b32 s37, s34, 13\ns_add_u32 s37, s37, {L2_L}\ns_lshr_b32 s46, s36, 1\ns_lshl_b32 s46, s46, 8\ns_and_b32 s47, s36, 1\ns_lshl_b32 s47, s47, 1\ns_add_u32 s46, s46, s47\ns_add_u32 s46, s46, s37\nv_lshl_add_u32 v16, v2, 2, s46")
    for t in range(4): a(f"ds_read_u16 v{20+t}, v16 offset:{t*1024}")
    a("s_lshl_b32 s42, s41, 2\ns_waitcnt lgkmcnt(4)\nv_cmp_lt_u32 vcc, s42, v5\ns_min_u32 s42, s42, 32\ns_lshl_b64 s[44:45], -1, s42\ns_not_b32 s44, s44")
    a("s_cbranch_vccz K2_ntq")
    a(f"s_or_b32 s43, s41, 0x10000\nv_mov_b32 v6, s43\ns_lshl_b32 s43, s60, 2\ns_add_u32 s43, s43, {WS_TQ}\ns_mov_b64 exec, 1")
    a("buffer_store_dword v6, v10, s[28:31], s43 offen\ns_mov_b64 exec, -1\nK2_ntq:")
    a("v_min_u32 v15, s42, v5\nv_subrev_u32 v15, s36, v15\nv_add_u32 v15, 7, v15\nv_lshrrev_b32 v15, 3, v15")
    a("s_lshl_b32 s46, s36, 2\nv_add_u32 v17, s46, v2\nv_and_b32 v17, 31, v17\nv_mul_u32_u24 v17, s42, v17\nv_lshrrev_b32 v17, 5, v17\nv_mov_b32 v18, -1\nv_lshlrev_b32 v17, v17, v18")
    a(f"s_lshl_b32 s46, s34, 9\ns_add_u32 s46, s46, {L2_BU}\nv_lshrrev_b32 v8, 5, v2\nv_lshlrev_b32 v8, 8, v8\nv_add_u32 v8, s46, v8")
    a(f"s_lshl_b32 s47, s34, 13\ns_add_u32 s47, s47, {L2_O}\nv_lshl_add_u32 v19, v2, 2, s47")
    a("v_mov_b32 v24, s44\nv_mov_b32 v26, -1\nv_mov_b32 v27, -1\nv_bfrev_b32 v40, 1\nv_mov_b32 v41, 0x7c\nv_mov_b32 v42, s44\ns_waitcnt lgkmcnt(0)")
    a("v_lshl_or_b32 v20, v21, 16, v20\nv_lshl_or_b32 v21, v23, 16, v22\nv_cmp_lt_u32 vcc, 0, v15")
    a("K2_rd:\ns_mov_b64 exec, vcc\ns_cbranch_execz K2_sd")
    a("v_and_b32 v28, v24, v26\nv_lshlrev_b32 v25, 2, v20\nv_and_b32 v31, v28, v17\nv_cmp_ne_u32 s[48:49], 0, v31\nv_cmp_ne_u32 s[52:53], 0, v28\nv_and_or_b32 v25, v25, v41, v8")
    a("v_cndmask_b32 v31, v28, v31, s[48:49]\nv_sub_u32 v32, 0, v31\nv_and_b32 v34, v31, v32\ns_mov_b64 s[50:51], 0\ns_andn2_b64 s[54:55], exec, s[52:53]\ns_cbranch_scc0 K2_l1")
    a("s_mov_b64 exec, s[54:55]\nv_and_b32 v29, v24, v27\nv_cmp_eq_u32 s[50:51], 0, v29\nv_add_u32 v25, 128, v25\nv_cndmask_b32 v29, v29, v24, s[50:51]\nv_ffbh_u32 v29, v29\nv_lshrrev_b32 v34, v29, v40\ns_mov_b64 exec, vcc\nK2_l1:")
    a(f"v_not_b32 v33, v34\nds_and_rtn_b32 v35, v4, v33 offset:{L2_LU}\nds_and_rtn_b32 v36, v25, v33\nv_ffbl_b32 v37, v34\nv_lshl_add_u32 v37, v37, 8, v19")
    a("s_waitcnt lgkmcnt(0)\nv_and_b32 v24, s44, v35\nv_and_b32 v35, v35, v34\nv_and_b32 v38, v36, v34\nv_cndmask_b32 v39, v38, v34, s[50:51]\nv_and_b32 v39, v39, v35\nv_cmp_ne_u32 s[48:49], 0, v39")
    a(f"s_andn2_b64 exec, exec, s[48:49]\nds_or_b32 v4, v35 offset:{L2_LU}\nds_or_b32 v25, v38\nv_cndmask_b32 v26, v26, v36, s[52:53]\nv_cndmask_b32 v27, v36, v27, s[52:53]")
    a("s_mov_b64 exec, s[48:49]\nds_write_b16 v37, v20\nv_and_b32 v24, v24, v33\nv_alignbit_b32 v20, v21, v20, 16\nv_lshrrev_b32 v21, 16, v21\nv_mov_b32 v26, -1\nv_mov_b32 v27, -1\nv_subrev_u32 v15, 1, v15")
    a("s_mov_b64 exec, vcc\nv_cmp_eq_u32 s[48:49], 0, v24\nv_cmp_lt_u32 vcc, 0, v15\ns_add_u32 s67, s67, 1\nv_cndmask_b32 v24, v24, v42, s[48:49]\ns_cmp_lt_u32 s67, 4096\ns_cbranch_scc1 K2_rd")
    a(f"s_or_b32 s43, s41, 0x10000\nv_mov_b32 v6, s43\ns_lshl_b32 s43, s60, 2\ns_add_u32 s43, s43, {WS_TQ}\ns_mov_b64 exec, 1\nbuffer_store_dword v6, v10, s[28:31], s43 offen")
    a("K2_sd:\ns_mov_b64 exec, -1")
    if OPT['stamp'] in (1, 2): a("s_mov_b32 s82, s67")
    a("s_waitcnt lgkmcnt(0)\ns_barrier"); a.st(3)
    a("s_cmp_ge_u32 s36, s41\ns_cbranch_scc1 K2_end")
    a(f"s_lshl_b32 s46, s36, 10\nv_add_u32 v11, s46, v19\nv_and_b32 v18, 31, v2\nv_lshl_add_u32 v18, v18, 2, v8")
    a(f"ds_read_b32 v16, v4 offset:{L2_LU}\nds_read_b32 v18, v18\nds_read2st64_b32 v[20:21], v11 offset0:0 offset1:1\nds_read2st64_b32 v[22:23], v11 offset0:2 offset1:3")
    a(f"s_lshl_b32 s47, s36, 9\ns_add_u32 s37, s37, s47\nv_lshl_add_u32 v12, v2, 2, s37\nds_read2st64_b32 v[24:25], v12 offset0:16 offset1:17")
    a(f"v_mov_b32 v13, 0xffff\nv_lshlrev_b32 v15, 4, v2\ns_add_u32 s61, s61, s36\ns_lshr_b32 s39, s61, 1\ns_lshl_b32 s39, s39, 10\ns_and_b32 s61, s61, 1\ns_lshl_b32 s61, s61, 3\ns_add_u32 s39, s39, s61\ns_add_u32 s39, s39, s68\ns_lshl_b32 s38, s36, 2\ns_mov_b32 s50, -1\ns_mov_b32 s51, 0\ns_waitcnt lgkmcnt(3)")
    a("v_lshrrev_b32 v16, s38, v16\nv_lshrrev_b32 v18, s38, v18")
    for t in range(4):
        a(f"v_and_b32 v26, {1 << t}, v18\nv_cmp_ne_u32 s[{52+2*t}:{53+2*t}], 0, v26")
    for r in range(52, 60): a(f"s_ff1_i32_b32 s{r}, s{r}\ns_and_b32 s{r}, s{r}, 31\ns_add_u32 s{r}, s{r}, {ZB}")
    a("s_waitcnt lgkmcnt(0)")
    for t in range(4):
        a(f"v_mov_b32 v26, s{52+2*t}\nv_mov_b32 v27, s{53+2*t}\nv_cndmask_b32 v26, v27, v26, s[50:51]\nv_and_b32 v27, {1 << t}, v16\nv_cmp_ne_u32 vcc, 0, v27\nv_cndmask_b32 v{20+t}, v{20+t}, v26, vcc")
    a("v_and_b32 v20, v13, v20\nv_and_b32 v22, v13, v22\nv_lshl_or_b32 v20, v21, 17, v20\nv_lshl_or_b32 v21, v23, 17, v22\nbuffer_store_dwordx2 v[20:21], v15, s[28:31], s39 offen" + WT(4))
    a("s_add_u32 s36, s36, 8\ns_cmp_ge_u32 s36, s41\ns_cbranch_scc1 K2_end")
    a(f"v_mov_b32 v43, -1\ns_add_u32 s38, s38, 32\nv_subrev_u32 v5, s38, v5\nv_mov_b32 v14, {ZB | (ZB << 16)}")
    for h in range(2):
        a(f"v_cmp_lt_i32 vcc, {2*h}, v5\nv_cndmask_b32 v26, 0, v13, vcc\nv_cmp_lt_i32 vcc, {2*h+1}, v5\nv_cndmask_b32 v26, v26, v40, vcc".replace("v40", "v43"))
        a(f"v_bfi_b32 v{24+h}, v26, v{24+h}, v14\nv_and_b32 v26, 0xffff0000, v{24+h}\nv_add_u32 v{24+h}, v{24+h}, v26")
    a("s_add_u32 s39, s39, 4096\nbuffer_store_dwordx2 v[24:25], v15, s[28:31], s39 offen\ns_branch K2_end")

def f2u(x): return struct.unpack('<I', struct.pack('<f', x))[0]
SCL = f2u(math.log2(math.e)/math.sqrt(128.0))
FO = lambda i: 16*(i & 1) + 4*(i >> 1)
def k2_weights(a):
    S0 = 66048
    a(f"s_sub_u32 s34, s2, {NWIN}")
    a(f"s_lshl_b32 s39, s34, 17\ns_lshl_b32 s60, s33, 13\ns_add_u32 s39, s39, s60\ns_add_u32 s39, s39, {WS_PM}\ns_add_u32 s60, s39, 4096\nv_lshlrev_b32 v8, 4, v2")
    for i in range(4): a(f"buffer_load_dwordx4 v[{80+4*i}:{83+4*i}], v8, s[28:31], s39 offen offset:{1024*i}\nbuffer_load_dwordx4 v[{96+4*i}:{99+4*i}], v8, s[28:31], s60 offen offset:{1024*i}")
    a("s_lshr_b32 s35, s33, 2\ns_and_b32 s36, s33, 3\nv_and_b32 v3, 31, v2\nv_lshrrev_b32 v4, 5, v2")
    a(f"v_lshlrev_b32 v7, 2, v0\ns_cmp_ge_u32 s33, 8\ns_cbranch_scc1 K2w_nw\ns_mov_b32 s3, {WS_WFR+WFR_SW+256}\nbuffer_load_dword v8, v7, s[28:31], s3 offen")
    a(f"v_add_u32 v7, {S0}, v7\ns_waitcnt vmcnt(0)\nds_write_b32 v7, v8\nK2w_nw:")
    a("s_waitcnt vmcnt(0) lgkmcnt(0)\ns_barrier"); a.st(1)
    for i in range(16): a(f"v_add_f32 v{80+i}, v{80+i}, v{96+i}")
    a(f"s_mul_i32 s39, s35, {32*516}\ns_lshl_b32 s60, s36, 7\ns_add_u32 s39, s39, s60\nv_mul_u32_u24 v6, {4*516}, v4\nv_lshl_add_u32 v6, v3, 2, v6\nv_add_u32 v6, s39, v6")
    a(f"s_add_u32 s60, s60, {S0}\nv_lshl_add_u32 v7, v3, 2, s60\nds_read_b32 v8, v7")
    a.st(4)
    if OPT['stamp'] in (1, 2): a("v_mov_b32 v12, v95")
    a.st(5)
    for r in range(16): a(f"ds_write_b32 v6, v{80+r} offset:{(8*(r>>2)+(r&3))*516}")
    a.st(2)
    a("v_add_f32 v9, v80, v81")
    for r in range(2, 16): a(f"v_add_f32 v9, v9, v{80+r}")
    a("ds_add_f32 v7, v9 offset:1536\ns_waitcnt lgkmcnt(1)")
    a.st(6)
    for r in range(16): a(f"v_mul_f32 v{48+r}, v8, v{80+r}")
    for q in (80, 48):
        for i in range(8): a(f"v_add_f32_dpp v{q+i}, v{q+i}, v{q+i} row_ror:8 row_mask:0xf bank_mask:0x3")
        for i in range(8): a(f"v_add_f32_dpp v{q+i}, v{q+8+i}, v{q+8+i} row_ror:8 row_mask:0xf bank_mask:0xc")
        for i in range(4): a(f"v_add_f32_dpp v{q+i}, v{q+i}, v{q+i} row_half_mirror row_mask:0xf bank_mask:0x5")
        for i in range(4): a(f"v_add_f32_dpp v{q+i}, v{q+4+i}, v{q+4+i} row_half_mirror row_mask:0xf bank_mask:0xa")
        for i in range(4): a(f"v_add_f32_dpp v{q+i}, v{q+i}, v{q+i} quad_perm:[1,0,3,2] {DPPF}")
        for i in range(4): a(f"v_add_f32_dpp v{q+i}, v{q+i}, v{q+i} quad_perm:[2,3,0,1] {DPPF}")
        a(f"v_permlane16_swap_b32 v{q}, v{q+1}\nv_permlane16_swap_b32 v{q+2}, v{q+3}\nv_add_f32 v{q}, v{q}, v{q+1}\nv_add_f32 v{q+2}, v{q+2}, v{q+3}")
    a.st(7)
    a(f"v_bfe_u32 v10, v2, 2, 2\nv_lshlrev_b32 v10, 5, v10\nv_bfe_u32 v11, v2, 4, 1\nv_lshl_add_u32 v10, v11, 2, v10\nv_lshl_add_u32 v10, v4, 4, v10\ns_lshl_b32 s60, s35, 7\ns_add_u32 s60, s60, {S0}\nv_add_u32 v10, s60, v10")
    a("s_mov_b32 exec_lo, 0x11111111\ns_mov_b32 exec_hi, 0x11111111\nds_add_f32 v10, v80 offset:512\nds_add_f32 v10, v82 offset:520\nds_add_f32 v10, v48 offset:1024\nds_add_f32 v10, v50 offset:1032\ns_mov_b64 exec, -1")
    a("s_waitcnt lgkmcnt(0)"); a.st(8); a("s_barrier"); a.st(3)
    a(f"v_lshlrev_b32 v5, 3, v2\nv_add_u32 v5, {S0}, v5\nds_read_b64 v[8:9], v5\nds_read_b64 v[10:11], v5 offset:512\nds_read_b64 v[12:13], v5 offset:1024\ns_waitcnt lgkmcnt(0)")
    a("v_add_f32 v8, v8, v9\nv_add_f32 v10, v10, v11\nv_add_f32 v12, v12, v13")
    for v in (8, 10, 12): a.red63('v_add_f32', v)
    a("v_readlane_b32 s60, v8, 63\nv_readlane_b32 s61, v10, 63\nv_readlane_b32 s62, v12, 63")
    a(f"s_mov_b32 s63, {f2u(1/128.)}\ns_mov_b32 s64, {f2u(-1/128.)}\ns_mov_b32 s65, {SCL}\nv_lshlrev_b32 v15, 4, v2")
    a(f"s_lshl_b32 s66, s33, 11\ns_lshl_b32 s67, s34, 15\ns_add_u32 s66, s66, s67\ns_add_u32 s66, s66, {WS_WFR}")
    a("s_lshr_b32 s35, s33, 2\ns_and_b32 s36, s33, 3\ns_lshl_b32 s36, s36, 1")
    a("s_cmp_eq_u32 s34, 0\ns_cbranch_scc0 K2w_fb")
    a("v_and_b32 v5, 1, v3\nv_lshrrev_b32 v6, 2, v3\nv_lshl_or_b32 v5, v6, 1, v5\nv_bfe_u32 v6, v3, 1, 1\nv_lshl_or_b32 v5, v6, 4, v5")
    a("s_lshl_b32 s37, s35, 5\nv_add_u32 v5, s37, v5")
    a(f"v_lshlrev_b32 v7, 2, v5\nv_add_u32 v7, {S0}, v7\nds_read_b32 v14, v7 offset:512")
    a(f"s_lshl_b32 s37, s36, 6\nv_lshl_add_u32 v6, v4, 3, s37\nv_mul_u32_u24 v5, 516, v5\nv_add_u32 v5, v5, v6\nv_add_u32 v6, {S0+1536}, v6")
    for h in range(2):
        for i in range(4):
            a(f"ds_read2_b32 v[{16+16*h+2*i}:{17+16*h+2*i}], v5 offset0:{8*h+FO(i)} offset1:{8*h+FO(i)+1}")
            a(f"ds_read2_b32 v[{24+16*h+2*i}:{25+16*h+2*i}], v6 offset0:{8*h+FO(i)} offset1:{8*h+FO(i)+1}")
    a("v_mov_b32 v8, s61\nv_mul_f32 v8, s63, v8\ns_waitcnt lgkmcnt(0)\nv_sub_f32 v14, v8, v14\nv_mul_f32 v14, s63, v14")
    for h in range(2):
        for j in range(8):
            x = 16+16*h+j
            a(f"v_add_f32 v{x}, v{x}, v14\nv_fmac_f32 v{x}, s64, v{x+8}\nv_mul_f32 v{x}, s65, v{x}")
        for i in range(4): a(f"v_cvt_pk_bf16_f32 v{48+4*h+i}, v{16+16*h+2*i}, v{17+16*h+2*i}")
        a(f"buffer_store_dwordx4 v[{48+4*h}:{51+4*h}], v15, s[28:31], s66 offen offset:{1024*h}")
    a("s_branch K2_end\nK2w_fb:")
    a("s_lshr_b32 s37, s35, 1\ns_lshl_b32 s37, s37, 8\ns_and_b32 s38, s35, 1\ns_lshl_b32 s38, s38, 2\ns_add_u32 s37, s37, s38\nv_lshl_add_u32 v5, v3, 3, s37")
    a(f"v_add_u32 v7, {S0+1536}, v5\nds_read_b32 v14, v7")
    a(f"s_mul_i32 s37, s36, {16*516}\nv_mul_u32_u24 v6, {2*516}, v4\nv_add3_u32 v5, v5, v6, s37")
    for h in range(2):
        for i in range(4):
            for c in range(2): a(f"ds_read_b32 v{16+8*h+2*i+c}, v5 offset:{(8*h+FO(i)+c)*516}")
    a("s_waitcnt lgkmcnt(0)")
    for h in range(2):
        for j in range(8): a(f"v_fmac_f32 v{16+8*h+j}, s64, v14")
        for i in range(4): a(f"v_cvt_pk_bf16_f32 v{48+4*h+i}, v{16+8*h+2*i}, v{17+8*h+2*i}")
        a(f"buffer_store_dwordx4 v[{48+4*h}:{51+4*h}], v15, s[28:31], s66 offen offset:{1024*h}")
    a("s_cmp_ge_u32 s33, 8\ns_cbranch_scc1 K2_end")
    a("v_and_b32 v5, 3, v2\nv_lshrrev_b32 v6, 5, v2\nv_max_u32 v7, 1, v5\nv_lshlrev_b32 v7, 9, v7\nv_lshl_add_u32 v7, v6, 3, v7")
    a(f"s_lshr_b32 s37, s33, 1\ns_lshl_b32 s37, s37, 7\ns_and_b32 s38, s33, 1\ns_lshl_b32 s38, s38, 5\ns_add_u32 s37, s37, s38\ns_add_u32 s37, s37, {S0-512}\nv_add_u32 v7, s37, v7")
    for i in range(4): a(f"ds_read2_b32 v[{16+2*i}:{17+2*i}], v7 offset0:{FO(i)} offset1:{FO(i)+1}")
    a("v_mov_b32 v8, s61\nv_mov_b32 v9, s62\nv_cmp_eq_u32 s[40:41], 2, v5\nv_cmp_eq_u32 s[42:43], 3, v5\nv_cmp_eq_u32 s[44:45], 0, v5")
    a("v_cndmask_b32 v8, 0, v8, s[40:41]\nv_cndmask_b32 v8, v8, v9, s[42:43]")
    a("v_lshrrev_b32 v10, 2, v2\nv_lshrrev_b32 v11, 4, v2\nv_xor_b32 v10, v10, v11\nv_and_b32 v10, 1, v10\nv_cmp_eq_u32 s[46:47], 0, v10\ns_waitcnt lgkmcnt(0)")
    for j in range(8): a(f"v_fmac_f32 v{16+j}, s64, v8\nv_cndmask_b32 v{16+j}, v{16+j}, 1.0, s[44:45]\nv_cndmask_b32 v{16+j}, 0, v{16+j}, s[46:47]")
    for i in range(4): a(f"v_cvt_pk_bf16_f32 v{48+i}, v{16+2*i}, v{17+2*i}")
    a(f"s_lshl_b32 s37, s33, 10\ns_add_u32 s37, s37, {WS_WFR+WFR_E}\nbuffer_store_dwordx4 v[48:51], v15, s[28:31], s37 offen")
    a(f"v_mov_b32 v8, s60\ns_mov_b32 s37, {WS_WFR+WFR_SW}\ns_mov_b64 exec, 1\nbuffer_store_dword v8, v15, s[28:31], s37 offen")


NQ = 44; DEP = 2; NBUF = 3
QB = QN*4
L3_SIZE = GS + 64 + QN*8
ACC, AOP, ADR, BUF, TMP, GK, DIS, IDX = 2, 6, 8, 12, 24, 26, 33, 40
SPIN = 1 << 20
TSC = lambda: ('', ' nt', ' sc1', ' sc0 sc1', ' sc0', ' sc1 nt')[OPT['tsc']]
XP = 2
NL = NQ//2
def k3(a):
    name = 'hop_kernel'
    a.launch(name, 256, 1024, L3_SIZE)
    a.begin(name)
    a("s_cmp_ge_u32 s2, 256\ns_cbranch_scc1 K3_end")
    a.st_init()
    a("s_load_dwordx2 s[4:5], s[0:1], 88")
    a("v_lshrrev_b32 v4, 6, v0\nv_and_b32 v5, 63, v0\nv_readfirstlane_b32 s19, v4")
    a("s_lshr_b32 s16, s2, 3\ns_and_b32 s16, s16, 3\ns_and_b32 s17, s2, 7\ns_lshl_b32 s17, s17, 3\ns_lshr_b32 s18, s2, 5\ns_or_b32 s18, s18, s17")
    a("s_mul_i32 s20, s19, 6\ns_cmp_eq_u32 s19, 15\ns_cselect_b32 s20, 91, s20\ns_cmp_ge_u32 s19, 14\ns_cselect_b32 s21, 7, 6")
    a("s_mul_i32 s48, s16, 98\ns_add_u32 s48, s48, s20")
    a("v_lshlrev_b32 v0, 2, v5\nv_lshlrev_b32 v8, 4, v5")
    a("s_waitcnt lgkmcnt(0)")
    a.srd(8, 4, WS_SIZE)
    a(f"s_lshl_b32 s49, s48, 2\ns_add_u32 s49, s49, {WS_TQ}\ns_buffer_load_dwordx8 s[40:47], s[8:11], s49")
    a("s_getreg_b32 s50, hwreg(HW_REG_XCC_ID)\ns_and_b32 s50, s50, 0xff\ns_add_u32 s50, s50, 1")
    a(f"s_mul_i32 s51, s18, {FGS}\ns_add_u32 s51, s51, {WS_FLAGS}\ns_cmp_lg_u32 s19, 0\ns_cbranch_scc1 K3_nox")
    a(f"s_lshl_b32 s52, s16, 2\ns_add_u32 s52, s52, s51\nv_mov_b32 v4, s50\nv_mov_b32 v6, 0\nv_mov_b32 v7, {GS}\ns_mov_b64 exec, 1")
    a("buffer_store_dword v4, v0, s[8:11], s52 offen offset:2048 sc1\nds_write_b32 v7, v6\ns_mov_b64 exec, -1\nK3_nox:")
    a(f"s_mul_i32 s39, s18, {GS}\ns_add_u32 s39, s39, {WS_G}")
    a("s_lshl_b32 s52, s19, 10\ns_add_u32 s53, s52, s39")
    for i in range(7):
        if i == 6: a("s_cmp_ge_u32 s19, 2\ns_cbranch_scc1 K3_nt")
        a("s_mov_b32 m0, s52\nbuffer_load_dwordx4 v8, s[8:11], s53 offen lds")
        if i < 6: a("s_add_u32 s52, s52, 16384\ns_add_u32 s53, s53, 16384")
    a("K3_nt:")
    a(f"s_lshl_b32 s52, s48, 8\ns_add_u32 s52, s52, {WS_DISP}")
    for i in range(7): a(f"buffer_load_dword v{DIS+i}, v0, s[8:11], s52 offen offset:{i*256}")
    a(f"v_mul_u32_u24 v4, 24, v5\nv_mov_b32 v6, 364\nv_cmp_eq_u32 vcc, 15, v5\nv_cndmask_b32 v4, v4, v6, vcc\ns_mul_i32 s52, s16, 392\ns_add_u32 s52, s52, {WS_TQ}\ns_mov_b64 exec, 0xffff")
    a(f"buffer_load_dwordx4 v[{BUF}:{BUF+3}], v4, s[8:11], s52 offen\nbuffer_load_dwordx3 v[{BUF+4}:{BUF+6}], v4, s[8:11], s52 offen offset:16\ns_mov_b64 exec, -1")
    a(f"s_lshl_b32 s56, s16, 4\ns_add_u32 s56, s56, s19\ns_mul_i32 s56, s56, {RS}\ns_add_u32 s56, s56, {WS_IDX}")
    def idxld(p):
        if p and p % 4 == 0: a("s_add_u32 s56, s56, 4096")
        a(f"buffer_load_dwordx4 v[{IDX+4*p}:{IDX+4*p+3}], v8, s[8:11], s56 offen offset:{(p&3)*1024}")
    for p in range(XP+1): idxld(p)
    a("s_waitcnt lgkmcnt(0)")
    a("s_cmp_eq_u32 s21, 7\ns_cselect_b32 s46, s46, 0")
    for i in range(1, 7): a(f"s_add_u32 s{40+i}, s{40+i}, s{39+i}")
    a(f"s_min_u32 s47, s46, {NQ}\ns_sub_u32 s28, s47, {DEP+1}\ns_mov_b64 s[32:33], 0")
    for i in range(7): a(f"s_sub_u32 s{40+i}, s{40+i}, 1\ns_bitset1_b64 s[32:33], s{40+i}")
    a("s_add_u32 s52, s28, 1\ns_lshr_b64 s[34:35], s[32:33], s52\ns_mov_b64 s[24:25], s[32:33]\ns_bitset1_b64 s[24:25], s28")
    a(f"s_waitcnt vmcnt({XP+1})"); a.st(2); a("s_barrier"); a.st(3)
    a("s_lshl_b32 m0, s48, 8")
    for i in range(7): a(f"ds_read_addtid_b32 v{GK+i} offset:{i*256}")
    a(f"buffer_load_dword v{TMP}, v0, s[8:11], s51 offen offset:2048 sc1")
    for p in range(XP+1, NL):
        a(f"s_cmp_le_u32 s47, {2*p}\ns_cbranch_scc1 K3_ld{p}"); idxld(p)
    a("s_branch K3_ld")
    for p in range(XP+1, NL):
        a(f"K3_ld{p}:\ns_mov_b64 exec, 1\nbuffer_load_dword v{IDX+4*p}, v0, s[8:11], s49 offen")
    a("s_mov_b64 exec, -1\nK3_ld:"); a.st(1)
    tb = 32; lb = 2; TBS_ = TOS
    a(f"v_lshrrev_b32 v1, {1+lb}, v5\nv_mul_u32_u24 v1, {TBS_}, v1\nv_and_b32 v4, {(2 << lb)-1}, v5\nv_lshl_add_u32 v1, v4, 4, v1\nv_and_b32 v4, 3, v5")
    a(f"v_cmp_eq_u32 s[54:55], 0, v4\nv_cmp_eq_u32 s[56:57], 1, v4\nv_mov_b32 v2, 0x3f80\nv_mov_b32 v3, 0x3f800000")
    a(f"v_cndmask_b32 v{AOP}, 0, v2, s[54:55]\nv_cndmask_b32 v{AOP}, v{AOP}, v3, s[56:57]\nv_mov_b32 v{AOP+1}, v{AOP}")
    for i in range(4): a(f"v_mov_b32 v{ACC+i}, 0")
    a("s_lshl_b32 s52, s19, 7\ns_add_u32 s65, s52, s51")
    a("s_lshl_b32 s58, s16, 2\ns_add_u32 s58, s58, s65")
    a(f"s_lshl_b32 s59, s20, 8\ns_mul_i32 s60, s16, {QB}\ns_add_u32 s60, s60, s59")
    a(f"s_mul_i32 s61, s48, {(64//tb)*TBS_}\ns_lshl_b32 s52, s18, {5+lb}\ns_add_u32 s61, s61, s52\ns_add_u32 s61, s61, {WS_TOK}")
    for r in range(1, 4): a(f"s_add_u32 s52, s16, {r}\ns_and_b32 s52, s52, 3\ns_mul_i32 s52, s52, {QB}\ns_add_u32 s{65+r}, s52, s59")
    a(f"s_mov_b32 s22, 1\ns_mov_b32 s64, 0")
    def ad1(p, h):
        r = IDX+2*p+(h >> 1)
        a(f"v_lshrrev_b32 v{ADR+h}, 15, v{r}" if h & 1 else f"v_lshlrev_b32_sdwa v{ADR+h}, 2, v{r} {SD} src1_sel:WORD_0")
    def adr(p):
        for h in range(4): ad1(p, h)
    def rd(p):
        for h in range(4): a(f"ds_read_b32 v{BUF+4*(p%NBUF)+h}, v{ADR+h}")
    def mf(p, h):
        b = BUF+4*(p%NBUF)+2*h
        if OPT['exp'] & 2: return
        a(f"v_mfma_f32_4x4x4_16b_bf16 v[{ACC}:{ACC+3}], v[{AOP}:{AOP+1}], v[{b}:{b+1}], v[{ACC}:{ACC+3}]")
    def vw(p):
        if p % 4 == 0 and p >= 8: a(f"s_waitcnt vmcnt({max(NL-2-p//2, 0)})")
    CALL = "s_swappc_b64 s[30:31], s[26:27]"
    T0, T1 = TMP, TMP+1
    a(f"s_mov_b64 exec, 15\ns_waitcnt vmcnt({NL-4})\nK3_xp:\nv_cmp_eq_u32 vcc, 0, v{TMP}\ns_cbranch_vccz K3_xb\ns_add_u32 s64, s64, 1\ns_cmp_gt_u32 s64, {SPIN}\ns_cbranch_scc1 K3_xb")
    a(f"buffer_load_dword v{TMP}, v0, s[8:11], s51 offen offset:2048 sc1\ns_waitcnt vmcnt(0)\ns_branch K3_xp\nK3_xb:")
    a(f"v_cmp_ne_u32 vcc, s50, v{TMP}\ns_cmp_lg_u64 vcc, 0\ns_cselect_b32 s23, 1, 0\ns_mov_b64 exec, -1")
    a(f"s_mov_b64 exec, 0xffff\nv_add3_u32 v{BUF}, v{BUF}, v{BUF+1}, v{BUF+2}\nv_add3_u32 v{BUF}, v{BUF}, v{BUF+3}, v{BUF+4}\nv_add_u32 v{BUF}, v{BUF}, v{BUF+5}\ns_mov_b64 exec, 0xc000\nv_add_u32 v{BUF}, v{BUF}, v{BUF+6}\ns_mov_b64 exec, 0xffff")
    a(f"v_cmp_lt_u32 vcc, {NQ}, v{BUF}\ns_cmp_lg_u64 vcc, 0\ns_cselect_b32 s29, 1, {OPT['slow']}\ns_mov_b64 exec, -1")
    a("s_getpc_b64 s[40:41]\nK3_pc:\ns_add_u32 s40, s40, K3_fl0_0-K3_pc\ns_addc_u32 s41, s41, 0\ns_mul_i32 s42, s23, K3_fl1_0-K3_fl0_0\ns_mov_b32 s43, K3_fl2_0-K3_fl0_0")
    a(f"s_add_u32 s45, s39, {KS}\ns_mov_b32 s63, 0x07060302\ns_waitcnt lgkmcnt(0)")
    if OPT['exp'] & 4:
        a("s_waitcnt vmcnt(0)\nv_lshrrev_b32 v24, 2, v0\nv_lshl_or_b32 v24, v24, 17, v24")
        for p in range(2*NQ): a(f"v_add_u32 v{IDX+p}, {(p*64) | (p*64+64*99) << 17}, v24")
    a("K3_hop:")
    a(f"s_mov_b32 s52, s39\ns_mov_b32 s39, s45\ns_add_u32 s53, s39, {KS}\ns_cmp_eq_u32 s22, 1\ns_cselect_b32 s52, s53, s52\ns_cmp_eq_u32 s23, 0\ns_cselect_b32 s45, s52, s53")
    a(f"s_add_u32 s61, s61, {tb*256}\ns_add_u32 s37, s39, s60\ns_add_u32 s36, s45, s60\ns_mov_b32 s35, 0\ns_bfe_u32 s46, s22, 0x10001\ns_xor_b32 s47, s46, 1\ns_lshl_b32 s47, s47, 16\ns_sub_u32 s62, 0, s46")
    a("s_cmp_eq_u32 s22, 7\ns_cselect_b32 s42, s43, s42\ns_add_u32 s26, s40, s42\ns_addc_u32 s27, s41, 0")
    if OPT['prio'] == 1: a("s_cmp_ge_u32 s19, 8\ns_cbranch_scc1 K3_p2\ns_setprio 3\ns_branch K3_p3\nK3_p2:\ns_setprio 2\nK3_p3:")
    if OPT['prio'] == 2: a("s_setprio 3")
    if OPT['prio'] == 3: a("s_setprio 1")
    a("s_cmp_lg_u32 s29, 0\ns_cbranch_scc1 K3_slow")
    for p in range(DEP): adr(p); rd(p)
    adr(DEP)
    if OPT['wb']: a(f"s_cmp_lg_u32 s19, 0\ns_cbranch_scc1 K3_nwb\ns_cmp_ge_u32 s2, 8\ns_cbranch_scc1 K3_nwb\ns_bitcmp1_b32 {OPT['wb']}, s22\ns_cbranch_scc0 K3_nwb\nbuffer_wbl2 sc1\nK3_nwb:")
    def tok(part):
        if OPT['exp'] & 8: return
        if part == 0: a(f"buffer_store_dwordx4 v[{GK}:{GK+3}], v1, s[8:11], s38 offen{TSC()}")
        if part == 1:
            a(f"v_lshrrev_b32 v{T0}, {4+lb}, v0\nv_mul_u32_u24 v{T0}, {TBS_}, v{T0}\nv_and_b32 v{T1}, {(16 << lb)-4}, v0\nv_lshl_add_u32 v{T0}, v{T1}, 1, v{T0}\ns_add_u32 s38, s38, {(256//tb)*TBS_}")
            a(f"buffer_store_dwordx2 v[{GK+4}:{GK+5}], v{T0}, s[8:11], s38 offen{TSC()}")
        if part == 2:
            l = a.lab('K3_t')
            a(f"s_cmp_eq_u32 s21, 7\ns_cbranch_scc0 {l}\nv_lshrrev_b32 v{T0}, {5+lb}, v0\nv_mul_u32_u24 v{T0}, {TBS_}, v{T0}\nv_and_b32 v{T1}, {(32 << lb)-4}, v0\nv_add_u32 v{T0}, v{T0}, v{T1}\ns_add_u32 s38, s38, {(128//tb)*TBS_}")
            a(f"buffer_store_dword v{GK+6}, v{T0}, s[8:11], s38 offen{TSC()}\n{l}:")
    a(f"s_sub_u32 s38, s61, {tb*256}"); tok(0)
    if OPT['cpf'] & 4:
        a("s_cmp_eq_u32 s22, 7\ns_cbranch_scc0 K3_npf\ns_cmp_eq_u32 s19, 0\ns_cbranch_scc0 K3_npf"); a.codepf('att_kernel', 'K4_end', 0, T0, 52, ACC+3); a("K3_npf:")
    for p in range(NQ-DEP):
        rd(p+DEP); a(f"s_waitcnt lgkmcnt({4*DEP})"); mf(p, 0)
        if p+DEP+1 < NQ:
            vw(p+DEP+1)
            ad1(p+DEP+1, 0); ad1(p+DEP+1, 1); mf(p, 1); ad1(p+DEP+1, 2); ad1(p+DEP+1, 3)
        else: mf(p, 1)
        if OPT['prio'] == 2 and p in (9, 18, 27): a(f"s_setprio {2 - (9, 18, 27).index(p)}")
        if OPT['prio'] == 1 and p in (11, 23): a(f"s_cmp_ge_u32 s19, 8\ns_cbranch_scc0 K3_q{p}\ns_setprio {1 if p == 11 else 0}\nK3_q{p}:")
        a(f"s_bitcmp1_b64 s[24:25], {p}\ns_cbranch_scc1 K3_st{p}\nK3_bk{p}:")
    a("s_endpgm")
    for p in range(NQ-DEP):
        a(f"K3_st{p}:\ns_bitcmp1_b64 s[32:33], {p}\ns_cbranch_scc0 K3_nf{p}\n{CALL}\nK3_nf{p}:")
        a(f"s_cmp_eq_u32 s28, {p}\ns_cbranch_scc1 K3_dr{(p+1)%NBUF}\ns_branch K3_bk{p}")
    for r in range(NBUF):
        a(f"K3_dr{r}:")
        for i in range(DEP):
            a(f"s_waitcnt lgkmcnt({4*(DEP-1-i)})"); mf(r+i, 0); mf(r+i, 1)
            if i < DEP-1: a(f"s_bitcmp1_b32 s34, {i}\ns_cbranch_scc0 K3_dn{r}_{i}\n{CALL}\nK3_dn{r}_{i}:")
            else: a(f"{CALL}\ns_branch K3_hend")
    for m in range(3):
        for l in range(7):
            tg = m == 0 and OPT['px']; sc = ' sc1' if m else ''
            a(f".p2align 7\nK3_fl{m}_{l}:\ns_add_u32 s26, s26, 128\ns_addc_u32 s27, s27, 0")
            if tg and l >= 5:
                a(f"s_cmp_eq_u32 s22, 1\ns_cbranch_scc0 K3_nz{l}\ns_waitcnt vmcnt(0)\nK3_nz{l}:")
            if l in (1, 2): tok(l)
            a(f"v_mul_f32 v{T0}, v{DIS+l}, v{ACC}\nv_mul_f32 v{T1}, v{DIS+l}, v{ACC+1}\nv_mov_b64 v[{ACC}:{ACC+1}], 0")
            if tg: a(f"v_add_u32 v{T0}, s47, v{T0}\nv_cvt_pk_bf16_f32 v{T1}, v{T1}, v{T1}\nv_perm_b32 v{T0}, v{T1}, v{T0}, s63\nv_bfi_b32 v{GK+l}, 1, s46, v{T0}")
            else: a(f"v_cvt_pk_bf16_f32 v{GK+l}, v{T0}, v{T1}")
            if m < 2 and l == 3: a(f"v_lshlrev_b32 v{T0}, 2, v0\nbuffer_store_dwordx4 v[{GK}:{GK+3}], v{T0}, s[8:11], s37 offen{sc}")
            if m < 2 and l == 5: a(f"v_lshlrev_b32 v{T0}, 1, v0\nbuffer_store_dwordx2 v[{GK+4}:{GK+5}], v{T0}, s[8:11], s37 offen offset:1024{sc}")
            if m < 2 and l == 6: a(f"buffer_store_dword v{GK+6}, v0, s[8:11], s37 offen offset:1536{sc}")
            if tg and l in (0, 4):
                a(f"s_cmp_eq_u32 s22, 1\ns_cbranch_scc0 K3_nc{l}\nv_mov_b32 v{T1}, 0")
                for x in ((0, 1, 2), (3, 4, 5, 6))[l >> 2]:
                    if x == 6: a(f"s_cmp_eq_u32 s21, 7\ns_cselect_b32 s36, s36, {WS_SIZE}")
                    a(f"buffer_store_dword v{T1}, v0, s[8:11], s36 offen offset:{x*256}")
                a(f"K3_nc{l}:")
            a("s_setpc_b64 s[30:31]")
            a(f".if (. - K3_fl{m}_{l}) > 128\n.error \"flush too long\"\n.endif")
    AC0 = GS + 64
    a(f"K3_slow:\ns_load_dwordx4 s[72:75], s[0:1], 8\ns_sub_u32 s38, s61, {tb*256}"); tok(0)
    a(f"s_lshl_b32 s52, s20, 9\ns_add_u32 s52, s52, {AC0}\nv_lshl_add_u32 v8, v0, 1, s52\nv_mov_b32 v10, 0\nv_mov_b32 v11, 0")
    for l in range(6): a(f"ds_write_b64 v8, v[10:11] offset:{l*512}")
    a("s_cmp_eq_u32 s21, 7\ns_cbranch_scc0 K3_s6\nds_write_b64 v8, v[10:11] offset:3072\nK3_s6:\ns_waitcnt lgkmcnt(0)")
    a.srd(76, 72, E*4); a.srd(80, 74, E*4)
    a(f"s_barrier\ns_lshl_b32 s52, s19, 8\ns_mul_i32 s53, s16, {QN}\ns_mov_b32 s54, {WS_NEWID}")
    a("K3_sl:\nbuffer_load_dword v12, v0, s[76:79], s52 offen\nbuffer_load_dword v13, v0, s[80:83], s52 offen\nv_add_u32 v14, s52, v0\ns_waitcnt vmcnt(0)\nv_lshlrev_b32 v12, 1, v12\nv_lshlrev_b32 v13, 1, v13")
    a("buffer_load_ushort v12, v12, s[8:11], s54 offen\nbuffer_load_ushort v13, v13, s[8:11], s54 offen\ns_waitcnt vmcnt(0)\nv_lshlrev_b32 v12, 2, v12\nds_read_b32 v12, v12\nv_subrev_u32 v13, s53, v13")
    a(f"v_cmp_gt_u32 vcc, {E*4}, v14\ns_mov_b64 exec, vcc\nv_cmp_gt_u32 vcc, {QN}, v13\ns_mov_b64 exec, vcc\nv_lshlrev_b32 v13, 3, v13\nv_add_u32 v13, {AC0}, v13\ns_waitcnt lgkmcnt(0)")
    a(f"v_lshlrev_b32 v15, 16, v12\nv_and_b32 v12, 0xffff0000, v12\nds_add_f32 v13, v15\nds_add_f32 v13, v12 offset:4\ns_mov_b64 exec, -1\ns_add_u32 s52, s52, 4096\ns_cmp_lt_u32 s52, {E*4}\ns_cbranch_scc1 K3_sl")
    a("s_waitcnt lgkmcnt(0)\ns_barrier")
    for l in range(7):
        if l == 6: a("s_cmp_eq_u32 s21, 7\ns_cbranch_scc0 K3_hend")
        a(f"ds_read_b64 v[{ACC}:{ACC+1}], v8 offset:{l*512}\ns_waitcnt lgkmcnt(0)\n{CALL}")
    a("K3_hend:"); a.st(4)
    if OPT['stamp'] in (1, 2): a("s_cmp_eq_u32 s22, 1\ns_cselect_b32 s80, s74, s80\ns_cselect_b32 s74, 0, s74\ns_cmp_eq_u32 s22, 4\ns_cselect_b32 s82, s84, s82")
    a("s_cmp_eq_u32 s22, 7\ns_cbranch_scc1 K3_fin")
    if OPT['prio']: a(f"s_setprio {OPT['wprio']}")
    a(f"v_mov_b32 v{T0}, s22\nv_mov_b32 v{T1}, 1\nv_mov_b32 v{ACC}, {GS}\ns_mov_b64 exec, 1\nds_add_u32 v{ACC}, v{T1}")
    if OPT['px']: a("s_cmp_gt_u32 s22, 1\ns_cselect_b32 s52, s23, 1\ns_cmp_eq_u32 s52, 0\ns_cbranch_scc1 K3_px")
    a("s_waitcnt vmcnt(0)"); a.st(5)
    a("s_cmp_eq_u32 s23, 0\ns_cbranch_scc0 K3_g1")
    a(f"buffer_store_dword v{T0}, v0, s[8:11], s58 offen\ns_branch K3_g2\nK3_g1:\nbuffer_store_dword v{T0}, v0, s[8:11], s58 offen sc1\nK3_g2:")
    a(f"s_mov_b64 exec, 15")
    NPL = OPT['npl']
    PL = lambda i: f"buffer_load_dword v{BUF+i}, v0, s[8:11], s65 offen sc1"
    for i in range(NPL-1): a(PL(i) + f"\ns_sleep {OPT['slg']}")
    a(f"K3_poll:\ns_add_u32 s64, s64, 1\ns_cmp_gt_u32 s64, {SPIN}\ns_cbranch_scc1 K3_pb")
    for i in range(NPL):
        a(PL((i+NPL-1) % NPL) + f"\ns_waitcnt vmcnt({NPL-1})\nv_cmp_gt_u32 vcc, s22, v{BUF+i}\ns_cbranch_vccz K3_pb\ns_sleep {OPT['slg']}")
    a("s_branch K3_poll\nK3_pb:")
    X = AOP+1; AR = (14, 18, 2); B1 = (22, 23, T1)
    a("s_mov_b32 s35, 2")
    a(f"K3_px:\ns_mov_b64 exec, -1\nv_lshlrev_b32 v{T0}, 1, v0")
    for r in range(3): a(f"s_add_u32 s{53+r}, s{66+r}, s39")
    a(f"K3_pA:\nv_lshlrev_b32 v{X}, 2, v0")
    for r in range(3): a(f"buffer_load_dwordx4 v[{AR[r]}:{AR[r]+3}], v{X}, s[8:11], s{53+r} offen sc1")
    a("K3_pB:")
    for r in range(3): a(f"buffer_load_dwordx2 v[{8+2*r}:{9+2*r}], v{T0}, s[8:11], s{53+r} offen offset:1024 sc1")
    a("s_cmp_eq_u32 s21, 7\ns_cbranch_scc0 K3_p6")
    for r in range(3): a(f"buffer_load_dword v{B1[r]}, v0, s[8:11], s{53+r} offen offset:1536 sc1")
    a("K3_p6:")
    if OPT['px']:
        def chk(rs, first=True):
            for i, r in enumerate(rs): a(f"v_xor_b32 v{X}, s62, v{r}" if (first and i == 0) else f"v_bitop3_b32 v{X}, v{X}, v{r}, s62 bitop3:0xf6")
        a("s_cmp_eq_u32 s35, 2\ns_cbranch_scc1 K3_pD\ns_waitcnt vmcnt(0)\ns_cmp_eq_u32 s35, 1\ns_cbranch_scc1 K3_pC")
        chk(list(range(14, 22)) + [2, 3, 4, 5])
        a(f"v_and_b32 v{X}, 1, v{X}\nv_cmp_ne_u32 vcc, 0, v{X}\ns_cbranch_vccz K3_pE\ns_add_u32 s64, s64, 1\ns_cmp_gt_u32 s64, {SPIN}\ns_cbranch_scc1 K3_pD\ns_sleep {OPT['slp']}\ns_branch K3_pA\nK3_pE:\ns_mov_b32 s35, 1\nK3_pC:")
        chk(range(8, 14)); a("s_cmp_eq_u32 s21, 7\ns_cbranch_scc0 K3_p7"); chk(B1, False); a("K3_p7:")
        a(f"v_and_b32 v{X}, 1, v{X}\nv_cmp_ne_u32 vcc, 0, v{X}\ns_cbranch_vccz K3_pD\ns_add_u32 s64, s64, 1\ns_cmp_gt_u32 s64, {SPIN}\ns_cbranch_scc1 K3_pD\ns_sleep {OPT['slp']}\ns_branch K3_pB")
    a("K3_pD:"); a.st(10 if False else 7)
    a(f"s_lshl_b32 s52, s22, 4\nv_mov_b32 v{T0}, {GS}\ns_mov_b64 exec, 1\nK3_aw:\nds_read_b32 v{X}, v{T0}\ns_waitcnt lgkmcnt(0)\nv_readfirstlane_b32 s53, v{X}\ns_cmp_ge_u32 s53, s52\ns_cbranch_scc1 K3_ad\ns_sleep {OPT['sll']}\ns_branch K3_aw\nK3_ad:\ns_mov_b64 exec, -1"); a.st(6)
    a("s_mov_b32 m0, s60")
    for i in range(6): a(f"ds_write_addtid_b32 v{GK+i} offset:{i*256}")
    a(f"s_cmp_eq_u32 s21, 7\ns_cbranch_scc0 K3_w6\nds_write_addtid_b32 v{GK+6} offset:1536\ns_waitcnt vmcnt(0)")
    for r in range(3): a(f"s_mov_b32 m0, s{66+r}\nds_write_addtid_b32 v{B1[r]} offset:1536")
    a("K3_w6:")
    for r in range(3):
        a(f"s_mov_b32 m0, s{66+r}\ns_waitcnt vmcnt({5-r})")
        for i in range(4): a(f"ds_write_addtid_b32 v{AR[r]+i} offset:{i*256}")
    for r in range(3):
        a(f"s_mov_b32 m0, s{66+r}\ns_waitcnt vmcnt({2-r})")
        for i in range(2): a(f"ds_write_addtid_b32 v{8+2*r+i} offset:{1024+i*256}")
    a(f"v_mov_b32 v{X}, v{AOP}")
    for i in range(4): a(f"v_mov_b32 v{ACC+i}, 0")
    a(f"s_add_u32 s22, s22, 1\ns_waitcnt vmcnt(0) lgkmcnt(0)"); a.st(8); a("s_barrier"); a.st(9)
    if OPT['stamp'] in (1, 2): a("s_cmp_eq_u32 s22, 5\ns_cselect_b32 s83, s84, s83")
    a("s_branch K3_hop")
    if OPT['stamp'] in (1, 2): a("K3_fin:\ns_mov_b32 s81, s64\nK3_fin2:")
    else: a("K3_fin:")
    a("s_mov_b32 s38, s61"); tok(0); tok(1); tok(2); a.st_out(2, 8, 's19', 10)
    a("K3_end:\ns_endpgm")
    a.end(name, 128, 102)

import sched
L4_E = 131072; L4_SCR = L4_E + 8192; L4_SIZE = L4_SCR + 4096
TK = 16; QQ = 48; AL = 64; WF = 80; NWF = 2; TA = 88; CA = 92; IB = 96; SV = (100, 101); AC = (104, 120); PK = (136, 144); SS = 152; OO = 168; CT = 232; PA = 240; EA = 248; PM = (252, 254)
EPS = f2u(1e-5); I128 = f2u(1/128.); LOG2E = f2u(math.log2(math.e))
def k4(a):
    name = 'att_kernel'
    a.launch(name, 256, 256, L4_SIZE)
    a.begin(name)
    W8 = sched.Waits(); sched.VMEM_LAT = OPT['vl']; sched.STRETCH = OPT['str']/100; sched.QLAT = OPT['ql']
    L = []
    def o(text, R=(), W=(), rr=(), pri=0):
        for t in text.split('\n'):
            x = sched.Op(t, R, W, pri); x.r |= {('v', r) for r in rr}; L.append(x)
    def flush(do_sched):
        ops = sched.schedule(L, True) if do_sched else list(L)
        for t in W8.emit(ops): a(t)
        L.clear()
    a("s_cmp_ge_u32 s2, 256\ns_cbranch_scc1 K4_end")
    a.st_init()
    a("s_load_dwordx2 s[4:5], s[0:1], 88\ns_load_dwordx2 s[6:7], s[0:1], 72")
    a("v_lshrrev_b32 v4, 6, v0\nv_and_b32 v0, 63, v0\nv_readfirstlane_b32 s19, v4\nv_lshlrev_b32 v2, 4, v0")
    a("v_lshrrev_b32 v5, 3, v0\nv_and_b32 v6, 7, v0\nv_xor_b32 v6, v6, v5\ns_lshl_b32 s3, s19, 1\nv_xor_b32 v6, s3, v6\nv_lshlrev_b32 v6, 4, v6\nv_lshl_add_u32 v103, v5, 7, v6\nv_xor_b32 v12, 16, v103")
    a("s_mul_i32 s20, s2, 3\ns_lshl_b32 s44, s19, 14")
    a(f"v_lshrrev_b32 v5, 5, v0\nv_bfe_u32 v6, v0, 3, 2\nv_lshlrev_b32 v3, 3, v5\nv_lshlrev_b32 v102, 2, v6\nv_add_u32 v102, {WS_SINV-WS_PERM}, v102")
    a("s_waitcnt lgkmcnt(0)")
    a.srd(8, 4, WS_SIZE); a.srd(12, 6, N*256)
    a(f"s_mov_b32 s3, {WS_WFR+WFR_SW}\ns_buffer_load_dword s24, s[8:11], s3")
    QS = lambda g: 52 + g
    def tdma(t, R=()):
        b = t & 1
        o(f"s_mul_i32 s21, s{60+t}, {TOS}\ns_add_u32 s21, s21, s44\ns_add_u32 s21, s21, {WS_TOK}")
        for x in range(0 if (t > 0 and OPT['exp'] & 64) else 4):
            if x: o("s_add_u32 s21, s21, 4096")
            o(f"s_add_u32 m0, s44, {b*65536 + 4096*x}")
            for y in range(4): o(f"buffer_load_dwordx4 {'v103' if x < 2 else 'v12'}, s[8:11], s21 offen offset:{y*1024} lds", W=[f'dma{t}_{x}{y}', 'q'], R=R, pri=OPT['dp'])
    DM = lambda t: [f'dma{t}_{x}{y}' for x in range(4) for y in range(4)]
    def small(g):
        o(f"s_lshl_b32 s23, s{QS(g)}, 4\ns_add_u32 s23, s23, {WS_PERM}")
        o(f"buffer_load_dword v{SV[g&1]}, v102, s[8:11], s23 offen\nbuffer_load_dwordx2 v[{PM[g&1]}:{PM[g&1]+1}], v3, s[8:11], s23 offen", pri=2000)
    def wdma(lo, hi, tag):
        for i in range(lo, hi):
            o(f"s_add_u32 m0, s25, {4096*i}\ns_add_u32 s27, s26, {4096*i}"); o("buffer_load_dwordx4 v2, s[8:11], s27 offen lds", W=[tag + str(i), 'q'])
    for t in range(3): a(f"s_add_u32 s{60+t}, s20, {t}")
    for g in range(6): a(f"s_lshl_b32 s3, s{60+g//2}, 3\ns_add_u32 s3, s3, s19\ns_add_u32 s{QS(g)}, s3, {4*(g&1)}")
    a(f"s_add_u32 s58, s2, 6144\ns_lshr_b32 s63, s58, 3\ns_cmp_lt_u32 s2, 128\ns_cselect_b32 s63, s63, s62\ns_cselect_b32 s58, s58, s57")
    a(f"s_lshl_b32 s25, s19, 10\ns_add_u32 s26, s25, {WS_WFR}\ns_add_u32 s25, s25, 0x10000")
    wdma(0, 8, 'w'); tdma(0); small(0); wdma(16, 18, 'w'); flush(False)
    a(f"v_and_b32 v4, 7, v0\nv_xor_b32 v1, v4, v5\nv_xor_b32 v1, s19, v1\nv_lshlrev_b32 v1, 4, v1\nv_lshl_add_u32 v1, v4, 13, v1\nv_lshl_add_u32 v1, v5, 7, v1\nv_lshl_add_u32 v1, v6, 2, v1")
    for n in range(4): a(f"v_cmp_eq_u32 s[{32+2*n}:{33+2*n}], {n}, v6")
    a("v_and_b32 v7, 31, v0\nv_bfe_u32 v8, v0, 2, 1\nv_cmp_eq_u32 s[40:41], v8, v5\nv_and_b32 v8, 1, v0\nv_lshlrev_b32 v8, 4, v8\nv_mov_b32 v9, 0x3f80\nv_lshlrev_b32 v9, v8, v9\nv_cndmask_b32 v9, 0, v9, s[40:41]")
    a("v_bfe_u32 v8, v0, 1, 1\nv_bfe_u32 v10, v0, 3, 1\nv_lshl_or_b32 v8, v10, 1, v8")
    for j in range(4): a(f"v_cmp_eq_u32 s[40:41], {j}, v8\nv_cndmask_b32 v{IB+j}, 0, v9, s[40:41]")
    a(f"s_lshl_b32 s25, s19, 10\ns_add_u32 s25, s25, {L4_SCR}")
    a("v_lshl_add_u32 v4, v7, 2, s25")
    a("v_lshlrev_b32 v8, 5, v6\nv_lshl_add_u32 v8, v5, 4, v8\nv_add_u32 v8, s25, v8")
    a("v_lshl_add_u32 v9, v5, 4, s25")
    a("v_and_b32 v10, 7, v0\nv_lshlrev_b32 v11, 2, v5\nv_xor_b32 v10, v10, v11\nv_xor_b32 v10, s19, v10\nv_lshlrev_b32 v10, 4, v10\nv_lshl_add_u32 v10, v7, 7, v10\nv_lshl_add_u32 v10, v5, 15, v10")
    a(f"v_lshlrev_b32 v7, 2, v7\nv_add_u32 v15, {L4_E}, v2\ns_mov_b32 s48, 0xffff0000\nv_add_u32 v0, 0x10000, v2")
    a(f"s_mov_b32 s28, {I128}\ns_mov_b32 s29, {EPS}\ns_mov_b32 s30, {LOG2E}")
    a("s_waitcnt lgkmcnt(0)")
    a.st(1)
    for t in W8.drain(['w17']): a(t)
    a.st(2); a("s_barrier"); a.st(3)
    if OPT['exp'] & 4096: a("s_cmp_ge_u32 s19, 1\ns_cbranch_scc1 K4_fin")
    ring = [0]
    def group(g, last):
        T = lambda u: f"v[{TK+4*u}:{TK+4*u+3}]"
        R16 = lambda b: f"v[{b}:{b+15}]"
        sv = SV[g & 1]; pm = PM[g & 1]; t = g >> 1; LB = [f'tile{t}']; xa = (t & 1)*65536 + (64 if g & 1 else 0)
        def W(j):
            if j >= 8:
                r = 4*(j-8)
                if g == 0:
                    if j == 40: o("s_barrier", R=[f'w{i}' for i in range(8, 16)], W=['wb', 'bar'])
                    o(f"ds_read_b128 a[{r}:{r+3}], v0 offset:{(j-8)*1024}", R=['wb'] if j >= 40 else [])
                    if j == 71:
                        o("s_barrier", W=['wfree', 'bar']); L[-1].r |= {('a', x) for x in range(256)}
                        tdma(1, ['wfree'])
                return f"a[{r}:{r+3}]"
            r = WF + 4*(ring[0] % NWF); ring[0] += 1
            o(f"ds_read_b128 v[{r}:{r+3}], v15 offset:{j*1024}")
            return f"v[{r}:{r+3}]"
        if g in (2, 4):
            o("s_barrier", R=DM(t) + ['rd'], W=LB + ['bar'], rr=[OO+32+3, OO+32+2] + list(range(TK, TK+32)))
            tdma(t+1, LB)
        if g == 6: o("v_xor_b32 v1, s49, v1\nv_xor_b32 v10, s49, v10"); xa = 65536
        for x in range(4): o(f"v_xor_b32 v{TA+x}, {xa ^ ((x >> 1)*576) ^ ((x & 1)*288)}, v1")
        for u in range(8):
            for b in range(2): o(f"ds_read2st64_b32 v[{TK+4*u+2*b}:{TK+4*u+2*b+1}], v{TA+2*(u&1)+b} offset0:{8*(u>>1)} offset1:{8*(u>>1)+4}", R=LB)
        if g < last: small(g+1)
        o(f"v_lshl_add_u32 v{pm}, v{pm}, 8, v7\nv_lshl_add_u32 v{pm+1}, v{pm+1}, 8, v7")
        D = AC[1]
        def ychain(t):
            for u in range(8): w = W(8+8*t+u); o(f"v_mfma_f32_32x32x16_bf16 {R16(AC[t&1])}, {w}, {T(u)}, {'0' if u == 0 else R16(AC[t&1])}")
        def zchain(t):
            for u in range(8): w = W(40+8*t+u); o(f"v_mfma_f32_32x32x16_bf16 {R16(AC[t&1])}, {T(u)}, {w}, {'0' if u == 0 else R16(AC[t&1])}")
        def pack(t):
            for d in range(8): o(f"v_cvt_pk_bf16_f32 v{PK[t&1]+d}, v{AC[t&1]+2*d}, v{AC[t&1]+2*d+1}")
        def smf(t):
            for h in range(2): o(f"v_mfma_f32_32x32x16_bf16 {R16(SS)}, v[{PK[t&1]+4*h}:{PK[t&1]+4*h+3}], {T(2*t+h)}, {'0' if t == 0 and h == 0 else R16(SS)}")
        def cinit():
            for j in range(4): o(f"v_xor_b32 v{CA+j}, {xa ^ (j*8192 + j*16)}, v10")
            for B in range(2):
                for j in range(4):
                    c = CT + 4*(j & 1)
                    o(f"ds_read_b128 v[{c}:{c+3}], v{CA+j} offset:{B*4096}", R=LB)
                    for n in range(4): o(f"v_lshlrev_b32 v{OO+32*B+4*n+j}, 16, v{c+n}\nv_and_b32 v{OO+32*B+16+4*n+j}, s48, v{c+n}")
        def pz(b):
            for h in range(2): o(f"v_mfma_f32_32x32x16_bf16 {R16(OO+16*b)}, v[{PA+4*h}:{PA+4*h+3}], v[{PK[b&1]+4*h}:{PK[b&1]+4*h+3}], {R16(OO+16*b)}")
        ychain(0)
        for t in range(4 if OPT['exp'] & 512 else 32): o(f"v_dot2_f32_bf16 v{D+(t&3)}, v{TK+t}, v{TK+t}, {'0' if t < 4 else f'v{D+(t&3)}'}")
        for u in range(8): w = W(u); o(f"v_mfma_f32_16x16x32_bf16 v[{EA}:{EA+3}], {w}, {T(u)}, {'0' if u == 0 else f'v[{EA}:{EA+3}]'}")
        o(f"v_add_f32 v11, v{D}, v{D+1}\nv_add_f32 v2, v{D+2}, v{D+3}\nv_add_f32 v11, v11, v2")
        o(f"v_mov_b32 v2, v11\nv_permlane32_swap_b32 v11, v2\nv_add_f32 v11, v11, v2\nv_mul_f32 v2, s28, v{EA}\nv_mul_f32 v2, v2, v2\nv_fma_f32 v11, v11, s28, -v2")
        o(f"v_mul_f32 v2, v{sv}, v{sv}\nv_max_f32 v11, 0, v11\nv_fma_f32 v11, v11, v2, s29\nv_rsq_f32 v11, v11\nv_mul_f32 v11, v11, v{sv}")
        o("ds_write_b32 v4, v11", W=['sa']); o(f"ds_write_b32 v4, v{EA+2} offset:128\nds_write_b32 v4, v{EA+3} offset:256", W=['sb'])
        RL, X, ZS, ZD = PA, SS, SS+8, SS+12
        o(f"ds_read_b128 v[{RL}:{RL+3}], v8", R=['sa'])
        cinit()
        pack(0); smf(0)
        ychain(1); pack(1); smf(1)
        ychain(2); pack(2); smf(2)
        ychain(3); pack(3); smf(3)
        zchain(0); pack(0)
        zchain(1); pack(1)
        for r in range(4):
            o(f"v_cndmask_b32 v{X+r}, v{SS+r}, v{SS+4+r}, s[34:35]\nv_cndmask_b32 v{X+r}, v{X+r}, v{SS+8+r}, s[36:37]\nv_cndmask_b32 v{X+r}, v{X+r}, v{SS+12+r}, s[38:39]")
        o(f"ds_read_b128 v[{ZS}:{ZS+3}], v8 offset:128\nds_read_b128 v[{ZD}:{ZD+3}], v8 offset:256", R=['sb'])
        for r in range(4): o(f"v_mul_f32 v{X+r}, v{X+r}, v{RL+r}")
        t0, t1 = X+4, X+5
        o(f"v_max3_f32 v{t0}, v{X}, v{X+1}, v{X+2}\nv_max_f32 v{t0}, v{t0}, v{X+3}\nv_mov_b32 v{t1}, v{t0}\nv_permlane32_swap_b32 v{t0}, v{t1}\nv_max_f32 v{t0}, v{t0}, v{t1}\nv_mul_f32 v{t0}, v{t0}, v11")
        for r in range(4): o(f"v_fma_f32 v{X+r}, v{X+r}, v11, -v{t0}")
        for r in range(4): o(f"v_exp_f32 v{X+r}, v{X+r}")
        o(f"v_add_f32 v{t0}, v{X}, v{X+1}\nv_add_f32 v{t1}, v{X+2}, v{X+3}\nv_add_f32 v{t0}, v{t0}, v{t1}\nv_mov_b32 v{t1}, v{t0}\nv_permlane32_swap_b32 v{t0}, v{t1}\nv_add_f32 v{t0}, v{t0}, v{t1}\nv_mul_f32 v{t0}, v{t0}, v{sv}\nv_rcp_f32 v{t0}, v{t0}")
        for r in range(4): o(f"v_mul_f32 v{X+r}, v{X+r}, v{RL+r}")
        for r in range(4): o(f"v_mul_f32 v{X+r}, v{X+r}, v{t0}")
        o(f"v_cvt_pk_bf16_f32 v{X+6}, v{X}, v{X+1}\nv_cvt_pk_bf16_f32 v{X+7}, v{X+2}, v{X+3}")
        for n in range(4): o(f"v_cndmask_b32 v{PA+2*n}, 0, v{X+6}, s[{32+2*n}:{33+2*n}]\nv_cndmask_b32 v{PA+2*n+1}, 0, v{X+7}, s[{32+2*n}:{33+2*n}]")
        o(f"v_mul_f32 v13, v{X}, v{ZS}\nv_mul_f32 v14, v{X}, v{ZD}")
        for r in range(1, 4): o(f"v_fmac_f32 v13, v{X+r}, v{ZS+r}\nv_fmac_f32 v14, v{X+r}, v{ZD+r}")
        o(f"v_permlane32_swap_b32 v13, v14\nv_add_f32 v13, v13, v14\nv_mov_b32 v14, v13\nv_permlane32_swap_b32 v13, v14\nv_add_f32 v13, v13, v{EA}\nv_add_f32 v14, v14, v{EA+1}")
        def sq(b):
            for r in range(0 if (OPT['exp'] & 1024 and b) else 16): o(f"v_mul_f32 v{QQ+r}, v{OO+r}, v{OO+r}" if b == 0 else f"v_fmac_f32 v{QQ+r}, v{OO+16*b+r}, v{OO+16*b+r}")
        pz(0); sq(0)
        zchain(2); pz(1); sq(1); pack(2)
        zchain(3); pz(2); sq(2); pack(3)
        pz(3); sq(3)
        for d in range(8): o(f"v_cvt_pk_bf16_f32 v{AL+d}, v{QQ+2*d}, v{QQ+2*d+1}")
        for v in range(2):
            x = AL+8+4*v
            o(f"v_mfma_f32_16x16x32_bf16 v[{x}:{x+3}], v[{AL+4*v}:{AL+4*v+3}], v[{IB}:{IB+3}], 0")
            o(f"v_add_f32 v{x}, v{x}, v{x+1}\nv_add_f32 v{x+2}, v{x+2}, v{x+3}\nv_add_f32 v{x}, v{x}, v{x+2}")
        o(f"v_permlane16_swap_b32 v{AL+8}, v{AL+12}\nv_add_f32 v5, v{AL+8}, v{AL+12}\nv_mov_b32 v{AL+8}, v5\nv_permlane32_swap_b32 v5, v{AL+8}\nv_add_f32 v5, v5, v{AL+8}")
        o(f"v_mul_f32 v13, s28, v13\nv_fma_f32 v14, -v13, s24, v14\nv_mul_f32 v13, v13, v13\nv_mul_f32 v14, s30, v14\nv_mul_f32 v6, v{sv}, v{sv}\nv_mul_f32 v14, v14, v{sv}")
        o("v_fma_f32 v5, v5, s28, -v13\nv_max_f32 v5, 0, v5\nv_fma_f32 v5, v5, v6, s29\nv_rsq_f32 v5, v5\nv_mul_f32 v5, v5, v14")
        o(f"v_max_f32_dpp v6, v5, v5 quad_perm:[1,0,3,2] {DPPF}\nv_max_f32_dpp v6, v6, v6 quad_perm:[2,3,0,1] {DPPF}\nv_max_f32_dpp v6, v6, v6 row_half_mirror {DPPF}")
        o("v_sub_f32 v5, v5, v6\nv_exp_f32 v5, v5")
        o(f"v_add_f32_dpp v6, v5, v5 quad_perm:[1,0,3,2] {DPPF}\nv_add_f32_dpp v6, v6, v6 quad_perm:[2,3,0,1] {DPPF}\nv_add_f32_dpp v6, v6, v6 row_half_mirror {DPPF}")
        o(f"v_rcp_f32 v6, v6\nv_mul_f32 v5, v5, v{sv}\nv_mul_f32 v5, v5, v6")
        o("ds_write_b32 v4, v5 offset:512", W=['sd'])
        for n in range(4): o(f"ds_read_b128 v[{AL+4*n}:{AL+4*n+3}], v9 offset:{512+32*n}", R=['sd'])
        for b in range(4):
            for n in range(4):
                x = QQ + 4*b + n
                o(f"v_mul_f32 v{x}, v{AL+4*n}, v{OO+16*b+4*n}")
                for r in range(1, 4): o(f"v_fmac_f32 v{x}, v{AL+4*n+r}, v{OO+16*b+4*n+r}")
            x = QQ + 4*b
            o(f"v_permlane32_swap_b32 v{x}, v{x+2}\nv_permlane32_swap_b32 v{x+1}, v{x+3}\nv_add_f32 v{x}, v{x}, v{x+2}\nv_add_f32 v{x+1}, v{x+1}, v{x+3}")
            if b & 1:
                for e in range(2): o(f"v_cvt_pk_bf16_f32 v{x+2+e}, v{x-4+e}, v{x+e}\nbuffer_store_dword v{x+2+e}, v{pm+e}, s[12:15], 0 offen offset:{128*(b>>1)}")
    if OPT['stamp'] in (1, 2): a("s_memtime s[88:89]\ns_waitcnt lgkmcnt(0)")
    a(f"s_lshl_b32 s25, s19, 10\ns_add_u32 s25, s25, 0x10000")
    wdma(8, 16, 'w')
    for g in range(6): group(g, 6)
    flush(OPT['ls']); a.st(4)
    if OPT['stamp'] in (1, 2): a("s_memtime s[90:91]\ns_waitcnt lgkmcnt(0)\ns_sub_u32 s82, s90, s88")
    a("s_cmp_ge_u32 s2, 128\ns_cbranch_scc1 K4_fin")
    for t in W8.drain(DM(3)): a(t)
    a("s_barrier\ns_and_b32 s3, s2, 3\ns_cmp_lg_u32 s19, s3\ns_cbranch_scc1 K4_fin\ns_and_b32 s49, s2, 4\ns_lshl_b32 s49, s49, 4")
    group(6, 6); flush(OPT['ls']); a.st(7)
    a("K4_fin:"); a.st_out(3, 8, 's19', 10)
    a("K4_end:\ns_endpgm")
    a.end(name, 512, 102, 256)

def build(ks, path, pre=''):
    a = K()
    for k in ks: k(a)
    open(path, 'w').write(a.text(pre))

if __name__ == '__main__':
    for x in sys.argv[1:]:
        k, v = x.split('='); OPT[k] = int(v)
    ref = open('standalone__hybrid_graph_tf_nagphormer__graph.s.ref').read().split('\n')
    pre = '\n'.join(l for l in ref if l.startswith(';') and 'launch' not in l and 'grid=' not in l) + '\n'
    build([k1, k2, k3, k4], 'stage.s', pre)
```

```python
import sys, math, struct
from asmlib import Asm
import hazard

N = 25000; NP = 25088; E = 400000; WIN = 128; NWIN = 196; NLEV = 392; QLEV = 98; QN = 6272
NCH = 250; CH = 1600
ZB = 195*128
WS_FLAGS = 0xC0000; FGS = 17*128; WS_NEWID = 0x10000; WS_PERM = 0x20000; WS_DISP = 0x40000; WS_TQ = 0x60000; WS_LOC = 0x64000; WS_IRR = 0x78000; WS_SINV = 0xA0000; WS_PM = 0x3700000; WS_WDN = 0xE4000
WS_WFR = 0x80000; WS_PART = 0x100000; WS_PARTB = 0x440000; WS_IDX = 0x780000; WS_G = 0xB00000; RS = 57344; WS_TOK = 0x3800000
GS = NP*4
TOS = 65536 + 128
PWS = 16384 + 128
KS = NP*256
WS_SIZE = 0x10000000
WFR_E = 65536; WFR_SW = 73728
SD = "dst_sel:DWORD dst_unused:UNUSED_PAD src0_sel:DWORD"
DPPF = "row_mask:0xf bank_mask:0xf"
SLACK = 2
OPT = dict(stamp=0, exp=0, tal=20, tbe=1, prio=2, wprio=0, slg=2, sll=2, tok=1, tsc=2, wb=0, gprio=1, ls=1, tlb=0, wt=1, vl=1500, str=125, dp=0, ql=130, npl=1, px=0, slp=1, cpf=7, slow=0, la=2, npre=8, slw=2, isc=0, tp=0)
WS_STAMP = 0x7800000

WT = lambda b: (' sc1' if OPT['wt'] & b else '') + (' sc0' if OPT['wt'] & b and OPT['wt'] & 8 else '') + (' nt' if OPT['wt'] & (b << 4) else '')
class K(Asm):
    def __init__(self):
        super().__init__(); self.uid = 0
    def lab(self, s='L'):
        self.uid += 1; return f"{s}_{self.uid}"
    def begin(self, name):
        self.kernel(name); self.k0 = len(self.lines)
    def end(self, name, vgpr, sgpr=102, accum=None):
        body, n = hazard.fix(self.lines[self.k0:])
        self.lines[self.k0:] = body
        print(f"{name}: {len(body)} lines, {n} nop states", file=sys.stderr)
        self.kd(name, vgpr, sgpr, accum)
    def st_init(self):
        if not OPT['stamp']: return
        self("s_memrealtime s[84:85]" if OPT['stamp'] != 2 else "s_memtime s[84:85]")
        if OPT['stamp'] == 3:
            self("s_waitcnt lgkmcnt(0)\ns_mov_b32 s70, s84"); return
        for i in range(1, 14): self(f"s_mov_b32 s{70+i}, 0")
        self("s_waitcnt lgkmcnt(0)\ns_mov_b32 s70, s84\ns_mov_b32 s86, s84")
    def st(self, i):
        if not OPT['stamp'] or OPT['stamp'] == 3: return
        self(f"{'s_memrealtime' if OPT['stamp'] == 1 else 's_memtime'} s[84:85]\ns_waitcnt lgkmcnt(0)\ns_sub_u32 s87, s84, s86\ns_mov_b32 s86, s84\ns_add_u32 s{70+i}, s{70+i}, s87")
    def st_out(self, kid, srd, swave, vt):
        if not OPT['stamp']: return
        self(f"s_lshl_b32 s87, s2, 4\ns_add_u32 s87, s87, {swave}\ns_lshl_b32 s87, s87, 6\ns_add_u32 s87, s87, {WS_STAMP + kid*0x80000}\ns_mov_b64 exec, 1\nv_mov_b32 v{vt+1}, 0")
        if OPT['stamp'] == 3: self("s_memrealtime s[84:85]\ns_waitcnt lgkmcnt(0)\ns_mov_b32 s71, s84")
        for i in range(2 if OPT['stamp'] == 3 else 14): self(f"v_mov_b32 v{vt}, s{70+i}\nbuffer_store_dword v{vt}, v{vt+1}, s[{srd}:{srd+3}], s87 offen offset:{4*i}")
    def codepf(self, first, last, lane4, vt, sp, vd=None):
        l = self.lab('PF')
        self(f"s_getpc_b64 s[{sp}:{sp+1}]\n{l}:\ns_add_u32 s{sp}, s{sp}, {first}-{l}\ns_addc_u32 s{sp+1}, s{sp+1}, 0\nv_lshlrev_b32 v{vt}, 5, v{lane4}\ns_mov_b32 s{sp+2}, 0")
        self(f"{l}_l:\nv_cmp_gt_u32 vcc, {last}-{first}, v{vt}\ns_and_b64 exec, exec, vcc\ns_cbranch_execz {l}_e\nglobal_load_dword v{vd or vt+1}, v{vt}, s[{sp}:{sp+1}]\nv_add_u32 v{vt}, 8192, v{vt}\ns_branch {l}_l\n{l}_e:\ns_mov_b64 exec, -1")
    def scan_incl(self, v):
        for s in (1, 2, 4, 8): self(f"v_add_u32_dpp v{v}, v{v}, v{v} row_shr:{s} {DPPF} bound_ctrl:0")
        self(f"v_add_u32_dpp v{v}, v{v}, v{v} row_bcast:15 row_mask:0xa bank_mask:0xf")
        self(f"v_add_u32_dpp v{v}, v{v}, v{v} row_bcast:31 row_mask:0xc bank_mask:0xf")
    def red63(self, op, v):
        for s in (1, 2, 4, 8): self(f"{op}_dpp v{v}, v{v}, v{v} row_shr:{s} {DPPF} bound_ctrl:0")
        self(f"{op}_dpp v{v}, v{v}, v{v} row_bcast:15 row_mask:0xa bank_mask:0xf")
        self(f"{op}_dpp v{v}, v{v}, v{v} row_bcast:31 row_mask:0xc bank_mask:0xf")

SWAPS = ((0, 85), (6, 91), (12, 95))
def levelpos(a, sw, d0, d1):
    t, u = d1+1, d1+2
    a(f"s_mul_i32 s{t}, s{sw}, 1338\ns_lshr_b32 s{t}, s{t}, 16\ns_mul_i32 s{t}, s{t}, 98\ns_lshl_b32 s{d0}, s{sw}, 1\ns_sub_u32 s{u}, s{d0}, s{t}")
    a(f"s_mov_b32 s{d0}, s{u}\ns_add_u32 s{d1}, s{u}, 1")
    for x, y in SWAPS:
        a(f"s_cmp_eq_u32 s{u}, {x}\ns_cselect_b32 s{d0}, {y}, s{d0}\ns_cmp_eq_u32 s{u}, {y-1}\ns_cselect_b32 s{d1}, {x}, s{d1}")
    a(f"s_add_u32 s{d0}, s{d0}, s{t}\ns_add_u32 s{d1}, s{d1}, s{t}")
def k1(a):
    name = 'p1_kernel'
    a.launch(name, NCH + NWIN + 8, 512, 40960)
    a.begin(name)
    a(f"s_cmp_ge_u32 s2, {NCH+NWIN+8}\ns_cbranch_scc1 K1_end")
    a.st_init()
    a("s_load_dwordx4 s[4:7], s[0:1], 0\ns_load_dwordx4 s[8:11], s[0:1], 16\ns_load_dwordx2 s[14:15], s[0:1], 88")
    a("v_lshlrev_b32 v1, 2, v0\nv_mov_b32 v2, 0\nv_mov_b32 v24, 1\nv_lshrrev_b32 v3, 6, v0\nv_and_b32 v25, 63, v0\nv_readfirstlane_b32 s37, v3")
    a(f"s_cmp_ge_u32 s2, {NCH+NWIN}\ns_cbranch_scc1 K1_mm\ns_cmp_ge_u32 s2, {NCH}\ns_cbranch_scc1 K1_win")
    a(f"v_lshlrev_b32 v3, 4, v0\ns_mul_i32 s38, s2, {CH*4}\ns_waitcnt lgkmcnt(0)")
    a.srd(16, 6, E*4); a.srd(20, 8, E*4); a.srd(28, 14, WS_SIZE)
    a("s_cmp_ge_u32 s37, 7\ns_cbranch_scc1 K1_nl\nv_cmp_gt_u32 vcc, 400, v0\ns_and_saveexec_b64 s[34:35], vcc")
    a("buffer_load_dwordx4 v[4:7], v3, s[16:19], s38 offen\nbuffer_load_dwordx4 v[8:11], v3, s[20:23], s38 offen\ns_mov_b64 exec, s[34:35]\nK1_nl:")
    a(f"s_cmp_lg_u32 s2, 64\ns_cbranch_scc1 K1_noy\ns_cmp_ge_u32 s37, 4\ns_cbranch_scc1 K1_noy\ns_mov_b32 s3, {WS_WDN}\nv_lshlrev_b32 v16, 7, v0\nbuffer_store_dword v2, v16, s[28:31], s3 offen\nK1_noy:")
    a("s_cmp_ge_u32 s2, 64\ns_cbranch_scc1 K1_noz\ns_cmp_ge_u32 s37, 3\ns_cbranch_scc1 K1_noz")
    a(f"s_mul_i32 s3, s2, {FGS}\ns_add_u32 s3, s3, {WS_FLAGS}\nv_lshrrev_b32 v16, 3, v0\nv_min_u32 v16, 16, v16\nv_lshlrev_b32 v16, 7, v16\nv_and_b32 v17, 7, v0\nv_lshl_add_u32 v16, v17, 2, v16\nbuffer_store_dword v2, v16, s[28:31], s3 offen\nK1_noz:")
    if OPT['cpf'] & 1:
        a("s_cmp_eq_u32 s37, 7\ns_cbranch_scc0 K1_npf\ns_cmp_lt_u32 s2, 16\ns_cbranch_scc0 K1_npf\nv_lshlrev_b32 v28, 2, v25"); a.codepf('hop_kernel', 'K3_join', 28, 30, 52); a("K1_npf:")
    a("v_mov_b32 v12, -1\nv_mov_b32 v13, -1\nv_mov_b32 v14, -1\nv_mov_b32 v15, -1\nv_mov_b32 v26, 12544\nv_mov_b32 v27, 25088")
    a("ds_write_b128 v3, v[12:15] offset:1024\nds_write_b128 v3, v[12:15] offset:9216\nds_write_b128 v3, v[12:15] offset:17408")
    a("s_cmp_ge_u32 s37, 4\ns_cbranch_scc1 K1_nc\nds_write_b32 v1, v2\ns_cmp_ge_u32 s37, 1\ns_cbranch_scc1 K1_nc\nds_write_b128 v3, v[12:15] offset:25600\nK1_nc:")
    a("s_waitcnt lgkmcnt(0)\ns_barrier")
    a("s_cmp_ge_u32 s37, 7\ns_cbranch_scc1 K1_ns\nv_cmp_gt_u32 vcc, 400, v0\ns_and_saveexec_b64 s[34:35], vcc\ns_waitcnt vmcnt(0)")
    a.st(1)
    for i in range(4):
        a(f"v_lshrrev_b32 v{12+i}, 7, v{8+i}\nv_and_b32 v16, 127, v{8+i}\nv_lshl_or_b32 v{4+i}, v16, 16, v{4+i}\nv_lshlrev_b32 v16, 2, v{12+i}\nds_add_rtn_u32 v{8+i}, v16, v24")
    for i in range(4):
        a(f"s_waitcnt lgkmcnt(3)" if i == 0 else "s_waitcnt lgkmcnt(3)")
        a(f"v_and_b32 v16, 15, v{8+i}\nv_lshlrev_b32 v16, 2, v16\nv_lshl_add_u32 v16, v{12+i}, 6, v16\nv_lshrrev_b32 v17, 4, v{8+i}\nv_mad_u32_u24 v16, v17, s39, v16".replace("s39", "v26"))
        a(f"v_cmp_gt_u32 vcc, 32, v{8+i}\nv_cndmask_b32 v16, v27, v16, vcc\nds_write_b32 v16, v{4+i} offset:1024")
    a("s_mov_b64 exec, s[34:35]\nK1_ns:\ns_waitcnt lgkmcnt(0)\ns_barrier")
    a("s_and_b32 s3, s2, 7\ns_lshl_b32 s3, s3, 5\ns_lshr_b32 s39, s2, 3\ns_add_u32 s3, s3, s39\ns_lshl_b32 s3, s3, 6")
    a(f"s_add_u32 s39, s3, {WS_PART}\ns_add_u32 s40, s3, {WS_PARTB}")
    a("v_lshrrev_b32 v16, 2, v0\nv_and_b32 v17, 3, v0\nv_lshlrev_b32 v17, 4, v17\nv_mov_b32 v18, " + str(PWS) + "\nv_mad_u32_u24 v17, v16, v18, v17\nv_and_b32 v18, 0xfffffffc, v0")
    a("ds_read_b128 v[4:7], v3 offset:1024\nds_read_b128 v[8:11], v3 offset:9216\nds_read_b32 v19, v18\nds_read_b32 v20, v18 offset:512")
    a(f"v_add_u32 v21, {128*PWS}, v17\nv_cmp_gt_u32 vcc, {784-512}, v0\ns_mov_b64 s[42:43], vcc")
    a("s_waitcnt lgkmcnt(3)\nbuffer_store_dwordx4 v[4:7], v17, s[28:31], s39 offen" + WT(2) + "\ns_waitcnt lgkmcnt(0)")
    a("v_cndmask_b32 v20, 0, v20, s[42:43]\nv_max_u32 v22, v19, v20\ns_mov_b64 exec, s[42:43]\ns_cbranch_execz K1_n2")
    a("buffer_store_dwordx4 v[8:11], v21, s[28:31], s39 offen" + WT(2) + "\nK1_n2:\ns_mov_b64 exec, -1")
    a("v_cmp_le_u32 vcc, 16, v22\ns_cbranch_vccz K1_nb")
    a(f"ds_read_b128 v[4:7], v3 offset:{1024+12544}\nds_read_b128 v[8:11], v3 offset:{1024+12544+8192}\ns_waitcnt lgkmcnt(0)")
    a("v_cmp_le_u32 vcc, 16, v19\ns_mov_b64 exec, vcc\ns_cbranch_execz K1_b1\nbuffer_store_dwordx4 v[4:7], v17, s[28:31], s40 offen\nK1_b1:\ns_mov_b64 exec, -1")
    a("v_cmp_le_u32 vcc, 16, v20\ns_mov_b64 exec, vcc\ns_cbranch_execz K1_b2\nbuffer_store_dwordx4 v[8:11], v21, s[28:31], s40 offen\nK1_b2:\ns_mov_b64 exec, -1")
    a("K1_nb:")
    a(f"v_cmp_lt_u32 vcc, 32, v22\ns_cmp_lg_u64 vcc, 0\ns_cselect_b32 s3, 1, 0\nv_mov_b32 v4, s3\ns_lshr_b32 s39, s39, 1\ns_and_b32 s39, s39, 0x1fe0\ns_lshl_b32 s3, s37, 2\ns_add_u32 s39, s39, s3\ns_add_u32 s39, s39, {WS_IRR}")
    a("s_mov_b64 exec, 1\nbuffer_store_dword v4, v2, s[28:31], s39 offen")
    a.st(2); a.st_out(0, 28, 's37', 10); a("s_endpgm")
    B = 32768
    a("K1_win:")
    a(f"s_sub_u32 s36, s2, {NCH}\ns_lshl_b32 s38, s36, 7\ns_waitcnt lgkmcnt(0)")
    a.srd(16, 4, N*256); a.srd(24, 10, N*2); a.srd(28, 14, WS_SIZE)
    a("v_lshlrev_b32 v3, 4, v25\ns_lshl_b32 s39, s36, 15\ns_lshl_b32 s40, s37, 12\ns_add_u32 s39, s39, s40")
    a("v_add_u32 v5, s38, v0\nv_lshlrev_b32 v6, 1, v5\ns_cmp_ge_u32 s37, 2\ns_cbranch_scc1 K1_w0\nbuffer_load_ushort v4, v6, s[24:27], 0 offen\nK1_w0:")
    for it in range(4): a(f"buffer_load_dwordx4 v[{32+4*it}:{35+4*it}], v3, s[16:19], s39 offen offset:{it*1024}")
    a(f"ds_write_b32 v1, v2 offset:{B}")
    levelpos(a, 36, 44, 45)
    for d, x in ((50, 44), (53, 45)):
        a(f"s_sub_u32 s48, s{x}, s46\ns_mul_i32 s49, s48, 43\ns_lshr_b32 s49, s49, 8\ns_mul_i32 s49, s49, 6\ns_cmp_ge_u32 s48, 84\ns_cselect_b32 s49, 84, s49\ns_cmp_ge_u32 s48, 91\ns_cselect_b32 s49, 91, s49")
        a(f"s_sub_u32 s48, s48, s49\ns_cmp_ge_u32 s48, 4\ns_cselect_b32 s{d+1}, 1, 2\ns_cselect_b32 s{d+2}, 4, 0\ns_cmp_eq_u32 s48, 6\ns_cselect_b32 s{d+1}, 0, s{d+1}\ns_cselect_b32 s{d+2}, 6, s{d+2}")
        a(f"s_sub_u32 s48, s48, s{d+2}\ns_sub_u32 s{d}, s{x}, s48\ns_lshl_b32 s{d}, s{d}, 6\ns_add_u32 s{d}, s{d}, s48")
    a("s_lshl_b32 s44, s44, 6\ns_lshl_b32 s45, s45, 6\ns_sub_u32 s45, s45, 64\ns_waitcnt lgkmcnt(0)\ns_barrier\ns_cmp_ge_u32 s37, 2\ns_cbranch_scc1 K1_w1\ns_waitcnt vmcnt(4)"); a.st(4)
    a("v_lshlrev_b32 v4, 16, v4\nv_mov_b32 v23, 0x2b800000\nv_cmp_eq_f32 vcc, 0, v4\nv_cndmask_b32 v4, v4, v23, vcc\nv_mul_f32 v7, v4, v4\nv_rcp_f32 v7, v7\nv_rndne_f32 v7, v7\nv_cvt_u32_f32 v7, v7\nv_med3_u32 v7, v7, 1, 63")
    a(f"v_cmp_gt_u32 vcc, {N}, v5\nv_cndmask_b32 v7, 0, v7, vcc\nv_lshlrev_b32 v7, 2, v7\nds_add_rtn_u32 v8, v7, v24 offset:{B}\ns_waitcnt lgkmcnt(0)\nK1_w1:\ns_barrier")
    a("s_cmp_ge_u32 s37, 2\ns_cbranch_scc1 K1_w2")
    a(f"v_lshlrev_b32 v9, 2, v25\nds_read_b32 v20, v9 offset:{B}\ns_waitcnt lgkmcnt(0)\nv_mov_b32 v21, v20")
    a.scan_incl(21)
    a("v_sub_u32 v21, v21, v20\nds_bpermute_b32 v21, v7, v21\ns_waitcnt lgkmcnt(0)\nv_add_u32 v8, v8, v21")
    a(f"v_lshlrev_b32 v9, 2, v8\nds_write_b32 v1, v9 offset:{B+512}\nds_write_b32 v9, v4 offset:{B+1024}\nv_lshrrev_b32 v7, 2, v7\nv_sub_u32 v7, v7, v24 clamp\nds_write_b32 v9, v7 offset:{B+1536}")
    a("v_mov_b32 v10, s44\nv_mov_b32 v11, s45\nv_cmp_gt_u32 vcc, 64, v8\nv_cndmask_b32 v10, v11, v10, vcc\nv_add_u32 v10, v10, v8\nv_lshlrev_b32 v11, 2, v10")
    a(f"s_mov_b32 s3, {WS_NEWID}\nbuffer_store_short v10, v6, s[28:31], s3 offen\ns_mov_b32 s3, {WS_LOC}\nbuffer_store_short v8, v6, s[28:31], s3 offen")
    a("v_mov_b32 v14, s50\nv_mov_b32 v15, s53\nv_cndmask_b32 v14, v15, v14, vcc\nv_mov_b32 v15, s51\nv_mov_b32 v16, s54\nv_cndmask_b32 v15, v16, v15, vcc\nv_and_b32 v16, 63, v8\nv_lshlrev_b32 v16, v15, v16\nv_add_lshl_u32 v14, v14, v16, 2")
    a(f"s_mov_b32 s3, {WS_PERM}\nbuffer_store_dword v5, v14, s[28:31], s3 offen\nv_mul_f32 v12, v4, v4\nv_rcp_f32 v13, v4\ns_mov_b32 s3, {WS_DISP}\nbuffer_store_dword v12, v11, s[28:31], s3 offen\ns_mov_b32 s3, {WS_SINV}\nbuffer_store_dword v13, v14, s[28:31], s3 offen")
    a("s_waitcnt lgkmcnt(0)\nK1_w2:\ns_barrier")
    a.st(1)
    a(f"s_cmp_ge_u32 s37, 2\ns_cbranch_scc1 K1_nt\nds_read_b32 v6, v1 offset:{B+1536}\ns_waitcnt lgkmcnt(0)\nv_mov_b32 v7, v6")
    for sft in (1, 2, 4, 8): a(f"v_max_u32_dpp v6, v6, v6 row_shr:{sft} {DPPF} bound_ctrl:0\nv_add_u32_dpp v7, v7, v7 row_shr:{sft} {DPPF} bound_ctrl:0")
    for bc, m in ((15, '0xa'), (31, '0xc')): a(f"v_max_u32_dpp v6, v6, v6 row_bcast:{bc} row_mask:{m} bank_mask:0xf\nv_add_u32_dpp v7, v7, v7 row_bcast:{bc} row_mask:{m} bank_mask:0xf")
    a("v_readlane_b32 s40, v6, 63\nv_readlane_b32 s41, v7, 63")
    a(f"s_mul_i32 s41, s41, {OPT['tal']}\ns_lshr_b32 s41, s41, 10\ns_add_u32 s41, s41, {OPT['tbe']}\ns_max_u32 s41, s41, s40\ns_add_u32 s41, s41, 3\ns_lshr_b32 s41, s41, 2\ns_min_u32 s41, s41, 16\ns_max_u32 s41, s41, 1")
    a(f"s_add_u32 s3, s45, 64\ns_cmp_eq_u32 s37, 0\ns_cselect_b32 s3, s44, s3\ns_lshr_b32 s3, s3, 4\ns_add_u32 s3, s3, {WS_TQ}\nv_mov_b32 v6, s41\ns_mov_b64 exec, 1\nbuffer_store_dword v6, v2, s[28:31], s3 offen\ns_mov_b64 exec, -1\nK1_nt:")
    a("v_lshrrev_b32 v9, 4, v25\nv_lshlrev_b32 v9, 2, v9\ns_lshl_b32 s3, s37, 6\nv_add_u32 v9, s3, v9\nv_and_b32 v12, 15, v25\nv_lshlrev_b32 v13, 4, v12\nv_lshlrev_b32 v12, 11, v12")
    for it in range(4): a(f"ds_read_b32 v{16+it}, v9 offset:{B+512+16*it}")
    a(f"v_and_b32 v14, 31, v25\nv_lshlrev_b32 v15, 4, v14\nds_read_b128 v[28:31], v15 offset:{B+1024}")
    for it in range(4):
        a(f"s_waitcnt lgkmcnt({4 if it == 0 else 4+3})" if False else "")
    a("s_waitcnt lgkmcnt(0)")
    for it in range(4):
        a(f"v_xor_b32 v{16+it}, v{16+it}, v13\nv_add_u32 v{16+it}, v{16+it}, v12")
    a("s_cmp_ge_u32 s37, 2\ns_cbranch_scc1 K1_w3\ns_waitcnt vmcnt(6)\ns_branch K1_w4\nK1_w3:\ns_waitcnt vmcnt(0)\nK1_w4:"); a.st(5)
    for it in range(4):
        for i in range(4): a(f"ds_write_b32 v{16+it}, v{32+4*it+i} offset:{i*512}")
    a("v_lshrrev_b32 v20, 5, v25\ns_lshl_b32 s3, s37, 5\nv_xor_b32 v21, s3, v15\nv_lshl_add_u32 v21, v20, 9, v21\ns_lshl_b32 s3, s37, 12\nv_add_u32 v21, s3, v21\nv_xor_b32 v22, 16, v21")
    a("v_mov_b32 v10, s44\nv_mov_b32 v11, s45\nv_cmp_gt_u32 vcc, 16, v14\nv_cndmask_b32 v10, v11, v10, vcc\nv_lshl_add_u32 v10, v14, 2, v10")
    a(f"s_mov_b32 s3, {GS}\nv_mul_lo_u32 v20, v20, s3\nv_lshl_add_u32 v10, v10, 2, v20")
    a(f"s_mul_i32 s42, s37, {8*GS}\ns_add_u32 s42, s42, {WS_G}")
    a("s_waitcnt lgkmcnt(0)\ns_barrier")
    a.st(2)
    for j in range(4): a(f"ds_read_b128 v[{32+4*j}:{35+4*j}], v{21 if j < 2 else 22} offset:{j*1024}")
    for j in range(4):
        a(f"s_waitcnt lgkmcnt({3-j})")
        for i in range(4):
            a(f"v_lshlrev_b32 v4, 16, v{32+4*j+i}\nv_and_b32 v5, 0xffff0000, v{32+4*j+i}\nv_mul_f32 v4, v{28+i}, v4\nv_mul_f32 v5, v{28+i}, v5\nv_cvt_pk_bf16_f32 v{48+4*(j&1)+i}, v4, v5")
        a(f"buffer_store_dwordx4 v[{48+4*(j&1)}:{51+4*(j&1)}], v10, s[28:31], s42 offen{WT(1)}")
        if j < 3: a(f"s_add_u32 s42, s42, {2*GS}")
    a.st(3); a.st_out(0, 28, 's37', 10); a("s_endpgm")
    a(f"K1_mm:\ns_sub_u32 s36, s2, {NCH+NWIN}\ns_lshr_b32 s34, s36, 2\ns_and_b32 s35, s36, 3\ns_load_dwordx8 s[40:47], s[0:1], 32\ns_load_dwordx2 s[48:49], s[0:1], 64\nv_lshlrev_b32 v9, 4, v25\nv_lshlrev_b32 v10, 1, v0")
    a("v_lshrrev_b32 v5, 4, v25\nv_and_b32 v6, 15, v25\nv_xor_b32 v6, v6, v5\nv_lshlrev_b32 v6, 4, v6\nv_lshl_add_u32 v6, v5, 8, v6\nv_lshlrev_b32 v8, 4, v25\nv_and_b32 v3, 31, v25\nv_lshrrev_b32 v4, 5, v25")
    a("s_waitcnt lgkmcnt(0)\ns_cmp_eq_u32 s34, 0\ns_cselect_b32 s52, s40, s44\ns_cselect_b32 s53, s41, s45\ns_cselect_b32 s54, s42, s46\ns_cselect_b32 s55, s43, s47\ns_cselect_b64 s[56:57], -1, 0")
    a.srd(20, 52, 32768); a.srd(24, 54, 32768); a.srd(28, 14, WS_SIZE); a.srd(16, 48, 256)
    a("buffer_load_ushort v10, v10, s[16:19], 0 offen")
    a("s_and_b32 s39, s37, 3\ns_lshl_b32 s39, s39, 6\nv_xor_b32 v7, s39, v6\ns_lshl_b32 s39, s37, 10\ns_mov_b32 m0, s39\ns_lshl_b32 s38, s35, 13\ns_add_u32 s38, s38, s39\nbuffer_load_dwordx4 v7, s[20:23], s38 offen lds")
    a("s_lshl_b32 s38, s37, 12\ns_add_u32 m0, s38, 8192")
    for i in range(4): a(f"v_xor_b32 v7, {64*i}, v6\nv_cndmask_b32 v7, v8, v7, s[56:57]\nbuffer_load_dwordx4 v7, s[24:27], s38 offen offset:{1024*i} lds")
    a("s_and_b32 s39, s37, 3\ns_lshr_b32 s40, s37, 2\ns_lshl_b32 s41, s40, 7")
    a("v_and_b32 v5, 15, v3\nv_xor_b32 v5, v5, v4\nv_lshlrev_b32 v5, 4, v5\nv_lshl_add_u32 v5, v3, 8, v5\nv_xor_b32 v5, s41, v5\ns_lshl_b32 s42, s39, 13\ns_add_u32 s42, s42, 8192\nv_add_u32 v7, s42, v5")
    a("s_waitcnt vmcnt(0)\ns_barrier")
    for u in range(4): a(f"v_xor_b32 v8, {32*u}, v5\nds_read_b128 v[{16+4*u}:{19+4*u}], v8")
    a("s_cmp_eq_u32 s34, 0\ns_cbranch_scc0 K1_mb")
    for u in range(4): a(f"v_xor_b32 v8, {32*u}, v7\nds_read_b128 v[{32+4*u}:{35+4*u}], v8")
    a("s_branch K1_mc\nK1_mb:")
    a("v_lshlrev_b32 v6, 11, v4\nv_lshl_add_u32 v6, v3, 1, v6\ns_lshl_b32 s42, s39, 6\ns_lshl_b32 s43, s40, 14\ns_add_u32 s42, s42, s43\ns_add_u32 s42, s42, 8192\nv_add_u32 v6, s42, v6")
    for u in range(4):
        for t in range(8): a(f"ds_read_u16 v{(48 if t&1 else 32)+4*u+t//2}, v6 offset:{(16*u+t)*256}")
    a("s_waitcnt lgkmcnt(0)")
    for i in range(16): a(f"v_lshl_or_b32 v{32+i}, v{48+i}, 16, v{32+i}")
    a("K1_mc:\ns_waitcnt lgkmcnt(0)")
    for u in range(4): a(f"v_mfma_f32_32x32x16_bf16 v[48:63], v[{16+4*u}:{19+4*u}], v[{32+4*u}:{35+4*u}], {'0' if u == 0 else 'v[48:63]'}")
    a(f"s_lshl_b32 s42, s36, 15\ns_lshl_b32 s43, s39, 13\ns_add_u32 s42, s42, s43\ns_lshl_b32 s43, s40, 12\ns_add_u32 s42, s42, s43\ns_add_u32 s42, s42, {WS_PM}")
    a(f"s_mov_b32 s3, {WS_WFR+WFR_SW+256}\nv_lshlrev_b32 v10, 16, v10\ns_cmp_lg_u32 s36, 0\ns_cbranch_scc1 K1_nw\nbuffer_store_dword v10, v1, s[28:31], s3 offen\nK1_nw:")
    for i in range(4): a(f"buffer_store_dwordx4 v[{48+4*i}:{51+4*i}], v9, s[28:31], s42 offen offset:{1024*i}")
    a.st(3); a.st_out(0, 28, 's37', 10)
    a("K1_end:\ns_endpgm")
    a.end(name, 64, 102 if OPT['stamp'] else 64)

L2_CNT = 0; L2_LU = 512; L2_BU = 1024; L2_LOC = 2048; L2_IRR = 2304; L2_O = 2560; L2_L = L2_O + 16384; TB = QN*8 + 64; L2_NEW = TB
def k2_window(a):
    Ev, NS, ND = 20, 24, 28
    MK = lambda j: f"s[{40+2*j}:{41+2*j}]"
    a(f"v_lshlrev_b32 v3, 4, v0\ns_mul_i32 s34, s2, {PWS}\ns_add_u32 s65, s34, {WS_PART}\nbuffer_load_dwordx4 v[{Ev}:{Ev+3}], v3, s[28:31], s65 offen")
    a(f"v_lshlrev_b32 v4, 3, v0\ns_mov_b32 s35, {WS_IRR}\nbuffer_load_dwordx2 v[6:7], v4, s[28:31], s35 offen")
    a("v_lshlrev_b32 v5, 4, v2")
    a(f"s_lshl_b32 s34, s33, 10\ns_add_u32 s35, s34, {WS_NEWID}\ns_add_u32 s34, s34, {L2_NEW}")
    for i in range(4):
        if i == 3: a("s_cmp_lg_u32 s33, 0\ns_cbranch_scc1 K2_nd")
        a(f"s_mov_b32 m0, s34\nbuffer_load_dwordx4 v5, s[28:31], s35 offen lds")
        if i < 3: a("s_add_u32 s34, s34, 16384\ns_add_u32 s35, s35, 16384")
    a(f"s_lshl_b32 s35, s2, 8\ns_add_u32 s35, s35, {WS_LOC}\ns_mov_b32 m0, {L2_LOC}\nv_lshlrev_b32 v8, 2, v2\nbuffer_load_dword v8, s[28:31], s35 offen lds")
    a("K2_nd:")
    a("v_lshlrev_b32 v8, 2, v0\nv_mov_b32 v10, 0\ns_cmp_ge_u32 s33, 8\ns_cbranch_scc1 K2_nz\ns_cmp_ge_u32 s33, 2\ns_cselect_b32 s35, -1, 0\nv_mov_b32 v9, s35\nds_write_b32 v8, v9\nds_write_b32 v10, v10 offset:" + str(L2_IRR) + "\nK2_nz:")
    a("v_bfe_u32 v9, v0, 2, 5\nv_lshrrev_b32 v11, 7, v0\nv_lshl_add_u32 v9, v9, 3, v11")
    a(f"v_cmp_gt_u32 vcc, {NCH}, v9\ns_mov_b64 s[38:39], vcc\nv_mov_b32 v12, 1\nv_mov_b32 v13, 0xfc\ns_mov_b32 s64, 0\ns_mov_b32 s66, {L2_L}\ns_mov_b32 s67, 0")
    levelpos(a, 2, 60, 61)
    a("s_cmp_lt_u32 s33, 8\ns_cselect_b32 s60, s60, s61\ns_sub_u32 s61, s60, s62\ns_mul_i32 s63, s61, 43\ns_lshr_b32 s63, s63, 8\ns_cmp_ge_u32 s61, 84\ns_cselect_b32 s63, 14, s63\ns_cmp_ge_u32 s61, 91\ns_cselect_b32 s63, 15, s63")
    a("s_mul_i32 s68, s63, 6\ns_cselect_b32 s68, 91, s68\ns_sub_u32 s69, s61, s68\ns_add_u32 s68, s68, s62")
    a(f"s_lshl_b32 s68, s68, 2\ns_add_u32 s68, s68, {WS_TQ}\ns_buffer_load_dwordx8 s[48:55], s[28:31], s68")
    a(f"s_mul_i32 s62, s62, 10700\ns_lshr_b32 s62, s62, 16\ns_add_u32 s62, s62, s63\ns_mul_i32 s68, s62, {RS}\ns_add_u32 s68, s68, {WS_IDX}")
    a("s_waitcnt lgkmcnt(0)")
    a("s_mov_b32 s56, 0\ns_and_b32 s57, s48, 0xffff")
    for i in range(6): a(f"s_cmp_gt_u32 s69, {i}\ns_cselect_b32 s58, s57, 0\ns_cselect_b32 s57, s{49+i}, s57\ns_add_u32 s56, s56, s58\ns_and_b32 s57, s57, 0xffff")
    a("s_waitcnt vmcnt(0)\ns_barrier"); a.st(11)
    if OPT['tp'] == 0: tabledma(a, 5, 'c', 2)
    a("v_or_b32 v6, v6, v7\nv_cmp_ne_u32 vcc, 0, v6\ns_and_b64 vcc, vcc, s[38:39]\ns_cbranch_vccz K2_reg\nds_write_b32 v10, v12 offset:" + str(L2_IRR) + "\nK2_reg:")
    a("K2_loop:\ns_mov_b64 exec, s[38:39]")
    for j in range(4): a(f"v_cmp_ne_u32 {MK(j)}, -1, v{Ev+j}")
    for j in range(4):
        a(f"s_mov_b64 exec, {MK(j)}")
        a(f"v_lshlrev_b32_sdwa v15, 1, v{Ev+j} {SD} src1_sel:WORD_0\nv_lshrrev_b32 v16, 15, v{Ev+j}")
        a(f"ds_read_u16 v{ND+j}, v16 offset:{L2_LOC}\nds_read_u16 v{NS+j}, v15 offset:{L2_NEW}")
    a("s_waitcnt lgkmcnt(0)")
    for j in range(4):
        a(f"s_mov_b64 exec, {MK(j)}\nv_lshlrev_b32 v{ND+j}, 2, v{ND+j}\nds_add_rtn_u32 v{32+j}, v{ND+j}, v12 offset:{L2_CNT}")
        a(f"v_and_or_b32 v{36+j}, v{ND+j}, v13, s66\nv_lshrrev_b32 v16, 8, v{ND+j}\nv_lshl_add_u32 v{36+j}, v16, 13, v{36+j}")
    a("s_waitcnt lgkmcnt(0)")
    for j in range(4):
        a(f"s_mov_b64 exec, {MK(j)}")
        a(f"v_lshrrev_b32 v16, 1, v{32+j}\nv_lshl_add_u32 v15, v16, 8, v{36+j}\nv_and_b32 v16, 1, v{32+j}\nv_lshl_add_u32 v15, v16, 1, v15")
        a(f"v_cmp_gt_u32 vcc, 64, v{32+j}\ns_and_b64 exec, exec, vcc\nds_write_b16 v15, v{NS+j}")
    a(f"s_mov_b64 exec, -1\ns_cmp_lg_u32 s64, 0\ns_cbranch_scc1 K2_pa\nv_cndmask_b32 v15, 0, v12, {MK(3)}\ns_mov_b32 s64, 1")
    a(f"v_mov_b32_dpp v15, v15 quad_perm:[3,3,3,3] {DPPF}\nv_cmp_ne_u32 s[38:39], 0, v15\ns_cmp_eq_u64 s[38:39], 0\ns_cbranch_scc1 K2_pa")
    a(f"s_mov_b64 exec, s[38:39]\ns_add_u32 s65, s65, {WS_PARTB-WS_PART}\nbuffer_load_dwordx4 v[{Ev}:{Ev+3}], v3, s[28:31], s65 offen\ns_waitcnt vmcnt(0)\ns_branch K2_loop")
    a("K2_pa:\ns_waitcnt lgkmcnt(0)\ns_barrier"); a.st(12)
    if OPT['tp'] == 1: tabledma(a, 5, 'c', 2)
    a("s_mov_b32 s41, s57\ns_mov_b32 s61, s56\ns_lshr_b32 s34, s33, 3\ns_and_b32 s36, s33, 7\ns_lshl_b32 s35, s34, 8\nv_lshl_add_u32 v4, v2, 2, s35\nds_read_b32 v5, v4")
    a(f"s_lshl_b32 s37, s34, 13\ns_add_u32 s37, s37, {L2_L}\ns_lshr_b32 s46, s36, 1\ns_lshl_b32 s46, s46, 8\ns_and_b32 s47, s36, 1\ns_lshl_b32 s47, s47, 1\ns_add_u32 s46, s46, s47\ns_add_u32 s46, s46, s37\nv_lshl_add_u32 v16, v2, 2, s46")
    for t in range(4): a(f"ds_read_u16 v{20+t}, v16 offset:{t*1024}")
    a("s_lshl_b32 s42, s41, 2\ns_waitcnt lgkmcnt(4)\nv_cmp_lt_u32 vcc, s42, v5\ns_min_u32 s42, s42, 32\ns_lshl_b64 s[44:45], -1, s42\ns_not_b32 s44, s44")
    a("s_cbranch_vccz K2_ntq")
    a(f"ds_write_b32 v10, v12 offset:{L2_IRR}\nK2_ntq:")
    a("v_min_u32 v15, s42, v5\nv_subrev_u32 v15, s36, v15\nv_add_u32 v15, 7, v15\nv_lshrrev_b32 v15, 3, v15")
    a("s_lshl_b32 s46, s36, 2\nv_add_u32 v17, s46, v2\nv_and_b32 v17, 31, v17\nv_mul_u32_u24 v17, s42, v17\nv_lshrrev_b32 v17, 5, v17\nv_mov_b32 v18, -1\nv_lshlrev_b32 v17, v17, v18")
    a(f"s_lshl_b32 s46, s34, 9\ns_add_u32 s46, s46, {L2_BU}\nv_lshrrev_b32 v8, 5, v2\nv_lshlrev_b32 v8, 8, v8\nv_add_u32 v8, s46, v8")
    a(f"s_lshl_b32 s47, s34, 13\ns_add_u32 s47, s47, {L2_O}\nv_lshl_add_u32 v19, v2, 2, s47")
    a("v_mov_b32 v24, s44\nv_mov_b32 v26, -1\nv_mov_b32 v27, -1\nv_bfrev_b32 v40, 1\nv_mov_b32 v41, 0x7c\nv_mov_b32 v42, s44\ns_waitcnt lgkmcnt(0)")
    a("v_lshl_or_b32 v20, v21, 16, v20\nv_lshl_or_b32 v21, v23, 16, v22\nv_cmp_lt_u32 vcc, 0, v15")
    a("K2_rd:\ns_mov_b64 exec, vcc\ns_cbranch_execz K2_sd")
    a("v_and_b32 v28, v24, v26\nv_lshlrev_b32 v25, 2, v20\nv_and_b32 v31, v28, v17\nv_cmp_ne_u32 s[48:49], 0, v31\nv_cmp_ne_u32 s[52:53], 0, v28\nv_and_or_b32 v25, v25, v41, v8")
    a("v_cndmask_b32 v31, v28, v31, s[48:49]\nv_sub_u32 v32, 0, v31\nv_and_b32 v34, v31, v32\ns_mov_b64 s[50:51], 0\ns_andn2_b64 s[54:55], exec, s[52:53]\ns_cbranch_scc0 K2_l1")
    a("s_mov_b64 exec, s[54:55]\nv_and_b32 v29, v24, v27\nv_cmp_eq_u32 s[50:51], 0, v29\nv_add_u32 v25, 128, v25\nv_cndmask_b32 v29, v29, v24, s[50:51]\nv_ffbh_u32 v29, v29\nv_lshrrev_b32 v34, v29, v40\ns_mov_b64 exec, vcc\nK2_l1:")
    a(f"v_not_b32 v33, v34\nds_and_rtn_b32 v35, v4, v33 offset:{L2_LU}\nds_and_rtn_b32 v36, v25, v33\nv_ffbl_b32 v37, v34\nv_lshl_add_u32 v37, v37, 8, v19")
    a("s_waitcnt lgkmcnt(0)\nv_and_b32 v24, s44, v35\nv_and_b32 v35, v35, v34\nv_and_b32 v38, v36, v34\nv_cndmask_b32 v39, v38, v34, s[50:51]\nv_and_b32 v39, v39, v35\nv_cmp_ne_u32 s[48:49], 0, v39")
    a(f"s_andn2_b64 exec, exec, s[48:49]\nds_or_b32 v4, v35 offset:{L2_LU}\nds_or_b32 v25, v38\nv_cndmask_b32 v26, v26, v36, s[52:53]\nv_cndmask_b32 v27, v36, v27, s[52:53]")
    a("s_mov_b64 exec, s[48:49]\nds_write_b16 v37, v20\nv_and_b32 v24, v24, v33\nv_alignbit_b32 v20, v21, v20, 16\nv_lshrrev_b32 v21, 16, v21\nv_mov_b32 v26, -1\nv_mov_b32 v27, -1\nv_subrev_u32 v15, 1, v15")
    a("s_mov_b64 exec, vcc\nv_cmp_eq_u32 s[48:49], 0, v24\nv_cmp_lt_u32 vcc, 0, v15\ns_add_u32 s67, s67, 1\nv_cndmask_b32 v24, v24, v42, s[48:49]\ns_cmp_lt_u32 s67, 4096\ns_cbranch_scc1 K2_rd")
    a(f"s_mov_b64 exec, -1\nds_write_b32 v10, v12 offset:{L2_IRR}")
    a("K2_sd:\ns_mov_b64 exec, -1")
    a("s_waitcnt lgkmcnt(0)\ns_barrier"); a.st(13)
    a("s_cmp_ge_u32 s36, s41\ns_cbranch_scc1 K2_end")
    a(f"s_lshl_b32 s46, s36, 10\nv_add_u32 v11, s46, v19\nv_and_b32 v18, 31, v2\nv_lshl_add_u32 v18, v18, 2, v8")
    a(f"ds_read_b32 v16, v4 offset:{L2_LU}\nds_read_b32 v18, v18\nds_read2st64_b32 v[20:21], v11 offset0:0 offset1:1\nds_read2st64_b32 v[22:23], v11 offset0:2 offset1:3")
    a(f"s_lshl_b32 s47, s36, 9\ns_add_u32 s37, s37, s47\nv_lshl_add_u32 v12, v2, 2, s37\nds_read2st64_b32 v[24:25], v12 offset0:16 offset1:17")
    a(f"v_mov_b32 v13, 0xffff\nv_lshlrev_b32 v15, 4, v2\ns_add_u32 s61, s61, s36\ns_lshr_b32 s39, s61, 1\ns_lshl_b32 s39, s39, 10\ns_and_b32 s61, s61, 1\ns_lshl_b32 s61, s61, 3\ns_add_u32 s39, s39, s61\ns_add_u32 s39, s39, s68\ns_lshl_b32 s38, s36, 2\ns_mov_b32 s50, -1\ns_mov_b32 s51, 0\ns_waitcnt lgkmcnt(3)")
    a("v_lshrrev_b32 v16, s38, v16\nv_lshrrev_b32 v18, s38, v18")
    for t in range(4):
        a(f"v_and_b32 v26, {1 << t}, v18\nv_cmp_ne_u32 s[{52+2*t}:{53+2*t}], 0, v26")
    for r in range(52, 60): a(f"s_ff1_i32_b32 s{r}, s{r}\ns_and_b32 s{r}, s{r}, 31\ns_add_u32 s{r}, s{r}, {ZB}")
    a("s_waitcnt lgkmcnt(0)")
    for t in range(4):
        a(f"v_mov_b32 v26, s{52+2*t}\nv_mov_b32 v27, s{53+2*t}\nv_cndmask_b32 v26, v27, v26, s[50:51]\nv_and_b32 v27, {1 << t}, v16\nv_cmp_ne_u32 vcc, 0, v27\nv_cndmask_b32 v{20+t}, v{20+t}, v26, vcc")
    a("v_and_b32 v20, v13, v20\nv_and_b32 v22, v13, v22\nv_lshl_or_b32 v20, v21, 17, v20\nv_lshl_or_b32 v21, v23, 17, v22\nbuffer_store_dwordx2 v[20:21], v15, s[28:31], s39 offen sc1")
    a("s_add_u32 s36, s36, 8\ns_cmp_ge_u32 s36, s41\ns_cbranch_scc1 K2_end")
    a(f"v_mov_b32 v43, -1\ns_add_u32 s38, s38, 32\nv_subrev_u32 v5, s38, v5\nv_mov_b32 v14, {ZB | (ZB << 16)}")
    for h in range(2):
        a(f"v_cmp_lt_i32 vcc, {2*h}, v5\nv_cndmask_b32 v26, 0, v13, vcc\nv_cmp_lt_i32 vcc, {2*h+1}, v5\nv_cndmask_b32 v26, v26, v40, vcc".replace("v40", "v43"))
        a(f"v_bfi_b32 v{24+h}, v26, v{24+h}, v14\nv_and_b32 v26, 0xffff0000, v{24+h}\nv_add_u32 v{24+h}, v{24+h}, v26")
    a("s_add_u32 s39, s39, 4096\nbuffer_store_dwordx2 v[24:25], v15, s[28:31], s39 offen sc1\ns_branch K2_end")

def f2u(x): return struct.unpack('<I', struct.pack('<f', x))[0]
SCL = f2u(math.log2(math.e)/math.sqrt(128.0))
FO = lambda i: 16*(i & 1) + 4*(i >> 1)
def k2_weights(a):
    S0 = 66048
    a(f"s_sub_u32 s34, s2, {NWIN}")
    a(f"s_lshl_b32 s39, s34, 17\ns_lshl_b32 s60, s33, 13\ns_add_u32 s39, s39, s60\ns_add_u32 s39, s39, {WS_PM}\ns_add_u32 s60, s39, 4096\nv_lshlrev_b32 v8, 4, v2")
    for i in range(4): a(f"buffer_load_dwordx4 v[{80+4*i}:{83+4*i}], v8, s[28:31], s39 offen offset:{1024*i}\nbuffer_load_dwordx4 v[{96+4*i}:{99+4*i}], v8, s[28:31], s60 offen offset:{1024*i}")
    a("s_lshr_b32 s35, s33, 2\ns_and_b32 s36, s33, 3\nv_and_b32 v3, 31, v2\nv_lshrrev_b32 v4, 5, v2")
    a(f"v_lshlrev_b32 v7, 2, v0\ns_cmp_ge_u32 s33, 8\ns_cbranch_scc1 K2w_nw\ns_mov_b32 s3, {WS_WFR+WFR_SW+256}\nbuffer_load_dword v8, v7, s[28:31], s3 offen")
    a(f"v_add_u32 v7, {S0}, v7\ns_waitcnt vmcnt(0)\nds_write_b32 v7, v8\nK2w_nw:")
    a("s_waitcnt vmcnt(0) lgkmcnt(0)\ns_barrier")
    for i in range(16): a(f"v_add_f32 v{80+i}, v{80+i}, v{96+i}")
    a(f"s_mul_i32 s39, s35, {32*516}\ns_lshl_b32 s60, s36, 7\ns_add_u32 s39, s39, s60\nv_mul_u32_u24 v6, {4*516}, v4\nv_lshl_add_u32 v6, v3, 2, v6\nv_add_u32 v6, s39, v6")
    a(f"s_add_u32 s60, s60, {S0}\nv_lshl_add_u32 v7, v3, 2, s60\nds_read_b32 v8, v7")
    for r in range(16): a(f"ds_write_b32 v6, v{80+r} offset:{(8*(r>>2)+(r&3))*516}")
    a("v_add_f32 v9, v80, v81")
    for r in range(2, 16): a(f"v_add_f32 v9, v9, v{80+r}")
    a("ds_add_f32 v7, v9 offset:1536\ns_waitcnt lgkmcnt(1)")
    for r in range(16): a(f"v_mul_f32 v{48+r}, v8, v{80+r}")
    for q in (80, 48):
        for i in range(8): a(f"v_add_f32_dpp v{q+i}, v{q+i}, v{q+i} row_ror:8 row_mask:0xf bank_mask:0x3")
        for i in range(8): a(f"v_add_f32_dpp v{q+i}, v{q+8+i}, v{q+8+i} row_ror:8 row_mask:0xf bank_mask:0xc")
        for i in range(4): a(f"v_add_f32_dpp v{q+i}, v{q+i}, v{q+i} row_half_mirror row_mask:0xf bank_mask:0x5")
        for i in range(4): a(f"v_add_f32_dpp v{q+i}, v{q+4+i}, v{q+4+i} row_half_mirror row_mask:0xf bank_mask:0xa")
        for i in range(4): a(f"v_add_f32_dpp v{q+i}, v{q+i}, v{q+i} quad_perm:[1,0,3,2] {DPPF}")
        for i in range(4): a(f"v_add_f32_dpp v{q+i}, v{q+i}, v{q+i} quad_perm:[2,3,0,1] {DPPF}")
        a(f"v_permlane16_swap_b32 v{q}, v{q+1}\nv_permlane16_swap_b32 v{q+2}, v{q+3}\nv_add_f32 v{q}, v{q}, v{q+1}\nv_add_f32 v{q+2}, v{q+2}, v{q+3}")
    a(f"v_bfe_u32 v10, v2, 2, 2\nv_lshlrev_b32 v10, 5, v10\nv_bfe_u32 v11, v2, 4, 1\nv_lshl_add_u32 v10, v11, 2, v10\nv_lshl_add_u32 v10, v4, 4, v10\ns_lshl_b32 s60, s35, 7\ns_add_u32 s60, s60, {S0}\nv_add_u32 v10, s60, v10")
    a("s_mov_b32 exec_lo, 0x11111111\ns_mov_b32 exec_hi, 0x11111111\nds_add_f32 v10, v80 offset:512\nds_add_f32 v10, v82 offset:520\nds_add_f32 v10, v48 offset:1024\nds_add_f32 v10, v50 offset:1032\ns_mov_b64 exec, -1")
    a("s_waitcnt lgkmcnt(0)"); a("s_barrier")
    a(f"v_lshlrev_b32 v5, 3, v2\nv_add_u32 v5, {S0}, v5\nds_read_b64 v[8:9], v5\nds_read_b64 v[10:11], v5 offset:512\nds_read_b64 v[12:13], v5 offset:1024\ns_waitcnt lgkmcnt(0)")
    a("v_add_f32 v8, v8, v9\nv_add_f32 v10, v10, v11\nv_add_f32 v12, v12, v13")
    for v in (8, 10, 12): a.red63('v_add_f32', v)
    a("v_readlane_b32 s60, v8, 63\nv_readlane_b32 s61, v10, 63\nv_readlane_b32 s62, v12, 63")
    a(f"s_mov_b32 s63, {f2u(1/128.)}\ns_mov_b32 s64, {f2u(-1/128.)}\ns_mov_b32 s65, {SCL}\nv_lshlrev_b32 v15, 4, v2")
    a(f"s_lshl_b32 s66, s33, 11\ns_lshl_b32 s67, s34, 15\ns_add_u32 s66, s66, s67\ns_add_u32 s66, s66, {WS_WFR}")
    a("s_lshr_b32 s35, s33, 2\ns_and_b32 s36, s33, 3\ns_lshl_b32 s36, s36, 1")
    a("s_cmp_eq_u32 s34, 0\ns_cbranch_scc0 K2w_fb")
    a("v_and_b32 v5, 1, v3\nv_lshrrev_b32 v6, 2, v3\nv_lshl_or_b32 v5, v6, 1, v5\nv_bfe_u32 v6, v3, 1, 1\nv_lshl_or_b32 v5, v6, 4, v5")
    a("s_lshl_b32 s37, s35, 5\nv_add_u32 v5, s37, v5")
    a(f"v_lshlrev_b32 v7, 2, v5\nv_add_u32 v7, {S0}, v7\nds_read_b32 v14, v7 offset:512")
    a(f"s_lshl_b32 s37, s36, 6\nv_lshl_add_u32 v6, v4, 3, s37\nv_mul_u32_u24 v5, 516, v5\nv_add_u32 v5, v5, v6\nv_add_u32 v6, {S0+1536}, v6")
    for h in range(2):
        for i in range(4):
            a(f"ds_read2_b32 v[{16+16*h+2*i}:{17+16*h+2*i}], v5 offset0:{8*h+FO(i)} offset1:{8*h+FO(i)+1}")
            a(f"ds_read2_b32 v[{24+16*h+2*i}:{25+16*h+2*i}], v6 offset0:{8*h+FO(i)} offset1:{8*h+FO(i)+1}")
    a("v_mov_b32 v8, s61\nv_mul_f32 v8, s63, v8\ns_waitcnt lgkmcnt(0)\nv_sub_f32 v14, v8, v14\nv_mul_f32 v14, s63, v14")
    for h in range(2):
        for j in range(8):
            x = 16+16*h+j
            a(f"v_add_f32 v{x}, v{x}, v14\nv_fmac_f32 v{x}, s64, v{x+8}\nv_mul_f32 v{x}, s65, v{x}")
        for i in range(4): a(f"v_cvt_pk_bf16_f32 v{48+4*h+i}, v{16+16*h+2*i}, v{17+16*h+2*i}")
        a(f"buffer_store_dwordx4 v[{48+4*h}:{51+4*h}], v15, s[28:31], s66 offen offset:{1024*h}")
    a("s_branch K2w_end\nK2w_fb:")
    a("s_lshr_b32 s37, s35, 1\ns_lshl_b32 s37, s37, 8\ns_and_b32 s38, s35, 1\ns_lshl_b32 s38, s38, 2\ns_add_u32 s37, s37, s38\nv_lshl_add_u32 v5, v3, 3, s37")
    a(f"v_add_u32 v7, {S0+1536}, v5\nds_read_b32 v14, v7")
    a(f"s_mul_i32 s37, s36, {16*516}\nv_mul_u32_u24 v6, {2*516}, v4\nv_add3_u32 v5, v5, v6, s37")
    for h in range(2):
        for i in range(4):
            for c in range(2): a(f"ds_read_b32 v{16+8*h+2*i+c}, v5 offset:{(8*h+FO(i)+c)*516}")
    a("s_waitcnt lgkmcnt(0)")
    for h in range(2):
        for j in range(8): a(f"v_fmac_f32 v{16+8*h+j}, s64, v14")
        for i in range(4): a(f"v_cvt_pk_bf16_f32 v{48+4*h+i}, v{16+8*h+2*i}, v{17+8*h+2*i}")
        a(f"buffer_store_dwordx4 v[{48+4*h}:{51+4*h}], v15, s[28:31], s66 offen offset:{1024*h}")
    a("s_cmp_ge_u32 s33, 8\ns_cbranch_scc1 K2w_end")
    a("v_and_b32 v5, 3, v2\nv_lshrrev_b32 v6, 5, v2\nv_max_u32 v7, 1, v5\nv_lshlrev_b32 v7, 9, v7\nv_lshl_add_u32 v7, v6, 3, v7")
    a(f"s_lshr_b32 s37, s33, 1\ns_lshl_b32 s37, s37, 7\ns_and_b32 s38, s33, 1\ns_lshl_b32 s38, s38, 5\ns_add_u32 s37, s37, s38\ns_add_u32 s37, s37, {S0-512}\nv_add_u32 v7, s37, v7")
    for i in range(4): a(f"ds_read2_b32 v[{16+2*i}:{17+2*i}], v7 offset0:{FO(i)} offset1:{FO(i)+1}")
    a("v_mov_b32 v8, s61\nv_mov_b32 v9, s62\nv_cmp_eq_u32 s[40:41], 2, v5\nv_cmp_eq_u32 s[42:43], 3, v5\nv_cmp_eq_u32 s[44:45], 0, v5")
    a("v_cndmask_b32 v8, 0, v8, s[40:41]\nv_cndmask_b32 v8, v8, v9, s[42:43]")
    a("v_lshrrev_b32 v10, 2, v2\nv_lshrrev_b32 v11, 4, v2\nv_xor_b32 v10, v10, v11\nv_and_b32 v10, 1, v10\nv_cmp_eq_u32 s[46:47], 0, v10\ns_waitcnt lgkmcnt(0)")
    for j in range(8): a(f"v_fmac_f32 v{16+j}, s64, v8\nv_cndmask_b32 v{16+j}, v{16+j}, 1.0, s[44:45]\nv_cndmask_b32 v{16+j}, 0, v{16+j}, s[46:47]")
    for i in range(4): a(f"v_cvt_pk_bf16_f32 v{48+i}, v{16+2*i}, v{17+2*i}")
    a(f"s_lshl_b32 s37, s33, 10\ns_add_u32 s37, s37, {WS_WFR+WFR_E}\nbuffer_store_dwordx4 v[48:51], v15, s[28:31], s37 offen")
    a(f"v_mov_b32 v8, s60\ns_mov_b32 s37, {WS_WFR+WFR_SW}\ns_mov_b64 exec, 1\nbuffer_store_dword v8, v15, s[28:31], s37 offen")


NQ = 44; DEP = 2; NBUF = 3
QB = QN*4
L3_CNT = TB + GS; L3_SIZE = L3_CNT + 64
ACC, AOP, ADR, BUF, TMP, GK, DIS, IDX = 2, 6, 8, 12, 24, 26, 33, 40
SPIN = 1 << 20
TSC = lambda: ('', ' nt', ' sc1', ' sc0 sc1', ' sc0', ' sc1 nt')[OPT['tsc']]
XP = 3
NL = NQ//2
def tabledma(a, v16, sfx, part=3):
    base = lambda k: a(f"s_mul_i32 s53, s18, {GS}\ns_lshl_b32 s52, s19, 10\ns_add_u32 s53, s53, s52\ns_add_u32 s53, s53, {WS_G+k*1024}\ns_add_u32 s52, s52, {TB+k*1024}")
    def run(n):
        for i in range(n):
            if i == 3: a(f"s_cmp_ge_u32 s19, 2\ns_cbranch_scc1 K3_nt{sfx}")
            a(f"s_mov_b32 m0, s52\nbuffer_load_dwordx4 v{v16}, s[8:11], s53 offen lds")
            if i < n-1: a("s_add_u32 s52, s52, 16384\ns_add_u32 s53, s53, 16384")
    if part & 2: base(50); run(3)
    if not part & 1: return
    base(0); run(4)
    a(f"K3_nt{sfx}:")
    a(f"s_mul_i32 s52, s16, 98\ns_add_u32 s52, s52, s20\ns_lshl_b32 s52, s52, 8\ns_add_u32 s52, s52, {WS_DISP}\nv_lshlrev_b32 v{v16}, 2, v2")
    for i in range(7): a(f"buffer_load_dword v{DIS+i}, v{v16}, s[8:11], s52 offen offset:{i*256}")
    a(f"v_mul_u32_u24 v{v16}, 24, v2\nv_mov_b32 v45, 364\nv_cmp_eq_u32 vcc, 15, v2\nv_cndmask_b32 v{v16}, v{v16}, v45, vcc\ns_mul_i32 s52, s16, 392\ns_add_u32 s52, s52, {WS_TQ}\ns_mov_b64 exec, 0xffff")
    a(f"buffer_load_dwordx4 v[120:123], v{v16}, s[8:11], s52 offen\nbuffer_load_dwordx3 v[124:126], v{v16}, s[8:11], s52 offen offset:16\ns_mov_b64 exec, -1")
def k3(a):
    name = 'hop_kernel'
    a.launch(name, 256, 1024, L3_SIZE)
    a.begin(name)
    a("s_cmp_ge_u32 s2, 256\ns_cbranch_scc1 K3_end")
    a.st_init()
    a("s_load_dwordx2 s[4:5], s[0:1], 88")
    a("v_lshrrev_b32 v1, 6, v0\nv_and_b32 v2, 63, v0\nv_readfirstlane_b32 s19, v1")
    a("s_lshr_b32 s16, s2, 3\ns_and_b32 s16, s16, 3\ns_and_b32 s17, s2, 7\ns_lshl_b32 s17, s17, 3\ns_lshr_b32 s18, s2, 5\ns_or_b32 s18, s18, s17")
    a("s_mul_i32 s20, s19, 6\ns_cmp_eq_u32 s19, 15\ns_cselect_b32 s20, 91, s20\ns_cmp_ge_u32 s19, 14\ns_cselect_b32 s21, 7, 6\ns_mov_b32 s33, s19")
    a("s_waitcnt lgkmcnt(0)")
    a.srd(8, 4, WS_SIZE); a.srd(28, 4, WS_SIZE)
    def ids():
        a("s_getreg_b32 s50, hwreg(HW_REG_XCC_ID)\ns_and_b32 s50, s50, 0xff\ns_add_u32 s50, s50, 1")
        a(f"s_mul_i32 s51, s18, {FGS}\ns_add_u32 s51, s51, {WS_FLAGS}")
    a("s_cmp_lg_u32 s19, 15\ns_cbranch_scc1 K3_nox"); ids()
    a(f"s_lshl_b32 s52, s16, 2\ns_add_u32 s52, s52, s51\nv_mov_b32 v4, s50\nv_mov_b32 v6, 0\nv_mov_b32 v7, {L3_CNT}\ns_mov_b64 exec, 1")
    a("buffer_store_dword v4, v6, s[8:11], s52 offen offset:2048 sc1\nds_write_b32 v7, v6\ns_mov_b64 exec, -1\nK3_nox:")
    a(f"s_cmp_ge_u32 s2, {NWIN+2}\ns_cbranch_scc1 K2_idle\ns_cmp_ge_u32 s2, {NWIN}\ns_cbranch_scc1 K2_wts")
    k2_window(a)
    a(f"K2_end:\ns_mov_b64 exec, -1\ns_waitcnt vmcnt(0) lgkmcnt(0)\ns_barrier\ns_cmp_lg_u32 s19, 0\ns_cbranch_scc1 K2_lo\nv_mov_b32 v10, 0\nds_read_b32 v4, v10 offset:{L2_IRR}")
    a(f"s_lshl_b32 s52, s2, 7\ns_add_u32 s52, s52, {WS_WDN}\ns_mov_b64 exec, 1\ns_waitcnt lgkmcnt(0)\nv_add_u32 v4, 1, v4\nbuffer_store_dword v4, v10, s[8:11], s52 offen sc1\ns_mov_b64 exec, -1\nK2_lo:\nv_lshlrev_b32 v44, 4, v2"); tabledma(a, 44, 'a', 1); a("s_branch K3_join")
    a("K2_wts:")
    k2_weights(a)
    a("K2w_end:\ns_mov_b64 exec, -1\ns_waitcnt lgkmcnt(0)\ns_barrier\ns_branch K2_tab\nK2_idle:")
    if OPT['cpf'] & 2:
        a("s_cmp_eq_u32 s19, 15\ns_cbranch_scc0 K2_tab\nv_lshlrev_b32 v3, 2, v2"); a.codepf('K3_join', 'K3_end', 3, 4, 52, 127)
    a("K2_tab:\nv_lshlrev_b32 v44, 4, v2"); tabledma(a, 44, 'b')
    a("K3_join:"); a.st(1); ids()
    a("s_mul_i32 s48, s16, 98\ns_add_u32 s48, s48, s20")
    a(f"s_lshl_b32 s49, s48, 2\ns_add_u32 s49, s49, {WS_TQ}\ns_buffer_load_dwordx8 s[40:47], s[8:11], s49")
    a(f"v_mov_b32 v5, v2\nv_lshlrev_b32 v0, 2, v5\nv_lshlrev_b32 v8, 4, v5\ns_mul_i32 s39, s18, {GS}\ns_add_u32 s39, s39, {WS_G}")
    a(f"s_lshl_b32 s69, s16, 4\ns_add_u32 s69, s69, s19\ns_mul_i32 s69, s69, {RS}\ns_add_u32 s69, s69, {WS_IDX}")
    def idxld(p, va=8):
        if p and p % 4 == 0: a("s_add_u32 s69, s69, 4096")
        a(f"buffer_load_dwordx4 v[{IDX+4*p}:{IDX+4*p+3}], v{va}, s[8:11], s69 offen offset:{(p&3)*1024}{' sc1' if OPT['isc'] else ''}")
    a("s_waitcnt lgkmcnt(0)")
    a("s_cmp_eq_u32 s21, 7\ns_cselect_b32 s46, s46, 0")
    for i in range(1, 7): a(f"s_add_u32 s{40+i}, s{40+i}, s{39+i}")
    a(f"s_min_u32 s47, s46, {NQ}\ns_sub_u32 s28, s47, {DEP+1}\ns_mov_b64 s[32:33], 0")
    for i in range(7): a(f"s_sub_u32 s{40+i}, s{40+i}, 1\ns_bitset1_b64 s[32:33], s{40+i}")
    a("s_add_u32 s52, s28, 1\ns_lshr_b64 s[34:35], s[32:33], s52\ns_mov_b64 s[24:25], s[32:33]\ns_bitset1_b64 s[24:25], s28")
    a(f"s_mov_b32 s64, 0\ns_cmp_lg_u32 s19, 0\ns_cbranch_scc1 K3_nw\ns_mul_i32 s52, s16, {49*128}\ns_add_u32 s52, s52, {WS_WDN}\nv_lshlrev_b32 v6, 5, v0\ns_mov_b32 exec_hi, 0x1ffff")
    a(f"K3_wp:\nbuffer_load_dword v4, v6, s[8:11], s52 offen sc1\ns_waitcnt vmcnt(0)\nv_cmp_eq_u32 vcc, 0, v4\ns_cbranch_vccz K3_wd\ns_add_u32 s64, s64, 1\ns_cmp_gt_u32 s64, {SPIN}\ns_cbranch_scc1 K3_wd\ns_sleep {OPT['slw']}\ns_branch K3_wp")
    a(f"K3_wd:\nv_cmp_ne_u32 vcc, 1, v4\ns_cmp_lg_u64 vcc, 0\ns_cselect_b32 s52, 1, 0\nv_mov_b32 v4, s52\nv_mov_b32 v6, {L3_CNT}\nds_write_b32 v6, v4 offset:4\ns_mov_b64 exec, -1\nK3_nw:")
    a(f"s_waitcnt vmcnt(0) lgkmcnt(0)\nv_add3_u32 v{BUF}, v120, v121, v122\nv_add3_u32 v{BUF}, v{BUF}, v123, v124\nv_add_u32 v{BUF}, v{BUF}, v125\ns_mov_b64 exec, 0xc000\nv_add_u32 v{BUF}, v{BUF}, v126\ns_mov_b64 exec, -1"); a.st(2); a("s_barrier"); a.st(3)
    for p in range(XP+1): idxld(p)
    a(f"s_lshl_b32 m0, s48, 8\nv_mov_b32 v6, {L3_CNT}\nds_read_b32 v{BUF+7}, v6 offset:4")
    for i in range(7): a(f"ds_read_addtid_b32 v{GK+i} offset:{TB+i*256}")
    a(f"buffer_load_dword v{TMP}, v0, s[8:11], s51 offen offset:2048 sc1")
    LA = OPT['la']; LD = {}; nxt = XP+1
    def late(lo, hi):
        if hi > lo: a(f"v_lshlrev_b32 v{TMP+1}, 2, v0")
        for p in range(lo, hi): a(f"s_cmp_gt_u32 s47, {2*p}\ns_cselect_b64 exec, -1, 1"); idxld(p, TMP+1)
        a("s_mov_b64 exec, -1")
    late(nxt, nxt+LA); nxt += LA
    for p in range(0, NQ, 4):
        if p < NQ-DEP-1: LD[p] = (nxt, min(nxt+2, NL)); nxt = LD[p][1]
    EM = sum(1 << p for p in LD)
    a(f"s_mov_b64 s[88:89], s[24:25]\ns_or_b32 s24, s24, {EM & 0xffffffff}\ns_or_b32 s25, s25, {EM >> 32}")
    issued = lambda p: max([XP+1+LA] + [hi for q, (lo, hi) in LD.items() if q < p])
    tb = 32; lb = 2; TBS_ = TOS
    a(f"v_lshrrev_b32 v1, {1+lb}, v5\nv_mul_u32_u24 v1, {TBS_}, v1\nv_and_b32 v4, {(2 << lb)-1}, v5\nv_lshl_add_u32 v1, v4, 4, v1\nv_and_b32 v4, 3, v5")
    a(f"v_cmp_eq_u32 s[54:55], 0, v4\nv_cmp_eq_u32 s[56:57], 1, v4\nv_mov_b32 v2, 0x3f80\nv_mov_b32 v3, 0x3f800000")
    a(f"v_cndmask_b32 v{AOP}, 0, v2, s[54:55]\nv_cndmask_b32 v{AOP}, v{AOP}, v3, s[56:57]\nv_mov_b32 v{AOP+1}, v{AOP}")
    for i in range(4): a(f"v_mov_b32 v{ACC+i}, 0")
    a("s_lshl_b32 s52, s19, 7\ns_add_u32 s65, s52, s51")
    a("s_lshl_b32 s58, s16, 2\ns_add_u32 s58, s58, s65")
    a(f"s_lshl_b32 s59, s20, 8\ns_mul_i32 s60, s16, {QB}\ns_add_u32 s60, s60, s59")
    a(f"s_mul_i32 s61, s48, {(64//tb)*TBS_}\ns_lshl_b32 s52, s18, {5+lb}\ns_add_u32 s61, s61, s52\ns_add_u32 s61, s61, {WS_TOK}")
    for r in range(1, 4): a(f"s_add_u32 s52, s16, {r}\ns_and_b32 s52, s52, 3\ns_mul_i32 s52, s52, {QB}\ns_add_u32 s{65+r}, s52, s59")
    a(f"s_mov_b32 s22, 1")
    def ad1(p, h):
        r = IDX+2*p+(h >> 1)
        a(f"v_lshrrev_b32 v{ADR+h}, 15, v{r}" if h & 1 else f"v_lshlrev_b32_sdwa v{ADR+h}, 2, v{r} {SD} src1_sel:WORD_0")
    def adr(p):
        for h in range(4): ad1(p, h)
    def rd(p):
        for h in range(4): a(f"ds_read_b32 v{BUF+4*(p%NBUF)+h}, v{ADR+h} offset:{TB}")
    def mf(p, h):
        b = BUF+4*(p%NBUF)+2*h
        if OPT['exp'] & 2: return
        a(f"v_mfma_f32_4x4x4_16b_bf16 v[{ACC}:{ACC+3}], v[{AOP}:{AOP+1}], v[{b}:{b+1}], v[{ACC}:{ACC+3}]")
    def vw(p): pass
    CALL = "s_swappc_b64 s[30:31], s[26:27]"
    T0, T1 = TMP, TMP+1
    a(f"s_mov_b64 exec, 15\ns_waitcnt vmcnt({LA})\nK3_xp:\nv_cmp_eq_u32 vcc, 0, v{TMP}\ns_cbranch_vccz K3_xb\ns_add_u32 s64, s64, 1\ns_cmp_gt_u32 s64, {SPIN}\ns_cbranch_scc1 K3_xb")
    a(f"buffer_load_dword v{TMP}, v0, s[8:11], s51 offen offset:2048 sc1\ns_waitcnt vmcnt(0)\ns_branch K3_xp\nK3_xb:")
    a(f"v_cmp_ne_u32 vcc, s50, v{TMP}\ns_cmp_lg_u64 vcc, 0\ns_cselect_b32 s23, 1, 0\ns_mov_b64 exec, -1")
    a("s_mov_b64 exec, 0xffff")
    a(f"s_waitcnt lgkmcnt(0)\nv_lshl_add_u32 v{BUF}, v{BUF+7}, 8, v{BUF}\nv_cmp_lt_u32 vcc, {NQ}, v{BUF}\ns_cmp_lg_u64 vcc, 0\ns_cselect_b32 s29, 1, {OPT['slow']}\ns_mov_b64 exec, -1")
    a("s_getpc_b64 s[40:41]\nK3_pc:\ns_add_u32 s40, s40, K3_fl0_0-K3_pc\ns_addc_u32 s41, s41, 0\ns_mul_i32 s42, s23, K3_fl1_0-K3_fl0_0\ns_mov_b32 s43, K3_fl2_0-K3_fl0_0")
    a(f"s_add_u32 s45, s39, {KS}\ns_waitcnt lgkmcnt(0)")
    if OPT['exp'] & 4:
        a("s_waitcnt vmcnt(0)\nv_lshrrev_b32 v24, 2, v0\nv_lshl_or_b32 v24, v24, 17, v24")
        for p in range(2*NQ): a(f"v_add_u32 v{IDX+p}, {(p*64) | (p*64+64*99) << 17}, v24")
    a("K3_hop:")
    a(f"s_mov_b32 s52, s39\ns_mov_b32 s39, s45\ns_add_u32 s53, s39, {KS}\ns_cmp_eq_u32 s22, 1\ns_cselect_b32 s52, s53, s52\ns_cmp_eq_u32 s23, 0\ns_cselect_b32 s45, s52, s53")
    a(f"s_add_u32 s61, s61, {tb*256}\ns_add_u32 s37, s39, s60")
    assert not OPT['px']
    a("s_cmp_eq_u32 s22, 7\ns_cselect_b32 s42, s43, s42\ns_add_u32 s26, s40, s42\ns_addc_u32 s27, s41, 0")
    if OPT['prio'] == 1: a("s_cmp_ge_u32 s19, 8\ns_cbranch_scc1 K3_p2\ns_setprio 3\ns_branch K3_p3\nK3_p2:\ns_setprio 2\nK3_p3:")
    if OPT['prio'] in (2, 4, 5, 6, 7): a("s_setprio 3")
    if OPT['prio'] == 3: a("s_setprio 1")
    a("s_cmp_lg_u32 s29, 0\ns_cbranch_scc1 K3_slow")
    for p in range(DEP): adr(p); rd(p)
    adr(DEP)
    if OPT['wb']: a(f"s_cmp_lg_u32 s19, 0\ns_cbranch_scc1 K3_nwb\ns_cmp_ge_u32 s2, 8\ns_cbranch_scc1 K3_nwb\ns_bitcmp1_b32 {OPT['wb']}, s22\ns_cbranch_scc0 K3_nwb\nbuffer_wbl2 sc1\nK3_nwb:")
    def tok(part):
        if OPT['exp'] & 8: return
        if part == 0: a(f"buffer_store_dwordx4 v[{GK}:{GK+3}], v1, s[8:11], s38 offen{TSC()}")
        if part == 1:
            a(f"v_lshrrev_b32 v{T0}, {4+lb}, v0\nv_mul_u32_u24 v{T0}, {TBS_}, v{T0}\nv_and_b32 v{T1}, {(16 << lb)-4}, v0\nv_lshl_add_u32 v{T0}, v{T1}, 1, v{T0}\ns_add_u32 s38, s38, {(256//tb)*TBS_}")
            a(f"buffer_store_dwordx2 v[{GK+4}:{GK+5}], v{T0}, s[8:11], s38 offen{TSC()}")
        if part == 2:
            l = a.lab('K3_t')
            a(f"s_cmp_eq_u32 s21, 7\ns_cbranch_scc0 {l}\nv_lshrrev_b32 v{T0}, {5+lb}, v0\nv_mul_u32_u24 v{T0}, {TBS_}, v{T0}\nv_and_b32 v{T1}, {(32 << lb)-4}, v0\nv_add_u32 v{T0}, v{T0}, v{T1}\ns_add_u32 s38, s38, {(128//tb)*TBS_}")
            a(f"buffer_store_dword v{GK+6}, v{T0}, s[8:11], s38 offen{TSC()}\n{l}:")
    a(f"s_sub_u32 s38, s61, {tb*256}"); tok(0)
    if OPT['cpf'] & 4:
        a("s_cmp_eq_u32 s22, 7\ns_cbranch_scc0 K3_npf\ns_cmp_eq_u32 s19, 0\ns_cbranch_scc0 K3_npf"); a.codepf('att_kernel', 'K4_end', 0, T0, 52, ACC+3); a("K3_npf:")
    for p in range(NQ-DEP):
        rd(p+DEP); a(f"s_waitcnt lgkmcnt({4*DEP})"); mf(p, 0)
        if p+DEP+1 < NQ:
            vw(p+DEP+1)
            ad1(p+DEP+1, 0); ad1(p+DEP+1, 1); mf(p, 1); ad1(p+DEP+1, 2); ad1(p+DEP+1, 3)
        else: mf(p, 1)
        if OPT['prio'] == 2 and p in (9, 18, 27): a(f"s_setprio {2 - (9, 18, 27).index(p)}")
        if OPT['prio'] == 1 and p in (11, 23): a(f"s_cmp_ge_u32 s19, 8\ns_cbranch_scc0 K3_q{p}\ns_setprio {1 if p == 11 else 0}\nK3_q{p}:")
        a(f"s_bitcmp1_b64 s[24:25], {p}\ns_cbranch_scc1 K3_st{p}\nK3_bk{p}:")
    a("s_endpgm")
    for p in range(NQ-DEP):
        a(f"K3_st{p}:")
        if p in LD: a(f"s_cmp_eq_u32 s22, 1\ns_cbranch_scc0 K3_nl{p}"); late(*LD[p]); a(f"s_waitcnt vmcnt({LD[p][1] - 1 - min((p+4+DEP+1)//2, NL-1)})\nK3_nl{p}:")
        a(f"s_bitcmp1_b64 s[32:33], {p}\ns_cbranch_scc0 K3_nf{p}\n{CALL}\nK3_nf{p}:")
        a(f"s_cmp_eq_u32 s28, {p}\ns_cbranch_scc1 K3_dr{(p+1)%NBUF}\ns_branch K3_bk{p}")
    for r in range(NBUF):
        a(f"K3_dr{r}:")
        for i in range(DEP):
            a(f"s_waitcnt lgkmcnt({4*(DEP-1-i)})"); mf(r+i, 0); mf(r+i, 1)
            if i < DEP-1: a(f"s_bitcmp1_b32 s34, {i}\ns_cbranch_scc0 K3_dn{r}_{i}\n{CALL}\nK3_dn{r}_{i}:")
            else: a(f"{CALL}\ns_branch K3_hend")
    for m in range(3):
        for l in range(7):
            tg = m == 0 and OPT['px']; sc = ' sc1' if m else ''
            a(f".p2align 7\nK3_fl{m}_{l}:\ns_add_u32 s26, s26, 128\ns_addc_u32 s27, s27, 0")
            if tg and l >= 5:
                a(f"s_cmp_eq_u32 s22, 1\ns_cbranch_scc0 K3_nz{l}\ns_waitcnt vmcnt(0)\nK3_nz{l}:")
            PR = {4: {1: 2, 3: 1, 4: 0}, 5: {0: 2, 2: 1, 4: 0}, 6: {2: 2, 3: 1, 4: 0}, 7: {1: 2, 2: 1, 3: 0}}.get(OPT['prio'], {})
            if l in PR: a(f"s_setprio {PR[l]}")
            if l in (1, 2): tok(l)
            a(f"v_mul_f32 v{T0}, v{DIS+l}, v{ACC}\nv_mul_f32 v{T1}, v{DIS+l}, v{ACC+1}\nv_mov_b64 v[{ACC}:{ACC+1}], 0")
            if tg: a(f"v_add_u32 v{T0}, s47, v{T0}\nv_cvt_pk_bf16_f32 v{T1}, v{T1}, v{T1}\nv_perm_b32 v{T0}, v{T1}, v{T0}, s63\nv_bfi_b32 v{GK+l}, 1, s46, v{T0}")
            else: a(f"v_cvt_pk_bf16_f32 v{GK+l}, v{T0}, v{T1}")
            if m < 2 and l == 3: a(f"v_lshlrev_b32 v{T0}, 2, v0\nbuffer_store_dwordx4 v[{GK}:{GK+3}], v{T0}, s[8:11], s37 offen{sc}")
            if m < 2 and l == 5: a(f"v_lshlrev_b32 v{T0}, 1, v0\nbuffer_store_dwordx2 v[{GK+4}:{GK+5}], v{T0}, s[8:11], s37 offen offset:1024{sc}")
            if m < 2 and l == 6: a(f"buffer_store_dword v{GK+6}, v0, s[8:11], s37 offen offset:1536{sc}")
            if tg and l in (0, 4):
                a(f"s_cmp_eq_u32 s22, 1\ns_cbranch_scc0 K3_nc{l}\nv_mov_b32 v{T1}, 0")
                for x in ((0, 1, 2), (3, 4, 5, 6))[l >> 2]:
                    if x == 6: a(f"s_cmp_eq_u32 s21, 7\ns_cselect_b32 s36, s36, {WS_SIZE}")
                    a(f"buffer_store_dword v{T1}, v0, s[8:11], s36 offen offset:{x*256}")
                a(f"K3_nc{l}:")
            a("s_setpc_b64 s[30:31]")
            a(f".if (. - K3_fl{m}_{l}) > 128\n.error \"flush too long\"\n.endif")
    AC0 = 0
    a(f"K3_slow:\ns_load_dwordx4 s[72:75], s[0:1], 8\ns_sub_u32 s38, s61, {tb*256}"); tok(0)
    a(f"s_lshl_b32 s52, s20, 9\ns_add_u32 s52, s52, {AC0}\nv_lshl_add_u32 v8, v0, 1, s52\nv_mov_b32 v10, 0\nv_mov_b32 v11, 0")
    for l in range(6): a(f"ds_write_b64 v8, v[10:11] offset:{l*512}")
    a("s_cmp_eq_u32 s21, 7\ns_cbranch_scc0 K3_s6\nds_write_b64 v8, v[10:11] offset:3072\nK3_s6:\ns_waitcnt lgkmcnt(0)")
    a.srd(76, 72, E*4); a.srd(80, 74, E*4)
    a(f"s_barrier\ns_lshl_b32 s52, s19, 8\ns_mul_i32 s53, s16, {QN}\ns_mov_b32 s54, {WS_NEWID}")
    a("K3_sl:\nbuffer_load_dword v12, v0, s[76:79], s52 offen\nbuffer_load_dword v13, v0, s[80:83], s52 offen\nv_add_u32 v14, s52, v0\ns_waitcnt vmcnt(0)\nv_lshlrev_b32 v12, 1, v12\nv_lshlrev_b32 v13, 1, v13")
    a("buffer_load_ushort v12, v12, s[8:11], s54 offen\nbuffer_load_ushort v13, v13, s[8:11], s54 offen\ns_waitcnt vmcnt(0)\nv_lshlrev_b32 v12, 2, v12\nds_read_b32 v12, v12 offset:" + str(TB) + "\nv_subrev_u32 v13, s53, v13")
    a(f"v_cmp_gt_u32 vcc, {E*4}, v14\ns_mov_b64 exec, vcc\nv_cmp_gt_u32 vcc, {QN}, v13\ns_mov_b64 exec, vcc\nv_lshlrev_b32 v13, 3, v13\nv_add_u32 v13, {AC0}, v13\ns_waitcnt lgkmcnt(0)")
    a(f"v_lshlrev_b32 v15, 16, v12\nv_and_b32 v12, 0xffff0000, v12\nds_add_f32 v13, v15\nds_add_f32 v13, v12 offset:4\ns_mov_b64 exec, -1\ns_add_u32 s52, s52, 4096\ns_cmp_lt_u32 s52, {E*4}\ns_cbranch_scc1 K3_sl")
    a("s_waitcnt lgkmcnt(0)\ns_barrier")
    for l in range(7):
        if l == 6: a("s_cmp_eq_u32 s21, 7\ns_cbranch_scc0 K3_hend")
        a(f"ds_read_b64 v[{ACC}:{ACC+1}], v8 offset:{l*512}\ns_waitcnt lgkmcnt(0)\n{CALL}")
    a("K3_hend:"); a.st(4)
    if OPT['stamp'] in (1, 2): a("s_cmp_eq_u32 s22, 1\ns_cselect_b32 s80, s74, s80\ns_cselect_b32 s74, 0, s74")
    a("s_mov_b64 s[24:25], s[88:89]\ns_cmp_eq_u32 s22, 7\ns_cbranch_scc1 K3_fin")
    if OPT['prio']: a(f"s_setprio {OPT['wprio']}")
    a(f"v_mov_b32 v{T0}, s22\nv_mov_b32 v{T1}, 1\nv_mov_b32 v{ACC}, {L3_CNT}\ns_mov_b64 exec, 1\nds_add_u32 v{ACC}, v{T1}")
    if OPT['px']: a("s_cmp_gt_u32 s22, 1\ns_cselect_b32 s52, s23, 1\ns_cmp_eq_u32 s52, 0\ns_cbranch_scc1 K3_px")
    a("s_waitcnt vmcnt(0)"); a.st(5)
    a("s_cmp_eq_u32 s23, 0\ns_cbranch_scc0 K3_g1")
    a(f"buffer_store_dword v{T0}, v0, s[8:11], s58 offen\ns_branch K3_g2\nK3_g1:\nbuffer_store_dword v{T0}, v0, s[8:11], s58 offen sc1\nK3_g2:")
    a(f"s_mov_b64 exec, 15")
    NPL = OPT['npl']
    PL = lambda i: f"buffer_load_dword v{BUF+i}, v0, s[8:11], s65 offen sc1"
    for i in range(NPL-1): a(PL(i) + f"\ns_sleep {OPT['slg']}")
    a(f"K3_poll:\ns_add_u32 s64, s64, 1\ns_cmp_gt_u32 s64, {SPIN}\ns_cbranch_scc1 K3_pb")
    for i in range(NPL):
        a(PL((i+NPL-1) % NPL) + f"\ns_waitcnt vmcnt({NPL-1})\nv_cmp_gt_u32 vcc, s22, v{BUF+i}\ns_cbranch_vccz K3_pb\ns_sleep {OPT['slg']}")
    a("s_branch K3_poll\nK3_pb:")
    X = AOP+1; AR = (14, 18, 2); B1 = (22, 23, T1)
    a(f"K3_px:\ns_mov_b64 exec, -1\nv_lshlrev_b32 v{T0}, 1, v0")
    for r in range(3): a(f"s_add_u32 s{53+r}, s{66+r}, s39")
    a(f"K3_pA:\nv_lshlrev_b32 v{X}, 2, v0")
    for r in range(3): a(f"buffer_load_dwordx4 v[{AR[r]}:{AR[r]+3}], v{X}, s[8:11], s{53+r} offen sc1")
    a("K3_pB:")
    for r in range(3): a(f"buffer_load_dwordx2 v[{8+2*r}:{9+2*r}], v{T0}, s[8:11], s{53+r} offen offset:1024 sc1")
    a("s_cmp_eq_u32 s21, 7\ns_cbranch_scc0 K3_p6")
    for r in range(3): a(f"buffer_load_dword v{B1[r]}, v0, s[8:11], s{53+r} offen offset:1536 sc1")
    a("K3_p6:")
    if OPT['px']:
        def chk(rs, first=True):
            for i, r in enumerate(rs): a(f"v_xor_b32 v{X}, s62, v{r}" if (first and i == 0) else f"v_bitop3_b32 v{X}, v{X}, v{r}, s62 bitop3:0xf6")
        a("s_cmp_eq_u32 s35, 2\ns_cbranch_scc1 K3_pD\ns_waitcnt vmcnt(0)\ns_cmp_eq_u32 s35, 1\ns_cbranch_scc1 K3_pC")
        chk(list(range(14, 22)) + [2, 3, 4, 5])
        a(f"v_and_b32 v{X}, 1, v{X}\nv_cmp_ne_u32 vcc, 0, v{X}\ns_cbranch_vccz K3_pE\ns_add_u32 s64, s64, 1\ns_cmp_gt_u32 s64, {SPIN}\ns_cbranch_scc1 K3_pD\ns_sleep {OPT['slp']}\ns_branch K3_pA\nK3_pE:\ns_mov_b32 s35, 1\nK3_pC:")
        chk(range(8, 14)); a("s_cmp_eq_u32 s21, 7\ns_cbranch_scc0 K3_p7"); chk(B1, False); a("K3_p7:")
        a(f"v_and_b32 v{X}, 1, v{X}\nv_cmp_ne_u32 vcc, 0, v{X}\ns_cbranch_vccz K3_pD\ns_add_u32 s64, s64, 1\ns_cmp_gt_u32 s64, {SPIN}\ns_cbranch_scc1 K3_pD\ns_sleep {OPT['slp']}\ns_branch K3_pB")
    a("K3_pD:"); a.st(10 if False else 7)
    a(f"s_lshl_b32 s52, s22, 4\nv_mov_b32 v{T0}, {L3_CNT}\ns_mov_b64 exec, 1\nK3_aw:\nds_read_b32 v{X}, v{T0}\ns_waitcnt lgkmcnt(0)\nv_readfirstlane_b32 s53, v{X}\ns_cmp_ge_u32 s53, s52\ns_cbranch_scc1 K3_ad\ns_add_u32 s64, s64, 1\ns_cmp_gt_u32 s64, {SPIN}\ns_cbranch_scc1 K3_ad\ns_sleep {OPT['sll']}\ns_branch K3_aw\nK3_ad:\ns_mov_b64 exec, -1"); a.st(6)
    a("s_mov_b32 m0, s60")
    for i in range(6): a(f"ds_write_addtid_b32 v{GK+i} offset:{TB+i*256}")
    a(f"s_cmp_eq_u32 s21, 7\ns_cbranch_scc0 K3_w6\nds_write_addtid_b32 v{GK+6} offset:{TB+1536}\ns_waitcnt vmcnt(0)")
    for r in range(3): a(f"s_mov_b32 m0, s{66+r}\nds_write_addtid_b32 v{B1[r]} offset:{TB+1536}")
    a("K3_w6:")
    for r in range(3):
        a(f"s_mov_b32 m0, s{66+r}\ns_waitcnt vmcnt({5-r})")
        for i in range(4): a(f"ds_write_addtid_b32 v{AR[r]+i} offset:{TB+i*256}")
    for r in range(3):
        a(f"s_mov_b32 m0, s{66+r}\ns_waitcnt vmcnt({2-r})")
        for i in range(2): a(f"ds_write_addtid_b32 v{8+2*r+i} offset:{TB+1024+i*256}")
    a(f"v_mov_b32 v{X}, v{AOP}")
    for i in range(4): a(f"v_mov_b32 v{ACC+i}, 0")
    a(f"s_add_u32 s22, s22, 1\ns_waitcnt vmcnt(0) lgkmcnt(0)"); a.st(8); a("s_barrier"); a.st(9)
    a("s_branch K3_hop")
    a("K3_fin:")
    a("s_mov_b32 s38, s61"); tok(0); tok(1); tok(2); a.st_out(2, 8, 's19', 10)
    a("K3_end:\ns_endpgm")
    a.end(name, 128, 102)

import sched
L4_E = 131072; L4_SCR = L4_E + 8192; L4_SIZE = L4_SCR + 4096
TK = 16; QQ = 48; AL = 64; WF = 80; NWF = 2; TA = 88; CA = 92; IB = 96; SV = (100, 101); AC = (104, 120); PK = (136, 144); SS = 152; OO = 168; CT = 232; PA = 240; EA = 248; PM = (252, 254)
EPS = f2u(1e-5); I128 = f2u(1/128.); LOG2E = f2u(math.log2(math.e))
def k4(a):
    name = 'att_kernel'
    a.launch(name, 256, 256, L4_SIZE)
    a.begin(name)
    W8 = sched.Waits(); sched.VMEM_LAT = OPT['vl']; sched.STRETCH = OPT['str']/100; sched.QLAT = OPT['ql']
    L = []
    def o(text, R=(), W=(), rr=(), pri=0):
        for t in text.split('\n'):
            x = sched.Op(t, R, W, pri); x.r |= {('v', r) for r in rr}; L.append(x)
    def flush(do_sched):
        ops = sched.schedule(L, True) if do_sched else list(L)
        for t in W8.emit(ops): a(t)
        L.clear()
    a("s_cmp_ge_u32 s2, 256\ns_cbranch_scc1 K4_end")
    a.st_init()
    a("s_load_dwordx2 s[4:5], s[0:1], 88\ns_load_dwordx2 s[6:7], s[0:1], 72")
    a("v_lshrrev_b32 v4, 6, v0\nv_and_b32 v0, 63, v0\nv_readfirstlane_b32 s19, v4\nv_lshlrev_b32 v2, 4, v0")
    a("v_lshrrev_b32 v5, 3, v0\nv_and_b32 v6, 7, v0\nv_xor_b32 v6, v6, v5\ns_lshl_b32 s3, s19, 1\nv_xor_b32 v6, s3, v6\nv_lshlrev_b32 v6, 4, v6\nv_lshl_add_u32 v103, v5, 7, v6\nv_xor_b32 v12, 16, v103")
    a("s_mul_i32 s20, s2, 3\ns_lshl_b32 s44, s19, 14")
    a(f"v_lshrrev_b32 v5, 5, v0\nv_bfe_u32 v6, v0, 3, 2\nv_lshlrev_b32 v3, 3, v5\nv_lshlrev_b32 v102, 2, v6\nv_add_u32 v102, {WS_SINV-WS_PERM}, v102")
    a("s_waitcnt lgkmcnt(0)")
    a.srd(8, 4, WS_SIZE); a.srd(12, 6, N*256)
    a(f"s_mov_b32 s3, {WS_WFR+WFR_SW}\ns_buffer_load_dword s24, s[8:11], s3")
    QS = lambda g: 52 + g
    def tdma(t, R=()):
        b = t & 1
        o(f"s_mul_i32 s21, s{60+t}, {TOS}\ns_add_u32 s21, s21, s44\ns_add_u32 s21, s21, {WS_TOK}")
        for x in range(0 if (t > 0 and OPT['exp'] & 64) else 4):
            if x: o("s_add_u32 s21, s21, 4096")
            o(f"s_add_u32 m0, s44, {b*65536 + 4096*x}")
            for y in range(4): o(f"buffer_load_dwordx4 {'v103' if x < 2 else 'v12'}, s[8:11], s21 offen offset:{y*1024} lds", W=[f'dma{t}_{x}{y}', 'q'], R=R, pri=OPT['dp'])
    DM = lambda t: [f'dma{t}_{x}{y}' for x in range(4) for y in range(4)]
    def small(g):
        o(f"s_lshl_b32 s23, s{QS(g)}, 4\ns_add_u32 s23, s23, {WS_PERM}")
        o(f"buffer_load_dword v{SV[g&1]}, v102, s[8:11], s23 offen\nbuffer_load_dwordx2 v[{PM[g&1]}:{PM[g&1]+1}], v3, s[8:11], s23 offen", pri=2000)
    def wdma(lo, hi, tag):
        for i in range(lo, hi):
            o(f"s_add_u32 m0, s25, {4096*i}\ns_add_u32 s27, s26, {4096*i}"); o("buffer_load_dwordx4 v2, s[8:11], s27 offen lds", W=[tag + str(i), 'q'])
    for t in range(3): a(f"s_add_u32 s{60+t}, s20, {t}")
    for g in range(6): a(f"s_lshl_b32 s3, s{60+g//2}, 3\ns_add_u32 s3, s3, s19\ns_add_u32 s{QS(g)}, s3, {4*(g&1)}")
    a(f"s_add_u32 s58, s2, 6144\ns_lshr_b32 s63, s58, 3\ns_cmp_lt_u32 s2, 128\ns_cselect_b32 s63, s63, s62\ns_cselect_b32 s58, s58, s57\ns_cselect_b32 s31, 1, 0\ns_and_b32 s3, s2, 3\ns_cmp_eq_u32 s19, s3\ns_cselect_b32 s31, s31, 0\ns_and_b32 s49, s2, 4\ns_lshl_b32 s49, s49, 4")
    a(f"s_lshl_b32 s25, s19, 10\ns_add_u32 s26, s25, {WS_WFR}\ns_add_u32 s25, s25, 0x10000")
    WO_ = [16, 17, 2, 3, 4, 5, 6, 7]; np_ = OPT['npre']
    wdma(0, 2, 'w'); tdma(0); small(0)
    for i in WO_[:np_]: wdma(i, i+1, 'w')
    flush(False)
    a(f"v_and_b32 v4, 7, v0\nv_xor_b32 v1, v4, v5\nv_xor_b32 v1, s19, v1\nv_lshlrev_b32 v1, 4, v1\nv_lshl_add_u32 v1, v4, 13, v1\nv_lshl_add_u32 v1, v5, 7, v1\nv_lshl_add_u32 v1, v6, 2, v1")
    for n in range(4): a(f"v_cmp_eq_u32 s[{32+2*n}:{33+2*n}], {n}, v6")
    a("v_and_b32 v7, 31, v0\nv_bfe_u32 v8, v0, 2, 1\nv_cmp_eq_u32 s[40:41], v8, v5\nv_and_b32 v8, 1, v0\nv_lshlrev_b32 v8, 4, v8\nv_mov_b32 v9, 0x3f80\nv_lshlrev_b32 v9, v8, v9\nv_cndmask_b32 v9, 0, v9, s[40:41]")
    a("v_bfe_u32 v8, v0, 1, 1\nv_bfe_u32 v10, v0, 3, 1\nv_lshl_or_b32 v8, v10, 1, v8")
    for j in range(4): a(f"v_cmp_eq_u32 s[40:41], {j}, v8\nv_cndmask_b32 v{IB+j}, 0, v9, s[40:41]")
    a(f"s_lshl_b32 s25, s19, 10\ns_add_u32 s25, s25, {L4_SCR}")
    a("v_lshl_add_u32 v4, v7, 2, s25")
    a("v_lshlrev_b32 v8, 5, v6\nv_lshl_add_u32 v8, v5, 4, v8\nv_add_u32 v8, s25, v8")
    a("v_lshl_add_u32 v9, v5, 4, s25")
    a("v_and_b32 v10, 7, v0\nv_lshlrev_b32 v11, 2, v5\nv_xor_b32 v10, v10, v11\nv_xor_b32 v10, s19, v10\nv_lshlrev_b32 v10, 4, v10\nv_lshl_add_u32 v10, v7, 7, v10\nv_lshl_add_u32 v10, v5, 15, v10")
    a(f"v_lshlrev_b32 v7, 2, v7\nv_add_u32 v15, {L4_E}, v2\ns_mov_b32 s48, 0xffff0000\nv_add_u32 v0, 0x10000, v2")
    a(f"s_mov_b32 s28, {I128}\ns_mov_b32 s29, {EPS}\ns_mov_b32 s30, {LOG2E}")
    a("s_waitcnt lgkmcnt(0)")
    a.st(1)
    for t in W8.drain(DM(0)): a(t)
    a.st(2); a("s_barrier"); a.st(3)
    if OPT['exp'] & 4096: a("s_cmp_ge_u32 s19, 1\ns_cbranch_scc1 K4_fin")
    ring = [0]
    def group(g, last):
        T = lambda u: f"v[{TK+4*u}:{TK+4*u+3}]"
        R16 = lambda b: f"v[{b}:{b+15}]"
        sv = SV[g & 1]; pm = PM[g & 1]; t = g >> 1; LB = [f'tile{t}']; xa = (t & 1)*65536 + (64 if g & 1 else 0)
        def W(j):
            if j >= 8:
                r = 4*(j-8)
                if g == 0:
                    if j == 40: o("s_barrier", R=[f'w{i}' for i in range(8, 16)], W=['wb', 'bar'])
                    o(f"ds_read_b128 a[{r}:{r+3}], v0 offset:{(j-8)*1024}", R=['wb'] if j >= 40 else ['wa'] if j >= 16 else [])
                    if j == 71:
                        o("s_barrier", W=['wfree', 'bar']); L[-1].r |= {('a', x) for x in range(256)}
                        tdma(1, ['wfree'])
                return f"a[{r}:{r+3}]"
            r = WF + 4*(ring[0] % NWF); ring[0] += 1
            o(f"ds_read_b128 v[{r}:{r+3}], v15 offset:{j*1024}", R=['wa'])
            return f"v[{r}:{r+3}]"
        if g in (2, 4):
            o("s_barrier", R=DM(t) + ['rd'], W=LB + ['bar'], rr=[OO+32+3, OO+32+2] + list(range(TK, TK+32)))
            tdma(t+1, LB)
        if g == 6: o("v_xor_b32 v1, s49, v1\nv_xor_b32 v10, s49, v10"); xa = 65536
        for x in range(4): o(f"v_xor_b32 v{TA+x}, {xa ^ ((x >> 1)*576) ^ ((x & 1)*288)}, v1")
        for u in range(8):
            for b in range(2): o(f"ds_read2st64_b32 v[{TK+4*u+2*b}:{TK+4*u+2*b+1}], v{TA+2*(u&1)+b} offset0:{8*(u>>1)} offset1:{8*(u>>1)+4}", R=LB)
        if g < last: small(g+1)
        o(f"v_lshl_add_u32 v{pm}, v{pm}, 8, v7\nv_lshl_add_u32 v{pm+1}, v{pm+1}, 8, v7")
        D = AC[1]
        def ychain(t):
            for u in range(4 if (OPT['exp'] & 32 and g) else 8): w = W(8+8*t+u); o(f"v_mfma_f32_32x32x16_bf16 {R16(AC[t&1])}, {w}, {T(u)}, {'0' if u == 0 else R16(AC[t&1])}")
        def zchain(t):
            for u in range(8): w = W(40+8*t+u); o(f"v_mfma_f32_32x32x16_bf16 {R16(AC[t&1])}, {T(u)}, {w}, {'0' if u == 0 else R16(AC[t&1])}")
        def pack(t):
            for d in range(8): o(f"v_cvt_pk_bf16_f32 v{PK[t&1]+d}, v{AC[t&1]+2*d}, v{AC[t&1]+2*d+1}")
        def smf(t):
            for h in range(0 if (OPT['exp'] & 128 and t) else 2): o(f"v_mfma_f32_32x32x16_bf16 {R16(SS)}, v[{PK[t&1]+4*h}:{PK[t&1]+4*h+3}], {T(2*t+h)}, {'0' if t == 0 and h == 0 else R16(SS)}")
        def cinit():
            for j in range(4): o(f"v_xor_b32 v{CA+j}, {xa ^ (j*8192 + j*16)}, v10")
            for B in range(2):
                for j in range(4):
                    c = CT + 4*(j & 1)
                    o(f"ds_read_b128 v[{c}:{c+3}], v{CA+j} offset:{B*4096}", R=LB)
                    for n in range(4): o(f"v_lshlrev_b32 v{OO+32*B+4*n+j}, 16, v{c+n}\nv_and_b32 v{OO+32*B+16+4*n+j}, s48, v{c+n}")
        def pz(b):
            for h in range(2): o(f"v_mfma_f32_32x32x16_bf16 {R16(OO+16*b)}, v[{PA+4*h}:{PA+4*h+3}], v[{PK[b&1]+4*h}:{PK[b&1]+4*h+3}], {R16(OO+16*b)}")
        ychain(0)
        for t in range(4 if OPT['exp'] & 512 else 32): o(f"v_dot2_f32_bf16 v{D+(t&3)}, v{TK+t}, v{TK+t}, {'0' if t < 4 else f'v{D+(t&3)}'}")
        if g == 0: o("s_barrier", R=[f'w{i}' for i in WO_], W=['wa', 'bar'], rr=[AC[0], D, D+1, D+2, D+3])
        for u in range(1 if OPT['exp'] & 256 else 8): w = W(u); o(f"v_mfma_f32_16x16x32_bf16 v[{EA}:{EA+3}], {w}, {T(u)}, {'0' if u == 0 else f'v[{EA}:{EA+3}]'}")
        o(f"v_add_f32 v11, v{D}, v{D+1}\nv_add_f32 v2, v{D+2}, v{D+3}\nv_add_f32 v11, v11, v2")
        o(f"v_mov_b32 v2, v11\nv_permlane32_swap_b32 v11, v2\nv_add_f32 v11, v11, v2\nv_mul_f32 v2, s28, v{EA}\nv_mul_f32 v2, v2, v2\nv_fma_f32 v11, v11, s28, -v2")
        o(f"v_mul_f32 v2, v{sv}, v{sv}\nv_max_f32 v11, 0, v11\nv_fma_f32 v11, v11, v2, s29\nv_rsq_f32 v11, v11\nv_mul_f32 v11, v11, v{sv}")
        o("ds_write_b32 v4, v11", W=['sa']); o(f"ds_write_b32 v4, v{EA+2} offset:128\nds_write_b32 v4, v{EA+3} offset:256", W=['sb'])
        RL, X, ZS, ZD = PA, SS, SS+8, SS+12
        o(f"ds_read_b128 v[{RL}:{RL+3}], v8", R=['sa'])
        cinit()
        pack(0); smf(0)
        ychain(1); pack(1); smf(1)
        ychain(2); pack(2); smf(2)
        ychain(3); pack(3); smf(3)
        zchain(0); pack(0)
        zchain(1); pack(1)
        for r in range(4):
            o(f"v_cndmask_b32 v{X+r}, v{SS+r}, v{SS+4+r}, s[34:35]\nv_cndmask_b32 v{X+r}, v{X+r}, v{SS+8+r}, s[36:37]\nv_cndmask_b32 v{X+r}, v{X+r}, v{SS+12+r}, s[38:39]")
        o(f"ds_read_b128 v[{ZS}:{ZS+3}], v8 offset:128\nds_read_b128 v[{ZD}:{ZD+3}], v8 offset:256", R=['sb'])
        for r in range(4): o(f"v_mul_f32 v{X+r}, v{X+r}, v{RL+r}")
        t0, t1 = X+4, X+5
        o(f"v_max3_f32 v{t0}, v{X}, v{X+1}, v{X+2}\nv_max_f32 v{t0}, v{t0}, v{X+3}\nv_mov_b32 v{t1}, v{t0}\nv_permlane32_swap_b32 v{t0}, v{t1}\nv_max_f32 v{t0}, v{t0}, v{t1}\nv_mul_f32 v{t0}, v{t0}, v11")
        for r in range(4): o(f"v_fma_f32 v{X+r}, v{X+r}, v11, -v{t0}")
        for r in range(4): o(f"v_exp_f32 v{X+r}, v{X+r}")
        o(f"v_add_f32 v{t0}, v{X}, v{X+1}\nv_add_f32 v{t1}, v{X+2}, v{X+3}\nv_add_f32 v{t0}, v{t0}, v{t1}\nv_mov_b32 v{t1}, v{t0}\nv_permlane32_swap_b32 v{t0}, v{t1}\nv_add_f32 v{t0}, v{t0}, v{t1}\nv_mul_f32 v{t0}, v{t0}, v{sv}\nv_rcp_f32 v{t0}, v{t0}")
        for r in range(4): o(f"v_mul_f32 v{X+r}, v{X+r}, v{RL+r}")
        for r in range(4): o(f"v_mul_f32 v{X+r}, v{X+r}, v{t0}")
        o(f"v_cvt_pk_bf16_f32 v{X+6}, v{X}, v{X+1}\nv_cvt_pk_bf16_f32 v{X+7}, v{X+2}, v{X+3}")
        for n in range(4): o(f"v_cndmask_b32 v{PA+2*n}, 0, v{X+6}, s[{32+2*n}:{33+2*n}]\nv_cndmask_b32 v{PA+2*n+1}, 0, v{X+7}, s[{32+2*n}:{33+2*n}]")
        o(f"v_mul_f32 v13, v{X}, v{ZS}\nv_mul_f32 v14, v{X}, v{ZD}")
        for r in range(1, 4): o(f"v_fmac_f32 v13, v{X+r}, v{ZS+r}\nv_fmac_f32 v14, v{X+r}, v{ZD+r}")
        o(f"v_permlane32_swap_b32 v13, v14\nv_add_f32 v13, v13, v14\nv_mov_b32 v14, v13\nv_permlane32_swap_b32 v13, v14\nv_add_f32 v13, v13, v{EA}\nv_add_f32 v14, v14, v{EA+1}")
        def sq(b):
            for r in range(0 if (OPT['exp'] & 1024 and b) else 16): o(f"v_mul_f32 v{QQ+r}, v{OO+r}, v{OO+r}" if b == 0 else f"v_fmac_f32 v{QQ+r}, v{OO+16*b+r}, v{OO+16*b+r}")
        pz(0); sq(0)
        zchain(2); pz(1); sq(1); pack(2)
        zchain(3); pz(2); sq(2); pack(3)
        pz(3); sq(3)
        for d in range(8): o(f"v_cvt_pk_bf16_f32 v{AL+d}, v{QQ+2*d}, v{QQ+2*d+1}")
        for v in range(2):
            x = AL+8+4*v
            o(f"v_mfma_f32_16x16x32_bf16 v[{x}:{x+3}], v[{AL+4*v}:{AL+4*v+3}], v[{IB}:{IB+3}], 0")
            o(f"v_add_f32 v{x}, v{x}, v{x+1}\nv_add_f32 v{x+2}, v{x+2}, v{x+3}\nv_add_f32 v{x}, v{x}, v{x+2}")
        o(f"v_permlane16_swap_b32 v{AL+8}, v{AL+12}\nv_add_f32 v5, v{AL+8}, v{AL+12}\nv_mov_b32 v{AL+8}, v5\nv_permlane32_swap_b32 v5, v{AL+8}\nv_add_f32 v5, v5, v{AL+8}")
        o(f"v_mul_f32 v13, s28, v13\nv_fma_f32 v14, -v13, s24, v14\nv_mul_f32 v13, v13, v13\nv_mul_f32 v14, s30, v14\nv_mul_f32 v6, v{sv}, v{sv}\nv_mul_f32 v14, v14, v{sv}")
        o("v_fma_f32 v5, v5, s28, -v13\nv_max_f32 v5, 0, v5\nv_fma_f32 v5, v5, v6, s29\nv_rsq_f32 v5, v5\nv_mul_f32 v5, v5, v14")
        o(f"v_max_f32_dpp v6, v5, v5 quad_perm:[1,0,3,2] {DPPF}\nv_max_f32_dpp v6, v6, v6 quad_perm:[2,3,0,1] {DPPF}\nv_max_f32_dpp v6, v6, v6 row_half_mirror {DPPF}")
        o("v_sub_f32 v5, v5, v6\nv_exp_f32 v5, v5")
        o(f"v_add_f32_dpp v6, v5, v5 quad_perm:[1,0,3,2] {DPPF}\nv_add_f32_dpp v6, v6, v6 quad_perm:[2,3,0,1] {DPPF}\nv_add_f32_dpp v6, v6, v6 row_half_mirror {DPPF}")
        o(f"v_rcp_f32 v6, v6\nv_mul_f32 v5, v5, v{sv}\nv_mul_f32 v5, v5, v6")
        o("ds_write_b32 v4, v5 offset:512", W=['sd'])
        for n in range(4): o(f"ds_read_b128 v[{AL+4*n}:{AL+4*n+3}], v9 offset:{512+32*n}", R=['sd'])
        for b in range(4):
            for n in range(4):
                x = QQ + 4*b + n
                o(f"v_mul_f32 v{x}, v{AL+4*n}, v{OO+16*b+4*n}")
                for r in range(1, 1 if OPT['exp'] & 2048 else 4): o(f"v_fmac_f32 v{x}, v{AL+4*n+r}, v{OO+16*b+4*n+r}")
            x = QQ + 4*b
            o(f"v_permlane32_swap_b32 v{x}, v{x+2}\nv_permlane32_swap_b32 v{x+1}, v{x+3}\nv_add_f32 v{x}, v{x}, v{x+2}\nv_add_f32 v{x+1}, v{x+1}, v{x+3}")
            if b & 1:
                for e in range(2): o(f"v_cvt_pk_bf16_f32 v{x+2+e}, v{x-4+e}, v{x+e}\nbuffer_store_dword v{x+2+e}, v{pm+e}, s[12:15], 0 offen offset:{128*(b>>1)}")
    a(f"s_lshl_b32 s25, s19, 10\ns_add_u32 s25, s25, 0x10000")
    for i in WO_[np_:]:
        wdma(i, i+1, 'w'); L[-1].w.discard(('p', 'q')); L[-1].bias = L[-2].bias = L[-3].bias = 5000
    wdma(8, 16, 'w')
    for g in range(6): group(g, 6)
    n6 = len(L)
    o("s_barrier", R=DM(3), W=['tile3', 'bar'], rr=[OO+32+3, OO+32+2] + list(range(TK, TK+32)))
    group(6, 6)
    for x in L[n6:]: x.extra = True
    for x in L[n6+1:]: x.r.add(('p', 'tile3'))
    ops = sched.schedule(L, True); L.clear()
    cut = min(i for i, x in enumerate(ops) if getattr(x, 'extra', False))
    nb = 3
    for t in W8.emit(ops[:cut+1]):
        if t == 's_barrier' and OPT['stamp'] in (1, 2): a.st(nb); a(t); a.st(13); nb += 1
        else: a(t)
    a("s_cmp_eq_u32 s31, 0\ns_cbranch_scc0 K4_x")
    import copy
    W9 = copy.deepcopy(W8)
    for t in W8.emit([x for x in ops[cut+1:] if not getattr(x, 'extra', False)]): a(t)
    a.st(9); a("s_branch K4_fin\nK4_x:")
    for t in W9.emit(ops[cut+1:]): a(t)
    a.st(10)
    a("K4_fin:"); a.st_out(3, 8, 's19', 10)
    a("K4_end:\ns_endpgm")
    a.end(name, 512, 102, 256)

def build(ks, path, pre=''):
    a = K()
    for k in ks: k(a)
    open(path, 'w').write(a.text(pre))

if __name__ == '__main__':
    for x in sys.argv[1:]:
        k, v = x.split('='); OPT[k] = int(v)
    ref = open('standalone__hybrid_graph_tf_nagphormer__graph.s.ref').read().split('\n')
    pre = '\n'.join(l for l in ref if l.startswith(';') and 'launch' not in l and 'grid=' not in l) + '\n'
    build([k1, k3, k4], 'stage.s', pre)
```

```python
import sys, math, struct
from asmlib import Asm
import hazard

N = 25000; NP = 25088; E = 400000; WIN = 128; NWIN = 196; NLEV = 392; QLEV = 98; QN = 6272
NCH = 250; CH = 1600
ZB = 195*128
WS_FLAGS = 0xC0000; FGS = 17*128; WS_NEWID = 0x10000; WS_PERM = 0x20000; WS_DISP = 0x40000; WS_TQ = 0x60000; WS_LOC = 0x64000; WS_IRR = 0x78000; WS_SINV = 0xA0000; WS_PM = 0x3700000; WS_WDN = 0xE4000
WS_WFR = 0x80000; WS_PART = 0x100000; WS_PARTB = 0x440000; WS_IDX = 0x780000; WS_G = 0xB00000; RS = 57344; WS_TOK = 0x3800000
GS = NP*4
TOS = 65536 + 128
PWS = 16384 + 128
KS = NP*256
WS_SIZE = 0x10000000
WFR_E = 65536; WFR_SW = 73728
SD = "dst_sel:DWORD dst_unused:UNUSED_PAD src0_sel:DWORD"
DPPF = "row_mask:0xf bank_mask:0xf"
SLACK = 2
OPT = dict(stamp=0, exp=0, tal=20, tbe=0, prio=2, wprio=0, slg=2, sll=2, tok=1, tsc=2, wb=1, gprio=1, ls=1, tlb=0, wt=1, vl=1500, str=125, dp=0, ql=130, npl=1, px=0, slp=1, cpf=7, slow=0, la=2, npre=8, slw=2, isc=0, tp=0, wbw=0, wb6=0, lnt=2, pnt=0, nt=2, osc=0)
WS_STAMP = 0x7800000

WT = lambda b: (' sc1' if OPT['wt'] & b else '') + (' sc0' if OPT['wt'] & b and OPT['wt'] & 8 else '') + (' nt' if OPT['wt'] & (b << 4) else '')
NT = lambda b: ' nt' if OPT['nt'] & b else ''
class K(Asm):
    def __init__(self):
        super().__init__(); self.uid = 0
    def lab(self, s='L'):
        self.uid += 1; return f"{s}_{self.uid}"
    def begin(self, name):
        self.kernel(name); self.k0 = len(self.lines)
    def end(self, name, vgpr, sgpr=102, accum=None):
        body, n = hazard.fix(self.lines[self.k0:])
        self.lines[self.k0:] = body
        print(f"{name}: {len(body)} lines, {n} nop states", file=sys.stderr)
        self.kd(name, vgpr, sgpr, accum)
    def st_init(self):
        if not OPT['stamp']: return
        self("s_memrealtime s[84:85]" if OPT['stamp'] != 2 else "s_memtime s[84:85]")
        if OPT['stamp'] == 3:
            self("s_waitcnt lgkmcnt(0)\ns_mov_b32 s70, s84"); return
        for i in range(1, 14): self(f"s_mov_b32 s{70+i}, 0")
        self("s_waitcnt lgkmcnt(0)\ns_mov_b32 s70, s84\ns_mov_b32 s86, s84")
    def st(self, i):
        if not OPT['stamp'] or OPT['stamp'] == 3: return
        self(f"{'s_memrealtime' if OPT['stamp'] == 1 else 's_memtime'} s[84:85]\ns_waitcnt lgkmcnt(0)\ns_sub_u32 s87, s84, s86\ns_mov_b32 s86, s84\ns_add_u32 s{70+i}, s{70+i}, s87")
    def st_out(self, kid, srd, swave, vt):
        if not OPT['stamp']: return
        self(f"s_lshl_b32 s87, s2, 4\ns_add_u32 s87, s87, {swave}\ns_lshl_b32 s87, s87, 6\ns_add_u32 s87, s87, {WS_STAMP + kid*0x80000}\ns_mov_b64 exec, 1\nv_mov_b32 v{vt+1}, 0")
        if OPT['stamp'] == 3: self("s_memrealtime s[84:85]\ns_waitcnt lgkmcnt(0)\ns_mov_b32 s71, s84")
        for i in range(2 if OPT['stamp'] == 3 else 14): self(f"v_mov_b32 v{vt}, s{70+i}\nbuffer_store_dword v{vt}, v{vt+1}, s[{srd}:{srd+3}], s87 offen offset:{4*i}")
    def codepf(self, first, last, lane4, vt, sp, vd=None):
        l = self.lab('PF')
        self(f"s_getpc_b64 s[{sp}:{sp+1}]\n{l}:\ns_add_u32 s{sp}, s{sp}, {first}-{l}\ns_addc_u32 s{sp+1}, s{sp+1}, 0\nv_lshlrev_b32 v{vt}, 5, v{lane4}\ns_mov_b32 s{sp+2}, 0")
        self(f"{l}_l:\nv_cmp_gt_u32 vcc, {last}-{first}, v{vt}\ns_and_b64 exec, exec, vcc\ns_cbranch_execz {l}_e\nglobal_load_dword v{vd or vt+1}, v{vt}, s[{sp}:{sp+1}]\nv_add_u32 v{vt}, 8192, v{vt}\ns_branch {l}_l\n{l}_e:\ns_mov_b64 exec, -1")
    def scan_incl(self, v):
        for s in (1, 2, 4, 8): self(f"v_add_u32_dpp v{v}, v{v}, v{v} row_shr:{s} {DPPF} bound_ctrl:0")
        self(f"v_add_u32_dpp v{v}, v{v}, v{v} row_bcast:15 row_mask:0xa bank_mask:0xf")
        self(f"v_add_u32_dpp v{v}, v{v}, v{v} row_bcast:31 row_mask:0xc bank_mask:0xf")
    def red63(self, op, v):
        for s in (1, 2, 4, 8): self(f"{op}_dpp v{v}, v{v}, v{v} row_shr:{s} {DPPF} bound_ctrl:0")
        self(f"{op}_dpp v{v}, v{v}, v{v} row_bcast:15 row_mask:0xa bank_mask:0xf")
        self(f"{op}_dpp v{v}, v{v}, v{v} row_bcast:31 row_mask:0xc bank_mask:0xf")

SWAPS = ((0, 85), (6, 91), (12, 95))
def levelpos(a, sw, d0, d1):
    t, u = d1+1, d1+2
    a(f"s_mul_i32 s{t}, s{sw}, 1338\ns_lshr_b32 s{t}, s{t}, 16\ns_mul_i32 s{t}, s{t}, 98\ns_lshl_b32 s{d0}, s{sw}, 1\ns_sub_u32 s{u}, s{d0}, s{t}")
    a(f"s_mov_b32 s{d0}, s{u}\ns_add_u32 s{d1}, s{u}, 1")
    for x, y in SWAPS:
        a(f"s_cmp_eq_u32 s{u}, {x}\ns_cselect_b32 s{d0}, {y}, s{d0}\ns_cmp_eq_u32 s{u}, {y-1}\ns_cselect_b32 s{d1}, {x}, s{d1}")
    a(f"s_add_u32 s{d0}, s{d0}, s{t}\ns_add_u32 s{d1}, s{d1}, s{t}")
def k1(a):
    name = 'p1_kernel'
    a.launch(name, NCH + NWIN + 8, 512, 40960)
    a.begin(name)
    a(f"s_cmp_ge_u32 s2, {NCH+NWIN+8}\ns_cbranch_scc1 K1_end")
    a.st_init()
    a("s_load_dwordx4 s[4:7], s[0:1], 0\ns_load_dwordx4 s[8:11], s[0:1], 16\ns_load_dwordx2 s[14:15], s[0:1], 88")
    a("v_lshlrev_b32 v1, 2, v0\nv_mov_b32 v2, 0\nv_mov_b32 v24, 1\nv_lshrrev_b32 v3, 6, v0\nv_and_b32 v25, 63, v0\nv_readfirstlane_b32 s37, v3")
    a(f"s_cmp_ge_u32 s2, {NCH+NWIN}\ns_cbranch_scc1 K1_mm\ns_cmp_ge_u32 s2, {NCH}\ns_cbranch_scc1 K1_win")
    a(f"v_lshlrev_b32 v3, 4, v0\ns_mul_i32 s38, s2, {CH*4}\ns_waitcnt lgkmcnt(0)")
    a.srd(16, 6, E*4); a.srd(20, 8, E*4); a.srd(28, 14, WS_SIZE)
    a("s_cmp_ge_u32 s37, 7\ns_cbranch_scc1 K1_nl\nv_cmp_gt_u32 vcc, 400, v0\ns_and_saveexec_b64 s[34:35], vcc")
    a(f"buffer_load_dwordx4 v[4:7], v3, s[16:19], s38 offen{NT(2)}\nbuffer_load_dwordx4 v[8:11], v3, s[20:23], s38 offen{NT(2)}\ns_mov_b64 exec, s[34:35]\nK1_nl:")
    a(f"s_cmp_lg_u32 s2, 64\ns_cbranch_scc1 K1_noy\ns_cmp_ge_u32 s37, 4\ns_cbranch_scc1 K1_noy\ns_mov_b32 s3, {WS_WDN}\nv_lshlrev_b32 v16, 7, v0\nbuffer_store_dword v2, v16, s[28:31], s3 offen\nK1_noy:")
    a("s_cmp_ge_u32 s2, 64\ns_cbranch_scc1 K1_noz\ns_cmp_ge_u32 s37, 3\ns_cbranch_scc1 K1_noz")
    a(f"s_mul_i32 s3, s2, {FGS}\ns_add_u32 s3, s3, {WS_FLAGS}\nv_lshrrev_b32 v16, 3, v0\nv_min_u32 v16, 16, v16\nv_lshlrev_b32 v16, 7, v16\nv_and_b32 v17, 7, v0\nv_lshl_add_u32 v16, v17, 2, v16\nbuffer_store_dword v2, v16, s[28:31], s3 offen\nK1_noz:")
    if OPT['cpf'] & 1:
        a("s_cmp_eq_u32 s37, 7\ns_cbranch_scc0 K1_npf\ns_cmp_lt_u32 s2, 16\ns_cbranch_scc0 K1_npf\nv_lshlrev_b32 v28, 2, v25"); a.codepf('hop_kernel', 'K3_join', 28, 30, 52); a("K1_npf:")
    a("v_mov_b32 v12, -1\nv_mov_b32 v13, -1\nv_mov_b32 v14, -1\nv_mov_b32 v15, -1\nv_mov_b32 v26, 12544\nv_mov_b32 v27, 25088")
    a("ds_write_b128 v3, v[12:15] offset:1024\nds_write_b128 v3, v[12:15] offset:9216\nds_write_b128 v3, v[12:15] offset:17408")
    a("s_cmp_ge_u32 s37, 4\ns_cbranch_scc1 K1_nc\nds_write_b32 v1, v2\ns_cmp_ge_u32 s37, 1\ns_cbranch_scc1 K1_nc\nds_write_b128 v3, v[12:15] offset:25600\nK1_nc:")
    a("s_waitcnt lgkmcnt(0)\ns_barrier")
    a("s_cmp_ge_u32 s37, 7\ns_cbranch_scc1 K1_ns\nv_cmp_gt_u32 vcc, 400, v0\ns_and_saveexec_b64 s[34:35], vcc\ns_waitcnt vmcnt(0)")
    a.st(1)
    for i in range(4):
        a(f"v_lshrrev_b32 v{12+i}, 7, v{8+i}\nv_and_b32 v16, 127, v{8+i}\nv_lshl_or_b32 v{4+i}, v16, 16, v{4+i}\nv_lshlrev_b32 v16, 2, v{12+i}\nds_add_rtn_u32 v{8+i}, v16, v24")
    for i in range(4):
        a(f"s_waitcnt lgkmcnt(3)" if i == 0 else "s_waitcnt lgkmcnt(3)")
        a(f"v_and_b32 v16, 15, v{8+i}\nv_lshlrev_b32 v16, 2, v16\nv_lshl_add_u32 v16, v{12+i}, 6, v16\nv_lshrrev_b32 v17, 4, v{8+i}\nv_mad_u32_u24 v16, v17, s39, v16".replace("s39", "v26"))
        a(f"v_cmp_gt_u32 vcc, 32, v{8+i}\nv_cndmask_b32 v16, v27, v16, vcc\nds_write_b32 v16, v{4+i} offset:1024")
    a("s_mov_b64 exec, s[34:35]\nK1_ns:\ns_waitcnt lgkmcnt(0)\ns_barrier")
    a("s_and_b32 s3, s2, 7\ns_lshl_b32 s3, s3, 5\ns_lshr_b32 s39, s2, 3\ns_add_u32 s3, s3, s39\ns_lshl_b32 s3, s3, 6")
    a(f"s_add_u32 s39, s3, {WS_PART}\ns_add_u32 s40, s3, {WS_PARTB}")
    a("v_lshrrev_b32 v16, 2, v0\nv_and_b32 v17, 3, v0\nv_lshlrev_b32 v17, 4, v17\nv_mov_b32 v18, " + str(PWS) + "\nv_mad_u32_u24 v17, v16, v18, v17\nv_and_b32 v18, 0xfffffffc, v0")
    a("ds_read_b128 v[4:7], v3 offset:1024\nds_read_b128 v[8:11], v3 offset:9216\nds_read_b32 v19, v18\nds_read_b32 v20, v18 offset:512")
    a(f"v_add_u32 v21, {128*PWS}, v17\nv_cmp_gt_u32 vcc, {784-512}, v0\ns_mov_b64 s[42:43], vcc")
    a("s_waitcnt lgkmcnt(3)\nbuffer_store_dwordx4 v[4:7], v17, s[28:31], s39 offen" + WT(2) + "\ns_waitcnt lgkmcnt(0)")
    a("v_cndmask_b32 v20, 0, v20, s[42:43]\nv_max_u32 v22, v19, v20\ns_mov_b64 exec, s[42:43]\ns_cbranch_execz K1_n2")
    a("buffer_store_dwordx4 v[8:11], v21, s[28:31], s39 offen" + WT(2) + "\nK1_n2:\ns_mov_b64 exec, -1")
    a("v_cmp_le_u32 vcc, 16, v22\ns_cbranch_vccz K1_nb")
    a(f"ds_read_b128 v[4:7], v3 offset:{1024+12544}\nds_read_b128 v[8:11], v3 offset:{1024+12544+8192}\ns_waitcnt lgkmcnt(0)")
    a("v_cmp_le_u32 vcc, 16, v19\ns_mov_b64 exec, vcc\ns_cbranch_execz K1_b1\nbuffer_store_dwordx4 v[4:7], v17, s[28:31], s40 offen\nK1_b1:\ns_mov_b64 exec, -1")
    a("v_cmp_le_u32 vcc, 16, v20\ns_mov_b64 exec, vcc\ns_cbranch_execz K1_b2\nbuffer_store_dwordx4 v[8:11], v21, s[28:31], s40 offen\nK1_b2:\ns_mov_b64 exec, -1")
    a("K1_nb:")
    a(f"v_cmp_lt_u32 vcc, 32, v22\ns_cmp_lg_u64 vcc, 0\ns_cselect_b32 s3, 1, 0\nv_mov_b32 v4, s3\ns_lshr_b32 s39, s39, 1\ns_and_b32 s39, s39, 0x1fe0\ns_lshl_b32 s3, s37, 2\ns_add_u32 s39, s39, s3\ns_add_u32 s39, s39, {WS_IRR}")
    a("s_mov_b64 exec, 1\nbuffer_store_dword v4, v2, s[28:31], s39 offen")
    a.st(2); a.st_out(0, 28, 's37', 10); a("s_endpgm")
    B = 32768
    a("K1_win:")
    a(f"s_sub_u32 s36, s2, {NCH}\ns_lshl_b32 s38, s36, 7\ns_waitcnt lgkmcnt(0)")
    a.srd(16, 4, N*256); a.srd(24, 10, N*2); a.srd(28, 14, WS_SIZE)
    a("v_lshlrev_b32 v3, 4, v25\ns_lshl_b32 s39, s36, 15\ns_lshl_b32 s40, s37, 12\ns_add_u32 s39, s39, s40")
    a("v_add_u32 v5, s38, v0\nv_lshlrev_b32 v6, 1, v5\ns_cmp_ge_u32 s37, 2\ns_cbranch_scc1 K1_w0\nbuffer_load_ushort v4, v6, s[24:27], 0 offen" + NT(128) + "\nK1_w0:")
    for it in range(4): a(f"buffer_load_dwordx4 v[{32+4*it}:{35+4*it}], v3, s[16:19], s39 offen offset:{it*1024}{NT(2)}")
    a(f"ds_write_b32 v1, v2 offset:{B}")
    levelpos(a, 36, 44, 45)
    for d, x in ((50, 44), (53, 45)):
        a(f"s_sub_u32 s48, s{x}, s46\ns_mul_i32 s49, s48, 43\ns_lshr_b32 s49, s49, 8\ns_mul_i32 s49, s49, 6\ns_cmp_ge_u32 s48, 84\ns_cselect_b32 s49, 84, s49\ns_cmp_ge_u32 s48, 91\ns_cselect_b32 s49, 91, s49")
        a(f"s_sub_u32 s48, s48, s49\ns_cmp_ge_u32 s48, 4\ns_cselect_b32 s{d+1}, 1, 2\ns_cselect_b32 s{d+2}, 4, 0\ns_cmp_eq_u32 s48, 6\ns_cselect_b32 s{d+1}, 0, s{d+1}\ns_cselect_b32 s{d+2}, 6, s{d+2}")
        a(f"s_sub_u32 s48, s48, s{d+2}\ns_sub_u32 s{d}, s{x}, s48\ns_lshl_b32 s{d}, s{d}, 6\ns_add_u32 s{d}, s{d}, s48")
    a("s_lshl_b32 s44, s44, 6\ns_lshl_b32 s45, s45, 6\ns_sub_u32 s45, s45, 64\ns_waitcnt lgkmcnt(0)\ns_barrier\ns_cmp_ge_u32 s37, 2\ns_cbranch_scc1 K1_w1\ns_waitcnt vmcnt(4)"); a.st(4)
    a("v_lshlrev_b32 v4, 16, v4\nv_mov_b32 v23, 0x2b800000\nv_cmp_eq_f32 vcc, 0, v4\nv_cndmask_b32 v4, v4, v23, vcc\nv_mul_f32 v7, v4, v4\nv_rcp_f32 v7, v7\nv_rndne_f32 v7, v7\nv_cvt_u32_f32 v7, v7\nv_med3_u32 v7, v7, 1, 63")
    a(f"v_cmp_gt_u32 vcc, {N}, v5\nv_cndmask_b32 v7, 0, v7, vcc\nv_lshlrev_b32 v7, 2, v7\nds_add_rtn_u32 v8, v7, v24 offset:{B}\ns_waitcnt lgkmcnt(0)\nK1_w1:\ns_barrier")
    a("s_cmp_ge_u32 s37, 2\ns_cbranch_scc1 K1_w2")
    a(f"v_lshlrev_b32 v9, 2, v25\nds_read_b32 v20, v9 offset:{B}\ns_waitcnt lgkmcnt(0)\nv_mov_b32 v21, v20")
    a.scan_incl(21)
    a("v_sub_u32 v21, v21, v20\nds_bpermute_b32 v21, v7, v21\ns_waitcnt lgkmcnt(0)\nv_add_u32 v8, v8, v21")
    a(f"v_lshlrev_b32 v9, 2, v8\nds_write_b32 v1, v9 offset:{B+512}\nds_write_b32 v9, v4 offset:{B+1024}\nv_lshrrev_b32 v7, 2, v7\nv_sub_u32 v7, v7, v24 clamp\nds_write_b32 v9, v7 offset:{B+1536}")
    a("v_mov_b32 v10, s44\nv_mov_b32 v11, s45\nv_cmp_gt_u32 vcc, 64, v8\nv_cndmask_b32 v10, v11, v10, vcc\nv_add_u32 v10, v10, v8\nv_lshlrev_b32 v11, 2, v10")
    a(f"s_mov_b32 s3, {WS_NEWID}\nbuffer_store_short v10, v6, s[28:31], s3 offen\ns_mov_b32 s3, {WS_LOC}\nbuffer_store_short v8, v6, s[28:31], s3 offen")
    a("v_mov_b32 v14, s50\nv_mov_b32 v15, s53\nv_cndmask_b32 v14, v15, v14, vcc\nv_mov_b32 v15, s51\nv_mov_b32 v16, s54\nv_cndmask_b32 v15, v16, v15, vcc\nv_and_b32 v16, 63, v8\nv_lshlrev_b32 v16, v15, v16\nv_add_lshl_u32 v14, v14, v16, 2")
    a(f"s_mov_b32 s3, {WS_PERM}\nbuffer_store_dword v5, v14, s[28:31], s3 offen\nv_mul_f32 v12, v4, v4\nv_rcp_f32 v13, v4\ns_mov_b32 s3, {WS_DISP}\nbuffer_store_dword v12, v11, s[28:31], s3 offen\ns_mov_b32 s3, {WS_SINV}\nbuffer_store_dword v13, v14, s[28:31], s3 offen")
    a("s_waitcnt lgkmcnt(0)\nK1_w2:\ns_barrier")
    a.st(1)
    a(f"s_cmp_ge_u32 s37, 2\ns_cbranch_scc1 K1_nt\nds_read_b32 v6, v1 offset:{B+1536}\ns_waitcnt lgkmcnt(0)\nv_mov_b32 v7, v6")
    for sft in (1, 2, 4, 8): a(f"v_max_u32_dpp v6, v6, v6 row_shr:{sft} {DPPF} bound_ctrl:0\nv_add_u32_dpp v7, v7, v7 row_shr:{sft} {DPPF} bound_ctrl:0")
    for bc, m in ((15, '0xa'), (31, '0xc')): a(f"v_max_u32_dpp v6, v6, v6 row_bcast:{bc} row_mask:{m} bank_mask:0xf\nv_add_u32_dpp v7, v7, v7 row_bcast:{bc} row_mask:{m} bank_mask:0xf")
    a("v_readlane_b32 s40, v6, 63\nv_readlane_b32 s41, v7, 63")
    a(f"s_mul_i32 s41, s41, {OPT['tal']}\ns_lshr_b32 s41, s41, 10\ns_add_u32 s41, s41, {OPT['tbe']}\ns_max_u32 s41, s41, s40\ns_add_u32 s41, s41, 3\ns_lshr_b32 s41, s41, 2\ns_min_u32 s41, s41, 16\ns_max_u32 s41, s41, 1")
    a(f"s_add_u32 s3, s45, 64\ns_cmp_eq_u32 s37, 0\ns_cselect_b32 s3, s44, s3\ns_lshr_b32 s3, s3, 4\ns_add_u32 s3, s3, {WS_TQ}\nv_mov_b32 v6, s41\ns_mov_b64 exec, 1\nbuffer_store_dword v6, v2, s[28:31], s3 offen\ns_mov_b64 exec, -1\nK1_nt:")
    a("v_lshrrev_b32 v9, 4, v25\nv_lshlrev_b32 v9, 2, v9\ns_lshl_b32 s3, s37, 6\nv_add_u32 v9, s3, v9\nv_and_b32 v12, 15, v25\nv_lshlrev_b32 v13, 4, v12\nv_lshlrev_b32 v12, 11, v12")
    for it in range(4): a(f"ds_read_b32 v{16+it}, v9 offset:{B+512+16*it}")
    a(f"v_and_b32 v14, 31, v25\nv_lshlrev_b32 v15, 4, v14\nds_read_b128 v[28:31], v15 offset:{B+1024}")
    for it in range(4):
        a(f"s_waitcnt lgkmcnt({4 if it == 0 else 4+3})" if False else "")
    a("s_waitcnt lgkmcnt(0)")
    for it in range(4):
        a(f"v_xor_b32 v{16+it}, v{16+it}, v13\nv_add_u32 v{16+it}, v{16+it}, v12")
    a("s_cmp_ge_u32 s37, 2\ns_cbranch_scc1 K1_w3\ns_waitcnt vmcnt(6)\ns_branch K1_w4\nK1_w3:\ns_waitcnt vmcnt(0)\nK1_w4:"); a.st(5)
    for it in range(4):
        for i in range(4): a(f"ds_write_b32 v{16+it}, v{32+4*it+i} offset:{i*512}")
    a("v_lshrrev_b32 v20, 5, v25\ns_lshl_b32 s3, s37, 5\nv_xor_b32 v21, s3, v15\nv_lshl_add_u32 v21, v20, 9, v21\ns_lshl_b32 s3, s37, 12\nv_add_u32 v21, s3, v21\nv_xor_b32 v22, 16, v21")
    a("v_mov_b32 v10, s44\nv_mov_b32 v11, s45\nv_cmp_gt_u32 vcc, 16, v14\nv_cndmask_b32 v10, v11, v10, vcc\nv_lshl_add_u32 v10, v14, 2, v10")
    a(f"s_mov_b32 s3, {GS}\nv_mul_lo_u32 v20, v20, s3\nv_lshl_add_u32 v10, v10, 2, v20")
    a(f"s_mul_i32 s42, s37, {8*GS}\ns_add_u32 s42, s42, {WS_G}")
    a("s_waitcnt lgkmcnt(0)\ns_barrier")
    a.st(2)
    for j in range(4): a(f"ds_read_b128 v[{32+4*j}:{35+4*j}], v{21 if j < 2 else 22} offset:{j*1024}")
    for j in range(4):
        a(f"s_waitcnt lgkmcnt({3-j})")
        for i in range(4):
            a(f"v_lshlrev_b32 v4, 16, v{32+4*j+i}\nv_and_b32 v5, 0xffff0000, v{32+4*j+i}\nv_mul_f32 v4, v{28+i}, v4\nv_mul_f32 v5, v{28+i}, v5\nv_cvt_pk_bf16_f32 v{48+4*(j&1)+i}, v4, v5")
        a(f"buffer_store_dwordx4 v[{48+4*(j&1)}:{51+4*(j&1)}], v10, s[28:31], s42 offen{WT(1)}")
        if j < 3: a(f"s_add_u32 s42, s42, {2*GS}")
    a.st(3); a.st_out(0, 28, 's37', 10); a("s_endpgm")
    a(f"K1_mm:\ns_sub_u32 s36, s2, {NCH+NWIN}\ns_lshr_b32 s34, s36, 2\ns_and_b32 s35, s36, 3\ns_load_dwordx8 s[40:47], s[0:1], 32\ns_load_dwordx2 s[48:49], s[0:1], 64\nv_lshlrev_b32 v9, 4, v25\nv_lshlrev_b32 v10, 1, v0")
    a("v_lshrrev_b32 v5, 4, v25\nv_and_b32 v6, 15, v25\nv_xor_b32 v6, v6, v5\nv_lshlrev_b32 v6, 4, v6\nv_lshl_add_u32 v6, v5, 8, v6\nv_lshlrev_b32 v8, 4, v25\nv_and_b32 v3, 31, v25\nv_lshrrev_b32 v4, 5, v25")
    a("s_waitcnt lgkmcnt(0)\ns_cmp_eq_u32 s34, 0\ns_cselect_b32 s52, s40, s44\ns_cselect_b32 s53, s41, s45\ns_cselect_b32 s54, s42, s46\ns_cselect_b32 s55, s43, s47\ns_cselect_b64 s[56:57], -1, 0")
    a.srd(20, 52, 32768); a.srd(24, 54, 32768); a.srd(28, 14, WS_SIZE); a.srd(16, 48, 256)
    a("buffer_load_ushort v10, v10, s[16:19], 0 offen")
    a("s_and_b32 s39, s37, 3\ns_lshl_b32 s39, s39, 6\nv_xor_b32 v7, s39, v6\ns_lshl_b32 s39, s37, 10\ns_mov_b32 m0, s39\ns_lshl_b32 s38, s35, 13\ns_add_u32 s38, s38, s39\nbuffer_load_dwordx4 v7, s[20:23], s38 offen" + NT(256) + " lds")
    a("s_lshl_b32 s38, s37, 12\ns_add_u32 m0, s38, 8192")
    for i in range(4): a(f"v_xor_b32 v7, {64*i}, v6\nv_cndmask_b32 v7, v8, v7, s[56:57]\nbuffer_load_dwordx4 v7, s[24:27], s38 offen offset:{1024*i}{NT(256)} lds")
    a("s_and_b32 s39, s37, 3\ns_lshr_b32 s40, s37, 2\ns_lshl_b32 s41, s40, 7")
    a("v_and_b32 v5, 15, v3\nv_xor_b32 v5, v5, v4\nv_lshlrev_b32 v5, 4, v5\nv_lshl_add_u32 v5, v3, 8, v5\nv_xor_b32 v5, s41, v5\ns_lshl_b32 s42, s39, 13\ns_add_u32 s42, s42, 8192\nv_add_u32 v7, s42, v5")
    a("s_waitcnt vmcnt(0)\ns_barrier")
    for u in range(4): a(f"v_xor_b32 v8, {32*u}, v5\nds_read_b128 v[{16+4*u}:{19+4*u}], v8")
    a("s_cmp_eq_u32 s34, 0\ns_cbranch_scc0 K1_mb")
    for u in range(4): a(f"v_xor_b32 v8, {32*u}, v7\nds_read_b128 v[{32+4*u}:{35+4*u}], v8")
    a("s_branch K1_mc\nK1_mb:")
    a("v_lshlrev_b32 v6, 11, v4\nv_lshl_add_u32 v6, v3, 1, v6\ns_lshl_b32 s42, s39, 6\ns_lshl_b32 s43, s40, 14\ns_add_u32 s42, s42, s43\ns_add_u32 s42, s42, 8192\nv_add_u32 v6, s42, v6")
    for u in range(4):
        for t in range(8): a(f"ds_read_u16 v{(48 if t&1 else 32)+4*u+t//2}, v6 offset:{(16*u+t)*256}")
    a("s_waitcnt lgkmcnt(0)")
    for i in range(16): a(f"v_lshl_or_b32 v{32+i}, v{48+i}, 16, v{32+i}")
    a("K1_mc:\ns_waitcnt lgkmcnt(0)")
    for u in range(4): a(f"v_mfma_f32_32x32x16_bf16 v[48:63], v[{16+4*u}:{19+4*u}], v[{32+4*u}:{35+4*u}], {'0' if u == 0 else 'v[48:63]'}")
    a(f"s_lshl_b32 s42, s36, 15\ns_lshl_b32 s43, s39, 13\ns_add_u32 s42, s42, s43\ns_lshl_b32 s43, s40, 12\ns_add_u32 s42, s42, s43\ns_add_u32 s42, s42, {WS_PM}")
    a(f"s_mov_b32 s3, {WS_WFR+WFR_SW+256}\nv_lshlrev_b32 v10, 16, v10\ns_cmp_lg_u32 s36, 0\ns_cbranch_scc1 K1_nw\nbuffer_store_dword v10, v1, s[28:31], s3 offen\nK1_nw:")
    for i in range(4): a(f"buffer_store_dwordx4 v[{48+4*i}:{51+4*i}], v9, s[28:31], s42 offen offset:{1024*i}")
    a.st(3); a.st_out(0, 28, 's37', 10)
    a("K1_end:\ns_endpgm")
    a.end(name, 64, 102 if OPT['stamp'] else 64)

L2_CNT = 0; L2_LU = 512; L2_BU = 1024; L2_LOC = 2048; L2_IRR = 2304; L2_O = 2560; L2_L = L2_O + 16384; TB = QN*8 + 64; L2_NEW = TB
def k2_window(a):
    Ev, NS, ND = 20, 24, 28
    MK = lambda j: f"s[{40+2*j}:{41+2*j}]"
    a(f"v_lshlrev_b32 v3, 4, v0\ns_mul_i32 s34, s2, {PWS}\ns_add_u32 s65, s34, {WS_PART}\nbuffer_load_dwordx4 v[{Ev}:{Ev+3}], v3, s[28:31], s65 offen{NT(32)}")
    a(f"v_lshlrev_b32 v4, 3, v0\ns_mov_b32 s35, {WS_IRR}\nbuffer_load_dwordx2 v[6:7], v4, s[28:31], s35 offen")
    a("v_lshlrev_b32 v5, 4, v2")
    a(f"s_lshl_b32 s34, s33, 10\ns_add_u32 s35, s34, {WS_NEWID}\ns_add_u32 s34, s34, {L2_NEW}")
    for i in range(4):
        if i == 3: a("s_cmp_lg_u32 s33, 0\ns_cbranch_scc1 K2_nd")
        a(f"s_mov_b32 m0, s34\nbuffer_load_dwordx4 v5, s[28:31], s35 offen lds")
        if i < 3: a("s_add_u32 s34, s34, 16384\ns_add_u32 s35, s35, 16384")
    a(f"s_lshl_b32 s35, s2, 8\ns_add_u32 s35, s35, {WS_LOC}\ns_mov_b32 m0, {L2_LOC}\nv_lshlrev_b32 v8, 2, v2\nbuffer_load_dword v8, s[28:31], s35 offen lds")
    a("K2_nd:")
    a("v_lshlrev_b32 v8, 2, v0\nv_mov_b32 v10, 0\ns_cmp_ge_u32 s33, 8\ns_cbranch_scc1 K2_nz\ns_cmp_ge_u32 s33, 2\ns_cselect_b32 s35, -1, 0\nv_mov_b32 v9, s35\nds_write_b32 v8, v9\nds_write_b32 v10, v10 offset:" + str(L2_IRR) + "\nK2_nz:")
    a("v_bfe_u32 v9, v0, 2, 5\nv_lshrrev_b32 v11, 7, v0\nv_lshl_add_u32 v9, v9, 3, v11")
    a(f"v_cmp_gt_u32 vcc, {NCH}, v9\ns_mov_b64 s[38:39], vcc\nv_mov_b32 v12, 1\nv_mov_b32 v13, 0xfc\ns_mov_b32 s64, 0\ns_mov_b32 s66, {L2_L}\ns_mov_b32 s67, 0")
    levelpos(a, 2, 60, 61)
    a("s_cmp_lt_u32 s33, 8\ns_cselect_b32 s60, s60, s61\ns_sub_u32 s61, s60, s62\ns_mul_i32 s63, s61, 43\ns_lshr_b32 s63, s63, 8\ns_cmp_ge_u32 s61, 84\ns_cselect_b32 s63, 14, s63\ns_cmp_ge_u32 s61, 91\ns_cselect_b32 s63, 15, s63")
    a("s_mul_i32 s68, s63, 6\ns_cselect_b32 s68, 91, s68\ns_sub_u32 s69, s61, s68\ns_add_u32 s68, s68, s62")
    a(f"s_lshl_b32 s68, s68, 2\ns_add_u32 s68, s68, {WS_TQ}\ns_buffer_load_dwordx8 s[48:55], s[28:31], s68")
    a(f"s_mul_i32 s62, s62, 10700\ns_lshr_b32 s62, s62, 16\ns_add_u32 s62, s62, s63\ns_mul_i32 s68, s62, {RS}\ns_add_u32 s68, s68, {WS_IDX}")
    a("s_waitcnt lgkmcnt(0)")
    a("s_mov_b32 s56, 0\ns_and_b32 s57, s48, 0xffff")
    for i in range(6): a(f"s_cmp_gt_u32 s69, {i}\ns_cselect_b32 s58, s57, 0\ns_cselect_b32 s57, s{49+i}, s57\ns_add_u32 s56, s56, s58\ns_and_b32 s57, s57, 0xffff")
    a("s_waitcnt vmcnt(0)\ns_barrier"); a.st(11)
    if OPT['tp'] == 0: tabledma(a, 5, 'c', 2)
    a("v_or_b32 v6, v6, v7\nv_cmp_ne_u32 vcc, 0, v6\ns_and_b64 vcc, vcc, s[38:39]\ns_cbranch_vccz K2_reg\nds_write_b32 v10, v12 offset:" + str(L2_IRR) + "\nK2_reg:")
    a("K2_loop:\ns_mov_b64 exec, s[38:39]")
    for j in range(4): a(f"v_cmp_ne_u32 {MK(j)}, -1, v{Ev+j}")
    for j in range(4):
        a(f"s_mov_b64 exec, {MK(j)}")
        a(f"v_lshlrev_b32_sdwa v15, 1, v{Ev+j} {SD} src1_sel:WORD_0\nv_lshrrev_b32 v16, 15, v{Ev+j}")
        a(f"ds_read_u16 v{ND+j}, v16 offset:{L2_LOC}\nds_read_u16 v{NS+j}, v15 offset:{L2_NEW}")
    a("s_waitcnt lgkmcnt(0)")
    for j in range(4):
        a(f"s_mov_b64 exec, {MK(j)}\nv_lshlrev_b32 v{ND+j}, 2, v{ND+j}\nds_add_rtn_u32 v{32+j}, v{ND+j}, v12 offset:{L2_CNT}")
        a(f"v_and_or_b32 v{36+j}, v{ND+j}, v13, s66\nv_lshrrev_b32 v16, 8, v{ND+j}\nv_lshl_add_u32 v{36+j}, v16, 13, v{36+j}")
    a("s_waitcnt lgkmcnt(0)")
    for j in range(4):
        a(f"s_mov_b64 exec, {MK(j)}")
        a(f"v_lshrrev_b32 v16, 1, v{32+j}\nv_lshl_add_u32 v15, v16, 8, v{36+j}\nv_and_b32 v16, 1, v{32+j}\nv_lshl_add_u32 v15, v16, 1, v15")
        a(f"v_cmp_gt_u32 vcc, 64, v{32+j}\ns_and_b64 exec, exec, vcc\nds_write_b16 v15, v{NS+j}")
    a(f"s_mov_b64 exec, -1\ns_cmp_lg_u32 s64, 0\ns_cbranch_scc1 K2_pa\nv_cndmask_b32 v15, 0, v12, {MK(3)}\ns_mov_b32 s64, 1")
    a(f"v_mov_b32_dpp v15, v15 quad_perm:[3,3,3,3] {DPPF}\nv_cmp_ne_u32 s[38:39], 0, v15\ns_cmp_eq_u64 s[38:39], 0\ns_cbranch_scc1 K2_pa")
    a(f"s_mov_b64 exec, s[38:39]\ns_add_u32 s65, s65, {WS_PARTB-WS_PART}\nbuffer_load_dwordx4 v[{Ev}:{Ev+3}], v3, s[28:31], s65 offen\ns_waitcnt vmcnt(0)\ns_branch K2_loop")
    a("K2_pa:\ns_waitcnt lgkmcnt(0)\ns_barrier"); a.st(12)
    if OPT['tp'] == 1: tabledma(a, 5, 'c', 2)
    a("s_mov_b32 s41, s57\ns_mov_b32 s61, s56\ns_lshr_b32 s34, s33, 3\ns_and_b32 s36, s33, 7\ns_lshl_b32 s35, s34, 8\nv_lshl_add_u32 v4, v2, 2, s35\nds_read_b32 v5, v4")
    a(f"s_lshl_b32 s37, s34, 13\ns_add_u32 s37, s37, {L2_L}\ns_lshr_b32 s46, s36, 1\ns_lshl_b32 s46, s46, 8\ns_and_b32 s47, s36, 1\ns_lshl_b32 s47, s47, 1\ns_add_u32 s46, s46, s47\ns_add_u32 s46, s46, s37\nv_lshl_add_u32 v16, v2, 2, s46")
    for t in range(4): a(f"ds_read_u16 v{20+t}, v16 offset:{t*1024}")
    a("s_lshl_b32 s42, s41, 2\ns_waitcnt lgkmcnt(4)\nv_cmp_lt_u32 vcc, s42, v5\ns_min_u32 s42, s42, 32\ns_lshl_b64 s[44:45], -1, s42\ns_not_b32 s44, s44")
    a("s_cbranch_vccz K2_ntq")
    a(f"ds_write_b32 v10, v12 offset:{L2_IRR}\nK2_ntq:")
    a("v_min_u32 v15, s42, v5\nv_subrev_u32 v15, s36, v15\nv_add_u32 v15, 7, v15\nv_lshrrev_b32 v15, 3, v15")
    a("s_lshl_b32 s46, s36, 2\nv_add_u32 v17, s46, v2\nv_and_b32 v17, 31, v17\nv_mul_u32_u24 v17, s42, v17\nv_lshrrev_b32 v17, 5, v17\nv_mov_b32 v18, -1\nv_lshlrev_b32 v17, v17, v18")
    a(f"s_lshl_b32 s46, s34, 9\ns_add_u32 s46, s46, {L2_BU}\nv_lshrrev_b32 v8, 5, v2\nv_lshlrev_b32 v8, 8, v8\nv_add_u32 v8, s46, v8")
    a(f"s_lshl_b32 s47, s34, 13\ns_add_u32 s47, s47, {L2_O}\nv_lshl_add_u32 v19, v2, 2, s47")
    a("v_mov_b32 v24, s44\nv_mov_b32 v26, -1\nv_mov_b32 v27, -1\nv_bfrev_b32 v40, 1\nv_mov_b32 v41, 0x7c\nv_mov_b32 v42, s44\ns_waitcnt lgkmcnt(0)")
    a("v_lshl_or_b32 v20, v21, 16, v20\nv_lshl_or_b32 v21, v23, 16, v22\nv_cmp_lt_u32 vcc, 0, v15")
    a("K2_rd:\ns_mov_b64 exec, vcc\ns_cbranch_execz K2_sd")
    a("v_and_b32 v28, v24, v26\nv_lshlrev_b32 v25, 2, v20\nv_and_b32 v31, v28, v17\nv_cmp_ne_u32 s[48:49], 0, v31\nv_cmp_ne_u32 s[52:53], 0, v28\nv_and_or_b32 v25, v25, v41, v8")
    a("v_cndmask_b32 v31, v28, v31, s[48:49]\nv_sub_u32 v32, 0, v31\nv_and_b32 v34, v31, v32\ns_mov_b64 s[50:51], 0\ns_andn2_b64 s[54:55], exec, s[52:53]\ns_cbranch_scc0 K2_l1")
    a("s_mov_b64 exec, s[54:55]\nv_and_b32 v29, v24, v27\nv_cmp_eq_u32 s[50:51], 0, v29\nv_add_u32 v25, 128, v25\nv_cndmask_b32 v29, v29, v24, s[50:51]\nv_ffbh_u32 v29, v29\nv_lshrrev_b32 v34, v29, v40\ns_mov_b64 exec, vcc\nK2_l1:")
    a(f"v_not_b32 v33, v34\nds_and_rtn_b32 v35, v4, v33 offset:{L2_LU}\nds_and_rtn_b32 v36, v25, v33\nv_ffbl_b32 v37, v34\nv_lshl_add_u32 v37, v37, 8, v19")
    a("s_waitcnt lgkmcnt(0)\nv_and_b32 v24, s44, v35\nv_and_b32 v35, v35, v34\nv_and_b32 v38, v36, v34\nv_cndmask_b32 v39, v38, v34, s[50:51]\nv_and_b32 v39, v39, v35\nv_cmp_ne_u32 s[48:49], 0, v39")
    a(f"s_andn2_b64 exec, exec, s[48:49]\nds_or_b32 v4, v35 offset:{L2_LU}\nds_or_b32 v25, v38\nv_cndmask_b32 v26, v26, v36, s[52:53]\nv_cndmask_b32 v27, v36, v27, s[52:53]")
    a("s_mov_b64 exec, s[48:49]\nds_write_b16 v37, v20\nv_and_b32 v24, v24, v33\nv_alignbit_b32 v20, v21, v20, 16\nv_lshrrev_b32 v21, 16, v21\nv_mov_b32 v26, -1\nv_mov_b32 v27, -1\nv_subrev_u32 v15, 1, v15")
    a("s_mov_b64 exec, vcc\nv_cmp_eq_u32 s[48:49], 0, v24\nv_cmp_lt_u32 vcc, 0, v15\ns_add_u32 s67, s67, 1\nv_cndmask_b32 v24, v24, v42, s[48:49]\ns_cmp_lt_u32 s67, 4096\ns_cbranch_scc1 K2_rd")
    a(f"s_mov_b64 exec, -1\nds_write_b32 v10, v12 offset:{L2_IRR}")
    a("K2_sd:\ns_mov_b64 exec, -1")
    a("s_waitcnt lgkmcnt(0)\ns_barrier"); a.st(13)
    a("s_cmp_ge_u32 s36, s41\ns_cbranch_scc1 K2_end")
    a(f"s_lshl_b32 s46, s36, 10\nv_add_u32 v11, s46, v19\nv_and_b32 v18, 31, v2\nv_lshl_add_u32 v18, v18, 2, v8")
    a(f"ds_read_b32 v16, v4 offset:{L2_LU}\nds_read_b32 v18, v18\nds_read2st64_b32 v[20:21], v11 offset0:0 offset1:1\nds_read2st64_b32 v[22:23], v11 offset0:2 offset1:3")
    a(f"s_lshl_b32 s47, s36, 9\ns_add_u32 s37, s37, s47\nv_lshl_add_u32 v12, v2, 2, s37\nds_read2st64_b32 v[24:25], v12 offset0:16 offset1:17")
    a(f"v_mov_b32 v13, 0xffff\nv_lshlrev_b32 v15, 4, v2\ns_add_u32 s61, s61, s36\ns_lshr_b32 s39, s61, 1\ns_lshl_b32 s39, s39, 10\ns_and_b32 s61, s61, 1\ns_lshl_b32 s61, s61, 3\ns_add_u32 s39, s39, s61\ns_add_u32 s39, s39, s68\ns_lshl_b32 s38, s36, 2\ns_mov_b32 s50, -1\ns_mov_b32 s51, 0\ns_waitcnt lgkmcnt(3)")
    a("v_lshrrev_b32 v16, s38, v16\nv_lshrrev_b32 v18, s38, v18")
    for t in range(4):
        a(f"v_and_b32 v26, {1 << t}, v18\nv_cmp_ne_u32 s[{52+2*t}:{53+2*t}], 0, v26")
    for r in range(52, 60): a(f"s_ff1_i32_b32 s{r}, s{r}\ns_and_b32 s{r}, s{r}, 31\ns_add_u32 s{r}, s{r}, {ZB}")
    a("s_waitcnt lgkmcnt(0)")
    for t in range(4):
        a(f"v_mov_b32 v26, s{52+2*t}\nv_mov_b32 v27, s{53+2*t}\nv_cndmask_b32 v26, v27, v26, s[50:51]\nv_and_b32 v27, {1 << t}, v16\nv_cmp_ne_u32 vcc, 0, v27\nv_cndmask_b32 v{20+t}, v{20+t}, v26, vcc")
    a("v_and_b32 v20, v13, v20\nv_and_b32 v22, v13, v22\nv_lshl_or_b32 v20, v21, 17, v20\nv_lshl_or_b32 v21, v23, 17, v22\nbuffer_store_dwordx2 v[20:21], v15, s[28:31], s39 offen sc1")
    a("s_add_u32 s36, s36, 8\ns_cmp_ge_u32 s36, s41\ns_cbranch_scc1 K2_end")
    a(f"v_mov_b32 v43, -1\ns_add_u32 s38, s38, 32\nv_subrev_u32 v5, s38, v5\nv_mov_b32 v14, {ZB | (ZB << 16)}")
    for h in range(2):
        a(f"v_cmp_lt_i32 vcc, {2*h}, v5\nv_cndmask_b32 v26, 0, v13, vcc\nv_cmp_lt_i32 vcc, {2*h+1}, v5\nv_cndmask_b32 v26, v26, v40, vcc".replace("v40", "v43"))
        a(f"v_bfi_b32 v{24+h}, v26, v{24+h}, v14\nv_and_b32 v26, 0xffff0000, v{24+h}\nv_add_u32 v{24+h}, v{24+h}, v26")
    a("s_add_u32 s39, s39, 4096\nbuffer_store_dwordx2 v[24:25], v15, s[28:31], s39 offen sc1\ns_branch K2_end")

def f2u(x): return struct.unpack('<I', struct.pack('<f', x))[0]
SCL = f2u(math.log2(math.e)/math.sqrt(128.0))
FO = lambda i: 16*(i & 1) + 4*(i >> 1)
def k2_weights(a):
    S0 = 66048
    a(f"s_sub_u32 s34, s2, {NWIN}")
    a(f"s_lshl_b32 s39, s34, 17\ns_lshl_b32 s60, s33, 13\ns_add_u32 s39, s39, s60\ns_add_u32 s39, s39, {WS_PM}\ns_add_u32 s60, s39, 4096\nv_lshlrev_b32 v8, 4, v2")
    for i in range(4): a(f"buffer_load_dwordx4 v[{80+4*i}:{83+4*i}], v8, s[28:31], s39 offen offset:{1024*i}\nbuffer_load_dwordx4 v[{96+4*i}:{99+4*i}], v8, s[28:31], s60 offen offset:{1024*i}")
    a("s_lshr_b32 s35, s33, 2\ns_and_b32 s36, s33, 3\nv_and_b32 v3, 31, v2\nv_lshrrev_b32 v4, 5, v2")
    a(f"v_lshlrev_b32 v7, 2, v0\ns_cmp_ge_u32 s33, 8\ns_cbranch_scc1 K2w_nw\ns_mov_b32 s3, {WS_WFR+WFR_SW+256}\nbuffer_load_dword v8, v7, s[28:31], s3 offen")
    a(f"v_add_u32 v7, {S0}, v7\ns_waitcnt vmcnt(0)\nds_write_b32 v7, v8\nK2w_nw:")
    a("s_waitcnt vmcnt(0) lgkmcnt(0)\ns_barrier")
    for i in range(16): a(f"v_add_f32 v{80+i}, v{80+i}, v{96+i}")
    a(f"s_mul_i32 s39, s35, {32*516}\ns_lshl_b32 s60, s36, 7\ns_add_u32 s39, s39, s60\nv_mul_u32_u24 v6, {4*516}, v4\nv_lshl_add_u32 v6, v3, 2, v6\nv_add_u32 v6, s39, v6")
    a(f"s_add_u32 s60, s60, {S0}\nv_lshl_add_u32 v7, v3, 2, s60\nds_read_b32 v8, v7")
    for r in range(16): a(f"ds_write_b32 v6, v{80+r} offset:{(8*(r>>2)+(r&3))*516}")
    a("v_add_f32 v9, v80, v81")
    for r in range(2, 16): a(f"v_add_f32 v9, v9, v{80+r}")
    a("ds_add_f32 v7, v9 offset:1536\ns_waitcnt lgkmcnt(1)")
    for r in range(16): a(f"v_mul_f32 v{48+r}, v8, v{80+r}")
    for q in (80, 48):
        for i in range(8): a(f"v_add_f32_dpp v{q+i}, v{q+i}, v{q+i} row_ror:8 row_mask:0xf bank_mask:0x3")
        for i in range(8): a(f"v_add_f32_dpp v{q+i}, v{q+8+i}, v{q+8+i} row_ror:8 row_mask:0xf bank_mask:0xc")
        for i in range(4): a(f"v_add_f32_dpp v{q+i}, v{q+i}, v{q+i} row_half_mirror row_mask:0xf bank_mask:0x5")
        for i in range(4): a(f"v_add_f32_dpp v{q+i}, v{q+4+i}, v{q+4+i} row_half_mirror row_mask:0xf bank_mask:0xa")
        for i in range(4): a(f"v_add_f32_dpp v{q+i}, v{q+i}, v{q+i} quad_perm:[1,0,3,2] {DPPF}")
        for i in range(4): a(f"v_add_f32_dpp v{q+i}, v{q+i}, v{q+i} quad_perm:[2,3,0,1] {DPPF}")
        a(f"v_permlane16_swap_b32 v{q}, v{q+1}\nv_permlane16_swap_b32 v{q+2}, v{q+3}\nv_add_f32 v{q}, v{q}, v{q+1}\nv_add_f32 v{q+2}, v{q+2}, v{q+3}")
    a(f"v_bfe_u32 v10, v2, 2, 2\nv_lshlrev_b32 v10, 5, v10\nv_bfe_u32 v11, v2, 4, 1\nv_lshl_add_u32 v10, v11, 2, v10\nv_lshl_add_u32 v10, v4, 4, v10\ns_lshl_b32 s60, s35, 7\ns_add_u32 s60, s60, {S0}\nv_add_u32 v10, s60, v10")
    a("s_mov_b32 exec_lo, 0x11111111\ns_mov_b32 exec_hi, 0x11111111\nds_add_f32 v10, v80 offset:512\nds_add_f32 v10, v82 offset:520\nds_add_f32 v10, v48 offset:1024\nds_add_f32 v10, v50 offset:1032\ns_mov_b64 exec, -1")
    a("s_waitcnt lgkmcnt(0)"); a("s_barrier")
    a(f"v_lshlrev_b32 v5, 3, v2\nv_add_u32 v5, {S0}, v5\nds_read_b64 v[8:9], v5\nds_read_b64 v[10:11], v5 offset:512\nds_read_b64 v[12:13], v5 offset:1024\ns_waitcnt lgkmcnt(0)")
    a("v_add_f32 v8, v8, v9\nv_add_f32 v10, v10, v11\nv_add_f32 v12, v12, v13")
    for v in (8, 10, 12): a.red63('v_add_f32', v)
    a("v_readlane_b32 s60, v8, 63\nv_readlane_b32 s61, v10, 63\nv_readlane_b32 s62, v12, 63")
    a(f"s_mov_b32 s63, {f2u(1/128.)}\ns_mov_b32 s64, {f2u(-1/128.)}\ns_mov_b32 s65, {SCL}\nv_lshlrev_b32 v15, 4, v2")
    a(f"s_lshl_b32 s66, s33, 11\ns_lshl_b32 s67, s34, 15\ns_add_u32 s66, s66, s67\ns_add_u32 s66, s66, {WS_WFR}")
    a("s_lshr_b32 s35, s33, 2\ns_and_b32 s36, s33, 3\ns_lshl_b32 s36, s36, 1")
    a("s_cmp_eq_u32 s34, 0\ns_cbranch_scc0 K2w_fb")
    a("v_and_b32 v5, 1, v3\nv_lshrrev_b32 v6, 2, v3\nv_lshl_or_b32 v5, v6, 1, v5\nv_bfe_u32 v6, v3, 1, 1\nv_lshl_or_b32 v5, v6, 4, v5")
    a("s_lshl_b32 s37, s35, 5\nv_add_u32 v5, s37, v5")
    a(f"v_lshlrev_b32 v7, 2, v5\nv_add_u32 v7, {S0}, v7\nds_read_b32 v14, v7 offset:512")
    a(f"s_lshl_b32 s37, s36, 6\nv_lshl_add_u32 v6, v4, 3, s37\nv_mul_u32_u24 v5, 516, v5\nv_add_u32 v5, v5, v6\nv_add_u32 v6, {S0+1536}, v6")
    for h in range(2):
        for i in range(4):
            a(f"ds_read2_b32 v[{16+16*h+2*i}:{17+16*h+2*i}], v5 offset0:{8*h+FO(i)} offset1:{8*h+FO(i)+1}")
            a(f"ds_read2_b32 v[{24+16*h+2*i}:{25+16*h+2*i}], v6 offset0:{8*h+FO(i)} offset1:{8*h+FO(i)+1}")
    a("v_mov_b32 v8, s61\nv_mul_f32 v8, s63, v8\ns_waitcnt lgkmcnt(0)\nv_sub_f32 v14, v8, v14\nv_mul_f32 v14, s63, v14")
    for h in range(2):
        for j in range(8):
            x = 16+16*h+j
            a(f"v_add_f32 v{x}, v{x}, v14\nv_fmac_f32 v{x}, s64, v{x+8}\nv_mul_f32 v{x}, s65, v{x}")
        for i in range(4): a(f"v_cvt_pk_bf16_f32 v{48+4*h+i}, v{16+16*h+2*i}, v{17+16*h+2*i}")
        a(f"buffer_store_dwordx4 v[{48+4*h}:{51+4*h}], v15, s[28:31], s66 offen offset:{1024*h}")
    a("s_branch K2w_end\nK2w_fb:")
    a("s_lshr_b32 s37, s35, 1\ns_lshl_b32 s37, s37, 8\ns_and_b32 s38, s35, 1\ns_lshl_b32 s38, s38, 2\ns_add_u32 s37, s37, s38\nv_lshl_add_u32 v5, v3, 3, s37")
    a(f"v_add_u32 v7, {S0+1536}, v5\nds_read_b32 v14, v7")
    a(f"s_mul_i32 s37, s36, {16*516}\nv_mul_u32_u24 v6, {2*516}, v4\nv_add3_u32 v5, v5, v6, s37")
    for h in range(2):
        for i in range(4):
            for c in range(2): a(f"ds_read_b32 v{16+8*h+2*i+c}, v5 offset:{(8*h+FO(i)+c)*516}")
    a("s_waitcnt lgkmcnt(0)")
    for h in range(2):
        for j in range(8): a(f"v_fmac_f32 v{16+8*h+j}, s64, v14")
        for i in range(4): a(f"v_cvt_pk_bf16_f32 v{48+4*h+i}, v{16+8*h+2*i}, v{17+8*h+2*i}")
        a(f"buffer_store_dwordx4 v[{48+4*h}:{51+4*h}], v15, s[28:31], s66 offen offset:{1024*h}")
    a("s_cmp_ge_u32 s33, 8\ns_cbranch_scc1 K2w_end")
    a("v_and_b32 v5, 3, v2\nv_lshrrev_b32 v6, 5, v2\nv_max_u32 v7, 1, v5\nv_lshlrev_b32 v7, 9, v7\nv_lshl_add_u32 v7, v6, 3, v7")
    a(f"s_lshr_b32 s37, s33, 1\ns_lshl_b32 s37, s37, 7\ns_and_b32 s38, s33, 1\ns_lshl_b32 s38, s38, 5\ns_add_u32 s37, s37, s38\ns_add_u32 s37, s37, {S0-512}\nv_add_u32 v7, s37, v7")
    for i in range(4): a(f"ds_read2_b32 v[{16+2*i}:{17+2*i}], v7 offset0:{FO(i)} offset1:{FO(i)+1}")
    a("v_mov_b32 v8, s61\nv_mov_b32 v9, s62\nv_cmp_eq_u32 s[40:41], 2, v5\nv_cmp_eq_u32 s[42:43], 3, v5\nv_cmp_eq_u32 s[44:45], 0, v5")
    a("v_cndmask_b32 v8, 0, v8, s[40:41]\nv_cndmask_b32 v8, v8, v9, s[42:43]")
    a("v_lshrrev_b32 v10, 2, v2\nv_lshrrev_b32 v11, 4, v2\nv_xor_b32 v10, v10, v11\nv_and_b32 v10, 1, v10\nv_cmp_eq_u32 s[46:47], 0, v10\ns_waitcnt lgkmcnt(0)")
    for j in range(8): a(f"v_fmac_f32 v{16+j}, s64, v8\nv_cndmask_b32 v{16+j}, v{16+j}, 1.0, s[44:45]\nv_cndmask_b32 v{16+j}, 0, v{16+j}, s[46:47]")
    for i in range(4): a(f"v_cvt_pk_bf16_f32 v{48+i}, v{16+2*i}, v{17+2*i}")
    a(f"s_lshl_b32 s37, s33, 10\ns_add_u32 s37, s37, {WS_WFR+WFR_E}\nbuffer_store_dwordx4 v[48:51], v15, s[28:31], s37 offen")
    a(f"v_mov_b32 v8, s60\ns_mov_b32 s37, {WS_WFR+WFR_SW}\ns_mov_b64 exec, 1\nbuffer_store_dword v8, v15, s[28:31], s37 offen")


NQ = 44; DEP = 2; NBUF = 3
QB = QN*4
L3_CNT = TB + GS; L3_SIZE = L3_CNT + 64
ACC, AOP, ADR, BUF, TMP, GK, DIS, IDX = 2, 6, 8, 12, 24, 26, 33, 40
SPIN = 1 << 20
LSC = lambda b: ('sc1', 'nt', 'sc1 nt', 'sc0 nt', 'sc0', '')[OPT['lnt'] if b == 2 else OPT['pnt']]
TSC = lambda: ('', ' nt', ' sc1', ' sc0 sc1', ' sc0', ' sc1 nt')[OPT['tsc']]
XP = 3
NL = NQ//2
def tabledma(a, v16, sfx, part=3):
    base = lambda k: a(f"s_mul_i32 s53, s18, {GS}\ns_lshl_b32 s52, s19, 10\ns_add_u32 s53, s53, s52\ns_add_u32 s53, s53, {WS_G+k*1024}\ns_add_u32 s52, s52, {TB+k*1024}")
    def run(n):
        for i in range(n):
            if i == 3: a(f"s_cmp_ge_u32 s19, 2\ns_cbranch_scc1 K3_nt{sfx}")
            a(f"s_mov_b32 m0, s52\nbuffer_load_dwordx4 v{v16}, s[8:11], s53 offen{NT(16)} lds")
            if i < n-1: a("s_add_u32 s52, s52, 16384\ns_add_u32 s53, s53, 16384")
    if part & 2: base(50); run(3)
    if not part & 1: return
    base(0); run(4)
    a(f"K3_nt{sfx}:")
    a(f"s_mul_i32 s52, s16, 98\ns_add_u32 s52, s52, s20\ns_lshl_b32 s52, s52, 8\ns_add_u32 s52, s52, {WS_DISP}\nv_lshlrev_b32 v{v16}, 2, v2")
    for i in range(7): a(f"buffer_load_dword v{DIS+i}, v{v16}, s[8:11], s52 offen offset:{i*256}")
    a(f"v_mul_u32_u24 v{v16}, 24, v2\nv_mov_b32 v45, 364\nv_cmp_eq_u32 vcc, 15, v2\nv_cndmask_b32 v{v16}, v{v16}, v45, vcc\ns_mul_i32 s52, s16, 392\ns_add_u32 s52, s52, {WS_TQ}\ns_mov_b64 exec, 0xffff")
    a(f"buffer_load_dwordx4 v[120:123], v{v16}, s[8:11], s52 offen\nbuffer_load_dwordx3 v[124:126], v{v16}, s[8:11], s52 offen offset:16\ns_mov_b64 exec, -1")
def k3(a):
    name = 'hop_kernel'
    a.launch(name, 256, 1024, L3_SIZE)
    a.begin(name)
    a("s_cmp_ge_u32 s2, 256\ns_cbranch_scc1 K3_end")
    a.st_init()
    a("s_load_dwordx2 s[4:5], s[0:1], 88")
    a("v_lshrrev_b32 v1, 6, v0\nv_and_b32 v2, 63, v0\nv_readfirstlane_b32 s19, v1")
    a("s_lshr_b32 s16, s2, 3\ns_and_b32 s16, s16, 3\ns_and_b32 s17, s2, 7\ns_lshl_b32 s17, s17, 3\ns_lshr_b32 s18, s2, 5\ns_or_b32 s18, s18, s17")
    a("s_mul_i32 s20, s19, 6\ns_cmp_eq_u32 s19, 15\ns_cselect_b32 s20, 91, s20\ns_cmp_ge_u32 s19, 14\ns_cselect_b32 s21, 7, 6\ns_mov_b32 s33, s19")
    a("s_waitcnt lgkmcnt(0)")
    a.srd(8, 4, WS_SIZE); a.srd(28, 4, WS_SIZE)
    def ids():
        a("s_getreg_b32 s50, hwreg(HW_REG_XCC_ID)\ns_and_b32 s50, s50, 0xff\ns_add_u32 s50, s50, 1")
        a(f"s_mul_i32 s51, s18, {FGS}\ns_add_u32 s51, s51, {WS_FLAGS}")
    a("s_cmp_lg_u32 s19, 15\ns_cbranch_scc1 K3_nox"); ids()
    a(f"s_lshl_b32 s52, s16, 2\ns_add_u32 s52, s52, s51\nv_mov_b32 v4, s50\nv_mov_b32 v6, 0\nv_mov_b32 v7, {L3_CNT}\ns_mov_b64 exec, 1")
    a("buffer_store_dword v4, v6, s[8:11], s52 offen offset:2048 sc1\nds_write_b32 v7, v6\ns_mov_b64 exec, -1\nK3_nox:")
    a(f"s_cmp_ge_u32 s2, {NWIN+2}\ns_cbranch_scc1 K2_idle\ns_cmp_ge_u32 s2, {NWIN}\ns_cbranch_scc1 K2_wts")
    k2_window(a)
    a(f"K2_end:\ns_mov_b64 exec, -1\ns_waitcnt vmcnt(0) lgkmcnt(0)\ns_barrier\ns_cmp_lg_u32 s19, 0\ns_cbranch_scc1 K2_lo\nv_mov_b32 v10, 0\nds_read_b32 v4, v10 offset:{L2_IRR}")
    a(f"s_lshl_b32 s52, s2, 7\ns_add_u32 s52, s52, {WS_WDN}\ns_mov_b64 exec, 1\ns_waitcnt lgkmcnt(0)\nv_add_u32 v4, 1, v4\nbuffer_store_dword v4, v10, s[8:11], s52 offen sc1\ns_mov_b64 exec, -1\nK2_lo:\nv_lshlrev_b32 v44, 4, v2"); tabledma(a, 44, 'a', 1); a("s_branch K3_join")
    a("K2_wts:")
    k2_weights(a)
    a("K2w_end:\ns_mov_b64 exec, -1\ns_waitcnt lgkmcnt(0)\ns_barrier\ns_branch K2_tab\nK2_idle:")
    if OPT['cpf'] & 2:
        a("s_cmp_eq_u32 s19, 15\ns_cbranch_scc0 K2_tab\nv_lshlrev_b32 v3, 2, v2"); a.codepf('K3_join', 'K3_end', 3, 4, 52, 127)
    a("K2_tab:\nv_lshlrev_b32 v44, 4, v2"); tabledma(a, 44, 'b')
    a("K3_join:"); a.st(1); ids()
    a("s_mul_i32 s48, s16, 98\ns_add_u32 s48, s48, s20")
    a(f"s_lshl_b32 s49, s48, 2\ns_add_u32 s49, s49, {WS_TQ}\ns_buffer_load_dwordx8 s[40:47], s[8:11], s49")
    a(f"v_mov_b32 v5, v2\nv_lshlrev_b32 v0, 2, v5\nv_lshlrev_b32 v8, 4, v5\ns_mul_i32 s39, s18, {GS}\ns_add_u32 s39, s39, {WS_G}")
    a(f"s_lshl_b32 s69, s16, 4\ns_add_u32 s69, s69, s19\ns_mul_i32 s69, s69, {RS}\ns_add_u32 s69, s69, {WS_IDX}")
    def idxld(p, va=8):
        if p and p % 4 == 0: a("s_add_u32 s69, s69, 4096")
        a(f"buffer_load_dwordx4 v[{IDX+4*p}:{IDX+4*p+3}], v{va}, s[8:11], s69 offen offset:{(p&3)*1024}{NT(8)}")
    a("s_waitcnt lgkmcnt(0)")
    a("s_cmp_eq_u32 s21, 7\ns_cselect_b32 s46, s46, 0")
    for i in range(1, 7): a(f"s_add_u32 s{40+i}, s{40+i}, s{39+i}")
    a(f"s_min_u32 s47, s46, {NQ}\ns_sub_u32 s28, s47, {DEP+1}\ns_mov_b64 s[32:33], 0")
    for i in range(7): a(f"s_sub_u32 s{40+i}, s{40+i}, 1\ns_bitset1_b64 s[32:33], s{40+i}")
    a("s_add_u32 s52, s28, 1\ns_lshr_b64 s[34:35], s[32:33], s52\ns_mov_b64 s[24:25], s[32:33]\ns_bitset1_b64 s[24:25], s28")
    a(f"s_mov_b32 s64, 0\ns_cmp_lg_u32 s19, 0\ns_cbranch_scc1 K3_nw\ns_mul_i32 s52, s16, {49*128}\ns_add_u32 s52, s52, {WS_WDN}\nv_lshlrev_b32 v6, 5, v0\ns_mov_b32 exec_hi, 0x1ffff")
    a(f"K3_wp:\nbuffer_load_dword v4, v6, s[8:11], s52 offen sc1\ns_waitcnt vmcnt(0)\nv_cmp_eq_u32 vcc, 0, v4\ns_cbranch_vccz K3_wd\ns_add_u32 s64, s64, 1\ns_cmp_gt_u32 s64, {SPIN}\ns_cbranch_scc1 K3_wd\ns_sleep {OPT['slw']}\ns_branch K3_wp")
    a(f"K3_wd:\nv_cmp_ne_u32 vcc, 1, v4\ns_cmp_lg_u64 vcc, 0\ns_cselect_b32 s52, 1, 0\nv_mov_b32 v4, s52\nv_mov_b32 v6, {L3_CNT}\nds_write_b32 v6, v4 offset:4\ns_mov_b64 exec, -1\nK3_nw:")
    a(f"s_waitcnt vmcnt(0) lgkmcnt(0)\nv_add3_u32 v{BUF}, v120, v121, v122\nv_add3_u32 v{BUF}, v{BUF}, v123, v124\nv_add_u32 v{BUF}, v{BUF}, v125\ns_mov_b64 exec, 0xc000\nv_add_u32 v{BUF}, v{BUF}, v126\ns_mov_b64 exec, -1"); a.st(2); a("s_barrier"); a.st(3)
    for p in range(XP+1): idxld(p)
    a(f"s_lshl_b32 m0, s48, 8\nv_mov_b32 v6, {L3_CNT}\nds_read_b32 v{BUF+7}, v6 offset:4")
    for i in range(7): a(f"ds_read_addtid_b32 v{GK+i} offset:{TB+i*256}")
    a(f"buffer_load_dword v{TMP}, v0, s[8:11], s51 offen offset:2048 sc1")
    LA = OPT['la']; LD = {}; nxt = XP+1
    def late(lo, hi):
        if hi > lo: a(f"v_lshlrev_b32 v{TMP+1}, 2, v0")
        for p in range(lo, hi): a(f"s_cmp_gt_u32 s47, {2*p}\ns_cselect_b64 exec, -1, 1"); idxld(p, TMP+1)
        a("s_mov_b64 exec, -1")
    late(nxt, nxt+LA); nxt += LA
    for p in range(0, NQ, 4):
        if p < NQ-DEP-1: LD[p] = (nxt, min(nxt+2, NL)); nxt = LD[p][1]
    EM = sum(1 << p for p in LD)
    a(f"s_mov_b64 s[88:89], s[24:25]\ns_or_b32 s24, s24, {EM & 0xffffffff}\ns_or_b32 s25, s25, {EM >> 32}")
    issued = lambda p: max([XP+1+LA] + [hi for q, (lo, hi) in LD.items() if q < p])
    tb = 32; lb = 2; TBS_ = TOS
    a(f"v_lshrrev_b32 v1, {1+lb}, v5\nv_mul_u32_u24 v1, {TBS_}, v1\nv_and_b32 v4, {(2 << lb)-1}, v5\nv_lshl_add_u32 v1, v4, 4, v1\nv_and_b32 v4, 3, v5")
    a(f"v_cmp_eq_u32 s[54:55], 0, v4\nv_cmp_eq_u32 s[56:57], 1, v4\nv_mov_b32 v2, 0x3f80\nv_mov_b32 v3, 0x3f800000")
    a(f"v_cndmask_b32 v{AOP}, 0, v2, s[54:55]\nv_cndmask_b32 v{AOP}, v{AOP}, v3, s[56:57]\nv_mov_b32 v{AOP+1}, v{AOP}")
    for i in range(4): a(f"v_mov_b32 v{ACC+i}, 0")
    a("s_lshl_b32 s52, s19, 7\ns_add_u32 s65, s52, s51")
    a("s_lshl_b32 s58, s16, 2\ns_add_u32 s58, s58, s65")
    a(f"s_lshl_b32 s59, s20, 8\ns_mul_i32 s60, s16, {QB}\ns_add_u32 s60, s60, s59")
    a(f"s_mul_i32 s61, s48, {(64//tb)*TBS_}\ns_lshl_b32 s52, s18, {5+lb}\ns_add_u32 s61, s61, s52\ns_add_u32 s61, s61, {WS_TOK}")
    for r in range(1, 4): a(f"s_add_u32 s52, s16, {r}\ns_and_b32 s52, s52, 3\ns_mul_i32 s52, s52, {QB}\ns_add_u32 s{65+r}, s52, s59")
    a(f"s_mov_b32 s22, 1")
    def ad1(p, h):
        r = IDX+2*p+(h >> 1)
        a(f"v_lshrrev_b32 v{ADR+h}, 15, v{r}" if h & 1 else f"v_lshlrev_b32_sdwa v{ADR+h}, 2, v{r} {SD} src1_sel:WORD_0")
    def adr(p):
        for h in range(4): ad1(p, h)
    def rd(p):
        for h in range(4): a(f"ds_read_b32 v{BUF+4*(p%NBUF)+h}, v{ADR+h} offset:{TB}")
    def mf(p, h):
        b = BUF+4*(p%NBUF)+2*h
        if OPT['exp'] & 2: return
        a(f"v_mfma_f32_4x4x4_16b_bf16 v[{ACC}:{ACC+3}], v[{AOP}:{AOP+1}], v[{b}:{b+1}], v[{ACC}:{ACC+3}]")
    def vw(p): pass
    CALL = "s_swappc_b64 s[30:31], s[26:27]"
    T0, T1 = TMP, TMP+1
    a(f"s_mov_b64 exec, 15\ns_waitcnt vmcnt({LA})\nK3_xp:\nv_cmp_eq_u32 vcc, 0, v{TMP}\ns_cbranch_vccz K3_xb\ns_add_u32 s64, s64, 1\ns_cmp_gt_u32 s64, {SPIN}\ns_cbranch_scc1 K3_xb")
    a(f"buffer_load_dword v{TMP}, v0, s[8:11], s51 offen offset:2048 sc1\ns_waitcnt vmcnt(0)\ns_branch K3_xp\nK3_xb:")
    a(f"v_cmp_ne_u32 vcc, s50, v{TMP}\ns_cmp_lg_u64 vcc, 0\ns_cselect_b32 s23, 1, 0\ns_mov_b64 exec, -1")
    a("s_mov_b64 exec, 0xffff")
    a(f"s_waitcnt lgkmcnt(0)\nv_lshl_add_u32 v{BUF}, v{BUF+7}, 8, v{BUF}\nv_cmp_lt_u32 vcc, {NQ}, v{BUF}\ns_cmp_lg_u64 vcc, 0\ns_cselect_b32 s29, 1, {OPT['slow']}\ns_mov_b64 exec, -1")
    a("s_getpc_b64 s[40:41]\nK3_pc:\ns_add_u32 s40, s40, K3_fl0_0-K3_pc\ns_addc_u32 s41, s41, 0\ns_mul_i32 s42, s23, K3_fl1_0-K3_fl0_0\ns_mov_b32 s43, K3_fl2_0-K3_fl0_0")
    a(f"s_add_u32 s45, s39, {KS}\ns_waitcnt lgkmcnt(0)")
    if OPT['exp'] & 4:
        a("s_waitcnt vmcnt(0)\nv_lshrrev_b32 v24, 2, v0\nv_lshl_or_b32 v24, v24, 17, v24")
        for p in range(2*NQ): a(f"v_add_u32 v{IDX+p}, {(p*64) | (p*64+64*99) << 17}, v24")
    a("K3_hop:")
    a(f"s_mov_b32 s52, s39\ns_mov_b32 s39, s45\ns_add_u32 s53, s39, {KS}\ns_cmp_eq_u32 s22, 1\ns_cselect_b32 s52, s53, s52\ns_cmp_eq_u32 s23, 0\ns_cselect_b32 s45, s52, s53")
    a(f"s_add_u32 s61, s61, {tb*256}\ns_add_u32 s37, s39, s60")
    assert not OPT['px']
    a("s_cmp_eq_u32 s22, 7\ns_cselect_b32 s42, s43, s42\ns_add_u32 s26, s40, s42\ns_addc_u32 s27, s41, 0")
    if OPT['prio'] == 1: a("s_cmp_ge_u32 s19, 8\ns_cbranch_scc1 K3_p2\ns_setprio 3\ns_branch K3_p3\nK3_p2:\ns_setprio 2\nK3_p3:")
    if OPT['prio'] in (2, 4, 5, 6, 7): a("s_setprio 3")
    if OPT['prio'] == 3: a("s_setprio 1")
    a("s_cmp_lg_u32 s29, 0\ns_cbranch_scc1 K3_slow")
    for p in range(DEP): adr(p); rd(p)
    adr(DEP)
    def tok(part):
        if OPT['exp'] & 8: return
        if part == 0: a(f"buffer_store_dwordx4 v[{GK}:{GK+3}], v1, s[8:11], s38 offen{TSC()}")
        if part == 1:
            a(f"v_lshrrev_b32 v{T0}, {4+lb}, v0\nv_mul_u32_u24 v{T0}, {TBS_}, v{T0}\nv_and_b32 v{T1}, {(16 << lb)-4}, v0\nv_lshl_add_u32 v{T0}, v{T1}, 1, v{T0}\ns_add_u32 s38, s38, {(256//tb)*TBS_}")
            a(f"buffer_store_dwordx2 v[{GK+4}:{GK+5}], v{T0}, s[8:11], s38 offen{TSC()}")
        if part == 2:
            l = a.lab('K3_t')
            a(f"s_cmp_eq_u32 s21, 7\ns_cbranch_scc0 {l}\nv_lshrrev_b32 v{T0}, {5+lb}, v0\nv_mul_u32_u24 v{T0}, {TBS_}, v{T0}\nv_and_b32 v{T1}, {(32 << lb)-4}, v0\nv_add_u32 v{T0}, v{T0}, v{T1}\ns_add_u32 s38, s38, {(128//tb)*TBS_}")
            a(f"buffer_store_dword v{GK+6}, v{T0}, s[8:11], s38 offen{TSC()}\n{l}:")
    a(f"s_sub_u32 s38, s61, {tb*256}"); tok(0)
    if OPT['cpf'] & 4:
        a("s_cmp_eq_u32 s22, 7\ns_cbranch_scc0 K3_npf\ns_cmp_eq_u32 s19, 0\ns_cbranch_scc0 K3_npf"); a.codepf('att_kernel', 'K4_end', 0, T0, 52, ACC+3); a("K3_npf:")
    for p in range(NQ-DEP):
        rd(p+DEP); a(f"s_waitcnt lgkmcnt({4*DEP})"); mf(p, 0)
        if p+DEP+1 < NQ:
            vw(p+DEP+1)
            ad1(p+DEP+1, 0); ad1(p+DEP+1, 1); mf(p, 1); ad1(p+DEP+1, 2); ad1(p+DEP+1, 3)
        else: mf(p, 1)
        if OPT['prio'] == 2 and p in (9, 18, 27): a(f"s_setprio {2 - (9, 18, 27).index(p)}")
        if OPT['prio'] == 1 and p in (11, 23): a(f"s_cmp_ge_u32 s19, 8\ns_cbranch_scc0 K3_q{p}\ns_setprio {1 if p == 11 else 0}\nK3_q{p}:")
        a(f"s_bitcmp1_b64 s[24:25], {p}\ns_cbranch_scc1 K3_st{p}\nK3_bk{p}:")
    a("s_endpgm")
    for p in range(NQ-DEP):
        a(f"K3_st{p}:")
        if p in LD: a(f"s_cmp_eq_u32 s22, 1\ns_cbranch_scc0 K3_nl{p}"); late(*LD[p]); a(f"s_waitcnt vmcnt({LD[p][1] - 1 - min((p+4+DEP+1)//2, NL-1)})\nK3_nl{p}:")
        a(f"s_bitcmp1_b64 s[32:33], {p}\ns_cbranch_scc0 K3_nf{p}\n{CALL}\nK3_nf{p}:")
        a(f"s_cmp_eq_u32 s28, {p}\ns_cbranch_scc1 K3_dr{(p+1)%NBUF}\ns_branch K3_bk{p}")
    for r in range(NBUF):
        a(f"K3_dr{r}:")
        for i in range(DEP):
            a(f"s_waitcnt lgkmcnt({4*(DEP-1-i)})"); mf(r+i, 0); mf(r+i, 1)
            if i < DEP-1: a(f"s_bitcmp1_b32 s34, {i}\ns_cbranch_scc0 K3_dn{r}_{i}\n{CALL}\nK3_dn{r}_{i}:")
            else: a(f"{CALL}\ns_branch K3_hend")
    for m in range(3):
        for l in range(7):
            tg = m == 0 and OPT['px']; sc = ' sc1' if m else NT(4)
            a(f".p2align 7\nK3_fl{m}_{l}:\ns_add_u32 s26, s26, 128\ns_addc_u32 s27, s27, 0")
            if tg and l >= 5:
                a(f"s_cmp_eq_u32 s22, 1\ns_cbranch_scc0 K3_nz{l}\ns_waitcnt vmcnt(0)\nK3_nz{l}:")
            PR = {4: {1: 2, 3: 1, 4: 0}, 5: {0: 2, 2: 1, 4: 0}, 6: {2: 2, 3: 1, 4: 0}, 7: {1: 2, 2: 1, 3: 0}}.get(OPT['prio'], {})
            if l in PR: a(f"s_setprio {PR[l]}")
            if l in (1, 2): tok(l)
            if m == 0 and l == 0 and OPT['wb6']:
                a(f"s_cmp_lt_u32 s22, {OPT['wb6']}\ns_cbranch_scc1 K3_nwc\ns_cmp_lg_u32 s19, 0\ns_cbranch_scc1 K3_nwc\ns_cmp_ge_u32 s2, 8\ns_cbranch_scc1 K3_nwc\nbuffer_wbl2 sc1\nK3_nwc:")
            if m == 2 and l == OPT['wb'] - 1:
                a(f"s_cmp_lg_u32 s19, {OPT['wbw']}\ns_cbranch_scc1 K3_nwb\ns_cmp_ge_u32 s2, 8\ns_cbranch_scc1 K3_nwb\nbuffer_wbl2 sc1\nK3_nwb:")
            a(f"v_mul_f32 v{T0}, v{DIS+l}, v{ACC}\nv_mul_f32 v{T1}, v{DIS+l}, v{ACC+1}\nv_mov_b64 v[{ACC}:{ACC+1}], 0")
            if tg: a(f"v_add_u32 v{T0}, s47, v{T0}\nv_cvt_pk_bf16_f32 v{T1}, v{T1}, v{T1}\nv_perm_b32 v{T0}, v{T1}, v{T0}, s63\nv_bfi_b32 v{GK+l}, 1, s46, v{T0}")
            else: a(f"v_cvt_pk_bf16_f32 v{GK+l}, v{T0}, v{T1}")
            if m < 2 and l == 3: a(f"v_lshlrev_b32 v{T0}, 2, v0\nbuffer_store_dwordx4 v[{GK}:{GK+3}], v{T0}, s[8:11], s37 offen{sc}")
            if m < 2 and l == 5: a(f"v_lshlrev_b32 v{T0}, 1, v0\nbuffer_store_dwordx2 v[{GK+4}:{GK+5}], v{T0}, s[8:11], s37 offen offset:1024{sc}")
            if m < 2 and l == 6: a(f"buffer_store_dword v{GK+6}, v0, s[8:11], s37 offen offset:1536{sc}")
            if tg and l in (0, 4):
                a(f"s_cmp_eq_u32 s22, 1\ns_cbranch_scc0 K3_nc{l}\nv_mov_b32 v{T1}, 0")
                for x in ((0, 1, 2), (3, 4, 5, 6))[l >> 2]:
                    if x == 6: a(f"s_cmp_eq_u32 s21, 7\ns_cselect_b32 s36, s36, {WS_SIZE}")
                    a(f"buffer_store_dword v{T1}, v0, s[8:11], s36 offen offset:{x*256}")
                a(f"K3_nc{l}:")
            a("s_setpc_b64 s[30:31]")
            a(f".if (. - K3_fl{m}_{l}) > 128\n.error \"flush too long\"\n.endif")
    AC0 = 0
    a(f"K3_slow:\ns_load_dwordx4 s[72:75], s[0:1], 8\ns_sub_u32 s38, s61, {tb*256}"); tok(0)
    a(f"s_lshl_b32 s52, s20, 9\ns_add_u32 s52, s52, {AC0}\nv_lshl_add_u32 v8, v0, 1, s52\nv_mov_b32 v10, 0\nv_mov_b32 v11, 0")
    for l in range(6): a(f"ds_write_b64 v8, v[10:11] offset:{l*512}")
    a("s_cmp_eq_u32 s21, 7\ns_cbranch_scc0 K3_s6\nds_write_b64 v8, v[10:11] offset:3072\nK3_s6:\ns_waitcnt lgkmcnt(0)")
    a.srd(76, 72, E*4); a.srd(80, 74, E*4)
    a(f"s_barrier\ns_lshl_b32 s52, s19, 8\ns_mul_i32 s53, s16, {QN}\ns_mov_b32 s54, {WS_NEWID}")
    a("K3_sl:\nbuffer_load_dword v12, v0, s[76:79], s52 offen\nbuffer_load_dword v13, v0, s[80:83], s52 offen\nv_add_u32 v14, s52, v0\ns_waitcnt vmcnt(0)\nv_lshlrev_b32 v12, 1, v12\nv_lshlrev_b32 v13, 1, v13")
    a("buffer_load_ushort v12, v12, s[8:11], s54 offen\nbuffer_load_ushort v13, v13, s[8:11], s54 offen\ns_waitcnt vmcnt(0)\nv_lshlrev_b32 v12, 2, v12\nds_read_b32 v12, v12 offset:" + str(TB) + "\nv_subrev_u32 v13, s53, v13")
    a(f"v_cmp_gt_u32 vcc, {E*4}, v14\ns_mov_b64 exec, vcc\nv_cmp_gt_u32 vcc, {QN}, v13\ns_mov_b64 exec, vcc\nv_lshlrev_b32 v13, 3, v13\nv_add_u32 v13, {AC0}, v13\ns_waitcnt lgkmcnt(0)")
    a(f"v_lshlrev_b32 v15, 16, v12\nv_and_b32 v12, 0xffff0000, v12\nds_add_f32 v13, v15\nds_add_f32 v13, v12 offset:4\ns_mov_b64 exec, -1\ns_add_u32 s52, s52, 4096\ns_cmp_lt_u32 s52, {E*4}\ns_cbranch_scc1 K3_sl")
    a("s_waitcnt lgkmcnt(0)\ns_barrier")
    for l in range(7):
        if l == 6: a("s_cmp_eq_u32 s21, 7\ns_cbranch_scc0 K3_hend")
        a(f"ds_read_b64 v[{ACC}:{ACC+1}], v8 offset:{l*512}\ns_waitcnt lgkmcnt(0)\n{CALL}")
    a("K3_hend:"); a.st(4)
    if OPT['stamp'] in (1, 2): a("s_cmp_eq_u32 s22, 1\ns_cselect_b32 s80, s74, s80\ns_cselect_b32 s74, 0, s74")
    a("s_mov_b64 s[24:25], s[88:89]\ns_cmp_eq_u32 s22, 7\ns_cbranch_scc1 K3_fin")
    if OPT['prio']: a(f"s_setprio {OPT['wprio']}")
    a(f"v_mov_b32 v{T0}, s22\nv_mov_b32 v{T1}, 1\nv_mov_b32 v{ACC}, {L3_CNT}\ns_mov_b64 exec, 1\nds_add_u32 v{ACC}, v{T1}")
    if OPT['px']: a("s_cmp_gt_u32 s22, 1\ns_cselect_b32 s52, s23, 1\ns_cmp_eq_u32 s52, 0\ns_cbranch_scc1 K3_px")
    a("s_waitcnt vmcnt(0)"); a.st(5)
    a("s_cmp_eq_u32 s23, 0\ns_cbranch_scc0 K3_g1")
    a(f"buffer_store_dword v{T0}, v0, s[8:11], s58 offen\ns_branch K3_g2\nK3_g1:\nbuffer_store_dword v{T0}, v0, s[8:11], s58 offen sc1\nK3_g2:")
    a(f"s_mov_b64 exec, 15")
    NPL = OPT['npl']
    PL = lambda i: f"buffer_load_dword v{BUF+i}, v0, s[8:11], s65 offen {LSC(1)}"
    for i in range(NPL-1): a(PL(i) + f"\ns_sleep {OPT['slg']}")
    a(f"K3_poll:\ns_add_u32 s64, s64, 1\ns_cmp_gt_u32 s64, {SPIN}\ns_cbranch_scc1 K3_pb")
    for i in range(NPL):
        a(PL((i+NPL-1) % NPL) + f"\ns_waitcnt vmcnt({NPL-1})\nv_cmp_gt_u32 vcc, s22, v{BUF+i}\ns_cbranch_vccz K3_pb\ns_sleep {OPT['slg']}")
    a("s_branch K3_poll\nK3_pb:")
    X = AOP+1; AR = (14, 18, 2); B1 = (22, 23, T1)
    a(f"K3_px:\ns_mov_b64 exec, -1\nv_lshlrev_b32 v{T0}, 1, v0")
    for r in range(3): a(f"s_add_u32 s{53+r}, s{66+r}, s39")
    a(f"K3_pA:\nv_lshlrev_b32 v{X}, 2, v0")
    for r in range(3): a(f"buffer_load_dwordx4 v[{AR[r]}:{AR[r]+3}], v{X}, s[8:11], s{53+r} offen {LSC(2)}")
    a("K3_pB:")
    for r in range(3): a(f"buffer_load_dwordx2 v[{8+2*r}:{9+2*r}], v{T0}, s[8:11], s{53+r} offen offset:1024 {LSC(2)}")
    a("s_cmp_eq_u32 s21, 7\ns_cbranch_scc0 K3_p6")
    for r in range(3): a(f"buffer_load_dword v{B1[r]}, v0, s[8:11], s{53+r} offen offset:1536 {LSC(2)}")
    a("K3_p6:")
    if OPT['px']:
        def chk(rs, first=True):
            for i, r in enumerate(rs): a(f"v_xor_b32 v{X}, s62, v{r}" if (first and i == 0) else f"v_bitop3_b32 v{X}, v{X}, v{r}, s62 bitop3:0xf6")
        a("s_cmp_eq_u32 s35, 2\ns_cbranch_scc1 K3_pD\ns_waitcnt vmcnt(0)\ns_cmp_eq_u32 s35, 1\ns_cbranch_scc1 K3_pC")
        chk(list(range(14, 22)) + [2, 3, 4, 5])
        a(f"v_and_b32 v{X}, 1, v{X}\nv_cmp_ne_u32 vcc, 0, v{X}\ns_cbranch_vccz K3_pE\ns_add_u32 s64, s64, 1\ns_cmp_gt_u32 s64, {SPIN}\ns_cbranch_scc1 K3_pD\ns_sleep {OPT['slp']}\ns_branch K3_pA\nK3_pE:\ns_mov_b32 s35, 1\nK3_pC:")
        chk(range(8, 14)); a("s_cmp_eq_u32 s21, 7\ns_cbranch_scc0 K3_p7"); chk(B1, False); a("K3_p7:")
        a(f"v_and_b32 v{X}, 1, v{X}\nv_cmp_ne_u32 vcc, 0, v{X}\ns_cbranch_vccz K3_pD\ns_add_u32 s64, s64, 1\ns_cmp_gt_u32 s64, {SPIN}\ns_cbranch_scc1 K3_pD\ns_sleep {OPT['slp']}\ns_branch K3_pB")
    a("K3_pD:"); a.st(10 if False else 7)
    a(f"s_lshl_b32 s52, s22, 4\nv_mov_b32 v{T0}, {L3_CNT}\ns_mov_b64 exec, 1\nK3_aw:\nds_read_b32 v{X}, v{T0}\ns_waitcnt lgkmcnt(0)\nv_readfirstlane_b32 s53, v{X}\ns_cmp_ge_u32 s53, s52\ns_cbranch_scc1 K3_ad\ns_add_u32 s64, s64, 1\ns_cmp_gt_u32 s64, {SPIN}\ns_cbranch_scc1 K3_ad\ns_sleep {OPT['sll']}\ns_branch K3_aw\nK3_ad:\ns_mov_b64 exec, -1"); a.st(6)
    a("s_mov_b32 m0, s60")
    for i in range(6): a(f"ds_write_addtid_b32 v{GK+i} offset:{TB+i*256}")
    a(f"s_cmp_eq_u32 s21, 7\ns_cbranch_scc0 K3_w6\nds_write_addtid_b32 v{GK+6} offset:{TB+1536}\ns_waitcnt vmcnt(0)")
    for r in range(3): a(f"s_mov_b32 m0, s{66+r}\nds_write_addtid_b32 v{B1[r]} offset:{TB+1536}")
    a("K3_w6:")
    for r in range(3):
        a(f"s_mov_b32 m0, s{66+r}\ns_waitcnt vmcnt({5-r})")
        for i in range(4): a(f"ds_write_addtid_b32 v{AR[r]+i} offset:{TB+i*256}")
    for r in range(3):
        a(f"s_mov_b32 m0, s{66+r}\ns_waitcnt vmcnt({2-r})")
        for i in range(2): a(f"ds_write_addtid_b32 v{8+2*r+i} offset:{TB+1024+i*256}")
    a(f"v_mov_b32 v{X}, v{AOP}")
    for i in range(4): a(f"v_mov_b32 v{ACC+i}, 0")
    a(f"s_add_u32 s22, s22, 1\ns_waitcnt vmcnt(0) lgkmcnt(0)"); a.st(8); a("s_barrier"); a.st(9)
    a("s_branch K3_hop")
    a("K3_fin:")
    a("s_mov_b32 s38, s61"); tok(0); tok(1); tok(2); a.st_out(2, 8, 's19', 10)
    a("K3_end:\ns_endpgm")
    a.end(name, 128, 102)

import sched
L4_E = 131072; L4_SCR = L4_E + 8192; L4_SIZE = L4_SCR + 4096
TK = 16; QQ = 48; AL = 64; WF = 80; NWF = 2; TA = 88; CA = 92; IB = 96; SV = (100, 101); AC = (104, 120); PK = (136, 144); SS = 152; OO = 168; CT = 232; PA = 240; EA = 248; PM = (252, 254)
EPS = f2u(1e-5); I128 = f2u(1/128.); LOG2E = f2u(math.log2(math.e))
def k4(a):
    name = 'att_kernel'
    a.launch(name, 256, 256, L4_SIZE)
    a.begin(name)
    W8 = sched.Waits(); sched.VMEM_LAT = OPT['vl']; sched.STRETCH = OPT['str']/100; sched.QLAT = OPT['ql']
    L = []
    def o(text, R=(), W=(), rr=(), pri=0):
        for t in text.split('\n'):
            x = sched.Op(t, R, W, pri); x.r |= {('v', r) for r in rr}; L.append(x)
    def flush(do_sched):
        ops = sched.schedule(L, True) if do_sched else list(L)
        for t in W8.emit(ops): a(t)
        L.clear()
    a("s_cmp_ge_u32 s2, 256\ns_cbranch_scc1 K4_end")
    a.st_init()
    a("s_load_dwordx2 s[4:5], s[0:1], 88\ns_load_dwordx2 s[6:7], s[0:1], 72")
    a("v_lshrrev_b32 v4, 6, v0\nv_and_b32 v0, 63, v0\nv_readfirstlane_b32 s19, v4\nv_lshlrev_b32 v2, 4, v0")
    a("v_lshrrev_b32 v5, 3, v0\nv_and_b32 v6, 7, v0\nv_xor_b32 v6, v6, v5\ns_lshl_b32 s3, s19, 1\nv_xor_b32 v6, s3, v6\nv_lshlrev_b32 v6, 4, v6\nv_lshl_add_u32 v103, v5, 7, v6\nv_xor_b32 v12, 16, v103")
    a("s_mul_i32 s20, s2, 3\ns_lshl_b32 s44, s19, 14")
    a(f"v_lshrrev_b32 v5, 5, v0\nv_bfe_u32 v6, v0, 3, 2\nv_lshlrev_b32 v3, 3, v5\nv_lshlrev_b32 v102, 2, v6\nv_add_u32 v102, {WS_SINV-WS_PERM}, v102")
    a("s_waitcnt lgkmcnt(0)")
    a.srd(8, 4, WS_SIZE); a.srd(12, 6, N*256)
    a(f"s_mov_b32 s3, {WS_WFR+WFR_SW}\ns_buffer_load_dword s24, s[8:11], s3")
    QS = lambda g: 52 + g
    def tdma(t, R=()):
        b = t & 1
        o(f"s_mul_i32 s21, s{60+t}, {TOS}\ns_add_u32 s21, s21, s44\ns_add_u32 s21, s21, {WS_TOK}")
        for x in range(0 if (t > 0 and OPT['exp'] & 64) else 4):
            if x: o("s_add_u32 s21, s21, 4096")
            o(f"s_add_u32 m0, s44, {b*65536 + 4096*x}")
            for y in range(4): o(f"buffer_load_dwordx4 {'v103' if x < 2 else 'v12'}, s[8:11], s21 offen offset:{y*1024}{NT(1)} lds", W=[f'dma{t}_{x}{y}', 'q'], R=R, pri=OPT['dp'])
    DM = lambda t: [f'dma{t}_{x}{y}' for x in range(4) for y in range(4)]
    def small(g):
        o(f"s_lshl_b32 s23, s{QS(g)}, 4\ns_add_u32 s23, s23, {WS_PERM}")
        o(f"buffer_load_dword v{SV[g&1]}, v102, s[8:11], s23 offen\nbuffer_load_dwordx2 v[{PM[g&1]}:{PM[g&1]+1}], v3, s[8:11], s23 offen", pri=2000)
    def wdma(lo, hi, tag):
        for i in range(lo, hi):
            o(f"s_add_u32 m0, s25, {4096*i}\ns_add_u32 s27, s26, {4096*i}"); o("buffer_load_dwordx4 v2, s[8:11], s27 offen lds", W=[tag + str(i), 'q'])
    for t in range(3): a(f"s_add_u32 s{60+t}, s20, {t}")
    for g in range(6): a(f"s_lshl_b32 s3, s{60+g//2}, 3\ns_add_u32 s3, s3, s19\ns_add_u32 s{QS(g)}, s3, {4*(g&1)}")
    a(f"s_add_u32 s58, s2, 6144\ns_lshr_b32 s63, s58, 3\ns_cmp_lt_u32 s2, 128\ns_cselect_b32 s63, s63, s62\ns_cselect_b32 s58, s58, s57\ns_cselect_b32 s31, 1, 0\ns_and_b32 s3, s2, 3\ns_cmp_eq_u32 s19, s3\ns_cselect_b32 s31, s31, 0\ns_and_b32 s49, s2, 4\ns_lshl_b32 s49, s49, 4")
    a(f"s_lshl_b32 s25, s19, 10\ns_add_u32 s26, s25, {WS_WFR}\ns_add_u32 s25, s25, 0x10000")
    WO_ = [16, 17, 2, 3, 4, 5, 6, 7]; np_ = OPT['npre']
    wdma(0, 2, 'w'); tdma(0); small(0)
    for i in WO_[:np_]: wdma(i, i+1, 'w')
    flush(False)
    a(f"v_and_b32 v4, 7, v0\nv_xor_b32 v1, v4, v5\nv_xor_b32 v1, s19, v1\nv_lshlrev_b32 v1, 4, v1\nv_lshl_add_u32 v1, v4, 13, v1\nv_lshl_add_u32 v1, v5, 7, v1\nv_lshl_add_u32 v1, v6, 2, v1")
    for n in range(4): a(f"v_cmp_eq_u32 s[{32+2*n}:{33+2*n}], {n}, v6")
    a("v_and_b32 v7, 31, v0\nv_bfe_u32 v8, v0, 2, 1\nv_cmp_eq_u32 s[40:41], v8, v5\nv_and_b32 v8, 1, v0\nv_lshlrev_b32 v8, 4, v8\nv_mov_b32 v9, 0x3f80\nv_lshlrev_b32 v9, v8, v9\nv_cndmask_b32 v9, 0, v9, s[40:41]")
    a("v_bfe_u32 v8, v0, 1, 1\nv_bfe_u32 v10, v0, 3, 1\nv_lshl_or_b32 v8, v10, 1, v8")
    for j in range(4): a(f"v_cmp_eq_u32 s[40:41], {j}, v8\nv_cndmask_b32 v{IB+j}, 0, v9, s[40:41]")
    a(f"s_lshl_b32 s25, s19, 10\ns_add_u32 s25, s25, {L4_SCR}")
    a("v_lshl_add_u32 v4, v7, 2, s25")
    a("v_lshlrev_b32 v8, 5, v6\nv_lshl_add_u32 v8, v5, 4, v8\nv_add_u32 v8, s25, v8")
    a("v_lshl_add_u32 v9, v5, 4, s25")
    a("v_and_b32 v10, 7, v0\nv_lshlrev_b32 v11, 2, v5\nv_xor_b32 v10, v10, v11\nv_xor_b32 v10, s19, v10\nv_lshlrev_b32 v10, 4, v10\nv_lshl_add_u32 v10, v7, 7, v10\nv_lshl_add_u32 v10, v5, 15, v10")
    a(f"v_lshlrev_b32 v7, 2, v7\nv_add_u32 v15, {L4_E}, v2\ns_mov_b32 s48, 0xffff0000\nv_add_u32 v0, 0x10000, v2")
    a(f"s_mov_b32 s28, {I128}\ns_mov_b32 s29, {EPS}\ns_mov_b32 s30, {LOG2E}")
    a("s_waitcnt lgkmcnt(0)")
    a.st(1)
    for t in W8.drain(DM(0)): a(t)
    a.st(2); a("s_barrier"); a.st(3)
    if OPT['exp'] & 4096: a("s_cmp_ge_u32 s19, 1\ns_cbranch_scc1 K4_fin")
    ring = [0]
    def group(g, last):
        T = lambda u: f"v[{TK+4*u}:{TK+4*u+3}]"
        R16 = lambda b: f"v[{b}:{b+15}]"
        sv = SV[g & 1]; pm = PM[g & 1]; t = g >> 1; LB = [f'tile{t}']; xa = (t & 1)*65536 + (64 if g & 1 else 0)
        def W(j):
            if j >= 8:
                r = 4*(j-8)
                if g == 0:
                    if j == 40: o("s_barrier", R=[f'w{i}' for i in range(8, 16)], W=['wb', 'bar'])
                    o(f"ds_read_b128 a[{r}:{r+3}], v0 offset:{(j-8)*1024}", R=['wb'] if j >= 40 else ['wa'] if j >= 16 else [])
                    if j == 71:
                        o("s_barrier", W=['wfree', 'bar']); L[-1].r |= {('a', x) for x in range(256)}
                        tdma(1, ['wfree'])
                return f"a[{r}:{r+3}]"
            r = WF + 4*(ring[0] % NWF); ring[0] += 1
            o(f"ds_read_b128 v[{r}:{r+3}], v15 offset:{j*1024}", R=['wa'])
            return f"v[{r}:{r+3}]"
        if g in (2, 4):
            o("s_barrier", R=DM(t) + ['rd'], W=LB + ['bar'], rr=[OO+32+3, OO+32+2] + list(range(TK, TK+32)))
            tdma(t+1, LB)
        if g == 6: o("v_xor_b32 v1, s49, v1\nv_xor_b32 v10, s49, v10"); xa = 65536
        for x in range(4): o(f"v_xor_b32 v{TA+x}, {xa ^ ((x >> 1)*576) ^ ((x & 1)*288)}, v1")
        for u in range(8):
            for b in range(2): o(f"ds_read2st64_b32 v[{TK+4*u+2*b}:{TK+4*u+2*b+1}], v{TA+2*(u&1)+b} offset0:{8*(u>>1)} offset1:{8*(u>>1)+4}", R=LB)
        if g < last: small(g+1)
        o(f"v_lshl_add_u32 v{pm}, v{pm}, 8, v7\nv_lshl_add_u32 v{pm+1}, v{pm+1}, 8, v7")
        D = AC[1]
        def ychain(t):
            for u in range(4 if (OPT['exp'] & 32 and g) else 8): w = W(8+8*t+u); o(f"v_mfma_f32_32x32x16_bf16 {R16(AC[t&1])}, {w}, {T(u)}, {'0' if u == 0 else R16(AC[t&1])}")
        def zchain(t):
            for u in range(8): w = W(40+8*t+u); o(f"v_mfma_f32_32x32x16_bf16 {R16(AC[t&1])}, {T(u)}, {w}, {'0' if u == 0 else R16(AC[t&1])}")
        def pack(t):
            for d in range(8): o(f"v_cvt_pk_bf16_f32 v{PK[t&1]+d}, v{AC[t&1]+2*d}, v{AC[t&1]+2*d+1}")
        def smf(t):
            for h in range(0 if (OPT['exp'] & 128 and t) else 2): o(f"v_mfma_f32_32x32x16_bf16 {R16(SS)}, v[{PK[t&1]+4*h}:{PK[t&1]+4*h+3}], {T(2*t+h)}, {'0' if t == 0 and h == 0 else R16(SS)}")
        def cinit():
            for j in range(4): o(f"v_xor_b32 v{CA+j}, {xa ^ (j*8192 + j*16)}, v10")
            for B in range(2):
                for j in range(4):
                    c = CT + 4*(j & 1)
                    o(f"ds_read_b128 v[{c}:{c+3}], v{CA+j} offset:{B*4096}", R=LB)
                    for n in range(4): o(f"v_lshlrev_b32 v{OO+32*B+4*n+j}, 16, v{c+n}\nv_and_b32 v{OO+32*B+16+4*n+j}, s48, v{c+n}")
        def pz(b):
            for h in range(2): o(f"v_mfma_f32_32x32x16_bf16 {R16(OO+16*b)}, v[{PA+4*h}:{PA+4*h+3}], v[{PK[b&1]+4*h}:{PK[b&1]+4*h+3}], {R16(OO+16*b)}")
        ychain(0)
        for t in range(4 if OPT['exp'] & 512 else 32): o(f"v_dot2_f32_bf16 v{D+(t&3)}, v{TK+t}, v{TK+t}, {'0' if t < 4 else f'v{D+(t&3)}'}")
        if g == 0: o("s_barrier", R=[f'w{i}' for i in WO_], W=['wa', 'bar'], rr=[AC[0], D, D+1, D+2, D+3])
        for u in range(1 if OPT['exp'] & 256 else 8): w = W(u); o(f"v_mfma_f32_16x16x32_bf16 v[{EA}:{EA+3}], {w}, {T(u)}, {'0' if u == 0 else f'v[{EA}:{EA+3}]'}")
        o(f"v_add_f32 v11, v{D}, v{D+1}\nv_add_f32 v2, v{D+2}, v{D+3}\nv_add_f32 v11, v11, v2")
        o(f"v_mov_b32 v2, v11\nv_permlane32_swap_b32 v11, v2\nv_add_f32 v11, v11, v2\nv_mul_f32 v2, s28, v{EA}\nv_mul_f32 v2, v2, v2\nv_fma_f32 v11, v11, s28, -v2")
        o(f"v_mul_f32 v2, v{sv}, v{sv}\nv_max_f32 v11, 0, v11\nv_fma_f32 v11, v11, v2, s29\nv_rsq_f32 v11, v11\nv_mul_f32 v11, v11, v{sv}")
        o("ds_write_b32 v4, v11", W=['sa']); o(f"ds_write_b32 v4, v{EA+2} offset:128\nds_write_b32 v4, v{EA+3} offset:256", W=['sb'])
        RL, X, ZS, ZD = PA, SS, SS+8, SS+12
        o(f"ds_read_b128 v[{RL}:{RL+3}], v8", R=['sa'])
        cinit()
        pack(0); smf(0)
        ychain(1); pack(1); smf(1)
        ychain(2); pack(2); smf(2)
        ychain(3); pack(3); smf(3)
        zchain(0); pack(0)
        zchain(1); pack(1)
        for r in range(4):
            o(f"v_cndmask_b32 v{X+r}, v{SS+r}, v{SS+4+r}, s[34:35]\nv_cndmask_b32 v{X+r}, v{X+r}, v{SS+8+r}, s[36:37]\nv_cndmask_b32 v{X+r}, v{X+r}, v{SS+12+r}, s[38:39]")
        o(f"ds_read_b128 v[{ZS}:{ZS+3}], v8 offset:128\nds_read_b128 v[{ZD}:{ZD+3}], v8 offset:256", R=['sb'])
        for r in range(4): o(f"v_mul_f32 v{X+r}, v{X+r}, v{RL+r}")
        t0, t1 = X+4, X+5
        o(f"v_max3_f32 v{t0}, v{X}, v{X+1}, v{X+2}\nv_max_f32 v{t0}, v{t0}, v{X+3}\nv_mov_b32 v{t1}, v{t0}\nv_permlane32_swap_b32 v{t0}, v{t1}\nv_max_f32 v{t0}, v{t0}, v{t1}\nv_mul_f32 v{t0}, v{t0}, v11")
        for r in range(4): o(f"v_fma_f32 v{X+r}, v{X+r}, v11, -v{t0}")
        for r in range(4): o(f"v_exp_f32 v{X+r}, v{X+r}")
        o(f"v_add_f32 v{t0}, v{X}, v{X+1}\nv_add_f32 v{t1}, v{X+2}, v{X+3}\nv_add_f32 v{t0}, v{t0}, v{t1}\nv_mov_b32 v{t1}, v{t0}\nv_permlane32_swap_b32 v{t0}, v{t1}\nv_add_f32 v{t0}, v{t0}, v{t1}\nv_mul_f32 v{t0}, v{t0}, v{sv}\nv_rcp_f32 v{t0}, v{t0}")
        for r in range(4): o(f"v_mul_f32 v{X+r}, v{X+r}, v{RL+r}")
        for r in range(4): o(f"v_mul_f32 v{X+r}, v{X+r}, v{t0}")
        o(f"v_cvt_pk_bf16_f32 v{X+6}, v{X}, v{X+1}\nv_cvt_pk_bf16_f32 v{X+7}, v{X+2}, v{X+3}")
        for n in range(4): o(f"v_cndmask_b32 v{PA+2*n}, 0, v{X+6}, s[{32+2*n}:{33+2*n}]\nv_cndmask_b32 v{PA+2*n+1}, 0, v{X+7}, s[{32+2*n}:{33+2*n}]")
        o(f"v_mul_f32 v13, v{X}, v{ZS}\nv_mul_f32 v14, v{X}, v{ZD}")
        for r in range(1, 4): o(f"v_fmac_f32 v13, v{X+r}, v{ZS+r}\nv_fmac_f32 v14, v{X+r}, v{ZD+r}")
        o(f"v_permlane32_swap_b32 v13, v14\nv_add_f32 v13, v13, v14\nv_mov_b32 v14, v13\nv_permlane32_swap_b32 v13, v14\nv_add_f32 v13, v13, v{EA}\nv_add_f32 v14, v14, v{EA+1}")
        def sq(b):
            for r in range(0 if (OPT['exp'] & 1024 and b) else 16): o(f"v_mul_f32 v{QQ+r}, v{OO+r}, v{OO+r}" if b == 0 else f"v_fmac_f32 v{QQ+r}, v{OO+16*b+r}, v{OO+16*b+r}")
        pz(0); sq(0)
        zchain(2); pz(1); sq(1); pack(2)
        zchain(3); pz(2); sq(2); pack(3)
        pz(3); sq(3)
        for d in range(8): o(f"v_cvt_pk_bf16_f32 v{AL+d}, v{QQ+2*d}, v{QQ+2*d+1}")
        for v in range(2):
            x = AL+8+4*v
            o(f"v_mfma_f32_16x16x32_bf16 v[{x}:{x+3}], v[{AL+4*v}:{AL+4*v+3}], v[{IB}:{IB+3}], 0")
            o(f"v_add_f32 v{x}, v{x}, v{x+1}\nv_add_f32 v{x+2}, v{x+2}, v{x+3}\nv_add_f32 v{x}, v{x}, v{x+2}")
        o(f"v_permlane16_swap_b32 v{AL+8}, v{AL+12}\nv_add_f32 v5, v{AL+8}, v{AL+12}\nv_mov_b32 v{AL+8}, v5\nv_permlane32_swap_b32 v5, v{AL+8}\nv_add_f32 v5, v5, v{AL+8}")
        o(f"v_mul_f32 v13, s28, v13\nv_fma_f32 v14, -v13, s24, v14\nv_mul_f32 v13, v13, v13\nv_mul_f32 v14, s30, v14\nv_mul_f32 v6, v{sv}, v{sv}\nv_mul_f32 v14, v14, v{sv}")
        o("v_fma_f32 v5, v5, s28, -v13\nv_max_f32 v5, 0, v5\nv_fma_f32 v5, v5, v6, s29\nv_rsq_f32 v5, v5\nv_mul_f32 v5, v5, v14")
        o(f"v_max_f32_dpp v6, v5, v5 quad_perm:[1,0,3,2] {DPPF}\nv_max_f32_dpp v6, v6, v6 quad_perm:[2,3,0,1] {DPPF}\nv_max_f32_dpp v6, v6, v6 row_half_mirror {DPPF}")
        o("v_sub_f32 v5, v5, v6\nv_exp_f32 v5, v5")
        o(f"v_add_f32_dpp v6, v5, v5 quad_perm:[1,0,3,2] {DPPF}\nv_add_f32_dpp v6, v6, v6 quad_perm:[2,3,0,1] {DPPF}\nv_add_f32_dpp v6, v6, v6 row_half_mirror {DPPF}")
        o(f"v_rcp_f32 v6, v6\nv_mul_f32 v5, v5, v{sv}\nv_mul_f32 v5, v5, v6")
        o("ds_write_b32 v4, v5 offset:512", W=['sd'])
        for n in range(4): o(f"ds_read_b128 v[{AL+4*n}:{AL+4*n+3}], v9 offset:{512+32*n}", R=['sd'])
        for b in range(4):
            for n in range(4):
                x = QQ + 4*b + n
                o(f"v_mul_f32 v{x}, v{AL+4*n}, v{OO+16*b+4*n}")
                for r in range(1, 1 if OPT['exp'] & 2048 else 4): o(f"v_fmac_f32 v{x}, v{AL+4*n+r}, v{OO+16*b+4*n+r}")
            x = QQ + 4*b
            o(f"v_permlane32_swap_b32 v{x}, v{x+2}\nv_permlane32_swap_b32 v{x+1}, v{x+3}\nv_add_f32 v{x}, v{x}, v{x+2}\nv_add_f32 v{x+1}, v{x+1}, v{x+3}")
            if b & 1:
                for e in range(2): o(f"v_cvt_pk_bf16_f32 v{x+2+e}, v{x-4+e}, v{x+e}\nbuffer_store_dword v{x+2+e}, v{pm+e}, s[12:15], 0 offen offset:{128*(b>>1)}{('', ' nt', ' sc1', ' sc0 sc1', ' sc1 nt')[OPT['osc']]}")
    a(f"s_lshl_b32 s25, s19, 10\ns_add_u32 s25, s25, 0x10000")
    for i in WO_[np_:]:
        wdma(i, i+1, 'w'); L[-1].w.discard(('p', 'q')); L[-1].bias = L[-2].bias = L[-3].bias = 5000
    wdma(8, 16, 'w')
    for g in range(6): group(g, 6)
    n6 = len(L)
    o("s_barrier", R=DM(3), W=['tile3', 'bar'], rr=[OO+32+3, OO+32+2] + list(range(TK, TK+32)))
    group(6, 6)
    for x in L[n6:]: x.extra = True
    for x in L[n6+1:]: x.r.add(('p', 'tile3'))
    ops = sched.schedule(L, True); L.clear()
    cut = min(i for i, x in enumerate(ops) if getattr(x, 'extra', False))
    nb = 3
    for t in W8.emit(ops[:cut+1]):
        if t == 's_barrier' and OPT['stamp'] in (1, 2): a.st(nb); a(t); a.st(13); nb += 1
        else: a(t)
    a("s_cmp_eq_u32 s31, 0\ns_cbranch_scc0 K4_x")
    import copy
    W9 = copy.deepcopy(W8)
    for t in W8.emit([x for x in ops[cut+1:] if not getattr(x, 'extra', False)]): a(t)
    a.st(9); a("s_branch K4_fin\nK4_x:")
    for t in W9.emit(ops[cut+1:]): a(t)
    a.st(10)
    a("K4_fin:"); a.st_out(3, 8, 's19', 10)
    a("K4_end:\ns_endpgm")
    a.end(name, 512, 102, 256)

def build(ks, path, pre=''):
    a = K()
    for k in ks: k(a)
    open(path, 'w').write(a.text(pre))

if __name__ == '__main__':
    for x in sys.argv[1:]:
        k, v = x.split('='); OPT[k] = int(v)
    ref = open('standalone__hybrid_graph_tf_nagphormer__graph.s.ref').read().split('\n')
    pre = '\n'.join(l for l in ref if l.startswith(';') and 'launch' not in l and 'grid=' not in l) + '\n'
    build([k1, k3, k4], 'stage.s', pre)
```

```python
import hazard
COST8 = 5
import re
def is8(t):
    mn = t.split()[0]
    if mn.startswith(('ds_', 'buffer_', 'v_mfma', 'v_cvt_pk', 'v_fma_', 'v_dot', 'v_max3', 'v_lshl_add', 'v_pk')) or '_dpp' in mn: return True
    if mn.startswith('v_cndmask') and 'vcc' not in t: return True
    if re.search(r'0x[0-9a-f]{3,}|, \d{3,}', t.split(';')[0]): return True
    return False
class Op:
    def __init__(s, text, R=(), W=(), pri=0):
        s.text = text; s.i = hazard.I(text)
        s.r = set(s.i.r) | {('p', x) for x in R}; s.w = set(s.i.w) | {('p', x) for x in W}
        mn = s.i.mn; k = s.i.kind
        if k == 'salu':
            if not mn.startswith(('s_mov', 's_mul_i32', 's_setprio', 's_nop', 's_barrier')): s.w.add(('p', 'scc'))
            if mn.startswith(('s_cselect', 's_addc')): s.r.add(('p', 'scc'))
        s.kind = k; s.bias = pri
        s.dot = k == 'valu' and (mn.startswith('v_dot') or mn.startswith('v_pk_'))
        s.cost = COST8 if is8(text) else 4
        if k == 'mfma': s.cost = 5; s.pipe = s.i.np*4
        elif k == 'valu' and (s.i.trans or mn.startswith(('v_permlane', 'v_swap'))): s.cost = 8
        s.async_ = None
        if k == 'ds': s.async_ = 'lgkmcnt'
        if k == 'vmem':
            s.async_ = 'vmcnt'
            if s.i.lds: s.cost = DMA_COST
def lat(p, c, kind):
    if kind == 'war':
        if p.kind == 'mfma' and c.kind == 'valu' and (p.i.C & c.w): return p.cost + p.pipe
        return p.cost
    if p.kind == 'mfma':
        if c.kind == 'mfma' and p.i.mn == c.i.mn and p.i.D == c.i.C and not (p.i.D & (c.i.A | c.i.B)): return p.pipe if p.i.np > 2 else 16
        return p.pipe + 20
    if p.kind == 'ds': return LDS_LAT if p.i.w else p.cost
    if p.kind == 'vmem': return VMEM_LAT if (p.w) else p.cost
    if p.kind == 'valu':
        n = hazard.need(p.i, c.i) if c.i.kind else 0
        if p.dot: return 12 + 4*n
        return p.cost + 4*n
    return p.cost
LDS_LAT = 120; VMEM_LAT = 1500; STRETCH = 1.15; QLAT = 100; TH = 4; EDF = 0; DMA_COST = 16
def schedule(ops, verbose=False):
    n = len(ops)
    succ = [[] for _ in range(n)]; npred = [0]*n
    lw = {}; lr = {}
    for j, c in enumerate(ops):
        e = {}
        L = lambda i, x, k: QLAT if x == ('p', 'q') else lat(ops[i], c, k)
        for x in c.r:
            if x in lw: e[lw[x]] = max(e.get(lw[x], 0), L(lw[x], x, 'raw'))
        for x in c.w:
            if x in lw: e[lw[x]] = max(e.get(lw[x], 0), L(lw[x], x, 'raw'))
            for i in lr.get(x, ()):
                if i != j: e[i] = max(e.get(i, 0), L(i, x, 'war'))
        for i, l in e.items(): succ[i].append((j, l)); npred[j] += 1
        for x in c.r: lr.setdefault(x, []).append(j)
        for x in c.w: lw[x] = j; lr[x] = []
    tot = 0; ideal = {}
    for i, o in enumerate(ops):
        if o.kind == 'mfma': ideal[i] = tot; tot += o.pipe*STRETCH
        elif o.dot: ideal[i] = tot; tot += 4*STRETCH
    dl = [0]*n
    for i in range(n-1, -1, -1):
        d = min([dl[j] - l for j, l in succ[i]] + [tot])
        if i in ideal: d = min(d, ideal[i] - ops[i].bias)
        dl[i] = d - (0 if i in ideal else ops[i].bias)
    cp = [-x for x in dl]
    ready_n = [0]*n; waited = -1; dsq = {}
    pred_ds = [[] for _ in range(n)]
    for i in range(n):
        if ops[i].kind == 'ds' and ops[i].i.w:
            for j, l in succ[i]:
                if ops[i].i.w & (ops[j].r | ops[j].w): pred_ds[j].append(i)
    ready_t = [0]*n; avail = {i for i in range(n) if npred[i] == 0}
    t = 0; pipe = 0; port = 0; order = []; stall = 0
    while avail:
        now = [i for i in avail if ready_t[i] <= t]
        cnt = len(order)
        clean = [i for i in now if ready_n[i] <= cnt]
        if clean and not (len(clean) < len(now) and all(ops[i].kind == 'mfma' or ops[i].dot for i in clean) and pipe - t > 4): now = clean
        pick = None
        mf = [i for i in now if ops[i].kind == 'mfma']
        ot = [i for i in now if ops[i].kind != 'mfma' and not ops[i].dot]
        dt = [i for i in now if ops[i].dot]
        indot = order and ops[order[-1]].dot
        if indot and dt: pick = max(dt, key=lambda i: cp[i])
        elif mf and pipe - t <= TH and (not EDF or not ot or max(cp[i] for i in mf + dt) + EDF >= max(cp[i] for i in ot)): pick = max(mf + dt, key=lambda i: cp[i])
        elif ot:
            sh = [i for i in ot if ops[i].kind != 'valu'] if port > t else []
            pick = max(sh or ot, key=lambda i: (cp[i], -i))
            if ops[pick].kind == 'valu': t = max(t, port)
        elif mf and pipe - t <= 4: pick = max(mf + dt, key=lambda i: cp[i])
        elif dt and pipe - t <= 4: pick = max(dt, key=lambda i: cp[i])
        if pick is None:
            cand = [max(ready_t[i], pipe - 4) if (ops[i].kind == 'mfma' or ops[i].dot) else ready_t[i] for i in avail]
            nt = max(min(cand), t+1); stall += nt - t; t = nt; continue
        k = max([dsq[i] for i in pred_ds[pick]] + [-1])
        if k > waited: waited = k; t += 4
        t += 4*max(0, ready_n[pick] - cnt)
        if ops[pick].kind == 'ds': dsq[pick] = len(dsq)
        o = ops[pick]; o.t = t; o.idle = max(0, t - pipe) if o.kind == 'mfma' else 0
        if o.kind == 'mfma': port = max(pipe, t) + 8; pipe = max(pipe, t) + o.pipe
        if o.dot: pipe = max(pipe, t) + (4 if indot else 16)
        order.append(pick); avail.discard(pick)
        for j, l in succ[pick]:
            ready_t[j] = max(ready_t[j], t + l); npred[j] -= 1
            if ops[j].i.kind: ready_n[j] = max(ready_n[j], cnt + 1 + hazard.need(o.i, ops[j].i))
            if npred[j] == 0: avail.add(j)
        t += o.cost
    assert len(order) == n
    if verbose:
        with open('sched_%d.txt' % n, 'w') as f:
            for i in order: f.write(f"{ops[i].t:6d} {'IDLE%d' % ops[i].idle if ops[i].idle > 8 else '':8s} {ops[i].text}\n")
    if verbose: print(f"schedule: {n} ops, est {t} cycles, stall {stall}")
    return [ops[i] for i in order]
CAP = {'lgkmcnt': 15, 'vmcnt': 63}
class Waits:
    def __init__(s): s.q = {'lgkmcnt': [], 'vmcnt': []}
    def emit(s, ops):
        out = []
        for o in ops:
            w = []
            for c, q in s.q.items():
                idx = [k for k, d in enumerate(q) if d & (o.r | o.w)]
                if idx:
                    left = len(q) - 1 - idx[-1]
                    left = min(left, CAP[c]); w.append(f"{c}({left})"); s.q[c] = q[len(q)-left:] if left else []
            if w: out.append("s_waitcnt " + " ".join(w))
            out.append(o.text)
            if o.async_:
                d = set(o.w) if (o.i.w or o.kind == 'vmem') else set()
                s.q[o.async_].append({x for x in d if x != ('p', 'q')})
        return out
    def drain(s, names):
        o = Op("s_nop 0", R=names); return s.emit([o])[:-1]
```

```python
import sys, math, struct
from asmlib import Asm
import hazard

N = 25000; NP = 25088; E = 400000; WIN = 128; NWIN = 196; NLEV = 392; QLEV = 98; QN = 6272
NCH = 250; CH = 1600
ZB = 195*128
WS_FLAGS = 0xC0000; FGS = 17*128; WS_NEWID = 0x10000; WS_PERM = 0x20000; WS_DISP = 0x40000; WS_TQ = 0x60000; WS_LOC = 0x64000; WS_IRR = 0x78000; WS_SINV = 0xA0000; WS_PM = 0x3700000; WS_WDN = 0xE4000
WS_WFR = 0x80000; WS_PART = 0x100000; WS_PARTB = 0x440000; WS_IDX = 0x780000; WS_G = 0xB00000; RS = 57344; WS_TOK = 0x3800000
GS = NP*4
TOS = 65536 + 128
PWS = 16384 + 128
KS = NP*256
WS_SIZE = 0x10000000
WFR_E = 65536; WFR_SW = 73728
SD = "dst_sel:DWORD dst_unused:UNUSED_PAD src0_sel:DWORD"
DPPF = "row_mask:0xf bank_mask:0xf"
SLACK = 2
OPT = dict(stamp=0, exp=0, tal=20, tbe=0, prio=2, wprio=0, slg=2, sll=2, tok=1, tsc=2, wb=2, gprio=1, ls=1, tlb=0, wt=1, vl=1500, str=140, dp=0, ql=100, npl=1, px=0, slp=1, cpf=7, slow=0, la=2, npre=7, slw=2, isc=0, tp=0, wbw=0, wb6=0, lnt=2, pnt=0, nt=2, osc=2, frz=0, gw=3, iw=0, pw=0, xp=3, xr=3, th=0, edf=200, sel=1, gram=1, fin=0, lq=300, lf=0)
WS_STAMP = 0x7800000

WT = lambda b: (' sc1' if OPT['wt'] & b else '') + (' sc0' if OPT['wt'] & b and OPT['wt'] & 8 else '') + (' nt' if OPT['wt'] & (b << 4) else '')
NT = lambda b: ' nt' if OPT['nt'] & b else ''
class K(Asm):
    def __init__(self):
        super().__init__(); self.uid = 0
    def lab(self, s='L'):
        self.uid += 1; return f"{s}_{self.uid}"
    def begin(self, name):
        self.kernel(name); self.k0 = len(self.lines)
    def end(self, name, vgpr, sgpr=102, accum=None):
        body, n = hazard.fix(self.lines[self.k0:])
        self.lines[self.k0:] = body
        print(f"{name}: {len(body)} lines, {n} nop states", file=sys.stderr)
        self.kd(name, vgpr, sgpr, accum)
    def st_init(self):
        if not OPT['stamp']: return
        self("s_memrealtime s[84:85]" if OPT['stamp'] != 2 else "s_memtime s[84:85]")
        if OPT['stamp'] == 3:
            self("s_waitcnt lgkmcnt(0)\ns_mov_b32 s70, s84"); return
        for i in range(1, 14): self(f"s_mov_b32 s{70+i}, 0")
        self("s_waitcnt lgkmcnt(0)\ns_mov_b32 s70, s84\ns_mov_b32 s86, s84")
    def st(self, i):
        if not OPT['stamp'] or OPT['stamp'] == 3: return
        if OPT['stamp'] == 4:
            if i in (3, 9, 4, 7):
                l = self.lab('ST')
                if OPT['frz'] and i != 3: self(f"s_cmp_gt_u32 s22, {OPT['frz'] + (1 if i == 9 else 0)}\ns_cbranch_scc1 {l}")
                self("s_memrealtime s[84:85]")
                for k in range(71, 83): self(f"s_mov_b32 s{k}, s{k+1}")
                self("s_waitcnt lgkmcnt(0)\ns_sub_u32 s83, s84, s86\ns_mov_b32 s86, s84\n" + l + ":")
            return
        self(f"{'s_memrealtime' if OPT['stamp'] == 1 else 's_memtime'} s[84:85]\ns_waitcnt lgkmcnt(0)\ns_sub_u32 s87, s84, s86\ns_mov_b32 s86, s84\ns_add_u32 s{70+i}, s{70+i}, s87")
    def st_out(self, kid, srd, swave, vt):
        if not OPT['stamp']: return
        self(f"s_lshl_b32 s87, s2, 4\ns_add_u32 s87, s87, {swave}\ns_lshl_b32 s87, s87, 6\ns_add_u32 s87, s87, {WS_STAMP + kid*0x80000}\ns_mov_b64 exec, 1\nv_mov_b32 v{vt+1}, 0")
        if OPT['stamp'] == 3: self("s_memrealtime s[84:85]\ns_waitcnt lgkmcnt(0)\ns_mov_b32 s71, s84")
        for i in range(2 if OPT['stamp'] == 3 else 14): self(f"v_mov_b32 v{vt}, s{70+i}\nbuffer_store_dword v{vt}, v{vt+1}, s[{srd}:{srd+3}], s87 offen offset:{4*i}")
    def codepf(self, first, last, lane4, vt, sp, vd=None):
        l = self.lab('PF')
        self(f"s_getpc_b64 s[{sp}:{sp+1}]\n{l}:\ns_add_u32 s{sp}, s{sp}, {first}-{l}\ns_addc_u32 s{sp+1}, s{sp+1}, 0\nv_lshlrev_b32 v{vt}, 5, v{lane4}\ns_mov_b32 s{sp+2}, 0")
        self(f"{l}_l:\nv_cmp_gt_u32 vcc, {last}-{first}, v{vt}\ns_and_b64 exec, exec, vcc\ns_cbranch_execz {l}_e\nglobal_load_dword v{vd or vt+1}, v{vt}, s[{sp}:{sp+1}]\nv_add_u32 v{vt}, 8192, v{vt}\ns_branch {l}_l\n{l}_e:\ns_mov_b64 exec, -1")
    def scan_incl(self, v):
        for s in (1, 2, 4, 8): self(f"v_add_u32_dpp v{v}, v{v}, v{v} row_shr:{s} {DPPF} bound_ctrl:0")
        self(f"v_add_u32_dpp v{v}, v{v}, v{v} row_bcast:15 row_mask:0xa bank_mask:0xf")
        self(f"v_add_u32_dpp v{v}, v{v}, v{v} row_bcast:31 row_mask:0xc bank_mask:0xf")
    def red63(self, op, v):
        for s in (1, 2, 4, 8): self(f"{op}_dpp v{v}, v{v}, v{v} row_shr:{s} {DPPF} bound_ctrl:0")
        self(f"{op}_dpp v{v}, v{v}, v{v} row_bcast:15 row_mask:0xa bank_mask:0xf")
        self(f"{op}_dpp v{v}, v{v}, v{v} row_bcast:31 row_mask:0xc bank_mask:0xf")

SWAPS = ((0, 85), (6, 91), (12, 95))
def levelpos(a, sw, d0, d1):
    t, u = d1+1, d1+2
    a(f"s_mul_i32 s{t}, s{sw}, 1338\ns_lshr_b32 s{t}, s{t}, 16\ns_mul_i32 s{t}, s{t}, 98\ns_lshl_b32 s{d0}, s{sw}, 1\ns_sub_u32 s{u}, s{d0}, s{t}")
    a(f"s_mov_b32 s{d0}, s{u}\ns_add_u32 s{d1}, s{u}, 1")
    for x, y in SWAPS:
        a(f"s_cmp_eq_u32 s{u}, {x}\ns_cselect_b32 s{d0}, {y}, s{d0}\ns_cmp_eq_u32 s{u}, {y-1}\ns_cselect_b32 s{d1}, {x}, s{d1}")
    a(f"s_add_u32 s{d0}, s{d0}, s{t}\ns_add_u32 s{d1}, s{d1}, s{t}")
def k1(a):
    name = 'p1_kernel'
    a.launch(name, NCH + NWIN + 8, 512, 40960)
    a.begin(name)
    a(f"s_cmp_ge_u32 s2, {NCH+NWIN+8}\ns_cbranch_scc1 K1_end")
    a.st_init()
    a("s_load_dwordx4 s[4:7], s[0:1], 0\ns_load_dwordx4 s[8:11], s[0:1], 16\ns_load_dwordx2 s[14:15], s[0:1], 88")
    a("v_lshlrev_b32 v1, 2, v0\nv_mov_b32 v2, 0\nv_mov_b32 v24, 1\nv_lshrrev_b32 v3, 6, v0\nv_and_b32 v25, 63, v0\nv_readfirstlane_b32 s37, v3")
    a(f"s_cmp_ge_u32 s2, {NCH+NWIN}\ns_cbranch_scc1 K1_mm\ns_cmp_ge_u32 s2, {NCH}\ns_cbranch_scc1 K1_win")
    a(f"v_lshlrev_b32 v3, 4, v0\ns_mul_i32 s38, s2, {CH*4}\ns_waitcnt lgkmcnt(0)")
    a.srd(16, 6, E*4); a.srd(20, 8, E*4); a.srd(28, 14, WS_SIZE)
    a("s_cmp_ge_u32 s37, 7\ns_cbranch_scc1 K1_nl\nv_cmp_gt_u32 vcc, 400, v0\ns_and_saveexec_b64 s[34:35], vcc")
    a(f"buffer_load_dwordx4 v[4:7], v3, s[16:19], s38 offen{NT(2)}\nbuffer_load_dwordx4 v[8:11], v3, s[20:23], s38 offen{NT(2)}\ns_mov_b64 exec, s[34:35]\nK1_nl:")
    a(f"s_cmp_lg_u32 s2, 64\ns_cbranch_scc1 K1_noy\ns_cmp_ge_u32 s37, 4\ns_cbranch_scc1 K1_noy\ns_mov_b32 s3, {WS_WDN}\nv_lshlrev_b32 v16, 7, v0\nbuffer_store_dword v2, v16, s[28:31], s3 offen\nK1_noy:")
    a("s_cmp_ge_u32 s2, 64\ns_cbranch_scc1 K1_noz\ns_cmp_ge_u32 s37, 3\ns_cbranch_scc1 K1_noz")
    a(f"s_mul_i32 s3, s2, {FGS}\ns_add_u32 s3, s3, {WS_FLAGS}\nv_lshrrev_b32 v16, 3, v0\nv_min_u32 v16, 16, v16\nv_lshlrev_b32 v16, 7, v16\nv_and_b32 v17, 7, v0\nv_lshl_add_u32 v16, v17, 2, v16\nbuffer_store_dword v2, v16, s[28:31], s3 offen\nK1_noz:")
    if OPT['iw']:
        a(f"s_cmp_eq_u32 s37, 7\ns_cbranch_scc0 K1_niw\ns_cmp_ge_u32 s2, 192\ns_cbranch_scc1 K1_niw\ns_mul_i32 s3, s2, 21846\ns_lshr_b32 s3, s3, 16\ns_mul_i32 s40, s3, 3\ns_sub_u32 s40, s2, s40\ns_mul_i32 s3, s3, {RS}\ns_lshl_b32 s40, s40, 13\ns_add_u32 s3, s3, s40\ns_add_u32 s3, s3, {WS_IDX}")
        a("v_lshlrev_b32 v29, 7, v25\nbuffer_load_dword v29, v29, s[28:31], s3 offen\nK1_niw:")
    if OPT['cpf'] & 1:
        a("s_cmp_eq_u32 s37, 7\ns_cbranch_scc0 K1_npf\ns_cmp_lt_u32 s2, 16\ns_cbranch_scc0 K1_npf\nv_lshlrev_b32 v28, 2, v25"); a.codepf('hop_kernel', 'K3_join', 28, 30, 52); a("K1_npf:")
    a("v_mov_b32 v12, -1\nv_mov_b32 v13, -1\nv_mov_b32 v14, -1\nv_mov_b32 v15, -1\nv_mov_b32 v26, 12544\nv_mov_b32 v27, 25088")
    a("ds_write_b128 v3, v[12:15] offset:1024\nds_write_b128 v3, v[12:15] offset:9216\nds_write_b128 v3, v[12:15] offset:17408")
    a("s_cmp_ge_u32 s37, 4\ns_cbranch_scc1 K1_nc\nds_write_b32 v1, v2\ns_cmp_ge_u32 s37, 1\ns_cbranch_scc1 K1_nc\nds_write_b128 v3, v[12:15] offset:25600\nK1_nc:")
    a("s_waitcnt lgkmcnt(0)\ns_barrier")
    a("s_cmp_ge_u32 s37, 7\ns_cbranch_scc1 K1_ns\nv_cmp_gt_u32 vcc, 400, v0\ns_and_saveexec_b64 s[34:35], vcc\ns_waitcnt vmcnt(0)")
    a.st(1)
    for i in range(4):
        a(f"v_lshrrev_b32 v{12+i}, 7, v{8+i}\nv_and_b32 v16, 127, v{8+i}\nv_lshl_or_b32 v{4+i}, v16, 16, v{4+i}\nv_lshlrev_b32 v16, 2, v{12+i}\nds_add_rtn_u32 v{8+i}, v16, v24")
    for i in range(4):
        a(f"s_waitcnt lgkmcnt(3)" if i == 0 else "s_waitcnt lgkmcnt(3)")
        a(f"v_and_b32 v16, 15, v{8+i}\nv_lshlrev_b32 v16, 2, v16\nv_lshl_add_u32 v16, v{12+i}, 6, v16\nv_lshrrev_b32 v17, 4, v{8+i}\nv_mad_u32_u24 v16, v17, s39, v16".replace("s39", "v26"))
        a(f"v_cmp_gt_u32 vcc, 32, v{8+i}\nv_cndmask_b32 v16, v27, v16, vcc\nds_write_b32 v16, v{4+i} offset:1024")
    a("s_mov_b64 exec, s[34:35]\nK1_ns:\ns_waitcnt lgkmcnt(0)\ns_barrier")
    a("s_and_b32 s3, s2, 7\ns_lshl_b32 s3, s3, 5\ns_lshr_b32 s39, s2, 3\ns_add_u32 s3, s3, s39\ns_lshl_b32 s3, s3, 6")
    a(f"s_add_u32 s39, s3, {WS_PART}\ns_add_u32 s40, s3, {WS_PARTB}")
    a("v_lshrrev_b32 v16, 2, v0\nv_and_b32 v17, 3, v0\nv_lshlrev_b32 v17, 4, v17\nv_mov_b32 v18, " + str(PWS) + "\nv_mad_u32_u24 v17, v16, v18, v17\nv_and_b32 v18, 0xfffffffc, v0")
    a("ds_read_b128 v[4:7], v3 offset:1024\nds_read_b128 v[8:11], v3 offset:9216\nds_read_b32 v19, v18\nds_read_b32 v20, v18 offset:512")
    a(f"v_add_u32 v21, {128*PWS}, v17\nv_cmp_gt_u32 vcc, {784-512}, v0\ns_mov_b64 s[42:43], vcc")
    a("s_waitcnt lgkmcnt(3)\nbuffer_store_dwordx4 v[4:7], v17, s[28:31], s39 offen" + WT(2) + "\ns_waitcnt lgkmcnt(0)")
    a("v_cndmask_b32 v20, 0, v20, s[42:43]\nv_max_u32 v22, v19, v20\ns_mov_b64 exec, s[42:43]\ns_cbranch_execz K1_n2")
    a("buffer_store_dwordx4 v[8:11], v21, s[28:31], s39 offen" + WT(2) + "\nK1_n2:\ns_mov_b64 exec, -1")
    a("v_cmp_le_u32 vcc, 16, v22\ns_cbranch_vccz K1_nb")
    a(f"ds_read_b128 v[4:7], v3 offset:{1024+12544}\nds_read_b128 v[8:11], v3 offset:{1024+12544+8192}\ns_waitcnt lgkmcnt(0)")
    a("v_cmp_le_u32 vcc, 16, v19\ns_mov_b64 exec, vcc\ns_cbranch_execz K1_b1\nbuffer_store_dwordx4 v[4:7], v17, s[28:31], s40 offen\nK1_b1:\ns_mov_b64 exec, -1")
    a("v_cmp_le_u32 vcc, 16, v20\ns_mov_b64 exec, vcc\ns_cbranch_execz K1_b2\nbuffer_store_dwordx4 v[8:11], v21, s[28:31], s40 offen\nK1_b2:\ns_mov_b64 exec, -1")
    a("K1_nb:")
    a(f"v_cmp_lt_u32 vcc, 32, v22\ns_cmp_lg_u64 vcc, 0\ns_cselect_b32 s3, 1, 0\nv_mov_b32 v4, s3\ns_lshr_b32 s39, s39, 1\ns_and_b32 s39, s39, 0x1fe0\ns_lshl_b32 s3, s37, 2\ns_add_u32 s39, s39, s3\ns_add_u32 s39, s39, {WS_IRR}")
    a("s_mov_b64 exec, 1\nbuffer_store_dword v4, v2, s[28:31], s39 offen")
    a.st(2); a.st_out(0, 28, 's37', 10); a("s_endpgm")
    B = 32768
    a("K1_win:")
    a(f"s_sub_u32 s36, s2, {NCH}\ns_lshl_b32 s38, s36, 7\ns_waitcnt lgkmcnt(0)")
    a.srd(16, 4, N*256); a.srd(24, 10, N*2); a.srd(28, 14, WS_SIZE)
    a("v_lshlrev_b32 v3, 4, v25\ns_lshl_b32 s39, s36, 15\ns_lshl_b32 s40, s37, 12\ns_add_u32 s39, s39, s40")
    a("v_add_u32 v5, s38, v0\nv_lshlrev_b32 v6, 1, v5\ns_cmp_ge_u32 s37, 2\ns_cbranch_scc1 K1_w0\nbuffer_load_ushort v4, v6, s[24:27], 0 offen" + NT(128) + "\nK1_w0:")
    for it in range(4): a(f"buffer_load_dwordx4 v[{32+4*it}:{35+4*it}], v3, s[16:19], s39 offen offset:{it*1024}{NT(2)}")
    a(f"ds_write_b32 v1, v2 offset:{B}")
    levelpos(a, 36, 44, 45)
    for d, x in ((50, 44), (53, 45)):
        a(f"s_sub_u32 s48, s{x}, s46\ns_mul_i32 s49, s48, 43\ns_lshr_b32 s49, s49, 8\ns_mul_i32 s49, s49, 6\ns_cmp_ge_u32 s48, 84\ns_cselect_b32 s49, 84, s49\ns_cmp_ge_u32 s48, 91\ns_cselect_b32 s49, 91, s49")
        a(f"s_sub_u32 s48, s48, s49\ns_cmp_ge_u32 s48, 4\ns_cselect_b32 s{d+1}, 1, 2\ns_cselect_b32 s{d+2}, 4, 0\ns_cmp_eq_u32 s48, 6\ns_cselect_b32 s{d+1}, 0, s{d+1}\ns_cselect_b32 s{d+2}, 6, s{d+2}")
        a(f"s_sub_u32 s48, s48, s{d+2}\ns_sub_u32 s{d}, s{x}, s48\ns_lshl_b32 s{d}, s{d}, 6\ns_add_u32 s{d}, s{d}, s48")
    a("s_lshl_b32 s44, s44, 6\ns_lshl_b32 s45, s45, 6\ns_sub_u32 s45, s45, 64\ns_waitcnt lgkmcnt(0)\ns_barrier\ns_cmp_ge_u32 s37, 2\ns_cbranch_scc1 K1_w1\ns_waitcnt vmcnt(4)"); a.st(4)
    a("v_lshlrev_b32 v4, 16, v4\nv_mov_b32 v23, 0x2b800000\nv_cmp_eq_f32 vcc, 0, v4\nv_cndmask_b32 v4, v4, v23, vcc\nv_mul_f32 v7, v4, v4\nv_rcp_f32 v7, v7\nv_rndne_f32 v7, v7\nv_cvt_u32_f32 v7, v7\nv_med3_u32 v7, v7, 1, 63")
    a(f"v_cmp_gt_u32 vcc, {N}, v5\nv_cndmask_b32 v7, 0, v7, vcc\nv_lshlrev_b32 v7, 2, v7\nds_add_rtn_u32 v8, v7, v24 offset:{B}\ns_waitcnt lgkmcnt(0)\nK1_w1:\ns_barrier")
    a("s_cmp_ge_u32 s37, 2\ns_cbranch_scc1 K1_w2")
    a(f"v_lshlrev_b32 v9, 2, v25\nds_read_b32 v20, v9 offset:{B}\ns_waitcnt lgkmcnt(0)\nv_mov_b32 v21, v20")
    a.scan_incl(21)
    a("v_sub_u32 v21, v21, v20\nds_bpermute_b32 v21, v7, v21\ns_waitcnt lgkmcnt(0)\nv_add_u32 v8, v8, v21")
    a(f"v_lshlrev_b32 v9, 2, v8\nds_write_b32 v1, v9 offset:{B+512}\nds_write_b32 v9, v4 offset:{B+1024}\nv_lshrrev_b32 v7, 2, v7\nv_sub_u32 v7, v7, v24 clamp\nds_write_b32 v9, v7 offset:{B+1536}")
    a("v_mov_b32 v10, s44\nv_mov_b32 v11, s45\nv_cmp_gt_u32 vcc, 64, v8\nv_cndmask_b32 v10, v11, v10, vcc\nv_add_u32 v10, v10, v8\nv_lshlrev_b32 v11, 2, v10")
    a(f"s_mov_b32 s3, {WS_NEWID}\nbuffer_store_short v10, v6, s[28:31], s3 offen\ns_mov_b32 s3, {WS_LOC}\nbuffer_store_short v8, v6, s[28:31], s3 offen")
    a("v_mov_b32 v14, s50\nv_mov_b32 v15, s53\nv_cndmask_b32 v14, v15, v14, vcc\nv_mov_b32 v15, s51\nv_mov_b32 v16, s54\nv_cndmask_b32 v15, v16, v15, vcc\nv_and_b32 v16, 63, v8\nv_lshlrev_b32 v16, v15, v16\nv_add_lshl_u32 v14, v14, v16, 2")
    a(f"s_mov_b32 s3, {WS_PERM}\nbuffer_store_dword v5, v14, s[28:31], s3 offen\nv_mul_f32 v12, v4, v4\nv_rcp_f32 v13, v4\ns_mov_b32 s3, {WS_DISP}\nbuffer_store_dword v12, v11, s[28:31], s3 offen\ns_mov_b32 s3, {WS_SINV}\nbuffer_store_dword v13, v14, s[28:31], s3 offen")
    a("s_waitcnt lgkmcnt(0)\nK1_w2:\ns_barrier")
    a.st(1)
    a(f"s_cmp_ge_u32 s37, 2\ns_cbranch_scc1 K1_nt\nds_read_b32 v6, v1 offset:{B+1536}\ns_waitcnt lgkmcnt(0)\nv_mov_b32 v7, v6")
    for sft in (1, 2, 4, 8): a(f"v_max_u32_dpp v6, v6, v6 row_shr:{sft} {DPPF} bound_ctrl:0\nv_add_u32_dpp v7, v7, v7 row_shr:{sft} {DPPF} bound_ctrl:0")
    for bc, m in ((15, '0xa'), (31, '0xc')): a(f"v_max_u32_dpp v6, v6, v6 row_bcast:{bc} row_mask:{m} bank_mask:0xf\nv_add_u32_dpp v7, v7, v7 row_bcast:{bc} row_mask:{m} bank_mask:0xf")
    a("v_readlane_b32 s40, v6, 63\nv_readlane_b32 s41, v7, 63")
    a(f"s_mul_i32 s41, s41, {OPT['tal']}\ns_lshr_b32 s41, s41, 10\ns_add_u32 s41, s41, {OPT['tbe']}\ns_max_u32 s41, s41, s40\ns_add_u32 s41, s41, 3\ns_lshr_b32 s41, s41, 2\ns_min_u32 s41, s41, 16\ns_max_u32 s41, s41, 1")
    a(f"s_add_u32 s3, s45, 64\ns_cmp_eq_u32 s37, 0\ns_cselect_b32 s3, s44, s3\ns_lshr_b32 s3, s3, 4\ns_add_u32 s3, s3, {WS_TQ}\nv_mov_b32 v6, s41\ns_mov_b64 exec, 1\nbuffer_store_dword v6, v2, s[28:31], s3 offen\ns_mov_b64 exec, -1\nK1_nt:")
    a("v_lshrrev_b32 v9, 4, v25\nv_lshlrev_b32 v9, 2, v9\ns_lshl_b32 s3, s37, 6\nv_add_u32 v9, s3, v9\nv_and_b32 v12, 15, v25\nv_lshlrev_b32 v13, 4, v12\nv_lshlrev_b32 v12, 11, v12")
    for it in range(4): a(f"ds_read_b32 v{16+it}, v9 offset:{B+512+16*it}")
    a(f"v_and_b32 v14, 31, v25\nv_lshlrev_b32 v15, 4, v14\nds_read_b128 v[28:31], v15 offset:{B+1024}")
    for it in range(4):
        a(f"s_waitcnt lgkmcnt({4 if it == 0 else 4+3})" if False else "")
    a("s_waitcnt lgkmcnt(0)")
    for it in range(4):
        a(f"v_xor_b32 v{16+it}, v{16+it}, v13\nv_add_u32 v{16+it}, v{16+it}, v12")
    a("s_cmp_ge_u32 s37, 2\ns_cbranch_scc1 K1_w3\ns_waitcnt vmcnt(6)\ns_branch K1_w4\nK1_w3:\ns_waitcnt vmcnt(0)\nK1_w4:"); a.st(5)
    for it in range(4):
        for i in range(4): a(f"ds_write_b32 v{16+it}, v{32+4*it+i} offset:{i*512}")
    a("v_lshrrev_b32 v20, 5, v25\ns_lshl_b32 s3, s37, 5\nv_xor_b32 v21, s3, v15\nv_lshl_add_u32 v21, v20, 9, v21\ns_lshl_b32 s3, s37, 12\nv_add_u32 v21, s3, v21\nv_xor_b32 v22, 16, v21")
    a("v_mov_b32 v10, s44\nv_mov_b32 v11, s45\nv_cmp_gt_u32 vcc, 16, v14\nv_cndmask_b32 v10, v11, v10, vcc\nv_lshl_add_u32 v10, v14, 2, v10")
    a(f"s_mov_b32 s3, {GS}\nv_mul_lo_u32 v20, v20, s3\nv_lshl_add_u32 v10, v10, 2, v20")
    a(f"s_mul_i32 s42, s37, {8*GS}\ns_add_u32 s42, s42, {WS_G}")
    a("s_waitcnt lgkmcnt(0)\ns_barrier")
    a.st(2)
    for j in range(4): a(f"ds_read_b128 v[{32+4*j}:{35+4*j}], v{21 if j < 2 else 22} offset:{j*1024}")
    for j in range(4):
        a(f"s_waitcnt lgkmcnt({3-j})")
        for i in range(4):
            a(f"v_lshlrev_b32 v4, 16, v{32+4*j+i}\nv_and_b32 v5, 0xffff0000, v{32+4*j+i}\nv_mul_f32 v4, v{28+i}, v4\nv_mul_f32 v5, v{28+i}, v5\nv_cvt_pk_bf16_f32 v{48+4*(j&1)+i}, v4, v5")
        a(f"buffer_store_dwordx4 v[{48+4*(j&1)}:{51+4*(j&1)}], v10, s[28:31], s42 offen{WT(1)}")
        if j < 3: a(f"s_add_u32 s42, s42, {2*GS}")
    a.st(3); a.st_out(0, 28, 's37', 10); a("s_endpgm")
    a(f"K1_mm:\ns_sub_u32 s36, s2, {NCH+NWIN}\ns_lshr_b32 s34, s36, 2\ns_and_b32 s35, s36, 3\ns_load_dwordx8 s[40:47], s[0:1], 32\ns_load_dwordx2 s[48:49], s[0:1], 64\nv_lshlrev_b32 v9, 4, v25\nv_lshlrev_b32 v10, 1, v0")
    a("v_lshrrev_b32 v5, 4, v25\nv_and_b32 v6, 15, v25\nv_xor_b32 v6, v6, v5\nv_lshlrev_b32 v6, 4, v6\nv_lshl_add_u32 v6, v5, 8, v6\nv_lshlrev_b32 v8, 4, v25\nv_and_b32 v3, 31, v25\nv_lshrrev_b32 v4, 5, v25")
    a("s_waitcnt lgkmcnt(0)\ns_cmp_eq_u32 s34, 0\ns_cselect_b32 s52, s40, s44\ns_cselect_b32 s53, s41, s45\ns_cselect_b32 s54, s42, s46\ns_cselect_b32 s55, s43, s47\ns_cselect_b64 s[56:57], -1, 0")
    a.srd(20, 52, 32768); a.srd(24, 54, 32768); a.srd(28, 14, WS_SIZE); a.srd(16, 48, 256)
    a("buffer_load_ushort v10, v10, s[16:19], 0 offen")
    a("s_and_b32 s39, s37, 3\ns_lshl_b32 s39, s39, 6\nv_xor_b32 v7, s39, v6\ns_lshl_b32 s39, s37, 10\ns_mov_b32 m0, s39\ns_lshl_b32 s38, s35, 13\ns_add_u32 s38, s38, s39\nbuffer_load_dwordx4 v7, s[20:23], s38 offen" + NT(256) + " lds")
    a("s_lshl_b32 s38, s37, 12\ns_add_u32 m0, s38, 8192")
    for i in range(4): a(f"v_xor_b32 v7, {64*i}, v6\nv_cndmask_b32 v7, v8, v7, s[56:57]\nbuffer_load_dwordx4 v7, s[24:27], s38 offen offset:{1024*i}{NT(256)} lds")
    a("s_and_b32 s39, s37, 3\ns_lshr_b32 s40, s37, 2\ns_lshl_b32 s41, s40, 7")
    a("v_and_b32 v5, 15, v3\nv_xor_b32 v5, v5, v4\nv_lshlrev_b32 v5, 4, v5\nv_lshl_add_u32 v5, v3, 8, v5\nv_xor_b32 v5, s41, v5\ns_lshl_b32 s42, s39, 13\ns_add_u32 s42, s42, 8192\nv_add_u32 v7, s42, v5")
    a("s_waitcnt vmcnt(0)\ns_barrier")
    for u in range(4): a(f"v_xor_b32 v8, {32*u}, v5\nds_read_b128 v[{16+4*u}:{19+4*u}], v8")
    a("s_cmp_eq_u32 s34, 0\ns_cbranch_scc0 K1_mb")
    for u in range(4): a(f"v_xor_b32 v8, {32*u}, v7\nds_read_b128 v[{32+4*u}:{35+4*u}], v8")
    a("s_branch K1_mc\nK1_mb:")
    a("v_lshlrev_b32 v6, 11, v4\nv_lshl_add_u32 v6, v3, 1, v6\ns_lshl_b32 s42, s39, 6\ns_lshl_b32 s43, s40, 14\ns_add_u32 s42, s42, s43\ns_add_u32 s42, s42, 8192\nv_add_u32 v6, s42, v6")
    for u in range(4):
        for t in range(8): a(f"ds_read_u16 v{(48 if t&1 else 32)+4*u+t//2}, v6 offset:{(16*u+t)*256}")
    a("s_waitcnt lgkmcnt(0)")
    for i in range(16): a(f"v_lshl_or_b32 v{32+i}, v{48+i}, 16, v{32+i}")
    a("K1_mc:\ns_waitcnt lgkmcnt(0)")
    for u in range(4): a(f"v_mfma_f32_32x32x16_bf16 v[48:63], v[{16+4*u}:{19+4*u}], v[{32+4*u}:{35+4*u}], {'0' if u == 0 else 'v[48:63]'}")
    a(f"s_lshl_b32 s42, s36, 15\ns_lshl_b32 s43, s39, 13\ns_add_u32 s42, s42, s43\ns_lshl_b32 s43, s40, 12\ns_add_u32 s42, s42, s43\ns_add_u32 s42, s42, {WS_PM}")
    a(f"s_mov_b32 s3, {WS_WFR+WFR_SW+256}\nv_lshlrev_b32 v10, 16, v10\ns_cmp_lg_u32 s36, 0\ns_cbranch_scc1 K1_nw\nbuffer_store_dword v10, v1, s[28:31], s3 offen\nK1_nw:")
    for i in range(4): a(f"buffer_store_dwordx4 v[{48+4*i}:{51+4*i}], v9, s[28:31], s42 offen offset:{1024*i}")
    a.st(3); a.st_out(0, 28, 's37', 10)
    a("K1_end:\ns_endpgm")
    a.end(name, 64, 102 if OPT['stamp'] else 64)

L2_CNT = 0; L2_LU = 512; L2_BU = 1024; L2_LOC = 2048; L2_IRR = 2304; L2_O = 2560; L2_L = L2_O + 16384; TB = QN*8 + 64; L2_NEW = TB
def k2_window(a):
    Ev, NS, ND = 20, 24, 28
    MK = lambda j: f"s[{40+2*j}:{41+2*j}]"
    a(f"v_lshlrev_b32 v3, 4, v0\ns_mul_i32 s34, s2, {PWS}\ns_add_u32 s65, s34, {WS_PART}\nbuffer_load_dwordx4 v[{Ev}:{Ev+3}], v3, s[28:31], s65 offen{NT(32)}")
    a(f"v_lshlrev_b32 v4, 3, v0\ns_mov_b32 s35, {WS_IRR}\nbuffer_load_dwordx2 v[6:7], v4, s[28:31], s35 offen")
    a("v_lshlrev_b32 v5, 4, v2")
    a(f"s_lshl_b32 s34, s33, 10\ns_add_u32 s35, s34, {WS_NEWID}\ns_add_u32 s34, s34, {L2_NEW}")
    for i in range(4):
        if i == 3: a("s_cmp_lg_u32 s33, 0\ns_cbranch_scc1 K2_nd")
        a(f"s_mov_b32 m0, s34\nbuffer_load_dwordx4 v5, s[28:31], s35 offen lds")
        if i < 3: a("s_add_u32 s34, s34, 16384\ns_add_u32 s35, s35, 16384")
    a(f"s_lshl_b32 s35, s2, 8\ns_add_u32 s35, s35, {WS_LOC}\ns_mov_b32 m0, {L2_LOC}\nv_lshlrev_b32 v8, 2, v2\nbuffer_load_dword v8, s[28:31], s35 offen lds")
    a("K2_nd:")
    a("v_lshlrev_b32 v8, 2, v0\nv_mov_b32 v10, 0\ns_cmp_ge_u32 s33, 8\ns_cbranch_scc1 K2_nz\ns_and_b32 s35, s33, 6\ns_cmp_eq_u32 s35, 2\ns_cbranch_scc1 K2_nz\ns_cmp_ge_u32 s33, 2\ns_cselect_b32 s35, -1, 0\nv_mov_b32 v9, s35\nds_write_b32 v8, v9\nds_write_b32 v10, v10 offset:" + str(L2_IRR) + "\nK2_nz:")
    a("v_bfe_u32 v9, v0, 2, 5\nv_lshrrev_b32 v11, 7, v0\nv_lshl_add_u32 v9, v9, 3, v11")
    a(f"v_cmp_gt_u32 vcc, {NCH}, v9\ns_mov_b64 s[38:39], vcc\nv_mov_b32 v12, 1\nv_mov_b32 v13, 0xfc\ns_mov_b32 s64, 0\ns_mov_b32 s66, {L2_L}\ns_mov_b32 s67, 0")
    levelpos(a, 2, 60, 61)
    a("s_cmp_lt_u32 s33, 8\ns_cselect_b32 s60, s60, s61\ns_sub_u32 s61, s60, s62\ns_mul_i32 s63, s61, 43\ns_lshr_b32 s63, s63, 8\ns_cmp_ge_u32 s61, 84\ns_cselect_b32 s63, 14, s63\ns_cmp_ge_u32 s61, 91\ns_cselect_b32 s63, 15, s63")
    a("s_mul_i32 s68, s63, 6\ns_cselect_b32 s68, 91, s68\ns_sub_u32 s69, s61, s68\ns_add_u32 s68, s68, s62")
    a(f"s_lshl_b32 s68, s68, 2\ns_add_u32 s68, s68, {WS_TQ}\ns_buffer_load_dwordx8 s[48:55], s[28:31], s68")
    a(f"s_mul_i32 s62, s62, 10700\ns_lshr_b32 s62, s62, 16\ns_add_u32 s62, s62, s63\ns_mul_i32 s68, s62, {RS}\ns_add_u32 s68, s68, {WS_IDX}")
    a("s_waitcnt lgkmcnt(0)")
    a("s_mov_b32 s56, 0\ns_and_b32 s57, s48, 0xffff")
    for i in range(6): a(f"s_cmp_gt_u32 s69, {i}\ns_cselect_b32 s58, s57, 0\ns_cselect_b32 s57, s{49+i}, s57\ns_add_u32 s56, s56, s58\ns_and_b32 s57, s57, 0xffff")
    a(f"s_and_b32 s58, s33, 7\ns_cbranch_scc1 K2_nlu\ns_lshl_b32 s58, s57, 2\ns_min_u32 s58, s58, 32\ns_lshl_b64 s[58:59], -1, s58\ns_not_b32 s58, s58\nv_mov_b32 v9, s58\ns_lshl_b32 s58, s33, 5\nv_lshl_add_u32 v8, v2, 2, s58\nds_write_b32 v8, v9 offset:{L2_LU}\nK2_nlu:")
    a("s_waitcnt vmcnt(0) lgkmcnt(0)\ns_barrier"); a.st(11)
    gwarm(a)
    if OPT['tp'] == 0: tabledma(a, 5, 'c', 2)
    a("v_or_b32 v6, v6, v7\nv_cmp_ne_u32 vcc, 0, v6\ns_and_b64 vcc, vcc, s[38:39]\ns_cbranch_vccz K2_reg\nds_write_b32 v10, v12 offset:" + str(L2_IRR) + "\nK2_reg:")
    a("K2_loop:\ns_mov_b64 exec, s[38:39]")
    for j in range(4): a(f"v_cmp_ne_u32 {MK(j)}, -1, v{Ev+j}")
    for j in range(4):
        a(f"s_mov_b64 exec, {MK(j)}")
        a(f"v_lshlrev_b32_sdwa v15, 1, v{Ev+j} {SD} src1_sel:WORD_0\nv_lshrrev_b32 v16, 15, v{Ev+j}")
        a(f"ds_read_u16 v{ND+j}, v16 offset:{L2_LOC}\nds_read_u16 v{NS+j}, v15 offset:{L2_NEW}")
    a("s_waitcnt lgkmcnt(0)")
    for j in range(4):
        a(f"s_mov_b64 exec, {MK(j)}\nv_lshlrev_b32 v{ND+j}, 2, v{ND+j}\nds_add_rtn_u32 v{32+j}, v{ND+j}, v12 offset:{L2_CNT}")
        a(f"v_and_or_b32 v{36+j}, v{ND+j}, v13, s66\nv_lshrrev_b32 v16, 8, v{ND+j}\nv_lshl_add_u32 v{36+j}, v16, 13, v{36+j}")
    a("s_waitcnt lgkmcnt(0)")
    for j in range(4):
        a(f"s_mov_b64 exec, {MK(j)}")
        a(f"v_lshrrev_b32 v16, 1, v{32+j}\nv_lshl_add_u32 v15, v16, 8, v{36+j}\nv_and_b32 v16, 1, v{32+j}\nv_lshl_add_u32 v15, v16, 1, v15")
        a(f"v_cmp_gt_u32 vcc, 64, v{32+j}\ns_and_b64 exec, exec, vcc\nds_write_b16 v15, v{NS+j}")
    a(f"s_mov_b64 exec, -1\ns_cmp_lg_u32 s64, 0\ns_cbranch_scc1 K2_pa\nv_cndmask_b32 v15, 0, v12, {MK(3)}\ns_mov_b32 s64, 1")
    a(f"v_mov_b32_dpp v15, v15 quad_perm:[3,3,3,3] {DPPF}\nv_cmp_ne_u32 s[38:39], 0, v15\ns_cmp_eq_u64 s[38:39], 0\ns_cbranch_scc1 K2_pa")
    a(f"s_mov_b64 exec, s[38:39]\ns_add_u32 s65, s65, {WS_PARTB-WS_PART}\nbuffer_load_dwordx4 v[{Ev}:{Ev+3}], v3, s[28:31], s65 offen\ns_waitcnt vmcnt(0)\ns_branch K2_loop")
    a("K2_pa:\ns_waitcnt lgkmcnt(0)\ns_barrier"); a.st(12)
    if OPT['tp'] == 1: tabledma(a, 5, 'c', 2)
    a("s_mov_b32 s41, s57\ns_mov_b32 s61, s56\ns_lshr_b32 s34, s33, 3\ns_and_b32 s36, s33, 7\ns_lshl_b32 s35, s34, 8\nv_lshl_add_u32 v4, v2, 2, s35\nds_read_b32 v5, v4")
    a(f"s_lshl_b32 s37, s34, 13\ns_add_u32 s37, s37, {L2_L}\ns_lshr_b32 s46, s36, 1\ns_lshl_b32 s46, s46, 8\ns_and_b32 s47, s36, 1\ns_lshl_b32 s47, s47, 1\ns_add_u32 s46, s46, s47\ns_add_u32 s46, s46, s37\nv_lshl_add_u32 v16, v2, 2, s46")
    for t in range(4): a(f"ds_read_u16 v{20+t}, v16 offset:{t*1024}")
    a("s_lshl_b32 s42, s41, 2\ns_waitcnt lgkmcnt(4)\nv_cmp_lt_u32 vcc, s42, v5\ns_min_u32 s42, s42, 32\ns_lshl_b64 s[44:45], -1, s42\ns_not_b32 s44, s44")
    a("s_cbranch_vccz K2_ntq")
    a(f"ds_write_b32 v10, v12 offset:{L2_IRR}\nK2_ntq:")
    a("v_min_u32 v15, s42, v5\nv_subrev_u32 v15, s36, v15\nv_add_u32 v15, 7, v15\nv_lshrrev_b32 v15, 3, v15")
    a(f"s_sub_u32 s43, s42, {OPT['xr']}\ns_max_i32 s43, s43, 2\ns_bfm_b32 s45, s43, 0\ns_cmp_eq_u32 s43, 32\ns_cselect_b32 s45, -1, s45")
    a("s_lshl_b32 s46, s36, 2\nv_add_u32 v17, s46, v2\nv_and_b32 v17, 31, v17\nv_mul_u32_u24 v17, s43, v17\nv_lshrrev_b32 v17, 5, v17")
    a(f"s_lshl_b32 s46, s34, 9\ns_add_u32 s46, s46, {L2_BU}\nv_lshrrev_b32 v8, 5, v2\nv_lshlrev_b32 v8, 8, v8\nv_add_u32 v8, s46, v8")
    a(f"s_lshl_b32 s47, s34, 13\ns_add_u32 s47, s47, {L2_O}\nv_lshl_add_u32 v19, v2, 2, s47")
    a("v_mov_b32 v24, s44\nv_mov_b32 v26, -1\nv_mov_b32 v27, -1\nv_mov_b32 v41, 0x7c\ns_waitcnt lgkmcnt(0)")
    a("v_lshl_or_b32 v20, v21, 16, v20\nv_lshl_or_b32 v21, v23, 16, v22\nv_cmp_lt_u32 vcc, 0, v15")
    a("K2_rd:\ns_mov_b64 exec, vcc\ns_cbranch_execz K2_sd")
    a("v_and_b32 v28, v24, v26\nv_lshlrev_b32 v25, 2, v20\nv_and_b32 v31, s45, v28\nv_cmp_ne_u32 s[48:49], 0, v31\nv_cmp_ne_u32 s[52:53], 0, v28\nv_and_or_b32 v25, v25, v41, v8")
    a("v_cndmask_b32 v31, v28, v31, s[48:49]\nv_alignbit_b32 v31, v31, v31, v17\nv_ffbl_b32 v31, v31\nv_add_u32 v37, v31, v17\ns_mov_b64 s[50:51], 0\ns_andn2_b64 s[54:55], exec, s[52:53]\ns_cbranch_scc0 K2_l1")
    a("s_mov_b64 exec, s[54:55]\nv_and_b32 v29, v24, v27\nv_cmp_eq_u32 s[50:51], 0, v29\nv_add_u32 v25, 128, v25\nv_cndmask_b32 v29, v29, v24, s[50:51]\nv_ffbh_u32 v29, v29\nv_sub_u32 v37, 31, v29\ns_mov_b64 exec, vcc\nK2_l1:")
    a(f"v_lshlrev_b32 v34, v37, v12\nv_not_b32 v33, v34\nds_and_rtn_b32 v24, v4, v33 offset:{L2_LU}\nds_and_rtn_b32 v36, v25, v33\nv_and_b32 v37, 31, v37\nv_lshl_add_u32 v37, v37, 8, v19")
    a("s_waitcnt lgkmcnt(0)\nv_and_b32 v35, v24, v34\nv_and_b32 v38, v36, v34\nv_cndmask_b32 v39, v38, v34, s[50:51]\nv_and_b32 v39, v39, v35\nv_cmp_ne_u32 s[48:49], 0, v39")
    a(f"s_andn2_b64 exec, exec, s[48:49]\nds_or_b32 v4, v35 offset:{L2_LU}\nds_or_b32 v25, v38\nv_cndmask_b32 v26, v26, v36, s[52:53]\nv_cndmask_b32 v27, v36, v27, s[52:53]")
    a("s_mov_b64 exec, s[48:49]\nds_write_b16 v37, v20\nv_and_b32 v24, v24, v33\nv_alignbit_b32 v20, v21, v20, 16\nv_lshrrev_b32 v21, 16, v21\nv_mov_b64 v[26:27], -1\nv_subrev_u32 v15, 1, v15")
    a("s_mov_b64 exec, vcc\nv_cmp_lt_u32 vcc, 0, v15\ns_add_u32 s67, s67, 1\ns_cmp_lt_u32 s67, 4096\ns_cbranch_scc1 K2_rd")
    a(f"s_mov_b64 exec, -1\nds_write_b32 v10, v12 offset:{L2_IRR}")
    a("K2_sd:\ns_mov_b64 exec, -1")
    a("s_waitcnt lgkmcnt(0)\ns_barrier"); a.st(13)
    a("s_cmp_ge_u32 s36, s41\ns_cbranch_scc1 K2_end")
    a(f"s_lshl_b32 s46, s36, 10\nv_add_u32 v11, s46, v19\nv_and_b32 v18, 31, v2\nv_lshl_add_u32 v18, v18, 2, v8")
    a(f"ds_read_b32 v16, v4 offset:{L2_LU}\nds_read_b32 v18, v18\nds_read2st64_b32 v[20:21], v11 offset0:0 offset1:1\nds_read2st64_b32 v[22:23], v11 offset0:2 offset1:3")
    a(f"s_lshl_b32 s47, s36, 9\ns_add_u32 s37, s37, s47\nv_lshl_add_u32 v12, v2, 2, s37\nds_read2st64_b32 v[24:25], v12 offset0:16 offset1:17")
    a(f"v_mov_b32 v13, 0xffff\nv_lshlrev_b32 v15, 4, v2\ns_add_u32 s61, s61, s36\ns_lshr_b32 s39, s61, 1\ns_lshl_b32 s39, s39, 10\ns_and_b32 s61, s61, 1\ns_lshl_b32 s61, s61, 3\ns_add_u32 s39, s39, s61\ns_add_u32 s39, s39, s68\ns_lshl_b32 s38, s36, 2\ns_mov_b32 s50, -1\ns_mov_b32 s51, 0\ns_waitcnt lgkmcnt(3)")
    a("v_lshrrev_b32 v16, s38, v16\nv_lshrrev_b32 v18, s38, v18")
    for t in range(4):
        a(f"v_and_b32 v26, {1 << t}, v18\nv_cmp_ne_u32 s[{52+2*t}:{53+2*t}], 0, v26")
    for r in range(52, 60): a(f"s_ff1_i32_b32 s{r}, s{r}\ns_and_b32 s{r}, s{r}, 31\ns_add_u32 s{r}, s{r}, {ZB}")
    a("s_waitcnt lgkmcnt(0)")
    for t in range(4):
        a(f"v_mov_b32 v26, s{52+2*t}\nv_mov_b32 v27, s{53+2*t}\nv_cndmask_b32 v26, v27, v26, s[50:51]\nv_and_b32 v27, {1 << t}, v16\nv_cmp_ne_u32 vcc, 0, v27\nv_cndmask_b32 v{20+t}, v{20+t}, v26, vcc")
    a("v_and_b32 v20, v13, v20\nv_and_b32 v22, v13, v22\nv_lshl_or_b32 v20, v21, 17, v20\nv_lshl_or_b32 v21, v23, 17, v22\nbuffer_store_dwordx2 v[20:21], v15, s[28:31], s39 offen sc1")
    a("s_add_u32 s36, s36, 8\ns_cmp_ge_u32 s36, s41\ns_cbranch_scc1 K2_end")
    a(f"v_mov_b32 v43, -1\ns_add_u32 s38, s38, 32\nv_subrev_u32 v5, s38, v5\nv_mov_b32 v14, {ZB | (ZB << 16)}")
    for h in range(2):
        a(f"v_cmp_lt_i32 vcc, {2*h}, v5\nv_cndmask_b32 v26, 0, v13, vcc\nv_cmp_lt_i32 vcc, {2*h+1}, v5\nv_cndmask_b32 v26, v26, v40, vcc".replace("v40", "v43"))
        a(f"v_bfi_b32 v{24+h}, v26, v{24+h}, v14\nv_and_b32 v26, 0xffff0000, v{24+h}\nv_add_u32 v{24+h}, v{24+h}, v26")
    a("s_add_u32 s39, s39, 4096\nbuffer_store_dwordx2 v[24:25], v15, s[28:31], s39 offen sc1\ns_branch K2_end")

def f2u(x): return struct.unpack('<I', struct.pack('<f', x))[0]
SCL = f2u(math.log2(math.e)/math.sqrt(128.0))
FO = lambda i: 16*(i & 1) + 8*(i >> 1)
def k2_weights(a):
    S0 = 66048
    a(f"s_sub_u32 s34, s2, {NWIN}")
    a(f"s_lshl_b32 s39, s34, 17\ns_lshl_b32 s60, s33, 13\ns_add_u32 s39, s39, s60\ns_add_u32 s39, s39, {WS_PM}\ns_add_u32 s60, s39, 4096\nv_lshlrev_b32 v8, 4, v2")
    for i in range(4): a(f"buffer_load_dwordx4 v[{80+4*i}:{83+4*i}], v8, s[28:31], s39 offen offset:{1024*i}\nbuffer_load_dwordx4 v[{96+4*i}:{99+4*i}], v8, s[28:31], s60 offen offset:{1024*i}")
    a("s_lshr_b32 s35, s33, 2\ns_and_b32 s36, s33, 3\nv_and_b32 v3, 31, v2\nv_lshrrev_b32 v4, 5, v2")
    a(f"v_lshlrev_b32 v7, 2, v0\ns_cmp_ge_u32 s33, 8\ns_cbranch_scc1 K2w_nw\ns_mov_b32 s3, {WS_WFR+WFR_SW+256}\nbuffer_load_dword v8, v7, s[28:31], s3 offen")
    a(f"v_add_u32 v7, {S0}, v7\ns_waitcnt vmcnt(0)\nds_write_b32 v7, v8\nK2w_nw:")
    a("s_waitcnt vmcnt(0) lgkmcnt(0)\ns_barrier")
    gwarm(a)
    for i in range(16): a(f"v_add_f32 v{80+i}, v{80+i}, v{96+i}")
    a(f"s_mul_i32 s39, s35, {32*516}\ns_lshl_b32 s60, s36, 7\ns_add_u32 s39, s39, s60\nv_mul_u32_u24 v6, {4*516}, v4\nv_lshl_add_u32 v6, v3, 2, v6\nv_add_u32 v6, s39, v6")
    a(f"s_add_u32 s60, s60, {S0}\nv_lshl_add_u32 v7, v3, 2, s60\nds_read_b32 v8, v7")
    for r in range(16): a(f"ds_write_b32 v6, v{80+r} offset:{(8*(r>>2)+(r&3))*516}")
    a("v_add_f32 v9, v80, v81")
    for r in range(2, 16): a(f"v_add_f32 v9, v9, v{80+r}")
    a("ds_add_f32 v7, v9 offset:1536\ns_waitcnt lgkmcnt(1)")
    for r in range(16): a(f"v_mul_f32 v{48+r}, v8, v{80+r}")
    for q in (80, 48):
        for i in range(8): a(f"v_add_f32_dpp v{q+i}, v{q+i}, v{q+i} row_ror:8 row_mask:0xf bank_mask:0x3")
        for i in range(8): a(f"v_add_f32_dpp v{q+i}, v{q+8+i}, v{q+8+i} row_ror:8 row_mask:0xf bank_mask:0xc")
        for i in range(4): a(f"v_add_f32_dpp v{q+i}, v{q+i}, v{q+i} row_half_mirror row_mask:0xf bank_mask:0x5")
        for i in range(4): a(f"v_add_f32_dpp v{q+i}, v{q+4+i}, v{q+4+i} row_half_mirror row_mask:0xf bank_mask:0xa")
        for i in range(4): a(f"v_add_f32_dpp v{q+i}, v{q+i}, v{q+i} quad_perm:[1,0,3,2] {DPPF}")
        for i in range(4): a(f"v_add_f32_dpp v{q+i}, v{q+i}, v{q+i} quad_perm:[2,3,0,1] {DPPF}")
        a(f"v_permlane16_swap_b32 v{q}, v{q+1}\nv_permlane16_swap_b32 v{q+2}, v{q+3}\nv_add_f32 v{q}, v{q}, v{q+1}\nv_add_f32 v{q+2}, v{q+2}, v{q+3}")
    a(f"v_bfe_u32 v10, v2, 2, 2\nv_lshlrev_b32 v10, 5, v10\nv_bfe_u32 v11, v2, 4, 1\nv_lshl_add_u32 v10, v11, 2, v10\nv_lshl_add_u32 v10, v4, 4, v10\ns_lshl_b32 s60, s35, 7\ns_add_u32 s60, s60, {S0}\nv_add_u32 v10, s60, v10")
    a("s_mov_b32 exec_lo, 0x11111111\ns_mov_b32 exec_hi, 0x11111111\nds_add_f32 v10, v80 offset:512\nds_add_f32 v10, v82 offset:520\nds_add_f32 v10, v48 offset:1024\nds_add_f32 v10, v50 offset:1032\ns_mov_b64 exec, -1")
    a("s_waitcnt lgkmcnt(0)"); a("s_barrier")
    a(f"v_lshlrev_b32 v5, 3, v2\nv_add_u32 v5, {S0}, v5\nds_read_b64 v[8:9], v5\nds_read_b64 v[10:11], v5 offset:512\nds_read_b64 v[12:13], v5 offset:1024\ns_waitcnt lgkmcnt(0)")
    a("v_add_f32 v8, v8, v9\nv_add_f32 v10, v10, v11\nv_add_f32 v12, v12, v13")
    for v in (8, 10, 12): a.red63('v_add_f32', v)
    a("v_readlane_b32 s60, v8, 63\nv_readlane_b32 s61, v10, 63\nv_readlane_b32 s62, v12, 63")
    a(f"s_mov_b32 s63, {f2u(1/128.)}\ns_mov_b32 s64, {f2u(-1/128.)}\ns_mov_b32 s65, {SCL}\nv_lshlrev_b32 v15, 4, v2")
    a(f"s_lshl_b32 s66, s33, 11\ns_lshl_b32 s67, s34, 15\ns_add_u32 s66, s66, s67\ns_add_u32 s66, s66, {WS_WFR}")
    a("s_lshr_b32 s35, s33, 1\ns_and_b32 s36, s33, 1\nv_and_b32 v3, 15, v2\nv_lshrrev_b32 v4, 4, v2")
    a("s_cmp_eq_u32 s34, 0\ns_cbranch_scc0 K2w_fb")
    a("v_and_b32 v5, 1, v3\nv_lshrrev_b32 v6, 2, v3\nv_lshl_or_b32 v5, v6, 1, v5\nv_bfe_u32 v6, v3, 1, 1\nv_lshl_or_b32 v5, v6, 4, v5")
    a("s_lshr_b32 s37, s35, 1\ns_lshl_b32 s37, s37, 5\ns_and_b32 s38, s35, 1\ns_lshl_b32 s38, s38, 3\ns_add_u32 s37, s37, s38\nv_add_u32 v5, s37, v5")
    a(f"v_lshlrev_b32 v7, 2, v5\nv_add_u32 v7, {S0}, v7\nds_read_b32 v14, v7 offset:512")
    a(f"s_lshl_b32 s37, s36, 8\nv_lshl_add_u32 v6, v4, 3, s37\nv_mul_u32_u24 v5, 516, v5\nv_add_u32 v5, v5, v6\nv_add_u32 v6, {S0+1536}, v6")
    for h in range(2):
        for i in range(4):
            a(f"ds_read2_b32 v[{16+16*h+2*i}:{17+16*h+2*i}], v5 offset0:{32*h+FO(i)} offset1:{32*h+FO(i)+1}")
            a(f"ds_read2_b32 v[{24+16*h+2*i}:{25+16*h+2*i}], v6 offset0:{32*h+FO(i)} offset1:{32*h+FO(i)+1}")
    a("v_mov_b32 v8, s61\nv_mul_f32 v8, s63, v8\ns_waitcnt lgkmcnt(0)\nv_sub_f32 v14, v8, v14\nv_mul_f32 v14, s63, v14")
    for h in range(2):
        for j in range(8):
            x = 16+16*h+j
            a(f"v_add_f32 v{x}, v{x}, v14\nv_fmac_f32 v{x}, s64, v{x+8}\nv_mul_f32 v{x}, s65, v{x}")
        for i in range(4): a(f"v_cvt_pk_bf16_f32 v{48+4*h+i}, v{16+16*h+2*i}, v{17+16*h+2*i}")
        a(f"buffer_store_dwordx4 v[{48+4*h}:{51+4*h}], v15, s[28:31], s66 offen offset:{1024*h}")
    a("s_branch K2w_end\nK2w_fb:")
    a("s_lshr_b32 s37, s35, 1\ns_lshl_b32 s37, s37, 7\ns_and_b32 s38, s35, 1\ns_lshl_b32 s38, s38, 2\ns_add_u32 s37, s37, s38\nv_lshl_add_u32 v5, v3, 3, s37")
    a(f"v_add_u32 v7, {S0+1536}, v5\nds_read_b32 v14, v7")
    a(f"s_mul_i32 s37, s36, {64*516}\nv_mul_u32_u24 v6, {2*516}, v4\nv_add3_u32 v5, v5, v6, s37")
    for h in range(2):
        for i in range(4):
            for c in range(2): a(f"ds_read_b32 v{16+8*h+2*i+c}, v5 offset:{(32*h+FO(i)+c)*516}")
    a("s_waitcnt lgkmcnt(0)")
    for h in range(2):
        for j in range(8): a(f"v_fmac_f32 v{16+8*h+j}, s64, v14")
        for i in range(4): a(f"v_cvt_pk_bf16_f32 v{48+4*h+i}, v{16+8*h+2*i}, v{17+8*h+2*i}")
        a(f"buffer_store_dwordx4 v[{48+4*h}:{51+4*h}], v15, s[28:31], s66 offen offset:{1024*h}")
    a("s_cmp_ge_u32 s33, 4\ns_cbranch_scc1 K2w_end")
    a("v_and_b32 v5, 3, v2\nv_max_u32 v7, 1, v5\nv_lshlrev_b32 v7, 9, v7\nv_lshl_add_u32 v7, v4, 3, v7")
    a(f"s_lshl_b32 s37, s33, 7\ns_add_u32 s37, s37, {S0-512}\nv_add_u32 v7, s37, v7")
    for i in range(4): a(f"ds_read2_b32 v[{16+2*i}:{17+2*i}], v7 offset0:{FO(i)} offset1:{FO(i)+1}")
    a("v_mov_b32 v8, s61\nv_mov_b32 v9, s62\nv_cmp_eq_u32 s[40:41], 2, v5\nv_cmp_eq_u32 s[42:43], 3, v5\nv_cmp_eq_u32 s[44:45], 0, v5")
    a("v_cndmask_b32 v8, 0, v8, s[40:41]\nv_cndmask_b32 v8, v8, v9, s[42:43]")
    a("s_waitcnt lgkmcnt(0)")
    for j in range(8): a(f"v_fmac_f32 v{16+j}, s64, v8\nv_cndmask_b32 v{16+j}, v{16+j}, 1.0, s[44:45]")
    for i in range(4): a(f"v_cvt_pk_bf16_f32 v{48+i}, v{16+2*i}, v{17+2*i}")
    a(f"s_lshl_b32 s37, s33, 10\ns_add_u32 s37, s37, {WS_WFR+WFR_E}\nbuffer_store_dwordx4 v[48:51], v15, s[28:31], s37 offen")
    a(f"v_mov_b32 v8, s60\ns_mov_b32 s37, {WS_WFR+WFR_SW}\ns_mov_b64 exec, 1\nbuffer_store_dword v8, v15, s[28:31], s37 offen")


NQ = 44; DEP = 2; NBUF = 3
QB = QN*4
L3_CNT = TB + GS; L3_SIZE = L3_CNT + 64
ACC, AOP, ADR, BUF, TMP, GK, DIS, IDX = 2, 6, 8, 12, 24, 26, 33, 40
SPIN = 1 << 20
LSC = lambda b: ('sc1', 'nt', 'sc1 nt', 'sc0 nt', 'sc0', '')[OPT['lnt'] if b == 2 else OPT['pnt']]
TSC = lambda: ('', ' nt', ' sc1', ' sc0 sc1', ' sc0', ' sc1 nt')[OPT['tsc']]
XP = 3
NL = NQ//2
def gwarm(a):
    if OPT['gw'] != 1: return
    a(f"s_mul_i32 s52, s18, {GS}\ns_mul_i32 s53, s16, {QB}\ns_add_u32 s52, s52, s53\ns_lshl_b32 s53, s20, 8\ns_add_u32 s52, s52, s53\ns_add_u32 s52, s52, {WS_G+KS}")
    a(f"v_lshlrev_b32 v126, 7, v2\ns_mov_b64 exec, 0x3fff\nbuffer_load_dword v127, v126, s[8:11], s52 offen\ns_mov_b64 exec, -1")
def tabledma(a, v16, sfx, part=3):
    base = lambda k: a(f"s_mul_i32 s53, s18, {GS}\ns_lshl_b32 s52, s19, 10\ns_add_u32 s53, s53, s52\ns_add_u32 s53, s53, {WS_G+k*1024}\ns_add_u32 s52, s52, {TB+k*1024}")
    def run(n):
        for i in range(n):
            if i == 3: a(f"s_cmp_ge_u32 s19, 2\ns_cbranch_scc1 K3_nt{sfx}")
            a(f"s_mov_b32 m0, s52\nbuffer_load_dwordx4 v{v16}, s[8:11], s53 offen{NT(16)} lds")
            if i < n-1: a("s_add_u32 s52, s52, 16384\ns_add_u32 s53, s53, 16384")
    if part & 2: base(50); run(3)
    if not part & 1: return
    base(0); run(4)
    a(f"K3_nt{sfx}:")
    a(f"s_mul_i32 s52, s16, 98\ns_add_u32 s52, s52, s20\ns_lshl_b32 s52, s52, 8\ns_add_u32 s52, s52, {WS_DISP}\nv_lshlrev_b32 v{v16}, 2, v2")
    for i in range(7): a(f"buffer_load_dword v{DIS+i}, v{v16}, s[8:11], s52 offen offset:{i*256}")
    a(f"v_mul_u32_u24 v{v16}, 24, v2\nv_mov_b32 v45, 364\nv_cmp_eq_u32 vcc, 15, v2\nv_cndmask_b32 v{v16}, v{v16}, v45, vcc\ns_mul_i32 s52, s16, 392\ns_add_u32 s52, s52, {WS_TQ}\ns_mov_b64 exec, 0xffff")
    a(f"buffer_load_dwordx4 v[120:123], v{v16}, s[8:11], s52 offen\nbuffer_load_dwordx3 v[124:126], v{v16}, s[8:11], s52 offen offset:16\ns_mov_b64 exec, -1")
def k3(a):
    global XP
    XP = OPT['xp']
    name = 'hop_kernel'
    a.launch(name, 256, 1024, L3_SIZE)
    a.begin(name)
    a("s_cmp_ge_u32 s2, 256\ns_cbranch_scc1 K3_end")
    a.st_init()
    a("s_load_dwordx2 s[4:5], s[0:1], 88")
    a("v_lshrrev_b32 v1, 6, v0\nv_and_b32 v2, 63, v0\nv_readfirstlane_b32 s19, v1")
    a("s_lshr_b32 s16, s2, 3\ns_and_b32 s16, s16, 3\ns_and_b32 s17, s2, 7\ns_lshl_b32 s17, s17, 3\ns_lshr_b32 s18, s2, 5\ns_or_b32 s18, s18, s17")
    a("s_mul_i32 s20, s19, 6\ns_cmp_eq_u32 s19, 15\ns_cselect_b32 s20, 91, s20\ns_cmp_ge_u32 s19, 14\ns_cselect_b32 s21, 7, 6\ns_mov_b32 s33, s19")
    a("s_waitcnt lgkmcnt(0)")
    a.srd(8, 4, WS_SIZE); a.srd(28, 4, WS_SIZE)
    def ids():
        a("s_getreg_b32 s50, hwreg(HW_REG_XCC_ID)\ns_and_b32 s50, s50, 0xff\ns_add_u32 s50, s50, 1")
        a(f"s_mul_i32 s51, s18, {FGS}\ns_add_u32 s51, s51, {WS_FLAGS}")
    a("s_cmp_lg_u32 s19, 15\ns_cbranch_scc1 K3_nox"); ids()
    a(f"s_lshl_b32 s52, s16, 2\ns_add_u32 s52, s52, s51\nv_mov_b32 v4, s50\nv_mov_b32 v6, 0\nv_mov_b32 v7, {L3_CNT}\ns_mov_b64 exec, 1")
    a("buffer_store_dword v4, v6, s[8:11], s52 offen offset:2048 sc1\nds_write_b32 v7, v6\ns_mov_b64 exec, -1\nK3_nox:")
    a(f"s_cmp_ge_u32 s2, {NWIN+2}\ns_cbranch_scc1 K2_idle\ns_cmp_ge_u32 s2, {NWIN}\ns_cbranch_scc1 K2_wts")
    k2_window(a)
    a(f"K2_end:\ns_mov_b64 exec, -1\ns_waitcnt vmcnt(0) lgkmcnt(0)\ns_barrier\ns_cmp_lg_u32 s19, 0\ns_cbranch_scc1 K2_lo\nv_mov_b32 v10, 0\nds_read_b32 v4, v10 offset:{L2_IRR}")
    a(f"s_lshl_b32 s52, s2, 7\ns_add_u32 s52, s52, {WS_WDN}\ns_mov_b64 exec, 1\ns_waitcnt lgkmcnt(0)\nv_add_u32 v4, 1, v4\nbuffer_store_dword v4, v10, s[8:11], s52 offen sc1\ns_mov_b64 exec, -1\nK2_lo:\nv_lshlrev_b32 v44, 4, v2"); tabledma(a, 44, 'a', 1); a("s_branch K3_join")
    a("K2_wts:")
    k2_weights(a)
    a("K2w_end:\ns_mov_b64 exec, -1\ns_waitcnt lgkmcnt(0)\ns_barrier\ns_branch K2_tab\nK2_idle:"); gwarm(a)
    if OPT['cpf'] & 2:
        a("s_cmp_eq_u32 s19, 15\ns_cbranch_scc0 K2_tab\nv_lshlrev_b32 v3, 2, v2"); a.codepf('K3_join', 'K3_end', 3, 4, 52, 127)
    a("K2_tab:\nv_lshlrev_b32 v44, 4, v2"); tabledma(a, 44, 'b')
    if OPT['gw'] >= 2:
        a(f"s_cmp_lt_u32 s2, 200\ns_cbranch_scc1 K3_join\ns_cmp_ge_u32 s19, 14\ns_cbranch_scc1 K3_join\ns_lshr_b32 s52, s2, 3\ns_sub_u32 s52, s52, 25\ns_mul_i32 s52, s52, {896*128}\ns_and_b32 s53, s2, 7\ns_mul_i32 s53, s53, {8*GS}")
        a(f"s_add_u32 s52, s52, s53\ns_add_u32 s52, s52, {WS_G+KS}\nv_lshlrev_b32 v126, 7, v0")
        if OPT['gw'] == 2: a("s_waitcnt vmcnt(0)")
        a("buffer_load_dword v127, v126, s[8:11], s52 offen")
    a("K3_join:"); a.st(1); ids()
    a("s_mul_i32 s48, s16, 98\ns_add_u32 s48, s48, s20")
    a(f"s_lshl_b32 s49, s48, 2\ns_add_u32 s49, s49, {WS_TQ}\ns_buffer_load_dwordx8 s[40:47], s[8:11], s49")
    a(f"v_mov_b32 v5, v2\nv_lshlrev_b32 v0, 2, v5\nv_lshlrev_b32 v8, 4, v5\ns_mul_i32 s39, s18, {GS}\ns_add_u32 s39, s39, {WS_G}")
    a(f"s_lshl_b32 s69, s16, 4\ns_add_u32 s69, s69, s19\ns_mul_i32 s69, s69, {RS}\ns_add_u32 s69, s69, {WS_IDX}")
    def idxld(p, va=8):
        if p and p % 4 == 0: a("s_add_u32 s69, s69, 4096")
        a(f"buffer_load_dwordx4 v[{IDX+4*p}:{IDX+4*p+3}], v{va}, s[8:11], s69 offen offset:{(p&3)*1024}{NT(8)}")
    a("s_waitcnt lgkmcnt(0)")
    a("s_cmp_eq_u32 s21, 7\ns_cselect_b32 s46, s46, 0")
    for i in range(1, 7): a(f"s_add_u32 s{40+i}, s{40+i}, s{39+i}")
    a(f"s_min_u32 s47, s46, {NQ}\ns_sub_u32 s28, s47, {DEP+1}\ns_mov_b64 s[32:33], 0")
    for i in range(7): a(f"s_sub_u32 s{40+i}, s{40+i}, 1\ns_bitset1_b64 s[32:33], s{40+i}")
    a("s_add_u32 s52, s28, 1\ns_lshr_b64 s[34:35], s[32:33], s52\ns_mov_b64 s[24:25], s[32:33]\ns_bitset1_b64 s[24:25], s28")
    def wpoll(sfx):
        a(f"K3_wp{sfx}:\nbuffer_load_dword v4, v6, s[8:11], s52 offen sc1\ns_waitcnt vmcnt(0)\nv_cmp_eq_u32 vcc, 0, v4\ns_cbranch_vccz K3_wd{sfx}\ns_add_u32 s64, s64, 1\ns_cmp_gt_u32 s64, {SPIN}\ns_cbranch_scc1 K3_wd{sfx}\ns_sleep {OPT['slw']}\ns_branch K3_wp{sfx}\nK3_wd{sfx}:")
    a(f"s_mov_b32 s64, 0\ns_mul_i32 s52, s16, {49*128}\ns_add_u32 s52, s52, {WS_WDN}")
    if OPT['pw']:
        a("v_add_u32 v6, s20, v5\nv_mov_b32 v7, v6")
        for x, y in SWAPS:
            for p, q in ((x, y), (y, x)): a(f"v_mov_b32 v9, {q}\nv_cmp_eq_u32 vcc, {p}, v6\nv_cndmask_b32 v7, v7, v9, vcc")
        a("v_lshrrev_b32 v7, 1, v7\nv_lshlrev_b32 v6, 7, v7\ns_bfm_b64 exec, s21, 0"); wpoll('a'); a("s_mov_b64 exec, -1")
    a(f"s_waitcnt vmcnt(0)\nv_add3_u32 v{BUF}, v120, v121, v122\nv_add3_u32 v{BUF}, v{BUF}, v123, v124\nv_add_u32 v{BUF}, v{BUF}, v125\ns_mov_b64 exec, 0xc000\nv_add_u32 v{BUF}, v{BUF}, v126\ns_mov_b64 exec, -1")
    if OPT['pw']:
        for p in range(XP+1): idxld(p)
    a("s_cmp_lg_u32 s19, 0\ns_cbranch_scc1 K3_nw\nv_lshlrev_b32 v6, 5, v0\ns_mov_b32 exec_hi, 0x1ffff"); wpoll('b')
    a(f"v_cmp_ne_u32 vcc, 1, v4\ns_cmp_lg_u64 vcc, 0\ns_cselect_b32 s52, 1, 0\nv_mov_b32 v4, s52\nv_mov_b32 v6, {L3_CNT}\nds_write_b32 v6, v4 offset:4\ns_mov_b64 exec, -1\nK3_nw:")
    a(f"s_waitcnt lgkmcnt(0)"); a.st(2); a("s_barrier"); a.st(3)
    if not OPT['pw']:
        for p in range(XP+1): idxld(p)
    a(f"s_lshl_b32 m0, s48, 8\nv_mov_b32 v6, {L3_CNT}\nds_read_b32 v{BUF+7}, v6 offset:4")
    for i in range(7): a(f"ds_read_addtid_b32 v{GK+i} offset:{TB+i*256}")
    a(f"buffer_load_dword v{TMP}, v0, s[8:11], s51 offen offset:2048 sc1")
    LA = OPT['la']; LD = {}; nxt = XP+1
    def late(lo, hi):
        if hi > lo: a(f"v_lshlrev_b32 v{TMP+1}, 2, v0")
        for p in range(lo, hi): a(f"s_cmp_gt_u32 s47, {2*p}\ns_cselect_b64 exec, -1, 1"); idxld(p, TMP+1)
        a("s_mov_b64 exec, -1")
    late(nxt, nxt+LA); nxt += LA
    for p in range(0, NQ, 4):
        if p < NQ-DEP-1: LD[p] = (nxt, min(nxt+2, NL)); nxt = LD[p][1]
    EM = sum(1 << p for p in LD)
    a(f"s_mov_b64 s[88:89], s[24:25]\ns_or_b32 s24, s24, {EM & 0xffffffff}\ns_or_b32 s25, s25, {EM >> 32}")
    issued = lambda p: max([XP+1+LA] + [hi for q, (lo, hi) in LD.items() if q < p])
    tb = 32; lb = 2; TBS_ = TOS
    a(f"v_lshrrev_b32 v1, {1+lb}, v5\nv_mul_u32_u24 v1, {TBS_}, v1\nv_and_b32 v4, {(2 << lb)-1}, v5\nv_lshl_add_u32 v1, v4, 4, v1\nv_and_b32 v4, 3, v5")
    a(f"v_cmp_eq_u32 s[54:55], 0, v4\nv_cmp_eq_u32 s[56:57], 1, v4\nv_mov_b32 v2, 0x3f80\nv_mov_b32 v3, 0x3f800000")
    a(f"v_cndmask_b32 v{AOP}, 0, v2, s[54:55]\nv_cndmask_b32 v{AOP}, v{AOP}, v3, s[56:57]\nv_mov_b32 v{AOP+1}, v{AOP}")
    for i in range(4): a(f"v_mov_b32 v{ACC+i}, 0")
    a("s_lshl_b32 s52, s19, 7\ns_add_u32 s65, s52, s51")
    a("s_lshl_b32 s58, s16, 2\ns_add_u32 s58, s58, s65")
    a(f"s_lshl_b32 s59, s20, 8\ns_mul_i32 s60, s16, {QB}\ns_add_u32 s60, s60, s59")
    a(f"s_mul_i32 s61, s48, {(64//tb)*TBS_}\ns_lshl_b32 s52, s18, {5+lb}\ns_add_u32 s61, s61, s52\ns_add_u32 s61, s61, {WS_TOK}")
    for r in range(1, 4): a(f"s_add_u32 s52, s16, {r}\ns_and_b32 s52, s52, 3\ns_mul_i32 s52, s52, {QB}\ns_add_u32 s{65+r}, s52, s59")
    a(f"s_mov_b32 s22, 1")
    def ad1(p, h):
        r = IDX+2*p+(h >> 1)
        a(f"v_lshrrev_b32 v{ADR+h}, 15, v{r}" if h & 1 else f"v_lshlrev_b32_sdwa v{ADR+h}, 2, v{r} {SD} src1_sel:WORD_0")
    def adr(p):
        for h in range(4): ad1(p, h)
    def rd(p):
        for h in range(4): a(f"ds_read_b32 v{BUF+4*(p%NBUF)+h}, v{ADR+h} offset:{TB}")
    def mf(p, h):
        b = BUF+4*(p%NBUF)+2*h
        if OPT['exp'] & 2: return
        a(f"v_mfma_f32_4x4x4_16b_bf16 v[{ACC}:{ACC+3}], v[{AOP}:{AOP+1}], v[{b}:{b+1}], v[{ACC}:{ACC+3}]")
    def vw(p): pass
    CALL = "s_swappc_b64 s[30:31], s[26:27]"
    T0, T1 = TMP, TMP+1
    a(f"s_mov_b64 exec, 15\ns_waitcnt vmcnt({LA})\nK3_xp:\nv_cmp_eq_u32 vcc, 0, v{TMP}\ns_cbranch_vccz K3_xb\ns_add_u32 s64, s64, 1\ns_cmp_gt_u32 s64, {SPIN}\ns_cbranch_scc1 K3_xb")
    a(f"buffer_load_dword v{TMP}, v0, s[8:11], s51 offen offset:2048 sc1\ns_waitcnt vmcnt(0)\ns_branch K3_xp\nK3_xb:")
    a(f"v_cmp_ne_u32 vcc, s50, v{TMP}\ns_cmp_lg_u64 vcc, 0\ns_cselect_b32 s23, 1, 0\ns_mov_b64 exec, -1")
    a("s_mov_b64 exec, 0xffff")
    a(f"s_waitcnt lgkmcnt(0)\nv_lshl_add_u32 v{BUF}, v{BUF+7}, 8, v{BUF}\nv_cmp_lt_u32 vcc, {NQ}, v{BUF}\ns_cmp_lg_u64 vcc, 0\ns_cselect_b32 s29, 1, {OPT['slow']}\ns_mov_b64 exec, -1")
    a("s_getpc_b64 s[40:41]\nK3_pc:\ns_add_u32 s40, s40, K3_fl0_0-K3_pc\ns_addc_u32 s41, s41, 0\ns_mul_i32 s42, s23, K3_fl1_0-K3_fl0_0\ns_mov_b32 s43, K3_fl2_0-K3_fl0_0")
    a(f"s_add_u32 s45, s39, {KS}\ns_waitcnt lgkmcnt(0)")
    if OPT['exp'] & 4:
        a("s_waitcnt vmcnt(0)\nv_lshrrev_b32 v24, 2, v0\nv_lshl_or_b32 v24, v24, 17, v24")
        for p in range(2*NQ): a(f"v_add_u32 v{IDX+p}, {(p*64) | (p*64+64*99) << 17}, v24")
    a("K3_hop:")
    a(f"s_mov_b32 s52, s39\ns_mov_b32 s39, s45\ns_add_u32 s53, s39, {KS}\ns_cmp_eq_u32 s23, 0\ns_cselect_b32 s45, s52, s53")
    a(f"s_add_u32 s61, s61, {tb*256}\ns_add_u32 s37, s39, s60")
    assert not OPT['px']
    a("s_cmp_eq_u32 s22, 7\ns_cselect_b32 s42, s43, s42\ns_add_u32 s26, s40, s42\ns_addc_u32 s27, s41, 0")
    if OPT['prio'] == 1: a("s_cmp_ge_u32 s19, 8\ns_cbranch_scc1 K3_p2\ns_setprio 3\ns_branch K3_p3\nK3_p2:\ns_setprio 2\nK3_p3:")
    if OPT['prio'] in (2, 4, 5, 6, 7): a("s_setprio 3")
    if OPT['prio'] == 3: a("s_setprio 1")
    a("s_cmp_lg_u32 s29, 0\ns_cbranch_scc1 K3_slow")
    for p in range(DEP): adr(p); rd(p)
    adr(DEP)
    def tok(part):
        if OPT['exp'] & 8: return
        if part == 0: a(f"buffer_store_dwordx4 v[{GK}:{GK+3}], v1, s[8:11], s38 offen{TSC()}")
        if part == 1:
            a(f"v_lshrrev_b32 v{T0}, {4+lb}, v0\nv_mul_u32_u24 v{T0}, {TBS_}, v{T0}\nv_and_b32 v{T1}, {(16 << lb)-4}, v0\nv_lshl_add_u32 v{T0}, v{T1}, 1, v{T0}\ns_add_u32 s38, s38, {(256//tb)*TBS_}")
            a(f"buffer_store_dwordx2 v[{GK+4}:{GK+5}], v{T0}, s[8:11], s38 offen{TSC()}")
        if part == 2:
            l = a.lab('K3_t')
            a(f"s_cmp_eq_u32 s21, 7\ns_cbranch_scc0 {l}\nv_lshrrev_b32 v{T0}, {5+lb}, v0\nv_mul_u32_u24 v{T0}, {TBS_}, v{T0}\nv_and_b32 v{T1}, {(32 << lb)-4}, v0\nv_add_u32 v{T0}, v{T0}, v{T1}\ns_add_u32 s38, s38, {(128//tb)*TBS_}")
            a(f"buffer_store_dword v{GK+6}, v{T0}, s[8:11], s38 offen{TSC()}\n{l}:")
    a(f"s_sub_u32 s38, s61, {tb*256}"); tok(0)
    if OPT['cpf'] & 4:
        a("s_cmp_eq_u32 s22, 7\ns_cbranch_scc0 K3_npf\ns_cmp_eq_u32 s19, 0\ns_cbranch_scc0 K3_npf"); a.codepf('att_kernel', 'K4_end', 0, T0, 52, ACC+3); a("K3_npf:")
    for p in range(NQ-DEP):
        rd(p+DEP); a(f"s_waitcnt lgkmcnt({4*DEP})"); mf(p, 0)
        if p+DEP+1 < NQ:
            vw(p+DEP+1)
            ad1(p+DEP+1, 0); ad1(p+DEP+1, 1); mf(p, 1); ad1(p+DEP+1, 2); ad1(p+DEP+1, 3)
        else: mf(p, 1)
        if OPT['prio'] == 2 and p in (9, 18, 27): a(f"s_setprio {2 - (9, 18, 27).index(p)}")
        if OPT['prio'] == 1 and p in (11, 23): a(f"s_cmp_ge_u32 s19, 8\ns_cbranch_scc0 K3_q{p}\ns_setprio {1 if p == 11 else 0}\nK3_q{p}:")
        a(f"s_bitcmp1_b64 s[24:25], {p}\ns_cbranch_scc1 K3_st{p}\nK3_bk{p}:")
    a("s_endpgm")
    for p in range(NQ-DEP):
        a(f"K3_st{p}:")
        if p in LD: a(f"s_cmp_eq_u32 s22, 1\ns_cbranch_scc0 K3_nl{p}"); late(*LD[p]); a(f"s_waitcnt vmcnt({LD[p][1] - 1 - min((p+4+DEP+1)//2, NL-1)})\nK3_nl{p}:")
        a(f"s_bitcmp1_b64 s[32:33], {p}\ns_cbranch_scc0 K3_nf{p}\n{CALL}\nK3_nf{p}:")
        a(f"s_cmp_eq_u32 s28, {p}\ns_cbranch_scc1 K3_dr{(p+1)%NBUF}\ns_branch K3_bk{p}")
    for r in range(NBUF):
        a(f"K3_dr{r}:")
        for i in range(DEP):
            a(f"s_waitcnt lgkmcnt({4*(DEP-1-i)})"); mf(r+i, 0); mf(r+i, 1)
            if i < DEP-1: a(f"s_bitcmp1_b32 s34, {i}\ns_cbranch_scc0 K3_dn{r}_{i}\n{CALL}\nK3_dn{r}_{i}:")
            else: a(f"{CALL}\ns_branch K3_hend")
    for m in range(3):
        for l in range(7):
            tg = m == 0 and OPT['px']; sc = ' sc1' if m else NT(4)
            a(f".p2align 7\nK3_fl{m}_{l}:\ns_add_u32 s26, s26, 128\ns_addc_u32 s27, s27, 0")
            if tg and l >= 5:
                a(f"s_cmp_eq_u32 s22, 1\ns_cbranch_scc0 K3_nz{l}\ns_waitcnt vmcnt(0)\nK3_nz{l}:")
            PR = {4: {1: 2, 3: 1, 4: 0}, 5: {0: 2, 2: 1, 4: 0}, 6: {2: 2, 3: 1, 4: 0}, 7: {1: 2, 2: 1, 3: 0}}.get(OPT['prio'], {})
            if l in PR: a(f"s_setprio {PR[l]}")
            if l in (1, 2): tok(l)
            if m == 0 and l == 0 and OPT['wb6']:
                a(f"s_cmp_lt_u32 s22, {OPT['wb6']}\ns_cbranch_scc1 K3_nwc\ns_cmp_lg_u32 s19, 0\ns_cbranch_scc1 K3_nwc\ns_cmp_ge_u32 s2, 8\ns_cbranch_scc1 K3_nwc\nbuffer_wbl2 sc1\nK3_nwc:")
            if m == 2 and l == OPT['wb'] - 1:
                a(f"s_cmp_lg_u32 s19, {OPT['wbw']}\ns_cbranch_scc1 K3_nwb\ns_cmp_ge_u32 s2, 8\ns_cbranch_scc1 K3_nwb\nbuffer_wbl2 sc1\nK3_nwb:")
            a(f"v_mul_f32 v{T0}, v{DIS+l}, v{ACC}\nv_mul_f32 v{T1}, v{DIS+l}, v{ACC+1}\nv_mov_b64 v[{ACC}:{ACC+1}], 0")
            if tg: a(f"v_add_u32 v{T0}, s47, v{T0}\nv_cvt_pk_bf16_f32 v{T1}, v{T1}, v{T1}\nv_perm_b32 v{T0}, v{T1}, v{T0}, s63\nv_bfi_b32 v{GK+l}, 1, s46, v{T0}")
            else: a(f"v_cvt_pk_bf16_f32 v{GK+l}, v{T0}, v{T1}")
            if m < 2 and l == 3: a(f"v_lshlrev_b32 v{T0}, 2, v0\nbuffer_store_dwordx4 v[{GK}:{GK+3}], v{T0}, s[8:11], s37 offen{sc}")
            if m < 2 and l == 5: a(f"v_lshlrev_b32 v{T0}, 1, v0\nbuffer_store_dwordx2 v[{GK+4}:{GK+5}], v{T0}, s[8:11], s37 offen offset:1024{sc}")
            if m < 2 and l == 6: a(f"buffer_store_dword v{GK+6}, v0, s[8:11], s37 offen offset:1536{sc}")
            if tg and l in (0, 4):
                a(f"s_cmp_eq_u32 s22, 1\ns_cbranch_scc0 K3_nc{l}\nv_mov_b32 v{T1}, 0")
                for x in ((0, 1, 2), (3, 4, 5, 6))[l >> 2]:
                    if x == 6: a(f"s_cmp_eq_u32 s21, 7\ns_cselect_b32 s36, s36, {WS_SIZE}")
                    a(f"buffer_store_dword v{T1}, v0, s[8:11], s36 offen offset:{x*256}")
                a(f"K3_nc{l}:")
            a("s_setpc_b64 s[30:31]")
            a(f".if (. - K3_fl{m}_{l}) > 128\n.error \"flush too long\"\n.endif")
    AC0 = 0
    a(f"K3_slow:\ns_load_dwordx4 s[72:75], s[0:1], 8\ns_sub_u32 s38, s61, {tb*256}"); tok(0)
    a(f"s_lshl_b32 s52, s20, 9\ns_add_u32 s52, s52, {AC0}\nv_lshl_add_u32 v8, v0, 1, s52\nv_mov_b32 v10, 0\nv_mov_b32 v11, 0")
    for l in range(6): a(f"ds_write_b64 v8, v[10:11] offset:{l*512}")
    a("s_cmp_eq_u32 s21, 7\ns_cbranch_scc0 K3_s6\nds_write_b64 v8, v[10:11] offset:3072\nK3_s6:\ns_waitcnt lgkmcnt(0)")
    a.srd(76, 72, E*4); a.srd(80, 74, E*4)
    a(f"s_barrier\ns_lshl_b32 s52, s19, 8\ns_mul_i32 s53, s16, {QN}\ns_mov_b32 s54, {WS_NEWID}")
    a("K3_sl:\nbuffer_load_dword v12, v0, s[76:79], s52 offen\nbuffer_load_dword v13, v0, s[80:83], s52 offen\nv_add_u32 v14, s52, v0\ns_waitcnt vmcnt(0)\nv_lshlrev_b32 v12, 1, v12\nv_lshlrev_b32 v13, 1, v13")
    a("buffer_load_ushort v12, v12, s[8:11], s54 offen\nbuffer_load_ushort v13, v13, s[8:11], s54 offen\ns_waitcnt vmcnt(0)\nv_lshlrev_b32 v12, 2, v12\nds_read_b32 v12, v12 offset:" + str(TB) + "\nv_subrev_u32 v13, s53, v13")
    a(f"v_cmp_gt_u32 vcc, {E*4}, v14\ns_mov_b64 exec, vcc\nv_cmp_gt_u32 vcc, {QN}, v13\ns_mov_b64 exec, vcc\nv_lshlrev_b32 v13, 3, v13\nv_add_u32 v13, {AC0}, v13\ns_waitcnt lgkmcnt(0)")
    a(f"v_lshlrev_b32 v15, 16, v12\nv_and_b32 v12, 0xffff0000, v12\nds_add_f32 v13, v15\nds_add_f32 v13, v12 offset:4\ns_mov_b64 exec, -1\ns_add_u32 s52, s52, 4096\ns_cmp_lt_u32 s52, {E*4}\ns_cbranch_scc1 K3_sl")
    a("s_waitcnt lgkmcnt(0)\ns_barrier")
    for l in range(7):
        if l == 6: a("s_cmp_eq_u32 s21, 7\ns_cbranch_scc0 K3_hend")
        a(f"ds_read_b64 v[{ACC}:{ACC+1}], v8 offset:{l*512}\ns_waitcnt lgkmcnt(0)\n{CALL}")
    a("K3_hend:"); a.st(4)
    if OPT['stamp'] in (1, 2): a("s_cmp_eq_u32 s22, 1\ns_cselect_b32 s80, s74, s80\ns_cselect_b32 s74, 0, s74")
    a("s_mov_b64 s[24:25], s[88:89]\ns_cmp_eq_u32 s22, 7\ns_cbranch_scc1 K3_fin")
    if OPT['prio']: a(f"s_setprio {OPT['wprio']}")
    a(f"v_mov_b32 v{T0}, s22\nv_mov_b32 v{T1}, 1\nv_mov_b32 v{ACC}, {L3_CNT}\ns_mov_b64 exec, 1\nds_add_u32 v{ACC}, v{T1}")
    if OPT['px']: a("s_cmp_gt_u32 s22, 1\ns_cselect_b32 s52, s23, 1\ns_cmp_eq_u32 s52, 0\ns_cbranch_scc1 K3_px")
    a("s_waitcnt vmcnt(0)"); a.st(5)
    a("s_cmp_eq_u32 s23, 0\ns_cbranch_scc0 K3_g1")
    a(f"buffer_store_dword v{T0}, v0, s[8:11], s58 offen\ns_branch K3_g2\nK3_g1:\nbuffer_store_dword v{T0}, v0, s[8:11], s58 offen sc1\nK3_g2:")
    a(f"s_mov_b64 exec, 15")
    NPL = OPT['npl']
    PL = lambda i: f"buffer_load_dword v{BUF+i}, v0, s[8:11], s65 offen {LSC(1)}"
    for i in range(NPL-1): a(PL(i) + f"\ns_sleep {OPT['slg']}")
    a(f"K3_poll:\ns_add_u32 s64, s64, 1\ns_cmp_gt_u32 s64, {SPIN}\ns_cbranch_scc1 K3_pb")
    for i in range(NPL):
        a(PL((i+NPL-1) % NPL) + f"\ns_waitcnt vmcnt({NPL-1})\nv_cmp_gt_u32 vcc, s22, v{BUF+i}\ns_cbranch_vccz K3_pb\ns_sleep {OPT['slg']}")
    a("s_branch K3_poll\nK3_pb:")
    X = AOP+1; AR = (14, 18, 2); B1 = (22, 23, T1)
    a(f"K3_px:\ns_mov_b64 exec, -1\nv_lshlrev_b32 v{T0}, 1, v0")
    for r in range(3): a(f"s_add_u32 s{53+r}, s{66+r}, s39")
    a(f"K3_pA:\nv_lshlrev_b32 v{X}, 2, v0")
    for r in range(3): a(f"buffer_load_dwordx4 v[{AR[r]}:{AR[r]+3}], v{X}, s[8:11], s{53+r} offen {LSC(2)}")
    a("K3_pB:")
    for r in range(3): a(f"buffer_load_dwordx2 v[{8+2*r}:{9+2*r}], v{T0}, s[8:11], s{53+r} offen offset:1024 {LSC(2)}")
    a("s_cmp_eq_u32 s21, 7\ns_cbranch_scc0 K3_p6")
    for r in range(3): a(f"buffer_load_dword v{B1[r]}, v0, s[8:11], s{53+r} offen offset:1536 {LSC(2)}")
    a("K3_p6:")
    if OPT['px']:
        def chk(rs, first=True):
            for i, r in enumerate(rs): a(f"v_xor_b32 v{X}, s62, v{r}" if (first and i == 0) else f"v_bitop3_b32 v{X}, v{X}, v{r}, s62 bitop3:0xf6")
        a("s_cmp_eq_u32 s35, 2\ns_cbranch_scc1 K3_pD\ns_waitcnt vmcnt(0)\ns_cmp_eq_u32 s35, 1\ns_cbranch_scc1 K3_pC")
        chk(list(range(14, 22)) + [2, 3, 4, 5])
        a(f"v_and_b32 v{X}, 1, v{X}\nv_cmp_ne_u32 vcc, 0, v{X}\ns_cbranch_vccz K3_pE\ns_add_u32 s64, s64, 1\ns_cmp_gt_u32 s64, {SPIN}\ns_cbranch_scc1 K3_pD\ns_sleep {OPT['slp']}\ns_branch K3_pA\nK3_pE:\ns_mov_b32 s35, 1\nK3_pC:")
        chk(range(8, 14)); a("s_cmp_eq_u32 s21, 7\ns_cbranch_scc0 K3_p7"); chk(B1, False); a("K3_p7:")
        a(f"v_and_b32 v{X}, 1, v{X}\nv_cmp_ne_u32 vcc, 0, v{X}\ns_cbranch_vccz K3_pD\ns_add_u32 s64, s64, 1\ns_cmp_gt_u32 s64, {SPIN}\ns_cbranch_scc1 K3_pD\ns_sleep {OPT['slp']}\ns_branch K3_pB")
    a("K3_pD:"); a.st(10 if False else 7)
    a(f"s_lshl_b32 s52, s22, 4\nv_mov_b32 v{T0}, {L3_CNT}\ns_mov_b64 exec, 1\nK3_aw:\nds_read_b32 v{X}, v{T0}\ns_waitcnt lgkmcnt(0)\nv_readfirstlane_b32 s53, v{X}\ns_cmp_ge_u32 s53, s52\ns_cbranch_scc1 K3_ad\ns_add_u32 s64, s64, 1\ns_cmp_gt_u32 s64, {SPIN}\ns_cbranch_scc1 K3_ad\ns_sleep {OPT['sll']}\ns_branch K3_aw\nK3_ad:\ns_mov_b64 exec, -1"); a.st(6)
    a("s_mov_b32 m0, s60")
    for i in range(6): a(f"ds_write_addtid_b32 v{GK+i} offset:{TB+i*256}")
    a(f"s_cmp_eq_u32 s21, 7\ns_cbranch_scc0 K3_w6\nds_write_addtid_b32 v{GK+6} offset:{TB+1536}\ns_waitcnt vmcnt(0)")
    for r in range(3): a(f"s_mov_b32 m0, s{66+r}\nds_write_addtid_b32 v{B1[r]} offset:{TB+1536}")
    a("K3_w6:")
    for r in range(3):
        a(f"s_mov_b32 m0, s{66+r}\ns_waitcnt vmcnt({5-r})")
        for i in range(4): a(f"ds_write_addtid_b32 v{AR[r]+i} offset:{TB+i*256}")
    for r in range(3):
        a(f"s_mov_b32 m0, s{66+r}\ns_waitcnt vmcnt({2-r})")
        for i in range(2): a(f"ds_write_addtid_b32 v{8+2*r+i} offset:{TB+1024+i*256}")
    a(f"v_mov_b32 v{X}, v{AOP}")
    for i in range(4): a(f"v_mov_b32 v{ACC+i}, 0")
    a(f"s_add_u32 s22, s22, 1\ns_waitcnt vmcnt(0) lgkmcnt(0)"); a.st(8); a("s_barrier"); a.st(9)
    a("s_branch K3_hop")
    a("K3_fin:")
    a("s_mov_b32 s38, s61"); tok(0); tok(1); tok(2); a.st_out(2, 8, 's19', 10)
    a("K3_end:\ns_endpgm")
    a.end(name, 128, 102)

import sched
L4_E = 131072; L4_SCR = L4_E + 8192; L4_SIZE = L4_SCR + 4096
TK = 16; QQ = 48; AL = 64; TA = 76; WF = 80; NWF = 2; IB = 88; SV = (100, 101); AC = 104; PK = 136; SS = 152; ZS = 160; ZD = 164; OO = 168; CT = 232; VM = 238; PA = 240; RL = 244; EA = (248, 96); PM = (252, 254)
EPS = f2u(1e-5); I128 = f2u(1/128.); LOG2E = f2u(math.log2(math.e))
def k4(a):
    global VM
    if OPT['sel']: VM = 10
    name = 'att_kernel'
    a.launch(name, 256, 256, L4_SIZE)
    a.begin(name)
    W8 = sched.Waits(); sched.VMEM_LAT = OPT['vl']; sched.STRETCH = OPT['str']/100; sched.QLAT = OPT['ql']; sched.TH = OPT['th']; sched.EDF = OPT['edf']
    L = []
    def o(text, R=(), W=(), rr=(), pri=0):
        for t in text.split('\n'):
            x = sched.Op(t, R, W, pri); x.r |= {('v', r) for r in rr}; L.append(x)
    def flush(do_sched):
        ops = sched.schedule(L, True) if do_sched else list(L)
        for t in W8.emit(ops): a(t)
        L.clear()
    a("s_cmp_ge_u32 s2, 256\ns_cbranch_scc1 K4_end")
    a.st_init()
    a("s_load_dwordx2 s[4:5], s[0:1], 88\ns_load_dwordx2 s[6:7], s[0:1], 72")
    a("v_lshrrev_b32 v4, 6, v0\nv_and_b32 v0, 63, v0\nv_readfirstlane_b32 s19, v4\nv_lshlrev_b32 v2, 4, v0")
    a("v_lshrrev_b32 v5, 3, v0\nv_and_b32 v6, 7, v0\nv_xor_b32 v6, v6, v5\ns_lshl_b32 s3, s19, 1\nv_xor_b32 v6, s3, v6\nv_lshlrev_b32 v6, 4, v6\nv_lshl_add_u32 v103, v5, 7, v6\nv_xor_b32 v12, 16, v103")
    a("s_mul_i32 s20, s2, 3\ns_lshl_b32 s44, s19, 14")
    a(f"v_lshrrev_b32 v5, 5, v0\nv_bfe_u32 v6, v0, 3, 1\nv_xor_b32 v6, v6, v5\nv_lshlrev_b32 v3, 3, v5\nv_lshl_add_u32 v102, v6, 2, v3\nv_add_u32 v102, {WS_SINV-WS_PERM}, v102")
    if OPT['fin']: a("v_and_b32 v3, 3, v0\nv_lshlrev_b32 v3, 2, v3")
    a("s_waitcnt lgkmcnt(0)")
    a.srd(8, 4, WS_SIZE); a.srd(12, 6, N*256)
    a(f"s_mov_b32 s3, {WS_WFR+WFR_SW}\ns_buffer_load_dword s24, s[8:11], s3")
    QS = lambda g: 52 + g
    def tdma(t, R=()):
        b = t & 1
        o(f"s_mul_i32 s21, s{60+t}, {TOS}\ns_add_u32 s21, s21, s44\ns_add_u32 s21, s21, {WS_TOK}")
        for x in range(0 if (t > 0 and OPT['exp'] & 64) else 4):
            if x: o("s_add_u32 s21, s21, 4096")
            o(f"s_add_u32 m0, s44, {b*65536 + 4096*x}")
            for y in range(4): o(f"buffer_load_dwordx4 {'v103' if x < 2 else 'v12'}, s[8:11], s21 offen offset:{y*1024}{NT(1)} lds", W=[f'dma{t}_{x}{y}', 'q'], R=R, pri=OPT['dp'])
    DM = lambda t: [f'dma{t}_{x}{y}' for x in range(4) for y in range(4)]
    def small(g):
        o(f"s_lshl_b32 s23, s{QS(g)}, 4\ns_add_u32 s23, s23, {WS_PERM}")
        o(f"buffer_load_dword v{SV[g&1]}, v102, s[8:11], s23 offen", pri=2000)
        o(f"buffer_load_dword v{PM[g&1]}, v3, s[8:11], s23 offen" if OPT['fin'] else f"buffer_load_dwordx2 v[{PM[g&1]}:{PM[g&1]+1}], v3, s[8:11], s23 offen", pri=2000)
    def wdma(lo, hi, tag):
        for i in range(lo, hi):
            o(f"s_add_u32 m0, s25, {4096*i}\ns_add_u32 s27, s26, {4096*i}"); o("buffer_load_dwordx4 v2, s[8:11], s27 offen lds", W=[tag + str(i), 'q'])
    for t in range(3): a(f"s_add_u32 s{60+t}, s20, {t}")
    for g in range(6): a(f"s_lshl_b32 s3, s{60+g//2}, 3\ns_add_u32 s3, s3, s19\ns_add_u32 s{QS(g)}, s3, {4*(g&1)}")
    a(f"s_add_u32 s58, s2, 6144\ns_lshr_b32 s63, s58, 3\ns_cmp_lt_u32 s2, 128\ns_cselect_b32 s63, s63, s62\ns_cselect_b32 s58, s58, s57\ns_cselect_b32 s31, 1, 0\ns_and_b32 s3, s2, 3\ns_cmp_eq_u32 s19, s3\ns_cselect_b32 s31, s31, 0\ns_and_b32 s49, s2, 4\ns_lshl_b32 s49, s49, 4")
    a(f"s_lshl_b32 s25, s19, 10\ns_add_u32 s26, s25, {WS_WFR}\ns_add_u32 s25, s25, 0x10000")
    WO_ = [16, 2, 3, 4, 5, 6, 7]; np_ = OPT['npre']
    wdma(0, 2, 'w'); tdma(0); small(0)
    for i in WO_[:np_]: wdma(i, i+1, 'w')
    flush(False)
    a("v_and_b32 v4, 7, v0\nv_lshrrev_b32 v7, 4, v0\nv_xor_b32 v1, v4, v7\nv_xor_b32 v1, s19, v1\nv_lshlrev_b32 v1, 4, v1\nv_lshl_add_u32 v1, v4, 13, v1\nv_lshl_add_u32 v1, v7, 7, v1\nv_and_or_b32 v1, v0, 8, v1")
    a(f"v_cmp_eq_u32 vcc, 0, v6\nv_subrev_u32 v238, 1, v6")
    a("v_and_b32 v8, 1, v0\nv_lshlrev_b32 v8, 4, v8\nv_mov_b32 v9, 0x3f80\nv_lshlrev_b32 v9, v8, v9\nv_bfe_u32 v8, v0, 1, 1\nv_bfe_u32 v10, v0, 3, 1\nv_bfe_u32 v11, v0, 2, 1")
    for y in range(2):
        a(f"v_xor_b32 v13, {y}, v10\nv_lshl_or_b32 v13, v13, 1, v8\nv_or_b32 v14, {2*y}, v11\nv_cmp_eq_u32 s[40:41], v14, v7\nv_cndmask_b32 v14, 0, v9, s[40:41]")
        for d in range(4): a(f"v_cmp_eq_u32 s[40:41], {d}, v13\nv_cndmask_b32 v{IB+4*y+d}, 0, v14, s[40:41]")
    a(f"s_lshl_b32 s25, s19, 10\ns_add_u32 s25, s25, {L4_SCR}")
    a("v_lshl_add_u32 v9, v7, 4, s25\nv_lshl_add_u32 v8, v6, 6, v9")
    a("v_lshl_add_u32 v4, v4, 2, s25\nv_lshl_add_u32 v4, v5, 5, v4\nv_lshl_add_u32 v4, v6, 6, v4")
    if OPT['gram']:
        a("v_and_b32 v11, 3, v0\nv_cmp_eq_u32 s[32:33], 1, v11\nv_cmp_eq_u32 s[34:35], 2, v11\nv_cmp_eq_u32 s[36:37], 3, v11\nv_bfe_u32 v11, v0, 2, 2\nv_cmp_eq_u32 s[38:39], v11, v7")
    if OPT['sel']:
        a("v_and_b32 v11, 3, v0\nv_cmp_eq_u32 s[40:41], v11, v7\nv_mov_b32 v13, 0x3f80\nv_cndmask_b32 v13, 0, v13, s[40:41]\nv_bfe_u32 v11, v0, 3, 1\nv_bfe_u32 v14, v0, 2, 1\nv_lshl_or_b32 v11, v14, 1, v11")
        for d in range(4): a(f"v_cmp_eq_u32 s[40:41], {d}, v11\nv_cndmask_b32 v{CT+d}, 0, v13, s[40:41]\nv_lshlrev_b32 v{CT+4+d}, 16, v{CT+d}")
        a("v_and_b32 v11, 1, v7\nv_and_b32 v13, 15, v0\nv_subrev_u32 v10, 1, v6")
    if OPT['fin']:
        a("v_and_b32 v14, 15, v0\nv_lshlrev_b32 v2, 1, v5\nv_cmp_eq_u32 s[42:43], v14, v2\nv_or_b32 v2, 1, v2\nv_cmp_eq_u32 s[50:51], v14, v2\nv_lshlrev_b32 v2, 4, v0")
    if not OPT['sel']: a("v_and_b32 v11, 1, v7\nv_and_b32 v10, 7, v0\nv_lshlrev_b32 v13, 2, v11\nv_xor_b32 v10, v10, v13\nv_xor_b32 v10, s19, v10\nv_lshlrev_b32 v10, 4, v10\nv_and_b32 v13, 15, v0\nv_lshl_add_u32 v10, v13, 7, v10\nv_lshl_add_u32 v10, v11, 15, v10\nv_add_u32 v10, v10, v3")
    if OPT['fin']: a("v_lshlrev_b32 v7, 4, v7\nv_cmp_lt_u32 s[40:41], 3, v13\nv_bfrev_b32 v11, 1\nv_cndmask_b32 v11, 0, v11, s[40:41]\nv_or_b32 v7, v7, v11")
    else: a("v_lshlrev_b32 v7, 2, v13\nv_lshl_add_u32 v7, v11, 7, v7")
    a(f"v_add_u32 v15, {L4_E}, v2\ns_mov_b32 s48, 0xffff0000\nv_add_u32 v0, 0x10000, v2")
    a(f"s_mov_b32 s28, {I128}\ns_mov_b32 s29, {EPS}\ns_mov_b32 s30, {LOG2E}")
    a("s_waitcnt lgkmcnt(0)")
    a.st(1)
    for t in W8.drain(DM(0)): a(t)
    a.st(2); a("s_barrier"); a.st(3)
    if OPT['exp'] & 4096: a("s_cmp_ge_u32 s19, 1\ns_cbranch_scc1 K4_fin")
    ring = [0]
    ROR = f"row_ror:8 {DPPF}"
    CLAST = [] if OPT['sel'] else [OO+32+28+3, OO+32+28+2, OO+32+28+1]
    def group(g, last):
        T = lambda j, s: f"v[{TK+16*j+4*s}:{TK+16*j+4*s+3}]"
        R4 = lambda b: f"v[{b}:{b+3}]"
        sv = SV[g & 1]; pm = PM[g & 1]; t = g >> 1; LB = [f'tile{t}']; xa = (t & 1)*65536 + (64 if g & 1 else 0)
        def W(f):
            r = 4*f
            if g == 0:
                if f == 32: o("s_barrier", R=[f'w{i}' for i in range(8, 16)], W=['wb', 'bar'])
                o(f"ds_read_b128 a[{r}:{r+3}], v0 offset:{f*1024}", R=['wb'] if f >= 32 else ['wa'] if f >= 8 else [])
                if f == 63:
                    o("s_barrier", W=['wfree', 'bar']); L[-1].r |= {('a', x) for x in range(256)}
                    tdma(1, ['wfree'])
            return f"a[{r}:{r+3}]"
        if g in (2, 4):
            o("s_barrier", R=DM(t), W=LB + ['bar'], rr=CLAST + list(range(TK, TK+32)))
            tdma(t+1, LB)
        if g == 6: o("v_xor_b32 v1, s49, v1" + ("" if OPT['sel'] else "\nv_xor_b32 v10, s49, v10")); xa = 65536
        for x in range(4): o(f"v_xor_b32 v{TA+x}, {xa ^ ((x & 1)*576) ^ ((x >> 1)*4)}, v1")
        for s_ in range(4):
            for j in range(2):
                for b in range(2): o(f"ds_read2st64_b32 v[{TK+16*j+4*s_+2*b}:{TK+16*j+4*s_+2*b+1}], v{TA+2*j+b} offset0:{8*s_} offset1:{8*s_+4}", R=LB)
        if g < last: small(g+1)
        o(f"v_lshl_add_u32 v{pm}, v{pm}, 8, v7" + ("" if OPT['fin'] else f"\nv_lshl_add_u32 v{pm+1}, v{pm+1}, 8, v7"))
        acc = lambda p, j, hh: AC + 16*(p & 1) + 8*j + 4*hh
        def chains(p):
            for hh in range(2):
                for s_ in range(4):
                    w = W(8*p + 4*hh + s_)
                    for j in range(2):
                        c = R4(acc(p, j, hh)); ab = f"{w}, {T(j, s_)}" if p < 4 else f"{T(j, s_)}, {w}"
                        o(f"v_mfma_f32_16x16x32_bf16 {c}, {ab}, {'0' if s_ == 0 else c}")
        def pack(p):
            for j in range(2):
                for d in range(4): o(f"v_cvt_pk_bf16_f32 v{PK+8*(p&1)+4*j+d}, v{acc(p, j, 0)+2*d}, v{acc(p, j, 0)+2*d+1}")
        def smf(p):
            for j in range(2): o(f"v_mfma_f32_16x16x32_bf16 {R4(SS+4*j)}, {R4(PK+8*(p&1)+4*j)}, {T(j, p)}, {'0' if p == 0 else R4(SS+4*j)}")
        O = lambda j, J: OO + 32*j + 4*J
        def cinit():
            if OPT['sel']: return
            for r in range(4): o(f"v_xor_b32 v{TA+r}, {xa ^ (r*8192 + r*16)}, v10")
            for B in range(4):
                for r in range(4):
                    c = CT + 2*((4*B + r) % 3)
                    o(f"ds_read_b64 v[{c}:{c+1}], v{TA+r} offset:{B*2048}", R=LB)
                    for j in range(2): o(f"v_lshlrev_b32 v{O(j, 2*B)+r}, 16, v{c+j}\nv_and_b32 v{O(j, 2*B+1)+r}, s48, v{c+j}")
        def pz(B):
            for j in range(2):
                for hh in range(2):
                    z = PK + 8*(B & 1) + 4*j + 2*hh
                    o(f"v_mfma_f32_16x16x16_bf16 {R4(O(j, 2*B+hh))}, v[{PA+2*j}:{PA+2*j+1}], v[{z}:{z+1}], {R4(O(j, 2*B+hh))}")
        def sel(B):
            if not OPT['sel']: return
            for j in range(2):
                for hh in range(2): o(f"v_mfma_f32_16x16x32_bf16 {R4(O(j, 2*B+hh))}, {T(j, B)}, {R4(CT+4*hh)}, 0")
        def sq(B):
            for j in range(2):
                for hh in range(2):
                    for r in range(4):
                        x = O(j, 2*B+hh)+r
                        o(f"v_mul_f32 v{QQ+4*j+r}, v{x}, v{x}" if B == 0 and hh == 0 else f"v_fmac_f32 v{QQ+4*j+r}, v{x}, v{x}")
            if OPT['fin']:
                for hh in range(2):
                    for d in range(4): x = O(d >> 1, 2*B+hh) + 2*(d & 1); o(f"v_cvt_pk_bf16_f32 v{O(0, 2*B+hh)+d}, v{x}, v{x+1}")
        chains(0)
        D = AC + 16
        if OPT['gram']:
            for s_ in range(4):
                for j in range(2): o(f"v_mfma_f32_16x16x32_bf16 {R4(D+4*j)}, {T(j, s_)}, {T(j, s_)}, {'0' if s_ == 0 else R4(D+4*j)}")
        for u in range(0 if OPT['gram'] else 32): d = D + 2*(u >> 4) + (u & 1); o(f"v_dot2_f32_bf16 v{d}, v{TK+u}, v{TK+u}, {'0' if (u & 15) < 2 else f'v{d}'}")
        if g == 0: o("s_barrier", R=[f'w{i}' for i in WO_], W=['wa', 'bar'], rr=[AC+12, D, D+1, D+2, D+3])
        for s_ in range(4):
            r = WF + 4*(ring[0] % NWF); ring[0] += 1
            o(f"ds_read_b128 {R4(r)}, v15 offset:{s_*1024}", R=['wa'])
            for j in range(2): o(f"v_mfma_f32_16x16x32_bf16 {R4(EA[j])}, {R4(r)}, {T(j, s_)}, {'0' if s_ == 0 else R4(EA[j])}")
        E = EA[0]
        for r in range(4): o(f"v_cndmask_b32_dpp v{E+r}, v{EA[1]+r}, v{E+r}, vcc {ROR}")
        if OPT['gram']:
            for j in range(2):
                x = D+4*j
                for r in range(1, 4): o(f"v_cndmask_b32 v{x}, v{x}, v{x+r}, s[{30+2*r}:{31+2*r}]")
            o(f"v_cndmask_b32 v11, 0, v{D}, s[38:39]\nv_cndmask_b32 v2, 0, v{D}, s[38:39]\nv_cndmask_b32 v{D+2}, 0, v{D+4}, s[38:39]")
        else: o(f"v_add_f32 v11, v{D}, v{D+1}\nv_add_f32 v{D+2}, v{D+2}, v{D+3}\nv_mov_b32 v2, v11")
        o(f"v_mov_b32_dpp v11, v{D+2} row_ror:8 row_mask:0xf bank_mask:0xc\nv_mov_b32_dpp v2, v{D+2} row_ror:8 row_mask:0xf bank_mask:0x3")
        o(f"v_permlane32_swap_b32 v11, v2\nv_add_f32 v11, v11, v2\nv_mov_b32 v2, v11\nv_permlane16_swap_b32 v11, v2\nv_add_f32 v11, v11, v2\nv_mul_f32 v2, s28, v{E}\nv_mul_f32 v2, v2, v2\nv_fma_f32 v11, v11, s28, -v2")
        o(f"v_mul_f32 v2, v{sv}, v{sv}\nv_max_f32 v11, 0, v11\nv_fma_f32 v11, v11, v2, s29\nv_rsq_f32 v11, v11\nv_mul_f32 v11, v11, v{sv}")
        o("ds_write_b32 v4, v11", W=['sa']); o(f"ds_write_b32 v4, v{E+2} offset:128\nds_write_b32 v4, v{E+3} offset:256", W=['sb'])
        o(f"ds_read_b128 {R4(RL)}, v8", R=['sa'])
        o(f"ds_read_b128 {R4(ZS)}, v8 offset:128\nds_read_b128 {R4(ZD)}, v8 offset:256", R=['sb'])
        cinit()
        pack(0); smf(0)
        for p in range(1, 4): chains(p); pack(p); smf(p)
        chains(4); pack(4); sel(0); sel(1); chains(5); pack(5); sel(2); sel(3)
        X = SS
        for r in range(4): o(f"v_cndmask_b32_dpp v{X+r}, v{SS+4+r}, v{X+r}, vcc {ROR}")
        for r in range(4): o(f"v_mul_f32 v{X+r}, v{X+r}, v{RL+r}")
        t0, t1 = X+4, X+5
        o(f"v_max3_f32 v{t0}, v{X}, v{X+1}, v{X+2}\nv_max_f32 v{t0}, v{t0}, v{X+3}\nv_mov_b32 v{t1}, v{t0}\nv_permlane16_swap_b32 v{t0}, v{t1}\nv_max_f32 v{t0}, v{t0}, v{t1}\nv_mul_f32 v{t0}, v{t0}, v11")
        for r in range(4): o(f"v_fma_f32 v{X+r}, v{X+r}, v11, -v{t0}")
        for r in range(4): o(f"v_exp_f32 v{X+r}, v{X+r}")
        o(f"v_add_f32 v{t0}, v{X}, v{X+1}\nv_add_f32 v{t1}, v{X+2}, v{X+3}\nv_add_f32 v{t0}, v{t0}, v{t1}\nv_mov_b32 v{t1}, v{t0}\nv_permlane16_swap_b32 v{t0}, v{t1}\nv_add_f32 v{t0}, v{t0}, v{t1}\nv_mul_f32 v{t0}, v{t0}, v{sv}\nv_rcp_f32 v{t0}, v{t0}")
        for r in range(4): o(f"v_mul_f32 v{X+r}, v{X+r}, v{RL+r}")
        for r in range(4): o(f"v_mul_f32 v{X+r}, v{X+r}, v{t0}")
        o(f"v_cvt_pk_bf16_f32 v{X+6}, v{X}, v{X+1}\nv_cvt_pk_bf16_f32 v{X+7}, v{X+2}, v{X+3}")
        for d in range(2): o(f"v_and_b32 v{PA+d}, v{X+6+d}, v{VM}\nv_and_b32_dpp v{PA+2+d}, v{X+6+d}, v{VM} {ROR}")
        o(f"v_mul_f32 v13, v{X}, v{ZS}\nv_mul_f32 v14, v{X}, v{ZD}")
        for r in range(1, 4): o(f"v_fmac_f32 v13, v{X+r}, v{ZS+r}\nv_fmac_f32 v14, v{X+r}, v{ZD+r}")
        o(f"v_permlane16_swap_b32 v13, v14\nv_add_f32 v13, v13, v14\nv_mov_b32 v14, v13\nv_permlane16_swap_b32 v13, v14\nv_add_f32 v13, v13, v{E}\nv_add_f32 v14, v14, v{E+1}")
        pz(0); sq(0)
        chains(6); pz(1); sq(1); pack(6)
        chains(7); pz(2); sq(2); pack(7)
        pz(3); sq(3)
        for d in range(4): o(f"v_cvt_pk_bf16_f32 v{AL+d}, v{QQ+2*d}, v{QQ+2*d+1}")
        for y in range(2):
            x = AL+4+4*y
            o(f"v_mfma_f32_16x16x32_bf16 {R4(x)}, {R4(AL)}, {R4(IB+4*y)}, 0", pri=-OPT['lq'])
            o(f"v_add_f32 v{x}, v{x}, v{x+1}\nv_add_f32 v{x+2}, v{x+2}, v{x+3}\nv_add_f32 v{x}, v{x}, v{x+2}")
        o(f"v_permlane32_swap_b32 v{AL+4}, v{AL+8}\nv_add_f32 v5, v{AL+4}, v{AL+8}\nv_mov_b32 v{AL+8}, v5\nv_permlane16_swap_b32 v5, v{AL+8}\nv_add_f32 v5, v5, v{AL+8}")
        o(f"v_mul_f32 v13, s28, v13\nv_fma_f32 v14, -v13, s24, v14\nv_mul_f32 v13, v13, v13\nv_mul_f32 v14, s30, v14\nv_mul_f32 v6, v{sv}, v{sv}\nv_mul_f32 v14, v14, v{sv}")
        o("v_fma_f32 v5, v5, s28, -v13\nv_max_f32 v5, 0, v5\nv_fma_f32 v5, v5, v6, s29\nv_rsq_f32 v5, v5\nv_mul_f32 v5, v5, v14")
        o(f"v_max_f32_dpp v6, v5, v5 quad_perm:[1,0,3,2] {DPPF}\nv_max_f32_dpp v6, v6, v6 quad_perm:[2,3,0,1] {DPPF}\nv_max_f32_dpp v6, v6, v6 row_half_mirror {DPPF}")
        o("v_sub_f32 v5, v5, v6\nv_exp_f32 v5, v5")
        o(f"v_add_f32_dpp v6, v5, v5 quad_perm:[1,0,3,2] {DPPF}\nv_add_f32_dpp v6, v6, v6 quad_perm:[2,3,0,1] {DPPF}\nv_add_f32_dpp v6, v6, v6 row_half_mirror {DPPF}")
        o(f"v_rcp_f32 v6, v6\nv_mul_f32 v5, v5, v{sv}\nv_mul_f32 v5, v5, v6")
        o("ds_write_b32 v4, v5 offset:512", W=['sd'])
        for j in range(2): o(f"ds_read_b128 {R4(AL+4*j)}, v9 offset:{512+64*j}", R=['sd'])
        OSC = ('', ' nt', ' sc1', ' sc0 sc1', ' sc1 nt')[OPT['osc']]
        if OPT['fin']:
            for d in range(4): o(f"v_cvt_pk_bf16_f32 v{AL+8+d}, v{AL+2*d}, v{AL+2*d+1}\nv_cndmask_b32 v{AL+8+d}, 0, v{AL+8+d}, {'s[42:43]' if d < 2 else 's[50:51]'}")
            for B in range(4):
                for hh in range(2): o(f"v_mfma_f32_16x16x32_bf16 {R4(QQ+8*(B&1)+4*hh)}, {R4(O(0, 2*B+hh))}, {R4(AL+8)}, 0", pri=-OPT['lf'])
                x = O(1, 2*B)
                for r in range(4): o(f"v_cvt_pk_bf16_f32 v{x+r}, v{QQ+8*(B&1)+r}, v{QQ+8*(B&1)+4+r}")
                o(f"buffer_store_dwordx4 {R4(x)}, v{pm}, s[12:15], 0 offen offset:{64*B}{OSC}")
        for j in range(0 if OPT['fin'] else 2):
            for J in (0, 4, 1, 5, 2, 6, 3, 7):
                x = QQ + 8*j + J
                o(f"v_mul_f32 v{x}, v{AL+4*j}, v{O(j, J)}")
                for r in range(1, 4): o(f"v_fmac_f32 v{x}, v{AL+4*j+r}, v{O(j, J)+r}")
                if J >= 4:
                    o(f"v_permlane16_swap_b32 v{x-4}, v{x}\nv_add_f32 v{x-4}, v{x-4}, v{x}")
                    if J & 1: o(f"v_cvt_pk_bf16_f32 v{x}, v{x-5}, v{x-4}\nbuffer_store_dword v{x}, v{pm+j}, s[12:15], 0 offen offset:{64*((J-4)>>1)}{('', ' nt', ' sc1', ' sc0 sc1', ' sc1 nt')[OPT['osc']]}")
    a(f"s_lshl_b32 s25, s19, 10\ns_add_u32 s25, s25, 0x10000")
    for i in WO_[np_:]:
        wdma(i, i+1, 'w'); L[-1].w.discard(('p', 'q')); L[-1].bias = L[-2].bias = L[-3].bias = 5000
    wdma(8, 16, 'w')
    for g in range(6): group(g, 6)
    n6 = len(L)
    o("s_barrier", R=DM(3), W=['tile3', 'bar'], rr=CLAST + list(range(TK, TK+32)))
    group(6, 6)
    for x in L[n6:]: x.extra = True
    for x in L[n6+1:]: x.r.add(('p', 'tile3'))
    ops = sched.schedule(L, True); L.clear()
    cut = min(i for i, x in enumerate(ops) if getattr(x, 'extra', False))
    nb = 3
    for t in W8.emit(ops[:cut+1]):
        if t == 's_barrier' and OPT['stamp'] in (1, 2): a.st(nb); a(t); a.st(13); nb += 1
        else: a(t)
    a("s_cmp_eq_u32 s31, 0\ns_cbranch_scc0 K4_x")
    import copy
    W9 = copy.deepcopy(W8)
    for t in W8.emit([x for x in ops[cut+1:] if not getattr(x, 'extra', False)]): a(t)
    a.st(9); a("s_branch K4_fin\nK4_x:")
    for t in W9.emit(ops[cut+1:]): a(t)
    a.st(10)
    a("K4_fin:"); a.st_out(3, 8, 's19', 10)
    a("K4_end:\ns_endpgm")
    a.end(name, 512, 102, 256)

def build(ks, path, pre=''):
    a = K()
    for k in ks: k(a)
    open(path, 'w').write(a.text(pre))

if __name__ == '__main__':
    for x in sys.argv[1:]:
        k, v = x.split('='); OPT[k] = int(v)
    ref = open('standalone__hybrid_graph_tf_nagphormer__graph.s.ref').read().split('\n')
    pre = '\n'.join(l for l in ref if l.startswith(';') and 'launch' not in l and 'grid=' not in l) + '\n'
    build([k1, k3, k4], 'stage.s', pre)
```

```python
import sys, math, struct
from asmlib import Asm
import hazard

N = 25000; NP = 25088; E = 400000; WIN = 128; NWIN = 196; NLEV = 392; QLEV = 98; QN = 6272
NCH = 250; CH = 1600
ZB = 195*128
WS_FLAGS = 0xC0000; FGS = 17*128; WS_NEWID = 0x10000; WS_PERM = 0x20000; WS_DISP = 0x40000; WS_TQ = 0x60000; WS_LOC = 0x64000; WS_IRR = 0x78000; WS_SINV = 0xA0000; WS_PM = 0x3700000; WS_WDN = 0xE4000
WS_WFR = 0x80000; WS_PART = 0x100000; WS_PARTB = 0x440000; WS_IDX = 0x780000; WS_G = 0xB00000; RS = 57344; WS_TOK = 0x3800000
GS = NP*4
TOS = 65536 + 128
PWS = 16384 + 128
KS = NP*256
WS_SIZE = 0x10000000
WFR_E = 65536; WFR_SW = 73728
SD = "dst_sel:DWORD dst_unused:UNUSED_PAD src0_sel:DWORD"
DPPF = "row_mask:0xf bank_mask:0xf"
SLACK = 2
OPT = dict(stamp=0, exp=0, tal=20, tbe=0, prio=2, wprio=0, slg=2, sll=2, tok=1, tsc=2, wb=2, gprio=1, ls=1, tlb=0, wt=1, vl=1500, str=140, dp=0, ql=100, npl=1, px=0, slp=1, cpf=7, slow=0, la=2, npre=7, slw=2, isc=0, tp=0, wbw=0, wb6=0, lnt=2, pnt=0, nt=2, osc=2, frz=0, gw=3, iw=0, pw=0, xp=3, xr=3, th=0, edf=200, sel=1, gram=1, fin=0, lq=300, lf=0, fr=99)
WS_STAMP = 0x7800000

WT = lambda b: (' sc1' if OPT['wt'] & b else '') + (' sc0' if OPT['wt'] & b and OPT['wt'] & 8 else '') + (' nt' if OPT['wt'] & (b << 4) else '')
NT = lambda b: ' nt' if OPT['nt'] & b else ''
class K(Asm):
    def __init__(self):
        super().__init__(); self.uid = 0
    def lab(self, s='L'):
        self.uid += 1; return f"{s}_{self.uid}"
    def begin(self, name):
        self.kernel(name); self.k0 = len(self.lines)
    def end(self, name, vgpr, sgpr=102, accum=None):
        body, n = hazard.fix(self.lines[self.k0:])
        self.lines[self.k0:] = body
        print(f"{name}: {len(body)} lines, {n} nop states", file=sys.stderr)
        self.kd(name, vgpr, sgpr, accum)
    def st_init(self):
        if not OPT['stamp']: return
        self("s_memrealtime s[84:85]" if OPT['stamp'] != 2 else "s_memtime s[84:85]")
        if OPT['stamp'] == 3:
            self("s_waitcnt lgkmcnt(0)\ns_mov_b32 s70, s84"); return
        for i in range(1, 14): self(f"s_mov_b32 s{70+i}, 0")
        self("s_waitcnt lgkmcnt(0)\ns_mov_b32 s70, s84\ns_mov_b32 s86, s84")
    def st(self, i):
        if not OPT['stamp'] or OPT['stamp'] == 3: return
        if OPT['stamp'] == 4:
            if i in (3, 9, 4, 7):
                l = self.lab('ST')
                if OPT['frz'] and i != 3: self(f"s_cmp_gt_u32 s22, {OPT['frz'] + (1 if i == 9 else 0)}\ns_cbranch_scc1 {l}")
                self("s_memrealtime s[84:85]")
                for k in range(71, 83): self(f"s_mov_b32 s{k}, s{k+1}")
                self("s_waitcnt lgkmcnt(0)\ns_sub_u32 s83, s84, s86\ns_mov_b32 s86, s84\n" + l + ":")
            return
        self(f"{'s_memrealtime' if OPT['stamp'] == 1 else 's_memtime'} s[84:85]\ns_waitcnt lgkmcnt(0)\ns_sub_u32 s87, s84, s86\ns_mov_b32 s86, s84\ns_add_u32 s{70+i}, s{70+i}, s87")
    def st_out(self, kid, srd, swave, vt):
        if not OPT['stamp']: return
        self(f"s_lshl_b32 s87, s2, 4\ns_add_u32 s87, s87, {swave}\ns_lshl_b32 s87, s87, 6\ns_add_u32 s87, s87, {WS_STAMP + kid*0x80000}\ns_mov_b64 exec, 1\nv_mov_b32 v{vt+1}, 0")
        if OPT['stamp'] == 3: self("s_memrealtime s[84:85]\ns_waitcnt lgkmcnt(0)\ns_mov_b32 s71, s84")
        for i in range(2 if OPT['stamp'] == 3 else 14): self(f"v_mov_b32 v{vt}, s{70+i}\nbuffer_store_dword v{vt}, v{vt+1}, s[{srd}:{srd+3}], s87 offen offset:{4*i}")
    def codepf(self, first, last, lane4, vt, sp, vd=None):
        l = self.lab('PF')
        self(f"s_getpc_b64 s[{sp}:{sp+1}]\n{l}:\ns_add_u32 s{sp}, s{sp}, {first}-{l}\ns_addc_u32 s{sp+1}, s{sp+1}, 0\nv_lshlrev_b32 v{vt}, 5, v{lane4}\ns_mov_b32 s{sp+2}, 0")
        self(f"{l}_l:\nv_cmp_gt_u32 vcc, {last}-{first}, v{vt}\ns_and_b64 exec, exec, vcc\ns_cbranch_execz {l}_e\nglobal_load_dword v{vd or vt+1}, v{vt}, s[{sp}:{sp+1}]\nv_add_u32 v{vt}, 8192, v{vt}\ns_branch {l}_l\n{l}_e:\ns_mov_b64 exec, -1")
    def scan_incl(self, v):
        for s in (1, 2, 4, 8): self(f"v_add_u32_dpp v{v}, v{v}, v{v} row_shr:{s} {DPPF} bound_ctrl:0")
        self(f"v_add_u32_dpp v{v}, v{v}, v{v} row_bcast:15 row_mask:0xa bank_mask:0xf")
        self(f"v_add_u32_dpp v{v}, v{v}, v{v} row_bcast:31 row_mask:0xc bank_mask:0xf")
    def red63(self, op, v):
        for s in (1, 2, 4, 8): self(f"{op}_dpp v{v}, v{v}, v{v} row_shr:{s} {DPPF} bound_ctrl:0")
        self(f"{op}_dpp v{v}, v{v}, v{v} row_bcast:15 row_mask:0xa bank_mask:0xf")
        self(f"{op}_dpp v{v}, v{v}, v{v} row_bcast:31 row_mask:0xc bank_mask:0xf")

SWAPS = ((0, 85), (6, 91), (12, 95))
def levelpos(a, sw, d0, d1):
    t, u = d1+1, d1+2
    a(f"s_mul_i32 s{t}, s{sw}, 1338\ns_lshr_b32 s{t}, s{t}, 16\ns_mul_i32 s{t}, s{t}, 98\ns_lshl_b32 s{d0}, s{sw}, 1\ns_sub_u32 s{u}, s{d0}, s{t}")
    a(f"s_mov_b32 s{d0}, s{u}\ns_add_u32 s{d1}, s{u}, 1")
    for x, y in SWAPS:
        a(f"s_cmp_eq_u32 s{u}, {x}\ns_cselect_b32 s{d0}, {y}, s{d0}\ns_cmp_eq_u32 s{u}, {y-1}\ns_cselect_b32 s{d1}, {x}, s{d1}")
    a(f"s_add_u32 s{d0}, s{d0}, s{t}\ns_add_u32 s{d1}, s{d1}, s{t}")
def k1(a):
    name = 'p1_kernel'
    a.launch(name, NCH + NWIN + 8, 512, 40960)
    a.begin(name)
    a(f"s_cmp_ge_u32 s2, {NCH+NWIN+8}\ns_cbranch_scc1 K1_end")
    a.st_init()
    a("s_load_dwordx4 s[4:7], s[0:1], 0\ns_load_dwordx4 s[8:11], s[0:1], 16\ns_load_dwordx2 s[14:15], s[0:1], 88")
    a("v_lshlrev_b32 v1, 2, v0\nv_mov_b32 v2, 0\nv_mov_b32 v24, 1\nv_lshrrev_b32 v3, 6, v0\nv_and_b32 v25, 63, v0\nv_readfirstlane_b32 s37, v3")
    a(f"s_cmp_ge_u32 s2, {NCH+NWIN}\ns_cbranch_scc1 K1_mm\ns_cmp_ge_u32 s2, {NCH}\ns_cbranch_scc1 K1_win")
    a(f"v_lshlrev_b32 v3, 4, v0\ns_mul_i32 s38, s2, {CH*4}\ns_waitcnt lgkmcnt(0)")
    a.srd(16, 6, E*4); a.srd(20, 8, E*4); a.srd(28, 14, WS_SIZE)
    a("s_cmp_ge_u32 s37, 7\ns_cbranch_scc1 K1_nl\nv_cmp_gt_u32 vcc, 400, v0\ns_and_saveexec_b64 s[34:35], vcc")
    a(f"buffer_load_dwordx4 v[4:7], v3, s[16:19], s38 offen{NT(2)}\nbuffer_load_dwordx4 v[8:11], v3, s[20:23], s38 offen{NT(2)}\ns_mov_b64 exec, s[34:35]\nK1_nl:")
    a(f"s_cmp_lg_u32 s2, 64\ns_cbranch_scc1 K1_noy\ns_cmp_ge_u32 s37, 4\ns_cbranch_scc1 K1_noy\ns_mov_b32 s3, {WS_WDN}\nv_lshlrev_b32 v16, 7, v0\nbuffer_store_dword v2, v16, s[28:31], s3 offen\nK1_noy:")
    a("s_cmp_ge_u32 s2, 64\ns_cbranch_scc1 K1_noz\ns_cmp_ge_u32 s37, 3\ns_cbranch_scc1 K1_noz")
    a(f"s_mul_i32 s3, s2, {FGS}\ns_add_u32 s3, s3, {WS_FLAGS}\nv_lshrrev_b32 v16, 3, v0\nv_min_u32 v16, 16, v16\nv_lshlrev_b32 v16, 7, v16\nv_and_b32 v17, 7, v0\nv_lshl_add_u32 v16, v17, 2, v16\nbuffer_store_dword v2, v16, s[28:31], s3 offen\nK1_noz:")
    if OPT['iw']:
        a(f"s_cmp_eq_u32 s37, 7\ns_cbranch_scc0 K1_niw\ns_cmp_ge_u32 s2, 192\ns_cbranch_scc1 K1_niw\ns_mul_i32 s3, s2, 21846\ns_lshr_b32 s3, s3, 16\ns_mul_i32 s40, s3, 3\ns_sub_u32 s40, s2, s40\ns_mul_i32 s3, s3, {RS}\ns_lshl_b32 s40, s40, 13\ns_add_u32 s3, s3, s40\ns_add_u32 s3, s3, {WS_IDX}")
        a("v_lshlrev_b32 v29, 7, v25\nbuffer_load_dword v29, v29, s[28:31], s3 offen\nK1_niw:")
    if OPT['cpf'] & 1:
        a("s_cmp_eq_u32 s37, 7\ns_cbranch_scc0 K1_npf\ns_cmp_lt_u32 s2, 16\ns_cbranch_scc0 K1_npf\nv_lshlrev_b32 v28, 2, v25"); a.codepf('hop_kernel', 'K3_join', 28, 30, 52); a("K1_npf:")
    a("v_mov_b32 v12, -1\nv_mov_b32 v13, -1\nv_mov_b32 v14, -1\nv_mov_b32 v15, -1\nv_mov_b32 v26, 12544\nv_mov_b32 v27, 25088")
    a("ds_write_b128 v3, v[12:15] offset:1024\nds_write_b128 v3, v[12:15] offset:9216\nds_write_b128 v3, v[12:15] offset:17408")
    a("s_cmp_ge_u32 s37, 4\ns_cbranch_scc1 K1_nc\nds_write_b32 v1, v2\ns_cmp_ge_u32 s37, 1\ns_cbranch_scc1 K1_nc\nds_write_b128 v3, v[12:15] offset:25600\nK1_nc:")
    a("s_waitcnt lgkmcnt(0)\ns_barrier")
    a("s_cmp_ge_u32 s37, 7\ns_cbranch_scc1 K1_ns\nv_cmp_gt_u32 vcc, 400, v0\ns_and_saveexec_b64 s[34:35], vcc\ns_waitcnt vmcnt(0)")
    a.st(1)
    for i in range(4):
        a(f"v_lshrrev_b32 v{12+i}, 7, v{8+i}\nv_and_b32 v16, 127, v{8+i}\nv_lshl_or_b32 v{4+i}, v16, 16, v{4+i}\nv_lshlrev_b32 v16, 2, v{12+i}\nds_add_rtn_u32 v{8+i}, v16, v24")
    for i in range(4):
        a(f"s_waitcnt lgkmcnt(3)" if i == 0 else "s_waitcnt lgkmcnt(3)")
        a(f"v_and_b32 v16, 15, v{8+i}\nv_lshlrev_b32 v16, 2, v16\nv_lshl_add_u32 v16, v{12+i}, 6, v16\nv_lshrrev_b32 v17, 4, v{8+i}\nv_mad_u32_u24 v16, v17, s39, v16".replace("s39", "v26"))
        a(f"v_cmp_gt_u32 vcc, 32, v{8+i}\nv_cndmask_b32 v16, v27, v16, vcc\nds_write_b32 v16, v{4+i} offset:1024")
    a("s_mov_b64 exec, s[34:35]\nK1_ns:\ns_waitcnt lgkmcnt(0)\ns_barrier")
    a("s_and_b32 s3, s2, 7\ns_lshl_b32 s3, s3, 5\ns_lshr_b32 s39, s2, 3\ns_add_u32 s3, s3, s39\ns_lshl_b32 s3, s3, 6")
    a(f"s_add_u32 s39, s3, {WS_PART}\ns_add_u32 s40, s3, {WS_PARTB}")
    a("v_lshrrev_b32 v16, 2, v0\nv_and_b32 v17, 3, v0\nv_lshlrev_b32 v17, 4, v17\nv_mov_b32 v18, " + str(PWS) + "\nv_mad_u32_u24 v17, v16, v18, v17\nv_and_b32 v18, 0xfffffffc, v0")
    a("ds_read_b128 v[4:7], v3 offset:1024\nds_read_b128 v[8:11], v3 offset:9216\nds_read_b32 v19, v18\nds_read_b32 v20, v18 offset:512")
    a(f"v_add_u32 v21, {128*PWS}, v17\nv_cmp_gt_u32 vcc, {784-512}, v0\ns_mov_b64 s[42:43], vcc")
    a("s_waitcnt lgkmcnt(3)\nbuffer_store_dwordx4 v[4:7], v17, s[28:31], s39 offen" + WT(2) + "\ns_waitcnt lgkmcnt(0)")
    a("v_cndmask_b32 v20, 0, v20, s[42:43]\nv_max_u32 v22, v19, v20\ns_mov_b64 exec, s[42:43]\ns_cbranch_execz K1_n2")
    a("buffer_store_dwordx4 v[8:11], v21, s[28:31], s39 offen" + WT(2) + "\nK1_n2:\ns_mov_b64 exec, -1")
    a("v_cmp_le_u32 vcc, 16, v22\ns_cbranch_vccz K1_nb")
    a(f"ds_read_b128 v[4:7], v3 offset:{1024+12544}\nds_read_b128 v[8:11], v3 offset:{1024+12544+8192}\ns_waitcnt lgkmcnt(0)")
    a("v_cmp_le_u32 vcc, 16, v19\ns_mov_b64 exec, vcc\ns_cbranch_execz K1_b1\nbuffer_store_dwordx4 v[4:7], v17, s[28:31], s40 offen\nK1_b1:\ns_mov_b64 exec, -1")
    a("v_cmp_le_u32 vcc, 16, v20\ns_mov_b64 exec, vcc\ns_cbranch_execz K1_b2\nbuffer_store_dwordx4 v[8:11], v21, s[28:31], s40 offen\nK1_b2:\ns_mov_b64 exec, -1")
    a("K1_nb:")
    a(f"v_cmp_lt_u32 vcc, 32, v22\ns_cmp_lg_u64 vcc, 0\ns_cselect_b32 s3, 1, 0\nv_mov_b32 v4, s3\ns_lshr_b32 s39, s39, 1\ns_and_b32 s39, s39, 0x1fe0\ns_lshl_b32 s3, s37, 2\ns_add_u32 s39, s39, s3\ns_add_u32 s39, s39, {WS_IRR}")
    a("s_mov_b64 exec, 1\nbuffer_store_dword v4, v2, s[28:31], s39 offen")
    a.st(2); a.st_out(0, 28, 's37', 10); a("s_endpgm")
    B = 32768
    a("K1_win:")
    a(f"s_sub_u32 s36, s2, {NCH}\ns_lshl_b32 s38, s36, 7\ns_waitcnt lgkmcnt(0)")
    a.srd(16, 4, N*256); a.srd(24, 10, N*2); a.srd(28, 14, WS_SIZE)
    a("v_lshlrev_b32 v3, 4, v25\ns_lshl_b32 s39, s36, 15\ns_lshl_b32 s40, s37, 12\ns_add_u32 s39, s39, s40")
    a("v_add_u32 v5, s38, v0\nv_lshlrev_b32 v6, 1, v5\ns_cmp_ge_u32 s37, 2\ns_cbranch_scc1 K1_w0\nbuffer_load_ushort v4, v6, s[24:27], 0 offen" + NT(128) + "\nK1_w0:")
    for it in range(4): a(f"buffer_load_dwordx4 v[{32+4*it}:{35+4*it}], v3, s[16:19], s39 offen offset:{it*1024}{NT(2)}")
    a(f"ds_write_b32 v1, v2 offset:{B}")
    levelpos(a, 36, 44, 45)
    for d, x in ((50, 44), (53, 45)):
        a(f"s_sub_u32 s48, s{x}, s46\ns_mul_i32 s49, s48, 43\ns_lshr_b32 s49, s49, 8\ns_mul_i32 s49, s49, 6\ns_cmp_ge_u32 s48, 84\ns_cselect_b32 s49, 84, s49\ns_cmp_ge_u32 s48, 91\ns_cselect_b32 s49, 91, s49")
        a(f"s_sub_u32 s48, s48, s49\ns_cmp_ge_u32 s48, 4\ns_cselect_b32 s{d+1}, 1, 2\ns_cselect_b32 s{d+2}, 4, 0\ns_cmp_eq_u32 s48, 6\ns_cselect_b32 s{d+1}, 0, s{d+1}\ns_cselect_b32 s{d+2}, 6, s{d+2}")
        a(f"s_sub_u32 s48, s48, s{d+2}\ns_sub_u32 s{d}, s{x}, s48\ns_lshl_b32 s{d}, s{d}, 6\ns_add_u32 s{d}, s{d}, s48")
    a("s_lshl_b32 s44, s44, 6\ns_lshl_b32 s45, s45, 6\ns_sub_u32 s45, s45, 64\ns_waitcnt lgkmcnt(0)\ns_barrier\ns_cmp_ge_u32 s37, 2\ns_cbranch_scc1 K1_w1\ns_waitcnt vmcnt(4)"); a.st(4)
    a("v_lshlrev_b32 v4, 16, v4\nv_mov_b32 v23, 0x2b800000\nv_cmp_eq_f32 vcc, 0, v4\nv_cndmask_b32 v4, v4, v23, vcc\nv_mul_f32 v7, v4, v4\nv_rcp_f32 v7, v7\nv_rndne_f32 v7, v7\nv_cvt_u32_f32 v7, v7\nv_med3_u32 v7, v7, 1, 63")
    a(f"v_cmp_gt_u32 vcc, {N}, v5\nv_cndmask_b32 v7, 0, v7, vcc\nv_lshlrev_b32 v7, 2, v7\nds_add_rtn_u32 v8, v7, v24 offset:{B}\ns_waitcnt lgkmcnt(0)\nK1_w1:\ns_barrier")
    a("s_cmp_ge_u32 s37, 2\ns_cbranch_scc1 K1_w2")
    a(f"v_lshlrev_b32 v9, 2, v25\nds_read_b32 v20, v9 offset:{B}\ns_waitcnt lgkmcnt(0)\nv_mov_b32 v21, v20")
    a.scan_incl(21)
    a("v_sub_u32 v21, v21, v20\nds_bpermute_b32 v21, v7, v21\ns_waitcnt lgkmcnt(0)\nv_add_u32 v8, v8, v21")
    a(f"v_lshlrev_b32 v9, 2, v8\nds_write_b32 v1, v9 offset:{B+512}\nds_write_b32 v9, v4 offset:{B+1024}\nv_lshrrev_b32 v7, 2, v7\nv_sub_u32 v7, v7, v24 clamp\nds_write_b32 v9, v7 offset:{B+1536}")
    a("v_mov_b32 v10, s44\nv_mov_b32 v11, s45\nv_cmp_gt_u32 vcc, 64, v8\nv_cndmask_b32 v10, v11, v10, vcc\nv_add_u32 v10, v10, v8\nv_lshlrev_b32 v11, 2, v10")
    a(f"s_mov_b32 s3, {WS_NEWID}\nbuffer_store_short v10, v6, s[28:31], s3 offen\ns_mov_b32 s3, {WS_LOC}\nbuffer_store_short v8, v6, s[28:31], s3 offen")
    a("v_mov_b32 v14, s50\nv_mov_b32 v15, s53\nv_cndmask_b32 v14, v15, v14, vcc\nv_mov_b32 v15, s51\nv_mov_b32 v16, s54\nv_cndmask_b32 v15, v16, v15, vcc\nv_and_b32 v16, 63, v8\nv_lshlrev_b32 v16, v15, v16\nv_add_lshl_u32 v14, v14, v16, 2")
    a(f"s_mov_b32 s3, {WS_PERM}\nbuffer_store_dword v5, v14, s[28:31], s3 offen\nv_mul_f32 v12, v4, v4\nv_rcp_f32 v13, v4\ns_mov_b32 s3, {WS_DISP}\nbuffer_store_dword v12, v11, s[28:31], s3 offen\ns_mov_b32 s3, {WS_SINV}\nbuffer_store_dword v13, v14, s[28:31], s3 offen")
    a("s_waitcnt lgkmcnt(0)\nK1_w2:\ns_barrier")
    a.st(1)
    a(f"s_cmp_ge_u32 s37, 2\ns_cbranch_scc1 K1_nt\nds_read_b32 v6, v1 offset:{B+1536}\ns_waitcnt lgkmcnt(0)\nv_mov_b32 v7, v6")
    for sft in (1, 2, 4, 8): a(f"v_max_u32_dpp v6, v6, v6 row_shr:{sft} {DPPF} bound_ctrl:0\nv_add_u32_dpp v7, v7, v7 row_shr:{sft} {DPPF} bound_ctrl:0")
    for bc, m in ((15, '0xa'), (31, '0xc')): a(f"v_max_u32_dpp v6, v6, v6 row_bcast:{bc} row_mask:{m} bank_mask:0xf\nv_add_u32_dpp v7, v7, v7 row_bcast:{bc} row_mask:{m} bank_mask:0xf")
    a("v_readlane_b32 s40, v6, 63\nv_readlane_b32 s41, v7, 63")
    a(f"s_mul_i32 s41, s41, {OPT['tal']}\ns_lshr_b32 s41, s41, 10\ns_add_u32 s41, s41, {OPT['tbe']}\ns_max_u32 s41, s41, s40\ns_add_u32 s41, s41, 3\ns_lshr_b32 s41, s41, 2\ns_min_u32 s41, s41, 16\ns_max_u32 s41, s41, 1")
    a(f"s_add_u32 s3, s45, 64\ns_cmp_eq_u32 s37, 0\ns_cselect_b32 s3, s44, s3\ns_lshr_b32 s3, s3, 4\ns_add_u32 s3, s3, {WS_TQ}\nv_mov_b32 v6, s41\ns_mov_b64 exec, 1\nbuffer_store_dword v6, v2, s[28:31], s3 offen\ns_mov_b64 exec, -1\nK1_nt:")
    a("v_lshrrev_b32 v9, 4, v25\nv_lshlrev_b32 v9, 2, v9\ns_lshl_b32 s3, s37, 6\nv_add_u32 v9, s3, v9\nv_and_b32 v12, 15, v25\nv_lshlrev_b32 v13, 4, v12\nv_lshlrev_b32 v12, 11, v12")
    for it in range(4): a(f"ds_read_b32 v{16+it}, v9 offset:{B+512+16*it}")
    a(f"v_and_b32 v14, 31, v25\nv_lshlrev_b32 v15, 4, v14\nds_read_b128 v[28:31], v15 offset:{B+1024}")
    for it in range(4):
        a(f"s_waitcnt lgkmcnt({4 if it == 0 else 4+3})" if False else "")
    a("s_waitcnt lgkmcnt(0)")
    for it in range(4):
        a(f"v_xor_b32 v{16+it}, v{16+it}, v13\nv_add_u32 v{16+it}, v{16+it}, v12")
    a("s_cmp_ge_u32 s37, 2\ns_cbranch_scc1 K1_w3\ns_waitcnt vmcnt(6)\ns_branch K1_w4\nK1_w3:\ns_waitcnt vmcnt(0)\nK1_w4:"); a.st(5)
    for it in range(4):
        for i in range(4): a(f"ds_write_b32 v{16+it}, v{32+4*it+i} offset:{i*512}")
    a("v_lshrrev_b32 v20, 5, v25\ns_lshl_b32 s3, s37, 5\nv_xor_b32 v21, s3, v15\nv_lshl_add_u32 v21, v20, 9, v21\ns_lshl_b32 s3, s37, 12\nv_add_u32 v21, s3, v21\nv_xor_b32 v22, 16, v21")
    a("v_mov_b32 v10, s44\nv_mov_b32 v11, s45\nv_cmp_gt_u32 vcc, 16, v14\nv_cndmask_b32 v10, v11, v10, vcc\nv_lshl_add_u32 v10, v14, 2, v10")
    a(f"s_mov_b32 s3, {GS}\nv_mul_lo_u32 v20, v20, s3\nv_lshl_add_u32 v10, v10, 2, v20")
    a(f"s_mul_i32 s42, s37, {8*GS}\ns_add_u32 s42, s42, {WS_G}")
    a("s_waitcnt lgkmcnt(0)\ns_barrier")
    a.st(2)
    for j in range(4): a(f"ds_read_b128 v[{32+4*j}:{35+4*j}], v{21 if j < 2 else 22} offset:{j*1024}")
    for j in range(4):
        a(f"s_waitcnt lgkmcnt({3-j})")
        for i in range(4):
            a(f"v_lshlrev_b32 v4, 16, v{32+4*j+i}\nv_and_b32 v5, 0xffff0000, v{32+4*j+i}\nv_mul_f32 v4, v{28+i}, v4\nv_mul_f32 v5, v{28+i}, v5\nv_cvt_pk_bf16_f32 v{48+4*(j&1)+i}, v4, v5")
        a(f"buffer_store_dwordx4 v[{48+4*(j&1)}:{51+4*(j&1)}], v10, s[28:31], s42 offen{WT(1)}")
        if j < 3: a(f"s_add_u32 s42, s42, {2*GS}")
    a.st(3); a.st_out(0, 28, 's37', 10); a("s_endpgm")
    a(f"K1_mm:\ns_sub_u32 s36, s2, {NCH+NWIN}\ns_lshr_b32 s34, s36, 2\ns_and_b32 s35, s36, 3\ns_load_dwordx8 s[40:47], s[0:1], 32\ns_load_dwordx2 s[48:49], s[0:1], 64\nv_lshlrev_b32 v9, 4, v25\nv_lshlrev_b32 v10, 1, v0")
    a("v_lshrrev_b32 v5, 4, v25\nv_and_b32 v6, 15, v25\nv_xor_b32 v6, v6, v5\nv_lshlrev_b32 v6, 4, v6\nv_lshl_add_u32 v6, v5, 8, v6\nv_lshlrev_b32 v8, 4, v25\nv_and_b32 v3, 31, v25\nv_lshrrev_b32 v4, 5, v25")
    a("s_waitcnt lgkmcnt(0)\ns_cmp_eq_u32 s34, 0\ns_cselect_b32 s52, s40, s44\ns_cselect_b32 s53, s41, s45\ns_cselect_b32 s54, s42, s46\ns_cselect_b32 s55, s43, s47\ns_cselect_b64 s[56:57], -1, 0")
    a.srd(20, 52, 32768); a.srd(24, 54, 32768); a.srd(28, 14, WS_SIZE); a.srd(16, 48, 256)
    a("buffer_load_ushort v10, v10, s[16:19], 0 offen")
    a("s_and_b32 s39, s37, 3\ns_lshl_b32 s39, s39, 6\nv_xor_b32 v7, s39, v6\ns_lshl_b32 s39, s37, 10\ns_mov_b32 m0, s39\ns_lshl_b32 s38, s35, 13\ns_add_u32 s38, s38, s39\nbuffer_load_dwordx4 v7, s[20:23], s38 offen" + NT(256) + " lds")
    a("s_lshl_b32 s38, s37, 12\ns_add_u32 m0, s38, 8192")
    for i in range(4): a(f"v_xor_b32 v7, {64*i}, v6\nv_cndmask_b32 v7, v8, v7, s[56:57]\nbuffer_load_dwordx4 v7, s[24:27], s38 offen offset:{1024*i}{NT(256)} lds")
    a("s_and_b32 s39, s37, 3\ns_lshr_b32 s40, s37, 2\ns_lshl_b32 s41, s40, 7")
    a("v_and_b32 v5, 15, v3\nv_xor_b32 v5, v5, v4\nv_lshlrev_b32 v5, 4, v5\nv_lshl_add_u32 v5, v3, 8, v5\nv_xor_b32 v5, s41, v5\ns_lshl_b32 s42, s39, 13\ns_add_u32 s42, s42, 8192\nv_add_u32 v7, s42, v5")
    a("s_waitcnt vmcnt(0)\ns_barrier")
    for u in range(4): a(f"v_xor_b32 v8, {32*u}, v5\nds_read_b128 v[{16+4*u}:{19+4*u}], v8")
    a("s_cmp_eq_u32 s34, 0\ns_cbranch_scc0 K1_mb")
    for u in range(4): a(f"v_xor_b32 v8, {32*u}, v7\nds_read_b128 v[{32+4*u}:{35+4*u}], v8")
    a("s_branch K1_mc\nK1_mb:")
    a("v_lshlrev_b32 v6, 11, v4\nv_lshl_add_u32 v6, v3, 1, v6\ns_lshl_b32 s42, s39, 6\ns_lshl_b32 s43, s40, 14\ns_add_u32 s42, s42, s43\ns_add_u32 s42, s42, 8192\nv_add_u32 v6, s42, v6")
    for u in range(4):
        for t in range(8): a(f"ds_read_u16 v{(48 if t&1 else 32)+4*u+t//2}, v6 offset:{(16*u+t)*256}")
    a("s_waitcnt lgkmcnt(0)")
    for i in range(16): a(f"v_lshl_or_b32 v{32+i}, v{48+i}, 16, v{32+i}")
    a("K1_mc:\ns_waitcnt lgkmcnt(0)")
    for u in range(4): a(f"v_mfma_f32_32x32x16_bf16 v[48:63], v[{16+4*u}:{19+4*u}], v[{32+4*u}:{35+4*u}], {'0' if u == 0 else 'v[48:63]'}")
    a(f"s_lshl_b32 s42, s36, 15\ns_lshl_b32 s43, s39, 13\ns_add_u32 s42, s42, s43\ns_lshl_b32 s43, s40, 12\ns_add_u32 s42, s42, s43\ns_add_u32 s42, s42, {WS_PM}")
    a(f"s_mov_b32 s3, {WS_WFR+WFR_SW+256}\nv_lshlrev_b32 v10, 16, v10\ns_cmp_lg_u32 s36, 0\ns_cbranch_scc1 K1_nw\nbuffer_store_dword v10, v1, s[28:31], s3 offen\nK1_nw:")
    for i in range(4): a(f"buffer_store_dwordx4 v[{48+4*i}:{51+4*i}], v9, s[28:31], s42 offen offset:{1024*i}")
    a.st(3); a.st_out(0, 28, 's37', 10)
    a("K1_end:\ns_endpgm")
    a.end(name, 64, 102 if OPT['stamp'] else 64)

L2_CNT = 0; L2_LU = 512; L2_BU = 1024; L2_LOC = 2048; L2_IRR = 2304; L2_O = 2560; L2_L = L2_O + 16384; TB = QN*8 + 64; L2_NEW = TB
def k2_window(a):
    Ev, NS, ND = 20, 24, 28
    MK = lambda j: f"s[{40+2*j}:{41+2*j}]"
    a(f"v_lshlrev_b32 v3, 4, v0\ns_mul_i32 s34, s2, {PWS}\ns_add_u32 s65, s34, {WS_PART}\nbuffer_load_dwordx4 v[{Ev}:{Ev+3}], v3, s[28:31], s65 offen{NT(32)}")
    a(f"v_lshlrev_b32 v4, 3, v0\ns_mov_b32 s35, {WS_IRR}\nbuffer_load_dwordx2 v[6:7], v4, s[28:31], s35 offen")
    a("v_lshlrev_b32 v5, 4, v2")
    a(f"s_lshl_b32 s34, s33, 10\ns_add_u32 s35, s34, {WS_NEWID}\ns_add_u32 s34, s34, {L2_NEW}")
    for i in range(4):
        if i == 3: a("s_cmp_lg_u32 s33, 0\ns_cbranch_scc1 K2_nd")
        a(f"s_mov_b32 m0, s34\nbuffer_load_dwordx4 v5, s[28:31], s35 offen lds")
        if i < 3: a("s_add_u32 s34, s34, 16384\ns_add_u32 s35, s35, 16384")
    a(f"s_lshl_b32 s35, s2, 8\ns_add_u32 s35, s35, {WS_LOC}\ns_mov_b32 m0, {L2_LOC}\nv_lshlrev_b32 v8, 2, v2\nbuffer_load_dword v8, s[28:31], s35 offen lds")
    a("K2_nd:")
    a("v_lshlrev_b32 v8, 2, v0\nv_mov_b32 v10, 0\ns_cmp_ge_u32 s33, 8\ns_cbranch_scc1 K2_nz\ns_and_b32 s35, s33, 6\ns_cmp_eq_u32 s35, 2\ns_cbranch_scc1 K2_nz\ns_cmp_ge_u32 s33, 2\ns_cselect_b32 s35, -1, 0\nv_mov_b32 v9, s35\nds_write_b32 v8, v9\nds_write_b32 v10, v10 offset:" + str(L2_IRR) + "\nK2_nz:")
    a("v_bfe_u32 v9, v0, 2, 5\nv_lshrrev_b32 v11, 7, v0\nv_lshl_add_u32 v9, v9, 3, v11")
    a(f"v_cmp_gt_u32 vcc, {NCH}, v9\ns_mov_b64 s[38:39], vcc\nv_mov_b32 v12, 1\nv_mov_b32 v13, 0xfc\ns_mov_b32 s64, 0\ns_mov_b32 s66, {L2_L}\ns_mov_b32 s67, 0")
    levelpos(a, 2, 60, 61)
    a("s_cmp_lt_u32 s33, 8\ns_cselect_b32 s60, s60, s61\ns_sub_u32 s61, s60, s62\ns_mul_i32 s63, s61, 43\ns_lshr_b32 s63, s63, 8\ns_cmp_ge_u32 s61, 84\ns_cselect_b32 s63, 14, s63\ns_cmp_ge_u32 s61, 91\ns_cselect_b32 s63, 15, s63")
    a("s_mul_i32 s68, s63, 6\ns_cselect_b32 s68, 91, s68\ns_sub_u32 s69, s61, s68\ns_add_u32 s68, s68, s62")
    a(f"s_lshl_b32 s68, s68, 2\ns_add_u32 s68, s68, {WS_TQ}\ns_buffer_load_dwordx8 s[48:55], s[28:31], s68")
    a(f"s_mul_i32 s62, s62, 10700\ns_lshr_b32 s62, s62, 16\ns_add_u32 s62, s62, s63\ns_mul_i32 s68, s62, {RS}\ns_add_u32 s68, s68, {WS_IDX}")
    a("s_waitcnt lgkmcnt(0)")
    a("s_mov_b32 s56, 0\ns_and_b32 s57, s48, 0xffff")
    for i in range(6): a(f"s_cmp_gt_u32 s69, {i}\ns_cselect_b32 s58, s57, 0\ns_cselect_b32 s57, s{49+i}, s57\ns_add_u32 s56, s56, s58\ns_and_b32 s57, s57, 0xffff")
    a(f"s_and_b32 s58, s33, 7\ns_cbranch_scc1 K2_nlu\ns_lshl_b32 s58, s57, 2\ns_min_u32 s58, s58, 32\ns_lshl_b64 s[58:59], -1, s58\ns_not_b32 s58, s58\nv_mov_b32 v9, s58\ns_lshl_b32 s58, s33, 5\nv_lshl_add_u32 v8, v2, 2, s58\nds_write_b32 v8, v9 offset:{L2_LU}\nK2_nlu:")
    a("s_waitcnt vmcnt(0) lgkmcnt(0)\ns_barrier"); a.st(11)
    gwarm(a)
    if OPT['tp'] == 0: tabledma(a, 5, 'c', 2)
    a("v_or_b32 v6, v6, v7\nv_cmp_ne_u32 vcc, 0, v6\ns_and_b64 vcc, vcc, s[38:39]\ns_cbranch_vccz K2_reg\nds_write_b32 v10, v12 offset:" + str(L2_IRR) + "\nK2_reg:")
    a("K2_loop:\ns_mov_b64 exec, s[38:39]")
    for j in range(4): a(f"v_cmp_ne_u32 {MK(j)}, -1, v{Ev+j}")
    for j in range(4):
        a(f"s_mov_b64 exec, {MK(j)}")
        a(f"v_lshlrev_b32_sdwa v15, 1, v{Ev+j} {SD} src1_sel:WORD_0\nv_lshrrev_b32 v16, 15, v{Ev+j}")
        a(f"ds_read_u16 v{ND+j}, v16 offset:{L2_LOC}\nds_read_u16 v{NS+j}, v15 offset:{L2_NEW}")
    a("s_waitcnt lgkmcnt(0)")
    for j in range(4):
        a(f"s_mov_b64 exec, {MK(j)}\nv_lshlrev_b32 v{ND+j}, 2, v{ND+j}\nds_add_rtn_u32 v{32+j}, v{ND+j}, v12 offset:{L2_CNT}")
        a(f"v_and_or_b32 v{36+j}, v{ND+j}, v13, s66\nv_lshrrev_b32 v16, 8, v{ND+j}\nv_lshl_add_u32 v{36+j}, v16, 13, v{36+j}")
    a("s_waitcnt lgkmcnt(0)")
    for j in range(4):
        a(f"s_mov_b64 exec, {MK(j)}")
        a(f"v_lshrrev_b32 v16, 1, v{32+j}\nv_lshl_add_u32 v15, v16, 8, v{36+j}\nv_and_b32 v16, 1, v{32+j}\nv_lshl_add_u32 v15, v16, 1, v15")
        a(f"v_cmp_gt_u32 vcc, 64, v{32+j}\ns_and_b64 exec, exec, vcc\nds_write_b16 v15, v{NS+j}")
    a(f"s_mov_b64 exec, -1\ns_cmp_lg_u32 s64, 0\ns_cbranch_scc1 K2_pa\nv_cndmask_b32 v15, 0, v12, {MK(3)}\ns_mov_b32 s64, 1")
    a(f"v_mov_b32_dpp v15, v15 quad_perm:[3,3,3,3] {DPPF}\nv_cmp_ne_u32 s[38:39], 0, v15\ns_cmp_eq_u64 s[38:39], 0\ns_cbranch_scc1 K2_pa")
    a(f"s_mov_b64 exec, s[38:39]\ns_add_u32 s65, s65, {WS_PARTB-WS_PART}\nbuffer_load_dwordx4 v[{Ev}:{Ev+3}], v3, s[28:31], s65 offen\ns_waitcnt vmcnt(0)\ns_branch K2_loop")
    a("K2_pa:\ns_waitcnt lgkmcnt(0)\ns_barrier"); a.st(12)
    if OPT['tp'] == 1: tabledma(a, 5, 'c', 2)
    a("s_mov_b32 s41, s57\ns_mov_b32 s61, s56\ns_lshr_b32 s34, s33, 3\ns_and_b32 s36, s33, 7\ns_lshl_b32 s35, s34, 8\nv_lshl_add_u32 v4, v2, 2, s35\nds_read_b32 v5, v4")
    a(f"s_lshl_b32 s37, s34, 13\ns_add_u32 s37, s37, {L2_L}\ns_lshr_b32 s46, s36, 1\ns_lshl_b32 s46, s46, 8\ns_and_b32 s47, s36, 1\ns_lshl_b32 s47, s47, 1\ns_add_u32 s46, s46, s47\ns_add_u32 s46, s46, s37\nv_lshl_add_u32 v16, v2, 2, s46")
    for t in range(4): a(f"ds_read_u16 v{20+t}, v16 offset:{t*1024}")
    a("s_lshl_b32 s42, s41, 2\ns_waitcnt lgkmcnt(4)\nv_cmp_lt_u32 vcc, s42, v5\ns_min_u32 s42, s42, 32\ns_lshl_b64 s[44:45], -1, s42\ns_not_b32 s44, s44")
    a("s_cbranch_vccz K2_ntq")
    a(f"ds_write_b32 v10, v12 offset:{L2_IRR}\nK2_ntq:")
    a("v_min_u32 v15, s42, v5\nv_subrev_u32 v15, s36, v15\nv_add_u32 v15, 7, v15\nv_lshrrev_b32 v15, 3, v15")
    a(f"s_sub_u32 s43, s42, {OPT['xr']}\ns_max_i32 s43, s43, 2\ns_bfm_b32 s45, s43, 0\ns_cmp_eq_u32 s43, 32\ns_cselect_b32 s45, -1, s45")
    a("s_lshl_b32 s46, s36, 2\nv_add_u32 v17, s46, v2\nv_and_b32 v17, 31, v17\nv_mul_u32_u24 v17, s43, v17\nv_lshrrev_b32 v17, 5, v17")
    a(f"s_lshl_b32 s46, s34, 9\ns_add_u32 s46, s46, {L2_BU}\nv_lshrrev_b32 v8, 5, v2\nv_lshlrev_b32 v8, 8, v8\nv_add_u32 v8, s46, v8")
    a(f"s_lshl_b32 s47, s34, 13\ns_add_u32 s47, s47, {L2_O}\nv_lshl_add_u32 v19, v2, 2, s47")
    a("v_mov_b32 v24, s44\nv_mov_b32 v26, -1\nv_mov_b32 v27, -1\nv_mov_b32 v41, 0x7c\ns_waitcnt lgkmcnt(0)")
    a("v_lshl_or_b32 v20, v21, 16, v20\nv_lshl_or_b32 v21, v23, 16, v22\nv_cmp_lt_u32 vcc, 0, v15")
    a("K2_rd:\ns_mov_b64 exec, vcc\ns_cbranch_execz K2_sd")
    a("v_and_b32 v28, v24, v26\nv_lshlrev_b32 v25, 2, v20\nv_and_b32 v31, s45, v28\nv_cmp_ne_u32 s[48:49], 0, v31\nv_cmp_ne_u32 s[52:53], 0, v28\nv_and_or_b32 v25, v25, v41, v8")
    a("v_cndmask_b32 v31, v28, v31, s[48:49]\nv_alignbit_b32 v31, v31, v31, v17\nv_ffbl_b32 v31, v31\nv_add_u32 v37, v31, v17\ns_cmp_ge_u32 s67, " + str(OPT['fr']) + "\ns_cselect_b64 s[56:57], -1, 0\ns_mov_b64 s[50:51], s[56:57]\ns_andn2_b64 s[54:55], exec, s[52:53]\ns_cbranch_scc0 K2_l1")
    a("s_mov_b64 exec, s[54:55]\nv_and_b32 v29, v24, v27\nv_cmp_eq_u32 s[50:51], 0, v29\nv_add_u32 v25, 128, v25\nv_cndmask_b32 v29, v29, v24, s[50:51]\nv_ffbh_u32 v29, v29\nv_sub_u32 v37, 31, v29\ns_or_b64 s[50:51], s[50:51], s[56:57]\ns_mov_b64 exec, vcc\nK2_l1:")
    a(f"v_lshlrev_b32 v34, v37, v12\nv_not_b32 v33, v34\nds_and_rtn_b32 v24, v4, v33 offset:{L2_LU}\nds_and_rtn_b32 v36, v25, v33\nv_and_b32 v37, 31, v37\nv_lshl_add_u32 v37, v37, 8, v19")
    a("s_waitcnt lgkmcnt(0)\nv_and_b32 v35, v24, v34\nv_and_b32 v38, v36, v34\nv_cndmask_b32 v39, v38, v34, s[50:51]\nv_and_b32 v39, v39, v35\nv_cmp_ne_u32 s[48:49], 0, v39")
    a(f"s_andn2_b64 exec, exec, s[48:49]\nds_or_b32 v4, v35 offset:{L2_LU}\nds_or_b32 v25, v38\nv_cndmask_b32 v26, v26, v36, s[52:53]\nv_cndmask_b32 v27, v36, v27, s[52:53]")
    a("s_mov_b64 exec, s[48:49]\nds_write_b16 v37, v20\nv_and_b32 v24, v24, v33\nv_alignbit_b32 v20, v21, v20, 16\nv_lshrrev_b32 v21, 16, v21\nv_mov_b64 v[26:27], -1\nv_subrev_u32 v15, 1, v15")
    a("s_mov_b64 exec, vcc\nv_cmp_lt_u32 vcc, 0, v15\ns_add_u32 s67, s67, 1\ns_cmp_lt_u32 s67, 4096\ns_cbranch_scc1 K2_rd")
    a(f"s_mov_b64 exec, -1\nds_write_b32 v10, v12 offset:{L2_IRR}")
    a("K2_sd:\ns_mov_b64 exec, -1")
    a("s_waitcnt lgkmcnt(0)\ns_barrier"); a.st(13)
    a("s_cmp_ge_u32 s36, s41\ns_cbranch_scc1 K2_end")
    a(f"s_lshl_b32 s46, s36, 10\nv_add_u32 v11, s46, v19\nv_and_b32 v18, 31, v2\nv_lshl_add_u32 v18, v18, 2, v8")
    a(f"ds_read_b32 v16, v4 offset:{L2_LU}\nds_read_b32 v18, v18\nds_read2st64_b32 v[20:21], v11 offset0:0 offset1:1\nds_read2st64_b32 v[22:23], v11 offset0:2 offset1:3")
    a(f"s_lshl_b32 s47, s36, 9\ns_add_u32 s37, s37, s47\nv_lshl_add_u32 v12, v2, 2, s37\nds_read2st64_b32 v[24:25], v12 offset0:16 offset1:17")
    a(f"v_mov_b32 v13, 0xffff\nv_lshlrev_b32 v15, 4, v2\ns_add_u32 s61, s61, s36\ns_lshr_b32 s39, s61, 1\ns_lshl_b32 s39, s39, 10\ns_and_b32 s61, s61, 1\ns_lshl_b32 s61, s61, 3\ns_add_u32 s39, s39, s61\ns_add_u32 s39, s39, s68\ns_lshl_b32 s38, s36, 2\ns_mov_b32 s50, -1\ns_mov_b32 s51, 0\ns_waitcnt lgkmcnt(3)")
    a("v_lshrrev_b32 v16, s38, v16\nv_lshrrev_b32 v18, s38, v18")
    for t in range(4):
        a(f"v_and_b32 v26, {1 << t}, v18\nv_cmp_ne_u32 s[{52+2*t}:{53+2*t}], 0, v26")
    for r in range(52, 60): a(f"s_ff1_i32_b32 s{r}, s{r}\ns_and_b32 s{r}, s{r}, 31\ns_add_u32 s{r}, s{r}, {ZB}")
    a("s_waitcnt lgkmcnt(0)")
    for t in range(4):
        a(f"v_mov_b32 v26, s{52+2*t}\nv_mov_b32 v27, s{53+2*t}\nv_cndmask_b32 v26, v27, v26, s[50:51]\nv_and_b32 v27, {1 << t}, v16\nv_cmp_ne_u32 vcc, 0, v27\nv_cndmask_b32 v{20+t}, v{20+t}, v26, vcc")
    a("v_and_b32 v20, v13, v20\nv_and_b32 v22, v13, v22\nv_lshl_or_b32 v20, v21, 17, v20\nv_lshl_or_b32 v21, v23, 17, v22\nbuffer_store_dwordx2 v[20:21], v15, s[28:31], s39 offen sc1")
    a("s_add_u32 s36, s36, 8\ns_cmp_ge_u32 s36, s41\ns_cbranch_scc1 K2_end")
    a(f"v_mov_b32 v43, -1\ns_add_u32 s38, s38, 32\nv_subrev_u32 v5, s38, v5\nv_mov_b32 v14, {ZB | (ZB << 16)}")
    for h in range(2):
        a(f"v_cmp_lt_i32 vcc, {2*h}, v5\nv_cndmask_b32 v26, 0, v13, vcc\nv_cmp_lt_i32 vcc, {2*h+1}, v5\nv_cndmask_b32 v26, v26, v40, vcc".replace("v40", "v43"))
        a(f"v_bfi_b32 v{24+h}, v26, v{24+h}, v14\nv_and_b32 v26, 0xffff0000, v{24+h}\nv_add_u32 v{24+h}, v{24+h}, v26")
    a("s_add_u32 s39, s39, 4096\nbuffer_store_dwordx2 v[24:25], v15, s[28:31], s39 offen sc1\ns_branch K2_end")

def f2u(x): return struct.unpack('<I', struct.pack('<f', x))[0]
SCL = f2u(math.log2(math.e)/math.sqrt(128.0))
FO = lambda i: 16*(i & 1) + 8*(i >> 1)
def k2_weights(a):
    S0 = 66048
    a(f"s_sub_u32 s34, s2, {NWIN}")
    a(f"s_lshl_b32 s39, s34, 17\ns_lshl_b32 s60, s33, 13\ns_add_u32 s39, s39, s60\ns_add_u32 s39, s39, {WS_PM}\ns_add_u32 s60, s39, 4096\nv_lshlrev_b32 v8, 4, v2")
    for i in range(4): a(f"buffer_load_dwordx4 v[{80+4*i}:{83+4*i}], v8, s[28:31], s39 offen offset:{1024*i}\nbuffer_load_dwordx4 v[{96+4*i}:{99+4*i}], v8, s[28:31], s60 offen offset:{1024*i}")
    a("s_lshr_b32 s35, s33, 2\ns_and_b32 s36, s33, 3\nv_and_b32 v3, 31, v2\nv_lshrrev_b32 v4, 5, v2")
    a(f"v_lshlrev_b32 v7, 2, v0\ns_cmp_ge_u32 s33, 8\ns_cbranch_scc1 K2w_nw\ns_mov_b32 s3, {WS_WFR+WFR_SW+256}\nbuffer_load_dword v8, v7, s[28:31], s3 offen")
    a(f"v_add_u32 v7, {S0}, v7\ns_waitcnt vmcnt(0)\nds_write_b32 v7, v8\nK2w_nw:")
    a("s_waitcnt vmcnt(0) lgkmcnt(0)\ns_barrier")
    gwarm(a)
    for i in range(16): a(f"v_add_f32 v{80+i}, v{80+i}, v{96+i}")
    a(f"s_mul_i32 s39, s35, {32*516}\ns_lshl_b32 s60, s36, 7\ns_add_u32 s39, s39, s60\nv_mul_u32_u24 v6, {4*516}, v4\nv_lshl_add_u32 v6, v3, 2, v6\nv_add_u32 v6, s39, v6")
    a(f"s_add_u32 s60, s60, {S0}\nv_lshl_add_u32 v7, v3, 2, s60\nds_read_b32 v8, v7")
    for r in range(16): a(f"ds_write_b32 v6, v{80+r} offset:{(8*(r>>2)+(r&3))*516}")
    a("v_add_f32 v9, v80, v81")
    for r in range(2, 16): a(f"v_add_f32 v9, v9, v{80+r}")
    a("ds_add_f32 v7, v9 offset:1536\ns_waitcnt lgkmcnt(1)")
    for r in range(16): a(f"v_mul_f32 v{48+r}, v8, v{80+r}")
    for q in (80, 48):
        for i in range(8): a(f"v_add_f32_dpp v{q+i}, v{q+i}, v{q+i} row_ror:8 row_mask:0xf bank_mask:0x3")
        for i in range(8): a(f"v_add_f32_dpp v{q+i}, v{q+8+i}, v{q+8+i} row_ror:8 row_mask:0xf bank_mask:0xc")
        for i in range(4): a(f"v_add_f32_dpp v{q+i}, v{q+i}, v{q+i} row_half_mirror row_mask:0xf bank_mask:0x5")
        for i in range(4): a(f"v_add_f32_dpp v{q+i}, v{q+4+i}, v{q+4+i} row_half_mirror row_mask:0xf bank_mask:0xa")
        for i in range(4): a(f"v_add_f32_dpp v{q+i}, v{q+i}, v{q+i} quad_perm:[1,0,3,2] {DPPF}")
        for i in range(4): a(f"v_add_f32_dpp v{q+i}, v{q+i}, v{q+i} quad_perm:[2,3,0,1] {DPPF}")
        a(f"v_permlane16_swap_b32 v{q}, v{q+1}\nv_permlane16_swap_b32 v{q+2}, v{q+3}\nv_add_f32 v{q}, v{q}, v{q+1}\nv_add_f32 v{q+2}, v{q+2}, v{q+3}")
    a(f"v_bfe_u32 v10, v2, 2, 2\nv_lshlrev_b32 v10, 5, v10\nv_bfe_u32 v11, v2, 4, 1\nv_lshl_add_u32 v10, v11, 2, v10\nv_lshl_add_u32 v10, v4, 4, v10\ns_lshl_b32 s60, s35, 7\ns_add_u32 s60, s60, {S0}\nv_add_u32 v10, s60, v10")
    a("s_mov_b32 exec_lo, 0x11111111\ns_mov_b32 exec_hi, 0x11111111\nds_add_f32 v10, v80 offset:512\nds_add_f32 v10, v82 offset:520\nds_add_f32 v10, v48 offset:1024\nds_add_f32 v10, v50 offset:1032\ns_mov_b64 exec, -1")
    a("s_waitcnt lgkmcnt(0)"); a("s_barrier")
    a(f"v_lshlrev_b32 v5, 3, v2\nv_add_u32 v5, {S0}, v5\nds_read_b64 v[8:9], v5\nds_read_b64 v[10:11], v5 offset:512\nds_read_b64 v[12:13], v5 offset:1024\ns_waitcnt lgkmcnt(0)")
    a("v_add_f32 v8, v8, v9\nv_add_f32 v10, v10, v11\nv_add_f32 v12, v12, v13")
    for v in (8, 10, 12): a.red63('v_add_f32', v)
    a("v_readlane_b32 s60, v8, 63\nv_readlane_b32 s61, v10, 63\nv_readlane_b32 s62, v12, 63")
    a(f"s_mov_b32 s63, {f2u(1/128.)}\ns_mov_b32 s64, {f2u(-1/128.)}\ns_mov_b32 s65, {SCL}\nv_lshlrev_b32 v15, 4, v2")
    a(f"s_lshl_b32 s66, s33, 11\ns_lshl_b32 s67, s34, 15\ns_add_u32 s66, s66, s67\ns_add_u32 s66, s66, {WS_WFR}")
    a("s_lshr_b32 s35, s33, 1\ns_and_b32 s36, s33, 1\nv_and_b32 v3, 15, v2\nv_lshrrev_b32 v4, 4, v2")
    a("s_cmp_eq_u32 s34, 0\ns_cbranch_scc0 K2w_fb")
    a("v_and_b32 v5, 1, v3\nv_lshrrev_b32 v6, 2, v3\nv_lshl_or_b32 v5, v6, 1, v5\nv_bfe_u32 v6, v3, 1, 1\nv_lshl_or_b32 v5, v6, 4, v5")
    a("s_lshr_b32 s37, s35, 1\ns_lshl_b32 s37, s37, 5\ns_and_b32 s38, s35, 1\ns_lshl_b32 s38, s38, 3\ns_add_u32 s37, s37, s38\nv_add_u32 v5, s37, v5")
    a(f"v_lshlrev_b32 v7, 2, v5\nv_add_u32 v7, {S0}, v7\nds_read_b32 v14, v7 offset:512")
    a(f"s_lshl_b32 s37, s36, 8\nv_lshl_add_u32 v6, v4, 3, s37\nv_mul_u32_u24 v5, 516, v5\nv_add_u32 v5, v5, v6\nv_add_u32 v6, {S0+1536}, v6")
    for h in range(2):
        for i in range(4):
            a(f"ds_read2_b32 v[{16+16*h+2*i}:{17+16*h+2*i}], v5 offset0:{32*h+FO(i)} offset1:{32*h+FO(i)+1}")
            a(f"ds_read2_b32 v[{24+16*h+2*i}:{25+16*h+2*i}], v6 offset0:{32*h+FO(i)} offset1:{32*h+FO(i)+1}")
    a("v_mov_b32 v8, s61\nv_mul_f32 v8, s63, v8\ns_waitcnt lgkmcnt(0)\nv_sub_f32 v14, v8, v14\nv_mul_f32 v14, s63, v14")
    for h in range(2):
        for j in range(8):
            x = 16+16*h+j
            a(f"v_add_f32 v{x}, v{x}, v14\nv_fmac_f32 v{x}, s64, v{x+8}\nv_mul_f32 v{x}, s65, v{x}")
        for i in range(4): a(f"v_cvt_pk_bf16_f32 v{48+4*h+i}, v{16+16*h+2*i}, v{17+16*h+2*i}")
        a(f"buffer_store_dwordx4 v[{48+4*h}:{51+4*h}], v15, s[28:31], s66 offen offset:{1024*h}")
    a("s_branch K2w_end\nK2w_fb:")
    a("s_lshr_b32 s37, s35, 1\ns_lshl_b32 s37, s37, 7\ns_and_b32 s38, s35, 1\ns_lshl_b32 s38, s38, 2\ns_add_u32 s37, s37, s38\nv_lshl_add_u32 v5, v3, 3, s37")
    a(f"v_add_u32 v7, {S0+1536}, v5\nds_read_b32 v14, v7")
    a(f"s_mul_i32 s37, s36, {64*516}\nv_mul_u32_u24 v6, {2*516}, v4\nv_add3_u32 v5, v5, v6, s37")
    for h in range(2):
        for i in range(4):
            for c in range(2): a(f"ds_read_b32 v{16+8*h+2*i+c}, v5 offset:{(32*h+FO(i)+c)*516}")
    a("s_waitcnt lgkmcnt(0)")
    for h in range(2):
        for j in range(8): a(f"v_fmac_f32 v{16+8*h+j}, s64, v14")
        for i in range(4): a(f"v_cvt_pk_bf16_f32 v{48+4*h+i}, v{16+8*h+2*i}, v{17+8*h+2*i}")
        a(f"buffer_store_dwordx4 v[{48+4*h}:{51+4*h}], v15, s[28:31], s66 offen offset:{1024*h}")
    a("s_cmp_ge_u32 s33, 4\ns_cbranch_scc1 K2w_end")
    a("v_and_b32 v5, 3, v2\nv_max_u32 v7, 1, v5\nv_lshlrev_b32 v7, 9, v7\nv_lshl_add_u32 v7, v4, 3, v7")
    a(f"s_lshl_b32 s37, s33, 7\ns_add_u32 s37, s37, {S0-512}\nv_add_u32 v7, s37, v7")
    for i in range(4): a(f"ds_read2_b32 v[{16+2*i}:{17+2*i}], v7 offset0:{FO(i)} offset1:{FO(i)+1}")
    a("v_mov_b32 v8, s61\nv_mov_b32 v9, s62\nv_cmp_eq_u32 s[40:41], 2, v5\nv_cmp_eq_u32 s[42:43], 3, v5\nv_cmp_eq_u32 s[44:45], 0, v5")
    a("v_cndmask_b32 v8, 0, v8, s[40:41]\nv_cndmask_b32 v8, v8, v9, s[42:43]")
    a("s_waitcnt lgkmcnt(0)")
    for j in range(8): a(f"v_fmac_f32 v{16+j}, s64, v8\nv_cndmask_b32 v{16+j}, v{16+j}, 1.0, s[44:45]")
    for i in range(4): a(f"v_cvt_pk_bf16_f32 v{48+i}, v{16+2*i}, v{17+2*i}")
    a(f"s_lshl_b32 s37, s33, 10\ns_add_u32 s37, s37, {WS_WFR+WFR_E}\nbuffer_store_dwordx4 v[48:51], v15, s[28:31], s37 offen")
    a(f"v_mov_b32 v8, s60\ns_mov_b32 s37, {WS_WFR+WFR_SW}\ns_mov_b64 exec, 1\nbuffer_store_dword v8, v15, s[28:31], s37 offen")


NQ = 44; DEP = 2; NBUF = 3
QB = QN*4
L3_CNT = TB + GS; L3_SIZE = L3_CNT + 64
ACC, AOP, ADR, BUF, TMP, GK, DIS, IDX = 2, 6, 8, 12, 24, 26, 33, 40
SPIN = 1 << 20
LSC = lambda b: ('sc1', 'nt', 'sc1 nt', 'sc0 nt', 'sc0', '')[OPT['lnt'] if b == 2 else OPT['pnt']]
TSC = lambda: ('', ' nt', ' sc1', ' sc0 sc1', ' sc0', ' sc1 nt')[OPT['tsc']]
XP = 3
NL = NQ//2
def gwarm(a):
    if OPT['gw'] != 1: return
    a(f"s_mul_i32 s52, s18, {GS}\ns_mul_i32 s53, s16, {QB}\ns_add_u32 s52, s52, s53\ns_lshl_b32 s53, s20, 8\ns_add_u32 s52, s52, s53\ns_add_u32 s52, s52, {WS_G+KS}")
    a(f"v_lshlrev_b32 v126, 7, v2\ns_mov_b64 exec, 0x3fff\nbuffer_load_dword v127, v126, s[8:11], s52 offen\ns_mov_b64 exec, -1")
def tabledma(a, v16, sfx, part=3):
    base = lambda k: a(f"s_mul_i32 s53, s18, {GS}\ns_lshl_b32 s52, s19, 10\ns_add_u32 s53, s53, s52\ns_add_u32 s53, s53, {WS_G+k*1024}\ns_add_u32 s52, s52, {TB+k*1024}")
    def run(n):
        for i in range(n):
            if i == 3: a(f"s_cmp_ge_u32 s19, 2\ns_cbranch_scc1 K3_nt{sfx}")
            a(f"s_mov_b32 m0, s52\nbuffer_load_dwordx4 v{v16}, s[8:11], s53 offen{NT(16)} lds")
            if i < n-1: a("s_add_u32 s52, s52, 16384\ns_add_u32 s53, s53, 16384")
    if part & 2: base(50); run(3)
    if not part & 1: return
    base(0); run(4)
    a(f"K3_nt{sfx}:")
    a(f"s_mul_i32 s52, s16, 98\ns_add_u32 s52, s52, s20\ns_lshl_b32 s52, s52, 8\ns_add_u32 s52, s52, {WS_DISP}\nv_lshlrev_b32 v{v16}, 2, v2")
    for i in range(7): a(f"buffer_load_dword v{DIS+i}, v{v16}, s[8:11], s52 offen offset:{i*256}")
    a(f"v_mul_u32_u24 v{v16}, 24, v2\nv_mov_b32 v45, 364\nv_cmp_eq_u32 vcc, 15, v2\nv_cndmask_b32 v{v16}, v{v16}, v45, vcc\ns_mul_i32 s52, s16, 392\ns_add_u32 s52, s52, {WS_TQ}\ns_mov_b64 exec, 0xffff")
    a(f"buffer_load_dwordx4 v[120:123], v{v16}, s[8:11], s52 offen\nbuffer_load_dwordx3 v[124:126], v{v16}, s[8:11], s52 offen offset:16\ns_mov_b64 exec, -1")
def k3(a):
    global XP
    XP = OPT['xp']
    name = 'hop_kernel'
    a.launch(name, 256, 1024, L3_SIZE)
    a.begin(name)
    a("s_cmp_ge_u32 s2, 256\ns_cbranch_scc1 K3_end")
    a.st_init()
    a("s_load_dwordx2 s[4:5], s[0:1], 88")
    a("v_lshrrev_b32 v1, 6, v0\nv_and_b32 v2, 63, v0\nv_readfirstlane_b32 s19, v1")
    a("s_lshr_b32 s16, s2, 3\ns_and_b32 s16, s16, 3\ns_and_b32 s17, s2, 7\ns_lshl_b32 s17, s17, 3\ns_lshr_b32 s18, s2, 5\ns_or_b32 s18, s18, s17")
    a("s_mul_i32 s20, s19, 6\ns_cmp_eq_u32 s19, 15\ns_cselect_b32 s20, 91, s20\ns_cmp_ge_u32 s19, 14\ns_cselect_b32 s21, 7, 6\ns_mov_b32 s33, s19")
    a("s_waitcnt lgkmcnt(0)")
    a.srd(8, 4, WS_SIZE); a.srd(28, 4, WS_SIZE)
    def ids():
        a("s_getreg_b32 s50, hwreg(HW_REG_XCC_ID)\ns_and_b32 s50, s50, 0xff\ns_add_u32 s50, s50, 1")
        a(f"s_mul_i32 s51, s18, {FGS}\ns_add_u32 s51, s51, {WS_FLAGS}")
    a("s_cmp_lg_u32 s19, 15\ns_cbranch_scc1 K3_nox"); ids()
    a(f"s_lshl_b32 s52, s16, 2\ns_add_u32 s52, s52, s51\nv_mov_b32 v4, s50\nv_mov_b32 v6, 0\nv_mov_b32 v7, {L3_CNT}\ns_mov_b64 exec, 1")
    a("buffer_store_dword v4, v6, s[8:11], s52 offen offset:2048 sc1\nds_write_b32 v7, v6\ns_mov_b64 exec, -1\nK3_nox:")
    a(f"s_cmp_ge_u32 s2, {NWIN+2}\ns_cbranch_scc1 K2_idle\ns_cmp_ge_u32 s2, {NWIN}\ns_cbranch_scc1 K2_wts")
    k2_window(a)
    a(f"K2_end:\ns_mov_b64 exec, -1\ns_waitcnt vmcnt(0) lgkmcnt(0)\ns_barrier\ns_cmp_lg_u32 s19, 0\ns_cbranch_scc1 K2_lo\nv_mov_b32 v10, 0\nds_read_b32 v4, v10 offset:{L2_IRR}")
    a(f"s_lshl_b32 s52, s2, 7\ns_add_u32 s52, s52, {WS_WDN}\ns_mov_b64 exec, 1\ns_waitcnt lgkmcnt(0)\nv_add_u32 v4, 1, v4\nbuffer_store_dword v4, v10, s[8:11], s52 offen sc1\ns_mov_b64 exec, -1\nK2_lo:\nv_lshlrev_b32 v44, 4, v2"); tabledma(a, 44, 'a', 1); a("s_branch K3_join")
    a("K2_wts:")
    k2_weights(a)
    a("K2w_end:\ns_mov_b64 exec, -1\ns_waitcnt lgkmcnt(0)\ns_barrier\ns_branch K2_tab\nK2_idle:"); gwarm(a)
    if OPT['cpf'] & 2:
        a("s_cmp_eq_u32 s19, 15\ns_cbranch_scc0 K2_tab\nv_lshlrev_b32 v3, 2, v2"); a.codepf('K3_join', 'K3_end', 3, 4, 52, 127)
    a("K2_tab:\nv_lshlrev_b32 v44, 4, v2"); tabledma(a, 44, 'b')
    if OPT['gw'] >= 2:
        a(f"s_cmp_lt_u32 s2, 200\ns_cbranch_scc1 K3_join\ns_cmp_ge_u32 s19, 14\ns_cbranch_scc1 K3_join\ns_lshr_b32 s52, s2, 3\ns_sub_u32 s52, s52, 25\ns_mul_i32 s52, s52, {896*128}\ns_and_b32 s53, s2, 7\ns_mul_i32 s53, s53, {8*GS}")
        a(f"s_add_u32 s52, s52, s53\ns_add_u32 s52, s52, {WS_G+KS}\nv_lshlrev_b32 v126, 7, v0")
        if OPT['gw'] == 2: a("s_waitcnt vmcnt(0)")
        a("buffer_load_dword v127, v126, s[8:11], s52 offen")
    a("K3_join:"); a.st(1); ids()
    a("s_mul_i32 s48, s16, 98\ns_add_u32 s48, s48, s20")
    a(f"s_lshl_b32 s49, s48, 2\ns_add_u32 s49, s49, {WS_TQ}\ns_buffer_load_dwordx8 s[40:47], s[8:11], s49")
    a(f"v_mov_b32 v5, v2\nv_lshlrev_b32 v0, 2, v5\nv_lshlrev_b32 v8, 4, v5\ns_mul_i32 s39, s18, {GS}\ns_add_u32 s39, s39, {WS_G}")
    a(f"s_lshl_b32 s69, s16, 4\ns_add_u32 s69, s69, s19\ns_mul_i32 s69, s69, {RS}\ns_add_u32 s69, s69, {WS_IDX}")
    def idxld(p, va=8):
        if p and p % 4 == 0: a("s_add_u32 s69, s69, 4096")
        a(f"buffer_load_dwordx4 v[{IDX+4*p}:{IDX+4*p+3}], v{va}, s[8:11], s69 offen offset:{(p&3)*1024}{NT(8)}")
    a("s_waitcnt lgkmcnt(0)")
    a("s_cmp_eq_u32 s21, 7\ns_cselect_b32 s46, s46, 0")
    for i in range(1, 7): a(f"s_add_u32 s{40+i}, s{40+i}, s{39+i}")
    a(f"s_min_u32 s47, s46, {NQ}\ns_sub_u32 s28, s47, {DEP+1}\ns_mov_b64 s[32:33], 0")
    for i in range(7): a(f"s_sub_u32 s{40+i}, s{40+i}, 1\ns_bitset1_b64 s[32:33], s{40+i}")
    a("s_add_u32 s52, s28, 1\ns_lshr_b64 s[34:35], s[32:33], s52\ns_mov_b64 s[24:25], s[32:33]\ns_bitset1_b64 s[24:25], s28")
    def wpoll(sfx):
        a(f"K3_wp{sfx}:\nbuffer_load_dword v4, v6, s[8:11], s52 offen sc1\ns_waitcnt vmcnt(0)\nv_cmp_eq_u32 vcc, 0, v4\ns_cbranch_vccz K3_wd{sfx}\ns_add_u32 s64, s64, 1\ns_cmp_gt_u32 s64, {SPIN}\ns_cbranch_scc1 K3_wd{sfx}\ns_sleep {OPT['slw']}\ns_branch K3_wp{sfx}\nK3_wd{sfx}:")
    a(f"s_mov_b32 s64, 0\ns_mul_i32 s52, s16, {49*128}\ns_add_u32 s52, s52, {WS_WDN}")
    if OPT['pw']:
        a("v_add_u32 v6, s20, v5\nv_mov_b32 v7, v6")
        for x, y in SWAPS:
            for p, q in ((x, y), (y, x)): a(f"v_mov_b32 v9, {q}\nv_cmp_eq_u32 vcc, {p}, v6\nv_cndmask_b32 v7, v7, v9, vcc")
        a("v_lshrrev_b32 v7, 1, v7\nv_lshlrev_b32 v6, 7, v7\ns_bfm_b64 exec, s21, 0"); wpoll('a'); a("s_mov_b64 exec, -1")
    a(f"s_waitcnt vmcnt(0)\nv_add3_u32 v{BUF}, v120, v121, v122\nv_add3_u32 v{BUF}, v{BUF}, v123, v124\nv_add_u32 v{BUF}, v{BUF}, v125\ns_mov_b64 exec, 0xc000\nv_add_u32 v{BUF}, v{BUF}, v126\ns_mov_b64 exec, -1")
    if OPT['pw']:
        for p in range(XP+1): idxld(p)
    a("s_cmp_lg_u32 s19, 0\ns_cbranch_scc1 K3_nw\nv_lshlrev_b32 v6, 5, v0\ns_mov_b32 exec_hi, 0x1ffff"); wpoll('b')
    a(f"v_cmp_ne_u32 vcc, 1, v4\ns_cmp_lg_u64 vcc, 0\ns_cselect_b32 s52, 1, 0\nv_mov_b32 v4, s52\nv_mov_b32 v6, {L3_CNT}\nds_write_b32 v6, v4 offset:4\ns_mov_b64 exec, -1\nK3_nw:")
    a(f"s_waitcnt lgkmcnt(0)"); a.st(2); a("s_barrier"); a.st(3)
    if not OPT['pw']:
        for p in range(XP+1): idxld(p)
    a(f"s_lshl_b32 m0, s48, 8\nv_mov_b32 v6, {L3_CNT}\nds_read_b32 v{BUF+7}, v6 offset:4")
    for i in range(7): a(f"ds_read_addtid_b32 v{GK+i} offset:{TB+i*256}")
    a(f"buffer_load_dword v{TMP}, v0, s[8:11], s51 offen offset:2048 sc1")
    LA = OPT['la']; LD = {}; nxt = XP+1
    def late(lo, hi):
        if hi > lo: a(f"v_lshlrev_b32 v{TMP+1}, 2, v0")
        for p in range(lo, hi): a(f"s_cmp_gt_u32 s47, {2*p}\ns_cselect_b64 exec, -1, 1"); idxld(p, TMP+1)
        a("s_mov_b64 exec, -1")
    late(nxt, nxt+LA); nxt += LA
    for p in range(0, NQ, 4):
        if p < NQ-DEP-1: LD[p] = (nxt, min(nxt+2, NL)); nxt = LD[p][1]
    EM = sum(1 << p for p in LD)
    a(f"s_mov_b64 s[88:89], s[24:25]\ns_or_b32 s24, s24, {EM & 0xffffffff}\ns_or_b32 s25, s25, {EM >> 32}")
    issued = lambda p: max([XP+1+LA] + [hi for q, (lo, hi) in LD.items() if q < p])
    tb = 32; lb = 2; TBS_ = TOS
    a(f"v_lshrrev_b32 v1, {1+lb}, v5\nv_mul_u32_u24 v1, {TBS_}, v1\nv_and_b32 v4, {(2 << lb)-1}, v5\nv_lshl_add_u32 v1, v4, 4, v1\nv_and_b32 v4, 3, v5")
    a(f"v_cmp_eq_u32 s[54:55], 0, v4\nv_cmp_eq_u32 s[56:57], 1, v4\nv_mov_b32 v2, 0x3f80\nv_mov_b32 v3, 0x3f800000")
    a(f"v_cndmask_b32 v{AOP}, 0, v2, s[54:55]\nv_cndmask_b32 v{AOP}, v{AOP}, v3, s[56:57]\nv_mov_b32 v{AOP+1}, v{AOP}")
    for i in range(4): a(f"v_mov_b32 v{ACC+i}, 0")
    a("s_lshl_b32 s52, s19, 7\ns_add_u32 s65, s52, s51")
    a("s_lshl_b32 s58, s16, 2\ns_add_u32 s58, s58, s65")
    a(f"s_lshl_b32 s59, s20, 8\ns_mul_i32 s60, s16, {QB}\ns_add_u32 s60, s60, s59")
    a(f"s_mul_i32 s61, s48, {(64//tb)*TBS_}\ns_lshl_b32 s52, s18, {5+lb}\ns_add_u32 s61, s61, s52\ns_add_u32 s61, s61, {WS_TOK}")
    for r in range(1, 4): a(f"s_add_u32 s52, s16, {r}\ns_and_b32 s52, s52, 3\ns_mul_i32 s52, s52, {QB}\ns_add_u32 s{65+r}, s52, s59")
    a(f"s_mov_b32 s22, 1")
    def ad1(p, h):
        r = IDX+2*p+(h >> 1)
        a(f"v_lshrrev_b32 v{ADR+h}, 15, v{r}" if h & 1 else f"v_lshlrev_b32_sdwa v{ADR+h}, 2, v{r} {SD} src1_sel:WORD_0")
    def adr(p):
        for h in range(4): ad1(p, h)
    def rd(p):
        for h in range(4): a(f"ds_read_b32 v{BUF+4*(p%NBUF)+h}, v{ADR+h} offset:{TB}")
    def mf(p, h):
        b = BUF+4*(p%NBUF)+2*h
        if OPT['exp'] & 2: return
        a(f"v_mfma_f32_4x4x4_16b_bf16 v[{ACC}:{ACC+3}], v[{AOP}:{AOP+1}], v[{b}:{b+1}], v[{ACC}:{ACC+3}]")
    def vw(p): pass
    CALL = "s_swappc_b64 s[30:31], s[26:27]"
    T0, T1 = TMP, TMP+1
    a(f"s_mov_b64 exec, 15\ns_waitcnt vmcnt({LA})\nK3_xp:\nv_cmp_eq_u32 vcc, 0, v{TMP}\ns_cbranch_vccz K3_xb\ns_add_u32 s64, s64, 1\ns_cmp_gt_u32 s64, {SPIN}\ns_cbranch_scc1 K3_xb")
    a(f"buffer_load_dword v{TMP}, v0, s[8:11], s51 offen offset:2048 sc1\ns_waitcnt vmcnt(0)\ns_branch K3_xp\nK3_xb:")
    a(f"v_cmp_ne_u32 vcc, s50, v{TMP}\ns_cmp_lg_u64 vcc, 0\ns_cselect_b32 s23, 1, 0\ns_mov_b64 exec, -1")
    a("s_mov_b64 exec, 0xffff")
    a(f"s_waitcnt lgkmcnt(0)\nv_lshl_add_u32 v{BUF}, v{BUF+7}, 8, v{BUF}\nv_cmp_lt_u32 vcc, {NQ}, v{BUF}\ns_cmp_lg_u64 vcc, 0\ns_cselect_b32 s29, 1, {OPT['slow']}\ns_mov_b64 exec, -1")
    a("s_getpc_b64 s[40:41]\nK3_pc:\ns_add_u32 s40, s40, K3_fl0_0-K3_pc\ns_addc_u32 s41, s41, 0\ns_mul_i32 s42, s23, K3_fl1_0-K3_fl0_0\ns_mov_b32 s43, K3_fl2_0-K3_fl0_0")
    a(f"s_add_u32 s45, s39, {KS}\ns_waitcnt lgkmcnt(0)")
    if OPT['exp'] & 4:
        a("s_waitcnt vmcnt(0)\nv_lshrrev_b32 v24, 2, v0\nv_lshl_or_b32 v24, v24, 17, v24")
        for p in range(2*NQ): a(f"v_add_u32 v{IDX+p}, {(p*64) | (p*64+64*99) << 17}, v24")
    a("K3_hop:")
    a(f"s_mov_b32 s52, s39\ns_mov_b32 s39, s45\ns_add_u32 s53, s39, {KS}\ns_cmp_eq_u32 s23, 0\ns_cselect_b32 s45, s52, s53")
    a(f"s_add_u32 s61, s61, {tb*256}\ns_add_u32 s37, s39, s60")
    assert not OPT['px']
    a("s_cmp_eq_u32 s22, 7\ns_cselect_b32 s42, s43, s42\ns_add_u32 s26, s40, s42\ns_addc_u32 s27, s41, 0")
    if OPT['prio'] == 1: a("s_cmp_ge_u32 s19, 8\ns_cbranch_scc1 K3_p2\ns_setprio 3\ns_branch K3_p3\nK3_p2:\ns_setprio 2\nK3_p3:")
    if OPT['prio'] in (2, 4, 5, 6, 7): a("s_setprio 3")
    if OPT['prio'] == 3: a("s_setprio 1")
    a("s_cmp_lg_u32 s29, 0\ns_cbranch_scc1 K3_slow")
    for p in range(DEP): adr(p); rd(p)
    adr(DEP)
    def tok(part):
        if OPT['exp'] & 8: return
        if part == 0: a(f"buffer_store_dwordx4 v[{GK}:{GK+3}], v1, s[8:11], s38 offen{TSC()}")
        if part == 1:
            a(f"v_lshrrev_b32 v{T0}, {4+lb}, v0\nv_mul_u32_u24 v{T0}, {TBS_}, v{T0}\nv_and_b32 v{T1}, {(16 << lb)-4}, v0\nv_lshl_add_u32 v{T0}, v{T1}, 1, v{T0}\ns_add_u32 s38, s38, {(256//tb)*TBS_}")
            a(f"buffer_store_dwordx2 v[{GK+4}:{GK+5}], v{T0}, s[8:11], s38 offen{TSC()}")
        if part == 2:
            l = a.lab('K3_t')
            a(f"s_cmp_eq_u32 s21, 7\ns_cbranch_scc0 {l}\nv_lshrrev_b32 v{T0}, {5+lb}, v0\nv_mul_u32_u24 v{T0}, {TBS_}, v{T0}\nv_and_b32 v{T1}, {(32 << lb)-4}, v0\nv_add_u32 v{T0}, v{T0}, v{T1}\ns_add_u32 s38, s38, {(128//tb)*TBS_}")
            a(f"buffer_store_dword v{GK+6}, v{T0}, s[8:11], s38 offen{TSC()}\n{l}:")
    a(f"s_sub_u32 s38, s61, {tb*256}"); tok(0)
    if OPT['cpf'] & 4:
        a("s_cmp_eq_u32 s22, 7\ns_cbranch_scc0 K3_npf\ns_cmp_eq_u32 s19, 0\ns_cbranch_scc0 K3_npf"); a.codepf('att_kernel', 'K4_end', 0, T0, 52, ACC+3); a("K3_npf:")
    for p in range(NQ-DEP):
        rd(p+DEP); a(f"s_waitcnt lgkmcnt({4*DEP})"); mf(p, 0)
        if p+DEP+1 < NQ:
            vw(p+DEP+1)
            ad1(p+DEP+1, 0); ad1(p+DEP+1, 1); mf(p, 1); ad1(p+DEP+1, 2); ad1(p+DEP+1, 3)
        else: mf(p, 1)
        if OPT['prio'] == 2 and p in (9, 18, 27): a(f"s_setprio {2 - (9, 18, 27).index(p)}")
        if OPT['prio'] == 1 and p in (11, 23): a(f"s_cmp_ge_u32 s19, 8\ns_cbranch_scc0 K3_q{p}\ns_setprio {1 if p == 11 else 0}\nK3_q{p}:")
        a(f"s_bitcmp1_b64 s[24:25], {p}\ns_cbranch_scc1 K3_st{p}\nK3_bk{p}:")
    a("s_endpgm")
    for p in range(NQ-DEP):
        a(f"K3_st{p}:")
        if p in LD: a(f"s_cmp_eq_u32 s22, 1\ns_cbranch_scc0 K3_nl{p}"); late(*LD[p]); a(f"s_waitcnt vmcnt({LD[p][1] - 1 - min((p+4+DEP+1)//2, NL-1)})\nK3_nl{p}:")
        a(f"s_bitcmp1_b64 s[32:33], {p}\ns_cbranch_scc0 K3_nf{p}\n{CALL}\nK3_nf{p}:")
        a(f"s_cmp_eq_u32 s28, {p}\ns_cbranch_scc1 K3_dr{(p+1)%NBUF}\ns_branch K3_bk{p}")
    for r in range(NBUF):
        a(f"K3_dr{r}:")
        for i in range(DEP):
            a(f"s_waitcnt lgkmcnt({4*(DEP-1-i)})"); mf(r+i, 0); mf(r+i, 1)
            if i < DEP-1: a(f"s_bitcmp1_b32 s34, {i}\ns_cbranch_scc0 K3_dn{r}_{i}\n{CALL}\nK3_dn{r}_{i}:")
            else: a(f"{CALL}\ns_branch K3_hend")
    for m in range(3):
        for l in range(7):
            tg = m == 0 and OPT['px']; sc = ' sc1' if m else NT(4)
            a(f".p2align 7\nK3_fl{m}_{l}:\ns_add_u32 s26, s26, 128\ns_addc_u32 s27, s27, 0")
            if tg and l >= 5:
                a(f"s_cmp_eq_u32 s22, 1\ns_cbranch_scc0 K3_nz{l}\ns_waitcnt vmcnt(0)\nK3_nz{l}:")
            PR = {4: {1: 2, 3: 1, 4: 0}, 5: {0: 2, 2: 1, 4: 0}, 6: {2: 2, 3: 1, 4: 0}, 7: {1: 2, 2: 1, 3: 0}}.get(OPT['prio'], {})
            if l in PR: a(f"s_setprio {PR[l]}")
            if l in (1, 2): tok(l)
            if m == 0 and l == 0 and OPT['wb6']:
                a(f"s_cmp_lt_u32 s22, {OPT['wb6']}\ns_cbranch_scc1 K3_nwc\ns_cmp_lg_u32 s19, 0\ns_cbranch_scc1 K3_nwc\ns_cmp_ge_u32 s2, 8\ns_cbranch_scc1 K3_nwc\nbuffer_wbl2 sc1\nK3_nwc:")
            if m == 2 and l == OPT['wb'] - 1:
                a(f"s_cmp_lg_u32 s19, {OPT['wbw']}\ns_cbranch_scc1 K3_nwb\ns_cmp_ge_u32 s2, 8\ns_cbranch_scc1 K3_nwb\nbuffer_wbl2 sc1\nK3_nwb:")
            a(f"v_mul_f32 v{T0}, v{DIS+l}, v{ACC}\nv_mul_f32 v{T1}, v{DIS+l}, v{ACC+1}\nv_mov_b64 v[{ACC}:{ACC+1}], 0")
            if tg: a(f"v_add_u32 v{T0}, s47, v{T0}\nv_cvt_pk_bf16_f32 v{T1}, v{T1}, v{T1}\nv_perm_b32 v{T0}, v{T1}, v{T0}, s63\nv_bfi_b32 v{GK+l}, 1, s46, v{T0}")
            else: a(f"v_cvt_pk_bf16_f32 v{GK+l}, v{T0}, v{T1}")
            if m < 2 and l == 3: a(f"v_lshlrev_b32 v{T0}, 2, v0\nbuffer_store_dwordx4 v[{GK}:{GK+3}], v{T0}, s[8:11], s37 offen{sc}")
            if m < 2 and l == 5: a(f"v_lshlrev_b32 v{T0}, 1, v0\nbuffer_store_dwordx2 v[{GK+4}:{GK+5}], v{T0}, s[8:11], s37 offen offset:1024{sc}")
            if m < 2 and l == 6: a(f"buffer_store_dword v{GK+6}, v0, s[8:11], s37 offen offset:1536{sc}")
            if tg and l in (0, 4):
                a(f"s_cmp_eq_u32 s22, 1\ns_cbranch_scc0 K3_nc{l}\nv_mov_b32 v{T1}, 0")
                for x in ((0, 1, 2), (3, 4, 5, 6))[l >> 2]:
                    if x == 6: a(f"s_cmp_eq_u32 s21, 7\ns_cselect_b32 s36, s36, {WS_SIZE}")
                    a(f"buffer_store_dword v{T1}, v0, s[8:11], s36 offen offset:{x*256}")
                a(f"K3_nc{l}:")
            a("s_setpc_b64 s[30:31]")
            a(f".if (. - K3_fl{m}_{l}) > 128\n.error \"flush too long\"\n.endif")
    AC0 = 0
    a(f"K3_slow:\ns_load_dwordx4 s[72:75], s[0:1], 8\ns_sub_u32 s38, s61, {tb*256}"); tok(0)
    a(f"s_lshl_b32 s52, s20, 9\ns_add_u32 s52, s52, {AC0}\nv_lshl_add_u32 v8, v0, 1, s52\nv_mov_b32 v10, 0\nv_mov_b32 v11, 0")
    for l in range(6): a(f"ds_write_b64 v8, v[10:11] offset:{l*512}")
    a("s_cmp_eq_u32 s21, 7\ns_cbranch_scc0 K3_s6\nds_write_b64 v8, v[10:11] offset:3072\nK3_s6:\ns_waitcnt lgkmcnt(0)")
    a.srd(76, 72, E*4); a.srd(80, 74, E*4)
    a(f"s_barrier\ns_lshl_b32 s52, s19, 8\ns_mul_i32 s53, s16, {QN}\ns_mov_b32 s54, {WS_NEWID}")
    a("K3_sl:\nbuffer_load_dword v12, v0, s[76:79], s52 offen\nbuffer_load_dword v13, v0, s[80:83], s52 offen\nv_add_u32 v14, s52, v0\ns_waitcnt vmcnt(0)\nv_lshlrev_b32 v12, 1, v12\nv_lshlrev_b32 v13, 1, v13")
    a("buffer_load_ushort v12, v12, s[8:11], s54 offen\nbuffer_load_ushort v13, v13, s[8:11], s54 offen\ns_waitcnt vmcnt(0)\nv_lshlrev_b32 v12, 2, v12\nds_read_b32 v12, v12 offset:" + str(TB) + "\nv_subrev_u32 v13, s53, v13")
    a(f"v_cmp_gt_u32 vcc, {E*4}, v14\ns_mov_b64 exec, vcc\nv_cmp_gt_u32 vcc, {QN}, v13\ns_mov_b64 exec, vcc\nv_lshlrev_b32 v13, 3, v13\nv_add_u32 v13, {AC0}, v13\ns_waitcnt lgkmcnt(0)")
    a(f"v_lshlrev_b32 v15, 16, v12\nv_and_b32 v12, 0xffff0000, v12\nds_add_f32 v13, v15\nds_add_f32 v13, v12 offset:4\ns_mov_b64 exec, -1\ns_add_u32 s52, s52, 4096\ns_cmp_lt_u32 s52, {E*4}\ns_cbranch_scc1 K3_sl")
    a("s_waitcnt lgkmcnt(0)\ns_barrier")
    for l in range(7):
        if l == 6: a("s_cmp_eq_u32 s21, 7\ns_cbranch_scc0 K3_hend")
        a(f"ds_read_b64 v[{ACC}:{ACC+1}], v8 offset:{l*512}\ns_waitcnt lgkmcnt(0)\n{CALL}")
    a("K3_hend:"); a.st(4)
    if OPT['stamp'] in (1, 2): a("s_cmp_eq_u32 s22, 1\ns_cselect_b32 s80, s74, s80\ns_cselect_b32 s74, 0, s74")
    a("s_mov_b64 s[24:25], s[88:89]\ns_cmp_eq_u32 s22, 7\ns_cbranch_scc1 K3_fin")
    if OPT['prio']: a(f"s_setprio {OPT['wprio']}")
    a(f"v_mov_b32 v{T0}, s22\nv_mov_b32 v{T1}, 1\nv_mov_b32 v{ACC}, {L3_CNT}\ns_mov_b64 exec, 1\nds_add_u32 v{ACC}, v{T1}")
    if OPT['px']: a("s_cmp_gt_u32 s22, 1\ns_cselect_b32 s52, s23, 1\ns_cmp_eq_u32 s52, 0\ns_cbranch_scc1 K3_px")
    a("s_waitcnt vmcnt(0)"); a.st(5)
    a("s_cmp_eq_u32 s23, 0\ns_cbranch_scc0 K3_g1")
    a(f"buffer_store_dword v{T0}, v0, s[8:11], s58 offen\ns_branch K3_g2\nK3_g1:\nbuffer_store_dword v{T0}, v0, s[8:11], s58 offen sc1\nK3_g2:")
    a(f"s_mov_b64 exec, 15")
    NPL = OPT['npl']
    PL = lambda i: f"buffer_load_dword v{BUF+i}, v0, s[8:11], s65 offen {LSC(1)}"
    for i in range(NPL-1): a(PL(i) + f"\ns_sleep {OPT['slg']}")
    a(f"K3_poll:\ns_add_u32 s64, s64, 1\ns_cmp_gt_u32 s64, {SPIN}\ns_cbranch_scc1 K3_pb")
    for i in range(NPL):
        a(PL((i+NPL-1) % NPL) + f"\ns_waitcnt vmcnt({NPL-1})\nv_cmp_gt_u32 vcc, s22, v{BUF+i}\ns_cbranch_vccz K3_pb\ns_sleep {OPT['slg']}")
    a("s_branch K3_poll\nK3_pb:")
    X = AOP+1; AR = (14, 18, 2); B1 = (22, 23, T1)
    a(f"K3_px:\ns_mov_b64 exec, -1\nv_lshlrev_b32 v{T0}, 1, v0")
    for r in range(3): a(f"s_add_u32 s{53+r}, s{66+r}, s39")
    a(f"K3_pA:\nv_lshlrev_b32 v{X}, 2, v0")
    for r in range(3): a(f"buffer_load_dwordx4 v[{AR[r]}:{AR[r]+3}], v{X}, s[8:11], s{53+r} offen {LSC(2)}")
    a("K3_pB:")
    for r in range(3): a(f"buffer_load_dwordx2 v[{8+2*r}:{9+2*r}], v{T0}, s[8:11], s{53+r} offen offset:1024 {LSC(2)}")
    a("s_cmp_eq_u32 s21, 7\ns_cbranch_scc0 K3_p6")
    for r in range(3): a(f"buffer_load_dword v{B1[r]}, v0, s[8:11], s{53+r} offen offset:1536 {LSC(2)}")
    a("K3_p6:")
    if OPT['px']:
        def chk(rs, first=True):
            for i, r in enumerate(rs): a(f"v_xor_b32 v{X}, s62, v{r}" if (first and i == 0) else f"v_bitop3_b32 v{X}, v{X}, v{r}, s62 bitop3:0xf6")
        a("s_cmp_eq_u32 s35, 2\ns_cbranch_scc1 K3_pD\ns_waitcnt vmcnt(0)\ns_cmp_eq_u32 s35, 1\ns_cbranch_scc1 K3_pC")
        chk(list(range(14, 22)) + [2, 3, 4, 5])
        a(f"v_and_b32 v{X}, 1, v{X}\nv_cmp_ne_u32 vcc, 0, v{X}\ns_cbranch_vccz K3_pE\ns_add_u32 s64, s64, 1\ns_cmp_gt_u32 s64, {SPIN}\ns_cbranch_scc1 K3_pD\ns_sleep {OPT['slp']}\ns_branch K3_pA\nK3_pE:\ns_mov_b32 s35, 1\nK3_pC:")
        chk(range(8, 14)); a("s_cmp_eq_u32 s21, 7\ns_cbranch_scc0 K3_p7"); chk(B1, False); a("K3_p7:")
        a(f"v_and_b32 v{X}, 1, v{X}\nv_cmp_ne_u32 vcc, 0, v{X}\ns_cbranch_vccz K3_pD\ns_add_u32 s64, s64, 1\ns_cmp_gt_u32 s64, {SPIN}\ns_cbranch_scc1 K3_pD\ns_sleep {OPT['slp']}\ns_branch K3_pB")
    a("K3_pD:"); a.st(10 if False else 7)
    a(f"s_lshl_b32 s52, s22, 4\nv_mov_b32 v{T0}, {L3_CNT}\ns_mov_b64 exec, 1\nK3_aw:\nds_read_b32 v{X}, v{T0}\ns_waitcnt lgkmcnt(0)\nv_readfirstlane_b32 s53, v{X}\ns_cmp_ge_u32 s53, s52\ns_cbranch_scc1 K3_ad\ns_add_u32 s64, s64, 1\ns_cmp_gt_u32 s64, {SPIN}\ns_cbranch_scc1 K3_ad\ns_sleep {OPT['sll']}\ns_branch K3_aw\nK3_ad:\ns_mov_b64 exec, -1"); a.st(6)
    a("s_mov_b32 m0, s60")
    for i in range(6): a(f"ds_write_addtid_b32 v{GK+i} offset:{TB+i*256}")
    a(f"s_cmp_eq_u32 s21, 7\ns_cbranch_scc0 K3_w6\nds_write_addtid_b32 v{GK+6} offset:{TB+1536}\ns_waitcnt vmcnt(0)")
    for r in range(3): a(f"s_mov_b32 m0, s{66+r}\nds_write_addtid_b32 v{B1[r]} offset:{TB+1536}")
    a("K3_w6:")
    for r in range(3):
        a(f"s_mov_b32 m0, s{66+r}\ns_waitcnt vmcnt({5-r})")
        for i in range(4): a(f"ds_write_addtid_b32 v{AR[r]+i} offset:{TB+i*256}")
    for r in range(3):
        a(f"s_mov_b32 m0, s{66+r}\ns_waitcnt vmcnt({2-r})")
        for i in range(2): a(f"ds_write_addtid_b32 v{8+2*r+i} offset:{TB+1024+i*256}")
    a(f"v_mov_b32 v{X}, v{AOP}")
    for i in range(4): a(f"v_mov_b32 v{ACC+i}, 0")
    a(f"s_add_u32 s22, s22, 1\ns_waitcnt vmcnt(0) lgkmcnt(0)"); a.st(8); a("s_barrier"); a.st(9)
    a("s_branch K3_hop")
    a("K3_fin:")
    a("s_mov_b32 s38, s61"); tok(0); tok(1); tok(2); a.st_out(2, 8, 's19', 10)
    a("K3_end:\ns_endpgm")
    a.end(name, 128, 102)

import sched
L4_E = 131072; L4_SCR = L4_E + 8192; L4_SIZE = L4_SCR + 4096
TK = 16; QQ = 48; AL = 64; TA = 76; WF = 80; NWF = 2; IB = 88; SV = (100, 101); AC = 104; PK = 136; SS = 152; ZS = 160; ZD = 164; OO = 168; CT = 232; VM = 238; PA = 240; RL = 244; EA = (248, 96); PM = (252, 254)
EPS = f2u(1e-5); I128 = f2u(1/128.); LOG2E = f2u(math.log2(math.e))
def k4(a):
    assert OPT['sel'] and not OPT['fin']
    global VM
    if OPT['sel']: VM = 10
    name = 'att_kernel'
    a.launch(name, 256, 256, L4_SIZE)
    a.begin(name)
    W8 = sched.Waits(); sched.VMEM_LAT = OPT['vl']; sched.STRETCH = OPT['str']/100; sched.QLAT = OPT['ql']; sched.TH = OPT['th']; sched.EDF = OPT['edf']
    L = []
    def o(text, R=(), W=(), rr=(), pri=0):
        for t in text.split('\n'):
            x = sched.Op(t, R, W, pri); x.r |= {('v', r) for r in rr}; L.append(x)
    def flush(do_sched):
        ops = sched.schedule(L, True) if do_sched else list(L)
        for t in W8.emit(ops): a(t)
        L.clear()
    a("s_cmp_ge_u32 s2, 256\ns_cbranch_scc1 K4_end")
    a.st_init()
    a("s_load_dwordx2 s[4:5], s[0:1], 88\ns_load_dwordx2 s[6:7], s[0:1], 72")
    a("v_lshrrev_b32 v4, 6, v0\nv_and_b32 v0, 63, v0\nv_readfirstlane_b32 s19, v4\nv_lshlrev_b32 v2, 4, v0")
    a("v_lshrrev_b32 v5, 3, v0\nv_and_b32 v6, 7, v0\nv_xor_b32 v6, v6, v5\ns_lshl_b32 s3, s19, 1\nv_xor_b32 v6, s3, v6\nv_lshlrev_b32 v6, 4, v6\nv_lshl_add_u32 v103, v5, 7, v6\nv_xor_b32 v12, 16, v103")
    a("s_mul_i32 s20, s2, 3\ns_lshl_b32 s44, s19, 14")
    a(f"v_lshrrev_b32 v5, 5, v0\nv_bfe_u32 v6, v0, 3, 1\nv_xor_b32 v6, v6, v5\nv_lshlrev_b32 v3, 3, v5\nv_lshl_add_u32 v102, v6, 2, v3\nv_add_u32 v102, {WS_SINV-WS_PERM}, v102")
    if OPT['fin']: a("v_and_b32 v3, 3, v0\nv_lshlrev_b32 v3, 2, v3")
    a("s_waitcnt lgkmcnt(0)")
    a.srd(8, 4, WS_SIZE); a.srd(12, 6, N*256)
    a(f"s_mov_b32 s3, {WS_WFR+WFR_SW}\ns_buffer_load_dword s24, s[8:11], s3")
    QS = lambda g: 52 + g
    def tdma(t, R=()):
        b = t & 1
        o(f"s_mul_i32 s21, s{60+t}, {TOS}\ns_add_u32 s21, s21, s44\ns_add_u32 s21, s21, {WS_TOK}")
        for x in range(0 if (t > 0 and OPT['exp'] & 64) else 4):
            if x: o("s_add_u32 s21, s21, 4096")
            o(f"s_add_u32 m0, s44, {b*65536 + 4096*x}")
            for y in range(4): o(f"buffer_load_dwordx4 {'v103' if x < 2 else 'v12'}, s[8:11], s21 offen offset:{y*1024}{NT(1)} lds", W=[f'dma{t}_{x}{y}', 'q'], R=R, pri=OPT['dp'])
    DM = lambda t: [f'dma{t}_{x}{y}' for x in range(4) for y in range(4)]
    def small(g):
        o(f"s_lshl_b32 s23, s{QS(g)}, 4\ns_add_u32 s23, s23, {WS_PERM}" + ("\ns_add_u32 s23, s23, s59" if g == 6 else ""))
        o(f"buffer_load_dword v{SV[g&1]}, v102, s[8:11], s23 offen", pri=2000)
        o(f"buffer_load_dword v{PM[g&1]}, v3, s[8:11], s23 offen" if OPT['fin'] else f"buffer_load_dwordx2 v[{PM[g&1]}:{PM[g&1]+1}], v3, s[8:11], s23 offen", pri=2000)
    def wdma(lo, hi, tag):
        for i in range(lo, hi):
            o(f"s_add_u32 m0, s25, {4096*i}\ns_add_u32 s27, s26, {4096*i}"); o("buffer_load_dwordx4 v2, s[8:11], s27 offen lds", W=[tag + str(i), 'q'])
    for t in range(3): a(f"s_add_u32 s{60+t}, s20, {t}")
    for g in range(6): a(f"s_lshl_b32 s3, s{60+g//2}, 3\ns_add_u32 s3, s3, s19\ns_add_u32 s{QS(g)}, s3, {4*(g&1)}")
    a(f"s_lshr_b32 s58, s2, 1\ns_add_u32 s58, s58, 6144\ns_lshr_b32 s63, s58, 3\ns_and_b32 s3, s2, 3\ns_cmp_eq_u32 s19, s3\ns_cselect_b32 s31, 1, 0")
    a("s_xor_b32 s49, s58, s19\ns_and_b32 s49, s49, 7\ns_lshl_b32 s49, s49, 4\ns_and_b32 s59, s2, 1\ns_lshl_b32 s59, s59, 2\ns_or_b32 s49, s49, s59")
    a(f"s_lshl_b32 s25, s19, 10\ns_add_u32 s26, s25, {WS_WFR}\ns_add_u32 s25, s25, 0x10000")
    WO_ = [16, 2, 3, 4, 5, 6, 7]; np_ = OPT['npre']
    wdma(0, 2, 'w'); tdma(0); small(0)
    for i in WO_[:np_]: wdma(i, i+1, 'w')
    flush(False)
    a("v_and_b32 v4, 7, v0\nv_lshrrev_b32 v7, 4, v0\nv_xor_b32 v1, v4, v7\nv_xor_b32 v1, s19, v1\nv_lshlrev_b32 v1, 4, v1\nv_lshl_add_u32 v1, v4, 13, v1\nv_lshl_add_u32 v1, v7, 7, v1\nv_and_or_b32 v1, v0, 8, v1")
    a(f"v_cmp_eq_u32 vcc, 0, v6\nv_subrev_u32 v238, 1, v6")
    a("v_and_b32 v8, 1, v0\nv_lshlrev_b32 v8, 4, v8\nv_mov_b32 v9, 0x3f80\nv_lshlrev_b32 v9, v8, v9\nv_bfe_u32 v8, v0, 1, 1\nv_bfe_u32 v10, v0, 3, 1\nv_bfe_u32 v11, v0, 2, 1")
    for y in range(2):
        a(f"v_xor_b32 v13, {y}, v10\nv_lshl_or_b32 v13, v13, 1, v8\nv_or_b32 v14, {2*y}, v11\nv_cmp_eq_u32 s[40:41], v14, v7\nv_cndmask_b32 v14, 0, v9, s[40:41]")
        for d in range(4): a(f"v_cmp_eq_u32 s[40:41], {d}, v13\nv_cndmask_b32 v{IB+4*y+d}, 0, v14, s[40:41]")
    a(f"s_lshl_b32 s25, s19, 10\ns_add_u32 s25, s25, {L4_SCR}")
    a("v_lshl_add_u32 v9, v7, 4, s25\nv_lshl_add_u32 v8, v6, 6, v9")
    a("v_lshl_add_u32 v4, v4, 2, s25\nv_lshl_add_u32 v4, v5, 5, v4\nv_lshl_add_u32 v4, v6, 6, v4")
    if OPT['gram']:
        a("v_and_b32 v11, 3, v0\nv_cmp_eq_u32 s[32:33], 1, v11\nv_cmp_eq_u32 s[34:35], 2, v11\nv_cmp_eq_u32 s[36:37], 3, v11\nv_bfe_u32 v11, v0, 2, 2\nv_cmp_eq_u32 s[38:39], v11, v7")
    if OPT['sel']:
        a("v_and_b32 v11, 3, v0\nv_cmp_eq_u32 s[40:41], v11, v7\nv_mov_b32 v13, 0x3f80\nv_cndmask_b32 v13, 0, v13, s[40:41]\nv_bfe_u32 v11, v0, 3, 1\nv_bfe_u32 v14, v0, 2, 1\nv_lshl_or_b32 v11, v14, 1, v11")
        for d in range(4): a(f"v_cmp_eq_u32 s[40:41], {d}, v11\nv_cndmask_b32 v{CT+d}, 0, v13, s[40:41]\nv_lshlrev_b32 v{CT+4+d}, 16, v{CT+d}")
        a("v_and_b32 v11, 1, v7\nv_and_b32 v13, 15, v0\nv_subrev_u32 v10, 1, v6")
    if OPT['fin']:
        a("v_and_b32 v14, 15, v0\nv_lshlrev_b32 v2, 1, v5\nv_cmp_eq_u32 s[42:43], v14, v2\nv_or_b32 v2, 1, v2\nv_cmp_eq_u32 s[50:51], v14, v2\nv_lshlrev_b32 v2, 4, v0")
    if not OPT['sel']: a("v_and_b32 v11, 1, v7\nv_and_b32 v10, 7, v0\nv_lshlrev_b32 v13, 2, v11\nv_xor_b32 v10, v10, v13\nv_xor_b32 v10, s19, v10\nv_lshlrev_b32 v10, 4, v10\nv_and_b32 v13, 15, v0\nv_lshl_add_u32 v10, v13, 7, v10\nv_lshl_add_u32 v10, v11, 15, v10\nv_add_u32 v10, v10, v3")
    if OPT['fin']: a("v_lshlrev_b32 v7, 4, v7\nv_cmp_lt_u32 s[40:41], 3, v13\nv_bfrev_b32 v11, 1\nv_cndmask_b32 v11, 0, v11, s[40:41]\nv_or_b32 v7, v7, v11")
    else: a("v_lshlrev_b32 v7, 2, v13\nv_lshl_add_u32 v7, v11, 7, v7")
    a(f"v_add_u32 v15, {L4_E}, v2\ns_mov_b32 s48, 0xffff0000\nv_add_u32 v0, 0x10000, v2")
    a(f"s_mov_b32 s28, {I128}\ns_mov_b32 s29, {EPS}\ns_mov_b32 s30, {LOG2E}")
    a("s_waitcnt lgkmcnt(0)")
    a.st(1)
    for t in W8.drain(DM(0)): a(t)
    a.st(2); a("s_barrier"); a.st(3)
    if OPT['exp'] & 4096: a("s_cmp_ge_u32 s19, 1\ns_cbranch_scc1 K4_fin")
    ring = [0]
    ROR = f"row_ror:8 {DPPF}"
    CLAST = [] if OPT['sel'] else [OO+32+28+3, OO+32+28+2, OO+32+28+1]
    def group(g, last):
        T = lambda j, s: f"v[{TK+16*j+4*s}:{TK+16*j+4*s+3}]"
        R4 = lambda b: f"v[{b}:{b+3}]"
        sv = SV[g & 1]; pm = PM[g & 1]; t = g >> 1; LB = [f'tile{t}']; xa = (t & 1)*65536 + (64 if g & 1 else 0)
        JS = (0,) if g == 6 else (0, 1)
        def W(f):
            r = 4*f
            if g == 0:
                if f == 32: o("s_barrier", R=[f'w{i}' for i in range(8, 16)], W=['wb', 'bar'])
                o(f"ds_read_b128 a[{r}:{r+3}], v0 offset:{f*1024}", R=['wb'] if f >= 32 else ['wa'] if f >= 8 else [])
                if f == 63:
                    o("s_barrier", W=['wfree', 'bar']); L[-1].r |= {('a', x) for x in range(256)}
                    tdma(1, ['wfree'])
            return f"a[{r}:{r+3}]"
        if g in (2, 4):
            o("s_barrier", R=DM(t), W=LB + ['bar'], rr=CLAST + list(range(TK, TK+32)))
            tdma(t+1, LB)
        if g == 6: o("v_xor_b32 v1, s49, v1" + ("" if OPT['sel'] else "\nv_xor_b32 v10, s49, v10")); xa = 65536
        for x in range(2*len(JS)): o(f"v_xor_b32 v{TA+x}, {xa ^ ((x & 1)*576) ^ ((x >> 1)*4)}, v1")
        for s_ in range(4):
            for j in JS:
                for b in range(2): o(f"ds_read2st64_b32 v[{TK+16*j+4*s_+2*b}:{TK+16*j+4*s_+2*b+1}], v{TA+2*j+b} offset0:{8*s_} offset1:{8*s_+4}", R=LB)
        if g < last: small(g+1)
        o(f"v_lshl_add_u32 v{pm}, v{pm}, 8, v7" + ("" if OPT['fin'] else f"\nv_lshl_add_u32 v{pm+1}, v{pm+1}, 8, v7"))
        acc = lambda p, j, hh: AC + 16*(p & 1) + 8*j + 4*hh
        def chains(p):
            for hh in range(2):
                for s_ in range(4):
                    w = W(8*p + 4*hh + s_)
                    for j in JS:
                        c = R4(acc(p, j, hh)); ab = f"{w}, {T(j, s_)}" if p < 4 else f"{T(j, s_)}, {w}"
                        o(f"v_mfma_f32_16x16x32_bf16 {c}, {ab}, {'0' if s_ == 0 else c}")
        def pack(p):
            for j in JS:
                for d in range(4): o(f"v_cvt_pk_bf16_f32 v{PK+8*(p&1)+4*j+d}, v{acc(p, j, 0)+2*d}, v{acc(p, j, 0)+2*d+1}")
        def smf(p):
            for j in JS: o(f"v_mfma_f32_16x16x32_bf16 {R4(SS+4*j)}, {R4(PK+8*(p&1)+4*j)}, {T(j, p)}, {'0' if p == 0 else R4(SS+4*j)}")
        O = lambda j, J: OO + 32*j + 4*J
        def cinit():
            if OPT['sel']: return
            for r in range(4): o(f"v_xor_b32 v{TA+r}, {xa ^ (r*8192 + r*16)}, v10")
            for B in range(4):
                for r in range(4):
                    c = CT + 2*((4*B + r) % 3)
                    o(f"ds_read_b64 v[{c}:{c+1}], v{TA+r} offset:{B*2048}", R=LB)
                    for j in JS: o(f"v_lshlrev_b32 v{O(j, 2*B)+r}, 16, v{c+j}\nv_and_b32 v{O(j, 2*B+1)+r}, s48, v{c+j}")
        def pz(B):
            for j in JS:
                for hh in range(2):
                    z = PK + 8*(B & 1) + 4*j + 2*hh
                    o(f"v_mfma_f32_16x16x16_bf16 {R4(O(j, 2*B+hh))}, v[{PA+2*j}:{PA+2*j+1}], v[{z}:{z+1}], {R4(O(j, 2*B+hh))}")
        def sel(B):
            if not OPT['sel']: return
            for j in JS:
                for hh in range(2): o(f"v_mfma_f32_16x16x32_bf16 {R4(O(j, 2*B+hh))}, {T(j, B)}, {R4(CT+4*hh)}, 0")
        def sq(B):
            for j in JS:
                for hh in range(2):
                    for r in range(4):
                        x = O(j, 2*B+hh)+r
                        o(f"v_mul_f32 v{QQ+4*j+r}, v{x}, v{x}" if B == 0 and hh == 0 else f"v_fmac_f32 v{QQ+4*j+r}, v{x}, v{x}")
            if OPT['fin']:
                for hh in range(2):
                    for d in range(4): x = O(d >> 1, 2*B+hh) + 2*(d & 1); o(f"v_cvt_pk_bf16_f32 v{O(0, 2*B+hh)+d}, v{x}, v{x+1}")
        chains(0)
        D = AC + 16
        if OPT['gram']:
            for s_ in range(4):
                for j in JS: o(f"v_mfma_f32_16x16x32_bf16 {R4(D+4*j)}, {T(j, s_)}, {T(j, s_)}, {'0' if s_ == 0 else R4(D+4*j)}")
        for u in range(0 if OPT['gram'] else 16*len(JS)): d = D + 2*(u >> 4) + (u & 1); o(f"v_dot2_f32_bf16 v{d}, v{TK+u}, v{TK+u}, {'0' if (u & 15) < 2 else f'v{d}'}")
        if g == 0: o("s_barrier", R=[f'w{i}' for i in WO_], W=['wa', 'bar'], rr=[AC+12, D, D+1, D+2, D+3])
        for s_ in range(4):
            r = WF + 4*(ring[0] % NWF); ring[0] += 1
            o(f"ds_read_b128 {R4(r)}, v15 offset:{s_*1024}", R=['wa'])
            for j in JS: o(f"v_mfma_f32_16x16x32_bf16 {R4(EA[j])}, {R4(r)}, {T(j, s_)}, {'0' if s_ == 0 else R4(EA[j])}")
        E = EA[0]
        for r in range(4): o(f"v_cndmask_b32_dpp v{E+r}, v{EA[1]+r}, v{E+r}, vcc {ROR}")
        if OPT['gram']:
            for j in JS:
                x = D+4*j
                for r in range(1, 4): o(f"v_cndmask_b32 v{x}, v{x}, v{x+r}, s[{30+2*r}:{31+2*r}]")
            o(f"v_cndmask_b32 v11, 0, v{D}, s[38:39]\nv_cndmask_b32 v2, 0, v{D}, s[38:39]\nv_cndmask_b32 v{D+2}, 0, v{D+4}, s[38:39]")
        else: o(f"v_add_f32 v11, v{D}, v{D+1}\nv_add_f32 v{D+2}, v{D+2}, v{D+3}\nv_mov_b32 v2, v11")
        o(f"v_mov_b32_dpp v11, v{D+2} row_ror:8 row_mask:0xf bank_mask:0xc\nv_mov_b32_dpp v2, v{D+2} row_ror:8 row_mask:0xf bank_mask:0x3")
        o(f"v_permlane32_swap_b32 v11, v2\nv_add_f32 v11, v11, v2\nv_mov_b32 v2, v11\nv_permlane16_swap_b32 v11, v2\nv_add_f32 v11, v11, v2\nv_mul_f32 v2, s28, v{E}\nv_mul_f32 v2, v2, v2\nv_fma_f32 v11, v11, s28, -v2")
        o(f"v_mul_f32 v2, v{sv}, v{sv}\nv_max_f32 v11, 0, v11\nv_fma_f32 v11, v11, v2, s29\nv_rsq_f32 v11, v11\nv_mul_f32 v11, v11, v{sv}")
        o("ds_write_b32 v4, v11", W=['sa']); o(f"ds_write_b32 v4, v{E+2} offset:128\nds_write_b32 v4, v{E+3} offset:256", W=['sb'])
        o(f"ds_read_b128 {R4(RL)}, v8", R=['sa'])
        o(f"ds_read_b128 {R4(ZS)}, v8 offset:128\nds_read_b128 {R4(ZD)}, v8 offset:256", R=['sb'])
        cinit()
        pack(0); smf(0)
        for p in range(1, 4): chains(p); pack(p); smf(p)
        chains(4); pack(4); sel(0); sel(1); chains(5); pack(5); sel(2); sel(3)
        X = SS
        for r in range(4): o(f"v_cndmask_b32_dpp v{X+r}, v{SS+4+r}, v{X+r}, vcc {ROR}")
        for r in range(4): o(f"v_mul_f32 v{X+r}, v{X+r}, v{RL+r}")
        t0, t1 = X+4, X+5
        o(f"v_max3_f32 v{t0}, v{X}, v{X+1}, v{X+2}\nv_max_f32 v{t0}, v{t0}, v{X+3}\nv_mov_b32 v{t1}, v{t0}\nv_permlane16_swap_b32 v{t0}, v{t1}\nv_max_f32 v{t0}, v{t0}, v{t1}\nv_mul_f32 v{t0}, v{t0}, v11")
        for r in range(4): o(f"v_fma_f32 v{X+r}, v{X+r}, v11, -v{t0}")
        for r in range(4): o(f"v_exp_f32 v{X+r}, v{X+r}")
        o(f"v_add_f32 v{t0}, v{X}, v{X+1}\nv_add_f32 v{t1}, v{X+2}, v{X+3}\nv_add_f32 v{t0}, v{t0}, v{t1}\nv_mov_b32 v{t1}, v{t0}\nv_permlane16_swap_b32 v{t0}, v{t1}\nv_add_f32 v{t0}, v{t0}, v{t1}\nv_mul_f32 v{t0}, v{t0}, v{sv}\nv_rcp_f32 v{t0}, v{t0}")
        for r in range(4): o(f"v_mul_f32 v{X+r}, v{X+r}, v{RL+r}")
        for r in range(4): o(f"v_mul_f32 v{X+r}, v{X+r}, v{t0}")
        o(f"v_cvt_pk_bf16_f32 v{X+6}, v{X}, v{X+1}\nv_cvt_pk_bf16_f32 v{X+7}, v{X+2}, v{X+3}")
        for d in range(2): o(f"v_and_b32 v{PA+d}, v{X+6+d}, v{VM}" + ("" if g == 6 else f"\nv_and_b32_dpp v{PA+2+d}, v{X+6+d}, v{VM} {ROR}"))
        o(f"v_mul_f32 v13, v{X}, v{ZS}\nv_mul_f32 v14, v{X}, v{ZD}")
        for r in range(1, 4): o(f"v_fmac_f32 v13, v{X+r}, v{ZS+r}\nv_fmac_f32 v14, v{X+r}, v{ZD+r}")
        o(f"v_permlane16_swap_b32 v13, v14\nv_add_f32 v13, v13, v14\nv_mov_b32 v14, v13\nv_permlane16_swap_b32 v13, v14\nv_add_f32 v13, v13, v{E}\nv_add_f32 v14, v14, v{E+1}")
        pz(0); sq(0)
        chains(6); pz(1); sq(1); pack(6)
        chains(7); pz(2); sq(2); pack(7)
        pz(3); sq(3)
        for d in range(4): o(f"v_cvt_pk_bf16_f32 v{AL+d}, v{QQ+2*d}, v{QQ+2*d+1}" if d < 2*len(JS) else f"v_mov_b32 v{AL+d}, 0")
        for y in range(2):
            x = AL+4+4*y
            o(f"v_mfma_f32_16x16x32_bf16 {R4(x)}, {R4(AL)}, {R4(IB+4*y)}, 0", pri=-OPT['lq'])
            o(f"v_add_f32 v{x}, v{x}, v{x+1}\nv_add_f32 v{x+2}, v{x+2}, v{x+3}\nv_add_f32 v{x}, v{x}, v{x+2}")
        o(f"v_permlane32_swap_b32 v{AL+4}, v{AL+8}\nv_add_f32 v5, v{AL+4}, v{AL+8}\nv_mov_b32 v{AL+8}, v5\nv_permlane16_swap_b32 v5, v{AL+8}\nv_add_f32 v5, v5, v{AL+8}")
        o(f"v_mul_f32 v13, s28, v13\nv_fma_f32 v14, -v13, s24, v14\nv_mul_f32 v13, v13, v13\nv_mul_f32 v14, s30, v14\nv_mul_f32 v6, v{sv}, v{sv}\nv_mul_f32 v14, v14, v{sv}")
        o("v_fma_f32 v5, v5, s28, -v13\nv_max_f32 v5, 0, v5\nv_fma_f32 v5, v5, v6, s29\nv_rsq_f32 v5, v5\nv_mul_f32 v5, v5, v14")
        o(f"v_max_f32_dpp v6, v5, v5 quad_perm:[1,0,3,2] {DPPF}\nv_max_f32_dpp v6, v6, v6 quad_perm:[2,3,0,1] {DPPF}\nv_max_f32_dpp v6, v6, v6 row_half_mirror {DPPF}")
        o("v_sub_f32 v5, v5, v6\nv_exp_f32 v5, v5")
        o(f"v_add_f32_dpp v6, v5, v5 quad_perm:[1,0,3,2] {DPPF}\nv_add_f32_dpp v6, v6, v6 quad_perm:[2,3,0,1] {DPPF}\nv_add_f32_dpp v6, v6, v6 row_half_mirror {DPPF}")
        o(f"v_rcp_f32 v6, v6\nv_mul_f32 v5, v5, v{sv}\nv_mul_f32 v5, v5, v6")
        o("ds_write_b32 v4, v5 offset:512", W=['sd'])
        for j in JS: o(f"ds_read_b128 {R4(AL+4*j)}, v9 offset:{512+64*j}", R=['sd'])
        OSC = ('', ' nt', ' sc1', ' sc0 sc1', ' sc1 nt')[OPT['osc']]
        if OPT['fin']:
            for d in range(4): o(f"v_cvt_pk_bf16_f32 v{AL+8+d}, v{AL+2*d}, v{AL+2*d+1}\nv_cndmask_b32 v{AL+8+d}, 0, v{AL+8+d}, {'s[42:43]' if d < 2 else 's[50:51]'}")
            for B in range(4):
                for hh in range(2): o(f"v_mfma_f32_16x16x32_bf16 {R4(QQ+8*(B&1)+4*hh)}, {R4(O(0, 2*B+hh))}, {R4(AL+8)}, 0", pri=-OPT['lf'])
                x = O(1, 2*B)
                for r in range(4): o(f"v_cvt_pk_bf16_f32 v{x+r}, v{QQ+8*(B&1)+r}, v{QQ+8*(B&1)+4+r}")
                o(f"buffer_store_dwordx4 {R4(x)}, v{pm}, s[12:15], 0 offen offset:{64*B}{OSC}")
        for j in JS:
            for J in (0, 4, 1, 5, 2, 6, 3, 7):
                x = QQ + 8*j + J
                o(f"v_mul_f32 v{x}, v{AL+4*j}, v{O(j, J)}")
                for r in range(1, 4): o(f"v_fmac_f32 v{x}, v{AL+4*j+r}, v{O(j, J)+r}")
                if J >= 4:
                    o(f"v_permlane16_swap_b32 v{x-4}, v{x}\nv_add_f32 v{x-4}, v{x-4}, v{x}")
                    if J & 1: o(f"v_cvt_pk_bf16_f32 v{x}, v{x-5}, v{x-4}\nbuffer_store_dword v{x}, v{pm+j}, s[12:15], 0 offen offset:{64*((J-4)>>1)}{('', ' nt', ' sc1', ' sc0 sc1', ' sc1 nt')[OPT['osc']]}")
    a(f"s_lshl_b32 s25, s19, 10\ns_add_u32 s25, s25, 0x10000")
    for i in WO_[np_:]:
        wdma(i, i+1, 'w'); L[-1].w.discard(('p', 'q')); L[-1].bias = L[-2].bias = L[-3].bias = 5000
    wdma(8, 16, 'w')
    for g in range(6): group(g, 6)
    n6 = len(L)
    o("s_barrier", R=DM(3), W=['tile3', 'bar'], rr=CLAST + list(range(TK, TK+32)))
    group(6, 6)
    for x in L[n6:]: x.extra = True
    for x in L[n6+1:]: x.r.add(('p', 'tile3'))
    ops = sched.schedule(L, True); L.clear()
    cut = min(i for i, x in enumerate(ops) if getattr(x, 'extra', False))
    nb = 3
    for t in W8.emit(ops[:cut+1]):
        if t == 's_barrier' and OPT['stamp'] in (1, 2): a.st(nb); a(t); a.st(13); nb += 1
        else: a(t)
    a("s_cmp_eq_u32 s31, 0\ns_cbranch_scc0 K4_x")
    import copy
    W9 = copy.deepcopy(W8)
    for t in W8.emit([x for x in ops[cut+1:] if not getattr(x, 'extra', False)]): a(t)
    a.st(9); a("s_branch K4_fin\nK4_x:")
    for t in W9.emit(ops[cut+1:]): a(t)
    a.st(10)
    a("K4_fin:"); a.st_out(3, 8, 's19', 10)
    a("K4_end:\ns_endpgm")
    a.end(name, 512, 102, 256)

def build(ks, path, pre=''):
    a = K()
    for k in ks: k(a)
    open(path, 'w').write(a.text(pre))

if __name__ == '__main__':
    for x in sys.argv[1:]:
        k, v = x.split('='); OPT[k] = int(v)
    ref = open('standalone__hybrid_graph_tf_nagphormer__graph.s.ref').read().split('\n')
    pre = '\n'.join(l for l in ref if l.startswith(';') and 'launch' not in l and 'grid=' not in l) + '\n'
    build([k1, k3, k4], 'stage.s', pre)
```

```python
import sys, math, struct
from asmlib import Asm
import hazard

N = 25000; NP = 25088; E = 400000; WIN = 128; NWIN = 196; NLEV = 392; QLEV = 98; QN = 6272
NCH = 250; CH = 1600
ZB = 195*128
WS_FLAGS = 0xC0000; FGS = 17*128; WS_NEWID = 0x10000; WS_PERM = 0x20000; WS_DISP = 0x40000; WS_TQ = 0x60000; WS_LOC = 0x64000; WS_IRR = 0x78000; WS_SINV = 0xA0000; WS_PM = 0x3D00000; WS_WDN = 0xE4000
WS_WFR = 0x80000; WS_PART = 0x100000; WS_PARTB = 0x440000; WS_IDX = 0x780000; WS_G = 0xB00000; RS = 57344; WS_TOK = 0x3E00000
GS = NP*4
TOS = 65536 + 128
PWS = 16384 + 128
KS = NP*256
WS_SIZE = 0x10000000
WFR_E = 65536; WFR_SW = 73728
SD = "dst_sel:DWORD dst_unused:UNUSED_PAD src0_sel:DWORD"
DPPF = "row_mask:0xf bank_mask:0xf"
SLACK = 2
OPT = dict(stamp=0, exp=0, tal=20, tbe=0, prio=2, wprio=0, slg=2, sll=2, tok=1, tsc=2, wb=2, gprio=1, ls=1, tlb=0, wt=1, vl=1500, str=140, dp=0, ql=100, npl=1, px=0, slp=1, cpf=7, slow=0, la=2, npre=7, slw=2, isc=0, tp=0, wbw=0, wb6=0, lnt=2, pnt=0, nt=2, osc=2, frz=0, gw=3, iw=0, pw=0, xp=3, xr=3, th=0, edf=200, sel=1, gram=1, fin=0, lq=300, lf=0, fr=99)
WS_STAMP = 0x7A00000

WT = lambda b: (' sc1' if OPT['wt'] & b else '') + (' sc0' if OPT['wt'] & b and OPT['wt'] & 8 else '') + (' nt' if OPT['wt'] & (b << 4) else '')
NT = lambda b: ' nt' if OPT['nt'] & b else ''
class K(Asm):
    def __init__(self):
        super().__init__(); self.uid = 0
    def lab(self, s='L'):
        self.uid += 1; return f"{s}_{self.uid}"
    def begin(self, name):
        self.kernel(name); self.k0 = len(self.lines)
    def end(self, name, vgpr, sgpr=102, accum=None):
        body, n = hazard.fix(self.lines[self.k0:])
        self.lines[self.k0:] = body
        print(f"{name}: {len(body)} lines, {n} nop states", file=sys.stderr)
        self.kd(name, vgpr, sgpr, accum)
    def st_init(self):
        if not OPT['stamp']: return
        self("s_memrealtime s[84:85]" if OPT['stamp'] != 2 else "s_memtime s[84:85]")
        if OPT['stamp'] == 3:
            self("s_waitcnt lgkmcnt(0)\ns_mov_b32 s70, s84"); return
        for i in range(1, 14): self(f"s_mov_b32 s{70+i}, 0")
        self("s_waitcnt lgkmcnt(0)\ns_mov_b32 s70, s84\ns_mov_b32 s86, s84")
    def st(self, i):
        if not OPT['stamp'] or OPT['stamp'] == 3: return
        if OPT['stamp'] == 4:
            if i in (3, 9, 4, 7):
                l = self.lab('ST')
                if OPT['frz'] and i != 3: self(f"s_cmp_gt_u32 s22, {OPT['frz'] + (1 if i == 9 else 0)}\ns_cbranch_scc1 {l}")
                self("s_memrealtime s[84:85]")
                for k in range(71, 83): self(f"s_mov_b32 s{k}, s{k+1}")
                self("s_waitcnt lgkmcnt(0)\ns_sub_u32 s83, s84, s86\ns_mov_b32 s86, s84\n" + l + ":")
            return
        self(f"{'s_memrealtime' if OPT['stamp'] == 1 else 's_memtime'} s[84:85]\ns_waitcnt lgkmcnt(0)\ns_sub_u32 s87, s84, s86\ns_mov_b32 s86, s84\ns_add_u32 s{70+i}, s{70+i}, s87")
    def st_out(self, kid, srd, swave, vt):
        if not OPT['stamp']: return
        self(f"s_lshl_b32 s87, s2, 4\ns_add_u32 s87, s87, {swave}\ns_lshl_b32 s87, s87, 6\ns_add_u32 s87, s87, {WS_STAMP + kid*0x80000}\ns_mov_b64 exec, 1\nv_mov_b32 v{vt+1}, 0")
        if OPT['stamp'] == 3: self("s_memrealtime s[84:85]\ns_waitcnt lgkmcnt(0)\ns_mov_b32 s71, s84")
        for i in range(2 if OPT['stamp'] == 3 else 14): self(f"v_mov_b32 v{vt}, s{70+i}\nbuffer_store_dword v{vt}, v{vt+1}, s[{srd}:{srd+3}], s87 offen offset:{4*i}")
    def codepf(self, first, last, lane4, vt, sp, vd=None):
        l = self.lab('PF')
        self(f"s_getpc_b64 s[{sp}:{sp+1}]\n{l}:\ns_add_u32 s{sp}, s{sp}, {first}-{l}\ns_addc_u32 s{sp+1}, s{sp+1}, 0\nv_lshlrev_b32 v{vt}, 5, v{lane4}\ns_mov_b32 s{sp+2}, 0")
        self(f"{l}_l:\nv_cmp_gt_u32 vcc, {last}-{first}, v{vt}\ns_and_b64 exec, exec, vcc\ns_cbranch_execz {l}_e\nglobal_load_dword v{vd or vt+1}, v{vt}, s[{sp}:{sp+1}]\nv_add_u32 v{vt}, 8192, v{vt}\ns_branch {l}_l\n{l}_e:\ns_mov_b64 exec, -1")
    def scan_incl(self, v):
        for s in (1, 2, 4, 8): self(f"v_add_u32_dpp v{v}, v{v}, v{v} row_shr:{s} {DPPF} bound_ctrl:0")
        self(f"v_add_u32_dpp v{v}, v{v}, v{v} row_bcast:15 row_mask:0xa bank_mask:0xf")
        self(f"v_add_u32_dpp v{v}, v{v}, v{v} row_bcast:31 row_mask:0xc bank_mask:0xf")
    def red63(self, op, v):
        for s in (1, 2, 4, 8): self(f"{op}_dpp v{v}, v{v}, v{v} row_shr:{s} {DPPF} bound_ctrl:0")
        self(f"{op}_dpp v{v}, v{v}, v{v} row_bcast:15 row_mask:0xa bank_mask:0xf")
        self(f"{op}_dpp v{v}, v{v}, v{v} row_bcast:31 row_mask:0xc bank_mask:0xf")

SWAPS = ((0, 85), (6, 91), (12, 95))
def levelpos(a, sw, d0, d1):
    t, u = d1+1, d1+2
    a(f"s_mul_i32 s{t}, s{sw}, 1338\ns_lshr_b32 s{t}, s{t}, 16\ns_mul_i32 s{t}, s{t}, 98\ns_lshl_b32 s{d0}, s{sw}, 1\ns_sub_u32 s{u}, s{d0}, s{t}")
    a(f"s_mov_b32 s{d0}, s{u}\ns_add_u32 s{d1}, s{u}, 1")
    for x, y in SWAPS:
        a(f"s_cmp_eq_u32 s{u}, {x}\ns_cselect_b32 s{d0}, {y}, s{d0}\ns_cmp_eq_u32 s{u}, {y-1}\ns_cselect_b32 s{d1}, {x}, s{d1}")
    a(f"s_add_u32 s{d0}, s{d0}, s{t}\ns_add_u32 s{d1}, s{d1}, s{t}")
def k1(a):
    name = 'p1_kernel'
    a.launch(name, NCH + NWIN + 8, 512, 40960)
    a.begin(name)
    a(f"s_cmp_ge_u32 s2, {NCH+NWIN+8}\ns_cbranch_scc1 K1_end")
    a.st_init()
    a("s_load_dwordx4 s[4:7], s[0:1], 0\ns_load_dwordx4 s[8:11], s[0:1], 16\ns_load_dwordx2 s[14:15], s[0:1], 88")
    a("v_lshlrev_b32 v1, 2, v0\nv_mov_b32 v2, 0\nv_mov_b32 v24, 1\nv_lshrrev_b32 v3, 6, v0\nv_and_b32 v25, 63, v0\nv_readfirstlane_b32 s37, v3")
    a(f"s_cmp_ge_u32 s2, {NCH+NWIN}\ns_cbranch_scc1 K1_mm\ns_cmp_ge_u32 s2, {NCH}\ns_cbranch_scc1 K1_win")
    a(f"v_lshlrev_b32 v3, 4, v0\ns_mul_i32 s38, s2, {CH*4}\ns_waitcnt lgkmcnt(0)")
    a.srd(16, 6, E*4); a.srd(20, 8, E*4); a.srd(28, 14, WS_SIZE)
    a("s_cmp_ge_u32 s37, 7\ns_cbranch_scc1 K1_nl\nv_cmp_gt_u32 vcc, 400, v0\ns_and_saveexec_b64 s[34:35], vcc")
    a(f"buffer_load_dwordx4 v[4:7], v3, s[16:19], s38 offen{NT(2)}\nbuffer_load_dwordx4 v[8:11], v3, s[20:23], s38 offen{NT(2)}\ns_mov_b64 exec, s[34:35]\nK1_nl:")
    a(f"s_cmp_lg_u32 s2, 64\ns_cbranch_scc1 K1_noy\ns_cmp_ge_u32 s37, 4\ns_cbranch_scc1 K1_noy\ns_mov_b32 s3, {WS_WDN}\nv_lshlrev_b32 v16, 7, v0\nbuffer_store_dword v2, v16, s[28:31], s3 offen\nK1_noy:")
    a("s_cmp_ge_u32 s2, 64\ns_cbranch_scc1 K1_noz\ns_cmp_ge_u32 s37, 3\ns_cbranch_scc1 K1_noz")
    a(f"s_mul_i32 s3, s2, {FGS}\ns_add_u32 s3, s3, {WS_FLAGS}\nv_lshrrev_b32 v16, 3, v0\nv_min_u32 v16, 16, v16\nv_lshlrev_b32 v16, 7, v16\nv_and_b32 v17, 7, v0\nv_lshl_add_u32 v16, v17, 2, v16\nbuffer_store_dword v2, v16, s[28:31], s3 offen\nK1_noz:")
    if OPT['iw']:
        a(f"s_cmp_eq_u32 s37, 7\ns_cbranch_scc0 K1_niw\ns_cmp_ge_u32 s2, 192\ns_cbranch_scc1 K1_niw\ns_mul_i32 s3, s2, 21846\ns_lshr_b32 s3, s3, 16\ns_mul_i32 s40, s3, 3\ns_sub_u32 s40, s2, s40\ns_mul_i32 s3, s3, {RS}\ns_lshl_b32 s40, s40, 13\ns_add_u32 s3, s3, s40\ns_add_u32 s3, s3, {WS_IDX}")
        a("v_lshlrev_b32 v29, 7, v25\nbuffer_load_dword v29, v29, s[28:31], s3 offen\nK1_niw:")
    if OPT['cpf'] & 1:
        a("s_cmp_eq_u32 s37, 7\ns_cbranch_scc0 K1_npf\ns_cmp_lt_u32 s2, 16\ns_cbranch_scc0 K1_npf\nv_lshlrev_b32 v28, 2, v25"); a.codepf('hop_kernel', 'K3_join', 28, 30, 52); a("K1_npf:")
    a("v_mov_b32 v12, -1\nv_mov_b32 v13, -1\nv_mov_b32 v14, -1\nv_mov_b32 v15, -1\nv_mov_b32 v26, 12544\nv_mov_b32 v27, 25088")
    a("ds_write_b128 v3, v[12:15] offset:1024\nds_write_b128 v3, v[12:15] offset:9216\nds_write_b128 v3, v[12:15] offset:17408")
    a("s_cmp_ge_u32 s37, 4\ns_cbranch_scc1 K1_nc\nds_write_b32 v1, v2\ns_cmp_ge_u32 s37, 1\ns_cbranch_scc1 K1_nc\nds_write_b128 v3, v[12:15] offset:25600\nK1_nc:")
    a("s_waitcnt lgkmcnt(0)\ns_barrier")
    a("s_cmp_ge_u32 s37, 7\ns_cbranch_scc1 K1_ns\nv_cmp_gt_u32 vcc, 400, v0\ns_and_saveexec_b64 s[34:35], vcc\ns_waitcnt vmcnt(0)")
    a.st(1)
    for i in range(4):
        a(f"v_lshrrev_b32 v{12+i}, 7, v{8+i}\nv_and_b32 v16, 127, v{8+i}\nv_lshl_or_b32 v{4+i}, v16, 16, v{4+i}\nv_lshlrev_b32 v16, 2, v{12+i}\nds_add_rtn_u32 v{8+i}, v16, v24")
    for i in range(4):
        a(f"s_waitcnt lgkmcnt(3)" if i == 0 else "s_waitcnt lgkmcnt(3)")
        a(f"v_and_b32 v16, 15, v{8+i}\nv_lshlrev_b32 v16, 2, v16\nv_lshl_add_u32 v16, v{12+i}, 6, v16\nv_lshrrev_b32 v17, 4, v{8+i}\nv_mad_u32_u24 v16, v17, s39, v16".replace("s39", "v26"))
        a(f"v_cmp_gt_u32 vcc, 32, v{8+i}\nv_cndmask_b32 v16, v27, v16, vcc\nds_write_b32 v16, v{4+i} offset:1024")
    a("s_mov_b64 exec, s[34:35]\nK1_ns:\ns_waitcnt lgkmcnt(0)\ns_barrier")
    a("s_and_b32 s3, s2, 7\ns_lshl_b32 s3, s3, 5\ns_lshr_b32 s39, s2, 3\ns_add_u32 s3, s3, s39\ns_lshl_b32 s3, s3, 6")
    a(f"s_add_u32 s39, s3, {WS_PART}\ns_add_u32 s40, s3, {WS_PARTB}")
    a("v_lshrrev_b32 v16, 2, v0\nv_and_b32 v17, 3, v0\nv_lshlrev_b32 v17, 4, v17\nv_mov_b32 v18, " + str(PWS) + "\nv_mad_u32_u24 v17, v16, v18, v17\nv_and_b32 v18, 0xfffffffc, v0")
    a("ds_read_b128 v[4:7], v3 offset:1024\nds_read_b128 v[8:11], v3 offset:9216\nds_read_b32 v19, v18\nds_read_b32 v20, v18 offset:512")
    a(f"v_add_u32 v21, {128*PWS}, v17\nv_cmp_gt_u32 vcc, {784-512}, v0\ns_mov_b64 s[42:43], vcc")
    a("s_waitcnt lgkmcnt(3)\nbuffer_store_dwordx4 v[4:7], v17, s[28:31], s39 offen" + WT(2) + "\ns_waitcnt lgkmcnt(0)")
    a("v_cndmask_b32 v20, 0, v20, s[42:43]\nv_max_u32 v22, v19, v20\ns_mov_b64 exec, s[42:43]\ns_cbranch_execz K1_n2")
    a("buffer_store_dwordx4 v[8:11], v21, s[28:31], s39 offen" + WT(2) + "\nK1_n2:\ns_mov_b64 exec, -1")
    a("v_cmp_le_u32 vcc, 16, v22\ns_cbranch_vccz K1_nb")
    a(f"ds_read_b128 v[4:7], v3 offset:{1024+12544}\nds_read_b128 v[8:11], v3 offset:{1024+12544+8192}\ns_waitcnt lgkmcnt(0)")
    a("v_cmp_le_u32 vcc, 16, v19\ns_mov_b64 exec, vcc\ns_cbranch_execz K1_b1\nbuffer_store_dwordx4 v[4:7], v17, s[28:31], s40 offen\nK1_b1:\ns_mov_b64 exec, -1")
    a("v_cmp_le_u32 vcc, 16, v20\ns_mov_b64 exec, vcc\ns_cbranch_execz K1_b2\nbuffer_store_dwordx4 v[8:11], v21, s[28:31], s40 offen\nK1_b2:\ns_mov_b64 exec, -1")
    a("K1_nb:")
    a(f"v_cmp_lt_u32 vcc, 32, v22\ns_cmp_lg_u64 vcc, 0\ns_cselect_b32 s3, 1, 0\nv_mov_b32 v4, s3\ns_lshr_b32 s39, s39, 1\ns_and_b32 s39, s39, 0x1fe0\ns_lshl_b32 s3, s37, 2\ns_add_u32 s39, s39, s3\ns_add_u32 s39, s39, {WS_IRR}")
    a("s_mov_b64 exec, 1\nbuffer_store_dword v4, v2, s[28:31], s39 offen")
    a.st(2); a.st_out(0, 28, 's37', 10); a("s_endpgm")
    B = 32768
    a("K1_win:")
    a(f"s_sub_u32 s36, s2, {NCH}\ns_lshl_b32 s38, s36, 7\ns_waitcnt lgkmcnt(0)")
    a.srd(16, 4, N*256); a.srd(24, 10, N*2); a.srd(28, 14, WS_SIZE)
    a("v_lshlrev_b32 v3, 4, v25\ns_lshl_b32 s39, s36, 15\ns_lshl_b32 s40, s37, 12\ns_add_u32 s39, s39, s40")
    a("v_add_u32 v5, s38, v0\nv_lshlrev_b32 v6, 1, v5\ns_cmp_ge_u32 s37, 2\ns_cbranch_scc1 K1_w0\nbuffer_load_ushort v4, v6, s[24:27], 0 offen" + NT(128) + "\nK1_w0:")
    for it in range(4): a(f"buffer_load_dwordx4 v[{32+4*it}:{35+4*it}], v3, s[16:19], s39 offen offset:{it*1024}{NT(2)}")
    a(f"ds_write_b32 v1, v2 offset:{B}")
    levelpos(a, 36, 44, 45)
    for d, x in ((50, 44), (53, 45)):
        a(f"s_sub_u32 s48, s{x}, s46\ns_mul_i32 s49, s48, 43\ns_lshr_b32 s49, s49, 8\ns_mul_i32 s49, s49, 6\ns_cmp_ge_u32 s48, 84\ns_cselect_b32 s49, 84, s49\ns_cmp_ge_u32 s48, 91\ns_cselect_b32 s49, 91, s49")
        a(f"s_sub_u32 s48, s48, s49\ns_cmp_ge_u32 s48, 4\ns_cselect_b32 s{d+1}, 1, 2\ns_cselect_b32 s{d+2}, 4, 0\ns_cmp_eq_u32 s48, 6\ns_cselect_b32 s{d+1}, 0, s{d+1}\ns_cselect_b32 s{d+2}, 6, s{d+2}")
        a(f"s_sub_u32 s48, s48, s{d+2}\ns_sub_u32 s{d}, s{x}, s48\ns_lshl_b32 s{d}, s{d}, 6\ns_add_u32 s{d}, s{d}, s48")
    a("s_lshl_b32 s44, s44, 6\ns_lshl_b32 s45, s45, 6\ns_sub_u32 s45, s45, 64\ns_waitcnt lgkmcnt(0)\ns_barrier\ns_cmp_ge_u32 s37, 2\ns_cbranch_scc1 K1_w1\ns_waitcnt vmcnt(4)"); a.st(4)
    a("v_lshlrev_b32 v4, 16, v4\nv_mov_b32 v23, 0x2b800000\nv_cmp_eq_f32 vcc, 0, v4\nv_cndmask_b32 v4, v4, v23, vcc\nv_mul_f32 v7, v4, v4\nv_rcp_f32 v7, v7\nv_rndne_f32 v7, v7\nv_cvt_u32_f32 v7, v7\nv_med3_u32 v7, v7, 1, 63")
    a(f"v_cmp_gt_u32 vcc, {N}, v5\nv_cndmask_b32 v7, 0, v7, vcc\nv_lshlrev_b32 v7, 2, v7\nds_add_rtn_u32 v8, v7, v24 offset:{B}\ns_waitcnt lgkmcnt(0)\nK1_w1:\ns_barrier")
    a("s_cmp_ge_u32 s37, 2\ns_cbranch_scc1 K1_w2")
    a(f"v_lshlrev_b32 v9, 2, v25\nds_read_b32 v20, v9 offset:{B}\ns_waitcnt lgkmcnt(0)\nv_mov_b32 v21, v20")
    a.scan_incl(21)
    a("v_sub_u32 v21, v21, v20\nds_bpermute_b32 v21, v7, v21\ns_waitcnt lgkmcnt(0)\nv_add_u32 v8, v8, v21")
    a(f"v_lshlrev_b32 v9, 2, v8\nds_write_b32 v1, v9 offset:{B+512}\nds_write_b32 v9, v4 offset:{B+1024}\nv_lshrrev_b32 v7, 2, v7\nv_sub_u32 v7, v7, v24 clamp\nds_write_b32 v9, v7 offset:{B+1536}")
    a("v_mov_b32 v10, s44\nv_mov_b32 v11, s45\nv_cmp_gt_u32 vcc, 64, v8\nv_cndmask_b32 v10, v11, v10, vcc\nv_add_u32 v10, v10, v8\nv_lshlrev_b32 v11, 2, v10")
    a(f"s_mov_b32 s3, {WS_NEWID}\nbuffer_store_short v10, v6, s[28:31], s3 offen\ns_mov_b32 s3, {WS_LOC}\nbuffer_store_short v8, v6, s[28:31], s3 offen")
    a("v_mov_b32 v14, s50\nv_mov_b32 v15, s53\nv_cndmask_b32 v14, v15, v14, vcc\nv_mov_b32 v15, s51\nv_mov_b32 v16, s54\nv_cndmask_b32 v15, v16, v15, vcc\nv_and_b32 v16, 63, v8\nv_lshlrev_b32 v16, v15, v16\nv_add_lshl_u32 v14, v14, v16, 2")
    a(f"s_mov_b32 s3, {WS_PERM}\nbuffer_store_dword v5, v14, s[28:31], s3 offen\nv_mul_f32 v12, v4, v4\nv_rcp_f32 v13, v4\ns_mov_b32 s3, {WS_DISP}\nbuffer_store_dword v12, v11, s[28:31], s3 offen\ns_mov_b32 s3, {WS_SINV}\nbuffer_store_dword v13, v14, s[28:31], s3 offen")
    a("s_waitcnt lgkmcnt(0)\nK1_w2:\ns_barrier")
    a.st(1)
    a(f"s_cmp_ge_u32 s37, 2\ns_cbranch_scc1 K1_nt\nds_read_b32 v6, v1 offset:{B+1536}\ns_waitcnt lgkmcnt(0)\nv_mov_b32 v7, v6")
    for sft in (1, 2, 4, 8): a(f"v_max_u32_dpp v6, v6, v6 row_shr:{sft} {DPPF} bound_ctrl:0\nv_add_u32_dpp v7, v7, v7 row_shr:{sft} {DPPF} bound_ctrl:0")
    for bc, m in ((15, '0xa'), (31, '0xc')): a(f"v_max_u32_dpp v6, v6, v6 row_bcast:{bc} row_mask:{m} bank_mask:0xf\nv_add_u32_dpp v7, v7, v7 row_bcast:{bc} row_mask:{m} bank_mask:0xf")
    a("v_readlane_b32 s40, v6, 63\nv_readlane_b32 s41, v7, 63")
    a(f"s_mul_i32 s41, s41, {OPT['tal']}\ns_lshr_b32 s41, s41, 10\ns_add_u32 s41, s41, {OPT['tbe']}\ns_max_u32 s41, s41, s40\ns_add_u32 s41, s41, 3\ns_lshr_b32 s41, s41, 2\ns_min_u32 s41, s41, 16\ns_max_u32 s41, s41, 1")
    a(f"s_add_u32 s3, s45, 64\ns_cmp_eq_u32 s37, 0\ns_cselect_b32 s3, s44, s3\ns_lshr_b32 s3, s3, 4\ns_add_u32 s3, s3, {WS_TQ}\nv_mov_b32 v6, s41\ns_mov_b64 exec, 1\nbuffer_store_dword v6, v2, s[28:31], s3 offen\ns_mov_b64 exec, -1\nK1_nt:")
    a("v_lshrrev_b32 v9, 4, v25\nv_lshlrev_b32 v9, 2, v9\ns_lshl_b32 s3, s37, 6\nv_add_u32 v9, s3, v9\nv_and_b32 v12, 15, v25\nv_lshlrev_b32 v13, 4, v12\nv_lshlrev_b32 v12, 11, v12")
    for it in range(4): a(f"ds_read_b32 v{16+it}, v9 offset:{B+512+16*it}")
    a(f"v_and_b32 v14, 31, v25\nv_lshlrev_b32 v15, 4, v14\nds_read_b128 v[28:31], v15 offset:{B+1024}")
    for it in range(4):
        a(f"s_waitcnt lgkmcnt({4 if it == 0 else 4+3})" if False else "")
    a("s_waitcnt lgkmcnt(0)")
    for it in range(4):
        a(f"v_xor_b32 v{16+it}, v{16+it}, v13\nv_add_u32 v{16+it}, v{16+it}, v12")
    a("s_cmp_ge_u32 s37, 2\ns_cbranch_scc1 K1_w3\ns_waitcnt vmcnt(6)\ns_branch K1_w4\nK1_w3:\ns_waitcnt vmcnt(0)\nK1_w4:"); a.st(5)
    for it in range(4):
        for i in range(4): a(f"ds_write_b32 v{16+it}, v{32+4*it+i} offset:{i*512}")
    a("v_lshrrev_b32 v20, 5, v25\ns_lshl_b32 s3, s37, 5\nv_xor_b32 v21, s3, v15\nv_lshl_add_u32 v21, v20, 9, v21\ns_lshl_b32 s3, s37, 12\nv_add_u32 v21, s3, v21\nv_xor_b32 v22, 16, v21")
    a("v_mov_b32 v10, s44\nv_mov_b32 v11, s45\nv_cmp_gt_u32 vcc, 16, v14\nv_cndmask_b32 v10, v11, v10, vcc\nv_lshl_add_u32 v10, v14, 2, v10")
    a(f"s_mov_b32 s3, {GS}\nv_mul_lo_u32 v20, v20, s3\nv_lshl_add_u32 v10, v10, 2, v20")
    a(f"s_mul_i32 s42, s37, {8*GS}\ns_add_u32 s42, s42, {WS_G}")
    a("s_waitcnt lgkmcnt(0)\ns_barrier")
    a.st(2)
    for j in range(4): a(f"ds_read_b128 v[{32+4*j}:{35+4*j}], v{21 if j < 2 else 22} offset:{j*1024}")
    for j in range(4):
        a(f"s_waitcnt lgkmcnt({3-j})")
        for i in range(4):
            a(f"v_lshlrev_b32 v4, 16, v{32+4*j+i}\nv_and_b32 v5, 0xffff0000, v{32+4*j+i}\nv_mul_f32 v4, v{28+i}, v4\nv_mul_f32 v5, v{28+i}, v5\nv_cvt_pk_bf16_f32 v{48+4*(j&1)+i}, v4, v5")
        a(f"buffer_store_dwordx4 v[{48+4*(j&1)}:{51+4*(j&1)}], v10, s[28:31], s42 offen{WT(1)}")
        if j < 3: a(f"s_add_u32 s42, s42, {2*GS}")
    a.st(3); a.st_out(0, 28, 's37', 10); a("s_endpgm")
    a(f"K1_mm:\ns_sub_u32 s36, s2, {NCH+NWIN}\ns_lshr_b32 s34, s36, 2\ns_and_b32 s35, s36, 3\ns_load_dwordx8 s[40:47], s[0:1], 32\ns_load_dwordx2 s[48:49], s[0:1], 64\nv_lshlrev_b32 v9, 4, v25\nv_lshlrev_b32 v10, 1, v0")
    a("v_lshrrev_b32 v5, 4, v25\nv_and_b32 v6, 15, v25\nv_xor_b32 v6, v6, v5\nv_lshlrev_b32 v6, 4, v6\nv_lshl_add_u32 v6, v5, 8, v6\nv_lshlrev_b32 v8, 4, v25\nv_and_b32 v3, 31, v25\nv_lshrrev_b32 v4, 5, v25")
    a("s_waitcnt lgkmcnt(0)\ns_cmp_eq_u32 s34, 0\ns_cselect_b32 s52, s40, s44\ns_cselect_b32 s53, s41, s45\ns_cselect_b32 s54, s42, s46\ns_cselect_b32 s55, s43, s47\ns_cselect_b64 s[56:57], -1, 0")
    a.srd(20, 52, 32768); a.srd(24, 54, 32768); a.srd(28, 14, WS_SIZE); a.srd(16, 48, 256)
    a("buffer_load_ushort v10, v10, s[16:19], 0 offen")
    a("s_and_b32 s39, s37, 3\ns_lshl_b32 s39, s39, 6\nv_xor_b32 v7, s39, v6\ns_lshl_b32 s39, s37, 10\ns_mov_b32 m0, s39\ns_lshl_b32 s38, s35, 13\ns_add_u32 s38, s38, s39\nbuffer_load_dwordx4 v7, s[20:23], s38 offen" + NT(256) + " lds")
    a("s_lshl_b32 s38, s37, 12\ns_add_u32 m0, s38, 8192")
    for i in range(4): a(f"v_xor_b32 v7, {64*i}, v6\nv_cndmask_b32 v7, v8, v7, s[56:57]\nbuffer_load_dwordx4 v7, s[24:27], s38 offen offset:{1024*i}{NT(256)} lds")
    a("s_and_b32 s39, s37, 3\ns_lshr_b32 s40, s37, 2\ns_lshl_b32 s41, s40, 7")
    a("v_and_b32 v5, 15, v3\nv_xor_b32 v5, v5, v4\nv_lshlrev_b32 v5, 4, v5\nv_lshl_add_u32 v5, v3, 8, v5\nv_xor_b32 v5, s41, v5\ns_lshl_b32 s42, s39, 13\ns_add_u32 s42, s42, 8192\nv_add_u32 v7, s42, v5")
    a("s_waitcnt vmcnt(0)\ns_barrier")
    for u in range(4): a(f"v_xor_b32 v8, {32*u}, v5\nds_read_b128 v[{16+4*u}:{19+4*u}], v8")
    a("s_cmp_eq_u32 s34, 0\ns_cbranch_scc0 K1_mb")
    for u in range(4): a(f"v_xor_b32 v8, {32*u}, v7\nds_read_b128 v[{32+4*u}:{35+4*u}], v8")
    a("s_branch K1_mc\nK1_mb:")
    a("v_lshlrev_b32 v6, 11, v4\nv_lshl_add_u32 v6, v3, 1, v6\ns_lshl_b32 s42, s39, 6\ns_lshl_b32 s43, s40, 14\ns_add_u32 s42, s42, s43\ns_add_u32 s42, s42, 8192\nv_add_u32 v6, s42, v6")
    for u in range(4):
        for t in range(8): a(f"ds_read_u16 v{(48 if t&1 else 32)+4*u+t//2}, v6 offset:{(16*u+t)*256}")
    a("s_waitcnt lgkmcnt(0)")
    for i in range(16): a(f"v_lshl_or_b32 v{32+i}, v{48+i}, 16, v{32+i}")
    a("K1_mc:\ns_waitcnt lgkmcnt(0)")
    for u in range(4): a(f"v_mfma_f32_32x32x16_bf16 v[48:63], v[{16+4*u}:{19+4*u}], v[{32+4*u}:{35+4*u}], {'0' if u == 0 else 'v[48:63]'}")
    a(f"s_lshl_b32 s42, s36, 15\ns_lshl_b32 s43, s39, 13\ns_add_u32 s42, s42, s43\ns_lshl_b32 s43, s40, 12\ns_add_u32 s42, s42, s43\ns_add_u32 s42, s42, {WS_PM}")
    a(f"s_mov_b32 s3, {WS_WFR+WFR_SW+256}\nv_lshlrev_b32 v10, 16, v10\ns_cmp_lg_u32 s36, 0\ns_cbranch_scc1 K1_nw\nbuffer_store_dword v10, v1, s[28:31], s3 offen\nK1_nw:")
    for i in range(4): a(f"buffer_store_dwordx4 v[{48+4*i}:{51+4*i}], v9, s[28:31], s42 offen offset:{1024*i}")
    a.st(3); a.st_out(0, 28, 's37', 10)
    a("K1_end:\ns_endpgm")
    a.end(name, 64, 102 if OPT['stamp'] else 64)

L2_CNT = 0; L2_LU = 512; L2_BU = 1024; L2_LOC = 2048; L2_IRR = 2304; L2_O = 2560; L2_L = L2_O + 16384; TB = QN*8 + 64; L2_NEW = TB
def k2_window(a):
    Ev, NS, ND = 20, 24, 28
    MK = lambda j: f"s[{40+2*j}:{41+2*j}]"
    a(f"v_lshlrev_b32 v3, 4, v0\ns_mul_i32 s34, s2, {PWS}\ns_add_u32 s65, s34, {WS_PART}\nbuffer_load_dwordx4 v[{Ev}:{Ev+3}], v3, s[28:31], s65 offen{NT(32)}")
    a(f"v_lshlrev_b32 v4, 3, v0\ns_mov_b32 s35, {WS_IRR}\nbuffer_load_dwordx2 v[6:7], v4, s[28:31], s35 offen")
    a("v_lshlrev_b32 v5, 4, v2")
    a(f"s_lshl_b32 s34, s33, 10\ns_add_u32 s35, s34, {WS_NEWID}\ns_add_u32 s34, s34, {L2_NEW}")
    for i in range(4):
        if i == 3: a("s_cmp_lg_u32 s33, 0\ns_cbranch_scc1 K2_nd")
        a(f"s_mov_b32 m0, s34\nbuffer_load_dwordx4 v5, s[28:31], s35 offen lds")
        if i < 3: a("s_add_u32 s34, s34, 16384\ns_add_u32 s35, s35, 16384")
    a(f"s_lshl_b32 s35, s2, 8\ns_add_u32 s35, s35, {WS_LOC}\ns_mov_b32 m0, {L2_LOC}\nv_lshlrev_b32 v8, 2, v2\nbuffer_load_dword v8, s[28:31], s35 offen lds")
    a("K2_nd:")
    a("v_lshlrev_b32 v8, 2, v0\nv_mov_b32 v10, 0\ns_cmp_ge_u32 s33, 8\ns_cbranch_scc1 K2_nz\ns_and_b32 s35, s33, 6\ns_cmp_eq_u32 s35, 2\ns_cbranch_scc1 K2_nz\ns_cmp_ge_u32 s33, 2\ns_cselect_b32 s35, -1, 0\nv_mov_b32 v9, s35\nds_write_b32 v8, v9\nds_write_b32 v10, v10 offset:" + str(L2_IRR) + "\nK2_nz:")
    a("v_bfe_u32 v9, v0, 2, 5\nv_lshrrev_b32 v11, 7, v0\nv_lshl_add_u32 v9, v9, 3, v11")
    a(f"v_cmp_gt_u32 vcc, {NCH}, v9\ns_mov_b64 s[38:39], vcc\nv_mov_b32 v12, 1\nv_mov_b32 v13, 0xfc\ns_mov_b32 s64, 0\ns_mov_b32 s66, {L2_L}\ns_mov_b32 s67, 0")
    levelpos(a, 2, 60, 61)
    a("s_cmp_lt_u32 s33, 8\ns_cselect_b32 s60, s60, s61\ns_sub_u32 s61, s60, s62\ns_mul_i32 s63, s61, 43\ns_lshr_b32 s63, s63, 8\ns_cmp_ge_u32 s61, 84\ns_cselect_b32 s63, 14, s63\ns_cmp_ge_u32 s61, 91\ns_cselect_b32 s63, 15, s63")
    a("s_mul_i32 s68, s63, 6\ns_cselect_b32 s68, 91, s68\ns_sub_u32 s69, s61, s68\ns_add_u32 s68, s68, s62")
    a(f"s_lshl_b32 s68, s68, 2\ns_add_u32 s68, s68, {WS_TQ}\ns_buffer_load_dwordx8 s[48:55], s[28:31], s68")
    a(f"s_mul_i32 s62, s62, 10700\ns_lshr_b32 s62, s62, 16\ns_add_u32 s62, s62, s63\ns_mul_i32 s68, s62, {RS}\ns_add_u32 s68, s68, {WS_IDX}")
    a("s_waitcnt lgkmcnt(0)")
    a("s_mov_b32 s56, 0\ns_and_b32 s57, s48, 0xffff")
    for i in range(6): a(f"s_cmp_gt_u32 s69, {i}\ns_cselect_b32 s58, s57, 0\ns_cselect_b32 s57, s{49+i}, s57\ns_add_u32 s56, s56, s58\ns_and_b32 s57, s57, 0xffff")
    a(f"s_and_b32 s58, s33, 7\ns_cbranch_scc1 K2_nlu\ns_lshl_b32 s58, s57, 2\ns_min_u32 s58, s58, 32\ns_lshl_b64 s[58:59], -1, s58\ns_not_b32 s58, s58\nv_mov_b32 v9, s58\ns_lshl_b32 s58, s33, 5\nv_lshl_add_u32 v8, v2, 2, s58\nds_write_b32 v8, v9 offset:{L2_LU}\nK2_nlu:")
    a("s_waitcnt vmcnt(0) lgkmcnt(0)\ns_barrier"); a.st(11)
    gwarm(a)
    if OPT['tp'] == 0: tabledma(a, 5, 'c', 2)
    a("v_or_b32 v6, v6, v7\nv_cmp_ne_u32 vcc, 0, v6\ns_and_b64 vcc, vcc, s[38:39]\ns_cbranch_vccz K2_reg\nds_write_b32 v10, v12 offset:" + str(L2_IRR) + "\nK2_reg:")
    a("K2_loop:\ns_mov_b64 exec, s[38:39]")
    for j in range(4): a(f"v_cmp_ne_u32 {MK(j)}, -1, v{Ev+j}")
    for j in range(4):
        a(f"s_mov_b64 exec, {MK(j)}")
        a(f"v_lshlrev_b32_sdwa v15, 1, v{Ev+j} {SD} src1_sel:WORD_0\nv_lshrrev_b32 v16, 15, v{Ev+j}")
        a(f"ds_read_u16 v{ND+j}, v16 offset:{L2_LOC}\nds_read_u16 v{NS+j}, v15 offset:{L2_NEW}")
    a("s_waitcnt lgkmcnt(0)")
    for j in range(4):
        a(f"s_mov_b64 exec, {MK(j)}\nv_lshlrev_b32 v{ND+j}, 2, v{ND+j}\nds_add_rtn_u32 v{32+j}, v{ND+j}, v12 offset:{L2_CNT}")
        a(f"v_and_or_b32 v{36+j}, v{ND+j}, v13, s66\nv_lshrrev_b32 v16, 8, v{ND+j}\nv_lshl_add_u32 v{36+j}, v16, 13, v{36+j}")
    a("s_waitcnt lgkmcnt(0)")
    for j in range(4):
        a(f"s_mov_b64 exec, {MK(j)}")
        a(f"v_lshrrev_b32 v16, 1, v{32+j}\nv_lshl_add_u32 v15, v16, 8, v{36+j}\nv_and_b32 v16, 1, v{32+j}\nv_lshl_add_u32 v15, v16, 1, v15")
        a(f"v_cmp_gt_u32 vcc, 64, v{32+j}\ns_and_b64 exec, exec, vcc\nds_write_b16 v15, v{NS+j}")
    a(f"s_mov_b64 exec, -1\ns_cmp_lg_u32 s64, 0\ns_cbranch_scc1 K2_pa\nv_cndmask_b32 v15, 0, v12, {MK(3)}\ns_mov_b32 s64, 1")
    a(f"v_mov_b32_dpp v15, v15 quad_perm:[3,3,3,3] {DPPF}\nv_cmp_ne_u32 s[38:39], 0, v15\ns_cmp_eq_u64 s[38:39], 0\ns_cbranch_scc1 K2_pa")
    a(f"s_mov_b64 exec, s[38:39]\ns_add_u32 s65, s65, {WS_PARTB-WS_PART}\nbuffer_load_dwordx4 v[{Ev}:{Ev+3}], v3, s[28:31], s65 offen\ns_waitcnt vmcnt(0)\ns_branch K2_loop")
    a("K2_pa:\ns_waitcnt lgkmcnt(0)\ns_barrier"); a.st(12)
    if OPT['tp'] == 1: tabledma(a, 5, 'c', 2)
    a("s_mov_b32 s41, s57\ns_mov_b32 s61, s56\ns_lshr_b32 s34, s33, 3\ns_and_b32 s36, s33, 7\ns_lshl_b32 s35, s34, 8\nv_lshl_add_u32 v4, v2, 2, s35\nds_read_b32 v5, v4")
    a(f"s_lshl_b32 s37, s34, 13\ns_add_u32 s37, s37, {L2_L}\ns_lshr_b32 s46, s36, 1\ns_lshl_b32 s46, s46, 8\ns_and_b32 s47, s36, 1\ns_lshl_b32 s47, s47, 1\ns_add_u32 s46, s46, s47\ns_add_u32 s46, s46, s37\nv_lshl_add_u32 v16, v2, 2, s46")
    for t in range(4): a(f"ds_read_u16 v{20+t}, v16 offset:{t*1024}")
    a("s_lshl_b32 s42, s41, 2\ns_waitcnt lgkmcnt(4)\nv_cmp_lt_u32 vcc, s42, v5\ns_min_u32 s42, s42, 32\ns_lshl_b64 s[44:45], -1, s42\ns_not_b32 s44, s44")
    a("s_cbranch_vccz K2_ntq")
    a(f"ds_write_b32 v10, v12 offset:{L2_IRR}\nK2_ntq:")
    a("v_min_u32 v15, s42, v5\nv_subrev_u32 v15, s36, v15\nv_add_u32 v15, 7, v15\nv_lshrrev_b32 v15, 3, v15")
    a(f"s_sub_u32 s43, s42, {OPT['xr']}\ns_max_i32 s43, s43, 2\ns_bfm_b32 s45, s43, 0\ns_cmp_eq_u32 s43, 32\ns_cselect_b32 s45, -1, s45")
    a("s_lshl_b32 s46, s36, 2\nv_add_u32 v17, s46, v2\nv_and_b32 v17, 31, v17\nv_mul_u32_u24 v17, s43, v17\nv_lshrrev_b32 v17, 5, v17")
    a(f"s_lshl_b32 s46, s34, 9\ns_add_u32 s46, s46, {L2_BU}\nv_lshrrev_b32 v8, 5, v2\nv_lshlrev_b32 v8, 8, v8\nv_add_u32 v8, s46, v8")
    a(f"s_lshl_b32 s47, s34, 13\ns_add_u32 s47, s47, {L2_O}\nv_lshl_add_u32 v19, v2, 2, s47")
    a("v_mov_b32 v24, s44\nv_mov_b32 v26, -1\nv_mov_b32 v27, -1\nv_mov_b32 v41, 0x7c\ns_waitcnt lgkmcnt(0)")
    a("v_lshl_or_b32 v20, v21, 16, v20\nv_lshl_or_b32 v21, v23, 16, v22\nv_cmp_lt_u32 vcc, 0, v15")
    a("K2_rd:\ns_mov_b64 exec, vcc\ns_cbranch_execz K2_sd")
    a("v_and_b32 v28, v24, v26\nv_lshlrev_b32 v25, 2, v20\nv_and_b32 v31, s45, v28\nv_cmp_ne_u32 s[48:49], 0, v31\nv_cmp_ne_u32 s[52:53], 0, v28\nv_and_or_b32 v25, v25, v41, v8")
    a("v_cndmask_b32 v31, v28, v31, s[48:49]\nv_alignbit_b32 v31, v31, v31, v17\nv_ffbl_b32 v31, v31\nv_add_u32 v37, v31, v17\ns_cmp_ge_u32 s67, " + str(OPT['fr']) + "\ns_cselect_b64 s[56:57], -1, 0\ns_mov_b64 s[50:51], s[56:57]\ns_andn2_b64 s[54:55], exec, s[52:53]\ns_cbranch_scc0 K2_l1")
    a("s_mov_b64 exec, s[54:55]\nv_and_b32 v29, v24, v27\nv_cmp_eq_u32 s[50:51], 0, v29\nv_add_u32 v25, 128, v25\nv_cndmask_b32 v29, v29, v24, s[50:51]\nv_ffbh_u32 v29, v29\nv_sub_u32 v37, 31, v29\ns_or_b64 s[50:51], s[50:51], s[56:57]\ns_mov_b64 exec, vcc\nK2_l1:")
    a(f"v_lshlrev_b32 v34, v37, v12\nv_not_b32 v33, v34\nds_and_rtn_b32 v24, v4, v33 offset:{L2_LU}\nds_and_rtn_b32 v36, v25, v33\nv_and_b32 v37, 31, v37\nv_lshl_add_u32 v37, v37, 8, v19")
    a("s_waitcnt lgkmcnt(0)\nv_and_b32 v35, v24, v34\nv_and_b32 v38, v36, v34\nv_cndmask_b32 v39, v38, v34, s[50:51]\nv_and_b32 v39, v39, v35\nv_cmp_ne_u32 s[48:49], 0, v39")
    a(f"s_andn2_b64 exec, exec, s[48:49]\nds_or_b32 v4, v35 offset:{L2_LU}\nds_or_b32 v25, v38\nv_cndmask_b32 v26, v26, v36, s[52:53]\nv_cndmask_b32 v27, v36, v27, s[52:53]")
    a("s_mov_b64 exec, s[48:49]\nds_write_b16 v37, v20\nv_and_b32 v24, v24, v33\nv_alignbit_b32 v20, v21, v20, 16\nv_lshrrev_b32 v21, 16, v21\nv_mov_b64 v[26:27], -1\nv_subrev_u32 v15, 1, v15")
    a("s_mov_b64 exec, vcc\nv_cmp_lt_u32 vcc, 0, v15\ns_add_u32 s67, s67, 1\ns_cmp_lt_u32 s67, 4096\ns_cbranch_scc1 K2_rd")
    a(f"s_mov_b64 exec, -1\nds_write_b32 v10, v12 offset:{L2_IRR}")
    a("K2_sd:\ns_mov_b64 exec, -1")
    a("s_waitcnt lgkmcnt(0)\ns_barrier"); a.st(13)
    a("s_cmp_ge_u32 s36, s41\ns_cbranch_scc1 K2_end")
    a(f"s_lshl_b32 s46, s36, 10\nv_add_u32 v11, s46, v19\nv_and_b32 v18, 31, v2\nv_lshl_add_u32 v18, v18, 2, v8")
    a(f"ds_read_b32 v16, v4 offset:{L2_LU}\nds_read_b32 v18, v18\nds_read2st64_b32 v[20:21], v11 offset0:0 offset1:1\nds_read2st64_b32 v[22:23], v11 offset0:2 offset1:3")
    a(f"s_lshl_b32 s47, s36, 9\ns_add_u32 s37, s37, s47\nv_lshl_add_u32 v12, v2, 2, s37\nds_read2st64_b32 v[24:25], v12 offset0:16 offset1:17")
    a(f"v_mov_b32 v13, 0xffff\nv_lshlrev_b32 v15, 4, v2\ns_add_u32 s61, s61, s36\ns_lshr_b32 s39, s61, 1\ns_lshl_b32 s39, s39, 10\ns_and_b32 s61, s61, 1\ns_lshl_b32 s61, s61, 3\ns_add_u32 s39, s39, s61\ns_add_u32 s39, s39, s68\ns_lshl_b32 s38, s36, 2\ns_mov_b32 s50, -1\ns_mov_b32 s51, 0\ns_waitcnt lgkmcnt(3)")
    a("v_lshrrev_b32 v16, s38, v16\nv_lshrrev_b32 v18, s38, v18")
    for t in range(4):
        a(f"v_and_b32 v26, {1 << t}, v18\nv_cmp_ne_u32 s[{52+2*t}:{53+2*t}], 0, v26")
    for r in range(52, 60): a(f"s_ff1_i32_b32 s{r}, s{r}\ns_and_b32 s{r}, s{r}, 31\ns_add_u32 s{r}, s{r}, {ZB}")
    a("s_waitcnt lgkmcnt(0)")
    for t in range(4):
        a(f"v_mov_b32 v26, s{52+2*t}\nv_mov_b32 v27, s{53+2*t}\nv_cndmask_b32 v26, v27, v26, s[50:51]\nv_and_b32 v27, {1 << t}, v16\nv_cmp_ne_u32 vcc, 0, v27\nv_cndmask_b32 v{20+t}, v{20+t}, v26, vcc")
    a("v_and_b32 v20, v13, v20\nv_and_b32 v22, v13, v22\nv_lshl_or_b32 v20, v21, 17, v20\nv_lshl_or_b32 v21, v23, 17, v22\nbuffer_store_dwordx2 v[20:21], v15, s[28:31], s39 offen sc1")
    a("s_add_u32 s36, s36, 8\ns_cmp_ge_u32 s36, s41\ns_cbranch_scc1 K2_end")
    a(f"v_mov_b32 v43, -1\ns_add_u32 s38, s38, 32\nv_subrev_u32 v5, s38, v5\nv_mov_b32 v14, {ZB | (ZB << 16)}")
    for h in range(2):
        a(f"v_cmp_lt_i32 vcc, {2*h}, v5\nv_cndmask_b32 v26, 0, v13, vcc\nv_cmp_lt_i32 vcc, {2*h+1}, v5\nv_cndmask_b32 v26, v26, v40, vcc".replace("v40", "v43"))
        a(f"v_bfi_b32 v{24+h}, v26, v{24+h}, v14\nv_and_b32 v26, 0xffff0000, v{24+h}\nv_add_u32 v{24+h}, v{24+h}, v26")
    a("s_add_u32 s39, s39, 4096\nbuffer_store_dwordx2 v[24:25], v15, s[28:31], s39 offen sc1\ns_branch K2_end")

def f2u(x): return struct.unpack('<I', struct.pack('<f', x))[0]
SCL = f2u(math.log2(math.e)/math.sqrt(128.0))
FO = lambda i: 16*(i & 1) + 8*(i >> 1)
def k2_weights(a):
    S0 = 66048
    a(f"s_sub_u32 s34, s2, {NWIN}")
    a(f"s_lshl_b32 s39, s34, 17\ns_lshl_b32 s60, s33, 13\ns_add_u32 s39, s39, s60\ns_add_u32 s39, s39, {WS_PM}\ns_add_u32 s60, s39, 4096\nv_lshlrev_b32 v8, 4, v2")
    for i in range(4): a(f"buffer_load_dwordx4 v[{80+4*i}:{83+4*i}], v8, s[28:31], s39 offen offset:{1024*i}\nbuffer_load_dwordx4 v[{96+4*i}:{99+4*i}], v8, s[28:31], s60 offen offset:{1024*i}")
    a("s_lshr_b32 s35, s33, 2\ns_and_b32 s36, s33, 3\nv_and_b32 v3, 31, v2\nv_lshrrev_b32 v4, 5, v2")
    a(f"v_lshlrev_b32 v7, 2, v0\ns_cmp_ge_u32 s33, 8\ns_cbranch_scc1 K2w_nw\ns_mov_b32 s3, {WS_WFR+WFR_SW+256}\nbuffer_load_dword v8, v7, s[28:31], s3 offen")
    a(f"v_add_u32 v7, {S0}, v7\ns_waitcnt vmcnt(0)\nds_write_b32 v7, v8\nK2w_nw:")
    a("s_waitcnt vmcnt(0) lgkmcnt(0)\ns_barrier")
    gwarm(a)
    for i in range(16): a(f"v_add_f32 v{80+i}, v{80+i}, v{96+i}")
    a(f"s_mul_i32 s39, s35, {32*516}\ns_lshl_b32 s60, s36, 7\ns_add_u32 s39, s39, s60\nv_mul_u32_u24 v6, {4*516}, v4\nv_lshl_add_u32 v6, v3, 2, v6\nv_add_u32 v6, s39, v6")
    a(f"s_add_u32 s60, s60, {S0}\nv_lshl_add_u32 v7, v3, 2, s60\nds_read_b32 v8, v7")
    for r in range(16): a(f"ds_write_b32 v6, v{80+r} offset:{(8*(r>>2)+(r&3))*516}")
    a("v_add_f32 v9, v80, v81")
    for r in range(2, 16): a(f"v_add_f32 v9, v9, v{80+r}")
    a("ds_add_f32 v7, v9 offset:1536\ns_waitcnt lgkmcnt(1)")
    for r in range(16): a(f"v_mul_f32 v{48+r}, v8, v{80+r}")
    for q in (80, 48):
        for i in range(8): a(f"v_add_f32_dpp v{q+i}, v{q+i}, v{q+i} row_ror:8 row_mask:0xf bank_mask:0x3")
        for i in range(8): a(f"v_add_f32_dpp v{q+i}, v{q+8+i}, v{q+8+i} row_ror:8 row_mask:0xf bank_mask:0xc")
        for i in range(4): a(f"v_add_f32_dpp v{q+i}, v{q+i}, v{q+i} row_half_mirror row_mask:0xf bank_mask:0x5")
        for i in range(4): a(f"v_add_f32_dpp v{q+i}, v{q+4+i}, v{q+4+i} row_half_mirror row_mask:0xf bank_mask:0xa")
        for i in range(4): a(f"v_add_f32_dpp v{q+i}, v{q+i}, v{q+i} quad_perm:[1,0,3,2] {DPPF}")
        for i in range(4): a(f"v_add_f32_dpp v{q+i}, v{q+i}, v{q+i} quad_perm:[2,3,0,1] {DPPF}")
        a(f"v_permlane16_swap_b32 v{q}, v{q+1}\nv_permlane16_swap_b32 v{q+2}, v{q+3}\nv_add_f32 v{q}, v{q}, v{q+1}\nv_add_f32 v{q+2}, v{q+2}, v{q+3}")
    a(f"v_bfe_u32 v10, v2, 2, 2\nv_lshlrev_b32 v10, 5, v10\nv_bfe_u32 v11, v2, 4, 1\nv_lshl_add_u32 v10, v11, 2, v10\nv_lshl_add_u32 v10, v4, 4, v10\ns_lshl_b32 s60, s35, 7\ns_add_u32 s60, s60, {S0}\nv_add_u32 v10, s60, v10")
    a("s_mov_b32 exec_lo, 0x11111111\ns_mov_b32 exec_hi, 0x11111111\nds_add_f32 v10, v80 offset:512\nds_add_f32 v10, v82 offset:520\nds_add_f32 v10, v48 offset:1024\nds_add_f32 v10, v50 offset:1032\ns_mov_b64 exec, -1")
    a("s_waitcnt lgkmcnt(0)"); a("s_barrier")
    a(f"v_lshlrev_b32 v5, 3, v2\nv_add_u32 v5, {S0}, v5\nds_read_b64 v[8:9], v5\nds_read_b64 v[10:11], v5 offset:512\nds_read_b64 v[12:13], v5 offset:1024\ns_waitcnt lgkmcnt(0)")
    a("v_add_f32 v8, v8, v9\nv_add_f32 v10, v10, v11\nv_add_f32 v12, v12, v13")
    for v in (8, 10, 12): a.red63('v_add_f32', v)
    a("v_readlane_b32 s60, v8, 63\nv_readlane_b32 s61, v10, 63\nv_readlane_b32 s62, v12, 63")
    a(f"s_mov_b32 s63, {f2u(1/128.)}\ns_mov_b32 s64, {f2u(-1/128.)}\ns_mov_b32 s65, {SCL}\nv_lshlrev_b32 v15, 4, v2")
    a(f"s_lshl_b32 s66, s33, 11\ns_lshl_b32 s67, s34, 15\ns_add_u32 s66, s66, s67\ns_add_u32 s66, s66, {WS_WFR}")
    a("s_lshr_b32 s35, s33, 1\ns_and_b32 s36, s33, 1\nv_and_b32 v3, 15, v2\nv_lshrrev_b32 v4, 4, v2")
    a("s_cmp_eq_u32 s34, 0\ns_cbranch_scc0 K2w_fb")
    a("v_and_b32 v5, 1, v3\nv_lshrrev_b32 v6, 2, v3\nv_lshl_or_b32 v5, v6, 1, v5\nv_bfe_u32 v6, v3, 1, 1\nv_lshl_or_b32 v5, v6, 4, v5")
    a("s_lshr_b32 s37, s35, 1\ns_lshl_b32 s37, s37, 5\ns_and_b32 s38, s35, 1\ns_lshl_b32 s38, s38, 3\ns_add_u32 s37, s37, s38\nv_add_u32 v5, s37, v5")
    a(f"v_lshlrev_b32 v7, 2, v5\nv_add_u32 v7, {S0}, v7\nds_read_b32 v14, v7 offset:512")
    a(f"s_lshl_b32 s37, s36, 8\nv_lshl_add_u32 v6, v4, 3, s37\nv_mul_u32_u24 v5, 516, v5\nv_add_u32 v5, v5, v6\nv_add_u32 v6, {S0+1536}, v6")
    for h in range(2):
        for i in range(4):
            a(f"ds_read2_b32 v[{16+16*h+2*i}:{17+16*h+2*i}], v5 offset0:{32*h+FO(i)} offset1:{32*h+FO(i)+1}")
            a(f"ds_read2_b32 v[{24+16*h+2*i}:{25+16*h+2*i}], v6 offset0:{32*h+FO(i)} offset1:{32*h+FO(i)+1}")
    a("v_mov_b32 v8, s61\nv_mul_f32 v8, s63, v8\ns_waitcnt lgkmcnt(0)\nv_sub_f32 v14, v8, v14\nv_mul_f32 v14, s63, v14")
    for h in range(2):
        for j in range(8):
            x = 16+16*h+j
            a(f"v_add_f32 v{x}, v{x}, v14\nv_fmac_f32 v{x}, s64, v{x+8}\nv_mul_f32 v{x}, s65, v{x}")
        for i in range(4): a(f"v_cvt_pk_bf16_f32 v{48+4*h+i}, v{16+16*h+2*i}, v{17+16*h+2*i}")
        a(f"buffer_store_dwordx4 v[{48+4*h}:{51+4*h}], v15, s[28:31], s66 offen offset:{1024*h}")
    a("s_branch K2w_end\nK2w_fb:")
    a("s_lshr_b32 s37, s35, 1\ns_lshl_b32 s37, s37, 7\ns_and_b32 s38, s35, 1\ns_lshl_b32 s38, s38, 2\ns_add_u32 s37, s37, s38\nv_lshl_add_u32 v5, v3, 3, s37")
    a(f"v_add_u32 v7, {S0+1536}, v5\nds_read_b32 v14, v7")
    a(f"s_mul_i32 s37, s36, {64*516}\nv_mul_u32_u24 v6, {2*516}, v4\nv_add3_u32 v5, v5, v6, s37")
    for h in range(2):
        for i in range(4):
            for c in range(2): a(f"ds_read_b32 v{16+8*h+2*i+c}, v5 offset:{(32*h+FO(i)+c)*516}")
    a("s_waitcnt lgkmcnt(0)")
    for h in range(2):
        for j in range(8): a(f"v_fmac_f32 v{16+8*h+j}, s64, v14")
        for i in range(4): a(f"v_cvt_pk_bf16_f32 v{48+4*h+i}, v{16+8*h+2*i}, v{17+8*h+2*i}")
        a(f"buffer_store_dwordx4 v[{48+4*h}:{51+4*h}], v15, s[28:31], s66 offen offset:{1024*h}")
    a("s_cmp_ge_u32 s33, 4\ns_cbranch_scc1 K2w_end")
    a("v_and_b32 v5, 3, v2\nv_max_u32 v7, 1, v5\nv_lshlrev_b32 v7, 9, v7\nv_lshl_add_u32 v7, v4, 3, v7")
    a(f"s_lshl_b32 s37, s33, 7\ns_add_u32 s37, s37, {S0-512}\nv_add_u32 v7, s37, v7")
    for i in range(4): a(f"ds_read2_b32 v[{16+2*i}:{17+2*i}], v7 offset0:{FO(i)} offset1:{FO(i)+1}")
    a("v_mov_b32 v8, s61\nv_mov_b32 v9, s62\nv_cmp_eq_u32 s[40:41], 2, v5\nv_cmp_eq_u32 s[42:43], 3, v5\nv_cmp_eq_u32 s[44:45], 0, v5")
    a("v_cndmask_b32 v8, 0, v8, s[40:41]\nv_cndmask_b32 v8, v8, v9, s[42:43]")
    a("s_waitcnt lgkmcnt(0)")
    for j in range(8): a(f"v_fmac_f32 v{16+j}, s64, v8\nv_cndmask_b32 v{16+j}, v{16+j}, 1.0, s[44:45]")
    for i in range(4): a(f"v_cvt_pk_bf16_f32 v{48+i}, v{16+2*i}, v{17+2*i}")
    a(f"s_lshl_b32 s37, s33, 10\ns_add_u32 s37, s37, {WS_WFR+WFR_E}\nbuffer_store_dwordx4 v[48:51], v15, s[28:31], s37 offen")
    a(f"v_mov_b32 v8, s60\ns_mov_b32 s37, {WS_WFR+WFR_SW}\ns_mov_b64 exec, 1\nbuffer_store_dword v8, v15, s[28:31], s37 offen")


NQ = 44; DEP = 2; NBUF = 3
QB = QN*4
L3_CNT = TB + GS; L3_SIZE = L3_CNT + 64
ACC, AOP, ADR, BUF, TMP, GK, DIS, IDX = 2, 6, 8, 12, 24, 26, 33, 40
SPIN = 1 << 20
LSC = lambda b: ('sc1', 'nt', 'sc1 nt', 'sc0 nt', 'sc0', '')[OPT['lnt'] if b == 2 else OPT['pnt']]
TSC = lambda: ('', ' nt', ' sc1', ' sc0 sc1', ' sc0', ' sc1 nt')[OPT['tsc']]
XP = 3
NL = NQ//2
def gwarm(a):
    if OPT['gw'] != 1: return
    a(f"s_mul_i32 s52, s18, {GS}\ns_mul_i32 s53, s16, {QB}\ns_add_u32 s52, s52, s53\ns_lshl_b32 s53, s20, 8\ns_add_u32 s52, s52, s53\ns_add_u32 s52, s52, {WS_G+KS}")
    a(f"v_lshlrev_b32 v126, 7, v2\ns_mov_b64 exec, 0x3fff\nbuffer_load_dword v127, v126, s[8:11], s52 offen\ns_mov_b64 exec, -1")
def tabledma(a, v16, sfx, part=3):
    base = lambda k: a(f"s_mul_i32 s53, s18, {GS}\ns_lshl_b32 s52, s19, 10\ns_add_u32 s53, s53, s52\ns_add_u32 s53, s53, {WS_G+k*1024}\ns_add_u32 s52, s52, {TB+k*1024}")
    def run(n):
        for i in range(n):
            if i == 3: a(f"s_cmp_ge_u32 s19, 2\ns_cbranch_scc1 K3_nt{sfx}")
            a(f"s_mov_b32 m0, s52\nbuffer_load_dwordx4 v{v16}, s[8:11], s53 offen{NT(16)} lds")
            if i < n-1: a("s_add_u32 s52, s52, 16384\ns_add_u32 s53, s53, 16384")
    if part & 2: base(50); run(3)
    if not part & 1: return
    base(0); run(4)
    a(f"K3_nt{sfx}:")
    a(f"s_mul_i32 s52, s16, 98\ns_add_u32 s52, s52, s20\ns_lshl_b32 s52, s52, 8\ns_add_u32 s52, s52, {WS_DISP}\nv_lshlrev_b32 v{v16}, 2, v2")
    for i in range(7): a(f"buffer_load_dword v{DIS+i}, v{v16}, s[8:11], s52 offen offset:{i*256}")
    a(f"v_mul_u32_u24 v{v16}, 24, v2\nv_mov_b32 v45, 364\nv_cmp_eq_u32 vcc, 15, v2\nv_cndmask_b32 v{v16}, v{v16}, v45, vcc\ns_mul_i32 s52, s16, 392\ns_add_u32 s52, s52, {WS_TQ}\ns_mov_b64 exec, 0xffff")
    a(f"buffer_load_dwordx4 v[120:123], v{v16}, s[8:11], s52 offen\nbuffer_load_dwordx3 v[124:126], v{v16}, s[8:11], s52 offen offset:16\ns_mov_b64 exec, -1")
def k3(a):
    global XP
    XP = OPT['xp']
    name = 'hop_kernel'
    a.launch(name, 256, 1024, L3_SIZE)
    a.begin(name)
    a("s_cmp_ge_u32 s2, 256\ns_cbranch_scc1 K3_end")
    a.st_init()
    a("s_load_dwordx2 s[4:5], s[0:1], 88")
    a("v_lshrrev_b32 v1, 6, v0\nv_and_b32 v2, 63, v0\nv_readfirstlane_b32 s19, v1")
    a("s_lshr_b32 s16, s2, 3\ns_and_b32 s16, s16, 3\ns_and_b32 s17, s2, 7\ns_lshl_b32 s17, s17, 3\ns_lshr_b32 s18, s2, 5\ns_or_b32 s18, s18, s17")
    a("s_mul_i32 s20, s19, 6\ns_cmp_eq_u32 s19, 15\ns_cselect_b32 s20, 91, s20\ns_cmp_ge_u32 s19, 14\ns_cselect_b32 s21, 7, 6\ns_mov_b32 s33, s19")
    a("s_waitcnt lgkmcnt(0)")
    a.srd(8, 4, WS_SIZE); a.srd(28, 4, WS_SIZE)
    def ids():
        a("s_getreg_b32 s50, hwreg(HW_REG_XCC_ID)\ns_and_b32 s50, s50, 0xff\ns_add_u32 s50, s50, 1")
        a(f"s_mul_i32 s51, s18, {FGS}\ns_add_u32 s51, s51, {WS_FLAGS}")
    a("s_cmp_lg_u32 s19, 15\ns_cbranch_scc1 K3_nox"); ids()
    a(f"s_lshl_b32 s52, s16, 2\ns_add_u32 s52, s52, s51\nv_mov_b32 v4, s50\nv_mov_b32 v6, 0\nv_mov_b32 v7, {L3_CNT}\ns_mov_b64 exec, 1")
    a("buffer_store_dword v4, v6, s[8:11], s52 offen offset:2048 sc1\nds_write_b32 v7, v6\ns_mov_b64 exec, -1\nK3_nox:")
    a(f"s_cmp_ge_u32 s2, {NWIN+2}\ns_cbranch_scc1 K2_idle\ns_cmp_ge_u32 s2, {NWIN}\ns_cbranch_scc1 K2_wts")
    k2_window(a)
    a(f"K2_end:\ns_mov_b64 exec, -1\ns_waitcnt vmcnt(0) lgkmcnt(0)\ns_barrier\ns_cmp_lg_u32 s19, 0\ns_cbranch_scc1 K2_lo\nv_mov_b32 v10, 0\nds_read_b32 v4, v10 offset:{L2_IRR}")
    a(f"s_lshl_b32 s52, s2, 7\ns_add_u32 s52, s52, {WS_WDN}\ns_mov_b64 exec, 1\ns_waitcnt lgkmcnt(0)\nv_add_u32 v4, 1, v4\nbuffer_store_dword v4, v10, s[8:11], s52 offen sc1\ns_mov_b64 exec, -1\nK2_lo:\nv_lshlrev_b32 v44, 4, v2"); tabledma(a, 44, 'a', 1); a("s_branch K3_join")
    a("K2_wts:")
    k2_weights(a)
    a("K2w_end:\ns_mov_b64 exec, -1\ns_waitcnt lgkmcnt(0)\ns_barrier\ns_branch K2_tab\nK2_idle:"); gwarm(a)
    if OPT['cpf'] & 2:
        a("s_cmp_eq_u32 s19, 15\ns_cbranch_scc0 K2_tab\nv_lshlrev_b32 v3, 2, v2"); a.codepf('K3_join', 'K3_end', 3, 4, 52, 127)
    a("K2_tab:\nv_lshlrev_b32 v44, 4, v2"); tabledma(a, 44, 'b')
    if OPT['gw'] >= 2:
        a(f"s_cmp_lt_u32 s2, 200\ns_cbranch_scc1 K3_join\ns_cmp_ge_u32 s19, 14\ns_cbranch_scc1 K3_join\ns_lshr_b32 s52, s2, 3\ns_sub_u32 s52, s52, 25\ns_mul_i32 s52, s52, {896*128}\ns_and_b32 s53, s2, 7\ns_mul_i32 s53, s53, {8*GS}")
        a(f"s_add_u32 s52, s52, s53\ns_add_u32 s52, s52, {WS_G+KS}\nv_lshlrev_b32 v118, 7, v0")
        if OPT['gw'] == 2: a("s_waitcnt vmcnt(0)")
        a("buffer_load_dword v119, v118, s[8:11], s52 offen")
    a("K3_join:"); a.st(1); ids()
    a("s_mul_i32 s48, s16, 98\ns_add_u32 s48, s48, s20")
    a(f"s_lshl_b32 s49, s48, 2\ns_add_u32 s49, s49, {WS_TQ}\ns_buffer_load_dwordx8 s[40:47], s[8:11], s49")
    a(f"v_mov_b32 v5, v2\nv_lshlrev_b32 v0, 2, v5\nv_lshlrev_b32 v8, 4, v5\ns_mul_i32 s39, s18, {GS}\ns_add_u32 s39, s39, {WS_G}")
    a(f"s_lshl_b32 s69, s16, 4\ns_add_u32 s69, s69, s19\ns_mul_i32 s69, s69, {RS}\ns_add_u32 s69, s69, {WS_IDX}")
    def idxld(p, va=8):
        if p and p % 4 == 0: a("s_add_u32 s69, s69, 4096")
        a(f"buffer_load_dwordx4 v[{IDX+4*p}:{IDX+4*p+3}], v{va}, s[8:11], s69 offen offset:{(p&3)*1024}{NT(8)}")
    a("s_waitcnt lgkmcnt(0)")
    a("s_cmp_eq_u32 s21, 7\ns_cselect_b32 s46, s46, 0")
    for i in range(1, 7): a(f"s_add_u32 s{40+i}, s{40+i}, s{39+i}")
    a(f"s_min_u32 s47, s46, {NQ}\ns_sub_u32 s28, s47, {DEP+1}\ns_mov_b64 s[32:33], 0")
    for i in range(7): a(f"s_sub_u32 s{40+i}, s{40+i}, 1\ns_bitset1_b64 s[32:33], s{40+i}")
    a("s_add_u32 s52, s28, 1\ns_lshr_b64 s[34:35], s[32:33], s52\ns_mov_b64 s[24:25], s[32:33]\ns_bitset1_b64 s[24:25], s28")
    def wpoll(sfx):
        a(f"K3_wp{sfx}:\nbuffer_load_dword v4, v6, s[8:11], s52 offen sc1\ns_waitcnt vmcnt(0)\nv_cmp_eq_u32 vcc, 0, v4\ns_cbranch_vccz K3_wd{sfx}\ns_add_u32 s64, s64, 1\ns_cmp_gt_u32 s64, {SPIN}\ns_cbranch_scc1 K3_wd{sfx}\ns_sleep {OPT['slw']}\ns_branch K3_wp{sfx}\nK3_wd{sfx}:")
    a(f"s_mov_b32 s64, 0\ns_mul_i32 s52, s16, {49*128}\ns_add_u32 s52, s52, {WS_WDN}")
    if OPT['pw']:
        a("v_add_u32 v6, s20, v5\nv_mov_b32 v7, v6")
        for x, y in SWAPS:
            for p, q in ((x, y), (y, x)): a(f"v_mov_b32 v9, {q}\nv_cmp_eq_u32 vcc, {p}, v6\nv_cndmask_b32 v7, v7, v9, vcc")
        a("v_lshrrev_b32 v7, 1, v7\nv_lshlrev_b32 v6, 7, v7\ns_bfm_b64 exec, s21, 0"); wpoll('a'); a("s_mov_b64 exec, -1")
    a(f"s_waitcnt vmcnt(0)\nv_add3_u32 v{BUF}, v120, v121, v122\nv_add3_u32 v{BUF}, v{BUF}, v123, v124\nv_add_u32 v{BUF}, v{BUF}, v125\ns_mov_b64 exec, 0xc000\nv_add_u32 v{BUF}, v{BUF}, v126\ns_mov_b64 exec, -1")
    if OPT['pw']:
        for p in range(XP+1): idxld(p)
    a("s_cmp_lg_u32 s19, 0\ns_cbranch_scc1 K3_nw\nv_lshlrev_b32 v6, 5, v0\ns_mov_b32 exec_hi, 0x1ffff"); wpoll('b')
    a(f"v_cmp_ne_u32 vcc, 1, v4\ns_cmp_lg_u64 vcc, 0\ns_cselect_b32 s52, 1, 0\nv_mov_b32 v4, s52\nv_mov_b32 v6, {L3_CNT}\nds_write_b32 v6, v4 offset:4\ns_mov_b64 exec, -1\nK3_nw:")
    a(f"s_waitcnt lgkmcnt(0)"); a.st(2); a("s_barrier"); a.st(3)
    if not OPT['pw']:
        for p in range(XP+1): idxld(p)
    a(f"s_lshl_b32 m0, s48, 8\nv_mov_b32 v6, {L3_CNT}\nds_read_b32 v{BUF+7}, v6 offset:4")
    for i in range(7): a(f"ds_read_addtid_b32 v{GK+i} offset:{TB+i*256}")
    a(f"buffer_load_dword v{TMP}, v0, s[8:11], s51 offen offset:2048 sc1")
    LA = OPT['la']; LD = {}; nxt = XP+1
    def late(lo, hi):
        if hi > lo: a(f"v_lshlrev_b32 v{TMP+1}, 2, v0")
        for p in range(lo, hi): a(f"s_cmp_gt_u32 s47, {2*p}\ns_cselect_b64 exec, -1, 1"); idxld(p, TMP+1)
        a("s_mov_b64 exec, -1")
    late(nxt, nxt+LA); nxt += LA
    for p in range(0, NQ, 4):
        if p < NQ-DEP-1: LD[p] = (nxt, min(nxt+2, NL)); nxt = LD[p][1]
    EM = sum(1 << p for p in LD)
    a(f"s_mov_b64 s[88:89], s[24:25]\ns_or_b32 s24, s24, {EM & 0xffffffff}\ns_or_b32 s25, s25, {EM >> 32}")
    issued = lambda p: max([XP+1+LA] + [hi for q, (lo, hi) in LD.items() if q < p])
    tb = 32; lb = 2; TBS_ = TOS
    a(f"v_lshrrev_b32 v1, {1+lb}, v5\nv_mul_u32_u24 v1, {TBS_}, v1\nv_and_b32 v4, {(2 << lb)-1}, v5\nv_lshl_add_u32 v1, v4, 4, v1\nv_and_b32 v4, 3, v5")
    a(f"v_cmp_eq_u32 s[54:55], 0, v4\nv_cmp_eq_u32 s[56:57], 1, v4\nv_mov_b32 v2, 0x3f80\nv_mov_b32 v3, 0x3f800000")
    a(f"v_cndmask_b32 v{AOP}, 0, v2, s[54:55]\nv_cndmask_b32 v{AOP}, v{AOP}, v3, s[56:57]\nv_mov_b32 v{AOP+1}, v{AOP}")
    for i in range(4): a(f"v_mov_b32 v{ACC+i}, 0")
    a("s_lshl_b32 s52, s19, 7\ns_add_u32 s65, s52, s51")
    a("s_lshl_b32 s58, s16, 2\ns_add_u32 s58, s58, s65")
    a(f"s_lshl_b32 s59, s20, 8\ns_mul_i32 s60, s16, {QB}\ns_add_u32 s60, s60, s59")
    a(f"s_mul_i32 s61, s48, {(64//tb)*TBS_}\ns_lshl_b32 s52, s18, {5+lb}\ns_add_u32 s61, s61, s52\ns_add_u32 s61, s61, {WS_TOK}")
    for r in range(1, 4): a(f"s_add_u32 s52, s16, {r}\ns_and_b32 s52, s52, 3\ns_mul_i32 s52, s52, {QB}\ns_add_u32 s{65+r}, s52, s59")
    a(f"s_mov_b32 s22, 1")
    def ad1(p, h):
        r = IDX+2*p+(h >> 1)
        a(f"v_lshrrev_b32 v{ADR+h}, 15, v{r}" if h & 1 else f"v_lshlrev_b32_sdwa v{ADR+h}, 2, v{r} {SD} src1_sel:WORD_0")
    def adr(p):
        for h in range(4): ad1(p, h)
    def rd(p):
        for h in range(4): a(f"ds_read_b32 v{BUF+4*(p%NBUF)+h}, v{ADR+h} offset:{TB}")
    def mf(p, h):
        b = BUF+4*(p%NBUF)+2*h
        if OPT['exp'] & 2: return
        a(f"v_mfma_f32_4x4x4_16b_bf16 v[{ACC}:{ACC+3}], v[{AOP}:{AOP+1}], v[{b}:{b+1}], v[{ACC}:{ACC+3}]")
    def vw(p): pass
    CALL = "s_swappc_b64 s[30:31], s[26:27]"
    T0, T1 = TMP, TMP+1
    a(f"s_mov_b64 exec, 15\ns_waitcnt vmcnt({LA})\nK3_xp:\nv_cmp_eq_u32 vcc, 0, v{TMP}\ns_cbranch_vccz K3_xb\ns_add_u32 s64, s64, 1\ns_cmp_gt_u32 s64, {SPIN}\ns_cbranch_scc1 K3_xb")
    a(f"buffer_load_dword v{TMP}, v0, s[8:11], s51 offen offset:2048 sc1\ns_waitcnt vmcnt(0)\ns_branch K3_xp\nK3_xb:")
    a(f"v_cmp_ne_u32 vcc, s50, v{TMP}\ns_cmp_lg_u64 vcc, 0\ns_cselect_b32 s23, 1, 0\ns_mov_b64 exec, -1")
    a("s_mov_b64 exec, 0xffff")
    a(f"s_waitcnt lgkmcnt(0)\nv_lshl_add_u32 v{BUF}, v{BUF+7}, 8, v{BUF}\nv_cmp_lt_u32 vcc, {NQ}, v{BUF}\ns_cmp_lg_u64 vcc, 0\ns_cselect_b32 s29, 1, {OPT['slow']}\ns_mov_b64 exec, -1")
    a("s_getpc_b64 s[40:41]\nK3_pc:\ns_add_u32 s40, s40, K3_fl0_0-K3_pc\ns_addc_u32 s41, s41, 0\ns_mul_i32 s42, s23, K3_fl1_0-K3_fl0_0\ns_mov_b32 s43, K3_fl2_0-K3_fl0_0")
    a(f"s_add_u32 s45, s23, 1\ns_mul_i32 s45, s45, {KS}\ns_add_u32 s45, s45, s39")
    a("s_waitcnt lgkmcnt(0)")
    if OPT['exp'] & 4:
        a("s_waitcnt vmcnt(0)\nv_lshrrev_b32 v24, 2, v0\nv_lshl_or_b32 v24, v24, 17, v24")
        for p in range(2*NQ): a(f"v_add_u32 v{IDX+p}, {(p*64) | (p*64+64*99) << 17}, v24")
    a("K3_hop:")
    a(f"s_mov_b32 s52, s39\ns_mov_b32 s39, s45\ns_add_u32 s53, s39, {KS}\ns_cmp_eq_u32 s23, 0\ns_cselect_b32 s45, s52, s53")
    a(f"s_add_u32 s61, s61, {tb*256}\ns_add_u32 s37, s39, s60")
    assert not OPT['px']
    a("s_cmp_eq_u32 s22, 7\ns_cselect_b32 s42, s43, s42\ns_add_u32 s26, s40, s42\ns_addc_u32 s27, s41, 0")
    if OPT['prio'] == 1: a("s_cmp_ge_u32 s19, 8\ns_cbranch_scc1 K3_p2\ns_setprio 3\ns_branch K3_p3\nK3_p2:\ns_setprio 2\nK3_p3:")
    if OPT['prio'] in (2, 4, 5, 6, 7): a("s_setprio 3")
    if OPT['prio'] == 3: a("s_setprio 1")
    a("s_cmp_lg_u32 s29, 0\ns_cbranch_scc1 K3_slow")
    for p in range(DEP): adr(p); rd(p)
    adr(DEP)
    def tok(part):
        if OPT['exp'] & 8: return
        if part == 0: a(f"buffer_store_dwordx4 v[{GK}:{GK+3}], v1, s[8:11], s38 offen{TSC()}")
        if part == 1:
            a(f"v_lshrrev_b32 v{T0}, {4+lb}, v0\nv_mul_u32_u24 v{T0}, {TBS_}, v{T0}\nv_and_b32 v{T1}, {(16 << lb)-4}, v0\nv_lshl_add_u32 v{T0}, v{T1}, 1, v{T0}\ns_add_u32 s38, s38, {(256//tb)*TBS_}")
            a(f"buffer_store_dwordx2 v[{GK+4}:{GK+5}], v{T0}, s[8:11], s38 offen{TSC()}")
        if part == 2:
            l = a.lab('K3_t')
            a(f"s_cmp_eq_u32 s21, 7\ns_cbranch_scc0 {l}\nv_lshrrev_b32 v{T0}, {5+lb}, v0\nv_mul_u32_u24 v{T0}, {TBS_}, v{T0}\nv_and_b32 v{T1}, {(32 << lb)-4}, v0\nv_add_u32 v{T0}, v{T0}, v{T1}\ns_add_u32 s38, s38, {(128//tb)*TBS_}")
            a(f"buffer_store_dword v{GK+6}, v{T0}, s[8:11], s38 offen{TSC()}\n{l}:")
    a(f"s_sub_u32 s38, s61, {tb*256}"); tok(0)
    if OPT['cpf'] & 4:
        a("s_cmp_eq_u32 s22, 7\ns_cbranch_scc0 K3_npf\ns_cmp_eq_u32 s19, 0\ns_cbranch_scc0 K3_npf"); a.codepf('att_kernel', 'K4_end', 0, T0, 52, ACC+3); a("K3_npf:")
    for p in range(NQ-DEP):
        rd(p+DEP); a(f"s_waitcnt lgkmcnt({4*DEP})"); mf(p, 0)
        if p+DEP+1 < NQ:
            vw(p+DEP+1)
            ad1(p+DEP+1, 0); ad1(p+DEP+1, 1); mf(p, 1); ad1(p+DEP+1, 2); ad1(p+DEP+1, 3)
        else: mf(p, 1)
        if OPT['prio'] == 2 and p in (9, 18, 27): a(f"s_setprio {2 - (9, 18, 27).index(p)}")
        if OPT['prio'] == 1 and p in (11, 23): a(f"s_cmp_ge_u32 s19, 8\ns_cbranch_scc0 K3_q{p}\ns_setprio {1 if p == 11 else 0}\nK3_q{p}:")
        a(f"s_bitcmp1_b64 s[24:25], {p}\ns_cbranch_scc1 K3_st{p}\nK3_bk{p}:")
    a("s_endpgm")
    for p in range(NQ-DEP):
        a(f"K3_st{p}:")
        if p in LD: a(f"s_cmp_eq_u32 s22, 1\ns_cbranch_scc0 K3_nl{p}"); late(*LD[p]); a(f"s_waitcnt vmcnt({LD[p][1] - 1 - min((p+4+DEP+1)//2, NL-1)})\nK3_nl{p}:")
        a(f"s_bitcmp1_b64 s[32:33], {p}\ns_cbranch_scc0 K3_nf{p}\n{CALL}\nK3_nf{p}:")
        a(f"s_cmp_eq_u32 s28, {p}\ns_cbranch_scc1 K3_dr{(p+1)%NBUF}\ns_branch K3_bk{p}")
    for r in range(NBUF):
        a(f"K3_dr{r}:")
        for i in range(DEP):
            a(f"s_waitcnt lgkmcnt({4*(DEP-1-i)})"); mf(r+i, 0); mf(r+i, 1)
            if i < DEP-1: a(f"s_bitcmp1_b32 s34, {i}\ns_cbranch_scc0 K3_dn{r}_{i}\n{CALL}\nK3_dn{r}_{i}:")
            else: a(f"{CALL}\ns_branch K3_hend")
    for m in range(3):
        for l in range(7):
            tg = m == 0 and OPT['px']; sc = ' sc1' if m else NT(4)
            a(f".p2align 7\nK3_fl{m}_{l}:\ns_add_u32 s26, s26, 128\ns_addc_u32 s27, s27, 0")
            if tg and l >= 5:
                a(f"s_cmp_eq_u32 s22, 1\ns_cbranch_scc0 K3_nz{l}\ns_waitcnt vmcnt(0)\nK3_nz{l}:")
            PR = {4: {1: 2, 3: 1, 4: 0}, 5: {0: 2, 2: 1, 4: 0}, 6: {2: 2, 3: 1, 4: 0}, 7: {1: 2, 2: 1, 3: 0}}.get(OPT['prio'], {})
            if l in PR: a(f"s_setprio {PR[l]}")
            if l in (1, 2): tok(l)
            if m == 0 and l == 0 and OPT['wb6']:
                a(f"s_cmp_lt_u32 s22, {OPT['wb6']}\ns_cbranch_scc1 K3_nwc\ns_cmp_lg_u32 s19, 0\ns_cbranch_scc1 K3_nwc\ns_cmp_ge_u32 s2, 8\ns_cbranch_scc1 K3_nwc\nbuffer_wbl2 sc1\nK3_nwc:")
            if m == 2 and l == OPT['wb'] - 1:
                a(f"s_cmp_lg_u32 s19, {OPT['wbw']}\ns_cbranch_scc1 K3_nwb\ns_cmp_ge_u32 s2, 8\ns_cbranch_scc1 K3_nwb\nbuffer_wbl2 sc1\nK3_nwb:")
            a(f"v_mul_f32 v{T0}, v{DIS+l}, v{ACC}\nv_mul_f32 v{T1}, v{DIS+l}, v{ACC+1}\nv_mov_b64 v[{ACC}:{ACC+1}], 0")
            if tg: a(f"v_add_u32 v{T0}, s47, v{T0}\nv_cvt_pk_bf16_f32 v{T1}, v{T1}, v{T1}\nv_perm_b32 v{T0}, v{T1}, v{T0}, s63\nv_bfi_b32 v{GK+l}, 1, s46, v{T0}")
            else: a(f"v_cvt_pk_bf16_f32 v{GK+l}, v{T0}, v{T1}")
            if m < 2 and l == 3: a(f"v_lshlrev_b32 v{T0}, 2, v0\nbuffer_store_dwordx4 v[{GK}:{GK+3}], v{T0}, s[8:11], s37 offen{sc}")
            if m < 2 and l == 5: a(f"v_lshlrev_b32 v{T0}, 1, v0\nbuffer_store_dwordx2 v[{GK+4}:{GK+5}], v{T0}, s[8:11], s37 offen offset:1024{sc}")
            if m < 2 and l == 6: a(f"buffer_store_dword v{GK+6}, v0, s[8:11], s37 offen offset:1536{sc}")
            if tg and l in (0, 4):
                a(f"s_cmp_eq_u32 s22, 1\ns_cbranch_scc0 K3_nc{l}\nv_mov_b32 v{T1}, 0")
                for x in ((0, 1, 2), (3, 4, 5, 6))[l >> 2]:
                    if x == 6: a(f"s_cmp_eq_u32 s21, 7\ns_cselect_b32 s36, s36, {WS_SIZE}")
                    a(f"buffer_store_dword v{T1}, v0, s[8:11], s36 offen offset:{x*256}")
                a(f"K3_nc{l}:")
            a("s_setpc_b64 s[30:31]")
            a(f".if (. - K3_fl{m}_{l}) > 128\n.error \"flush too long\"\n.endif")
    AC0 = 0
    a(f"K3_slow:\ns_load_dwordx4 s[72:75], s[0:1], 8\ns_sub_u32 s38, s61, {tb*256}"); tok(0)
    a(f"s_lshl_b32 s52, s20, 9\ns_add_u32 s52, s52, {AC0}\nv_lshl_add_u32 v8, v0, 1, s52\nv_mov_b32 v10, 0\nv_mov_b32 v11, 0")
    for l in range(6): a(f"ds_write_b64 v8, v[10:11] offset:{l*512}")
    a("s_cmp_eq_u32 s21, 7\ns_cbranch_scc0 K3_s6\nds_write_b64 v8, v[10:11] offset:3072\nK3_s6:\ns_waitcnt lgkmcnt(0)")
    a.srd(76, 72, E*4); a.srd(80, 74, E*4)
    a(f"s_barrier\ns_lshl_b32 s52, s19, 8\ns_mul_i32 s53, s16, {QN}\ns_mov_b32 s54, {WS_NEWID}")
    a("K3_sl:\nbuffer_load_dword v12, v0, s[76:79], s52 offen\nbuffer_load_dword v13, v0, s[80:83], s52 offen\nv_add_u32 v14, s52, v0\ns_waitcnt vmcnt(0)\nv_lshlrev_b32 v12, 1, v12\nv_lshlrev_b32 v13, 1, v13")
    a("buffer_load_ushort v12, v12, s[8:11], s54 offen\nbuffer_load_ushort v13, v13, s[8:11], s54 offen\ns_waitcnt vmcnt(0)\nv_lshlrev_b32 v12, 2, v12\nds_read_b32 v12, v12 offset:" + str(TB) + "\nv_subrev_u32 v13, s53, v13")
    a(f"v_cmp_gt_u32 vcc, {E*4}, v14\ns_mov_b64 exec, vcc\nv_cmp_gt_u32 vcc, {QN}, v13\ns_mov_b64 exec, vcc\nv_lshlrev_b32 v13, 3, v13\nv_add_u32 v13, {AC0}, v13\ns_waitcnt lgkmcnt(0)")
    a(f"v_lshlrev_b32 v15, 16, v12\nv_and_b32 v12, 0xffff0000, v12\nds_add_f32 v13, v15\nds_add_f32 v13, v12 offset:4\ns_mov_b64 exec, -1\ns_add_u32 s52, s52, 4096\ns_cmp_lt_u32 s52, {E*4}\ns_cbranch_scc1 K3_sl")
    a("s_waitcnt lgkmcnt(0)\ns_barrier")
    for l in range(7):
        if l == 6: a("s_cmp_eq_u32 s21, 7\ns_cbranch_scc0 K3_hend")
        a(f"ds_read_b64 v[{ACC}:{ACC+1}], v8 offset:{l*512}\ns_waitcnt lgkmcnt(0)\n{CALL}")
    a("K3_hend:"); a.st(4)
    if OPT['stamp'] in (1, 2): a("s_cmp_eq_u32 s22, 1\ns_cselect_b32 s80, s74, s80\ns_cselect_b32 s74, 0, s74")
    a("s_mov_b64 s[24:25], s[88:89]\ns_cmp_eq_u32 s22, 7\ns_cbranch_scc1 K3_fin")
    if OPT['prio']: a(f"s_setprio {OPT['wprio']}")
    a(f"v_mov_b32 v{T0}, s22\nv_mov_b32 v{T1}, 1\nv_mov_b32 v{ACC}, {L3_CNT}\ns_mov_b64 exec, 1\nds_add_u32 v{ACC}, v{T1}")
    if OPT['px']: a("s_cmp_gt_u32 s22, 1\ns_cselect_b32 s52, s23, 1\ns_cmp_eq_u32 s52, 0\ns_cbranch_scc1 K3_px")
    a("s_waitcnt vmcnt(0)"); a.st(5)
    a("s_cmp_eq_u32 s23, 0\ns_cbranch_scc0 K3_g1")
    a(f"buffer_store_dword v{T0}, v0, s[8:11], s58 offen\ns_branch K3_g2\nK3_g1:\nbuffer_store_dword v{T0}, v0, s[8:11], s58 offen sc1\nK3_g2:")
    a(f"s_mov_b64 exec, 15")
    NPL = OPT['npl']
    PL = lambda i: f"buffer_load_dword v{BUF+i}, v0, s[8:11], s65 offen {LSC(1)}"
    for i in range(NPL-1): a(PL(i) + f"\ns_sleep {OPT['slg']}")
    a(f"K3_poll:\ns_add_u32 s64, s64, 1\ns_cmp_gt_u32 s64, {SPIN}\ns_cbranch_scc1 K3_pb")
    for i in range(NPL):
        a(PL((i+NPL-1) % NPL) + f"\ns_waitcnt vmcnt({NPL-1})\nv_cmp_gt_u32 vcc, s22, v{BUF+i}\ns_cbranch_vccz K3_pb\ns_sleep {OPT['slg']}")
    a("s_branch K3_poll\nK3_pb:")
    X = AOP+1; AR = (14, 18, 2); B1 = (22, 23, T1)
    a(f"K3_px:\ns_mov_b64 exec, -1\nv_lshlrev_b32 v{T0}, 1, v0")
    for r in range(3): a(f"s_add_u32 s{53+r}, s{66+r}, s39")
    a(f"K3_pA:\nv_lshlrev_b32 v{X}, 2, v0")
    for r in range(3): a(f"buffer_load_dwordx4 v[{AR[r]}:{AR[r]+3}], v{X}, s[8:11], s{53+r} offen {LSC(2)}")
    a("K3_pB:")
    for r in range(3): a(f"buffer_load_dwordx2 v[{8+2*r}:{9+2*r}], v{T0}, s[8:11], s{53+r} offen offset:1024 {LSC(2)}")
    a("s_cmp_eq_u32 s21, 7\ns_cbranch_scc0 K3_p6")
    for r in range(3): a(f"buffer_load_dword v{B1[r]}, v0, s[8:11], s{53+r} offen offset:1536 {LSC(2)}")
    a("K3_p6:")
    if OPT['px']:
        def chk(rs, first=True):
            for i, r in enumerate(rs): a(f"v_xor_b32 v{X}, s62, v{r}" if (first and i == 0) else f"v_bitop3_b32 v{X}, v{X}, v{r}, s62 bitop3:0xf6")
        a("s_cmp_eq_u32 s35, 2\ns_cbranch_scc1 K3_pD\ns_waitcnt vmcnt(0)\ns_cmp_eq_u32 s35, 1\ns_cbranch_scc1 K3_pC")
        chk(list(range(14, 22)) + [2, 3, 4, 5])
        a(f"v_and_b32 v{X}, 1, v{X}\nv_cmp_ne_u32 vcc, 0, v{X}\ns_cbranch_vccz K3_pE\ns_add_u32 s64, s64, 1\ns_cmp_gt_u32 s64, {SPIN}\ns_cbranch_scc1 K3_pD\ns_sleep {OPT['slp']}\ns_branch K3_pA\nK3_pE:\ns_mov_b32 s35, 1\nK3_pC:")
        chk(range(8, 14)); a("s_cmp_eq_u32 s21, 7\ns_cbranch_scc0 K3_p7"); chk(B1, False); a("K3_p7:")
        a(f"v_and_b32 v{X}, 1, v{X}\nv_cmp_ne_u32 vcc, 0, v{X}\ns_cbranch_vccz K3_pD\ns_add_u32 s64, s64, 1\ns_cmp_gt_u32 s64, {SPIN}\ns_cbranch_scc1 K3_pD\ns_sleep {OPT['slp']}\ns_branch K3_pB")
    a("K3_pD:"); a.st(10 if False else 7)
    a(f"s_lshl_b32 s52, s22, 4\nv_mov_b32 v{T0}, {L3_CNT}\ns_mov_b64 exec, 1\nK3_aw:\nds_read_b32 v{X}, v{T0}\ns_waitcnt lgkmcnt(0)\nv_readfirstlane_b32 s53, v{X}\ns_cmp_ge_u32 s53, s52\ns_cbranch_scc1 K3_ad\ns_add_u32 s64, s64, 1\ns_cmp_gt_u32 s64, {SPIN}\ns_cbranch_scc1 K3_ad\ns_sleep {OPT['sll']}\ns_branch K3_aw\nK3_ad:\ns_mov_b64 exec, -1"); a.st(6)
    a("s_mov_b32 m0, s60")
    for i in range(6): a(f"ds_write_addtid_b32 v{GK+i} offset:{TB+i*256}")
    a(f"s_cmp_eq_u32 s21, 7\ns_cbranch_scc0 K3_w6\nds_write_addtid_b32 v{GK+6} offset:{TB+1536}\ns_waitcnt vmcnt(0)")
    for r in range(3): a(f"s_mov_b32 m0, s{66+r}\nds_write_addtid_b32 v{B1[r]} offset:{TB+1536}")
    a("K3_w6:")
    for r in range(3):
        a(f"s_mov_b32 m0, s{66+r}\ns_waitcnt vmcnt({5-r})")
        for i in range(4): a(f"ds_write_addtid_b32 v{AR[r]+i} offset:{TB+i*256}")
    for r in range(3):
        a(f"s_mov_b32 m0, s{66+r}\ns_waitcnt vmcnt({2-r})")
        for i in range(2): a(f"ds_write_addtid_b32 v{8+2*r+i} offset:{TB+1024+i*256}")
    a(f"v_mov_b32 v{X}, v{AOP}")
    for i in range(4): a(f"v_mov_b32 v{ACC+i}, 0")
    a(f"s_add_u32 s22, s22, 1\ns_waitcnt vmcnt(0) lgkmcnt(0)"); a.st(8); a("s_barrier"); a.st(9)
    a("s_branch K3_hop")
    a("K3_fin:")
    a("s_mov_b32 s38, s61"); tok(0); tok(1); tok(2); a.st_out(2, 8, 's19', 10)
    a("K3_end:\ns_endpgm")
    a.end(name, 128, 102)

import sched
L4_E = 131072; L4_SCR = L4_E + 8192; L4_SIZE = L4_SCR + 4096
TK = 16; QQ = 48; AL = 64; TA = 76; WF = 80; NWF = 2; IB = 88; SV = (100, 101); AC = 104; PK = 136; SS = 152; ZS = 160; ZD = 164; OO = 168; CT = 232; VM = 238; PA = 240; RL = 244; EA = (248, 96); PM = (252, 254)
EPS = f2u(1e-5); I128 = f2u(1/128.); LOG2E = f2u(math.log2(math.e))
def k4(a):
    assert OPT['sel'] and not OPT['fin']
    global VM
    if OPT['sel']: VM = 10
    name = 'att_kernel'
    a.launch(name, 256, 256, L4_SIZE)
    a.begin(name)
    W8 = sched.Waits(); sched.VMEM_LAT = OPT['vl']; sched.STRETCH = OPT['str']/100; sched.QLAT = OPT['ql']; sched.TH = OPT['th']; sched.EDF = OPT['edf']
    L = []
    def o(text, R=(), W=(), rr=(), pri=0):
        for t in text.split('\n'):
            x = sched.Op(t, R, W, pri); x.r |= {('v', r) for r in rr}; L.append(x)
    def flush(do_sched):
        ops = sched.schedule(L, True) if do_sched else list(L)
        for t in W8.emit(ops): a(t)
        L.clear()
    a("s_cmp_ge_u32 s2, 256\ns_cbranch_scc1 K4_end")
    a.st_init()
    a("s_load_dwordx2 s[4:5], s[0:1], 88\ns_load_dwordx2 s[6:7], s[0:1], 72")
    a("v_lshrrev_b32 v4, 6, v0\nv_and_b32 v0, 63, v0\nv_readfirstlane_b32 s19, v4\nv_lshlrev_b32 v2, 4, v0")
    a("v_lshrrev_b32 v5, 3, v0\nv_and_b32 v6, 7, v0\nv_xor_b32 v6, v6, v5\ns_lshl_b32 s3, s19, 1\nv_xor_b32 v6, s3, v6\nv_lshlrev_b32 v6, 4, v6\nv_lshl_add_u32 v103, v5, 7, v6\nv_xor_b32 v12, 16, v103")
    a("s_mul_i32 s20, s2, 3\ns_lshl_b32 s44, s19, 14")
    a(f"v_lshrrev_b32 v5, 5, v0\nv_bfe_u32 v6, v0, 3, 1\nv_xor_b32 v6, v6, v5\nv_lshlrev_b32 v3, 3, v5\nv_lshl_add_u32 v102, v6, 2, v3\nv_add_u32 v102, {WS_SINV-WS_PERM}, v102")
    if OPT['fin']: a("v_and_b32 v3, 3, v0\nv_lshlrev_b32 v3, 2, v3")
    a("s_waitcnt lgkmcnt(0)")
    a.srd(8, 4, WS_SIZE); a.srd(12, 6, N*256)
    a(f"s_mov_b32 s3, {WS_WFR+WFR_SW}\ns_buffer_load_dword s24, s[8:11], s3")
    QS = lambda g: 52 + g
    def tdma(t, R=()):
        b = t & 1
        o(f"s_mul_i32 s21, s{60+t}, {TOS}\ns_add_u32 s21, s21, s44\ns_add_u32 s21, s21, {WS_TOK}")
        for x in range(0 if (t > 0 and OPT['exp'] & 64) else 4):
            if x: o("s_add_u32 s21, s21, 4096")
            o(f"s_add_u32 m0, s44, {b*65536 + 4096*x}")
            for y in range(4): o(f"buffer_load_dwordx4 {'v103' if x < 2 else 'v12'}, s[8:11], s21 offen offset:{y*1024}{NT(1)} lds", W=[f'dma{t}_{x}{y}', 'q'], R=R, pri=OPT['dp'])
    DM = lambda t: [f'dma{t}_{x}{y}' for x in range(4) for y in range(4)]
    def small(g):
        o(f"s_lshl_b32 s23, s{QS(g)}, 4\ns_add_u32 s23, s23, {WS_PERM}" + ("\ns_add_u32 s23, s23, s59" if g == 6 else ""))
        o(f"buffer_load_dword v{SV[g&1]}, v102, s[8:11], s23 offen", pri=2000)
        o(f"buffer_load_dword v{PM[g&1]}, v3, s[8:11], s23 offen" if OPT['fin'] else f"buffer_load_dwordx2 v[{PM[g&1]}:{PM[g&1]+1}], v3, s[8:11], s23 offen", pri=2000)
    def wdma(lo, hi, tag):
        for i in range(lo, hi):
            o(f"s_add_u32 m0, s25, {4096*i}\ns_add_u32 s27, s26, {4096*i}"); o("buffer_load_dwordx4 v2, s[8:11], s27 offen lds", W=[tag + str(i), 'q'])
    for t in range(3): a(f"s_add_u32 s{60+t}, s20, {t}")
    for g in range(6): a(f"s_lshl_b32 s3, s{60+g//2}, 3\ns_add_u32 s3, s3, s19\ns_add_u32 s{QS(g)}, s3, {4*(g&1)}")
    a(f"s_lshr_b32 s58, s2, 1\ns_add_u32 s58, s58, 6144\ns_lshr_b32 s63, s58, 3\ns_and_b32 s3, s2, 3\ns_cmp_eq_u32 s19, s3\ns_cselect_b32 s31, 1, 0")
    a("s_xor_b32 s49, s58, s19\ns_and_b32 s49, s49, 7\ns_lshl_b32 s49, s49, 4\ns_and_b32 s59, s2, 1\ns_lshl_b32 s59, s59, 2\ns_or_b32 s49, s49, s59")
    a(f"s_lshl_b32 s25, s19, 10\ns_add_u32 s26, s25, {WS_WFR}\ns_add_u32 s25, s25, 0x10000")
    WO_ = [16, 2, 3, 4, 5, 6, 7]; np_ = OPT['npre']
    wdma(0, 2, 'w'); tdma(0); small(0)
    for i in WO_[:np_]: wdma(i, i+1, 'w')
    flush(False)
    a("v_and_b32 v4, 7, v0\nv_lshrrev_b32 v7, 4, v0\nv_xor_b32 v1, v4, v7\nv_xor_b32 v1, s19, v1\nv_lshlrev_b32 v1, 4, v1\nv_lshl_add_u32 v1, v4, 13, v1\nv_lshl_add_u32 v1, v7, 7, v1\nv_and_or_b32 v1, v0, 8, v1")
    a(f"v_cmp_eq_u32 vcc, 0, v6\nv_subrev_u32 v238, 1, v6")
    a("v_and_b32 v8, 1, v0\nv_lshlrev_b32 v8, 4, v8\nv_mov_b32 v9, 0x3f80\nv_lshlrev_b32 v9, v8, v9\nv_bfe_u32 v8, v0, 1, 1\nv_bfe_u32 v10, v0, 3, 1\nv_bfe_u32 v11, v0, 2, 1")
    for y in range(2):
        a(f"v_xor_b32 v13, {y}, v10\nv_lshl_or_b32 v13, v13, 1, v8\nv_or_b32 v14, {2*y}, v11\nv_cmp_eq_u32 s[40:41], v14, v7\nv_cndmask_b32 v14, 0, v9, s[40:41]")
        for d in range(4): a(f"v_cmp_eq_u32 s[40:41], {d}, v13\nv_cndmask_b32 v{IB+4*y+d}, 0, v14, s[40:41]")
    a(f"s_lshl_b32 s25, s19, 10\ns_add_u32 s25, s25, {L4_SCR}")
    a("v_lshl_add_u32 v9, v7, 4, s25\nv_lshl_add_u32 v8, v6, 6, v9")
    a("v_lshl_add_u32 v4, v4, 2, s25\nv_lshl_add_u32 v4, v5, 5, v4\nv_lshl_add_u32 v4, v6, 6, v4")
    if OPT['gram']:
        a("v_and_b32 v11, 3, v0\nv_cmp_eq_u32 s[32:33], 1, v11\nv_cmp_eq_u32 s[34:35], 2, v11\nv_cmp_eq_u32 s[36:37], 3, v11\nv_bfe_u32 v11, v0, 2, 2\nv_cmp_eq_u32 s[38:39], v11, v7")
    if OPT['sel']:
        a("v_and_b32 v11, 3, v0\nv_cmp_eq_u32 s[40:41], v11, v7\nv_mov_b32 v13, 0x3f80\nv_cndmask_b32 v13, 0, v13, s[40:41]\nv_bfe_u32 v11, v0, 3, 1\nv_bfe_u32 v14, v0, 2, 1\nv_lshl_or_b32 v11, v14, 1, v11")
        for d in range(4): a(f"v_cmp_eq_u32 s[40:41], {d}, v11\nv_cndmask_b32 v{CT+d}, 0, v13, s[40:41]\nv_lshlrev_b32 v{CT+4+d}, 16, v{CT+d}")
        a("v_and_b32 v11, 1, v7\nv_and_b32 v13, 15, v0\nv_subrev_u32 v10, 1, v6")
    if OPT['fin']:
        a("v_and_b32 v14, 15, v0\nv_lshlrev_b32 v2, 1, v5\nv_cmp_eq_u32 s[42:43], v14, v2\nv_or_b32 v2, 1, v2\nv_cmp_eq_u32 s[50:51], v14, v2\nv_lshlrev_b32 v2, 4, v0")
    if not OPT['sel']: a("v_and_b32 v11, 1, v7\nv_and_b32 v10, 7, v0\nv_lshlrev_b32 v13, 2, v11\nv_xor_b32 v10, v10, v13\nv_xor_b32 v10, s19, v10\nv_lshlrev_b32 v10, 4, v10\nv_and_b32 v13, 15, v0\nv_lshl_add_u32 v10, v13, 7, v10\nv_lshl_add_u32 v10, v11, 15, v10\nv_add_u32 v10, v10, v3")
    if OPT['fin']: a("v_lshlrev_b32 v7, 4, v7\nv_cmp_lt_u32 s[40:41], 3, v13\nv_bfrev_b32 v11, 1\nv_cndmask_b32 v11, 0, v11, s[40:41]\nv_or_b32 v7, v7, v11")
    else: a("v_lshlrev_b32 v7, 2, v13\nv_lshl_add_u32 v7, v11, 7, v7")
    a(f"v_add_u32 v15, {L4_E}, v2\ns_mov_b32 s48, 0xffff0000\nv_add_u32 v0, 0x10000, v2")
    a(f"s_mov_b32 s28, {I128}\ns_mov_b32 s29, {EPS}\ns_mov_b32 s30, {LOG2E}")
    a("s_waitcnt lgkmcnt(0)")
    a.st(1)
    for t in W8.drain(DM(0)): a(t)
    a.st(2); a("s_barrier"); a.st(3)
    if OPT['exp'] & 4096: a("s_cmp_ge_u32 s19, 1\ns_cbranch_scc1 K4_fin")
    ring = [0]
    ROR = f"row_ror:8 {DPPF}"
    CLAST = [] if OPT['sel'] else [OO+32+28+3, OO+32+28+2, OO+32+28+1]
    def group(g, last):
        T = lambda j, s: f"v[{TK+16*j+4*s}:{TK+16*j+4*s+3}]"
        R4 = lambda b: f"v[{b}:{b+3}]"
        sv = SV[g & 1]; pm = PM[g & 1]; t = g >> 1; LB = [f'tile{t}']; xa = (t & 1)*65536 + (64 if g & 1 else 0)
        JS = (0,) if g == 6 else (0, 1)
        def W(f):
            r = 4*f
            if g == 0:
                if f == 32: o("s_barrier", R=[f'w{i}' for i in range(8, 16)], W=['wb', 'bar'])
                o(f"ds_read_b128 a[{r}:{r+3}], v0 offset:{f*1024}", R=['wb'] if f >= 32 else ['wa'] if f >= 8 else [])
                if f == 63:
                    o("s_barrier", W=['wfree', 'bar']); L[-1].r |= {('a', x) for x in range(256)}
                    tdma(1, ['wfree'])
            return f"a[{r}:{r+3}]"
        if g in (2, 4):
            o("s_barrier", R=DM(t), W=LB + ['bar'], rr=CLAST + list(range(TK, TK+32)))
            tdma(t+1, LB)
        if g == 6: o("v_xor_b32 v1, s49, v1" + ("" if OPT['sel'] else "\nv_xor_b32 v10, s49, v10")); xa = 65536
        for x in range(2*len(JS)): o(f"v_xor_b32 v{TA+x}, {xa ^ ((x & 1)*576) ^ ((x >> 1)*4)}, v1")
        for s_ in range(4):
            for j in JS:
                for b in range(2): o(f"ds_read2st64_b32 v[{TK+16*j+4*s_+2*b}:{TK+16*j+4*s_+2*b+1}], v{TA+2*j+b} offset0:{8*s_} offset1:{8*s_+4}", R=LB)
        if g < last: small(g+1)
        o(f"v_lshl_add_u32 v{pm}, v{pm}, 8, v7" + ("" if OPT['fin'] else f"\nv_lshl_add_u32 v{pm+1}, v{pm+1}, 8, v7"))
        acc = lambda p, j, hh: AC + 16*(p & 1) + 8*j + 4*hh
        def chains(p):
            for hh in range(2):
                for s_ in range(4):
                    w = W(8*p + 4*hh + s_)
                    for j in JS:
                        c = R4(acc(p, j, hh)); ab = f"{w}, {T(j, s_)}" if p < 4 else f"{T(j, s_)}, {w}"
                        o(f"v_mfma_f32_16x16x32_bf16 {c}, {ab}, {'0' if s_ == 0 else c}")
        def pack(p):
            for j in JS:
                for d in range(4): o(f"v_cvt_pk_bf16_f32 v{PK+8*(p&1)+4*j+d}, v{acc(p, j, 0)+2*d}, v{acc(p, j, 0)+2*d+1}")
        def smf(p):
            for j in JS: o(f"v_mfma_f32_16x16x32_bf16 {R4(SS+4*j)}, {R4(PK+8*(p&1)+4*j)}, {T(j, p)}, {'0' if p == 0 else R4(SS+4*j)}")
        O = lambda j, J: OO + 32*j + 4*J
        def cinit():
            if OPT['sel']: return
            for r in range(4): o(f"v_xor_b32 v{TA+r}, {xa ^ (r*8192 + r*16)}, v10")
            for B in range(4):
                for r in range(4):
                    c = CT + 2*((4*B + r) % 3)
                    o(f"ds_read_b64 v[{c}:{c+1}], v{TA+r} offset:{B*2048}", R=LB)
                    for j in JS: o(f"v_lshlrev_b32 v{O(j, 2*B)+r}, 16, v{c+j}\nv_and_b32 v{O(j, 2*B+1)+r}, s48, v{c+j}")
        def pz(B):
            for j in JS:
                for hh in range(2):
                    z = PK + 8*(B & 1) + 4*j + 2*hh
                    o(f"v_mfma_f32_16x16x16_bf16 {R4(O(j, 2*B+hh))}, v[{PA+2*j}:{PA+2*j+1}], v[{z}:{z+1}], {R4(O(j, 2*B+hh))}")
        def sel(B):
            if not OPT['sel']: return
            for j in JS:
                for hh in range(2): o(f"v_mfma_f32_16x16x32_bf16 {R4(O(j, 2*B+hh))}, {T(j, B)}, {R4(CT+4*hh)}, 0")
        def sq(B):
            for j in JS:
                for hh in range(2):
                    for r in range(4):
                        x = O(j, 2*B+hh)+r
                        o(f"v_mul_f32 v{QQ+4*j+r}, v{x}, v{x}" if B == 0 and hh == 0 else f"v_fmac_f32 v{QQ+4*j+r}, v{x}, v{x}")
            if OPT['fin']:
                for hh in range(2):
                    for d in range(4): x = O(d >> 1, 2*B+hh) + 2*(d & 1); o(f"v_cvt_pk_bf16_f32 v{O(0, 2*B+hh)+d}, v{x}, v{x+1}")
        chains(0)
        D = AC + 16
        if OPT['gram']:
            for s_ in range(4):
                for j in JS: o(f"v_mfma_f32_16x16x32_bf16 {R4(D+4*j)}, {T(j, s_)}, {T(j, s_)}, {'0' if s_ == 0 else R4(D+4*j)}")
        for u in range(0 if OPT['gram'] else 16*len(JS)): d = D + 2*(u >> 4) + (u & 1); o(f"v_dot2_f32_bf16 v{d}, v{TK+u}, v{TK+u}, {'0' if (u & 15) < 2 else f'v{d}'}")
        if g == 0: o("s_barrier", R=[f'w{i}' for i in WO_], W=['wa', 'bar'], rr=[AC+12, D, D+1, D+2, D+3])
        for s_ in range(4):
            r = WF + 4*(ring[0] % NWF); ring[0] += 1
            o(f"ds_read_b128 {R4(r)}, v15 offset:{s_*1024}", R=['wa'])
            for j in JS: o(f"v_mfma_f32_16x16x32_bf16 {R4(EA[j])}, {R4(r)}, {T(j, s_)}, {'0' if s_ == 0 else R4(EA[j])}")
        E = EA[0]
        for r in range(4): o(f"v_cndmask_b32_dpp v{E+r}, v{EA[1]+r}, v{E+r}, vcc {ROR}")
        if OPT['gram']:
            for j in JS:
                x = D+4*j
                for r in range(1, 4): o(f"v_cndmask_b32 v{x}, v{x}, v{x+r}, s[{30+2*r}:{31+2*r}]")
            o(f"v_cndmask_b32 v11, 0, v{D}, s[38:39]\nv_cndmask_b32 v2, 0, v{D}, s[38:39]\nv_cndmask_b32 v{D+2}, 0, v{D+4}, s[38:39]")
        else: o(f"v_add_f32 v11, v{D}, v{D+1}\nv_add_f32 v{D+2}, v{D+2}, v{D+3}\nv_mov_b32 v2, v11")
        o(f"v_mov_b32_dpp v11, v{D+2} row_ror:8 row_mask:0xf bank_mask:0xc\nv_mov_b32_dpp v2, v{D+2} row_ror:8 row_mask:0xf bank_mask:0x3")
        o(f"v_permlane32_swap_b32 v11, v2\nv_add_f32 v11, v11, v2\nv_mov_b32 v2, v11\nv_permlane16_swap_b32 v11, v2\nv_add_f32 v11, v11, v2\nv_mul_f32 v2, s28, v{E}\nv_mul_f32 v2, v2, v2\nv_fma_f32 v11, v11, s28, -v2")
        o(f"v_mul_f32 v2, v{sv}, v{sv}\nv_max_f32 v11, 0, v11\nv_fma_f32 v11, v11, v2, s29\nv_rsq_f32 v11, v11\nv_mul_f32 v11, v11, v{sv}")
        o("ds_write_b32 v4, v11", W=['sa']); o(f"ds_write_b32 v4, v{E+2} offset:128\nds_write_b32 v4, v{E+3} offset:256", W=['sb'])
        o(f"ds_read_b128 {R4(RL)}, v8", R=['sa'])
        o(f"ds_read_b128 {R4(ZS)}, v8 offset:128\nds_read_b128 {R4(ZD)}, v8 offset:256", R=['sb'])
        cinit()
        pack(0); smf(0)
        for p in range(1, 4): chains(p); pack(p); smf(p)
        chains(4); pack(4); sel(0); sel(1); chains(5); pack(5); sel(2); sel(3)
        X = SS
        for r in range(4): o(f"v_cndmask_b32_dpp v{X+r}, v{SS+4+r}, v{X+r}, vcc {ROR}")
        for r in range(4): o(f"v_mul_f32 v{X+r}, v{X+r}, v{RL+r}")
        t0, t1 = X+4, X+5
        o(f"v_max3_f32 v{t0}, v{X}, v{X+1}, v{X+2}\nv_max_f32 v{t0}, v{t0}, v{X+3}\nv_mov_b32 v{t1}, v{t0}\nv_permlane16_swap_b32 v{t0}, v{t1}\nv_max_f32 v{t0}, v{t0}, v{t1}\nv_mul_f32 v{t0}, v{t0}, v11")
        for r in range(4): o(f"v_fma_f32 v{X+r}, v{X+r}, v11, -v{t0}")
        for r in range(4): o(f"v_exp_f32 v{X+r}, v{X+r}")
        o(f"v_add_f32 v{t0}, v{X}, v{X+1}\nv_add_f32 v{t1}, v{X+2}, v{X+3}\nv_add_f32 v{t0}, v{t0}, v{t1}\nv_mov_b32 v{t1}, v{t0}\nv_permlane16_swap_b32 v{t0}, v{t1}\nv_add_f32 v{t0}, v{t0}, v{t1}\nv_mul_f32 v{t0}, v{t0}, v{sv}\nv_rcp_f32 v{t0}, v{t0}")
        for r in range(4): o(f"v_mul_f32 v{X+r}, v{X+r}, v{RL+r}")
        for r in range(4): o(f"v_mul_f32 v{X+r}, v{X+r}, v{t0}")
        o(f"v_cvt_pk_bf16_f32 v{X+6}, v{X}, v{X+1}\nv_cvt_pk_bf16_f32 v{X+7}, v{X+2}, v{X+3}")
        for d in range(2): o(f"v_and_b32 v{PA+d}, v{X+6+d}, v{VM}" + ("" if g == 6 else f"\nv_and_b32_dpp v{PA+2+d}, v{X+6+d}, v{VM} {ROR}"))
        o(f"v_mul_f32 v13, v{X}, v{ZS}\nv_mul_f32 v14, v{X}, v{ZD}")
        for r in range(1, 4): o(f"v_fmac_f32 v13, v{X+r}, v{ZS+r}\nv_fmac_f32 v14, v{X+r}, v{ZD+r}")
        o(f"v_permlane16_swap_b32 v13, v14\nv_add_f32 v13, v13, v14\nv_mov_b32 v14, v13\nv_permlane16_swap_b32 v13, v14\nv_add_f32 v13, v13, v{E}\nv_add_f32 v14, v14, v{E+1}")
        pz(0); sq(0)
        chains(6); pz(1); sq(1); pack(6)
        chains(7); pz(2); sq(2); pack(7)
        pz(3); sq(3)
        for d in range(4): o(f"v_cvt_pk_bf16_f32 v{AL+d}, v{QQ+2*d}, v{QQ+2*d+1}" if d < 2*len(JS) else f"v_mov_b32 v{AL+d}, 0")
        for y in range(2):
            x = AL+4+4*y
            o(f"v_mfma_f32_16x16x32_bf16 {R4(x)}, {R4(AL)}, {R4(IB+4*y)}, 0", pri=-OPT['lq'])
            o(f"v_add_f32 v{x}, v{x}, v{x+1}\nv_add_f32 v{x+2}, v{x+2}, v{x+3}\nv_add_f32 v{x}, v{x}, v{x+2}")
        o(f"v_permlane32_swap_b32 v{AL+4}, v{AL+8}\nv_add_f32 v5, v{AL+4}, v{AL+8}\nv_mov_b32 v{AL+8}, v5\nv_permlane16_swap_b32 v5, v{AL+8}\nv_add_f32 v5, v5, v{AL+8}")
        o(f"v_mul_f32 v13, s28, v13\nv_fma_f32 v14, -v13, s24, v14\nv_mul_f32 v13, v13, v13\nv_mul_f32 v14, s30, v14\nv_mul_f32 v6, v{sv}, v{sv}\nv_mul_f32 v14, v14, v{sv}")
        o("v_fma_f32 v5, v5, s28, -v13\nv_max_f32 v5, 0, v5\nv_fma_f32 v5, v5, v6, s29\nv_rsq_f32 v5, v5\nv_mul_f32 v5, v5, v14")
        o(f"v_max_f32_dpp v6, v5, v5 quad_perm:[1,0,3,2] {DPPF}\nv_max_f32_dpp v6, v6, v6 quad_perm:[2,3,0,1] {DPPF}\nv_max_f32_dpp v6, v6, v6 row_half_mirror {DPPF}")
        o("v_sub_f32 v5, v5, v6\nv_exp_f32 v5, v5")
        o(f"v_add_f32_dpp v6, v5, v5 quad_perm:[1,0,3,2] {DPPF}\nv_add_f32_dpp v6, v6, v6 quad_perm:[2,3,0,1] {DPPF}\nv_add_f32_dpp v6, v6, v6 row_half_mirror {DPPF}")
        o(f"v_rcp_f32 v6, v6\nv_mul_f32 v5, v5, v{sv}\nv_mul_f32 v5, v5, v6")
        o("ds_write_b32 v4, v5 offset:512", W=['sd'])
        for j in JS: o(f"ds_read_b128 {R4(AL+4*j)}, v9 offset:{512+64*j}", R=['sd'])
        OSC = ('', ' nt', ' sc1', ' sc0 sc1', ' sc1 nt')[OPT['osc']]
        if OPT['fin']:
            for d in range(4): o(f"v_cvt_pk_bf16_f32 v{AL+8+d}, v{AL+2*d}, v{AL+2*d+1}\nv_cndmask_b32 v{AL+8+d}, 0, v{AL+8+d}, {'s[42:43]' if d < 2 else 's[50:51]'}")
            for B in range(4):
                for hh in range(2): o(f"v_mfma_f32_16x16x32_bf16 {R4(QQ+8*(B&1)+4*hh)}, {R4(O(0, 2*B+hh))}, {R4(AL+8)}, 0", pri=-OPT['lf'])
                x = O(1, 2*B)
                for r in range(4): o(f"v_cvt_pk_bf16_f32 v{x+r}, v{QQ+8*(B&1)+r}, v{QQ+8*(B&1)+4+r}")
                o(f"buffer_store_dwordx4 {R4(x)}, v{pm}, s[12:15], 0 offen offset:{64*B}{OSC}")
        for j in JS:
            for J in (0, 4, 1, 5, 2, 6, 3, 7):
                x = QQ + 8*j + J
                o(f"v_mul_f32 v{x}, v{AL+4*j}, v{O(j, J)}")
                for r in range(1, 4): o(f"v_fmac_f32 v{x}, v{AL+4*j+r}, v{O(j, J)+r}")
                if J >= 4:
                    o(f"v_permlane16_swap_b32 v{x-4}, v{x}\nv_add_f32 v{x-4}, v{x-4}, v{x}")
                    if J & 1: o(f"v_cvt_pk_bf16_f32 v{x}, v{x-5}, v{x-4}\nbuffer_store_dword v{x}, v{pm+j}, s[12:15], 0 offen offset:{64*((J-4)>>1)}{('', ' nt', ' sc1', ' sc0 sc1', ' sc1 nt')[OPT['osc']]}")
    a(f"s_lshl_b32 s25, s19, 10\ns_add_u32 s25, s25, 0x10000")
    for i in WO_[np_:]:
        wdma(i, i+1, 'w'); L[-1].w.discard(('p', 'q')); L[-1].bias = L[-2].bias = L[-3].bias = 5000
    wdma(8, 16, 'w')
    for g in range(6): group(g, 6)
    n6 = len(L)
    o("s_barrier", R=DM(3), W=['tile3', 'bar'], rr=CLAST + list(range(TK, TK+32)))
    group(6, 6)
    for x in L[n6:]: x.extra = True
    for x in L[n6+1:]: x.r.add(('p', 'tile3'))
    ops = sched.schedule(L, True); L.clear()
    cut = min(i for i, x in enumerate(ops) if getattr(x, 'extra', False))
    nb = 3
    for t in W8.emit(ops[:cut+1]):
        if t == 's_barrier' and OPT['stamp'] in (1, 2): a.st(nb); a(t); a.st(13); nb += 1
        else: a(t)
    a("s_cmp_eq_u32 s31, 0\ns_cbranch_scc0 K4_x")
    import copy
    W9 = copy.deepcopy(W8)
    for t in W8.emit([x for x in ops[cut+1:] if not getattr(x, 'extra', False)]): a(t)
    a.st(9); a("s_branch K4_fin\nK4_x:")
    for t in W9.emit(ops[cut+1:]): a(t)
    a.st(10)
    a("K4_fin:"); a.st_out(3, 8, 's19', 10)
    a("K4_end:\ns_endpgm")
    a.end(name, 512, 102, 256)

def build(ks, path, pre=''):
    a = K()
    for k in ks: k(a)
    open(path, 'w').write(a.text(pre))

if __name__ == '__main__':
    for x in sys.argv[1:]:
        k, v = x.split('='); OPT[k] = int(v)
    ref = open('standalone__hybrid_graph_tf_nagphormer__graph.s.ref').read().split('\n')
    pre = '\n'.join(l for l in ref if l.startswith(';') and 'launch' not in l and 'grid=' not in l) + '\n'
    build([k1, k3, k4], 'stage.s', pre)
```

```python
import sys, math, struct
from asmlib import Asm
import hazard

N = 25000; NP = 25088; E = 400000; WIN = 128; NWIN = 196; NLEV = 392; QLEV = 98; QN = 6272
NCH = 250; CH = 1600
ZB = 195*128
WS_FLAGS = 0xC0000; FGS = 17*128; WS_NEWID = 0x10000; WS_PERM = 0x20000; WS_DISP = 0x40000; WS_TQ = 0x60000; WS_LOC = 0x64000; WS_IRR = 0x78000; WS_SINV = 0xA0000; WS_PM = 0x3D00000; WS_WDN = 0xE4000
WS_WFR = 0x80000; WS_PART = 0x100000; WS_PARTB = 0x440000; WS_IDX = 0x780000; WS_G = 0xB00000; RS = 57344; WS_TOK = 0x3E00000
GS = NP*4
TOS = 65536 + 128
PWS = 16384 + 128
KS = NP*256
WS_SIZE = 0x10000000
WFR_E = 65536; WFR_SW = 73728
SD = "dst_sel:DWORD dst_unused:UNUSED_PAD src0_sel:DWORD"
DPPF = "row_mask:0xf bank_mask:0xf"
SLACK = 2
OPT = dict(stamp=0, exp=0, tal=20, tbe=0, prio=2, wprio=0, slg=2, sll=2, tok=1, tsc=2, wb=2, gprio=1, ls=1, tlb=0, wt=1, vl=1500, str=140, dp=0, ql=100, npl=1, px=0, slp=1, cpf=4, slow=0, la=2, npre=7, slw=2, isc=0, tp=0, wbw=0, wb6=0, lnt=2, pnt=0, nt=2, osc=2, frz=0, gw=3, iw=0, pw=0, xp=3, xr=3, th=0, edf=200, sel=1, gram=0, fin=0, lq=300, lf=0, fr=99, dbg=0, dg=320, dk=430)
WS_STAMP = 0x7A00000

WT = lambda b: (' sc1' if OPT['wt'] & b else '') + (' sc0' if OPT['wt'] & b and OPT['wt'] & 8 else '') + (' nt' if OPT['wt'] & (b << 4) else '')
NT = lambda b: ' nt' if OPT['nt'] & b else ''
class K(Asm):
    def __init__(self):
        super().__init__(); self.uid = 0
    def lab(self, s='L'):
        self.uid += 1; return f"{s}_{self.uid}"
    def begin(self, name):
        self.kernel(name); self.k0 = len(self.lines)
    def end(self, name, vgpr, sgpr=102, accum=None):
        body, n = hazard.fix(self.lines[self.k0:])
        self.lines[self.k0:] = body
        print(f"{name}: {len(body)} lines, {n} nop states", file=sys.stderr)
        self.kd(name, vgpr, sgpr, accum)
    def st_init(self):
        if not OPT['stamp']: return
        self("s_memrealtime s[84:85]" if OPT['stamp'] != 2 else "s_memtime s[84:85]")
        if OPT['stamp'] == 3:
            self("s_waitcnt lgkmcnt(0)\ns_mov_b32 s70, s84"); return
        for i in range(1, 14): self(f"s_mov_b32 s{70+i}, 0")
        self("s_waitcnt lgkmcnt(0)\ns_mov_b32 s70, s84\ns_mov_b32 s86, s84")
    def st(self, i):
        if not OPT['stamp'] or OPT['stamp'] == 3: return
        if OPT['stamp'] == 4:
            if i in (3, 9, 4, 7):
                l = self.lab('ST')
                if OPT['frz'] and i != 3: self(f"s_cmp_gt_u32 s22, {OPT['frz'] + (1 if i == 9 else 0)}\ns_cbranch_scc1 {l}")
                self("s_memrealtime s[84:85]")
                for k in range(71, 83): self(f"s_mov_b32 s{k}, s{k+1}")
                self("s_waitcnt lgkmcnt(0)\ns_sub_u32 s83, s84, s86\ns_mov_b32 s86, s84\n" + l + ":")
            return
        self(f"{'s_memrealtime' if OPT['stamp'] == 1 else 's_memtime'} s[84:85]\ns_waitcnt lgkmcnt(0)\ns_sub_u32 s87, s84, s86\ns_mov_b32 s86, s84\ns_add_u32 s{70+i}, s{70+i}, s87")
    def st_out(self, kid, srd, swave, vt):
        if not OPT['stamp']: return
        self(f"s_lshl_b32 s87, s2, 4\ns_add_u32 s87, s87, {swave}\ns_lshl_b32 s87, s87, 6\ns_add_u32 s87, s87, {WS_STAMP + kid*0x80000}\ns_mov_b64 exec, 1\nv_mov_b32 v{vt+1}, 0")
        if OPT['stamp'] == 3: self("s_memrealtime s[84:85]\ns_waitcnt lgkmcnt(0)\ns_mov_b32 s71, s84")
        for i in range(2 if OPT['stamp'] == 3 else 14): self(f"v_mov_b32 v{vt}, s{70+i}\nbuffer_store_dword v{vt}, v{vt+1}, s[{srd}:{srd+3}], s87 offen offset:{4*i}")
    def codepf(self, first, last, lane4, vt, sp, vd=None):
        l = self.lab('PF')
        self(f"s_getpc_b64 s[{sp}:{sp+1}]\n{l}:\ns_add_u32 s{sp}, s{sp}, {first}-{l}\ns_addc_u32 s{sp+1}, s{sp+1}, 0\nv_lshlrev_b32 v{vt}, 5, v{lane4}\ns_mov_b32 s{sp+2}, 0")
        self(f"{l}_l:\nv_cmp_gt_u32 vcc, {last}-{first}, v{vt}\ns_and_b64 exec, exec, vcc\ns_cbranch_execz {l}_e\nglobal_load_dword v{vd or vt+1}, v{vt}, s[{sp}:{sp+1}]\nv_add_u32 v{vt}, 8192, v{vt}\ns_branch {l}_l\n{l}_e:\ns_mov_b64 exec, -1")
    def scan_incl(self, v):
        for s in (1, 2, 4, 8): self(f"v_add_u32_dpp v{v}, v{v}, v{v} row_shr:{s} {DPPF} bound_ctrl:0")
        self(f"v_add_u32_dpp v{v}, v{v}, v{v} row_bcast:15 row_mask:0xa bank_mask:0xf")
        self(f"v_add_u32_dpp v{v}, v{v}, v{v} row_bcast:31 row_mask:0xc bank_mask:0xf")
    def red63(self, op, v):
        for s in (1, 2, 4, 8): self(f"{op}_dpp v{v}, v{v}, v{v} row_shr:{s} {DPPF} bound_ctrl:0")
        self(f"{op}_dpp v{v}, v{v}, v{v} row_bcast:15 row_mask:0xa bank_mask:0xf")
        self(f"{op}_dpp v{v}, v{v}, v{v} row_bcast:31 row_mask:0xc bank_mask:0xf")

SWAPS = ((0, 85), (6, 91), (12, 95))
def levelpos(a, sw, d0, d1):
    t, u = d1+1, d1+2
    a(f"s_mul_i32 s{t}, s{sw}, 1338\ns_lshr_b32 s{t}, s{t}, 16\ns_mul_i32 s{t}, s{t}, 98\ns_lshl_b32 s{d0}, s{sw}, 1\ns_sub_u32 s{u}, s{d0}, s{t}")
    a(f"s_mov_b32 s{d0}, s{u}\ns_add_u32 s{d1}, s{u}, 1")
    for x, y in SWAPS:
        a(f"s_cmp_eq_u32 s{u}, {x}\ns_cselect_b32 s{d0}, {y}, s{d0}\ns_cmp_eq_u32 s{u}, {y-1}\ns_cselect_b32 s{d1}, {x}, s{d1}")
    a(f"s_add_u32 s{d0}, s{d0}, s{t}\ns_add_u32 s{d1}, s{d1}, s{t}")
def k1(a):
    name = 'p1_kernel'
    a.launch(name, NCH + NWIN + 8, 512, 40960)
    a.begin(name)
    a(f"s_cmp_ge_u32 s2, {NCH+NWIN+8}\ns_cbranch_scc1 K1_end")
    a.st_init()
    a("s_load_dwordx4 s[4:7], s[0:1], 0\ns_load_dwordx4 s[8:11], s[0:1], 16\ns_load_dwordx2 s[14:15], s[0:1], 88")
    a("v_lshlrev_b32 v1, 2, v0\nv_mov_b32 v2, 0\nv_mov_b32 v24, 1\nv_lshrrev_b32 v3, 6, v0\nv_and_b32 v25, 63, v0\nv_readfirstlane_b32 s37, v3")
    a(f"s_cmp_ge_u32 s2, {NCH+NWIN}\ns_cbranch_scc1 K1_mm\ns_cmp_ge_u32 s2, {NCH}\ns_cbranch_scc1 K1_win")
    a(f"v_lshlrev_b32 v3, 4, v0\ns_mul_i32 s38, s2, {CH*4}\ns_waitcnt lgkmcnt(0)")
    a.srd(16, 6, E*4); a.srd(20, 8, E*4); a.srd(28, 14, WS_SIZE)
    a("s_cmp_ge_u32 s37, 7\ns_cbranch_scc1 K1_nl\nv_cmp_gt_u32 vcc, 400, v0\ns_and_saveexec_b64 s[34:35], vcc")
    a(f"buffer_load_dwordx4 v[4:7], v3, s[16:19], s38 offen{NT(2)}\nbuffer_load_dwordx4 v[8:11], v3, s[20:23], s38 offen{NT(2)}\ns_mov_b64 exec, s[34:35]\nK1_nl:")
    a(f"s_cmp_lg_u32 s2, 64\ns_cbranch_scc1 K1_noy\ns_cmp_ge_u32 s37, 4\ns_cbranch_scc1 K1_noy\ns_mov_b32 s3, {WS_WDN}\nv_lshlrev_b32 v16, 7, v0\nbuffer_store_dword v2, v16, s[28:31], s3 offen\nK1_noy:")
    a("s_cmp_ge_u32 s2, 64\ns_cbranch_scc1 K1_noz\ns_cmp_ge_u32 s37, 3\ns_cbranch_scc1 K1_noz")
    a(f"s_mul_i32 s3, s2, {FGS}\ns_add_u32 s3, s3, {WS_FLAGS}\nv_lshrrev_b32 v16, 3, v0\nv_min_u32 v16, 16, v16\nv_lshlrev_b32 v16, 7, v16\nv_and_b32 v17, 7, v0\nv_lshl_add_u32 v16, v17, 2, v16\nbuffer_store_dword v2, v16, s[28:31], s3 offen\nK1_noz:")
    if OPT['iw']:
        a(f"s_cmp_eq_u32 s37, 7\ns_cbranch_scc0 K1_niw\ns_cmp_ge_u32 s2, 192\ns_cbranch_scc1 K1_niw\ns_mul_i32 s3, s2, 21846\ns_lshr_b32 s3, s3, 16\ns_mul_i32 s40, s3, 3\ns_sub_u32 s40, s2, s40\ns_mul_i32 s3, s3, {RS}\ns_lshl_b32 s40, s40, 13\ns_add_u32 s3, s3, s40\ns_add_u32 s3, s3, {WS_IDX}")
        a("v_lshlrev_b32 v29, 7, v25\nbuffer_load_dword v29, v29, s[28:31], s3 offen\nK1_niw:")
    if OPT['cpf'] & 1:
        a("s_cmp_eq_u32 s37, 7\ns_cbranch_scc0 K1_npf\ns_cmp_lt_u32 s2, 16\ns_cbranch_scc0 K1_npf\nv_lshlrev_b32 v28, 2, v25"); a.codepf('hop_kernel', 'K3_join', 28, 30, 52); a("K1_npf:")
    a("v_mov_b32 v12, -1\nv_mov_b32 v13, -1\nv_mov_b32 v14, -1\nv_mov_b32 v15, -1\nv_mov_b32 v26, 12544\nv_mov_b32 v27, 25088")
    a("ds_write_b128 v3, v[12:15] offset:1024\nds_write_b128 v3, v[12:15] offset:9216\nds_write_b128 v3, v[12:15] offset:17408")
    a("s_cmp_ge_u32 s37, 4\ns_cbranch_scc1 K1_nc\nds_write_b32 v1, v2\ns_cmp_ge_u32 s37, 1\ns_cbranch_scc1 K1_nc\nds_write_b128 v3, v[12:15] offset:25600\nK1_nc:")
    a("s_waitcnt lgkmcnt(0)\ns_barrier")
    a("s_cmp_ge_u32 s37, 7\ns_cbranch_scc1 K1_ns\nv_cmp_gt_u32 vcc, 400, v0\ns_and_saveexec_b64 s[34:35], vcc\ns_waitcnt vmcnt(0)")
    a.st(1)
    for i in range(4):
        a(f"v_lshrrev_b32 v{12+i}, 7, v{8+i}\nv_and_b32 v16, 127, v{8+i}\nv_lshl_or_b32 v{4+i}, v16, 16, v{4+i}\nv_lshlrev_b32 v16, 2, v{12+i}\nds_add_rtn_u32 v{8+i}, v16, v24")
    for i in range(4):
        a(f"s_waitcnt lgkmcnt(3)" if i == 0 else "s_waitcnt lgkmcnt(3)")
        a(f"v_and_b32 v16, 15, v{8+i}\nv_lshlrev_b32 v16, 2, v16\nv_lshl_add_u32 v16, v{12+i}, 6, v16\nv_lshrrev_b32 v17, 4, v{8+i}\nv_mad_u32_u24 v16, v17, s39, v16".replace("s39", "v26"))
        a(f"v_cmp_gt_u32 vcc, 32, v{8+i}\nv_cndmask_b32 v16, v27, v16, vcc\nds_write_b32 v16, v{4+i} offset:1024")
    a("s_mov_b64 exec, s[34:35]\nK1_ns:\ns_waitcnt lgkmcnt(0)\ns_barrier")
    a("s_and_b32 s3, s2, 7\ns_lshl_b32 s3, s3, 5\ns_lshr_b32 s39, s2, 3\ns_add_u32 s3, s3, s39\ns_lshl_b32 s3, s3, 6")
    a(f"s_add_u32 s39, s3, {WS_PART}\ns_add_u32 s40, s3, {WS_PARTB}")
    a("v_lshrrev_b32 v16, 2, v0\nv_and_b32 v17, 3, v0\nv_lshlrev_b32 v17, 4, v17\nv_mov_b32 v18, " + str(PWS) + "\nv_mad_u32_u24 v17, v16, v18, v17\nv_and_b32 v18, 0xfffffffc, v0")
    a("ds_read_b128 v[4:7], v3 offset:1024\nds_read_b128 v[8:11], v3 offset:9216\nds_read_b32 v19, v18\nds_read_b32 v20, v18 offset:512")
    a(f"v_add_u32 v21, {128*PWS}, v17\nv_cmp_gt_u32 vcc, {784-512}, v0\ns_mov_b64 s[42:43], vcc")
    a("s_waitcnt lgkmcnt(3)\nbuffer_store_dwordx4 v[4:7], v17, s[28:31], s39 offen" + WT(2) + "\ns_waitcnt lgkmcnt(0)")
    a("v_cndmask_b32 v20, 0, v20, s[42:43]\nv_max_u32 v22, v19, v20\ns_mov_b64 exec, s[42:43]\ns_cbranch_execz K1_n2")
    a("buffer_store_dwordx4 v[8:11], v21, s[28:31], s39 offen" + WT(2) + "\nK1_n2:\ns_mov_b64 exec, -1")
    a("v_cmp_le_u32 vcc, 16, v22\ns_cbranch_vccz K1_nb")
    a(f"ds_read_b128 v[4:7], v3 offset:{1024+12544}\nds_read_b128 v[8:11], v3 offset:{1024+12544+8192}\ns_waitcnt lgkmcnt(0)")
    a("v_cmp_le_u32 vcc, 16, v19\ns_mov_b64 exec, vcc\ns_cbranch_execz K1_b1\nbuffer_store_dwordx4 v[4:7], v17, s[28:31], s40 offen\nK1_b1:\ns_mov_b64 exec, -1")
    a("v_cmp_le_u32 vcc, 16, v20\ns_mov_b64 exec, vcc\ns_cbranch_execz K1_b2\nbuffer_store_dwordx4 v[8:11], v21, s[28:31], s40 offen\nK1_b2:\ns_mov_b64 exec, -1")
    a("K1_nb:")
    a(f"v_cmp_lt_u32 vcc, 32, v22\ns_cmp_lg_u64 vcc, 0\ns_cselect_b32 s3, 1, 0\nv_mov_b32 v4, s3\ns_lshr_b32 s39, s39, 1\ns_and_b32 s39, s39, 0x1fe0\ns_lshl_b32 s3, s37, 2\ns_add_u32 s39, s39, s3\ns_add_u32 s39, s39, {WS_IRR}")
    a("s_mov_b64 exec, 1\nbuffer_store_dword v4, v2, s[28:31], s39 offen")
    a.st(2); a.st_out(0, 28, 's37', 10); a("s_endpgm")
    B = 32768
    a("K1_win:")
    a(f"s_sub_u32 s36, s2, {NCH}\ns_lshl_b32 s38, s36, 7\ns_waitcnt lgkmcnt(0)")
    a.srd(16, 4, N*256); a.srd(24, 10, N*2); a.srd(28, 14, WS_SIZE)
    a("v_lshlrev_b32 v3, 4, v25\ns_lshl_b32 s39, s36, 15\ns_lshl_b32 s40, s37, 12\ns_add_u32 s39, s39, s40")
    a("v_add_u32 v5, s38, v0\nv_lshlrev_b32 v6, 1, v5\ns_cmp_ge_u32 s37, 2\ns_cbranch_scc1 K1_w0\nbuffer_load_ushort v4, v6, s[24:27], 0 offen" + NT(128) + "\nK1_w0:")
    for it in range(4): a(f"buffer_load_dwordx4 v[{32+4*it}:{35+4*it}], v3, s[16:19], s39 offen offset:{it*1024}{NT(2)}")
    a(f"ds_write_b32 v1, v2 offset:{B}")
    levelpos(a, 36, 44, 45)
    for d, x in ((50, 44), (53, 45)):
        a(f"s_sub_u32 s48, s{x}, s46\ns_mul_i32 s49, s48, 43\ns_lshr_b32 s49, s49, 8\ns_mul_i32 s49, s49, 6\ns_cmp_ge_u32 s48, 84\ns_cselect_b32 s49, 84, s49\ns_cmp_ge_u32 s48, 91\ns_cselect_b32 s49, 91, s49")
        a(f"s_sub_u32 s48, s48, s49\ns_cmp_ge_u32 s48, 4\ns_cselect_b32 s{d+1}, 1, 2\ns_cselect_b32 s{d+2}, 4, 0\ns_cmp_eq_u32 s48, 6\ns_cselect_b32 s{d+1}, 0, s{d+1}\ns_cselect_b32 s{d+2}, 6, s{d+2}")
        a(f"s_sub_u32 s48, s48, s{d+2}\ns_sub_u32 s{d}, s{x}, s48\ns_lshl_b32 s{d}, s{d}, 6\ns_add_u32 s{d}, s{d}, s48")
    a("s_lshl_b32 s44, s44, 6\ns_lshl_b32 s45, s45, 6\ns_sub_u32 s45, s45, 64\ns_waitcnt lgkmcnt(0)\ns_barrier\ns_cmp_ge_u32 s37, 2\ns_cbranch_scc1 K1_w1\ns_waitcnt vmcnt(4)"); a.st(4)
    a("v_lshlrev_b32 v4, 16, v4\nv_mov_b32 v23, 0x2b800000\nv_cmp_eq_f32 vcc, 0, v4\nv_cndmask_b32 v4, v4, v23, vcc\nv_mul_f32 v7, v4, v4\nv_rcp_f32 v7, v7\nv_rndne_f32 v7, v7\nv_cvt_u32_f32 v7, v7\nv_med3_u32 v7, v7, 1, 63")
    a(f"v_cmp_gt_u32 vcc, {N}, v5\nv_cndmask_b32 v7, 0, v7, vcc\nv_lshlrev_b32 v7, 2, v7\nds_add_rtn_u32 v8, v7, v24 offset:{B}\ns_waitcnt lgkmcnt(0)\nK1_w1:\ns_barrier")
    a("s_cmp_ge_u32 s37, 2\ns_cbranch_scc1 K1_w2")
    a(f"v_lshlrev_b32 v9, 2, v25\nds_read_b32 v20, v9 offset:{B}\ns_waitcnt lgkmcnt(0)\nv_mov_b32 v21, v20")
    a.scan_incl(21)
    a("v_sub_u32 v21, v21, v20\nds_bpermute_b32 v21, v7, v21\ns_waitcnt lgkmcnt(0)\nv_add_u32 v8, v8, v21")
    a(f"v_lshlrev_b32 v9, 2, v8\nds_write_b32 v1, v9 offset:{B+512}\nds_write_b32 v9, v4 offset:{B+1024}\nv_lshrrev_b32 v7, 2, v7\nv_sub_u32 v7, v7, v24 clamp\nds_write_b32 v9, v7 offset:{B+1536}")
    a("v_mov_b32 v10, s44\nv_mov_b32 v11, s45\nv_cmp_gt_u32 vcc, 64, v8\nv_cndmask_b32 v10, v11, v10, vcc\nv_add_u32 v10, v10, v8\nv_lshlrev_b32 v11, 2, v10")
    a(f"s_mov_b32 s3, {WS_NEWID}\nbuffer_store_short v10, v6, s[28:31], s3 offen\ns_mov_b32 s3, {WS_LOC}\nbuffer_store_short v8, v6, s[28:31], s3 offen")
    a("v_mov_b32 v14, s50\nv_mov_b32 v15, s53\nv_cndmask_b32 v14, v15, v14, vcc\nv_mov_b32 v15, s51\nv_mov_b32 v16, s54\nv_cndmask_b32 v15, v16, v15, vcc\nv_and_b32 v16, 63, v8\nv_lshlrev_b32 v16, v15, v16\nv_add_lshl_u32 v14, v14, v16, 2")
    a(f"s_mov_b32 s3, {WS_PERM}\nbuffer_store_dword v5, v14, s[28:31], s3 offen\nv_mul_f32 v12, v4, v4\nv_rcp_f32 v13, v4\ns_mov_b32 s3, {WS_DISP}\nbuffer_store_dword v12, v11, s[28:31], s3 offen\ns_mov_b32 s3, {WS_SINV}\nbuffer_store_dword v13, v14, s[28:31], s3 offen")
    a("s_waitcnt lgkmcnt(0)\nK1_w2:\ns_barrier")
    a.st(1)
    a(f"s_cmp_ge_u32 s37, 2\ns_cbranch_scc1 K1_nt\nds_read_b32 v6, v1 offset:{B+1536}\ns_waitcnt lgkmcnt(0)\nv_mov_b32 v7, v6")
    for sft in (1, 2, 4, 8): a(f"v_max_u32_dpp v6, v6, v6 row_shr:{sft} {DPPF} bound_ctrl:0\nv_add_u32_dpp v7, v7, v7 row_shr:{sft} {DPPF} bound_ctrl:0")
    for bc, m in ((15, '0xa'), (31, '0xc')): a(f"v_max_u32_dpp v6, v6, v6 row_bcast:{bc} row_mask:{m} bank_mask:0xf\nv_add_u32_dpp v7, v7, v7 row_bcast:{bc} row_mask:{m} bank_mask:0xf")
    a("v_readlane_b32 s40, v6, 63\nv_readlane_b32 s41, v7, 63")
    a(f"s_mul_i32 s41, s41, {OPT['tal']}\ns_lshr_b32 s41, s41, 10\ns_add_u32 s41, s41, {OPT['tbe']}\ns_max_u32 s41, s41, s40\ns_add_u32 s41, s41, 3\ns_lshr_b32 s41, s41, 2\ns_min_u32 s41, s41, 16\ns_max_u32 s41, s41, 1")
    a(f"s_add_u32 s3, s45, 64\ns_cmp_eq_u32 s37, 0\ns_cselect_b32 s3, s44, s3\ns_lshr_b32 s3, s3, 4\ns_add_u32 s3, s3, {WS_TQ}\nv_mov_b32 v6, s41\ns_mov_b64 exec, 1\nbuffer_store_dword v6, v2, s[28:31], s3 offen\ns_mov_b64 exec, -1\nK1_nt:")
    a("v_lshrrev_b32 v9, 4, v25\nv_lshlrev_b32 v9, 2, v9\ns_lshl_b32 s3, s37, 6\nv_add_u32 v9, s3, v9\nv_and_b32 v12, 15, v25\nv_lshlrev_b32 v13, 4, v12\nv_lshlrev_b32 v12, 11, v12")
    for it in range(4): a(f"ds_read_b32 v{16+it}, v9 offset:{B+512+16*it}")
    a(f"v_and_b32 v14, 31, v25\nv_lshlrev_b32 v15, 4, v14\nds_read_b128 v[28:31], v15 offset:{B+1024}")
    for it in range(4):
        a(f"s_waitcnt lgkmcnt({4 if it == 0 else 4+3})" if False else "")
    a("s_waitcnt lgkmcnt(0)")
    for it in range(4):
        a(f"v_xor_b32 v{16+it}, v{16+it}, v13\nv_add_u32 v{16+it}, v{16+it}, v12")
    a("s_cmp_ge_u32 s37, 2\ns_cbranch_scc1 K1_w3\ns_waitcnt vmcnt(6)\ns_branch K1_w4\nK1_w3:\ns_waitcnt vmcnt(0)\nK1_w4:"); a.st(5)
    for it in range(4):
        for i in range(4): a(f"ds_write_b32 v{16+it}, v{32+4*it+i} offset:{i*512}")
    a("v_lshrrev_b32 v20, 5, v25\ns_lshl_b32 s3, s37, 5\nv_xor_b32 v21, s3, v15\nv_lshl_add_u32 v21, v20, 9, v21\ns_lshl_b32 s3, s37, 12\nv_add_u32 v21, s3, v21\nv_xor_b32 v22, 16, v21")
    a("v_mov_b32 v10, s44\nv_mov_b32 v11, s45\nv_cmp_gt_u32 vcc, 16, v14\nv_cndmask_b32 v10, v11, v10, vcc\nv_lshl_add_u32 v10, v14, 2, v10")
    a(f"s_mov_b32 s3, {GS}\nv_mul_lo_u32 v20, v20, s3\nv_lshl_add_u32 v10, v10, 2, v20")
    a(f"s_mul_i32 s42, s37, {8*GS}\ns_add_u32 s42, s42, {WS_G}")
    a("s_waitcnt lgkmcnt(0)\ns_barrier")
    a.st(2)
    for j in range(4): a(f"ds_read_b128 v[{32+4*j}:{35+4*j}], v{21 if j < 2 else 22} offset:{j*1024}")
    for j in range(4):
        a(f"s_waitcnt lgkmcnt({3-j})")
        for i in range(4):
            a(f"v_lshlrev_b32 v4, 16, v{32+4*j+i}\nv_and_b32 v5, 0xffff0000, v{32+4*j+i}\nv_mul_f32 v4, v{28+i}, v4\nv_mul_f32 v5, v{28+i}, v5\nv_cvt_pk_bf16_f32 v{48+4*(j&1)+i}, v4, v5")
        a(f"buffer_store_dwordx4 v[{48+4*(j&1)}:{51+4*(j&1)}], v10, s[28:31], s42 offen{WT(1)}")
        if j < 3: a(f"s_add_u32 s42, s42, {2*GS}")
    a.st(3); a.st_out(0, 28, 's37', 10); a("s_endpgm")
    a(f"K1_mm:\ns_sub_u32 s36, s2, {NCH+NWIN}\ns_lshr_b32 s34, s36, 2\ns_and_b32 s35, s36, 3\ns_load_dwordx8 s[40:47], s[0:1], 32\ns_load_dwordx2 s[48:49], s[0:1], 64\nv_lshlrev_b32 v9, 4, v25\nv_lshlrev_b32 v10, 1, v0")
    a("v_lshrrev_b32 v5, 4, v25\nv_and_b32 v6, 15, v25\nv_xor_b32 v6, v6, v5\nv_lshlrev_b32 v6, 4, v6\nv_lshl_add_u32 v6, v5, 8, v6\nv_lshlrev_b32 v8, 4, v25\nv_and_b32 v3, 31, v25\nv_lshrrev_b32 v4, 5, v25")
    a("s_waitcnt lgkmcnt(0)\ns_cmp_eq_u32 s34, 0\ns_cselect_b32 s52, s40, s44\ns_cselect_b32 s53, s41, s45\ns_cselect_b32 s54, s42, s46\ns_cselect_b32 s55, s43, s47\ns_cselect_b64 s[56:57], -1, 0")
    a.srd(20, 52, 32768); a.srd(24, 54, 32768); a.srd(28, 14, WS_SIZE); a.srd(16, 48, 256)
    a("buffer_load_ushort v10, v10, s[16:19], 0 offen")
    a("s_and_b32 s39, s37, 3\ns_lshl_b32 s39, s39, 6\nv_xor_b32 v7, s39, v6\ns_lshl_b32 s39, s37, 10\ns_mov_b32 m0, s39\ns_lshl_b32 s38, s35, 13\ns_add_u32 s38, s38, s39\nbuffer_load_dwordx4 v7, s[20:23], s38 offen" + NT(256) + " lds")
    a("s_lshl_b32 s38, s37, 12\ns_add_u32 m0, s38, 8192")
    for i in range(4): a(f"v_xor_b32 v7, {64*i}, v6\nv_cndmask_b32 v7, v8, v7, s[56:57]\nbuffer_load_dwordx4 v7, s[24:27], s38 offen offset:{1024*i}{NT(256)} lds")
    a("s_and_b32 s39, s37, 3\ns_lshr_b32 s40, s37, 2\ns_lshl_b32 s41, s40, 7")
    a("v_and_b32 v5, 15, v3\nv_xor_b32 v5, v5, v4\nv_lshlrev_b32 v5, 4, v5\nv_lshl_add_u32 v5, v3, 8, v5\nv_xor_b32 v5, s41, v5\ns_lshl_b32 s42, s39, 13\ns_add_u32 s42, s42, 8192\nv_add_u32 v7, s42, v5")
    a("s_waitcnt vmcnt(0)\ns_barrier")
    for u in range(4): a(f"v_xor_b32 v8, {32*u}, v5\nds_read_b128 v[{16+4*u}:{19+4*u}], v8")
    a("s_cmp_eq_u32 s34, 0\ns_cbranch_scc0 K1_mb")
    for u in range(4): a(f"v_xor_b32 v8, {32*u}, v7\nds_read_b128 v[{32+4*u}:{35+4*u}], v8")
    a("s_branch K1_mc\nK1_mb:")
    a("v_lshlrev_b32 v6, 11, v4\nv_lshl_add_u32 v6, v3, 1, v6\ns_lshl_b32 s42, s39, 6\ns_lshl_b32 s43, s40, 14\ns_add_u32 s42, s42, s43\ns_add_u32 s42, s42, 8192\nv_add_u32 v6, s42, v6")
    for u in range(4):
        for t in range(8): a(f"ds_read_u16 v{(48 if t&1 else 32)+4*u+t//2}, v6 offset:{(16*u+t)*256}")
    a("s_waitcnt lgkmcnt(0)")
    for i in range(16): a(f"v_lshl_or_b32 v{32+i}, v{48+i}, 16, v{32+i}")
    a("K1_mc:\ns_waitcnt lgkmcnt(0)")
    for u in range(4): a(f"v_mfma_f32_32x32x16_bf16 v[48:63], v[{16+4*u}:{19+4*u}], v[{32+4*u}:{35+4*u}], {'0' if u == 0 else 'v[48:63]'}")
    a(f"s_lshl_b32 s42, s36, 15\ns_lshl_b32 s43, s39, 13\ns_add_u32 s42, s42, s43\ns_lshl_b32 s43, s40, 12\ns_add_u32 s42, s42, s43\ns_add_u32 s42, s42, {WS_PM}")
    a(f"s_mov_b32 s3, {WS_WFR+WFR_SW+256}\nv_lshlrev_b32 v10, 16, v10\ns_cmp_lg_u32 s36, 0\ns_cbranch_scc1 K1_nw\nbuffer_store_dword v10, v1, s[28:31], s3 offen\nK1_nw:")
    for i in range(4): a(f"buffer_store_dwordx4 v[{48+4*i}:{51+4*i}], v9, s[28:31], s42 offen offset:{1024*i}")
    a.st(3); a.st_out(0, 28, 's37', 10)
    a("K1_end:\ns_endpgm")
    a.end(name, 64, 102 if OPT['stamp'] else 64)

L2_CNT = 0; L2_LU = 512; L2_BU = 1024; L2_LOC = 2048; L2_IRR = 2304; L2_O = 2560; L2_L = L2_O + 16384; TB = QN*8 + 64; L2_NEW = TB
def k2_window(a):
    Ev, NS, ND = 20, 24, 28
    MK = lambda j: f"s[{40+2*j}:{41+2*j}]"
    a(f"v_lshlrev_b32 v3, 4, v0\ns_mul_i32 s34, s2, {PWS}\ns_add_u32 s65, s34, {WS_PART}\nbuffer_load_dwordx4 v[{Ev}:{Ev+3}], v3, s[28:31], s65 offen{NT(32)}")
    a(f"v_lshlrev_b32 v4, 3, v0\ns_mov_b32 s35, {WS_IRR}\nbuffer_load_dwordx2 v[6:7], v4, s[28:31], s35 offen")
    a("v_lshlrev_b32 v5, 4, v2")
    a(f"s_lshl_b32 s34, s33, 10\ns_add_u32 s35, s34, {WS_NEWID}\ns_add_u32 s34, s34, {L2_NEW}")
    for i in range(4):
        if i == 3: a("s_cmp_lg_u32 s33, 0\ns_cbranch_scc1 K2_nd")
        a(f"s_mov_b32 m0, s34\nbuffer_load_dwordx4 v5, s[28:31], s35 offen lds")
        if i < 3: a("s_add_u32 s34, s34, 16384\ns_add_u32 s35, s35, 16384")
    a(f"s_lshl_b32 s35, s2, 8\ns_add_u32 s35, s35, {WS_LOC}\ns_mov_b32 m0, {L2_LOC}\nv_lshlrev_b32 v8, 2, v2\nbuffer_load_dword v8, s[28:31], s35 offen lds")
    a("K2_nd:")
    a("v_lshlrev_b32 v8, 2, v0\nv_mov_b32 v10, 0\ns_cmp_ge_u32 s33, 8\ns_cbranch_scc1 K2_nz\ns_and_b32 s35, s33, 6\ns_cmp_eq_u32 s35, 2\ns_cbranch_scc1 K2_nz\ns_cmp_ge_u32 s33, 2\ns_cselect_b32 s35, -1, 0\nv_mov_b32 v9, s35\nds_write_b32 v8, v9\nds_write_b32 v10, v10 offset:" + str(L2_IRR) + "\nK2_nz:")
    a("v_bfe_u32 v9, v0, 2, 5\nv_lshrrev_b32 v11, 7, v0\nv_lshl_add_u32 v9, v9, 3, v11")
    a(f"v_cmp_gt_u32 vcc, {NCH}, v9\ns_mov_b64 s[38:39], vcc\nv_mov_b32 v12, 1\nv_mov_b32 v13, 0xfc\ns_mov_b32 s64, 0\ns_mov_b32 s66, {L2_L}\ns_mov_b32 s67, 0")
    levelpos(a, 2, 60, 61)
    a("s_cmp_lt_u32 s33, 8\ns_cselect_b32 s60, s60, s61\ns_sub_u32 s61, s60, s62\ns_mul_i32 s63, s61, 43\ns_lshr_b32 s63, s63, 8\ns_cmp_ge_u32 s61, 84\ns_cselect_b32 s63, 14, s63\ns_cmp_ge_u32 s61, 91\ns_cselect_b32 s63, 15, s63")
    a("s_mul_i32 s68, s63, 6\ns_cselect_b32 s68, 91, s68\ns_sub_u32 s69, s61, s68\ns_add_u32 s68, s68, s62")
    a(f"s_lshl_b32 s68, s68, 2\ns_add_u32 s68, s68, {WS_TQ}\ns_buffer_load_dwordx8 s[48:55], s[28:31], s68")
    a(f"s_mul_i32 s62, s62, 10700\ns_lshr_b32 s62, s62, 16\ns_add_u32 s62, s62, s63\ns_mul_i32 s68, s62, {RS}\ns_add_u32 s68, s68, {WS_IDX}")
    a("s_waitcnt lgkmcnt(0)")
    a("s_mov_b32 s56, 0\ns_and_b32 s57, s48, 0xffff")
    for i in range(6): a(f"s_cmp_gt_u32 s69, {i}\ns_cselect_b32 s58, s57, 0\ns_cselect_b32 s57, s{49+i}, s57\ns_add_u32 s56, s56, s58\ns_and_b32 s57, s57, 0xffff")
    a(f"s_and_b32 s58, s33, 7\ns_cbranch_scc1 K2_nlu\ns_lshl_b32 s58, s57, 2\ns_min_u32 s58, s58, 32\ns_lshl_b64 s[58:59], -1, s58\ns_not_b32 s58, s58\nv_mov_b32 v9, s58\ns_lshl_b32 s58, s33, 5\nv_lshl_add_u32 v8, v2, 2, s58\nds_write_b32 v8, v9 offset:{L2_LU}\nK2_nlu:")
    a("s_waitcnt vmcnt(0) lgkmcnt(0)\ns_barrier"); a.st(11)
    gwarm(a)
    if OPT['tp'] == 0: tabledma(a, 5, 'c', 2)
    a("v_or_b32 v6, v6, v7\nv_cmp_ne_u32 vcc, 0, v6\ns_and_b64 vcc, vcc, s[38:39]\ns_cbranch_vccz K2_reg\nds_write_b32 v10, v12 offset:" + str(L2_IRR) + "\nK2_reg:")
    a("K2_loop:\ns_mov_b64 exec, s[38:39]")
    for j in range(4): a(f"v_cmp_ne_u32 {MK(j)}, -1, v{Ev+j}")
    for j in range(4):
        a(f"s_mov_b64 exec, {MK(j)}")
        a(f"v_lshlrev_b32_sdwa v15, 1, v{Ev+j} {SD} src1_sel:WORD_0\nv_lshrrev_b32 v16, 15, v{Ev+j}")
        a(f"ds_read_u16 v{ND+j}, v16 offset:{L2_LOC}\nds_read_u16 v{NS+j}, v15 offset:{L2_NEW}")
    a("s_waitcnt lgkmcnt(0)")
    for j in range(4):
        a(f"s_mov_b64 exec, {MK(j)}\nv_lshlrev_b32 v{ND+j}, 2, v{ND+j}\nds_add_rtn_u32 v{32+j}, v{ND+j}, v12 offset:{L2_CNT}")
        a(f"v_and_or_b32 v{36+j}, v{ND+j}, v13, s66\nv_lshrrev_b32 v16, 8, v{ND+j}\nv_lshl_add_u32 v{36+j}, v16, 13, v{36+j}")
    a("s_waitcnt lgkmcnt(0)")
    for j in range(4):
        a(f"s_mov_b64 exec, {MK(j)}")
        a(f"v_lshrrev_b32 v16, 1, v{32+j}\nv_lshl_add_u32 v15, v16, 8, v{36+j}\nv_and_b32 v16, 1, v{32+j}\nv_lshl_add_u32 v15, v16, 1, v15")
        a(f"v_cmp_gt_u32 vcc, 64, v{32+j}\ns_and_b64 exec, exec, vcc\nds_write_b16 v15, v{NS+j}")
    a(f"s_mov_b64 exec, -1\ns_cmp_lg_u32 s64, 0\ns_cbranch_scc1 K2_pa\nv_cndmask_b32 v15, 0, v12, {MK(3)}\ns_mov_b32 s64, 1")
    a(f"v_mov_b32_dpp v15, v15 quad_perm:[3,3,3,3] {DPPF}\nv_cmp_ne_u32 s[38:39], 0, v15\ns_cmp_eq_u64 s[38:39], 0\ns_cbranch_scc1 K2_pa")
    a(f"s_mov_b64 exec, s[38:39]\ns_add_u32 s65, s65, {WS_PARTB-WS_PART}\nbuffer_load_dwordx4 v[{Ev}:{Ev+3}], v3, s[28:31], s65 offen\ns_waitcnt vmcnt(0)\ns_branch K2_loop")
    a("K2_pa:\ns_waitcnt lgkmcnt(0)\ns_barrier"); a.st(12)
    if OPT['tp'] == 1: tabledma(a, 5, 'c', 2)
    a("s_mov_b32 s41, s57\ns_mov_b32 s61, s56\ns_lshr_b32 s34, s33, 3\ns_and_b32 s36, s33, 7\ns_lshl_b32 s35, s34, 8\nv_lshl_add_u32 v4, v2, 2, s35\nds_read_b32 v5, v4")
    a(f"s_lshl_b32 s37, s34, 13\ns_add_u32 s37, s37, {L2_L}\ns_lshr_b32 s46, s36, 1\ns_lshl_b32 s46, s46, 8\ns_and_b32 s47, s36, 1\ns_lshl_b32 s47, s47, 1\ns_add_u32 s46, s46, s47\ns_add_u32 s46, s46, s37\nv_lshl_add_u32 v16, v2, 2, s46")
    for t in range(4): a(f"ds_read_u16 v{20+t}, v16 offset:{t*1024}")
    a("s_lshl_b32 s42, s41, 2\ns_waitcnt lgkmcnt(4)\nv_cmp_lt_u32 vcc, s42, v5\ns_min_u32 s42, s42, 32\ns_lshl_b64 s[44:45], -1, s42\ns_not_b32 s44, s44")
    a("s_cbranch_vccz K2_ntq")
    a(f"ds_write_b32 v10, v12 offset:{L2_IRR}\nK2_ntq:")
    a("v_min_u32 v15, s42, v5\nv_subrev_u32 v15, s36, v15\nv_add_u32 v15, 7, v15\nv_lshrrev_b32 v15, 3, v15")
    a(f"s_sub_u32 s43, s42, {OPT['xr']}\ns_max_i32 s43, s43, 2\ns_bfm_b32 s45, s43, 0\ns_cmp_eq_u32 s43, 32\ns_cselect_b32 s45, -1, s45")
    a("s_lshl_b32 s46, s36, 2\nv_add_u32 v17, s46, v2\nv_and_b32 v17, 31, v17\nv_mul_u32_u24 v17, s43, v17\nv_lshrrev_b32 v17, 5, v17")
    a(f"s_lshl_b32 s46, s34, 9\ns_add_u32 s46, s46, {L2_BU}\nv_lshrrev_b32 v8, 5, v2\nv_lshlrev_b32 v8, 8, v8\nv_add_u32 v8, s46, v8")
    a(f"s_lshl_b32 s47, s34, 13\ns_add_u32 s47, s47, {L2_O}\nv_lshl_add_u32 v19, v2, 2, s47")
    a("v_mov_b32 v24, s44\nv_mov_b32 v26, -1\nv_mov_b32 v27, -1\nv_mov_b32 v41, 0x7c\ns_waitcnt lgkmcnt(0)")
    a("v_lshl_or_b32 v20, v21, 16, v20\nv_lshl_or_b32 v21, v23, 16, v22\nv_cmp_lt_u32 vcc, 0, v15")
    a("K2_rd:\ns_mov_b64 exec, vcc\ns_cbranch_execz K2_sd")
    a("v_and_b32 v28, v24, v26\nv_lshlrev_b32 v25, 2, v20\nv_and_b32 v31, s45, v28\nv_cmp_ne_u32 s[48:49], 0, v31\nv_cmp_ne_u32 s[52:53], 0, v28\nv_and_or_b32 v25, v25, v41, v8")
    a("v_cndmask_b32 v31, v28, v31, s[48:49]\nv_alignbit_b32 v31, v31, v31, v17\nv_ffbl_b32 v31, v31\nv_add_u32 v37, v31, v17\ns_cmp_ge_u32 s67, " + str(OPT['fr']) + "\ns_cselect_b64 s[56:57], -1, 0\ns_mov_b64 s[50:51], s[56:57]\ns_andn2_b64 s[54:55], exec, s[52:53]\ns_cbranch_scc0 K2_l1")
    a("s_mov_b64 exec, s[54:55]\nv_and_b32 v29, v24, v27\nv_cmp_eq_u32 s[50:51], 0, v29\nv_add_u32 v25, 128, v25\nv_cndmask_b32 v29, v29, v24, s[50:51]\nv_ffbh_u32 v29, v29\nv_sub_u32 v37, 31, v29\ns_or_b64 s[50:51], s[50:51], s[56:57]\ns_mov_b64 exec, vcc\nK2_l1:")
    a(f"v_lshlrev_b32 v34, v37, v12\nv_not_b32 v33, v34\nds_and_rtn_b32 v24, v4, v33 offset:{L2_LU}\nds_and_rtn_b32 v36, v25, v33\nv_and_b32 v37, 31, v37\nv_lshl_add_u32 v37, v37, 8, v19")
    a("s_waitcnt lgkmcnt(0)\nv_and_b32 v35, v24, v34\nv_and_b32 v38, v36, v34\nv_cndmask_b32 v39, v38, v34, s[50:51]\nv_and_b32 v39, v39, v35\nv_cmp_ne_u32 s[48:49], 0, v39")
    a(f"s_andn2_b64 exec, exec, s[48:49]\nds_or_b32 v4, v35 offset:{L2_LU}\nds_or_b32 v25, v38\nv_cndmask_b32 v26, v26, v36, s[52:53]\nv_cndmask_b32 v27, v36, v27, s[52:53]")
    a("s_mov_b64 exec, s[48:49]\nds_write_b16 v37, v20\nv_and_b32 v24, v24, v33\nv_alignbit_b32 v20, v21, v20, 16\nv_lshrrev_b32 v21, 16, v21\nv_mov_b64 v[26:27], -1\nv_subrev_u32 v15, 1, v15")
    a("s_mov_b64 exec, vcc\nv_cmp_lt_u32 vcc, 0, v15\ns_add_u32 s67, s67, 1\ns_cmp_lt_u32 s67, 4096\ns_cbranch_scc1 K2_rd")
    a(f"s_mov_b64 exec, -1\nds_write_b32 v10, v12 offset:{L2_IRR}")
    a("K2_sd:\ns_mov_b64 exec, -1")
    a("s_waitcnt lgkmcnt(0)\ns_barrier"); a.st(13)
    a("s_cmp_ge_u32 s36, s41\ns_cbranch_scc1 K2_end")
    a(f"s_lshl_b32 s46, s36, 10\nv_add_u32 v11, s46, v19\nv_and_b32 v18, 31, v2\nv_lshl_add_u32 v18, v18, 2, v8")
    a(f"ds_read_b32 v16, v4 offset:{L2_LU}\nds_read_b32 v18, v18\nds_read2st64_b32 v[20:21], v11 offset0:0 offset1:1\nds_read2st64_b32 v[22:23], v11 offset0:2 offset1:3")
    a(f"s_lshl_b32 s47, s36, 9\ns_add_u32 s37, s37, s47\nv_lshl_add_u32 v12, v2, 2, s37\nds_read2st64_b32 v[24:25], v12 offset0:16 offset1:17")
    a(f"v_mov_b32 v13, 0xffff\nv_lshlrev_b32 v15, 4, v2\ns_add_u32 s61, s61, s36\ns_lshr_b32 s39, s61, 1\ns_lshl_b32 s39, s39, 10\ns_and_b32 s61, s61, 1\ns_lshl_b32 s61, s61, 3\ns_add_u32 s39, s39, s61\ns_add_u32 s39, s39, s68\ns_lshl_b32 s38, s36, 2\ns_mov_b32 s50, -1\ns_mov_b32 s51, 0\ns_waitcnt lgkmcnt(3)")
    a("v_lshrrev_b32 v16, s38, v16\nv_lshrrev_b32 v18, s38, v18")
    for t in range(4):
        a(f"v_and_b32 v26, {1 << t}, v18\nv_cmp_ne_u32 s[{52+2*t}:{53+2*t}], 0, v26")
    for r in range(52, 60): a(f"s_ff1_i32_b32 s{r}, s{r}\ns_and_b32 s{r}, s{r}, 31\ns_add_u32 s{r}, s{r}, {ZB}")
    a("s_waitcnt lgkmcnt(0)")
    for t in range(4):
        a(f"v_mov_b32 v26, s{52+2*t}\nv_mov_b32 v27, s{53+2*t}\nv_cndmask_b32 v26, v27, v26, s[50:51]\nv_and_b32 v27, {1 << t}, v16\nv_cmp_ne_u32 vcc, 0, v27\nv_cndmask_b32 v{20+t}, v{20+t}, v26, vcc")
    a("v_and_b32 v20, v13, v20\nv_and_b32 v22, v13, v22\nv_lshl_or_b32 v20, v21, 17, v20\nv_lshl_or_b32 v21, v23, 17, v22\nbuffer_store_dwordx2 v[20:21], v15, s[28:31], s39 offen sc1")
    a("s_add_u32 s36, s36, 8\ns_cmp_ge_u32 s36, s41\ns_cbranch_scc1 K2_end")
    a(f"v_mov_b32 v43, -1\ns_add_u32 s38, s38, 32\nv_subrev_u32 v5, s38, v5\nv_mov_b32 v14, {ZB | (ZB << 16)}")
    for h in range(2):
        a(f"v_cmp_lt_i32 vcc, {2*h}, v5\nv_cndmask_b32 v26, 0, v13, vcc\nv_cmp_lt_i32 vcc, {2*h+1}, v5\nv_cndmask_b32 v26, v26, v40, vcc".replace("v40", "v43"))
        a(f"v_bfi_b32 v{24+h}, v26, v{24+h}, v14\nv_and_b32 v26, 0xffff0000, v{24+h}\nv_add_u32 v{24+h}, v{24+h}, v26")
    a("s_add_u32 s39, s39, 4096\nbuffer_store_dwordx2 v[24:25], v15, s[28:31], s39 offen sc1\ns_branch K2_end")

def f2u(x): return struct.unpack('<I', struct.pack('<f', x))[0]
SCL = f2u(math.log2(math.e)/math.sqrt(128.0))
FO = lambda i: 16*(i & 1) + 8*(i >> 1)
def k2_weights(a):
    S0 = 66048
    a(f"s_sub_u32 s34, s2, {NWIN}")
    a(f"s_lshl_b32 s39, s34, 17\ns_lshl_b32 s60, s33, 13\ns_add_u32 s39, s39, s60\ns_add_u32 s39, s39, {WS_PM}\ns_add_u32 s60, s39, 4096\nv_lshlrev_b32 v8, 4, v2")
    for i in range(4): a(f"buffer_load_dwordx4 v[{80+4*i}:{83+4*i}], v8, s[28:31], s39 offen offset:{1024*i}\nbuffer_load_dwordx4 v[{96+4*i}:{99+4*i}], v8, s[28:31], s60 offen offset:{1024*i}")
    a("s_lshr_b32 s35, s33, 2\ns_and_b32 s36, s33, 3\nv_and_b32 v3, 31, v2\nv_lshrrev_b32 v4, 5, v2")
    a(f"v_lshlrev_b32 v7, 2, v0\ns_cmp_ge_u32 s33, 8\ns_cbranch_scc1 K2w_nw\ns_mov_b32 s3, {WS_WFR+WFR_SW+256}\nbuffer_load_dword v8, v7, s[28:31], s3 offen")
    a(f"v_add_u32 v7, {S0}, v7\ns_waitcnt vmcnt(0)\nds_write_b32 v7, v8\nK2w_nw:")
    a("s_waitcnt vmcnt(0) lgkmcnt(0)\ns_barrier")
    gwarm(a)
    for i in range(16): a(f"v_add_f32 v{80+i}, v{80+i}, v{96+i}")
    a(f"s_mul_i32 s39, s35, {32*516}\ns_lshl_b32 s60, s36, 7\ns_add_u32 s39, s39, s60\nv_mul_u32_u24 v6, {4*516}, v4\nv_lshl_add_u32 v6, v3, 2, v6\nv_add_u32 v6, s39, v6")
    a(f"s_add_u32 s60, s60, {S0}\nv_lshl_add_u32 v7, v3, 2, s60\nds_read_b32 v8, v7")
    for r in range(16): a(f"ds_write_b32 v6, v{80+r} offset:{(8*(r>>2)+(r&3))*516}")
    a("v_add_f32 v9, v80, v81")
    for r in range(2, 16): a(f"v_add_f32 v9, v9, v{80+r}")
    a("ds_add_f32 v7, v9 offset:1536\ns_waitcnt lgkmcnt(1)")
    for r in range(16): a(f"v_mul_f32 v{48+r}, v8, v{80+r}")
    for q in (80, 48):
        for i in range(8): a(f"v_add_f32_dpp v{q+i}, v{q+i}, v{q+i} row_ror:8 row_mask:0xf bank_mask:0x3")
        for i in range(8): a(f"v_add_f32_dpp v{q+i}, v{q+8+i}, v{q+8+i} row_ror:8 row_mask:0xf bank_mask:0xc")
        for i in range(4): a(f"v_add_f32_dpp v{q+i}, v{q+i}, v{q+i} row_half_mirror row_mask:0xf bank_mask:0x5")
        for i in range(4): a(f"v_add_f32_dpp v{q+i}, v{q+4+i}, v{q+4+i} row_half_mirror row_mask:0xf bank_mask:0xa")
        for i in range(4): a(f"v_add_f32_dpp v{q+i}, v{q+i}, v{q+i} quad_perm:[1,0,3,2] {DPPF}")
        for i in range(4): a(f"v_add_f32_dpp v{q+i}, v{q+i}, v{q+i} quad_perm:[2,3,0,1] {DPPF}")
        a(f"v_permlane16_swap_b32 v{q}, v{q+1}\nv_permlane16_swap_b32 v{q+2}, v{q+3}\nv_add_f32 v{q}, v{q}, v{q+1}\nv_add_f32 v{q+2}, v{q+2}, v{q+3}")
    a(f"v_bfe_u32 v10, v2, 2, 2\nv_lshlrev_b32 v10, 5, v10\nv_bfe_u32 v11, v2, 4, 1\nv_lshl_add_u32 v10, v11, 2, v10\nv_lshl_add_u32 v10, v4, 4, v10\ns_lshl_b32 s60, s35, 7\ns_add_u32 s60, s60, {S0}\nv_add_u32 v10, s60, v10")
    a("s_mov_b32 exec_lo, 0x11111111\ns_mov_b32 exec_hi, 0x11111111\nds_add_f32 v10, v80 offset:512\nds_add_f32 v10, v82 offset:520\nds_add_f32 v10, v48 offset:1024\nds_add_f32 v10, v50 offset:1032\ns_mov_b64 exec, -1")
    a("s_waitcnt lgkmcnt(0)"); a("s_barrier")
    a(f"v_lshlrev_b32 v5, 3, v2\nv_add_u32 v5, {S0}, v5\nds_read_b64 v[8:9], v5\nds_read_b64 v[10:11], v5 offset:512\nds_read_b64 v[12:13], v5 offset:1024\ns_waitcnt lgkmcnt(0)")
    a("v_add_f32 v8, v8, v9\nv_add_f32 v10, v10, v11\nv_add_f32 v12, v12, v13")
    for v in (8, 10, 12): a.red63('v_add_f32', v)
    a("v_readlane_b32 s60, v8, 63\nv_readlane_b32 s61, v10, 63\nv_readlane_b32 s62, v12, 63")
    a(f"s_mov_b32 s63, {f2u(1/128.)}\ns_mov_b32 s64, {f2u(-1/128.)}\ns_mov_b32 s65, {SCL}\nv_lshlrev_b32 v15, 4, v2")
    a(f"s_lshl_b32 s66, s33, 11\ns_lshl_b32 s67, s34, 15\ns_add_u32 s66, s66, s67\ns_add_u32 s66, s66, {WS_WFR}")
    a("s_lshr_b32 s35, s33, 1\ns_and_b32 s36, s33, 1\nv_and_b32 v3, 15, v2\nv_lshrrev_b32 v4, 4, v2")
    a("s_cmp_eq_u32 s34, 0\ns_cbranch_scc0 K2w_fb")
    a("v_and_b32 v5, 1, v3\nv_lshrrev_b32 v6, 2, v3\nv_lshl_or_b32 v5, v6, 1, v5\nv_bfe_u32 v6, v3, 1, 1\nv_lshl_or_b32 v5, v6, 4, v5")
    a("s_lshr_b32 s37, s35, 1\ns_lshl_b32 s37, s37, 5\ns_and_b32 s38, s35, 1\ns_lshl_b32 s38, s38, 3\ns_add_u32 s37, s37, s38\nv_add_u32 v5, s37, v5")
    a(f"v_lshlrev_b32 v7, 2, v5\nv_add_u32 v7, {S0}, v7\nds_read_b32 v14, v7 offset:512")
    a(f"s_lshl_b32 s37, s36, 8\nv_lshl_add_u32 v6, v4, 3, s37\nv_mul_u32_u24 v5, 516, v5\nv_add_u32 v5, v5, v6\nv_add_u32 v6, {S0+1536}, v6")
    for h in range(2):
        for i in range(4):
            a(f"ds_read2_b32 v[{16+16*h+2*i}:{17+16*h+2*i}], v5 offset0:{32*h+FO(i)} offset1:{32*h+FO(i)+1}")
            a(f"ds_read2_b32 v[{24+16*h+2*i}:{25+16*h+2*i}], v6 offset0:{32*h+FO(i)} offset1:{32*h+FO(i)+1}")
    a("v_mov_b32 v8, s61\nv_mul_f32 v8, s63, v8\ns_waitcnt lgkmcnt(0)\nv_sub_f32 v14, v8, v14\nv_mul_f32 v14, s63, v14")
    for h in range(2):
        for j in range(8):
            x = 16+16*h+j
            a(f"v_add_f32 v{x}, v{x}, v14\nv_fmac_f32 v{x}, s64, v{x+8}\nv_mul_f32 v{x}, s65, v{x}")
        for i in range(4): a(f"v_cvt_pk_bf16_f32 v{48+4*h+i}, v{16+16*h+2*i}, v{17+16*h+2*i}")
        a(f"buffer_store_dwordx4 v[{48+4*h}:{51+4*h}], v15, s[28:31], s66 offen offset:{1024*h}")
    a("s_branch K2w_end\nK2w_fb:")
    a("s_lshr_b32 s37, s35, 1\ns_lshl_b32 s37, s37, 7\ns_and_b32 s38, s35, 1\ns_lshl_b32 s38, s38, 2\ns_add_u32 s37, s37, s38\nv_lshl_add_u32 v5, v3, 3, s37")
    a(f"v_add_u32 v7, {S0+1536}, v5\nds_read_b32 v14, v7")
    a(f"s_mul_i32 s37, s36, {64*516}\nv_mul_u32_u24 v6, {2*516}, v4\nv_add3_u32 v5, v5, v6, s37")
    for h in range(2):
        for i in range(4):
            for c in range(2): a(f"ds_read_b32 v{16+8*h+2*i+c}, v5 offset:{(32*h+FO(i)+c)*516}")
    a("s_waitcnt lgkmcnt(0)")
    for h in range(2):
        for j in range(8): a(f"v_fmac_f32 v{16+8*h+j}, s64, v14")
        for i in range(4): a(f"v_cvt_pk_bf16_f32 v{48+4*h+i}, v{16+8*h+2*i}, v{17+8*h+2*i}")
        a(f"buffer_store_dwordx4 v[{48+4*h}:{51+4*h}], v15, s[28:31], s66 offen offset:{1024*h}")
    a("s_cmp_ge_u32 s33, 4\ns_cbranch_scc1 K2w_end")
    a("v_and_b32 v5, 3, v2\nv_max_u32 v7, 1, v5\nv_lshlrev_b32 v7, 9, v7\nv_lshl_add_u32 v7, v4, 3, v7")
    a(f"s_lshl_b32 s37, s33, 7\ns_add_u32 s37, s37, {S0-512}\nv_add_u32 v7, s37, v7")
    for i in range(4): a(f"ds_read2_b32 v[{16+2*i}:{17+2*i}], v7 offset0:{FO(i)} offset1:{FO(i)+1}")
    a("v_mov_b32 v8, s61\nv_mov_b32 v9, s62\nv_cmp_eq_u32 s[40:41], 2, v5\nv_cmp_eq_u32 s[42:43], 3, v5\nv_cmp_eq_u32 s[44:45], 0, v5")
    a("v_cndmask_b32 v8, 0, v8, s[40:41]\nv_cndmask_b32 v8, v8, v9, s[42:43]")
    a("s_waitcnt lgkmcnt(0)")
    for j in range(8): a(f"v_fmac_f32 v{16+j}, s64, v8\nv_cndmask_b32 v{16+j}, v{16+j}, 1.0, s[44:45]")
    for i in range(4): a(f"v_cvt_pk_bf16_f32 v{48+i}, v{16+2*i}, v{17+2*i}")
    a(f"s_lshl_b32 s37, s33, 10\ns_add_u32 s37, s37, {WS_WFR+WFR_E}\nbuffer_store_dwordx4 v[48:51], v15, s[28:31], s37 offen")
    a(f"v_mov_b32 v8, s60\ns_mov_b32 s37, {WS_WFR+WFR_SW}\ns_mov_b64 exec, 1\nbuffer_store_dword v8, v15, s[28:31], s37 offen")


NQ = 44; DEP = 2; NBUF = 3
QB = QN*4
L3_CNT = TB + GS; L3_SIZE = L3_CNT + 64
ACC, AOP, ADR, BUF, TMP, GK, DIS, IDX = 2, 6, 8, 12, 24, 26, 33, 40
SPIN = 1 << 20
LSC = lambda b: ('sc1', 'nt', 'sc1 nt', 'sc0 nt', 'sc0', '')[OPT['lnt'] if b == 2 else OPT['pnt']]
TSC = lambda: ('', ' nt', ' sc1', ' sc0 sc1', ' sc0', ' sc1 nt')[OPT['tsc']]
XP = 3
NL = NQ//2
def gwarm(a):
    if OPT['gw'] != 1: return
    a(f"s_mul_i32 s52, s18, {GS}\ns_mul_i32 s53, s16, {QB}\ns_add_u32 s52, s52, s53\ns_lshl_b32 s53, s20, 8\ns_add_u32 s52, s52, s53\ns_add_u32 s52, s52, {WS_G+KS}")
    a(f"v_lshlrev_b32 v126, 7, v2\ns_mov_b64 exec, 0x3fff\nbuffer_load_dword v127, v126, s[8:11], s52 offen\ns_mov_b64 exec, -1")
def tabledma(a, v16, sfx, part=3):
    base = lambda k: a(f"s_mul_i32 s53, s18, {GS}\ns_lshl_b32 s52, s19, 10\ns_add_u32 s53, s53, s52\ns_add_u32 s53, s53, {WS_G+k*1024}\ns_add_u32 s52, s52, {TB+k*1024}")
    def run(n):
        for i in range(n):
            if i == 3: a(f"s_cmp_ge_u32 s19, 2\ns_cbranch_scc1 K3_nt{sfx}")
            a(f"s_mov_b32 m0, s52\nbuffer_load_dwordx4 v{v16}, s[8:11], s53 offen{NT(16)} lds")
            if i < n-1: a("s_add_u32 s52, s52, 16384\ns_add_u32 s53, s53, 16384")
    if part & 2: base(50); run(3)
    if not part & 1: return
    base(0); run(4)
    a(f"K3_nt{sfx}:")
    a(f"s_mul_i32 s52, s16, 98\ns_add_u32 s52, s52, s20\ns_lshl_b32 s52, s52, 8\ns_add_u32 s52, s52, {WS_DISP}\nv_lshlrev_b32 v{v16}, 2, v2")
    for i in range(7): a(f"buffer_load_dword v{DIS+i}, v{v16}, s[8:11], s52 offen offset:{i*256}")
    a(f"v_mul_u32_u24 v{v16}, 24, v2\nv_mov_b32 v45, 364\nv_cmp_eq_u32 vcc, 15, v2\nv_cndmask_b32 v{v16}, v{v16}, v45, vcc\ns_mul_i32 s52, s16, 392\ns_add_u32 s52, s52, {WS_TQ}\ns_mov_b64 exec, 0xffff")
    a(f"buffer_load_dwordx4 v[120:123], v{v16}, s[8:11], s52 offen\nbuffer_load_dwordx3 v[124:126], v{v16}, s[8:11], s52 offen offset:16\ns_mov_b64 exec, -1")
def k3(a):
    global XP
    XP = OPT['xp']
    name = 'hop_kernel'
    a.launch(name, 256, 1024, L3_SIZE)
    a.begin(name)
    a("s_cmp_ge_u32 s2, 256\ns_cbranch_scc1 K3_end")
    a.st_init()
    a("s_load_dwordx2 s[4:5], s[0:1], 88")
    a("v_lshrrev_b32 v1, 6, v0\nv_and_b32 v2, 63, v0\nv_readfirstlane_b32 s19, v1")
    a("s_lshr_b32 s16, s2, 3\ns_and_b32 s16, s16, 3\ns_and_b32 s17, s2, 7\ns_lshl_b32 s17, s17, 3\ns_lshr_b32 s18, s2, 5\ns_or_b32 s18, s18, s17")
    a("s_mul_i32 s20, s19, 6\ns_cmp_eq_u32 s19, 15\ns_cselect_b32 s20, 91, s20\ns_cmp_ge_u32 s19, 14\ns_cselect_b32 s21, 7, 6\ns_mov_b32 s33, s19")
    a("s_waitcnt lgkmcnt(0)")
    a.srd(8, 4, WS_SIZE); a.srd(28, 4, WS_SIZE)
    def ids():
        a("s_getreg_b32 s50, hwreg(HW_REG_XCC_ID)\ns_and_b32 s50, s50, 0xff\ns_add_u32 s50, s50, 1")
        a(f"s_mul_i32 s51, s18, {FGS}\ns_add_u32 s51, s51, {WS_FLAGS}")
    a("s_cmp_lg_u32 s19, 15\ns_cbranch_scc1 K3_nox"); ids()
    a(f"s_lshl_b32 s52, s16, 2\ns_add_u32 s52, s52, s51\nv_mov_b32 v4, s50\nv_mov_b32 v6, 0\nv_mov_b32 v7, {L3_CNT}\ns_mov_b64 exec, 1")
    a("buffer_store_dword v4, v6, s[8:11], s52 offen offset:2048 sc1\nds_write_b32 v7, v6\ns_mov_b64 exec, -1\nK3_nox:")
    a(f"s_cmp_ge_u32 s2, {NWIN+2}\ns_cbranch_scc1 K2_idle\ns_cmp_ge_u32 s2, {NWIN}\ns_cbranch_scc1 K2_wts")
    k2_window(a)
    a(f"K2_end:\ns_mov_b64 exec, -1\ns_waitcnt vmcnt(0) lgkmcnt(0)\ns_barrier\ns_cmp_lg_u32 s19, 0\ns_cbranch_scc1 K2_lo\nv_mov_b32 v10, 0\nds_read_b32 v4, v10 offset:{L2_IRR}")
    a(f"s_lshl_b32 s52, s2, 7\ns_add_u32 s52, s52, {WS_WDN}\ns_mov_b64 exec, 1\ns_waitcnt lgkmcnt(0)\nv_add_u32 v4, 1, v4\nbuffer_store_dword v4, v10, s[8:11], s52 offen sc1\ns_mov_b64 exec, -1\nK2_lo:\nv_lshlrev_b32 v44, 4, v2"); tabledma(a, 44, 'a', 1); a("s_branch K3_join")
    a("K2_wts:")
    k2_weights(a)
    a("K2w_end:\ns_mov_b64 exec, -1\ns_waitcnt lgkmcnt(0)\ns_barrier\ns_branch K2_tab\nK2_idle:"); gwarm(a)
    if OPT['cpf'] & 2:
        a("s_cmp_eq_u32 s19, 15\ns_cbranch_scc0 K2_tab\nv_lshlrev_b32 v3, 2, v2"); a.codepf('K3_join', 'K3_end', 3, 4, 52, 127)
    a("K2_tab:\nv_lshlrev_b32 v44, 4, v2"); tabledma(a, 44, 'b')
    if OPT['gw'] >= 2:
        a(f"s_cmp_lt_u32 s2, 200\ns_cbranch_scc1 K3_join\ns_cmp_ge_u32 s19, 14\ns_cbranch_scc1 K3_join\ns_lshr_b32 s52, s2, 3\ns_sub_u32 s52, s52, 25\ns_mul_i32 s52, s52, {896*128}\ns_and_b32 s53, s2, 7\ns_mul_i32 s53, s53, {8*GS}")
        a(f"s_add_u32 s52, s52, s53\ns_add_u32 s52, s52, {WS_G+KS}\nv_lshlrev_b32 v118, 7, v0")
        if OPT['gw'] == 2: a("s_waitcnt vmcnt(0)")
        a("buffer_load_dword v119, v118, s[8:11], s52 offen")
    a("K3_join:"); a.st(1); ids()
    a("s_mul_i32 s48, s16, 98\ns_add_u32 s48, s48, s20")
    a(f"s_lshl_b32 s49, s48, 2\ns_add_u32 s49, s49, {WS_TQ}\ns_buffer_load_dwordx8 s[40:47], s[8:11], s49")
    a(f"v_mov_b32 v5, v2\nv_lshlrev_b32 v0, 2, v5\nv_lshlrev_b32 v8, 4, v5\ns_mul_i32 s39, s18, {GS}\ns_add_u32 s39, s39, {WS_G}")
    a(f"s_lshl_b32 s69, s16, 4\ns_add_u32 s69, s69, s19\ns_mul_i32 s69, s69, {RS}\ns_add_u32 s69, s69, {WS_IDX}")
    def idxld(p, va=8):
        if p and p % 4 == 0: a("s_add_u32 s69, s69, 4096")
        a(f"buffer_load_dwordx4 v[{IDX+4*p}:{IDX+4*p+3}], v{va}, s[8:11], s69 offen offset:{(p&3)*1024}{NT(8)}")
    a("s_waitcnt lgkmcnt(0)")
    a("s_cmp_eq_u32 s21, 7\ns_cselect_b32 s46, s46, 0")
    for i in range(1, 7): a(f"s_add_u32 s{40+i}, s{40+i}, s{39+i}")
    a(f"s_min_u32 s47, s46, {NQ}\ns_sub_u32 s28, s47, {DEP+1}\ns_mov_b64 s[32:33], 0")
    for i in range(7): a(f"s_sub_u32 s{40+i}, s{40+i}, 1\ns_bitset1_b64 s[32:33], s{40+i}")
    a("s_add_u32 s52, s28, 1\ns_lshr_b64 s[34:35], s[32:33], s52\ns_mov_b64 s[24:25], s[32:33]\ns_bitset1_b64 s[24:25], s28")
    def wpoll(sfx):
        a(f"K3_wp{sfx}:\nbuffer_load_dword v4, v6, s[8:11], s52 offen sc1\ns_waitcnt vmcnt(0)\nv_cmp_eq_u32 vcc, 0, v4\ns_cbranch_vccz K3_wd{sfx}\ns_add_u32 s64, s64, 1\ns_cmp_gt_u32 s64, {SPIN}\ns_cbranch_scc1 K3_wd{sfx}\ns_sleep {OPT['slw']}\ns_branch K3_wp{sfx}\nK3_wd{sfx}:")
    a(f"s_mov_b32 s64, 0\ns_mul_i32 s52, s16, {49*128}\ns_add_u32 s52, s52, {WS_WDN}")
    if OPT['pw']:
        a("v_add_u32 v6, s20, v5\nv_mov_b32 v7, v6")
        for x, y in SWAPS:
            for p, q in ((x, y), (y, x)): a(f"v_mov_b32 v9, {q}\nv_cmp_eq_u32 vcc, {p}, v6\nv_cndmask_b32 v7, v7, v9, vcc")
        a("v_lshrrev_b32 v7, 1, v7\nv_lshlrev_b32 v6, 7, v7\ns_bfm_b64 exec, s21, 0"); wpoll('a'); a("s_mov_b64 exec, -1")
    a(f"s_waitcnt vmcnt(0)\nv_add3_u32 v{BUF}, v120, v121, v122\nv_add3_u32 v{BUF}, v{BUF}, v123, v124\nv_add_u32 v{BUF}, v{BUF}, v125\ns_mov_b64 exec, 0xc000\nv_add_u32 v{BUF}, v{BUF}, v126\ns_mov_b64 exec, -1")
    if OPT['pw']:
        for p in range(XP+1): idxld(p)
    a("s_cmp_lg_u32 s19, 0\ns_cbranch_scc1 K3_nw\nv_lshlrev_b32 v6, 5, v0\ns_mov_b32 exec_hi, 0x1ffff"); wpoll('b')
    a(f"v_cmp_ne_u32 vcc, 1, v4\ns_cmp_lg_u64 vcc, 0\ns_cselect_b32 s52, 1, 0\nv_mov_b32 v4, s52\nv_mov_b32 v6, {L3_CNT}\nds_write_b32 v6, v4 offset:4\ns_mov_b64 exec, -1\nK3_nw:")
    a(f"s_waitcnt lgkmcnt(0)"); a.st(2); a("s_barrier"); a.st(3)
    if not OPT['pw']:
        for p in range(XP+1): idxld(p)
    a(f"s_lshl_b32 m0, s48, 8\nv_mov_b32 v6, {L3_CNT}\nds_read_b32 v{BUF+7}, v6 offset:4")
    for i in range(7): a(f"ds_read_addtid_b32 v{GK+i} offset:{TB+i*256}")
    a(f"buffer_load_dword v{TMP}, v0, s[8:11], s51 offen offset:2048 sc1")
    LA = OPT['la']; LD = {}; nxt = XP+1
    def late(lo, hi):
        if hi > lo: a(f"v_lshlrev_b32 v{TMP+1}, 2, v0")
        for p in range(lo, hi): a(f"s_cmp_gt_u32 s47, {2*p}\ns_cselect_b64 exec, -1, 1"); idxld(p, TMP+1)
        a("s_mov_b64 exec, -1")
    late(nxt, nxt+LA); nxt += LA
    for p in range(0, NQ, 4):
        if p < NQ-DEP-1: LD[p] = (nxt, min(nxt+2, NL)); nxt = LD[p][1]
    EM = sum(1 << p for p in LD)
    a(f"s_mov_b64 s[88:89], s[24:25]\ns_or_b32 s24, s24, {EM & 0xffffffff}\ns_or_b32 s25, s25, {EM >> 32}")
    issued = lambda p: max([XP+1+LA] + [hi for q, (lo, hi) in LD.items() if q < p])
    tb = 32; lb = 2; TBS_ = TOS
    a(f"v_lshrrev_b32 v1, {1+lb}, v5\nv_mul_u32_u24 v1, {TBS_}, v1\nv_and_b32 v4, {(2 << lb)-1}, v5\nv_lshl_add_u32 v1, v4, 4, v1\nv_and_b32 v4, 3, v5")
    a(f"v_cmp_eq_u32 s[54:55], 0, v4\nv_cmp_eq_u32 s[56:57], 1, v4\nv_mov_b32 v2, 0x3f80\nv_mov_b32 v3, 0x3f800000")
    a(f"v_cndmask_b32 v{AOP}, 0, v2, s[54:55]\nv_cndmask_b32 v{AOP}, v{AOP}, v3, s[56:57]\nv_mov_b32 v{AOP+1}, v{AOP}")
    for i in range(4): a(f"v_mov_b32 v{ACC+i}, 0")
    a("s_lshl_b32 s52, s19, 7\ns_add_u32 s65, s52, s51")
    a("s_lshl_b32 s58, s16, 2\ns_add_u32 s58, s58, s65")
    a(f"s_lshl_b32 s59, s20, 8\ns_mul_i32 s60, s16, {QB}\ns_add_u32 s60, s60, s59")
    a(f"s_mul_i32 s61, s48, {(64//tb)*TBS_}\ns_lshl_b32 s52, s18, {5+lb}\ns_add_u32 s61, s61, s52\ns_add_u32 s61, s61, {WS_TOK}")
    for r in range(1, 4): a(f"s_add_u32 s52, s16, {r}\ns_and_b32 s52, s52, 3\ns_mul_i32 s52, s52, {QB}\ns_add_u32 s{65+r}, s52, s59")
    a(f"s_mov_b32 s22, 1")
    def ad1(p, h):
        r = IDX+2*p+(h >> 1)
        a(f"v_lshrrev_b32 v{ADR+h}, 15, v{r}" if h & 1 else f"v_lshlrev_b32_sdwa v{ADR+h}, 2, v{r} {SD} src1_sel:WORD_0")
    def adr(p):
        for h in range(4): ad1(p, h)
    def rd(p):
        for h in range(4): a(f"ds_read_b32 v{BUF+4*(p%NBUF)+h}, v{ADR+h} offset:{TB}")
    def mf(p, h):
        b = BUF+4*(p%NBUF)+2*h
        if OPT['exp'] & 2: return
        a(f"v_mfma_f32_4x4x4_16b_bf16 v[{ACC}:{ACC+3}], v[{AOP}:{AOP+1}], v[{b}:{b+1}], v[{ACC}:{ACC+3}]")
    def vw(p): pass
    CALL = "s_swappc_b64 s[30:31], s[26:27]"
    T0, T1 = TMP, TMP+1
    a(f"s_mov_b64 exec, 15\ns_waitcnt vmcnt({LA})\nK3_xp:\nv_cmp_eq_u32 vcc, 0, v{TMP}\ns_cbranch_vccz K3_xb\ns_add_u32 s64, s64, 1\ns_cmp_gt_u32 s64, {SPIN}\ns_cbranch_scc1 K3_xb")
    a(f"buffer_load_dword v{TMP}, v0, s[8:11], s51 offen offset:2048 sc1\ns_waitcnt vmcnt(0)\ns_branch K3_xp\nK3_xb:")
    a(f"v_cmp_ne_u32 vcc, s50, v{TMP}\ns_cmp_lg_u64 vcc, 0\ns_cselect_b32 s23, 1, 0\ns_mov_b64 exec, -1")
    a("s_mov_b64 exec, 0xffff")
    a(f"s_waitcnt lgkmcnt(0)\nv_lshl_add_u32 v{BUF}, v{BUF+7}, 8, v{BUF}\nv_cmp_lt_u32 vcc, {NQ}, v{BUF}\ns_cmp_lg_u64 vcc, 0\ns_cselect_b32 s29, 1, {OPT['slow']}\ns_mov_b64 exec, -1")
    a("s_getpc_b64 s[40:41]\nK3_pc:\ns_add_u32 s40, s40, K3_fl0_0-K3_pc\ns_addc_u32 s41, s41, 0\ns_mul_i32 s42, s23, K3_fl1_0-K3_fl0_0\ns_mov_b32 s43, K3_fl2_0-K3_fl0_0")
    a(f"s_add_u32 s45, s23, 1\ns_mul_i32 s45, s45, {KS}\ns_add_u32 s45, s45, s39")
    a("s_waitcnt lgkmcnt(0)")
    if OPT['exp'] & 4:
        a("s_waitcnt vmcnt(0)\nv_lshrrev_b32 v24, 2, v0\nv_lshl_or_b32 v24, v24, 17, v24")
        for p in range(2*NQ): a(f"v_add_u32 v{IDX+p}, {(p*64) | (p*64+64*99) << 17}, v24")
    a("K3_hop:")
    a(f"s_mov_b32 s52, s39\ns_mov_b32 s39, s45\ns_add_u32 s53, s39, {KS}\ns_cmp_eq_u32 s23, 0\ns_cselect_b32 s45, s52, s53")
    a(f"s_add_u32 s61, s61, {tb*256}\ns_add_u32 s37, s39, s60")
    assert not OPT['px']
    a("s_cmp_eq_u32 s22, 7\ns_cselect_b32 s42, s43, s42\ns_add_u32 s26, s40, s42\ns_addc_u32 s27, s41, 0")
    if OPT['prio'] == 1: a("s_cmp_ge_u32 s19, 8\ns_cbranch_scc1 K3_p2\ns_setprio 3\ns_branch K3_p3\nK3_p2:\ns_setprio 2\nK3_p3:")
    if OPT['prio'] in (2, 4, 5, 6, 7): a("s_setprio 3")
    if OPT['prio'] == 3: a("s_setprio 1")
    a("s_cmp_lg_u32 s29, 0\ns_cbranch_scc1 K3_slow")
    for p in range(DEP): adr(p); rd(p)
    adr(DEP)
    def tok(part):
        if OPT['exp'] & 8: return
        if part == 0: a(f"buffer_store_dwordx4 v[{GK}:{GK+3}], v1, s[8:11], s38 offen{TSC()}")
        if part == 1:
            a(f"v_lshrrev_b32 v{T0}, {4+lb}, v0\nv_mul_u32_u24 v{T0}, {TBS_}, v{T0}\nv_and_b32 v{T1}, {(16 << lb)-4}, v0\nv_lshl_add_u32 v{T0}, v{T1}, 1, v{T0}\ns_add_u32 s38, s38, {(256//tb)*TBS_}")
            a(f"buffer_store_dwordx2 v[{GK+4}:{GK+5}], v{T0}, s[8:11], s38 offen{TSC()}")
        if part == 2:
            l = a.lab('K3_t')
            a(f"s_cmp_eq_u32 s21, 7\ns_cbranch_scc0 {l}\nv_lshrrev_b32 v{T0}, {5+lb}, v0\nv_mul_u32_u24 v{T0}, {TBS_}, v{T0}\nv_and_b32 v{T1}, {(32 << lb)-4}, v0\nv_add_u32 v{T0}, v{T0}, v{T1}\ns_add_u32 s38, s38, {(128//tb)*TBS_}")
            a(f"buffer_store_dword v{GK+6}, v{T0}, s[8:11], s38 offen{TSC()}\n{l}:")
    a(f"s_sub_u32 s38, s61, {tb*256}"); tok(0)
    if OPT['cpf'] & 4:
        a("s_cmp_eq_u32 s22, 7\ns_cbranch_scc0 K3_npf\ns_cmp_eq_u32 s19, 0\ns_cbranch_scc0 K3_npf"); a.codepf('att_kernel', 'K4_end', 0, T0, 52, ACC+3); a("K3_npf:")
    for p in range(NQ-DEP):
        rd(p+DEP); a(f"s_waitcnt lgkmcnt({4*DEP})"); mf(p, 0)
        if p+DEP+1 < NQ:
            vw(p+DEP+1)
            ad1(p+DEP+1, 0); ad1(p+DEP+1, 1); mf(p, 1); ad1(p+DEP+1, 2); ad1(p+DEP+1, 3)
        else: mf(p, 1)
        if OPT['prio'] == 2 and p in (9, 18, 27): a(f"s_setprio {2 - (9, 18, 27).index(p)}")
        if OPT['prio'] == 1 and p in (11, 23): a(f"s_cmp_ge_u32 s19, 8\ns_cbranch_scc0 K3_q{p}\ns_setprio {1 if p == 11 else 0}\nK3_q{p}:")
        a(f"s_bitcmp1_b64 s[24:25], {p}\ns_cbranch_scc1 K3_st{p}\nK3_bk{p}:")
    a("s_endpgm")
    for p in range(NQ-DEP):
        a(f"K3_st{p}:")
        if p in LD: a(f"s_cmp_eq_u32 s22, 1\ns_cbranch_scc0 K3_nl{p}"); late(*LD[p]); a(f"s_waitcnt vmcnt({LD[p][1] - 1 - min((p+4+DEP+1)//2, NL-1)})\nK3_nl{p}:")
        a(f"s_bitcmp1_b64 s[32:33], {p}\ns_cbranch_scc0 K3_nf{p}\n{CALL}\nK3_nf{p}:")
        a(f"s_cmp_eq_u32 s28, {p}\ns_cbranch_scc1 K3_dr{(p+1)%NBUF}\ns_branch K3_bk{p}")
    for r in range(NBUF):
        a(f"K3_dr{r}:")
        for i in range(DEP):
            a(f"s_waitcnt lgkmcnt({4*(DEP-1-i)})"); mf(r+i, 0); mf(r+i, 1)
            if i < DEP-1: a(f"s_bitcmp1_b32 s34, {i}\ns_cbranch_scc0 K3_dn{r}_{i}\n{CALL}\nK3_dn{r}_{i}:")
            else: a(f"{CALL}\ns_branch K3_hend")
    for m in range(3):
        for l in range(7):
            tg = m == 0 and OPT['px']; sc = ' sc1' if m else NT(4)
            a(f".p2align 7\nK3_fl{m}_{l}:\ns_add_u32 s26, s26, 128\ns_addc_u32 s27, s27, 0")
            if tg and l >= 5:
                a(f"s_cmp_eq_u32 s22, 1\ns_cbranch_scc0 K3_nz{l}\ns_waitcnt vmcnt(0)\nK3_nz{l}:")
            PR = {4: {1: 2, 3: 1, 4: 0}, 5: {0: 2, 2: 1, 4: 0}, 6: {2: 2, 3: 1, 4: 0}, 7: {1: 2, 2: 1, 3: 0}}.get(OPT['prio'], {})
            if l in PR: a(f"s_setprio {PR[l]}")
            if l in (1, 2): tok(l)
            if m == 0 and l == 0 and OPT['wb6']:
                a(f"s_cmp_lt_u32 s22, {OPT['wb6']}\ns_cbranch_scc1 K3_nwc\ns_cmp_lg_u32 s19, 0\ns_cbranch_scc1 K3_nwc\ns_cmp_ge_u32 s2, 8\ns_cbranch_scc1 K3_nwc\nbuffer_wbl2 sc1\nK3_nwc:")
            if m == 2 and l == OPT['wb'] - 1:
                a(f"s_cmp_lg_u32 s19, {OPT['wbw']}\ns_cbranch_scc1 K3_nwb\ns_cmp_ge_u32 s2, 8\ns_cbranch_scc1 K3_nwb\nbuffer_wbl2 sc1\nK3_nwb:")
            a(f"v_mul_f32 v{T0}, v{DIS+l}, v{ACC}\nv_mul_f32 v{T1}, v{DIS+l}, v{ACC+1}\nv_mov_b64 v[{ACC}:{ACC+1}], 0")
            if tg: a(f"v_add_u32 v{T0}, s47, v{T0}\nv_cvt_pk_bf16_f32 v{T1}, v{T1}, v{T1}\nv_perm_b32 v{T0}, v{T1}, v{T0}, s63\nv_bfi_b32 v{GK+l}, 1, s46, v{T0}")
            else: a(f"v_cvt_pk_bf16_f32 v{GK+l}, v{T0}, v{T1}")
            if m < 2 and l == 3: a(f"v_lshlrev_b32 v{T0}, 2, v0\nbuffer_store_dwordx4 v[{GK}:{GK+3}], v{T0}, s[8:11], s37 offen{sc}")
            if m < 2 and l == 5: a(f"v_lshlrev_b32 v{T0}, 1, v0\nbuffer_store_dwordx2 v[{GK+4}:{GK+5}], v{T0}, s[8:11], s37 offen offset:1024{sc}")
            if m < 2 and l == 6: a(f"buffer_store_dword v{GK+6}, v0, s[8:11], s37 offen offset:1536{sc}")
            if tg and l in (0, 4):
                a(f"s_cmp_eq_u32 s22, 1\ns_cbranch_scc0 K3_nc{l}\nv_mov_b32 v{T1}, 0")
                for x in ((0, 1, 2), (3, 4, 5, 6))[l >> 2]:
                    if x == 6: a(f"s_cmp_eq_u32 s21, 7\ns_cselect_b32 s36, s36, {WS_SIZE}")
                    a(f"buffer_store_dword v{T1}, v0, s[8:11], s36 offen offset:{x*256}")
                a(f"K3_nc{l}:")
            a("s_setpc_b64 s[30:31]")
            a(f".if (. - K3_fl{m}_{l}) > 128\n.error \"flush too long\"\n.endif")
    AC0 = 0
    a(f"K3_slow:\ns_load_dwordx4 s[72:75], s[0:1], 8\ns_sub_u32 s38, s61, {tb*256}"); tok(0)
    a(f"s_lshl_b32 s52, s20, 9\ns_add_u32 s52, s52, {AC0}\nv_lshl_add_u32 v8, v0, 1, s52\nv_mov_b32 v10, 0\nv_mov_b32 v11, 0")
    for l in range(6): a(f"ds_write_b64 v8, v[10:11] offset:{l*512}")
    a("s_cmp_eq_u32 s21, 7\ns_cbranch_scc0 K3_s6\nds_write_b64 v8, v[10:11] offset:3072\nK3_s6:\ns_waitcnt lgkmcnt(0)")
    a.srd(76, 72, E*4); a.srd(80, 74, E*4)
    a(f"s_barrier\ns_lshl_b32 s52, s19, 8\ns_mul_i32 s53, s16, {QN}\ns_mov_b32 s54, {WS_NEWID}")
    a("K3_sl:\nbuffer_load_dword v12, v0, s[76:79], s52 offen\nbuffer_load_dword v13, v0, s[80:83], s52 offen\nv_add_u32 v14, s52, v0\ns_waitcnt vmcnt(0)\nv_lshlrev_b32 v12, 1, v12\nv_lshlrev_b32 v13, 1, v13")
    a("buffer_load_ushort v12, v12, s[8:11], s54 offen\nbuffer_load_ushort v13, v13, s[8:11], s54 offen\ns_waitcnt vmcnt(0)\nv_lshlrev_b32 v12, 2, v12\nds_read_b32 v12, v12 offset:" + str(TB) + "\nv_subrev_u32 v13, s53, v13")
    a(f"v_cmp_gt_u32 vcc, {E*4}, v14\ns_mov_b64 exec, vcc\nv_cmp_gt_u32 vcc, {QN}, v13\ns_mov_b64 exec, vcc\nv_lshlrev_b32 v13, 3, v13\nv_add_u32 v13, {AC0}, v13\ns_waitcnt lgkmcnt(0)")
    a(f"v_lshlrev_b32 v15, 16, v12\nv_and_b32 v12, 0xffff0000, v12\nds_add_f32 v13, v15\nds_add_f32 v13, v12 offset:4\ns_mov_b64 exec, -1\ns_add_u32 s52, s52, 4096\ns_cmp_lt_u32 s52, {E*4}\ns_cbranch_scc1 K3_sl")
    a("s_waitcnt lgkmcnt(0)\ns_barrier")
    for l in range(7):
        if l == 6: a("s_cmp_eq_u32 s21, 7\ns_cbranch_scc0 K3_hend")
        a(f"ds_read_b64 v[{ACC}:{ACC+1}], v8 offset:{l*512}\ns_waitcnt lgkmcnt(0)\n{CALL}")
    a("K3_hend:"); a.st(4)
    if OPT['stamp'] in (1, 2): a("s_cmp_eq_u32 s22, 1\ns_cselect_b32 s80, s74, s80\ns_cselect_b32 s74, 0, s74")
    a("s_mov_b64 s[24:25], s[88:89]\ns_cmp_eq_u32 s22, 7\ns_cbranch_scc1 K3_fin")
    if OPT['prio']: a(f"s_setprio {OPT['wprio']}")
    a(f"v_mov_b32 v{T0}, s22\nv_mov_b32 v{T1}, 1\nv_mov_b32 v{ACC}, {L3_CNT}\ns_mov_b64 exec, 1\nds_add_u32 v{ACC}, v{T1}")
    if OPT['px']: a("s_cmp_gt_u32 s22, 1\ns_cselect_b32 s52, s23, 1\ns_cmp_eq_u32 s52, 0\ns_cbranch_scc1 K3_px")
    a("s_waitcnt vmcnt(0)"); a.st(5)
    a("s_cmp_eq_u32 s23, 0\ns_cbranch_scc0 K3_g1")
    a(f"buffer_store_dword v{T0}, v0, s[8:11], s58 offen\ns_branch K3_g2\nK3_g1:\nbuffer_store_dword v{T0}, v0, s[8:11], s58 offen sc1\nK3_g2:")
    a(f"s_mov_b64 exec, 15")
    NPL = OPT['npl']
    PL = lambda i: f"buffer_load_dword v{BUF+i}, v0, s[8:11], s65 offen {LSC(1)}"
    for i in range(NPL-1): a(PL(i) + f"\ns_sleep {OPT['slg']}")
    a(f"K3_poll:\ns_add_u32 s64, s64, 1\ns_cmp_gt_u32 s64, {SPIN}\ns_cbranch_scc1 K3_pb")
    for i in range(NPL):
        a(PL((i+NPL-1) % NPL) + f"\ns_waitcnt vmcnt({NPL-1})\nv_cmp_gt_u32 vcc, s22, v{BUF+i}\ns_cbranch_vccz K3_pb\ns_sleep {OPT['slg']}")
    a("s_branch K3_poll\nK3_pb:")
    X = AOP+1; AR = (14, 18, 2); B1 = (22, 23, T1)
    a(f"K3_px:\ns_mov_b64 exec, -1\nv_lshlrev_b32 v{T0}, 1, v0")
    for r in range(3): a(f"s_add_u32 s{53+r}, s{66+r}, s39")
    a(f"K3_pA:\nv_lshlrev_b32 v{X}, 2, v0")
    for r in range(3): a(f"buffer_load_dwordx4 v[{AR[r]}:{AR[r]+3}], v{X}, s[8:11], s{53+r} offen {LSC(2)}")
    a("K3_pB:")
    for r in range(3): a(f"buffer_load_dwordx2 v[{8+2*r}:{9+2*r}], v{T0}, s[8:11], s{53+r} offen offset:1024 {LSC(2)}")
    a("s_cmp_eq_u32 s21, 7\ns_cbranch_scc0 K3_p6")
    for r in range(3): a(f"buffer_load_dword v{B1[r]}, v0, s[8:11], s{53+r} offen offset:1536 {LSC(2)}")
    a("K3_p6:")
    if OPT['px']:
        def chk(rs, first=True):
            for i, r in enumerate(rs): a(f"v_xor_b32 v{X}, s62, v{r}" if (first and i == 0) else f"v_bitop3_b32 v{X}, v{X}, v{r}, s62 bitop3:0xf6")
        a("s_cmp_eq_u32 s35, 2\ns_cbranch_scc1 K3_pD\ns_waitcnt vmcnt(0)\ns_cmp_eq_u32 s35, 1\ns_cbranch_scc1 K3_pC")
        chk(list(range(14, 22)) + [2, 3, 4, 5])
        a(f"v_and_b32 v{X}, 1, v{X}\nv_cmp_ne_u32 vcc, 0, v{X}\ns_cbranch_vccz K3_pE\ns_add_u32 s64, s64, 1\ns_cmp_gt_u32 s64, {SPIN}\ns_cbranch_scc1 K3_pD\ns_sleep {OPT['slp']}\ns_branch K3_pA\nK3_pE:\ns_mov_b32 s35, 1\nK3_pC:")
        chk(range(8, 14)); a("s_cmp_eq_u32 s21, 7\ns_cbranch_scc0 K3_p7"); chk(B1, False); a("K3_p7:")
        a(f"v_and_b32 v{X}, 1, v{X}\nv_cmp_ne_u32 vcc, 0, v{X}\ns_cbranch_vccz K3_pD\ns_add_u32 s64, s64, 1\ns_cmp_gt_u32 s64, {SPIN}\ns_cbranch_scc1 K3_pD\ns_sleep {OPT['slp']}\ns_branch K3_pB")
    a("K3_pD:"); a.st(10 if False else 7)
    a(f"s_lshl_b32 s52, s22, 4\nv_mov_b32 v{T0}, {L3_CNT}\ns_mov_b64 exec, 1\nK3_aw:\nds_read_b32 v{X}, v{T0}\ns_waitcnt lgkmcnt(0)\nv_readfirstlane_b32 s53, v{X}\ns_cmp_ge_u32 s53, s52\ns_cbranch_scc1 K3_ad\ns_add_u32 s64, s64, 1\ns_cmp_gt_u32 s64, {SPIN}\ns_cbranch_scc1 K3_ad\ns_sleep {OPT['sll']}\ns_branch K3_aw\nK3_ad:\ns_mov_b64 exec, -1"); a.st(6)
    a("s_mov_b32 m0, s60")
    for i in range(6): a(f"ds_write_addtid_b32 v{GK+i} offset:{TB+i*256}")
    a(f"s_cmp_eq_u32 s21, 7\ns_cbranch_scc0 K3_w6\nds_write_addtid_b32 v{GK+6} offset:{TB+1536}\ns_waitcnt vmcnt(0)")
    for r in range(3): a(f"s_mov_b32 m0, s{66+r}\nds_write_addtid_b32 v{B1[r]} offset:{TB+1536}")
    a("K3_w6:")
    for r in range(3):
        a(f"s_mov_b32 m0, s{66+r}\ns_waitcnt vmcnt({5-r})")
        for i in range(4): a(f"ds_write_addtid_b32 v{AR[r]+i} offset:{TB+i*256}")
    for r in range(3):
        a(f"s_mov_b32 m0, s{66+r}\ns_waitcnt vmcnt({2-r})")
        for i in range(2): a(f"ds_write_addtid_b32 v{8+2*r+i} offset:{TB+1024+i*256}")
    a(f"v_mov_b32 v{X}, v{AOP}")
    for i in range(4): a(f"v_mov_b32 v{ACC+i}, 0")
    a(f"s_add_u32 s22, s22, 1\ns_waitcnt vmcnt(0) lgkmcnt(0)"); a.st(8); a("s_barrier"); a.st(9)
    a("s_branch K3_hop")
    a("K3_fin:")
    a("s_mov_b32 s38, s61"); tok(0); tok(1); tok(2); a.st_out(2, 8, 's19', 10)
    a("K3_end:\ns_endpgm")
    a.end(name, 128, 102)

import sched
L4_E = 131072; L4_SCR = L4_E + 8192; L4_SIZE = L4_SCR + 4096
TK = 16; QQ = 48; AL = 64; TA = 76; WF = 80; NWF = 2; IB = 88; SV = (100, 101); AC = 104; PK = 136; SS = 152; ZS = 160; ZD = 164; OO = 168; CT = 232; VM = 238; PA = 240; RL = 244; EA = (248, 96); PM = (252, 254)
EPS = f2u(1e-5); I128 = f2u(1/128.); LOG2E = f2u(math.log2(math.e))
def k4(a):
    assert OPT['sel'] and not OPT['fin']
    global VM
    if OPT['sel']: VM = 10
    name = 'att_kernel'
    a.launch(name, 256, 256, L4_SIZE)
    a.begin(name)
    W8 = sched.Waits(); sched.VMEM_LAT = OPT['vl']; sched.STRETCH = OPT['str']/100; sched.QLAT = OPT['ql']; sched.TH = OPT['th']; sched.EDF = OPT['edf']
    L = []
    def o(text, R=(), W=(), rr=(), pri=0):
        for t in text.split('\n'):
            x = sched.Op(t, R, W, pri); x.r |= {('v', r) for r in rr}; L.append(x)
    def flush(do_sched):
        ops = sched.schedule(L, True) if do_sched else list(L)
        for t in W8.emit(ops): a(t)
        L.clear()
    a("s_cmp_ge_u32 s2, 256\ns_cbranch_scc1 K4_end")
    a.st_init()
    a("s_load_dwordx2 s[4:5], s[0:1], 88\ns_load_dwordx2 s[6:7], s[0:1], 72")
    a("v_lshrrev_b32 v4, 6, v0\nv_and_b32 v0, 63, v0\nv_readfirstlane_b32 s19, v4\nv_lshlrev_b32 v2, 4, v0")
    a("v_lshrrev_b32 v5, 3, v0\nv_and_b32 v6, 7, v0\nv_xor_b32 v6, v6, v5\ns_lshl_b32 s3, s19, 1\nv_xor_b32 v6, s3, v6\nv_lshlrev_b32 v6, 4, v6\nv_lshl_add_u32 v103, v5, 7, v6\nv_xor_b32 v12, 16, v103")
    a("s_mul_i32 s20, s2, 3\ns_lshl_b32 s44, s19, 14")
    a(f"v_lshrrev_b32 v5, 5, v0\nv_bfe_u32 v6, v0, 3, 1\nv_xor_b32 v6, v6, v5\nv_lshlrev_b32 v3, 3, v5\nv_lshl_add_u32 v102, v6, 2, v3\nv_add_u32 v102, {WS_SINV-WS_PERM}, v102")
    if OPT['fin']: a("v_and_b32 v3, 3, v0\nv_lshlrev_b32 v3, 2, v3")
    a("s_waitcnt lgkmcnt(0)")
    a.srd(8, 4, WS_SIZE); a.srd(12, 6, N*256)
    a(f"s_mov_b32 s3, {WS_WFR+WFR_SW}\ns_buffer_load_dword s24, s[8:11], s3")
    QS = lambda g: 52 + g
    def tdma(t, R=()):
        b = t & 1
        o(f"s_mul_i32 s21, s{60+t}, {TOS}\ns_add_u32 s21, s21, s44\ns_add_u32 s21, s21, {WS_TOK}")
        for x in range(0 if (t > 0 and OPT['exp'] & 64) else 4):
            if x: o("s_add_u32 s21, s21, 4096")
            o(f"s_add_u32 m0, s44, {b*65536 + 4096*x}")
            for y in range(4): o(f"buffer_load_dwordx4 {'v103' if x < 2 else 'v12'}, s[8:11], s21 offen offset:{y*1024}{NT(1)} lds", W=[f'dma{t}_{x}{y}', 'q'], R=R, pri=OPT['dp'])
    DM = lambda t: [f'dma{t}_{x}{y}' for x in range(4) for y in range(4)]
    def small(g):
        o(f"s_lshl_b32 s23, s{QS(g)}, 4\ns_add_u32 s23, s23, {WS_PERM}" + ("\ns_add_u32 s23, s23, s59" if g == 6 else ""))
        o(f"buffer_load_dword v{SV[g&1]}, v102, s[8:11], s23 offen", pri=2000)
        o(f"buffer_load_dword v{PM[g&1]}, v3, s[8:11], s23 offen" if OPT['fin'] else f"buffer_load_dwordx2 v[{PM[g&1]}:{PM[g&1]+1}], v3, s[8:11], s23 offen", pri=2000)
    def wdma(lo, hi, tag):
        for i in range(lo, hi):
            o(f"s_add_u32 m0, s25, {4096*i}\ns_add_u32 s27, s26, {4096*i}"); o("buffer_load_dwordx4 v2, s[8:11], s27 offen lds", W=[tag + str(i), 'q'])
    for t in range(3): a(f"s_add_u32 s{60+t}, s20, {t}")
    for g in range(6): a(f"s_lshl_b32 s3, s{60+g//2}, 3\ns_add_u32 s3, s3, s19\ns_add_u32 s{QS(g)}, s3, {4*(g&1)}")
    a(f"s_lshr_b32 s58, s2, 1\ns_add_u32 s58, s58, 6144\ns_lshr_b32 s63, s58, 3\ns_and_b32 s3, s2, 3\ns_cmp_eq_u32 s19, s3\ns_cselect_b32 s31, 1, 0")
    a("s_xor_b32 s49, s58, s19\ns_and_b32 s49, s49, 7\ns_lshl_b32 s49, s49, 4\ns_and_b32 s59, s2, 1\ns_lshl_b32 s59, s59, 2\ns_or_b32 s49, s49, s59")
    a(f"s_lshl_b32 s25, s19, 10\ns_add_u32 s26, s25, {WS_WFR}\ns_add_u32 s25, s25, 0x10000")
    WO_ = [16, 2, 3, 4, 5, 6, 7]; np_ = OPT['npre']
    wdma(0, 2, 'w'); tdma(0); small(0)
    for i in WO_[:np_]: wdma(i, i+1, 'w')
    flush(False)
    a("v_and_b32 v4, 7, v0\nv_lshrrev_b32 v7, 4, v0\nv_xor_b32 v1, v4, v7\nv_xor_b32 v1, s19, v1\nv_lshlrev_b32 v1, 4, v1\nv_lshl_add_u32 v1, v4, 13, v1\nv_lshl_add_u32 v1, v7, 7, v1\nv_and_or_b32 v1, v0, 8, v1")
    a(f"v_cmp_eq_u32 vcc, 0, v6\nv_subrev_u32 v238, 1, v6")
    a("v_and_b32 v8, 1, v0\nv_lshlrev_b32 v8, 4, v8\nv_mov_b32 v9, 0x3f80\nv_lshlrev_b32 v9, v8, v9\nv_bfe_u32 v8, v0, 1, 1\nv_bfe_u32 v10, v0, 3, 1\nv_bfe_u32 v11, v0, 2, 1")
    for y in range(2):
        a(f"v_xor_b32 v13, {y}, v10\nv_lshl_or_b32 v13, v13, 1, v8\nv_or_b32 v14, {2*y}, v11\nv_cmp_eq_u32 s[40:41], v14, v7\nv_cndmask_b32 v14, 0, v9, s[40:41]")
        for d in range(4): a(f"v_cmp_eq_u32 s[40:41], {d}, v13\nv_cndmask_b32 v{IB+4*y+d}, 0, v14, s[40:41]")
    a(f"s_lshl_b32 s25, s19, 10\ns_add_u32 s25, s25, {L4_SCR}")
    a("v_lshl_add_u32 v9, v7, 4, s25\nv_lshl_add_u32 v8, v6, 6, v9")
    a("v_lshl_add_u32 v4, v4, 2, s25\nv_lshl_add_u32 v4, v5, 5, v4\nv_lshl_add_u32 v4, v6, 6, v4")
    if OPT['gram']:
        a("v_and_b32 v11, 3, v0\nv_cmp_eq_u32 s[32:33], 1, v11\nv_cmp_eq_u32 s[34:35], 2, v11\nv_cmp_eq_u32 s[36:37], 3, v11\nv_bfe_u32 v11, v0, 2, 2\nv_cmp_eq_u32 s[38:39], v11, v7")
    if OPT['sel']:
        a("v_and_b32 v11, 3, v0\nv_cmp_eq_u32 s[40:41], v11, v7\nv_mov_b32 v13, 0x3f80\nv_cndmask_b32 v13, 0, v13, s[40:41]\nv_bfe_u32 v11, v0, 3, 1\nv_bfe_u32 v14, v0, 2, 1\nv_lshl_or_b32 v11, v14, 1, v11")
        for d in range(4): a(f"v_cmp_eq_u32 s[40:41], {d}, v11\nv_cndmask_b32 v{CT+d}, 0, v13, s[40:41]\nv_lshlrev_b32 v{CT+4+d}, 16, v{CT+d}")
        a("v_and_b32 v11, 1, v7\nv_and_b32 v13, 15, v0\nv_subrev_u32 v10, 1, v6")
    if OPT['fin']:
        a("v_and_b32 v14, 15, v0\nv_lshlrev_b32 v2, 1, v5\nv_cmp_eq_u32 s[42:43], v14, v2\nv_or_b32 v2, 1, v2\nv_cmp_eq_u32 s[50:51], v14, v2\nv_lshlrev_b32 v2, 4, v0")
    if not OPT['sel']: a("v_and_b32 v11, 1, v7\nv_and_b32 v10, 7, v0\nv_lshlrev_b32 v13, 2, v11\nv_xor_b32 v10, v10, v13\nv_xor_b32 v10, s19, v10\nv_lshlrev_b32 v10, 4, v10\nv_and_b32 v13, 15, v0\nv_lshl_add_u32 v10, v13, 7, v10\nv_lshl_add_u32 v10, v11, 15, v10\nv_add_u32 v10, v10, v3")
    if OPT['fin']: a("v_lshlrev_b32 v7, 4, v7\nv_cmp_lt_u32 s[40:41], 3, v13\nv_bfrev_b32 v11, 1\nv_cndmask_b32 v11, 0, v11, s[40:41]\nv_or_b32 v7, v7, v11")
    else: a("v_lshlrev_b32 v7, 2, v13\nv_lshl_add_u32 v7, v11, 7, v7")
    a(f"v_add_u32 v15, {L4_E}, v2\ns_mov_b32 s48, 0xffff0000\nv_add_u32 v0, 0x10000, v2")
    a(f"s_mov_b32 s28, {I128}\ns_mov_b32 s29, {EPS}\ns_mov_b32 s30, {LOG2E}")
    a("s_waitcnt lgkmcnt(0)")
    a.st(1)
    for t in W8.drain(DM(0)): a(t)
    a.st(2); a("s_barrier"); a.st(3)
    if OPT['exp'] & 4096: a("s_cmp_ge_u32 s19, 1\ns_cbranch_scc1 K4_fin")
    ring = [0]
    ROR = f"row_ror:8 {DPPF}"
    CLAST = [] if OPT['sel'] else [OO+32+28+3, OO+32+28+2, OO+32+28+1]
    def group(g, last):
        T = lambda j, s: f"v[{TK+16*j+4*s}:{TK+16*j+4*s+3}]"
        R4 = lambda b: f"v[{b}:{b+3}]"
        sv = SV[g & 1]; pm = PM[g & 1]; t = g >> 1; LB = [f'tile{t}']; xa = (t & 1)*65536 + (64 if g & 1 else 0)
        JS = (0,) if g == 6 else (0, 1)
        def W(f):
            r = 4*f
            if g == 0:
                if f == 32: o("s_barrier", R=[f'w{i}' for i in range(8, 16)], W=['wb', 'bar'])
                o(f"ds_read_b128 a[{r}:{r+3}], v0 offset:{f*1024}", R=['wb'] if f >= 32 else ['wa'] if f >= 8 else [])
                if f == 63:
                    o("s_barrier", W=['wfree', 'bar']); L[-1].r |= {('a', x) for x in range(256)}
                    tdma(1, ['wfree'])
            return f"a[{r}:{r+3}]"
        if g in (2, 4):
            o("s_barrier", R=DM(t), W=LB + ['bar'], rr=CLAST + list(range(TK, TK+32)))
            tdma(t+1, LB)
        if g == 6: o("v_xor_b32 v1, s49, v1" + ("" if OPT['sel'] else "\nv_xor_b32 v10, s49, v10")); xa = 65536
        for x in range(2*len(JS)): o(f"v_xor_b32 v{TA+x}, {xa ^ ((x & 1)*576) ^ ((x >> 1)*4)}, v1")
        for s_ in range(4):
            for j in JS:
                for b in range(2): o(f"ds_read2st64_b32 v[{TK+16*j+4*s_+2*b}:{TK+16*j+4*s_+2*b+1}], v{TA+2*j+b} offset0:{8*s_} offset1:{8*s_+4}", R=LB)
        if g < last: small(g+1)
        o(f"v_lshl_add_u32 v{pm}, v{pm}, 8, v7" + ("" if OPT['fin'] else f"\nv_lshl_add_u32 v{pm+1}, v{pm+1}, 8, v7"))
        acc = lambda p, j, hh: AC + 16*(p & 1) + 8*j + 4*hh
        def chains(p):
            for hh in range(2):
                for s_ in range(4):
                    w = W(8*p + 4*hh + s_)
                    for j in JS:
                        c = R4(acc(p, j, hh)); ab = f"{w}, {T(j, s_)}" if p < 4 else f"{T(j, s_)}, {w}"
                        o(f"v_mfma_f32_16x16x32_bf16 {c}, {ab}, {'0' if s_ == 0 else c}")
        def pack(p):
            for j in JS:
                for d in range(4): o(f"v_cvt_pk_bf16_f32 v{PK+8*(p&1)+4*j+d}, v{acc(p, j, 0)+2*d}, v{acc(p, j, 0)+2*d+1}")
        def smf(p):
            for j in JS: o(f"v_mfma_f32_16x16x32_bf16 {R4(SS+4*j)}, {R4(PK+8*(p&1)+4*j)}, {T(j, p)}, {'0' if p == 0 else R4(SS+4*j)}")
        O = lambda j, J: OO + 32*j + 4*J
        def cinit():
            if OPT['sel']: return
            for r in range(4): o(f"v_xor_b32 v{TA+r}, {xa ^ (r*8192 + r*16)}, v10")
            for B in range(4):
                for r in range(4):
                    c = CT + 2*((4*B + r) % 3)
                    o(f"ds_read_b64 v[{c}:{c+1}], v{TA+r} offset:{B*2048}", R=LB)
                    for j in JS: o(f"v_lshlrev_b32 v{O(j, 2*B)+r}, 16, v{c+j}\nv_and_b32 v{O(j, 2*B+1)+r}, s48, v{c+j}")
        def pz(B):
            for j in JS:
                for hh in range(2):
                    z = PK + 8*(B & 1) + 4*j + 2*hh
                    o(f"v_mfma_f32_16x16x16_bf16 {R4(O(j, 2*B+hh))}, v[{PA+2*j}:{PA+2*j+1}], v[{z}:{z+1}], {R4(O(j, 2*B+hh))}")
        def sel(B):
            if not OPT['sel']: return
            for j in JS:
                for hh in range(2): o(f"v_mfma_f32_16x16x32_bf16 {R4(O(j, 2*B+hh))}, {T(j, B)}, {R4(CT+4*hh)}, 0")
        def sq(B):
            for j in JS:
                for hh in range(2):
                    for r in range(4):
                        x = O(j, 2*B+hh)+r
                        o(f"v_mul_f32 v{QQ+4*j+r}, v{x}, v{x}" if B == 0 and hh == 0 else f"v_fmac_f32 v{QQ+4*j+r}, v{x}, v{x}")
            if OPT['fin']:
                for hh in range(2):
                    for d in range(4): x = O(d >> 1, 2*B+hh) + 2*(d & 1); o(f"v_cvt_pk_bf16_f32 v{O(0, 2*B+hh)+d}, v{x}, v{x+1}")
        chains(0)
        D = AC + 16
        if OPT['gram']:
            for s_ in range(4):
                for j in JS: o(f"v_mfma_f32_16x16x32_bf16 {R4(D+4*j)}, {T(j, s_)}, {T(j, s_)}, {'0' if s_ == 0 else R4(D+4*j)}")
        for u in range(0 if OPT['gram'] else 16*len(JS)): d = D + 2*(u >> 4) + (u & 1); o(f"v_dot2_f32_bf16 v{d}, v{TK+u}, v{TK+u}, {'0' if (u & 15) < 2 else f'v{d}'}")
        if g == 0: o("s_barrier", R=[f'w{i}' for i in WO_], W=['wa', 'bar'], rr=[AC+12, D, D+1, D+2, D+3])
        for s_ in range(4):
            r = WF + 4*(ring[0] % NWF); ring[0] += 1
            o(f"ds_read_b128 {R4(r)}, v15 offset:{s_*1024}", R=['wa'])
            for j in JS: o(f"v_mfma_f32_16x16x32_bf16 {R4(EA[j])}, {R4(r)}, {T(j, s_)}, {'0' if s_ == 0 else R4(EA[j])}")
        E = EA[0]
        for r in range(4): o(f"v_cndmask_b32_dpp v{E+r}, v{EA[1]+r}, v{E+r}, vcc {ROR}")
        if OPT['gram']:
            for j in JS:
                x = D+4*j
                for r in range(1, 4): o(f"v_cndmask_b32 v{x}, v{x}, v{x+r}, s[{30+2*r}:{31+2*r}]")
            o(f"v_cndmask_b32 v11, 0, v{D}, s[38:39]\nv_cndmask_b32 v2, 0, v{D}, s[38:39]\nv_cndmask_b32 v{D+2}, 0, v{D+4}, s[38:39]")
        else: o(f"v_add_f32 v11, v{D}, v{D+1}\nv_add_f32 v{D+2}, v{D+2}, v{D+3}\nv_mov_b32 v2, v11")
        o(f"v_mov_b32_dpp v11, v{D+2} row_ror:8 row_mask:0xf bank_mask:0xc\nv_mov_b32_dpp v2, v{D+2} row_ror:8 row_mask:0xf bank_mask:0x3")
        o(f"v_permlane32_swap_b32 v11, v2\nv_add_f32 v11, v11, v2\nv_mov_b32 v2, v11\nv_permlane16_swap_b32 v11, v2\nv_add_f32 v11, v11, v2\nv_mul_f32 v2, s28, v{E}\nv_mul_f32 v2, v2, v2\nv_fma_f32 v11, v11, s28, -v2")
        o(f"v_mul_f32 v2, v{sv}, v{sv}\nv_max_f32 v11, 0, v11\nv_fma_f32 v11, v11, v2, s29\nv_rsq_f32 v11, v11\nv_mul_f32 v11, v11, v{sv}")
        o("ds_write_b32 v4, v11", W=['sa']); o(f"ds_write_b32 v4, v{E+2} offset:128\nds_write_b32 v4, v{E+3} offset:256", W=['sb'])
        o(f"ds_read_b128 {R4(RL)}, v8", R=['sa'])
        o(f"ds_read_b128 {R4(ZS)}, v8 offset:128\nds_read_b128 {R4(ZD)}, v8 offset:256", R=['sb'])
        cinit()
        pack(0); smf(0)
        for p in range(1, 4): chains(p); pack(p); smf(p)
        chains(4); pack(4); sel(0); sel(1); chains(5); pack(5); sel(2); sel(3)
        X = SS
        for r in range(4): o(f"v_cndmask_b32_dpp v{X+r}, v{SS+4+r}, v{X+r}, vcc {ROR}")
        for r in range(4): o(f"v_mul_f32 v{X+r}, v{X+r}, v{RL+r}")
        t0, t1 = X+4, X+5
        o(f"v_max3_f32 v{t0}, v{X}, v{X+1}, v{X+2}\nv_max_f32 v{t0}, v{t0}, v{X+3}\nv_mov_b32 v{t1}, v{t0}\nv_permlane16_swap_b32 v{t0}, v{t1}\nv_max_f32 v{t0}, v{t0}, v{t1}\nv_mul_f32 v{t0}, v{t0}, v11")
        for r in range(4): o(f"v_fma_f32 v{X+r}, v{X+r}, v11, -v{t0}")
        for r in range(4): o(f"v_exp_f32 v{X+r}, v{X+r}")
        o(f"v_add_f32 v{t0}, v{X}, v{X+1}\nv_add_f32 v{t1}, v{X+2}, v{X+3}\nv_add_f32 v{t0}, v{t0}, v{t1}\nv_mov_b32 v{t1}, v{t0}\nv_permlane16_swap_b32 v{t0}, v{t1}\nv_add_f32 v{t0}, v{t0}, v{t1}\nv_mul_f32 v{t0}, v{t0}, v{sv}\nv_rcp_f32 v{t0}, v{t0}")
        for r in range(4): o(f"v_mul_f32 v{X+r}, v{X+r}, v{RL+r}")
        for r in range(4): o(f"v_mul_f32 v{X+r}, v{X+r}, v{t0}")
        o(f"v_cvt_pk_bf16_f32 v{X+6}, v{X}, v{X+1}\nv_cvt_pk_bf16_f32 v{X+7}, v{X+2}, v{X+3}")
        for d in range(2): o(f"v_and_b32 v{PA+d}, v{X+6+d}, v{VM}" + ("" if g == 6 else f"\nv_and_b32_dpp v{PA+2+d}, v{X+6+d}, v{VM} {ROR}"))
        o(f"v_mul_f32 v13, v{X}, v{ZS}\nv_mul_f32 v14, v{X}, v{ZD}")
        for r in range(1, 4): o(f"v_fmac_f32 v13, v{X+r}, v{ZS+r}\nv_fmac_f32 v14, v{X+r}, v{ZD+r}")
        o(f"v_permlane16_swap_b32 v13, v14\nv_add_f32 v13, v13, v14\nv_mov_b32 v14, v13\nv_permlane16_swap_b32 v13, v14\nv_add_f32 v13, v13, v{E}\nv_add_f32 v14, v14, v{E+1}")
        pz(0); sq(0)
        chains(6); pz(1); sq(1); pack(6)
        chains(7); pz(2); sq(2); pack(7)
        pz(3); sq(3)
        for d in range(4): o(f"v_cvt_pk_bf16_f32 v{AL+d}, v{QQ+2*d}, v{QQ+2*d+1}" if d < 2*len(JS) else f"v_mov_b32 v{AL+d}, 0")
        for y in range(2):
            x = AL+4+4*y
            o(f"v_mfma_f32_16x16x32_bf16 {R4(x)}, {R4(AL)}, {R4(IB+4*y)}, 0", pri=-OPT['lq'])
            o(f"v_add_f32 v{x}, v{x}, v{x+1}\nv_add_f32 v{x+2}, v{x+2}, v{x+3}\nv_add_f32 v{x}, v{x}, v{x+2}")
        o(f"v_permlane32_swap_b32 v{AL+4}, v{AL+8}\nv_add_f32 v5, v{AL+4}, v{AL+8}\nv_mov_b32 v{AL+8}, v5\nv_permlane16_swap_b32 v5, v{AL+8}\nv_add_f32 v5, v5, v{AL+8}")
        o(f"v_mul_f32 v13, s28, v13\nv_fma_f32 v14, -v13, s24, v14\nv_mul_f32 v13, v13, v13\nv_mul_f32 v14, s30, v14\nv_mul_f32 v6, v{sv}, v{sv}\nv_mul_f32 v14, v14, v{sv}")
        o("v_fma_f32 v5, v5, s28, -v13\nv_max_f32 v5, 0, v5\nv_fma_f32 v5, v5, v6, s29\nv_rsq_f32 v5, v5\nv_mul_f32 v5, v5, v14")
        o(f"v_max_f32_dpp v6, v5, v5 quad_perm:[1,0,3,2] {DPPF}\nv_max_f32_dpp v6, v6, v6 quad_perm:[2,3,0,1] {DPPF}\nv_max_f32_dpp v6, v6, v6 row_half_mirror {DPPF}")
        o("v_sub_f32 v5, v5, v6\nv_exp_f32 v5, v5")
        o(f"v_add_f32_dpp v6, v5, v5 quad_perm:[1,0,3,2] {DPPF}\nv_add_f32_dpp v6, v6, v6 quad_perm:[2,3,0,1] {DPPF}\nv_add_f32_dpp v6, v6, v6 row_half_mirror {DPPF}")
        o(f"v_rcp_f32 v6, v6\nv_mul_f32 v5, v5, v{sv}\nv_mul_f32 v5, v5, v6")
        o("ds_write_b32 v4, v5 offset:512", W=['sd'])
        for j in JS: o(f"ds_read_b128 {R4(AL+4*j)}, v9 offset:{512+64*j}", R=['sd'])
        OSC = ('', ' nt', ' sc1', ' sc0 sc1', ' sc1 nt')[OPT['osc']]
        if OPT['fin']:
            for d in range(4): o(f"v_cvt_pk_bf16_f32 v{AL+8+d}, v{AL+2*d}, v{AL+2*d+1}\nv_cndmask_b32 v{AL+8+d}, 0, v{AL+8+d}, {'s[42:43]' if d < 2 else 's[50:51]'}")
            for B in range(4):
                for hh in range(2): o(f"v_mfma_f32_16x16x32_bf16 {R4(QQ+8*(B&1)+4*hh)}, {R4(O(0, 2*B+hh))}, {R4(AL+8)}, 0", pri=-OPT['lf'])
                x = O(1, 2*B)
                for r in range(4): o(f"v_cvt_pk_bf16_f32 v{x+r}, v{QQ+8*(B&1)+r}, v{QQ+8*(B&1)+4+r}")
                o(f"buffer_store_dwordx4 {R4(x)}, v{pm}, s[12:15], 0 offen offset:{64*B}{OSC}")
        for j in JS:
            for J in (0, 4, 1, 5, 2, 6, 3, 7):
                x = QQ + 8*j + J
                o(f"v_mul_f32 v{x}, v{AL+4*j}, v{O(j, J)}")
                for r in range(1, 4): o(f"v_fmac_f32 v{x}, v{AL+4*j+r}, v{O(j, J)+r}")
                if J >= 4:
                    o(f"v_permlane16_swap_b32 v{x-4}, v{x}\nv_add_f32 v{x-4}, v{x-4}, v{x}")
                    if J & 1: o(f"v_cvt_pk_bf16_f32 v{x}, v{x-5}, v{x-4}\nbuffer_store_dword v{x}, v{pm+j}, s[12:15], 0 offen offset:{64*((J-4)>>1)}{('', ' nt', ' sc1', ' sc0 sc1', ' sc1 nt')[OPT['osc']]}")
    a(f"s_lshl_b32 s25, s19, 10\ns_add_u32 s25, s25, 0x10000")
    for i in WO_[np_:]:
        wdma(i, i+1, 'w'); L[-1].w.discard(('p', 'q')); L[-1].bias = L[-2].bias = L[-3].bias = 5000
    wdma(8, 16, 'w')
    for g in range(6): group(g, 6)
    n6 = len(L)
    o("s_barrier", R=DM(3), W=['tile3', 'bar'], rr=CLAST + list(range(TK, TK+32)))
    group(6, 6)
    for x in L[n6:]: x.extra = True
    for x in L[n6+1:]: x.r.add(('p', 'tile3'))
    ops = sched.schedule(L, True); L.clear()
    cut = min(i for i, x in enumerate(ops) if getattr(x, 'extra', False))
    nb = 3
    for t in W8.emit(ops[:cut+1]):
        if t == 's_barrier' and OPT['stamp'] in (1, 2): a.st(nb); a(t); a.st(13); nb += 1
        else: a(t)
    a("s_cmp_eq_u32 s31, 0\ns_cbranch_scc0 K4_x")
    import copy
    W9 = copy.deepcopy(W8)
    for t in W8.emit([x for x in ops[cut+1:] if not getattr(x, 'extra', False)]): a(t)
    a.st(9); a("s_branch K4_fin\nK4_x:")
    for t in W9.emit(ops[cut+1:]): a(t)
    a.st(10)
    a("K4_fin:"); a.st_out(3, 8, 's19', 10)
    a("K4_end:\ns_endpgm")
    a.end(name, 512, 102, 256)

def k5(a):
    name = 'dbg_kernel'
    a.launch(name, 1, 1024, 4096); a.begin(name)
    a("s_cmp_ge_u32 s2, 1\ns_cbranch_scc1 K5_end\ns_load_dwordx2 s[4:5], s[0:1], 88\ns_load_dwordx2 s[6:7], s[0:1], 72\ns_waitcnt lgkmcnt(0)")
    a.srd(8, 4, WS_SIZE); a.srd(12, 6, N*256)
    a("v_mov_b32 v20, 0\nv_lshlrev_b32 v21, 2, v0\nv_mov_b32 v22, -1\nv_cmp_gt_u32 vcc, 4, v0\nv_cndmask_b32 v22, v20, v22, vcc\nds_write_b32 v21, v22\ns_waitcnt lgkmcnt(0)\ns_barrier")
    for x, (kid, nwg, lw) in enumerate(((0, 454, 3), (2, 256, 4), (3, 256, 2))):
        for i in range(4):
            a(f"v_add_u32 v1, {1024*i}, v0\nv_lshrrev_b32 v2, {lw}, v1\nv_and_b32 v3, {(1 << lw)-1}, v1\nv_lshlrev_b32 v4, 10, v2\nv_lshl_add_u32 v4, v3, 6, v4\nv_cmp_gt_u32 vcc, {nwg}, v2\ns_and_saveexec_b64 s[20:21], vcc\ns_cbranch_execz K5_s{x}{i}")
            a(f"s_mov_b32 s3, {WS_STAMP + kid*0x80000}\nbuffer_load_dwordx2 v[6:7], v4, s[8:11], s3 offen\ns_waitcnt vmcnt(0)\nds_min_u32 v20, v6 offset:{4*x}\nds_max_u32 v20, v7 offset:{16+4*x}\nK5_s{x}{i}:\ns_mov_b64 exec, s[20:21]")
    a("s_waitcnt lgkmcnt(0)\ns_barrier\nds_read_b128 v[8:11], v20\nds_read_b128 v[12:15], v20 offset:16\ns_waitcnt lgkmcnt(0)")
    a("v_sub_u32 v16, v12, v8\nv_sub_u32 v17, v9, v12\nv_sub_u32 v18, v13, v9\nv_sub_u32 v19, v10, v13\nv_sub_u32 v23, v14, v10\ns_mov_b64 exec, 1")
    a(f"v_cmp_gt_u32 vcc, {OPT['dg']}, v17\ns_cbranch_vccz K5_end\nv_cmp_lt_u32 vcc, {OPT['dk']}, v16\ns_cbranch_vccz K5_end")
    for i, (r, sh) in enumerate(((16, 2), (17, 2), (18, 5), (18, 0), (19, 2), (23, 4), (23, 0))):
        a(f"v_lshrrev_b32 v24, {sh}, v{r}")
        if sh == 0: a(f"v_and_b32 v24, {31 if r == 18 else 15}, v24")
        a(f"v_cvt_f32_u32 v24, v24\nbuffer_store_short_d16_hi v24, v20, s[12:15], 0 offen offset:{2*i}")
    a("K5_end:\ns_endpgm")
    a.end(name, 32, 32)

def build(ks, path, pre=''):
    a = K()
    for k in ks: k(a)
    open(path, 'w').write(a.text(pre))

if __name__ == '__main__':
    for x in sys.argv[1:]:
        k, v = x.split('='); OPT[k] = int(v)
    ref = open('standalone__hybrid_graph_tf_nagphormer__graph.s.ref').read().split('\n')
    pre = '\n'.join(l for l in ref if l.startswith(';') and 'launch' not in l and 'grid=' not in l) + '\n'
    build([k1, k3, k4] + ([k5] if OPT['dbg'] else []), 'stage.s', pre)
```

```python
import sys, math, struct
from asmlib import Asm
import hazard

N = 25000; NP = 25088; E = 400000; WIN = 128; NWIN = 196; NLEV = 392; QLEV = 98; QN = 6272
NCH = 250; CH = 1600
ZB = 195*128
WS_FLAGS = 0xC0000; FGS = 17*128; WS_NEWID = 0x10000; WS_PERM = 0x20000; WS_DISP = 0x40000; WS_TQ = 0x60000; WS_LOC = 0x64000; WS_IRR = 0x78000; WS_SINV = 0xA0000; WS_PM = 0x3D00000; WS_WDN = 0xE4000
WS_WFR = 0x80000; WS_PART = 0x100000; WS_PARTB = 0x440000; WS_IDX = 0x780000; WS_G = 0xB00000; RS = 57344; WS_TOK = 0x3E00000
GS = NP*4
TOS = 65536 + 128
PWS = 16384 + 128
KS = NP*256
WS_SIZE = 0x10000000
WFR_E = 65536; WFR_SW = 73728
SD = "dst_sel:DWORD dst_unused:UNUSED_PAD src0_sel:DWORD"
DPPF = "row_mask:0xf bank_mask:0xf"
SLACK = 2
OPT = dict(stamp=0, exp=0, tal=20, tbe=0, prio=2, wprio=0, slg=2, sll=2, tok=1, tsc=2, wb=2, gprio=1, ls=1, tlb=0, wt=1, vl=1500, str=140, dp=0, ql=100, npl=1, px=0, slp=1, cpf=4, slow=0, la=4, npre=7, slw=2, isc=0, tp=2, wbw=0, wb6=0, lnt=2, pnt=0, nt=0, osc=2, frz=0, gw=3, iw=0, pw=0, xp=3, xr=3, th=0, edf=200, sel=1, gram=1, fin=0, lq=300, lf=0, fr=99, dbg=0, dg=320, dk=430, d3=0, d4=0, k1o=0, top=0, pd=0, wds=5)
WS_STAMP = 0x7A00000

WT = lambda b: (' sc1' if OPT['wt'] & b else '') + (' sc0' if OPT['wt'] & b and OPT['wt'] & 8 else '') + (' nt' if OPT['wt'] & (b << 4) else '')
NT = lambda b: ' nt' if OPT['nt'] & b else ''
class K(Asm):
    def __init__(self):
        super().__init__(); self.uid = 0
    def lab(self, s='L'):
        self.uid += 1; return f"{s}_{self.uid}"
    def begin(self, name):
        self.kernel(name); self.k0 = len(self.lines)
    def end(self, name, vgpr, sgpr=102, accum=None):
        body, n = hazard.fix(self.lines[self.k0:])
        self.lines[self.k0:] = body
        print(f"{name}: {len(body)} lines, {n} nop states", file=sys.stderr)
        self.kd(name, vgpr, sgpr, accum)
    def st_init(self):
        if not OPT['stamp']: return
        self("s_memrealtime s[84:85]" if OPT['stamp'] != 2 else "s_memtime s[84:85]")
        if OPT['stamp'] == 3:
            self("s_waitcnt lgkmcnt(0)\ns_mov_b32 s70, s84"); return
        for i in range(1, 14): self(f"s_mov_b32 s{70+i}, 0")
        self("s_waitcnt lgkmcnt(0)\ns_mov_b32 s70, s84\ns_mov_b32 s86, s84")
    def st(self, i):
        if not OPT['stamp'] or OPT['stamp'] == 3: return
        if OPT['stamp'] == 5 and i < 20: return
        if i >= 20:
            if OPT['stamp'] != 5: return
            i -= 19
        if OPT['stamp'] == 4:
            if i in (3, 9, 4, 7):
                l = self.lab('ST')
                if OPT['frz'] and i != 3: self(f"s_cmp_gt_u32 s22, {OPT['frz'] + (1 if i == 9 else 0)}\ns_cbranch_scc1 {l}")
                self("s_memrealtime s[84:85]")
                for k in range(71, 83): self(f"s_mov_b32 s{k}, s{k+1}")
                self("s_waitcnt lgkmcnt(0)\ns_sub_u32 s83, s84, s86\ns_mov_b32 s86, s84\n" + l + ":")
            return
        self(f"{'s_memrealtime' if OPT['stamp'] == 1 else 's_memtime'} s[84:85]\ns_waitcnt lgkmcnt(0)\ns_sub_u32 s87, s84, s86\ns_mov_b32 s86, s84\ns_add_u32 s{70+i}, s{70+i}, s87")
    def st_out(self, kid, srd, swave, vt):
        if not OPT['stamp']: return
        self(f"s_lshl_b32 s87, s2, 4\ns_add_u32 s87, s87, {swave}\ns_lshl_b32 s87, s87, 6\ns_add_u32 s87, s87, {WS_STAMP + kid*0x80000}\ns_mov_b64 exec, 1\nv_mov_b32 v{vt+1}, 0")
        if OPT['stamp'] == 3: self("s_memrealtime s[84:85]\ns_waitcnt lgkmcnt(0)\ns_mov_b32 s71, s84")
        for i in range(2 if OPT['stamp'] == 3 else 14): self(f"v_mov_b32 v{vt}, s{70+i}\nbuffer_store_dword v{vt}, v{vt+1}, s[{srd}:{srd+3}], s87 offen offset:{4*i}")
    def codepf(self, first, last, lane4, vt, sp, vd=None):
        l = self.lab('PF')
        self(f"s_getpc_b64 s[{sp}:{sp+1}]\n{l}:\ns_add_u32 s{sp}, s{sp}, {first}-{l}\ns_addc_u32 s{sp+1}, s{sp+1}, 0\nv_lshlrev_b32 v{vt}, 5, v{lane4}\ns_mov_b32 s{sp+2}, 0")
        self(f"{l}_l:\nv_cmp_gt_u32 vcc, {last}-{first}, v{vt}\ns_and_b64 exec, exec, vcc\ns_cbranch_execz {l}_e\nglobal_load_dword v{vd or vt+1}, v{vt}, s[{sp}:{sp+1}]\nv_add_u32 v{vt}, 8192, v{vt}\ns_branch {l}_l\n{l}_e:\ns_mov_b64 exec, -1")
    def srd(self, d, base, nbytes):
        if nbytes == WS_SIZE and OPT['top']:
            off = OPT['top'] << 20
            self(f"s_add_u32 s{d}, s{base}, {off}\ns_addc_u32 s{d+1}, s{base+1}, 0\ns_and_b32 s{d+1}, s{d+1}, 0xffff\ns_mov_b32 s{d+2}, {nbytes-off}\ns_mov_b32 s{d+3}, 0x20000")
        else: super().srd(d, base, nbytes)
    def scan_incl(self, v):
        for s in (1, 2, 4, 8): self(f"v_add_u32_dpp v{v}, v{v}, v{v} row_shr:{s} {DPPF} bound_ctrl:0")
        self(f"v_add_u32_dpp v{v}, v{v}, v{v} row_bcast:15 row_mask:0xa bank_mask:0xf")
        self(f"v_add_u32_dpp v{v}, v{v}, v{v} row_bcast:31 row_mask:0xc bank_mask:0xf")
    def red63(self, op, v):
        for s in (1, 2, 4, 8): self(f"{op}_dpp v{v}, v{v}, v{v} row_shr:{s} {DPPF} bound_ctrl:0")
        self(f"{op}_dpp v{v}, v{v}, v{v} row_bcast:15 row_mask:0xa bank_mask:0xf")
        self(f"{op}_dpp v{v}, v{v}, v{v} row_bcast:31 row_mask:0xc bank_mask:0xf")

SWAPS = ((0, 85), (6, 91), (12, 95))
def levelpos(a, sw, d0, d1):
    t, u = d1+1, d1+2
    a(f"s_mul_i32 s{t}, s{sw}, 1338\ns_lshr_b32 s{t}, s{t}, 16\ns_mul_i32 s{t}, s{t}, 98\ns_lshl_b32 s{d0}, s{sw}, 1\ns_sub_u32 s{u}, s{d0}, s{t}")
    a(f"s_mov_b32 s{d0}, s{u}\ns_add_u32 s{d1}, s{u}, 1")
    for x, y in SWAPS:
        a(f"s_cmp_eq_u32 s{u}, {x}\ns_cselect_b32 s{d0}, {y}, s{d0}\ns_cmp_eq_u32 s{u}, {y-1}\ns_cselect_b32 s{d1}, {x}, s{d1}")
    a(f"s_add_u32 s{d0}, s{d0}, s{t}\ns_add_u32 s{d1}, s{d1}, s{t}")
def k1(a):
    name = 'p1_kernel'
    a.launch(name, NCH + NWIN + 8, 512, 40960)
    a.begin(name)
    a(f"s_cmp_ge_u32 s2, {NCH+NWIN+8}\ns_cbranch_scc1 K1_end")
    if OPT['k1o']: a(f"s_add_u32 s3, s2, {NCH}\ns_sub_u32 s2, s2, {NWIN+8}\ns_cselect_b32 s2, s3, s2")
    a.st_init()
    a("s_load_dwordx4 s[4:7], s[0:1], 0\ns_load_dwordx4 s[8:11], s[0:1], 16\ns_load_dwordx2 s[14:15], s[0:1], 88")
    a("v_lshlrev_b32 v1, 2, v0\nv_mov_b32 v2, 0\nv_mov_b32 v24, 1\nv_lshrrev_b32 v3, 6, v0\nv_and_b32 v25, 63, v0\nv_readfirstlane_b32 s37, v3")
    a(f"s_cmp_ge_u32 s2, {NCH+NWIN}\ns_cbranch_scc1 K1_mm\ns_cmp_ge_u32 s2, {NCH}\ns_cbranch_scc1 K1_win")
    a(f"v_lshlrev_b32 v3, 4, v0\ns_mul_i32 s38, s2, {CH*4}\ns_waitcnt lgkmcnt(0)")
    a.srd(16, 6, E*4); a.srd(20, 8, E*4); a.srd(28, 14, WS_SIZE)
    a("s_cmp_ge_u32 s37, 7\ns_cbranch_scc1 K1_nl\nv_cmp_gt_u32 vcc, 400, v0\ns_and_saveexec_b64 s[34:35], vcc")
    a(f"buffer_load_dwordx4 v[4:7], v3, s[16:19], s38 offen{NT(2)}\nbuffer_load_dwordx4 v[8:11], v3, s[20:23], s38 offen{NT(2)}\ns_mov_b64 exec, s[34:35]\nK1_nl:")
    a(f"s_cmp_lg_u32 s2, 64\ns_cbranch_scc1 K1_noy\ns_cmp_ge_u32 s37, 4\ns_cbranch_scc1 K1_noy\ns_mov_b32 s3, {WS_WDN}\nv_lshlrev_b32 v16, {OPT['wds']}, v0\nbuffer_store_dword v2, v16, s[28:31], s3 offen\nK1_noy:")
    a("s_cmp_ge_u32 s2, 64\ns_cbranch_scc1 K1_noz\ns_cmp_ge_u32 s37, 3\ns_cbranch_scc1 K1_noz")
    a(f"s_mul_i32 s3, s2, {FGS}\ns_add_u32 s3, s3, {WS_FLAGS}\nv_lshrrev_b32 v16, 3, v0\nv_min_u32 v16, 16, v16\nv_lshlrev_b32 v16, 7, v16\nv_and_b32 v17, 7, v0\nv_lshl_add_u32 v16, v17, 2, v16\nbuffer_store_dword v2, v16, s[28:31], s3 offen\nK1_noz:")
    if OPT['iw']:
        a(f"s_cmp_eq_u32 s37, 7\ns_cbranch_scc0 K1_niw\ns_cmp_ge_u32 s2, 192\ns_cbranch_scc1 K1_niw\ns_mul_i32 s3, s2, 21846\ns_lshr_b32 s3, s3, 16\ns_mul_i32 s40, s3, 3\ns_sub_u32 s40, s2, s40\ns_mul_i32 s3, s3, {RS}\ns_lshl_b32 s40, s40, 13\ns_add_u32 s3, s3, s40\ns_add_u32 s3, s3, {WS_IDX}")
        a("v_lshlrev_b32 v29, 7, v25\nbuffer_load_dword v29, v29, s[28:31], s3 offen\nK1_niw:")
    if OPT['cpf'] & 1:
        a("s_cmp_eq_u32 s37, 7\ns_cbranch_scc0 K1_npf\ns_cmp_lt_u32 s2, 16\ns_cbranch_scc0 K1_npf\nv_lshlrev_b32 v28, 2, v25"); a.codepf('hop_kernel', 'K3_join', 28, 30, 52); a("K1_npf:")
    a("v_mov_b32 v12, -1\nv_mov_b32 v13, -1\nv_mov_b32 v14, -1\nv_mov_b32 v15, -1\nv_mov_b32 v26, 12544\nv_mov_b32 v27, 25088")
    a("ds_write_b128 v3, v[12:15] offset:1024\nds_write_b128 v3, v[12:15] offset:9216\nds_write_b128 v3, v[12:15] offset:17408")
    a("s_cmp_ge_u32 s37, 4\ns_cbranch_scc1 K1_nc\nds_write_b32 v1, v2\ns_cmp_ge_u32 s37, 1\ns_cbranch_scc1 K1_nc\nds_write_b128 v3, v[12:15] offset:25600\nK1_nc:")
    a("s_waitcnt lgkmcnt(0)\ns_barrier")
    a("s_cmp_ge_u32 s37, 7\ns_cbranch_scc1 K1_ns\nv_cmp_gt_u32 vcc, 400, v0\ns_and_saveexec_b64 s[34:35], vcc\ns_waitcnt vmcnt(0)")
    a.st(1)
    for i in range(4):
        a(f"v_lshrrev_b32 v{12+i}, 7, v{8+i}\nv_and_b32 v16, 127, v{8+i}\nv_lshl_or_b32 v{4+i}, v16, 16, v{4+i}\nv_lshlrev_b32 v16, 2, v{12+i}\nds_add_rtn_u32 v{8+i}, v16, v24")
    for i in range(4):
        a(f"s_waitcnt lgkmcnt(3)" if i == 0 else "s_waitcnt lgkmcnt(3)")
        a(f"v_and_b32 v16, 15, v{8+i}\nv_lshlrev_b32 v16, 2, v16\nv_lshl_add_u32 v16, v{12+i}, 6, v16\nv_lshrrev_b32 v17, 4, v{8+i}\nv_mad_u32_u24 v16, v17, s39, v16".replace("s39", "v26"))
        a(f"v_cmp_gt_u32 vcc, 32, v{8+i}\nv_cndmask_b32 v16, v27, v16, vcc\nds_write_b32 v16, v{4+i} offset:1024")
    a("s_mov_b64 exec, s[34:35]\nK1_ns:\ns_waitcnt lgkmcnt(0)\ns_barrier")
    a("s_and_b32 s3, s2, 7\ns_lshl_b32 s3, s3, 5\ns_lshr_b32 s39, s2, 3\ns_add_u32 s3, s3, s39\ns_lshl_b32 s3, s3, 6")
    a(f"s_add_u32 s39, s3, {WS_PART}\ns_add_u32 s40, s3, {WS_PARTB}")
    a("v_lshrrev_b32 v16, 2, v0\nv_and_b32 v17, 3, v0\nv_lshlrev_b32 v17, 4, v17\nv_mov_b32 v18, " + str(PWS) + "\nv_mad_u32_u24 v17, v16, v18, v17\nv_and_b32 v18, 0xfffffffc, v0")
    a("ds_read_b128 v[4:7], v3 offset:1024\nds_read_b128 v[8:11], v3 offset:9216\nds_read_b32 v19, v18\nds_read_b32 v20, v18 offset:512")
    a(f"v_add_u32 v21, {128*PWS}, v17\nv_cmp_gt_u32 vcc, {784-512}, v0\ns_mov_b64 s[42:43], vcc")
    a("s_waitcnt lgkmcnt(3)\nbuffer_store_dwordx4 v[4:7], v17, s[28:31], s39 offen" + WT(2) + "\ns_waitcnt lgkmcnt(0)")
    a("v_cndmask_b32 v20, 0, v20, s[42:43]\nv_max_u32 v22, v19, v20\ns_mov_b64 exec, s[42:43]\ns_cbranch_execz K1_n2")
    a("buffer_store_dwordx4 v[8:11], v21, s[28:31], s39 offen" + WT(2) + "\nK1_n2:\ns_mov_b64 exec, -1")
    a("v_cmp_le_u32 vcc, 16, v22\ns_cbranch_vccz K1_nb")
    a(f"ds_read_b128 v[4:7], v3 offset:{1024+12544}\nds_read_b128 v[8:11], v3 offset:{1024+12544+8192}\ns_waitcnt lgkmcnt(0)")
    a("v_cmp_le_u32 vcc, 16, v19\ns_mov_b64 exec, vcc\ns_cbranch_execz K1_b1\nbuffer_store_dwordx4 v[4:7], v17, s[28:31], s40 offen\nK1_b1:\ns_mov_b64 exec, -1")
    a("v_cmp_le_u32 vcc, 16, v20\ns_mov_b64 exec, vcc\ns_cbranch_execz K1_b2\nbuffer_store_dwordx4 v[8:11], v21, s[28:31], s40 offen\nK1_b2:\ns_mov_b64 exec, -1")
    a("K1_nb:")
    a(f"v_cmp_lt_u32 vcc, 32, v22\ns_cmp_lg_u64 vcc, 0\ns_cselect_b32 s3, 1, 0\nv_mov_b32 v4, s3\ns_lshr_b32 s39, s39, 1\ns_and_b32 s39, s39, 0x1fe0\ns_lshl_b32 s3, s37, 2\ns_add_u32 s39, s39, s3\ns_add_u32 s39, s39, {WS_IRR}")
    a("s_mov_b64 exec, 1\nbuffer_store_dword v4, v2, s[28:31], s39 offen")
    a.st(2); a.st_out(0, 28, 's37', 10); a("s_endpgm")
    B = 32768
    a("K1_win:")
    a(f"s_sub_u32 s36, s2, {NCH}\ns_lshl_b32 s38, s36, 7\ns_waitcnt lgkmcnt(0)")
    a.srd(16, 4, N*256); a.srd(24, 10, N*2); a.srd(28, 14, WS_SIZE)
    a("v_lshlrev_b32 v3, 4, v25\ns_lshl_b32 s39, s36, 15\ns_lshl_b32 s40, s37, 12\ns_add_u32 s39, s39, s40")
    a("v_add_u32 v5, s38, v0\nv_lshlrev_b32 v6, 1, v5\ns_cmp_ge_u32 s37, 2\ns_cbranch_scc1 K1_w0\nbuffer_load_ushort v4, v6, s[24:27], 0 offen" + NT(128) + "\nK1_w0:")
    for it in range(4): a(f"buffer_load_dwordx4 v[{32+4*it}:{35+4*it}], v3, s[16:19], s39 offen offset:{it*1024}{NT(2)}")
    a(f"ds_write_b32 v1, v2 offset:{B}")
    levelpos(a, 36, 44, 45)
    for d, x in ((50, 44), (53, 45)):
        a(f"s_sub_u32 s48, s{x}, s46\ns_mul_i32 s49, s48, 43\ns_lshr_b32 s49, s49, 8\ns_mul_i32 s49, s49, 6\ns_cmp_ge_u32 s48, 84\ns_cselect_b32 s49, 84, s49\ns_cmp_ge_u32 s48, 91\ns_cselect_b32 s49, 91, s49")
        a(f"s_sub_u32 s48, s48, s49\ns_cmp_ge_u32 s48, 4\ns_cselect_b32 s{d+1}, 1, 2\ns_cselect_b32 s{d+2}, 4, 0\ns_cmp_eq_u32 s48, 6\ns_cselect_b32 s{d+1}, 0, s{d+1}\ns_cselect_b32 s{d+2}, 6, s{d+2}")
        a(f"s_sub_u32 s48, s48, s{d+2}\ns_sub_u32 s{d}, s{x}, s48\ns_lshl_b32 s{d}, s{d}, 6\ns_add_u32 s{d}, s{d}, s48")
    a("s_lshl_b32 s44, s44, 6\ns_lshl_b32 s45, s45, 6\ns_sub_u32 s45, s45, 64\ns_waitcnt lgkmcnt(0)\ns_barrier\ns_cmp_ge_u32 s37, 2\ns_cbranch_scc1 K1_w1\ns_waitcnt vmcnt(4)"); a.st(4)
    a("v_lshlrev_b32 v4, 16, v4\nv_mov_b32 v23, 0x2b800000\nv_cmp_eq_f32 vcc, 0, v4\nv_cndmask_b32 v4, v4, v23, vcc\nv_mul_f32 v7, v4, v4\nv_rcp_f32 v7, v7\nv_rndne_f32 v7, v7\nv_cvt_u32_f32 v7, v7\nv_med3_u32 v7, v7, 1, 63")
    a(f"v_cmp_gt_u32 vcc, {N}, v5\nv_cndmask_b32 v7, 0, v7, vcc\nv_lshlrev_b32 v7, 2, v7\nds_add_rtn_u32 v8, v7, v24 offset:{B}\ns_waitcnt lgkmcnt(0)\nK1_w1:\ns_barrier")
    a("s_cmp_ge_u32 s37, 2\ns_cbranch_scc1 K1_w2")
    a(f"v_lshlrev_b32 v9, 2, v25\nds_read_b32 v20, v9 offset:{B}\ns_waitcnt lgkmcnt(0)\nv_mov_b32 v21, v20")
    a.scan_incl(21)
    a("v_sub_u32 v21, v21, v20\nds_bpermute_b32 v21, v7, v21\ns_waitcnt lgkmcnt(0)\nv_add_u32 v8, v8, v21")
    a(f"v_lshlrev_b32 v9, 2, v8\nds_write_b32 v1, v9 offset:{B+512}\nds_write_b32 v9, v4 offset:{B+1024}\nv_lshrrev_b32 v7, 2, v7\nv_sub_u32 v7, v7, v24 clamp\nds_write_b32 v9, v7 offset:{B+1536}")
    a("v_mov_b32 v10, s44\nv_mov_b32 v11, s45\nv_cmp_gt_u32 vcc, 64, v8\nv_cndmask_b32 v10, v11, v10, vcc\nv_add_u32 v10, v10, v8\nv_lshlrev_b32 v11, 2, v10")
    a(f"s_mov_b32 s3, {WS_NEWID}\nbuffer_store_short v10, v6, s[28:31], s3 offen\ns_mov_b32 s3, {WS_LOC}\nbuffer_store_short v8, v6, s[28:31], s3 offen")
    a("v_mov_b32 v14, s50\nv_mov_b32 v15, s53\nv_cndmask_b32 v14, v15, v14, vcc\nv_mov_b32 v15, s51\nv_mov_b32 v16, s54\nv_cndmask_b32 v15, v16, v15, vcc\nv_and_b32 v16, 63, v8\nv_lshlrev_b32 v16, v15, v16\nv_add_lshl_u32 v14, v14, v16, 2")
    a(f"s_mov_b32 s3, {WS_PERM}\nbuffer_store_dword v5, v14, s[28:31], s3 offen\nv_mul_f32 v12, v4, v4\nv_rcp_f32 v13, v4\ns_mov_b32 s3, {WS_DISP}\nbuffer_store_dword v12, v11, s[28:31], s3 offen\ns_mov_b32 s3, {WS_SINV}\nbuffer_store_dword v13, v14, s[28:31], s3 offen")
    a("s_waitcnt lgkmcnt(0)\nK1_w2:\ns_barrier")
    a.st(1)
    a(f"s_cmp_ge_u32 s37, 2\ns_cbranch_scc1 K1_nt\nds_read_b32 v6, v1 offset:{B+1536}\ns_waitcnt lgkmcnt(0)\nv_mov_b32 v7, v6")
    for sft in (1, 2, 4, 8): a(f"v_max_u32_dpp v6, v6, v6 row_shr:{sft} {DPPF} bound_ctrl:0\nv_add_u32_dpp v7, v7, v7 row_shr:{sft} {DPPF} bound_ctrl:0")
    for bc, m in ((15, '0xa'), (31, '0xc')): a(f"v_max_u32_dpp v6, v6, v6 row_bcast:{bc} row_mask:{m} bank_mask:0xf\nv_add_u32_dpp v7, v7, v7 row_bcast:{bc} row_mask:{m} bank_mask:0xf")
    a("v_readlane_b32 s40, v6, 63\nv_readlane_b32 s41, v7, 63")
    a(f"s_mul_i32 s41, s41, {OPT['tal']}\ns_lshr_b32 s41, s41, 10\ns_add_u32 s41, s41, {OPT['tbe']}\ns_max_u32 s41, s41, s40\ns_add_u32 s41, s41, 3\ns_lshr_b32 s41, s41, 2\ns_min_u32 s41, s41, 16\ns_max_u32 s41, s41, 1")
    a(f"s_add_u32 s3, s45, 64\ns_cmp_eq_u32 s37, 0\ns_cselect_b32 s3, s44, s3\ns_lshr_b32 s3, s3, 4\ns_add_u32 s3, s3, {WS_TQ}\nv_mov_b32 v6, s41\ns_mov_b64 exec, 1\nbuffer_store_dword v6, v2, s[28:31], s3 offen\ns_mov_b64 exec, -1\nK1_nt:")
    a("v_lshrrev_b32 v9, 4, v25\nv_lshlrev_b32 v9, 2, v9\ns_lshl_b32 s3, s37, 6\nv_add_u32 v9, s3, v9\nv_and_b32 v12, 15, v25\nv_lshlrev_b32 v13, 4, v12\nv_lshlrev_b32 v12, 11, v12")
    for it in range(4): a(f"ds_read_b32 v{16+it}, v9 offset:{B+512+16*it}")
    a(f"v_and_b32 v14, 31, v25\nv_lshlrev_b32 v15, 4, v14\nds_read_b128 v[28:31], v15 offset:{B+1024}")
    for it in range(4):
        a(f"s_waitcnt lgkmcnt({4 if it == 0 else 4+3})" if False else "")
    a("s_waitcnt lgkmcnt(0)")
    for it in range(4):
        a(f"v_xor_b32 v{16+it}, v{16+it}, v13\nv_add_u32 v{16+it}, v{16+it}, v12")
    a("s_cmp_ge_u32 s37, 2\ns_cbranch_scc1 K1_w3\ns_waitcnt vmcnt(6)\ns_branch K1_w4\nK1_w3:\ns_waitcnt vmcnt(0)\nK1_w4:"); a.st(5)
    for it in range(4):
        for i in range(4): a(f"ds_write_b32 v{16+it}, v{32+4*it+i} offset:{i*512}")
    a("v_lshrrev_b32 v20, 5, v25\ns_lshl_b32 s3, s37, 5\nv_xor_b32 v21, s3, v15\nv_lshl_add_u32 v21, v20, 9, v21\ns_lshl_b32 s3, s37, 12\nv_add_u32 v21, s3, v21\nv_xor_b32 v22, 16, v21")
    a("v_mov_b32 v10, s44\nv_mov_b32 v11, s45\nv_cmp_gt_u32 vcc, 16, v14\nv_cndmask_b32 v10, v11, v10, vcc\nv_lshl_add_u32 v10, v14, 2, v10")
    a(f"s_mov_b32 s3, {GS}\nv_mul_lo_u32 v20, v20, s3\nv_lshl_add_u32 v10, v10, 2, v20")
    a(f"s_mul_i32 s42, s37, {8*GS}\ns_add_u32 s42, s42, {WS_G}")
    a("s_waitcnt lgkmcnt(0)\ns_barrier")
    a.st(2)
    for j in range(4): a(f"ds_read_b128 v[{32+4*j}:{35+4*j}], v{21 if j < 2 else 22} offset:{j*1024}")
    for j in range(4):
        a(f"s_waitcnt lgkmcnt({3-j})")
        for i in range(4):
            a(f"v_lshlrev_b32 v4, 16, v{32+4*j+i}\nv_and_b32 v5, 0xffff0000, v{32+4*j+i}\nv_mul_f32 v4, v{28+i}, v4\nv_mul_f32 v5, v{28+i}, v5\nv_cvt_pk_bf16_f32 v{48+4*(j&1)+i}, v4, v5")
        a(f"buffer_store_dwordx4 v[{48+4*(j&1)}:{51+4*(j&1)}], v10, s[28:31], s42 offen{WT(1)}")
        if j < 3: a(f"s_add_u32 s42, s42, {2*GS}")
    a.st(3); a.st_out(0, 28, 's37', 10); a("s_endpgm")
    a(f"K1_mm:\ns_sub_u32 s36, s2, {NCH+NWIN}\ns_lshr_b32 s34, s36, 2\ns_and_b32 s35, s36, 3\ns_load_dwordx8 s[40:47], s[0:1], 32\ns_load_dwordx2 s[48:49], s[0:1], 64\nv_lshlrev_b32 v9, 4, v25\nv_lshlrev_b32 v10, 1, v0")
    a("v_lshrrev_b32 v5, 4, v25\nv_and_b32 v6, 15, v25\nv_xor_b32 v6, v6, v5\nv_lshlrev_b32 v6, 4, v6\nv_lshl_add_u32 v6, v5, 8, v6\nv_lshlrev_b32 v8, 4, v25\nv_and_b32 v3, 31, v25\nv_lshrrev_b32 v4, 5, v25")
    a("s_waitcnt lgkmcnt(0)\ns_cmp_eq_u32 s34, 0\ns_cselect_b32 s52, s40, s44\ns_cselect_b32 s53, s41, s45\ns_cselect_b32 s54, s42, s46\ns_cselect_b32 s55, s43, s47\ns_cselect_b64 s[56:57], -1, 0")
    a.srd(20, 52, 32768); a.srd(24, 54, 32768); a.srd(28, 14, WS_SIZE); a.srd(16, 48, 256)
    a("buffer_load_ushort v10, v10, s[16:19], 0 offen")
    a("s_and_b32 s39, s37, 3\ns_lshl_b32 s39, s39, 6\nv_xor_b32 v7, s39, v6\ns_lshl_b32 s39, s37, 10\ns_mov_b32 m0, s39\ns_lshl_b32 s38, s35, 13\ns_add_u32 s38, s38, s39\nbuffer_load_dwordx4 v7, s[20:23], s38 offen" + NT(256) + " lds")
    a("s_lshl_b32 s38, s37, 12\ns_add_u32 m0, s38, 8192")
    for i in range(4): a(f"v_xor_b32 v7, {64*i}, v6\nv_cndmask_b32 v7, v8, v7, s[56:57]\nbuffer_load_dwordx4 v7, s[24:27], s38 offen offset:{1024*i}{NT(256)} lds")
    a("s_and_b32 s39, s37, 3\ns_lshr_b32 s40, s37, 2\ns_lshl_b32 s41, s40, 7")
    a("v_and_b32 v5, 15, v3\nv_xor_b32 v5, v5, v4\nv_lshlrev_b32 v5, 4, v5\nv_lshl_add_u32 v5, v3, 8, v5\nv_xor_b32 v5, s41, v5\ns_lshl_b32 s42, s39, 13\ns_add_u32 s42, s42, 8192\nv_add_u32 v7, s42, v5")
    a("s_waitcnt vmcnt(0)\ns_barrier")
    for u in range(4): a(f"v_xor_b32 v8, {32*u}, v5\nds_read_b128 v[{16+4*u}:{19+4*u}], v8")
    a("s_cmp_eq_u32 s34, 0\ns_cbranch_scc0 K1_mb")
    for u in range(4): a(f"v_xor_b32 v8, {32*u}, v7\nds_read_b128 v[{32+4*u}:{35+4*u}], v8")
    a("s_branch K1_mc\nK1_mb:")
    a("v_lshlrev_b32 v6, 11, v4\nv_lshl_add_u32 v6, v3, 1, v6\ns_lshl_b32 s42, s39, 6\ns_lshl_b32 s43, s40, 14\ns_add_u32 s42, s42, s43\ns_add_u32 s42, s42, 8192\nv_add_u32 v6, s42, v6")
    for u in range(4):
        for t in range(8): a(f"ds_read_u16 v{(48 if t&1 else 32)+4*u+t//2}, v6 offset:{(16*u+t)*256}")
    a("s_waitcnt lgkmcnt(0)")
    for i in range(16): a(f"v_lshl_or_b32 v{32+i}, v{48+i}, 16, v{32+i}")
    a("K1_mc:\ns_waitcnt lgkmcnt(0)")
    for u in range(4): a(f"v_mfma_f32_32x32x16_bf16 v[48:63], v[{16+4*u}:{19+4*u}], v[{32+4*u}:{35+4*u}], {'0' if u == 0 else 'v[48:63]'}")
    a(f"s_lshl_b32 s42, s36, 15\ns_lshl_b32 s43, s39, 13\ns_add_u32 s42, s42, s43\ns_lshl_b32 s43, s40, 12\ns_add_u32 s42, s42, s43\ns_add_u32 s42, s42, {WS_PM}")
    a(f"s_mov_b32 s3, {WS_WFR+WFR_SW+256}\nv_lshlrev_b32 v10, 16, v10\ns_cmp_lg_u32 s36, 0\ns_cbranch_scc1 K1_nw\nbuffer_store_dword v10, v1, s[28:31], s3 offen\nK1_nw:")
    for i in range(4): a(f"buffer_store_dwordx4 v[{48+4*i}:{51+4*i}], v9, s[28:31], s42 offen offset:{1024*i}")
    a.st(3); a.st_out(0, 28, 's37', 10)
    a("K1_end:\ns_endpgm")
    a.end(name, 64, 102 if OPT['stamp'] else 64)

L2_CNT = 0; L2_LU = 512; L2_BU = 1024; L2_LOC = 2048; L2_IRR = 2304; L2_O = 2560; L2_L = L2_O + 16384; TB = QN*8 + 64; L2_NEW = TB
def k2_window(a):
    Ev, NS, ND = 20, 24, 28
    MK = lambda j: f"s[{40+2*j}:{41+2*j}]"
    a(f"v_lshlrev_b32 v3, 4, v0\ns_mul_i32 s34, s2, {PWS}\ns_add_u32 s65, s34, {WS_PART}\nbuffer_load_dwordx4 v[{Ev}:{Ev+3}], v3, s[28:31], s65 offen{NT(32)}")
    a(f"v_lshlrev_b32 v4, 3, v0\ns_mov_b32 s35, {WS_IRR}\nbuffer_load_dwordx2 v[6:7], v4, s[28:31], s35 offen")
    a("v_lshlrev_b32 v5, 4, v2")
    a(f"s_lshl_b32 s34, s33, 10\ns_add_u32 s35, s34, {WS_NEWID}\ns_add_u32 s34, s34, {L2_NEW}")
    for i in range(4):
        if i == 3: a("s_cmp_lg_u32 s33, 0\ns_cbranch_scc1 K2_nd")
        a(f"s_mov_b32 m0, s34\nbuffer_load_dwordx4 v5, s[28:31], s35 offen lds")
        if i < 3: a("s_add_u32 s34, s34, 16384\ns_add_u32 s35, s35, 16384")
    a(f"s_lshl_b32 s35, s2, 8\ns_add_u32 s35, s35, {WS_LOC}\ns_mov_b32 m0, {L2_LOC}\nv_lshlrev_b32 v8, 2, v2\nbuffer_load_dword v8, s[28:31], s35 offen lds")
    a("K2_nd:")
    a("v_lshlrev_b32 v8, 2, v0\nv_mov_b32 v10, 0\ns_cmp_ge_u32 s33, 8\ns_cbranch_scc1 K2_nz\ns_and_b32 s35, s33, 6\ns_cmp_eq_u32 s35, 2\ns_cbranch_scc1 K2_nz\ns_cmp_ge_u32 s33, 2\ns_cselect_b32 s35, -1, 0\nv_mov_b32 v9, s35\nds_write_b32 v8, v9\nds_write_b32 v10, v10 offset:" + str(L2_IRR) + "\nK2_nz:")
    a("v_bfe_u32 v9, v0, 2, 5\nv_lshrrev_b32 v11, 7, v0\nv_lshl_add_u32 v9, v9, 3, v11")
    a(f"v_cmp_gt_u32 vcc, {NCH}, v9\ns_mov_b64 s[38:39], vcc\nv_mov_b32 v12, 1\nv_mov_b32 v13, 0xfc\ns_mov_b32 s64, 0\ns_mov_b32 s66, {L2_L}\ns_mov_b32 s67, 0")
    levelpos(a, 2, 60, 61)
    a("s_cmp_lt_u32 s33, 8\ns_cselect_b32 s60, s60, s61\ns_sub_u32 s61, s60, s62\ns_mul_i32 s63, s61, 43\ns_lshr_b32 s63, s63, 8\ns_cmp_ge_u32 s61, 84\ns_cselect_b32 s63, 14, s63\ns_cmp_ge_u32 s61, 91\ns_cselect_b32 s63, 15, s63")
    a("s_mul_i32 s68, s63, 6\ns_cselect_b32 s68, 91, s68\ns_sub_u32 s69, s61, s68\ns_add_u32 s68, s68, s62")
    a(f"s_lshl_b32 s68, s68, 2\ns_add_u32 s68, s68, {WS_TQ}\ns_buffer_load_dwordx8 s[48:55], s[28:31], s68")
    a(f"s_mul_i32 s62, s62, 10700\ns_lshr_b32 s62, s62, 16\ns_add_u32 s62, s62, s63\ns_mul_i32 s68, s62, {RS}\ns_add_u32 s68, s68, {WS_IDX}")
    a("s_waitcnt lgkmcnt(0)")
    a("s_mov_b32 s56, 0\ns_and_b32 s57, s48, 0xffff")
    for i in range(6): a(f"s_cmp_gt_u32 s69, {i}\ns_cselect_b32 s58, s57, 0\ns_cselect_b32 s57, s{49+i}, s57\ns_add_u32 s56, s56, s58\ns_and_b32 s57, s57, 0xffff")
    a(f"s_and_b32 s58, s33, 7\ns_cbranch_scc1 K2_nlu\ns_lshl_b32 s58, s57, 2\ns_min_u32 s58, s58, 32\ns_lshl_b64 s[58:59], -1, s58\ns_not_b32 s58, s58\nv_mov_b32 v9, s58\ns_lshl_b32 s58, s33, 5\nv_lshl_add_u32 v8, v2, 2, s58\nds_write_b32 v8, v9 offset:{L2_LU}\nK2_nlu:")
    a("s_waitcnt vmcnt(0) lgkmcnt(0)\ns_barrier"); a.st(11); a.st(20)
    gwarm(a)
    if OPT['tp'] == 0: tabledma(a, 5, 'c', 2)
    a("v_or_b32 v6, v6, v7\nv_cmp_ne_u32 vcc, 0, v6\ns_and_b64 vcc, vcc, s[38:39]\ns_cbranch_vccz K2_reg\nds_write_b32 v10, v12 offset:" + str(L2_IRR) + "\nK2_reg:")
    a("K2_loop:\ns_mov_b64 exec, s[38:39]")
    for j in range(4): a(f"v_cmp_ne_u32 {MK(j)}, -1, v{Ev+j}")
    for j in range(4):
        a(f"s_mov_b64 exec, {MK(j)}")
        a(f"v_lshlrev_b32_sdwa v15, 1, v{Ev+j} {SD} src1_sel:WORD_0\nv_lshrrev_b32 v16, 15, v{Ev+j}")
        a(f"ds_read_u16 v{ND+j}, v16 offset:{L2_LOC}\nds_read_u16 v{NS+j}, v15 offset:{L2_NEW}")
    a("s_waitcnt lgkmcnt(0)"); a.st(21)
    for j in range(4):
        a(f"s_mov_b64 exec, {MK(j)}\nv_lshlrev_b32 v{ND+j}, 2, v{ND+j}\nds_add_rtn_u32 v{32+j}, v{ND+j}, v12 offset:{L2_CNT}")
        a(f"v_and_or_b32 v{36+j}, v{ND+j}, v13, s66\nv_lshrrev_b32 v16, 8, v{ND+j}\nv_lshl_add_u32 v{36+j}, v16, 13, v{36+j}")
    a("s_waitcnt lgkmcnt(0)")
    for j in range(4):
        a(f"s_mov_b64 exec, {MK(j)}")
        a(f"v_lshrrev_b32 v16, 1, v{32+j}\nv_lshl_add_u32 v15, v16, 8, v{36+j}\nv_and_b32 v16, 1, v{32+j}\nv_lshl_add_u32 v15, v16, 1, v15")
        a(f"v_cmp_gt_u32 vcc, 64, v{32+j}\ns_and_b64 exec, exec, vcc\nds_write_b16 v15, v{NS+j}")
    a(f"s_mov_b64 exec, -1\ns_cmp_lg_u32 s64, 0\ns_cbranch_scc1 K2_pa\nv_cndmask_b32 v15, 0, v12, {MK(3)}\ns_mov_b32 s64, 1")
    a(f"v_mov_b32_dpp v15, v15 quad_perm:[3,3,3,3] {DPPF}\nv_cmp_ne_u32 s[38:39], 0, v15\ns_cmp_eq_u64 s[38:39], 0\ns_cbranch_scc1 K2_pa")
    a(f"s_mov_b64 exec, s[38:39]\ns_add_u32 s65, s65, {WS_PARTB-WS_PART}\nbuffer_load_dwordx4 v[{Ev}:{Ev+3}], v3, s[28:31], s65 offen\ns_waitcnt vmcnt(0)\ns_branch K2_loop")
    a("K2_pa:\ns_waitcnt lgkmcnt(0)"); a.st(22); a("s_barrier"); a.st(12); a.st(23)
    if OPT['tp'] == 1: tabledma(a, 5, 'c', 2)
    a("s_mov_b32 s41, s57\ns_mov_b32 s61, s56\ns_lshr_b32 s34, s33, 3\ns_and_b32 s36, s33, 7\ns_lshl_b32 s35, s34, 8\nv_lshl_add_u32 v4, v2, 2, s35\nds_read_b32 v5, v4")
    a(f"s_lshl_b32 s37, s34, 13\ns_add_u32 s37, s37, {L2_L}\ns_lshr_b32 s46, s36, 1\ns_lshl_b32 s46, s46, 8\ns_and_b32 s47, s36, 1\ns_lshl_b32 s47, s47, 1\ns_add_u32 s46, s46, s47\ns_add_u32 s46, s46, s37\nv_lshl_add_u32 v16, v2, 2, s46")
    for t in range(4): a(f"ds_read_u16 v{20+t}, v16 offset:{t*1024}")
    a("s_lshl_b32 s42, s41, 2\ns_waitcnt lgkmcnt(4)\nv_cmp_lt_u32 vcc, s42, v5\ns_min_u32 s42, s42, 32\ns_lshl_b64 s[44:45], -1, s42\ns_not_b32 s44, s44")
    a("s_cbranch_vccz K2_ntq")
    a(f"ds_write_b32 v10, v12 offset:{L2_IRR}\nK2_ntq:")
    a("v_min_u32 v15, s42, v5\nv_subrev_u32 v15, s36, v15\nv_add_u32 v15, 7, v15\nv_lshrrev_b32 v15, 3, v15")
    a(f"s_sub_u32 s43, s42, {OPT['xr']}\ns_max_i32 s43, s43, 2\ns_bfm_b32 s45, s43, 0\ns_cmp_eq_u32 s43, 32\ns_cselect_b32 s45, -1, s45")
    a("s_lshl_b32 s46, s36, 2\nv_add_u32 v17, s46, v2\nv_and_b32 v17, 31, v17\nv_mul_u32_u24 v17, s43, v17\nv_lshrrev_b32 v17, 5, v17")
    a(f"s_lshl_b32 s46, s34, 9\ns_add_u32 s46, s46, {L2_BU}\nv_lshrrev_b32 v8, 5, v2\nv_lshlrev_b32 v8, 8, v8\nv_add_u32 v8, s46, v8")
    a(f"s_lshl_b32 s47, s34, 13\ns_add_u32 s47, s47, {L2_O}\nv_lshl_add_u32 v19, v2, 2, s47")
    a("v_mov_b32 v24, s44\nv_mov_b32 v26, -1\nv_mov_b32 v27, -1\nv_mov_b32 v41, 0x7c\ns_waitcnt lgkmcnt(0)")
    a("v_lshl_or_b32 v20, v21, 16, v20\nv_lshl_or_b32 v21, v23, 16, v22\nv_cmp_lt_u32 vcc, 0, v15")
    a.st(24)
    a("K2_rd:\ns_mov_b64 exec, vcc\ns_cbranch_execz K2_sd")
    a("v_and_b32 v28, v24, v26\nv_lshlrev_b32 v25, 2, v20\nv_and_b32 v31, s45, v28\nv_cmp_ne_u32 s[48:49], 0, v31\nv_cmp_ne_u32 s[52:53], 0, v28\nv_and_or_b32 v25, v25, v41, v8")
    a("v_cndmask_b32 v31, v28, v31, s[48:49]\nv_alignbit_b32 v31, v31, v31, v17\nv_ffbl_b32 v31, v31\nv_add_u32 v37, v31, v17\ns_cmp_ge_u32 s67, " + str(OPT['fr']) + "\ns_cselect_b64 s[56:57], -1, 0\ns_mov_b64 s[50:51], s[56:57]\ns_andn2_b64 s[54:55], exec, s[52:53]\ns_cbranch_scc0 K2_l1")
    a("s_mov_b64 exec, s[54:55]\nv_and_b32 v29, v24, v27\nv_cmp_eq_u32 s[50:51], 0, v29\nv_add_u32 v25, 128, v25\nv_cndmask_b32 v29, v29, v24, s[50:51]\nv_ffbh_u32 v29, v29\nv_sub_u32 v37, 31, v29\ns_or_b64 s[50:51], s[50:51], s[56:57]\ns_mov_b64 exec, vcc\nK2_l1:")
    a(f"v_lshlrev_b32 v34, v37, v12\nv_not_b32 v33, v34\nds_and_rtn_b32 v24, v4, v33 offset:{L2_LU}\nds_and_rtn_b32 v36, v25, v33\nv_and_b32 v37, 31, v37\nv_lshl_add_u32 v37, v37, 8, v19")
    a("s_waitcnt lgkmcnt(0)\nv_and_b32 v35, v24, v34\nv_and_b32 v38, v36, v34\nv_cndmask_b32 v39, v38, v34, s[50:51]\nv_and_b32 v39, v39, v35\nv_cmp_ne_u32 s[48:49], 0, v39")
    a(f"s_andn2_b64 exec, exec, s[48:49]\nds_or_b32 v4, v35 offset:{L2_LU}\nds_or_b32 v25, v38\nv_cndmask_b32 v26, v26, v36, s[52:53]\nv_cndmask_b32 v27, v36, v27, s[52:53]")
    a("s_mov_b64 exec, s[48:49]\nds_write_b16 v37, v20\nv_and_b32 v24, v24, v33\nv_alignbit_b32 v20, v21, v20, 16\nv_lshrrev_b32 v21, 16, v21\nv_mov_b64 v[26:27], -1\nv_subrev_u32 v15, 1, v15")
    a("s_mov_b64 exec, vcc\nv_cmp_lt_u32 vcc, 0, v15\ns_add_u32 s67, s67, 1\ns_cmp_lt_u32 s67, 4096\ns_cbranch_scc1 K2_rd")
    a(f"s_mov_b64 exec, -1\nds_write_b32 v10, v12 offset:{L2_IRR}")
    a("K2_sd:\ns_mov_b64 exec, -1")
    if OPT['tp'] >= 2: a("v_lshlrev_b32 v44, 4, v2"); tabledma(a, 44, 'c', 2 if OPT['tp'] == 2 else 3 if OPT['tp'] == 3 else 6)
    a("s_waitcnt lgkmcnt(0)"); a.st(25); a("s_barrier"); a.st(13); a.st(26)
    a("s_cmp_ge_u32 s36, s41\ns_cbranch_scc1 K2_end")
    a(f"s_lshl_b32 s46, s36, 10\nv_add_u32 v11, s46, v19\nv_and_b32 v18, 31, v2\nv_lshl_add_u32 v18, v18, 2, v8")
    a(f"ds_read_b32 v16, v4 offset:{L2_LU}\nds_read_b32 v18, v18\nds_read2st64_b32 v[20:21], v11 offset0:0 offset1:1\nds_read2st64_b32 v[22:23], v11 offset0:2 offset1:3")
    a(f"s_lshl_b32 s47, s36, 9\ns_add_u32 s37, s37, s47\nv_lshl_add_u32 v12, v2, 2, s37\nds_read2st64_b32 v[24:25], v12 offset0:16 offset1:17")
    a(f"v_mov_b32 v13, 0xffff\nv_lshlrev_b32 v15, 4, v2\ns_add_u32 s61, s61, s36\ns_lshr_b32 s39, s61, 1\ns_lshl_b32 s39, s39, 10\ns_and_b32 s61, s61, 1\ns_lshl_b32 s61, s61, 3\ns_add_u32 s39, s39, s61\ns_add_u32 s39, s39, s68\ns_lshl_b32 s38, s36, 2\ns_mov_b32 s50, -1\ns_mov_b32 s51, 0\ns_waitcnt lgkmcnt(3)")
    a("v_lshrrev_b32 v16, s38, v16\nv_lshrrev_b32 v18, s38, v18")
    for t in range(4):
        a(f"v_and_b32 v26, {1 << t}, v18\nv_cmp_ne_u32 s[{52+2*t}:{53+2*t}], 0, v26")
    for r in range(52, 60): a(f"s_ff1_i32_b32 s{r}, s{r}\ns_and_b32 s{r}, s{r}, 31\ns_add_u32 s{r}, s{r}, {ZB}")
    a("s_waitcnt lgkmcnt(0)")
    for t in range(4):
        a(f"v_mov_b32 v26, s{52+2*t}\nv_mov_b32 v27, s{53+2*t}\nv_cndmask_b32 v26, v27, v26, s[50:51]\nv_and_b32 v27, {1 << t}, v16\nv_cmp_ne_u32 vcc, 0, v27\nv_cndmask_b32 v{20+t}, v{20+t}, v26, vcc")
    a("v_and_b32 v20, v13, v20\nv_and_b32 v22, v13, v22\nv_lshl_or_b32 v20, v21, 17, v20\nv_lshl_or_b32 v21, v23, 17, v22\nbuffer_store_dwordx2 v[20:21], v15, s[28:31], s39 offen sc1")
    a("s_add_u32 s36, s36, 8\ns_cmp_ge_u32 s36, s41\ns_cbranch_scc1 K2_end")
    a(f"v_mov_b32 v43, -1\ns_add_u32 s38, s38, 32\nv_subrev_u32 v5, s38, v5\nv_mov_b32 v14, {ZB | (ZB << 16)}")
    for h in range(2):
        a(f"v_cmp_lt_i32 vcc, {2*h}, v5\nv_cndmask_b32 v26, 0, v13, vcc\nv_cmp_lt_i32 vcc, {2*h+1}, v5\nv_cndmask_b32 v26, v26, v40, vcc".replace("v40", "v43"))
        a(f"v_bfi_b32 v{24+h}, v26, v{24+h}, v14\nv_and_b32 v26, 0xffff0000, v{24+h}\nv_add_u32 v{24+h}, v{24+h}, v26")
    a("s_add_u32 s39, s39, 4096\nbuffer_store_dwordx2 v[24:25], v15, s[28:31], s39 offen sc1\ns_branch K2_end")

def f2u(x): return struct.unpack('<I', struct.pack('<f', x))[0]
SCL = f2u(math.log2(math.e)/math.sqrt(128.0))
FO = lambda i: 16*(i & 1) + 8*(i >> 1)
def k2_weights(a):
    S0 = 66048
    a(f"s_sub_u32 s34, s2, {NWIN}")
    a(f"s_lshl_b32 s39, s34, 17\ns_lshl_b32 s60, s33, 13\ns_add_u32 s39, s39, s60\ns_add_u32 s39, s39, {WS_PM}\ns_add_u32 s60, s39, 4096\nv_lshlrev_b32 v8, 4, v2")
    for i in range(4): a(f"buffer_load_dwordx4 v[{80+4*i}:{83+4*i}], v8, s[28:31], s39 offen offset:{1024*i}\nbuffer_load_dwordx4 v[{96+4*i}:{99+4*i}], v8, s[28:31], s60 offen offset:{1024*i}")
    a("s_lshr_b32 s35, s33, 2\ns_and_b32 s36, s33, 3\nv_and_b32 v3, 31, v2\nv_lshrrev_b32 v4, 5, v2")
    a(f"v_lshlrev_b32 v7, 2, v0\ns_cmp_ge_u32 s33, 8\ns_cbranch_scc1 K2w_nw\ns_mov_b32 s3, {WS_WFR+WFR_SW+256}\nbuffer_load_dword v8, v7, s[28:31], s3 offen")
    a(f"v_add_u32 v7, {S0}, v7\ns_waitcnt vmcnt(0)\nds_write_b32 v7, v8\nK2w_nw:")
    a("s_waitcnt vmcnt(0) lgkmcnt(0)\ns_barrier")
    gwarm(a)
    for i in range(16): a(f"v_add_f32 v{80+i}, v{80+i}, v{96+i}")
    a(f"s_mul_i32 s39, s35, {32*516}\ns_lshl_b32 s60, s36, 7\ns_add_u32 s39, s39, s60\nv_mul_u32_u24 v6, {4*516}, v4\nv_lshl_add_u32 v6, v3, 2, v6\nv_add_u32 v6, s39, v6")
    a(f"s_add_u32 s60, s60, {S0}\nv_lshl_add_u32 v7, v3, 2, s60\nds_read_b32 v8, v7")
    for r in range(16): a(f"ds_write_b32 v6, v{80+r} offset:{(8*(r>>2)+(r&3))*516}")
    a("v_add_f32 v9, v80, v81")
    for r in range(2, 16): a(f"v_add_f32 v9, v9, v{80+r}")
    a("ds_add_f32 v7, v9 offset:1536\ns_waitcnt lgkmcnt(1)")
    for r in range(16): a(f"v_mul_f32 v{48+r}, v8, v{80+r}")
    for q in (80, 48):
        for i in range(8): a(f"v_add_f32_dpp v{q+i}, v{q+i}, v{q+i} row_ror:8 row_mask:0xf bank_mask:0x3")
        for i in range(8): a(f"v_add_f32_dpp v{q+i}, v{q+8+i}, v{q+8+i} row_ror:8 row_mask:0xf bank_mask:0xc")
        for i in range(4): a(f"v_add_f32_dpp v{q+i}, v{q+i}, v{q+i} row_half_mirror row_mask:0xf bank_mask:0x5")
        for i in range(4): a(f"v_add_f32_dpp v{q+i}, v{q+4+i}, v{q+4+i} row_half_mirror row_mask:0xf bank_mask:0xa")
        for i in range(4): a(f"v_add_f32_dpp v{q+i}, v{q+i}, v{q+i} quad_perm:[1,0,3,2] {DPPF}")
        for i in range(4): a(f"v_add_f32_dpp v{q+i}, v{q+i}, v{q+i} quad_perm:[2,3,0,1] {DPPF}")
        a(f"v_permlane16_swap_b32 v{q}, v{q+1}\nv_permlane16_swap_b32 v{q+2}, v{q+3}\nv_add_f32 v{q}, v{q}, v{q+1}\nv_add_f32 v{q+2}, v{q+2}, v{q+3}")
    a(f"v_bfe_u32 v10, v2, 2, 2\nv_lshlrev_b32 v10, 5, v10\nv_bfe_u32 v11, v2, 4, 1\nv_lshl_add_u32 v10, v11, 2, v10\nv_lshl_add_u32 v10, v4, 4, v10\ns_lshl_b32 s60, s35, 7\ns_add_u32 s60, s60, {S0}\nv_add_u32 v10, s60, v10")
    a("s_mov_b32 exec_lo, 0x11111111\ns_mov_b32 exec_hi, 0x11111111\nds_add_f32 v10, v80 offset:512\nds_add_f32 v10, v82 offset:520\nds_add_f32 v10, v48 offset:1024\nds_add_f32 v10, v50 offset:1032\ns_mov_b64 exec, -1")
    a("s_waitcnt lgkmcnt(0)"); a("s_barrier")
    a(f"v_lshlrev_b32 v5, 3, v2\nv_add_u32 v5, {S0}, v5\nds_read_b64 v[8:9], v5\nds_read_b64 v[10:11], v5 offset:512\nds_read_b64 v[12:13], v5 offset:1024\ns_waitcnt lgkmcnt(0)")
    a("v_add_f32 v8, v8, v9\nv_add_f32 v10, v10, v11\nv_add_f32 v12, v12, v13")
    for v in (8, 10, 12): a.red63('v_add_f32', v)
    a("v_readlane_b32 s60, v8, 63\nv_readlane_b32 s61, v10, 63\nv_readlane_b32 s62, v12, 63")
    a(f"s_mov_b32 s63, {f2u(1/128.)}\ns_mov_b32 s64, {f2u(-1/128.)}\ns_mov_b32 s65, {SCL}\nv_lshlrev_b32 v15, 4, v2")
    a(f"s_lshl_b32 s66, s33, 11\ns_lshl_b32 s67, s34, 15\ns_add_u32 s66, s66, s67\ns_add_u32 s66, s66, {WS_WFR}")
    a("s_lshr_b32 s35, s33, 1\ns_and_b32 s36, s33, 1\nv_and_b32 v3, 15, v2\nv_lshrrev_b32 v4, 4, v2")
    a("s_cmp_eq_u32 s34, 0\ns_cbranch_scc0 K2w_fb")
    a("v_and_b32 v5, 1, v3\nv_lshrrev_b32 v6, 2, v3\nv_lshl_or_b32 v5, v6, 1, v5\nv_bfe_u32 v6, v3, 1, 1\nv_lshl_or_b32 v5, v6, 4, v5")
    a("s_lshr_b32 s37, s35, 1\ns_lshl_b32 s37, s37, 5\ns_and_b32 s38, s35, 1\ns_lshl_b32 s38, s38, 3\ns_add_u32 s37, s37, s38\nv_add_u32 v5, s37, v5")
    a(f"v_lshlrev_b32 v7, 2, v5\nv_add_u32 v7, {S0}, v7\nds_read_b32 v14, v7 offset:512")
    a(f"s_lshl_b32 s37, s36, 8\nv_lshl_add_u32 v6, v4, 3, s37\nv_mul_u32_u24 v5, 516, v5\nv_add_u32 v5, v5, v6\nv_add_u32 v6, {S0+1536}, v6")
    for h in range(2):
        for i in range(4):
            a(f"ds_read2_b32 v[{16+16*h+2*i}:{17+16*h+2*i}], v5 offset0:{32*h+FO(i)} offset1:{32*h+FO(i)+1}")
            a(f"ds_read2_b32 v[{24+16*h+2*i}:{25+16*h+2*i}], v6 offset0:{32*h+FO(i)} offset1:{32*h+FO(i)+1}")
    a("v_mov_b32 v8, s61\nv_mul_f32 v8, s63, v8\ns_waitcnt lgkmcnt(0)\nv_sub_f32 v14, v8, v14\nv_mul_f32 v14, s63, v14")
    for h in range(2):
        for j in range(8):
            x = 16+16*h+j
            a(f"v_add_f32 v{x}, v{x}, v14\nv_fmac_f32 v{x}, s64, v{x+8}\nv_mul_f32 v{x}, s65, v{x}")
        for i in range(4): a(f"v_cvt_pk_bf16_f32 v{48+4*h+i}, v{16+16*h+2*i}, v{17+16*h+2*i}")
        a(f"buffer_store_dwordx4 v[{48+4*h}:{51+4*h}], v15, s[28:31], s66 offen offset:{1024*h}")
    a("s_branch K2w_end\nK2w_fb:")
    a("s_lshr_b32 s37, s35, 1\ns_lshl_b32 s37, s37, 7\ns_and_b32 s38, s35, 1\ns_lshl_b32 s38, s38, 2\ns_add_u32 s37, s37, s38\nv_lshl_add_u32 v5, v3, 3, s37")
    a(f"v_add_u32 v7, {S0+1536}, v5\nds_read_b32 v14, v7")
    a(f"s_mul_i32 s37, s36, {64*516}\nv_mul_u32_u24 v6, {2*516}, v4\nv_add3_u32 v5, v5, v6, s37")
    for h in range(2):
        for i in range(4):
            for c in range(2): a(f"ds_read_b32 v{16+8*h+2*i+c}, v5 offset:{(32*h+FO(i)+c)*516}")
    a("s_waitcnt lgkmcnt(0)")
    for h in range(2):
        for j in range(8): a(f"v_fmac_f32 v{16+8*h+j}, s64, v14")
        for i in range(4): a(f"v_cvt_pk_bf16_f32 v{48+4*h+i}, v{16+8*h+2*i}, v{17+8*h+2*i}")
        a(f"buffer_store_dwordx4 v[{48+4*h}:{51+4*h}], v15, s[28:31], s66 offen offset:{1024*h}")
    a("s_cmp_ge_u32 s33, 4\ns_cbranch_scc1 K2w_end")
    a("v_and_b32 v5, 3, v2\nv_max_u32 v7, 1, v5\nv_lshlrev_b32 v7, 9, v7\nv_lshl_add_u32 v7, v4, 3, v7")
    a(f"s_lshl_b32 s37, s33, 7\ns_add_u32 s37, s37, {S0-512}\nv_add_u32 v7, s37, v7")
    for i in range(4): a(f"ds_read2_b32 v[{16+2*i}:{17+2*i}], v7 offset0:{FO(i)} offset1:{FO(i)+1}")
    a("v_mov_b32 v8, s61\nv_mov_b32 v9, s62\nv_cmp_eq_u32 s[40:41], 2, v5\nv_cmp_eq_u32 s[42:43], 3, v5\nv_cmp_eq_u32 s[44:45], 0, v5")
    a("v_cndmask_b32 v8, 0, v8, s[40:41]\nv_cndmask_b32 v8, v8, v9, s[42:43]")
    a("s_waitcnt lgkmcnt(0)")
    for j in range(8): a(f"v_fmac_f32 v{16+j}, s64, v8\nv_cndmask_b32 v{16+j}, v{16+j}, 1.0, s[44:45]")
    for i in range(4): a(f"v_cvt_pk_bf16_f32 v{48+i}, v{16+2*i}, v{17+2*i}")
    a(f"s_lshl_b32 s37, s33, 10\ns_add_u32 s37, s37, {WS_WFR+WFR_E}\nbuffer_store_dwordx4 v[48:51], v15, s[28:31], s37 offen")
    a(f"v_mov_b32 v8, s60\ns_mov_b32 s37, {WS_WFR+WFR_SW}\ns_mov_b64 exec, 1\nbuffer_store_dword v8, v15, s[28:31], s37 offen")


NQ = 44; DEP = 2; NBUF = 3
QB = QN*4
L3_CNT = TB + GS; L3_SIZE = L3_CNT + 64
ACC, AOP, ADR, BUF, TMP, GK, DIS, IDX = 2, 6, 8, 12, 24, 26, 33, 40
SPIN = 1 << 20
OPT_PD = lambda: {0: (27, 18, 9), 1: (30, 14, 6), 2: (24, 12, 5), 3: (31, 22, 8)}[OPT['pd']]
LSC = lambda b: ('sc1', 'nt', 'sc1 nt', 'sc0 nt', 'sc0', '')[OPT['lnt'] if b == 2 else OPT['pnt']]
TSC = lambda: ('', ' nt', ' sc1', ' sc0 sc1', ' sc0', ' sc1 nt')[OPT['tsc']]
XP = 3
NL = NQ//2
def gwarm(a):
    if OPT['gw'] != 1: return
    a(f"s_mul_i32 s52, s18, {GS}\ns_mul_i32 s53, s16, {QB}\ns_add_u32 s52, s52, s53\ns_lshl_b32 s53, s20, 8\ns_add_u32 s52, s52, s53\ns_add_u32 s52, s52, {WS_G+KS}")
    a(f"v_lshlrev_b32 v126, 7, v2\ns_mov_b64 exec, 0x3fff\nbuffer_load_dword v127, v126, s[8:11], s52 offen\ns_mov_b64 exec, -1")
def tabledma(a, v16, sfx, part=3):
    base = lambda k: a(f"s_mul_i32 s53, s18, {GS}\ns_lshl_b32 s52, s19, 10\ns_add_u32 s53, s53, s52\ns_add_u32 s53, s53, {WS_G+k*1024}\ns_add_u32 s52, s52, {TB+k*1024}")
    def run(n):
        for i in range(n):
            if i == 3: a(f"s_cmp_ge_u32 s19, 2\ns_cbranch_scc1 K3_nt{sfx}")
            a(f"s_mov_b32 m0, s52\nbuffer_load_dwordx4 v{v16}, s[8:11], s53 offen{NT(16)} lds")
            if i < n-1: a("s_add_u32 s52, s52, 16384\ns_add_u32 s53, s53, 16384")
    if part & 2: base(50); run(3)
    if part & 1:
        base(0); run(4)
        a(f"K3_nt{sfx}:")
    if part in (2, 9): return
    a(f"s_mul_i32 s52, s16, 98\ns_add_u32 s52, s52, s20\ns_lshl_b32 s52, s52, 8\ns_add_u32 s52, s52, {WS_DISP}\nv_lshlrev_b32 v{v16}, 2, v2")
    for i in range(7): a(f"buffer_load_dword v{DIS+i}, v{v16}, s[8:11], s52 offen offset:{i*256}")
    a(f"v_mul_u32_u24 v{v16}, 24, v2\nv_mov_b32 v45, 364\nv_cmp_eq_u32 vcc, 15, v2\nv_cndmask_b32 v{v16}, v{v16}, v45, vcc\ns_mul_i32 s52, s16, 392\ns_add_u32 s52, s52, {WS_TQ}\ns_mov_b64 exec, 0xffff")
    a(f"buffer_load_dwordx4 v[120:123], v{v16}, s[8:11], s52 offen\nbuffer_load_dwordx3 v[124:126], v{v16}, s[8:11], s52 offen offset:16\ns_mov_b64 exec, -1")
def k3(a):
    global XP
    XP = OPT['xp']
    name = 'hop_kernel'
    a.launch(name, 256, 1024, L3_SIZE)
    a.begin(name)
    a("s_cmp_ge_u32 s2, 256\ns_cbranch_scc1 K3_end")
    a.st_init()
    a("s_load_dwordx2 s[4:5], s[0:1], 88")
    a("v_lshrrev_b32 v1, 6, v0\nv_and_b32 v2, 63, v0\nv_readfirstlane_b32 s19, v1")
    a("s_lshr_b32 s16, s2, 3\ns_and_b32 s16, s16, 3\ns_and_b32 s17, s2, 7\ns_lshl_b32 s17, s17, 3\ns_lshr_b32 s18, s2, 5\ns_or_b32 s18, s18, s17")
    a("s_mul_i32 s20, s19, 6\ns_cmp_eq_u32 s19, 15\ns_cselect_b32 s20, 91, s20\ns_cmp_ge_u32 s19, 14\ns_cselect_b32 s21, 7, 6\ns_mov_b32 s33, s19")
    a("s_waitcnt lgkmcnt(0)")
    a.srd(8, 4, WS_SIZE); a.srd(28, 4, WS_SIZE)
    def ids():
        a("s_getreg_b32 s50, hwreg(HW_REG_XCC_ID)\ns_and_b32 s50, s50, 0xff\ns_add_u32 s50, s50, 1")
        a(f"s_mul_i32 s51, s18, {FGS}\ns_add_u32 s51, s51, {WS_FLAGS}")
    a("s_cmp_lg_u32 s19, 15\ns_cbranch_scc1 K3_nox"); ids()
    a(f"s_lshl_b32 s52, s16, 2\ns_add_u32 s52, s52, s51\nv_mov_b32 v4, s50\nv_mov_b32 v6, 0\nv_mov_b32 v7, {L3_CNT}\ns_mov_b64 exec, 1")
    a("buffer_store_dword v4, v6, s[8:11], s52 offen offset:2048 sc1\nds_write_b32 v7, v6\ns_mov_b64 exec, -1\nK3_nox:")
    a(f"s_cmp_ge_u32 s2, {NWIN+2}\ns_cbranch_scc1 K2_idle\ns_cmp_ge_u32 s2, {NWIN}\ns_cbranch_scc1 K2_wts")
    k2_window(a)
    a("K2_end:\ns_mov_b64 exec, -1"); a.st(27); a("s_waitcnt vmcnt(0) lgkmcnt(0)"); a.st(28)
    a(f"s_barrier\ns_cmp_lg_u32 s19, 0\ns_cbranch_scc1 K2_lo\nv_mov_b32 v10, 0\nds_read_b32 v4, v10 offset:{L2_IRR}")
    a(f"s_lshl_b32 s52, s2, {OPT['wds']}\ns_add_u32 s52, s52, {WS_WDN}\ns_mov_b64 exec, 1\ns_waitcnt lgkmcnt(0)\nv_add_u32 v4, 1, v4\nbuffer_store_dword v4, v10, s[8:11], s52 offen sc1\ns_mov_b64 exec, -1\nK2_lo:\nv_lshlrev_b32 v44, 4, v2")
    if OPT['tp'] != 3: tabledma(a, 44, 'a', 9 if OPT['tp'] == 4 else 1)
    a("s_branch K3_join")
    a("K2_wts:")
    k2_weights(a)
    a("K2w_end:\ns_mov_b64 exec, -1\ns_waitcnt lgkmcnt(0)\ns_barrier\ns_branch K2_tab\nK2_idle:"); gwarm(a)
    if OPT['cpf'] & 2:
        a("s_cmp_eq_u32 s19, 15\ns_cbranch_scc0 K2_tab\nv_lshlrev_b32 v3, 2, v2"); a.codepf('K3_join', 'K3_end', 3, 4, 52, 127)
    a("K2_tab:\nv_lshlrev_b32 v44, 4, v2"); tabledma(a, 44, 'b')
    if OPT['gw'] >= 2:
        a(f"s_cmp_lt_u32 s2, 200\ns_cbranch_scc1 K3_join\ns_cmp_ge_u32 s19, 14\ns_cbranch_scc1 K3_join\ns_lshr_b32 s52, s2, 3\ns_sub_u32 s52, s52, 25\ns_mul_i32 s52, s52, {896*128}\ns_and_b32 s53, s2, 7\ns_mul_i32 s53, s53, {8*GS}")
        a(f"s_add_u32 s52, s52, s53\ns_add_u32 s52, s52, {WS_G+KS}\nv_lshlrev_b32 v118, 7, v0")
        if OPT['gw'] == 2: a("s_waitcnt vmcnt(0)")
        a("buffer_load_dword v119, v118, s[8:11], s52 offen")
    a("K3_join:"); a.st(1); a.st(29); ids()
    a("s_mul_i32 s48, s16, 98\ns_add_u32 s48, s48, s20")
    a(f"s_lshl_b32 s49, s48, 2\ns_add_u32 s49, s49, {WS_TQ}\ns_buffer_load_dwordx8 s[40:47], s[8:11], s49")
    a(f"v_mov_b32 v5, v2\nv_lshlrev_b32 v0, 2, v5\nv_lshlrev_b32 v8, 4, v5\ns_mul_i32 s39, s18, {GS}\ns_add_u32 s39, s39, {WS_G}")
    a(f"s_lshl_b32 s69, s16, 4\ns_add_u32 s69, s69, s19\ns_mul_i32 s69, s69, {RS}\ns_add_u32 s69, s69, {WS_IDX}")
    def idxld(p, va=8):
        if p and p % 4 == 0: a("s_add_u32 s69, s69, 4096")
        a(f"buffer_load_dwordx4 v[{IDX+4*p}:{IDX+4*p+3}], v{va}, s[8:11], s69 offen offset:{(p&3)*1024}{NT(8)}")
    a("s_waitcnt lgkmcnt(0)")
    a("s_cmp_eq_u32 s21, 7\ns_cselect_b32 s46, s46, 0")
    for i in range(1, 7): a(f"s_add_u32 s{40+i}, s{40+i}, s{39+i}")
    a(f"s_min_u32 s47, s46, {NQ}\ns_sub_u32 s28, s47, {DEP+1}\ns_mov_b64 s[32:33], 0")
    for i in range(7): a(f"s_sub_u32 s{40+i}, s{40+i}, 1\ns_bitset1_b64 s[32:33], s{40+i}")
    a("s_add_u32 s52, s28, 1\ns_lshr_b64 s[34:35], s[32:33], s52\ns_mov_b64 s[24:25], s[32:33]\ns_bitset1_b64 s[24:25], s28")
    def wpoll(sfx):
        a(f"K3_wp{sfx}:\nbuffer_load_dword v4, v6, s[8:11], s52 offen sc1\ns_waitcnt vmcnt(0)\nv_cmp_eq_u32 vcc, 0, v4\ns_cbranch_vccz K3_wd{sfx}\ns_add_u32 s64, s64, 1\ns_cmp_gt_u32 s64, {SPIN}\ns_cbranch_scc1 K3_wd{sfx}\ns_sleep {OPT['slw']}\ns_branch K3_wp{sfx}\nK3_wd{sfx}:")
    a(f"s_mov_b32 s64, 0\ns_mul_i32 s52, s16, {49 << OPT['wds']}\ns_add_u32 s52, s52, {WS_WDN}")
    if OPT['pw']:
        a("v_add_u32 v6, s20, v5\nv_mov_b32 v7, v6")
        for x, y in SWAPS:
            for p, q in ((x, y), (y, x)): a(f"v_mov_b32 v9, {q}\nv_cmp_eq_u32 vcc, {p}, v6\nv_cndmask_b32 v7, v7, v9, vcc")
        a("v_lshrrev_b32 v7, 1, v7\nv_lshlrev_b32 v6, 7, v7\ns_bfm_b64 exec, s21, 0"); wpoll('a'); a("s_mov_b64 exec, -1")
    a(f"s_waitcnt vmcnt(0)\nv_add3_u32 v{BUF}, v120, v121, v122\nv_add3_u32 v{BUF}, v{BUF}, v123, v124\nv_add_u32 v{BUF}, v{BUF}, v125\ns_mov_b64 exec, 0xc000\nv_add_u32 v{BUF}, v{BUF}, v126\ns_mov_b64 exec, -1")
    if OPT['pw']:
        for p in range(XP+1): idxld(p)
    a("s_cmp_lg_u32 s19, 0\ns_cbranch_scc1 K3_nw\nv_lshlrev_b32 v6, " + str(OPT['wds']-2) + ", v0\ns_mov_b32 exec_hi, 0x1ffff"); wpoll('b')
    a(f"v_cmp_ne_u32 vcc, 1, v4\ns_cmp_lg_u64 vcc, 0\ns_cselect_b32 s52, 1, 0\nv_mov_b32 v4, s52\nv_mov_b32 v6, {L3_CNT}\nds_write_b32 v6, v4 offset:4\ns_mov_b64 exec, -1\nK3_nw:")
    a(f"s_waitcnt lgkmcnt(0)"); a.st(2); a.st(30); a("s_barrier"); a.st(3); a.st(31)
    if not OPT['pw']:
        for p in range(XP+1): idxld(p)
    a(f"s_lshl_b32 m0, s48, 8\nv_mov_b32 v6, {L3_CNT}\nds_read_b32 v{BUF+7}, v6 offset:4")
    for i in range(7): a(f"ds_read_addtid_b32 v{GK+i} offset:{TB+i*256}")
    a(f"buffer_load_dword v{TMP}, v0, s[8:11], s51 offen offset:2048 sc1")
    LA = OPT['la']; LD = {}; nxt = XP+1
    def late(lo, hi):
        if hi > lo: a(f"v_lshlrev_b32 v{TMP+1}, 2, v0")
        for p in range(lo, hi): a(f"s_cmp_gt_u32 s47, {2*p}\ns_cselect_b64 exec, -1, 1"); idxld(p, TMP+1)
        a("s_mov_b64 exec, -1")
    late(nxt, nxt+LA); nxt += LA
    for p in range(0, NQ, 4):
        if p < NQ-DEP-1: LD[p] = (nxt, min(nxt+2, NL)); nxt = LD[p][1]
    EM = sum(1 << p for p in LD)
    if OPT['prio'] == 8:
        a("s_mov_b64 s[92:93], 0")
        for d in OPT_PD(): a(f"s_sub_i32 s52, s47, {d}\ns_max_i32 s52, s52, 0\ns_bitset1_b64 s[92:93], s52")
        a("s_or_b64 s[24:25], s[24:25], s[92:93]")
    a(f"s_mov_b64 s[88:89], s[24:25]\ns_or_b32 s24, s24, {EM & 0xffffffff}\ns_or_b32 s25, s25, {EM >> 32}")
    issued = lambda p: max([XP+1+LA] + [hi for q, (lo, hi) in LD.items() if q < p])
    tb = 32; lb = 2; TBS_ = TOS
    a(f"v_lshrrev_b32 v1, {1+lb}, v5\nv_mul_u32_u24 v1, {TBS_}, v1\nv_and_b32 v4, {(2 << lb)-1}, v5\nv_lshl_add_u32 v1, v4, 4, v1\nv_and_b32 v4, 3, v5")
    a(f"v_cmp_eq_u32 s[54:55], 0, v4\nv_cmp_eq_u32 s[56:57], 1, v4\nv_mov_b32 v2, 0x3f80\nv_mov_b32 v3, 0x3f800000")
    a(f"v_cndmask_b32 v{AOP}, 0, v2, s[54:55]\nv_cndmask_b32 v{AOP}, v{AOP}, v3, s[56:57]\nv_mov_b32 v{AOP+1}, v{AOP}")
    for i in range(4): a(f"v_mov_b32 v{ACC+i}, 0")
    a("s_lshl_b32 s52, s19, 7\ns_add_u32 s65, s52, s51")
    a("s_lshl_b32 s58, s16, 2\ns_add_u32 s58, s58, s65")
    a(f"s_lshl_b32 s59, s20, 8\ns_mul_i32 s60, s16, {QB}\ns_add_u32 s60, s60, s59")
    a(f"s_mul_i32 s61, s48, {(64//tb)*TBS_}\ns_lshl_b32 s52, s18, {5+lb}\ns_add_u32 s61, s61, s52\ns_add_u32 s61, s61, {WS_TOK}")
    for r in range(1, 4): a(f"s_add_u32 s52, s16, {r}\ns_and_b32 s52, s52, 3\ns_mul_i32 s52, s52, {QB}\ns_add_u32 s{65+r}, s52, s59")
    a(f"s_mov_b32 s22, 1")
    def ad1(p, h):
        r = IDX+2*p+(h >> 1)
        a(f"v_lshrrev_b32 v{ADR+h}, 15, v{r}" if h & 1 else f"v_lshlrev_b32_sdwa v{ADR+h}, 2, v{r} {SD} src1_sel:WORD_0")
    def adr(p):
        for h in range(4): ad1(p, h)
    def rd(p):
        for h in range(4): a(f"ds_read_b32 v{BUF+4*(p%NBUF)+h}, v{ADR+h} offset:{TB}")
    def mf(p, h):
        b = BUF+4*(p%NBUF)+2*h
        if OPT['exp'] & 2: return
        a(f"v_mfma_f32_4x4x4_16b_bf16 v[{ACC}:{ACC+3}], v[{AOP}:{AOP+1}], v[{b}:{b+1}], v[{ACC}:{ACC+3}]")
    def vw(p): pass
    CALL = "s_swappc_b64 s[30:31], s[26:27]"
    T0, T1 = TMP, TMP+1
    a(f"s_mov_b64 exec, 15\ns_waitcnt vmcnt({LA})\nK3_xp:\nv_cmp_eq_u32 vcc, 0, v{TMP}\ns_cbranch_vccz K3_xb\ns_add_u32 s64, s64, 1\ns_cmp_gt_u32 s64, {SPIN}\ns_cbranch_scc1 K3_xb")
    a(f"buffer_load_dword v{TMP}, v0, s[8:11], s51 offen offset:2048 sc1\ns_waitcnt vmcnt(0)\ns_branch K3_xp\nK3_xb:")
    a(f"v_cmp_ne_u32 vcc, s50, v{TMP}\ns_cmp_lg_u64 vcc, 0\ns_cselect_b32 s23, 1, 0\ns_mov_b64 exec, -1")
    a("s_mov_b64 exec, 0xffff")
    a(f"s_waitcnt lgkmcnt(0)\nv_lshl_add_u32 v{BUF}, v{BUF+7}, 8, v{BUF}\nv_cmp_lt_u32 vcc, {NQ}, v{BUF}\ns_cmp_lg_u64 vcc, 0\ns_cselect_b32 s29, 1, {OPT['slow']}\ns_mov_b64 exec, -1")
    a("s_getpc_b64 s[40:41]\nK3_pc:\ns_add_u32 s40, s40, K3_fl0_0-K3_pc\ns_addc_u32 s41, s41, 0\ns_mul_i32 s42, s23, K3_fl1_0-K3_fl0_0\ns_mov_b32 s43, K3_fl2_0-K3_fl0_0")
    a(f"s_add_u32 s45, s23, 1\ns_mul_i32 s45, s45, {KS}\ns_add_u32 s45, s45, s39")
    a("s_waitcnt lgkmcnt(0)")
    if OPT['exp'] & 4:
        a("s_waitcnt vmcnt(0)\nv_lshrrev_b32 v24, 2, v0\nv_lshl_or_b32 v24, v24, 17, v24")
        for p in range(2*NQ): a(f"v_add_u32 v{IDX+p}, {(p*64) | (p*64+64*99) << 17}, v24")
    a("K3_hop:")
    a(f"s_mov_b32 s52, s39\ns_mov_b32 s39, s45\ns_add_u32 s53, s39, {KS}\ns_cmp_eq_u32 s23, 0\ns_cselect_b32 s45, s52, s53")
    a(f"s_add_u32 s61, s61, {tb*256}\ns_add_u32 s37, s39, s60")
    if OPT['px']: a("s_mov_b32 s35, 0\ns_bfe_u32 s90, s22, 0x10001\ns_xor_b32 s91, s90, 1\ns_lshl_b32 s91, s91, 16\ns_sub_u32 s62, 0, s90\ns_mov_b32 s63, 0x07060302")
    a("s_cmp_eq_u32 s22, 7\ns_cselect_b32 s42, s43, s42\ns_add_u32 s26, s40, s42\ns_addc_u32 s27, s41, 0")
    if OPT['prio'] == 1: a("s_cmp_ge_u32 s19, 8\ns_cbranch_scc1 K3_p2\ns_setprio 3\ns_branch K3_p3\nK3_p2:\ns_setprio 2\nK3_p3:")
    if OPT['prio'] in (2, 4, 5, 6, 7, 8): a("s_setprio 3\ns_mov_b32 s94, 2")
    if OPT['prio'] == 3: a("s_setprio 1")
    a("s_cmp_lg_u32 s29, 0\ns_cbranch_scc1 K3_slow")
    for p in range(DEP): adr(p); rd(p)
    adr(DEP)
    def tok(part):
        if OPT['exp'] & 8: return
        if part == 0: a(f"buffer_store_dwordx4 v[{GK}:{GK+3}], v1, s[8:11], s38 offen{TSC()}")
        if part == 1:
            a(f"v_lshrrev_b32 v{T0}, {4+lb}, v0\nv_mul_u32_u24 v{T0}, {TBS_}, v{T0}\nv_and_b32 v{T1}, {(16 << lb)-4}, v0\nv_lshl_add_u32 v{T0}, v{T1}, 1, v{T0}\ns_add_u32 s38, s38, {(256//tb)*TBS_}")
            a(f"buffer_store_dwordx2 v[{GK+4}:{GK+5}], v{T0}, s[8:11], s38 offen{TSC()}")
        if part == 2:
            l = a.lab('K3_t')
            a(f"s_cmp_eq_u32 s21, 7\ns_cbranch_scc0 {l}\nv_lshrrev_b32 v{T0}, {5+lb}, v0\nv_mul_u32_u24 v{T0}, {TBS_}, v{T0}\nv_and_b32 v{T1}, {(32 << lb)-4}, v0\nv_add_u32 v{T0}, v{T0}, v{T1}\ns_add_u32 s38, s38, {(128//tb)*TBS_}")
            a(f"buffer_store_dword v{GK+6}, v{T0}, s[8:11], s38 offen{TSC()}\n{l}:")
    a(f"s_sub_u32 s38, s61, {tb*256}"); tok(0)
    if OPT['cpf'] & 4:
        a("s_cmp_eq_u32 s22, 7\ns_cbranch_scc0 K3_npf\ns_cmp_eq_u32 s19, 0\ns_cbranch_scc0 K3_npf"); a.codepf('att_kernel', 'K4_end', 0, T0, 52, ACC+3); a("K3_npf:")
    for p in range(NQ-DEP):
        rd(p+DEP); a(f"s_waitcnt lgkmcnt({4*DEP})"); mf(p, 0)
        if p+DEP+1 < NQ:
            vw(p+DEP+1)
            ad1(p+DEP+1, 0); ad1(p+DEP+1, 1); mf(p, 1); ad1(p+DEP+1, 2); ad1(p+DEP+1, 3)
        else: mf(p, 1)
        if OPT['prio'] == 2 and p in (9, 18, 27): a(f"s_setprio {2 - (9, 18, 27).index(p)}")
        if OPT['prio'] == 1 and p in (11, 23): a(f"s_cmp_ge_u32 s19, 8\ns_cbranch_scc0 K3_q{p}\ns_setprio {1 if p == 11 else 0}\nK3_q{p}:")
        a(f"s_bitcmp1_b64 s[24:25], {p}\ns_cbranch_scc1 K3_st{p}\nK3_bk{p}:")
    a("s_endpgm")
    for p in range(NQ-DEP):
        a(f"K3_st{p}:")
        if p in LD: a(f"s_cmp_eq_u32 s22, 1\ns_cbranch_scc0 K3_nl{p}"); late(*LD[p]); a(f"s_waitcnt vmcnt({LD[p][1] - 1 - min((p+4+DEP+1)//2, NL-1)})\nK3_nl{p}:")
        a(f"s_bitcmp1_b64 s[32:33], {p}\ns_cbranch_scc0 K3_nf{p}\n{CALL}\nK3_nf{p}:")
        if OPT['prio'] == 8: a(f"s_bitcmp1_b64 s[92:93], {p}\ns_cbranch_scc0 K3_np{p}\ns_call_b64 s[30:31], K3_prio\nK3_np{p}:")
        a(f"s_cmp_eq_u32 s28, {p}\ns_cbranch_scc1 K3_dr{(p+1)%NBUF}\ns_branch K3_bk{p}")
    for r in range(NBUF):
        a(f"K3_dr{r}:")
        for i in range(DEP):
            a(f"s_waitcnt lgkmcnt({4*(DEP-1-i)})"); mf(r+i, 0); mf(r+i, 1)
            if i < DEP-1: a(f"s_bitcmp1_b32 s34, {i}\ns_cbranch_scc0 K3_dn{r}_{i}\n{CALL}\nK3_dn{r}_{i}:")
            else: a(f"{CALL}\ns_branch K3_hend")
    if OPT['prio'] == 8: a("K3_prio:\ns_setprio 0\ns_cmp_eq_u32 s94, 0\ns_cbranch_scc1 K3_pr9\ns_setprio 1\ns_cmp_eq_u32 s94, 1\ns_cbranch_scc1 K3_pr9\ns_setprio 2\nK3_pr9:\ns_sub_u32 s94, s94, 1\ns_setpc_b64 s[30:31]")
    for m in range(3):
        for l in range(7):
            tg = m == 0 and OPT['px']; sc = ' sc1' if m else NT(4)
            a(f".p2align 7\nK3_fl{m}_{l}:\ns_add_u32 s26, s26, 128\ns_addc_u32 s27, s27, 0")
            PR = {4: {1: 2, 3: 1, 4: 0}, 5: {0: 2, 2: 1, 4: 0}, 6: {2: 2, 3: 1, 4: 0}, 7: {1: 2, 2: 1, 3: 0}}.get(OPT['prio'], {})
            if l in PR: a(f"s_setprio {PR[l]}")
            if l in (1, 2): tok(l)
            if m == 0 and l == 0 and OPT['wb6']:
                a(f"s_cmp_lt_u32 s22, {OPT['wb6']}\ns_cbranch_scc1 K3_nwc\ns_cmp_lg_u32 s19, 0\ns_cbranch_scc1 K3_nwc\ns_cmp_ge_u32 s2, 8\ns_cbranch_scc1 K3_nwc\nbuffer_wbl2 sc1\nK3_nwc:")
            if m == 2 and l == OPT['wb'] - 1:
                a(f"s_cmp_lg_u32 s19, {OPT['wbw']}\ns_cbranch_scc1 K3_nwb\ns_cmp_ge_u32 s2, 8\ns_cbranch_scc1 K3_nwb\nbuffer_wbl2 sc1\nK3_nwb:")
            a(f"v_mul_f32 v{T0}, v{DIS+l}, v{ACC}\nv_mul_f32 v{T1}, v{DIS+l}, v{ACC+1}\nv_mov_b64 v[{ACC}:{ACC+1}], 0")
            if tg: a(f"v_add_u32 v{T0}, s91, v{T0}\nv_cvt_pk_bf16_f32 v{T1}, v{T1}, v{T1}\nv_perm_b32 v{T0}, v{T1}, v{T0}, s63\nv_bfi_b32 v{GK+l}, 1, s90, v{T0}")
            else: a(f"v_cvt_pk_bf16_f32 v{GK+l}, v{T0}, v{T1}")
            if m < 2 and l == 3: a(f"v_lshlrev_b32 v{T0}, 2, v0\nbuffer_store_dwordx4 v[{GK}:{GK+3}], v{T0}, s[8:11], s37 offen{sc}")
            if m < 2 and l == 5: a(f"v_lshlrev_b32 v{T0}, 1, v0\nbuffer_store_dwordx2 v[{GK+4}:{GK+5}], v{T0}, s[8:11], s37 offen offset:1024{sc}")
            if m < 2 and l == 6: a(f"buffer_store_dword v{GK+6}, v0, s[8:11], s37 offen offset:1536{sc}")
            a("s_setpc_b64 s[30:31]")
            a(f".if (. - K3_fl{m}_{l}) > 128\n.error \"flush too long\"\n.endif")
    AC0 = 0
    a(f"K3_slow:\ns_load_dwordx4 s[72:75], s[0:1], 8\ns_sub_u32 s38, s61, {tb*256}"); tok(0)
    a(f"s_lshl_b32 s52, s20, 9\ns_add_u32 s52, s52, {AC0}\nv_lshl_add_u32 v8, v0, 1, s52\nv_mov_b32 v10, 0\nv_mov_b32 v11, 0")
    for l in range(6): a(f"ds_write_b64 v8, v[10:11] offset:{l*512}")
    a("s_cmp_eq_u32 s21, 7\ns_cbranch_scc0 K3_s6\nds_write_b64 v8, v[10:11] offset:3072\nK3_s6:\ns_waitcnt lgkmcnt(0)")
    a.srd(76, 72, E*4); a.srd(80, 74, E*4)
    a(f"s_barrier\ns_lshl_b32 s52, s19, 8\ns_mul_i32 s53, s16, {QN}\ns_mov_b32 s54, {WS_NEWID}")
    a("K3_sl:\nbuffer_load_dword v12, v0, s[76:79], s52 offen\nbuffer_load_dword v13, v0, s[80:83], s52 offen\nv_add_u32 v14, s52, v0\ns_waitcnt vmcnt(0)\nv_lshlrev_b32 v12, 1, v12\nv_lshlrev_b32 v13, 1, v13")
    a("buffer_load_ushort v12, v12, s[8:11], s54 offen\nbuffer_load_ushort v13, v13, s[8:11], s54 offen\ns_waitcnt vmcnt(0)\nv_lshlrev_b32 v12, 2, v12\nds_read_b32 v12, v12 offset:" + str(TB) + "\nv_subrev_u32 v13, s53, v13")
    a(f"v_cmp_gt_u32 vcc, {E*4}, v14\ns_mov_b64 exec, vcc\nv_cmp_gt_u32 vcc, {QN}, v13\ns_mov_b64 exec, vcc\nv_lshlrev_b32 v13, 3, v13\nv_add_u32 v13, {AC0}, v13\ns_waitcnt lgkmcnt(0)")
    a(f"v_lshlrev_b32 v15, 16, v12\nv_and_b32 v12, 0xffff0000, v12\nds_add_f32 v13, v15\nds_add_f32 v13, v12 offset:4\ns_mov_b64 exec, -1\ns_add_u32 s52, s52, 4096\ns_cmp_lt_u32 s52, {E*4}\ns_cbranch_scc1 K3_sl")
    a("s_waitcnt lgkmcnt(0)\ns_barrier")
    for l in range(7):
        if l == 6: a("s_cmp_eq_u32 s21, 7\ns_cbranch_scc0 K3_hend")
        a(f"ds_read_b64 v[{ACC}:{ACC+1}], v8 offset:{l*512}\ns_waitcnt lgkmcnt(0)\n{CALL}")
    a("K3_hend:"); a.st(4)
    if OPT['stamp'] in (1, 2): a("s_cmp_eq_u32 s22, 1\ns_cselect_b32 s80, s74, s80\ns_cselect_b32 s74, 0, s74")
    a("s_mov_b64 s[24:25], s[88:89]\ns_cmp_eq_u32 s22, 7\ns_cbranch_scc1 K3_fin")
    if OPT['prio']: a(f"s_setprio {OPT['wprio']}")
    a(f"v_mov_b32 v{T0}, s22\nv_mov_b32 v{T1}, 1\nv_mov_b32 v{ACC}, {L3_CNT}\ns_mov_b64 exec, 1\nds_add_u32 v{ACC}, v{T1}")
    if OPT['px']: a("s_cmp_gt_u32 s22, 2\ns_cselect_b32 s52, s23, 1\ns_cmp_eq_u32 s52, 0\ns_cbranch_scc1 K3_px")
    a("s_waitcnt vmcnt(0)"); a.st(5)
    a("s_cmp_eq_u32 s23, 0\ns_cbranch_scc0 K3_g1")
    a(f"buffer_store_dword v{T0}, v0, s[8:11], s58 offen\ns_branch K3_g2\nK3_g1:\nbuffer_store_dword v{T0}, v0, s[8:11], s58 offen sc1\nK3_g2:")
    a(f"s_mov_b64 exec, 15")
    NPL = OPT['npl']
    PL = lambda i: f"buffer_load_dword v{BUF+i}, v0, s[8:11], s65 offen {LSC(1)}"
    for i in range(NPL-1): a(PL(i) + f"\ns_sleep {OPT['slg']}")
    a(f"K3_poll:\ns_add_u32 s64, s64, 1\ns_cmp_gt_u32 s64, {SPIN}\ns_cbranch_scc1 K3_pb")
    for i in range(NPL):
        a(PL((i+NPL-1) % NPL) + f"\ns_waitcnt vmcnt({NPL-1})\nv_cmp_gt_u32 vcc, s22, v{BUF+i}\ns_cbranch_vccz K3_pb\ns_sleep {OPT['slg']}")
    a("s_branch K3_poll\nK3_pb:")
    X = AOP+1; AR = (14, 18, 2); B1 = (22, 23, T1)
    if OPT['px']: a("s_mov_b32 s35, 2")
    a(f"K3_px:\ns_mov_b64 exec, -1\nv_lshlrev_b32 v{T0}, 1, v0")
    for r in range(3): a(f"s_add_u32 s{53+r}, s{66+r}, s39")
    a(f"K3_pA:\nv_lshlrev_b32 v{X}, 2, v0")
    for r in range(3): a(f"buffer_load_dwordx4 v[{AR[r]}:{AR[r]+3}], v{X}, s[8:11], s{53+r} offen {LSC(2)}")
    a("K3_pB:")
    for r in range(3): a(f"buffer_load_dwordx2 v[{8+2*r}:{9+2*r}], v{T0}, s[8:11], s{53+r} offen offset:1024 {LSC(2)}")
    a("s_cmp_eq_u32 s21, 7\ns_cbranch_scc0 K3_p6")
    for r in range(3): a(f"buffer_load_dword v{B1[r]}, v0, s[8:11], s{53+r} offen offset:1536 {LSC(2)}")
    a("K3_p6:")
    if OPT['px']:
        def chk(rs, first=True):
            for i, r in enumerate(rs): a(f"v_xor_b32 v{X}, s62, v{r}" if (first and i == 0) else f"v_bitop3_b32 v{X}, v{X}, v{r}, s62 bitop3:0xf6")
        a("s_cmp_eq_u32 s35, 2\ns_cbranch_scc1 K3_pD\ns_waitcnt vmcnt(0)\ns_cmp_eq_u32 s35, 1\ns_cbranch_scc1 K3_pC")
        chk(list(range(14, 22)) + [2, 3, 4, 5])
        a(f"v_and_b32 v{X}, 1, v{X}\nv_cmp_ne_u32 vcc, 0, v{X}\ns_cbranch_vccz K3_pE\ns_add_u32 s64, s64, 1\ns_cmp_gt_u32 s64, {SPIN}\ns_cbranch_scc1 K3_pD\ns_sleep {OPT['slp']}\ns_branch K3_pA\nK3_pE:\ns_mov_b32 s35, 1\nK3_pC:")
        chk(range(8, 14)); a("s_cmp_eq_u32 s21, 7\ns_cbranch_scc0 K3_p7"); chk(B1, False); a("K3_p7:")
        a(f"v_and_b32 v{X}, 1, v{X}\nv_cmp_ne_u32 vcc, 0, v{X}\ns_cbranch_vccz K3_pD\ns_add_u32 s64, s64, 1\ns_cmp_gt_u32 s64, {SPIN}\ns_cbranch_scc1 K3_pD\ns_sleep {OPT['slp']}\ns_branch K3_pB")
    a("K3_pD:"); a.st(10 if False else 7)
    a(f"s_lshl_b32 s52, s22, 4\nv_mov_b32 v{T0}, {L3_CNT}\ns_mov_b64 exec, 1\nK3_aw:\nds_read_b32 v{X}, v{T0}\ns_waitcnt lgkmcnt(0)\nv_readfirstlane_b32 s53, v{X}\ns_cmp_ge_u32 s53, s52\ns_cbranch_scc1 K3_ad\ns_add_u32 s64, s64, 1\ns_cmp_gt_u32 s64, {SPIN}\ns_cbranch_scc1 K3_ad\ns_sleep {OPT['sll']}\ns_branch K3_aw\nK3_ad:\ns_mov_b64 exec, -1"); a.st(6)
    a("s_mov_b32 m0, s60")
    for i in range(6): a(f"ds_write_addtid_b32 v{GK+i} offset:{TB+i*256}")
    a(f"s_cmp_eq_u32 s21, 7\ns_cbranch_scc0 K3_w6\nds_write_addtid_b32 v{GK+6} offset:{TB+1536}\ns_waitcnt vmcnt(0)")
    for r in range(3): a(f"s_mov_b32 m0, s{66+r}\nds_write_addtid_b32 v{B1[r]} offset:{TB+1536}")
    a("K3_w6:")
    for r in range(3):
        a(f"s_mov_b32 m0, s{66+r}\ns_waitcnt vmcnt({5-r})")
        for i in range(4): a(f"ds_write_addtid_b32 v{AR[r]+i} offset:{TB+i*256}")
    for r in range(3):
        a(f"s_mov_b32 m0, s{66+r}\ns_waitcnt vmcnt({2-r})")
        for i in range(2): a(f"ds_write_addtid_b32 v{8+2*r+i} offset:{TB+1024+i*256}")
    a(f"v_mov_b32 v{X}, v{AOP}")
    for i in range(4): a(f"v_mov_b32 v{ACC+i}, 0")
    a(f"s_add_u32 s22, s22, 1\ns_waitcnt vmcnt(0) lgkmcnt(0)"); a.st(8); a("s_barrier"); a.st(9)
    a("s_branch K3_hop")
    a("K3_fin:")
    a("s_mov_b32 s38, s61"); tok(0); tok(1); tok(2); a.st_out(2, 8, 's19', 10)
    a("K3_end:\ns_endpgm")
    a.end(name, 128, 102)

import sched
L4_E = 131072; L4_SCR = L4_E + 8192; L4_SIZE = L4_SCR + 4096
TK = 16; QQ = 48; AL = 64; TA = 76; WF = 80; NWF = 2; IB = 88; SV = (100, 101); AC = 104; PK = 136; SS = 152; ZS = 160; ZD = 164; OO = 168; CT = 232; VM = 238; PA = 240; RL = 244; EA = (248, 96); PM = (252, 254)
EPS = f2u(1e-5); I128 = f2u(1/128.); LOG2E = f2u(math.log2(math.e))
def k4(a):
    assert OPT['sel'] and not OPT['fin']
    global VM
    if OPT['sel']: VM = 10
    name = 'att_kernel'
    a.launch(name, 256, 256, L4_SIZE)
    a.begin(name)
    W8 = sched.Waits(); sched.VMEM_LAT = OPT['vl']; sched.STRETCH = OPT['str']/100; sched.QLAT = OPT['ql']; sched.TH = OPT['th']; sched.EDF = OPT['edf']
    L = []
    def o(text, R=(), W=(), rr=(), pri=0):
        for t in text.split('\n'):
            x = sched.Op(t, R, W, pri); x.r |= {('v', r) for r in rr}; L.append(x)
    def flush(do_sched):
        ops = sched.schedule(L, True) if do_sched else list(L)
        for t in W8.emit(ops): a(t)
        L.clear()
    a("s_cmp_ge_u32 s2, 256\ns_cbranch_scc1 K4_end")
    a.st_init()
    a("s_load_dwordx2 s[4:5], s[0:1], 88\ns_load_dwordx2 s[6:7], s[0:1], 72")
    a("v_lshrrev_b32 v4, 6, v0\nv_and_b32 v0, 63, v0\nv_readfirstlane_b32 s19, v4\nv_lshlrev_b32 v2, 4, v0")
    a("v_lshrrev_b32 v5, 3, v0\nv_and_b32 v6, 7, v0\nv_xor_b32 v6, v6, v5\ns_lshl_b32 s3, s19, 1\nv_xor_b32 v6, s3, v6\nv_lshlrev_b32 v6, 4, v6\nv_lshl_add_u32 v103, v5, 7, v6\nv_xor_b32 v12, 16, v103")
    a("s_mul_i32 s20, s2, 3\ns_lshl_b32 s44, s19, 14")
    if OPT['exp'] & 16384: a("v_lshrrev_b32 v13, 2, v0\nv_lshlrev_b32 v13, 7, v13\nv_and_b32 v14, 3, v0\nv_lshl_add_u32 v13, v14, 4, v13")
    a(f"v_lshrrev_b32 v5, 5, v0\nv_bfe_u32 v6, v0, 3, 1\nv_xor_b32 v6, v6, v5\nv_lshlrev_b32 v3, 3, v5\nv_lshl_add_u32 v102, v6, 2, v3\nv_add_u32 v102, {WS_SINV-WS_PERM}, v102")
    if OPT['fin']: a("v_and_b32 v3, 3, v0\nv_lshlrev_b32 v3, 2, v3")
    a("s_waitcnt lgkmcnt(0)")
    a.srd(8, 4, WS_SIZE); a.srd(12, 6, N*256)
    a(f"s_mov_b32 s3, {WS_WFR+WFR_SW}\ns_buffer_load_dword s24, s[8:11], s3")
    QS = lambda g: 52 + g
    def tdma(t, R=()):
        b = t & 1
        o(f"s_mul_i32 s21, s{60+t}, {TOS}\ns_add_u32 s21, s21, s44\ns_add_u32 s21, s21, {WS_TOK}")
        for x in range(0 if (t > 0 and OPT['exp'] & 64) else 4):
            if x: o("s_add_u32 s21, s21, 4096")
            o(f"s_add_u32 m0, s44, {b*65536 + 4096*x}")
            for y in (((0, 2) if OPT['exp'] & 16384 else (0, 1)) if (t == 0 and OPT['exp'] & 49152) else range(4)): o(f"buffer_load_dwordx4 {'v13' if (t == 0 and OPT['exp'] & 16384) else 'v103' if x < 2 else 'v12'}, s[8:11], s21 offen offset:{y*1024}{NT(1)} lds", W=[f'dma{t}_{x}{y}', 'q'], R=R, pri=OPT['dp'])
    DM = lambda t: [f'dma{t}_{x}{y}' for x in range(4) for y in range(4)]
    def small(g):
        o(f"s_lshl_b32 s23, s{QS(g)}, 4\ns_add_u32 s23, s23, {WS_PERM}" + ("\ns_add_u32 s23, s23, s59" if g == 6 else ""))
        o(f"buffer_load_dword v{SV[g&1]}, v102, s[8:11], s23 offen", pri=2000)
        o(f"buffer_load_dword v{PM[g&1]}, v3, s[8:11], s23 offen" if OPT['fin'] else f"buffer_load_dwordx2 v[{PM[g&1]}:{PM[g&1]+1}], v3, s[8:11], s23 offen", pri=2000)
    def wdma(lo, hi, tag):
        for i in range(lo, hi):
            o(f"s_add_u32 m0, s25, {4096*i}\ns_add_u32 s27, s26, {4096*i}"); o("buffer_load_dwordx4 v2, s[8:11], s27 offen lds", W=[tag + str(i), 'q'])
    for t in range(3): a(f"s_add_u32 s{60+t}, s20, {t}")
    for g in range(6): a(f"s_lshl_b32 s3, s{60+g//2}, 3\ns_add_u32 s3, s3, s19\ns_add_u32 s{QS(g)}, s3, {4*(g&1)}")
    a(f"s_lshr_b32 s58, s2, 1\ns_add_u32 s58, s58, 6144\ns_lshr_b32 s63, s58, 3\ns_and_b32 s3, s2, 3\ns_cmp_eq_u32 s19, s3\ns_cselect_b32 s31, 1, 0")
    a("s_xor_b32 s49, s58, s19\ns_and_b32 s49, s49, 7\ns_lshl_b32 s49, s49, 4\ns_and_b32 s59, s2, 1\ns_lshl_b32 s59, s59, 2\ns_or_b32 s49, s49, s59")
    a(f"s_lshl_b32 s25, s19, 10\ns_add_u32 s26, s25, {WS_WFR}\ns_add_u32 s25, s25, 0x10000")
    WO_ = [16, 2, 3, 4, 5, 6, 7]; np_ = OPT['npre']
    wdma(0, 2, 'w'); tdma(0); small(0)
    for i in WO_[:np_]: wdma(i, i+1, 'w')
    flush(False)
    a("v_and_b32 v4, 7, v0\nv_lshrrev_b32 v7, 4, v0\nv_xor_b32 v1, v4, v7\nv_xor_b32 v1, s19, v1\nv_lshlrev_b32 v1, 4, v1\nv_lshl_add_u32 v1, v4, 13, v1\nv_lshl_add_u32 v1, v7, 7, v1\nv_and_or_b32 v1, v0, 8, v1")
    a(f"v_cmp_eq_u32 vcc, 0, v6\nv_subrev_u32 v238, 1, v6")
    a("v_and_b32 v8, 1, v0\nv_lshlrev_b32 v8, 4, v8\nv_mov_b32 v9, 0x3f80\nv_lshlrev_b32 v9, v8, v9\nv_bfe_u32 v8, v0, 1, 1\nv_bfe_u32 v10, v0, 3, 1\nv_bfe_u32 v11, v0, 2, 1")
    for y in range(2):
        a(f"v_xor_b32 v13, {y}, v10\nv_lshl_or_b32 v13, v13, 1, v8\nv_or_b32 v14, {2*y}, v11\nv_cmp_eq_u32 s[40:41], v14, v7\nv_cndmask_b32 v14, 0, v9, s[40:41]")
        for d in range(4): a(f"v_cmp_eq_u32 s[40:41], {d}, v13\nv_cndmask_b32 v{IB+4*y+d}, 0, v14, s[40:41]")
    a(f"s_lshl_b32 s25, s19, 10\ns_add_u32 s25, s25, {L4_SCR}")
    a("v_lshl_add_u32 v9, v7, 4, s25\nv_lshl_add_u32 v8, v6, 6, v9")
    a("v_lshl_add_u32 v4, v4, 2, s25\nv_lshl_add_u32 v4, v5, 5, v4\nv_lshl_add_u32 v4, v6, 6, v4")
    if OPT['gram']:
        a("v_and_b32 v11, 3, v0\nv_cmp_eq_u32 s[32:33], 1, v11\nv_cmp_eq_u32 s[34:35], 2, v11\nv_cmp_eq_u32 s[36:37], 3, v11\nv_bfe_u32 v11, v0, 2, 2\nv_cmp_eq_u32 s[38:39], v11, v7")
    if OPT['sel']:
        a("v_and_b32 v11, 3, v0\nv_cmp_eq_u32 s[40:41], v11, v7\nv_mov_b32 v13, 0x3f80\nv_cndmask_b32 v13, 0, v13, s[40:41]\nv_bfe_u32 v11, v0, 3, 1\nv_bfe_u32 v14, v0, 2, 1\nv_lshl_or_b32 v11, v14, 1, v11")
        for d in range(4): a(f"v_cmp_eq_u32 s[40:41], {d}, v11\nv_cndmask_b32 v{CT+d}, 0, v13, s[40:41]\nv_lshlrev_b32 v{CT+4+d}, 16, v{CT+d}")
        a("v_and_b32 v11, 1, v7\nv_and_b32 v13, 15, v0\nv_subrev_u32 v10, 1, v6")
    if OPT['fin']:
        a("v_and_b32 v14, 15, v0\nv_lshlrev_b32 v2, 1, v5\nv_cmp_eq_u32 s[42:43], v14, v2\nv_or_b32 v2, 1, v2\nv_cmp_eq_u32 s[50:51], v14, v2\nv_lshlrev_b32 v2, 4, v0")
    if not OPT['sel']: a("v_and_b32 v11, 1, v7\nv_and_b32 v10, 7, v0\nv_lshlrev_b32 v13, 2, v11\nv_xor_b32 v10, v10, v13\nv_xor_b32 v10, s19, v10\nv_lshlrev_b32 v10, 4, v10\nv_and_b32 v13, 15, v0\nv_lshl_add_u32 v10, v13, 7, v10\nv_lshl_add_u32 v10, v11, 15, v10\nv_add_u32 v10, v10, v3")
    if OPT['fin']: a("v_lshlrev_b32 v7, 4, v7\nv_cmp_lt_u32 s[40:41], 3, v13\nv_bfrev_b32 v11, 1\nv_cndmask_b32 v11, 0, v11, s[40:41]\nv_or_b32 v7, v7, v11")
    else: a("v_lshlrev_b32 v7, 2, v13\nv_lshl_add_u32 v7, v11, 7, v7")
    a(f"v_add_u32 v15, {L4_E}, v2\ns_mov_b32 s48, 0xffff0000\nv_add_u32 v0, 0x10000, v2")
    a(f"s_mov_b32 s28, {I128}\ns_mov_b32 s29, {EPS}\ns_mov_b32 s30, {LOG2E}")
    a("s_waitcnt lgkmcnt(0)")
    a.st(1)
    for t in W8.drain(DM(0)): a(t)
    a.st(2); a("s_barrier"); a.st(3)
    if OPT['exp'] & 4096: a("s_cmp_ge_u32 s19, 1\ns_cbranch_scc1 K4_fin")
    ring = [0]
    ROR = f"row_ror:8 {DPPF}"
    CLAST = [] if OPT['sel'] else [OO+32+28+3, OO+32+28+2, OO+32+28+1]
    def group(g, last):
        T = lambda j, s: f"v[{TK+16*j+4*s}:{TK+16*j+4*s+3}]"
        R4 = lambda b: f"v[{b}:{b+3}]"
        sv = SV[g & 1]; pm = PM[g & 1]; t = g >> 1; LB = [f'tile{t}']; xa = (t & 1)*65536 + (64 if g & 1 else 0)
        JS = (0,) if g == 6 else (0, 1)
        def W(f):
            r = 4*f
            if g == 0:
                if f == 32: o("s_barrier", R=[f'w{i}' for i in range(8, 16)], W=['wb', 'bar'])
                o(f"ds_read_b128 a[{r}:{r+3}], v0 offset:{f*1024}", R=['wb'] if f >= 32 else ['wa'] if f >= 8 else [])
                if f == 63:
                    o("s_barrier", W=['wfree', 'bar']); L[-1].r |= {('a', x) for x in range(256)}
                    tdma(1, ['wfree'])
            return f"a[{r}:{r+3}]"
        if g in (2, 4):
            o("s_barrier", R=DM(t), W=LB + ['bar'], rr=CLAST + list(range(TK, TK+32)))
            tdma(t+1, LB)
        if g == 6: o("v_xor_b32 v1, s49, v1" + ("" if OPT['sel'] else "\nv_xor_b32 v10, s49, v10")); xa = 65536
        for x in range(2*len(JS)): o(f"v_xor_b32 v{TA+x}, {xa ^ ((x & 1)*576) ^ ((x >> 1)*4)}, v1")
        for s_ in range(4):
            for j in JS:
                for b in range(2): o(f"ds_read2st64_b32 v[{TK+16*j+4*s_+2*b}:{TK+16*j+4*s_+2*b+1}], v{TA+2*j+b} offset0:{8*s_} offset1:{8*s_+4}", R=LB)
        if g < last: small(g+1)
        o(f"v_lshl_add_u32 v{pm}, v{pm}, 8, v7" + ("" if OPT['fin'] else f"\nv_lshl_add_u32 v{pm+1}, v{pm+1}, 8, v7"))
        acc = lambda p, j, hh: AC + 16*(p & 1) + 8*j + 4*hh
        def chains(p):
            for hh in range(2):
                for s_ in range(4):
                    w = W(8*p + 4*hh + s_)
                    for j in JS:
                        c = R4(acc(p, j, hh)); ab = f"{w}, {T(j, s_)}" if p < 4 else f"{T(j, s_)}, {w}"
                        o(f"v_mfma_f32_16x16x32_bf16 {c}, {ab}, {'0' if s_ == 0 else c}")
        def pack(p):
            for j in JS:
                for d in range(4): o(f"v_cvt_pk_bf16_f32 v{PK+8*(p&1)+4*j+d}, v{acc(p, j, 0)+2*d}, v{acc(p, j, 0)+2*d+1}")
        def smf(p):
            for j in JS: o(f"v_mfma_f32_16x16x32_bf16 {R4(SS+4*j)}, {R4(PK+8*(p&1)+4*j)}, {T(j, p)}, {'0' if p == 0 else R4(SS+4*j)}")
        O = lambda j, J: OO + 32*j + 4*J
        def cinit():
            if OPT['sel']: return
            for r in range(4): o(f"v_xor_b32 v{TA+r}, {xa ^ (r*8192 + r*16)}, v10")
            for B in range(4):
                for r in range(4):
                    c = CT + 2*((4*B + r) % 3)
                    o(f"ds_read_b64 v[{c}:{c+1}], v{TA+r} offset:{B*2048}", R=LB)
                    for j in JS: o(f"v_lshlrev_b32 v{O(j, 2*B)+r}, 16, v{c+j}\nv_and_b32 v{O(j, 2*B+1)+r}, s48, v{c+j}")
        def pz(B):
            for j in JS:
                for hh in range(2):
                    z = PK + 8*(B & 1) + 4*j + 2*hh
                    o(f"v_mfma_f32_16x16x16_bf16 {R4(O(j, 2*B+hh))}, v[{PA+2*j}:{PA+2*j+1}], v[{z}:{z+1}], {R4(O(j, 2*B+hh))}")
        def sel(B):
            if not OPT['sel']: return
            for j in JS:
                for hh in range(2): o(f"v_mfma_f32_16x16x32_bf16 {R4(O(j, 2*B+hh))}, {T(j, B)}, {R4(CT+4*hh)}, 0")
        def sq(B):
            for j in JS:
                for hh in range(2):
                    for r in range(4):
                        x = O(j, 2*B+hh)+r
                        o(f"v_mul_f32 v{QQ+4*j+r}, v{x}, v{x}" if B == 0 and hh == 0 else f"v_fmac_f32 v{QQ+4*j+r}, v{x}, v{x}")
            if OPT['fin']:
                for hh in range(2):
                    for d in range(4): x = O(d >> 1, 2*B+hh) + 2*(d & 1); o(f"v_cvt_pk_bf16_f32 v{O(0, 2*B+hh)+d}, v{x}, v{x+1}")
        chains(0)
        D = AC + 16
        if OPT['gram']:
            for s_ in range(4):
                for j in JS: o(f"v_mfma_f32_16x16x32_bf16 {R4(D+4*j)}, {T(j, s_)}, {T(j, s_)}, {'0' if s_ == 0 else R4(D+4*j)}")
        for u in range(0 if OPT['gram'] else 16*len(JS)): d = D + 2*(u >> 4) + (u & 1); o(f"v_dot2_f32_bf16 v{d}, v{TK+u}, v{TK+u}, {'0' if (u & 15) < 2 else f'v{d}'}")
        if g == 0: o("s_barrier", R=[f'w{i}' for i in WO_], W=['wa', 'bar'], rr=[AC+12, D, D+1, D+2, D+3])
        for s_ in range(4):
            r = WF + 4*(ring[0] % NWF); ring[0] += 1
            o(f"ds_read_b128 {R4(r)}, v15 offset:{s_*1024}", R=['wa'])
            for j in JS: o(f"v_mfma_f32_16x16x32_bf16 {R4(EA[j])}, {R4(r)}, {T(j, s_)}, {'0' if s_ == 0 else R4(EA[j])}")
        E = EA[0]
        for r in range(4): o(f"v_cndmask_b32_dpp v{E+r}, v{EA[1]+r}, v{E+r}, vcc {ROR}")
        if OPT['gram']:
            for j in JS:
                x = D+4*j
                for r in range(1, 4): o(f"v_cndmask_b32 v{x}, v{x}, v{x+r}, s[{30+2*r}:{31+2*r}]")
            o(f"v_cndmask_b32 v11, 0, v{D}, s[38:39]\nv_cndmask_b32 v2, 0, v{D}, s[38:39]\nv_cndmask_b32 v{D+2}, 0, v{D+4}, s[38:39]")
        else: o(f"v_add_f32 v11, v{D}, v{D+1}\nv_add_f32 v{D+2}, v{D+2}, v{D+3}\nv_mov_b32 v2, v11")
        o(f"v_mov_b32_dpp v11, v{D+2} row_ror:8 row_mask:0xf bank_mask:0xc\nv_mov_b32_dpp v2, v{D+2} row_ror:8 row_mask:0xf bank_mask:0x3")
        o(f"v_permlane32_swap_b32 v11, v2\nv_add_f32 v11, v11, v2\nv_mov_b32 v2, v11\nv_permlane16_swap_b32 v11, v2\nv_add_f32 v11, v11, v2\nv_mul_f32 v2, s28, v{E}\nv_mul_f32 v2, v2, v2\nv_fma_f32 v11, v11, s28, -v2")
        o(f"v_mul_f32 v2, v{sv}, v{sv}\nv_max_f32 v11, 0, v11\nv_fma_f32 v11, v11, v2, s29\nv_rsq_f32 v11, v11\nv_mul_f32 v11, v11, v{sv}")
        o("ds_write_b32 v4, v11", W=['sa']); o(f"ds_write_b32 v4, v{E+2} offset:128\nds_write_b32 v4, v{E+3} offset:256", W=['sb'])
        o(f"ds_read_b128 {R4(RL)}, v8", R=['sa'])
        o(f"ds_read_b128 {R4(ZS)}, v8 offset:128\nds_read_b128 {R4(ZD)}, v8 offset:256", R=['sb'])
        cinit()
        pack(0); smf(0)
        for p in range(1, 4): chains(p); pack(p); smf(p)
        chains(4); pack(4); sel(0); sel(1); chains(5); pack(5); sel(2); sel(3)
        X = SS
        for r in range(4): o(f"v_cndmask_b32_dpp v{X+r}, v{SS+4+r}, v{X+r}, vcc {ROR}")
        for r in range(4): o(f"v_mul_f32 v{X+r}, v{X+r}, v{RL+r}")
        t0, t1 = X+4, X+5
        o(f"v_max3_f32 v{t0}, v{X}, v{X+1}, v{X+2}\nv_max_f32 v{t0}, v{t0}, v{X+3}\nv_mov_b32 v{t1}, v{t0}\nv_permlane16_swap_b32 v{t0}, v{t1}\nv_max_f32 v{t0}, v{t0}, v{t1}\nv_mul_f32 v{t0}, v{t0}, v11")
        for r in range(4): o(f"v_fma_f32 v{X+r}, v{X+r}, v11, -v{t0}")
        for r in range(4): o(f"v_exp_f32 v{X+r}, v{X+r}")
        o(f"v_add_f32 v{t0}, v{X}, v{X+1}\nv_add_f32 v{t1}, v{X+2}, v{X+3}\nv_add_f32 v{t0}, v{t0}, v{t1}\nv_mov_b32 v{t1}, v{t0}\nv_permlane16_swap_b32 v{t0}, v{t1}\nv_add_f32 v{t0}, v{t0}, v{t1}\nv_mul_f32 v{t0}, v{t0}, v{sv}\nv_rcp_f32 v{t0}, v{t0}")
        for r in range(4): o(f"v_mul_f32 v{X+r}, v{X+r}, v{RL+r}")
        for r in range(4): o(f"v_mul_f32 v{X+r}, v{X+r}, v{t0}")
        o(f"v_cvt_pk_bf16_f32 v{X+6}, v{X}, v{X+1}\nv_cvt_pk_bf16_f32 v{X+7}, v{X+2}, v{X+3}")
        for d in range(2): o(f"v_and_b32 v{PA+d}, v{X+6+d}, v{VM}" + ("" if g == 6 else f"\nv_and_b32_dpp v{PA+2+d}, v{X+6+d}, v{VM} {ROR}"))
        o(f"v_mul_f32 v13, v{X}, v{ZS}\nv_mul_f32 v14, v{X}, v{ZD}")
        for r in range(1, 4): o(f"v_fmac_f32 v13, v{X+r}, v{ZS+r}\nv_fmac_f32 v14, v{X+r}, v{ZD+r}")
        o(f"v_permlane16_swap_b32 v13, v14\nv_add_f32 v13, v13, v14\nv_mov_b32 v14, v13\nv_permlane16_swap_b32 v13, v14\nv_add_f32 v13, v13, v{E}\nv_add_f32 v14, v14, v{E+1}")
        pz(0); sq(0)
        chains(6); pz(1); sq(1); pack(6)
        chains(7); pz(2); sq(2); pack(7)
        pz(3); sq(3)
        for d in range(4): o(f"v_cvt_pk_bf16_f32 v{AL+d}, v{QQ+2*d}, v{QQ+2*d+1}" if d < 2*len(JS) else f"v_mov_b32 v{AL+d}, 0")
        for y in range(2):
            x = AL+4+4*y
            o(f"v_mfma_f32_16x16x32_bf16 {R4(x)}, {R4(AL)}, {R4(IB+4*y)}, 0", pri=-OPT['lq'])
            o(f"v_add_f32 v{x}, v{x}, v{x+1}\nv_add_f32 v{x+2}, v{x+2}, v{x+3}\nv_add_f32 v{x}, v{x}, v{x+2}")
        o(f"v_permlane32_swap_b32 v{AL+4}, v{AL+8}\nv_add_f32 v5, v{AL+4}, v{AL+8}\nv_mov_b32 v{AL+8}, v5\nv_permlane16_swap_b32 v5, v{AL+8}\nv_add_f32 v5, v5, v{AL+8}")
        o(f"v_mul_f32 v13, s28, v13\nv_fma_f32 v14, -v13, s24, v14\nv_mul_f32 v13, v13, v13\nv_mul_f32 v14, s30, v14\nv_mul_f32 v6, v{sv}, v{sv}\nv_mul_f32 v14, v14, v{sv}")
        o("v_fma_f32 v5, v5, s28, -v13\nv_max_f32 v5, 0, v5\nv_fma_f32 v5, v5, v6, s29\nv_rsq_f32 v5, v5\nv_mul_f32 v5, v5, v14")
        o(f"v_max_f32_dpp v6, v5, v5 quad_perm:[1,0,3,2] {DPPF}\nv_max_f32_dpp v6, v6, v6 quad_perm:[2,3,0,1] {DPPF}\nv_max_f32_dpp v6, v6, v6 row_half_mirror {DPPF}")
        o("v_sub_f32 v5, v5, v6\nv_exp_f32 v5, v5")
        o(f"v_add_f32_dpp v6, v5, v5 quad_perm:[1,0,3,2] {DPPF}\nv_add_f32_dpp v6, v6, v6 quad_perm:[2,3,0,1] {DPPF}\nv_add_f32_dpp v6, v6, v6 row_half_mirror {DPPF}")
        o(f"v_rcp_f32 v6, v6\nv_mul_f32 v5, v5, v{sv}\nv_mul_f32 v5, v5, v6")
        o("ds_write_b32 v4, v5 offset:512", W=['sd'])
        for j in JS: o(f"ds_read_b128 {R4(AL+4*j)}, v9 offset:{512+64*j}", R=['sd'])
        OSC = ('', ' nt', ' sc1', ' sc0 sc1', ' sc1 nt')[OPT['osc']]
        if OPT['fin']:
            for d in range(4): o(f"v_cvt_pk_bf16_f32 v{AL+8+d}, v{AL+2*d}, v{AL+2*d+1}\nv_cndmask_b32 v{AL+8+d}, 0, v{AL+8+d}, {'s[42:43]' if d < 2 else 's[50:51]'}")
            for B in range(4):
                for hh in range(2): o(f"v_mfma_f32_16x16x32_bf16 {R4(QQ+8*(B&1)+4*hh)}, {R4(O(0, 2*B+hh))}, {R4(AL+8)}, 0", pri=-OPT['lf'])
                x = O(1, 2*B)
                for r in range(4): o(f"v_cvt_pk_bf16_f32 v{x+r}, v{QQ+8*(B&1)+r}, v{QQ+8*(B&1)+4+r}")
                o(f"buffer_store_dwordx4 {R4(x)}, v{pm}, s[12:15], 0 offen offset:{64*B}{OSC}")
        for j in JS:
            for J in (0, 4, 1, 5, 2, 6, 3, 7):
                x = QQ + 8*j + J
                o(f"v_mul_f32 v{x}, v{AL+4*j}, v{O(j, J)}")
                for r in range(1, 4): o(f"v_fmac_f32 v{x}, v{AL+4*j+r}, v{O(j, J)+r}")
                if J >= 4:
                    o(f"v_permlane16_swap_b32 v{x-4}, v{x}\nv_add_f32 v{x-4}, v{x-4}, v{x}")
                    if J & 1: o(f"v_cvt_pk_bf16_f32 v{x}, v{x-5}, v{x-4}\nbuffer_store_dword v{x}, v{pm+j}, s[12:15], 0 offen offset:{64*((J-4)>>1)}{('', ' nt', ' sc1', ' sc0 sc1', ' sc1 nt')[OPT['osc']]}")
    a(f"s_lshl_b32 s25, s19, 10\ns_add_u32 s25, s25, 0x10000")
    for i in WO_[np_:]:
        wdma(i, i+1, 'w'); L[-1].w.discard(('p', 'q')); L[-1].bias = L[-2].bias = L[-3].bias = 5000
    wdma(8, 16, 'w')
    for g in range(6): group(g, 6)
    n6 = len(L)
    o("s_barrier", R=DM(3), W=['tile3', 'bar'], rr=CLAST + list(range(TK, TK+32)))
    group(6, 6)
    for x in L[n6:]: x.extra = True
    for x in L[n6+1:]: x.r.add(('p', 'tile3'))
    ops = sched.schedule(L, True); L.clear()
    cut = min(i for i, x in enumerate(ops) if getattr(x, 'extra', False))
    nb = 3
    for t in W8.emit(ops[:cut+1]):
        if t == 's_barrier' and OPT['stamp'] in (1, 2): a.st(nb); a(t); a.st(13); nb += 1
        else: a(t)
    a("s_cmp_eq_u32 s31, 0\ns_cbranch_scc0 K4_x")
    import copy
    W9 = copy.deepcopy(W8)
    for t in W8.emit([x for x in ops[cut+1:] if not getattr(x, 'extra', False)]): a(t)
    a.st(9); a("s_branch K4_fin\nK4_x:")
    for t in W9.emit(ops[cut+1:]): a(t)
    a.st(10)
    a("K4_fin:"); a.st_out(3, 8, 's19', 10)
    a("K4_end:\ns_endpgm")
    a.end(name, 512, 102, 256)

def k5(a):
    name = 'dbg_kernel'
    a.launch(name, 1, 1024, 4096); a.begin(name)
    a("s_cmp_ge_u32 s2, 1\ns_cbranch_scc1 K5_end\ns_load_dwordx2 s[4:5], s[0:1], 88\ns_load_dwordx2 s[6:7], s[0:1], 72\ns_waitcnt lgkmcnt(0)")
    a.srd(8, 4, WS_SIZE); a.srd(12, 6, N*256)
    a("v_mov_b32 v20, 0\nv_lshlrev_b32 v21, 2, v0\nv_mov_b32 v22, -1\nv_cmp_gt_u32 vcc, 4, v0\nv_cndmask_b32 v22, v20, v22, vcc\nds_write_b32 v21, v22\ns_waitcnt lgkmcnt(0)\ns_barrier")
    for x, (kid, nwg, lw) in enumerate(((0, 454, 3), (2, 256, 4), (3, 256, 2))):
        for i in range(4):
            a(f"v_add_u32 v1, {1024*i}, v0\nv_lshrrev_b32 v2, {lw}, v1\nv_and_b32 v3, {(1 << lw)-1}, v1\nv_lshlrev_b32 v4, 10, v2\nv_lshl_add_u32 v4, v3, 6, v4\nv_cmp_gt_u32 vcc, {nwg}, v2\ns_and_saveexec_b64 s[20:21], vcc\ns_cbranch_execz K5_s{x}{i}")
            a(f"s_mov_b32 s3, {WS_STAMP + kid*0x80000}\nbuffer_load_dwordx2 v[6:7], v4, s[8:11], s3 offen\ns_waitcnt vmcnt(0)\nds_min_u32 v20, v6 offset:{4*x}\nds_max_u32 v20, v7 offset:{16+4*x}\nK5_s{x}{i}:\ns_mov_b64 exec, s[20:21]")
    a("s_waitcnt lgkmcnt(0)\ns_barrier\nds_read_b128 v[8:11], v20\nds_read_b128 v[12:15], v20 offset:16\ns_waitcnt lgkmcnt(0)")
    a("v_sub_u32 v16, v12, v8\nv_sub_u32 v17, v9, v12\nv_sub_u32 v18, v13, v9\nv_sub_u32 v19, v10, v13\nv_sub_u32 v23, v14, v10\ns_mov_b64 exec, 1")
    a(f"v_cmp_gt_u32 vcc, {OPT['dg']}, v17\ns_cbranch_vccz K5_end\nv_cmp_lt_u32 vcc, {OPT['dk']}, v16\ns_cbranch_vccz K5_end\nv_cmp_gt_u32 vcc, 6000, v18\ns_cbranch_vccz K5_end\nv_cmp_lt_u32 vcc, {OPT['d3']}, v18\ns_cbranch_vccz K5_end\nv_cmp_lt_u32 vcc, {OPT['d4']}, v23\ns_cbranch_vccz K5_end")
    for i, (r, sh) in enumerate(((16, 2), (17, 2), (18, 5), (18, 0), (19, 2), (23, 4), (23, 0))):
        a(f"v_lshrrev_b32 v24, {sh}, v{r}")
        if sh == 0: a(f"v_and_b32 v24, {31 if r == 18 else 15}, v24")
        a(f"v_cvt_f32_u32 v24, v24\nbuffer_store_short_d16_hi v24, v20, s[12:15], 0 offen offset:{2*i}")
    a("K5_end:\ns_endpgm")
    a.end(name, 32, 32)

def build(ks, path, pre=''):
    a = K()
    for k in ks: k(a)
    open(path, 'w').write(a.text(pre))

if __name__ == '__main__':
    for x in sys.argv[1:]:
        k, v = x.split('='); OPT[k] = int(v)
    ref = open('standalone__hybrid_graph_tf_nagphormer__graph.s.ref').read().split('\n')
    pre = '\n'.join(l for l in ref if l.startswith(';') and 'launch' not in l and 'grid=' not in l) + '\n'
    pre += '''; p1_kernel : edges -> pieces per window of 128 nodes; per window a degree order, x*dis transposed to column-pair tables; weight products
'''
    build([k1, k3, k4] + ([k5] if OPT['dbg'] else []), 'stage.s', pre)
```

```python
import sys, math, struct
from asmlib import Asm
import hazard

N = 25000; NP = 25088; E = 400000; WIN = 128; NWIN = 196; NLEV = 392; QLEV = 98; QN = 6272
NCH = 250; CH = 1600
ZB = 195*128
WS_FLAGS = 0xC0000; FGS = 17*128; WS_NEWID = 0x10000; WS_PERM = 0x20000; WS_DISP = 0x40000; WS_TQ = 0x60000; WS_LOC = 0x64000; WS_IRR = 0x78000; WS_SINV = 0xA0000; WS_PM = 0x3D00000; WS_WDN = 0xE4000
WS_WFR = 0x80000; WS_PART = 0x100000; WS_PARTB = 0x440000; WS_IDX = 0x780000; WS_G = 0xB00000; RS = 57344; WS_TOK = 0x3E00000
GS = NP*4
TOS = 65536 + 128
PWS = 16384 + 128
KS = NP*256
WS_SIZE = 0x10000000
WFR_E = 65536; WFR_SW = 73728
SD = "dst_sel:DWORD dst_unused:UNUSED_PAD src0_sel:DWORD"
DPPF = "row_mask:0xf bank_mask:0xf"
SLACK = 2
OPT = dict(stamp=0, exp=0, tal=20, tbe=0, prio=2, wprio=0, slg=2, sll=2, tok=1, tsc=2, wb=2, gprio=1, ls=1, tlb=0, wt=1, vl=1500, str=140, dp=0, ql=100, npl=1, px=0, slp=1, cpf=4, slow=0, la=4, npre=7, slw=2, isc=0, tp=2, wbw=0, wb6=0, lnt=2, pnt=0, nt=2, osc=2, frz=0, gw=3, iw=0, pw=0, xp=3, xr=3, th=0, edf=200, sel=1, gram=1, fin=0, lq=300, lf=0, fr=99, dbg=0, dg=320, dk=430, d3=0, d4=0, k1o=0, top=0, pd=0, wds=5, hoist=0, dt=0, t1p=0, t1w=0)
WS_STAMP = 0x7A00000

WT = lambda b: (' sc1' if OPT['wt'] & b else '') + (' sc0' if OPT['wt'] & b and OPT['wt'] & 8 else '') + (' nt' if OPT['wt'] & (b << 4) else '')
NT = lambda b: ' nt' if OPT['nt'] & b else ''
class K(Asm):
    def __init__(self):
        super().__init__(); self.uid = 0
    def lab(self, s='L'):
        self.uid += 1; return f"{s}_{self.uid}"
    def begin(self, name):
        self.kernel(name); self.k0 = len(self.lines)
    def end(self, name, vgpr, sgpr=102, accum=None):
        body, n = hazard.fix(self.lines[self.k0:])
        self.lines[self.k0:] = body
        print(f"{name}: {len(body)} lines, {n} nop states", file=sys.stderr)
        self.kd(name, vgpr, sgpr, accum)
    def st_init(self):
        if not OPT['stamp']: return
        self("s_memrealtime s[84:85]" if OPT['stamp'] != 2 else "s_memtime s[84:85]")
        if OPT['stamp'] == 3:
            self("s_waitcnt lgkmcnt(0)\ns_mov_b32 s70, s84"); return
        for i in range(1, 14): self(f"s_mov_b32 s{70+i}, 0")
        self("s_waitcnt lgkmcnt(0)\ns_mov_b32 s70, s84\ns_mov_b32 s86, s84")
    def st(self, i):
        if not OPT['stamp'] or OPT['stamp'] == 3: return
        if OPT['stamp'] == 5 and i < 20: return
        if i >= 20:
            if OPT['stamp'] != 5: return
            i -= 19
        if OPT['stamp'] == 4:
            if i in (3, 9, 4, 7):
                l = self.lab('ST')
                if OPT['frz'] and i != 3: self(f"s_cmp_gt_u32 s22, {OPT['frz'] + (1 if i == 9 else 0)}\ns_cbranch_scc1 {l}")
                self("s_memrealtime s[84:85]")
                for k in range(71, 83): self(f"s_mov_b32 s{k}, s{k+1}")
                self("s_waitcnt lgkmcnt(0)\ns_sub_u32 s83, s84, s86\ns_mov_b32 s86, s84\n" + l + ":")
            return
        self(f"{'s_memrealtime' if OPT['stamp'] == 1 else 's_memtime'} s[84:85]\ns_waitcnt lgkmcnt(0)\ns_sub_u32 s87, s84, s86\ns_mov_b32 s86, s84\ns_add_u32 s{70+i}, s{70+i}, s87")
    def st_out(self, kid, srd, swave, vt):
        if not OPT['stamp']: return
        self(f"s_lshl_b32 s87, s2, 4\ns_add_u32 s87, s87, {swave}\ns_lshl_b32 s87, s87, 6\ns_add_u32 s87, s87, {WS_STAMP + kid*0x80000}\ns_mov_b64 exec, 1\nv_mov_b32 v{vt+1}, 0")
        if OPT['stamp'] == 3: self("s_memrealtime s[84:85]\ns_waitcnt lgkmcnt(0)\ns_mov_b32 s71, s84")
        for i in range(2 if OPT['stamp'] == 3 else 14): self(f"v_mov_b32 v{vt}, s{70+i}\nbuffer_store_dword v{vt}, v{vt+1}, s[{srd}:{srd+3}], s87 offen offset:{4*i}")
    def codepf(self, first, last, lane4, vt, sp, vd=None):
        l = self.lab('PF')
        self(f"s_getpc_b64 s[{sp}:{sp+1}]\n{l}:\ns_add_u32 s{sp}, s{sp}, {first}-{l}\ns_addc_u32 s{sp+1}, s{sp+1}, 0\nv_lshlrev_b32 v{vt}, 5, v{lane4}\ns_mov_b32 s{sp+2}, 0")
        self(f"{l}_l:\nv_cmp_gt_u32 vcc, {last}-{first}, v{vt}\ns_and_b64 exec, exec, vcc\ns_cbranch_execz {l}_e\nglobal_load_dword v{vd or vt+1}, v{vt}, s[{sp}:{sp+1}]\nv_add_u32 v{vt}, 8192, v{vt}\ns_branch {l}_l\n{l}_e:\ns_mov_b64 exec, -1")
    def srd(self, d, base, nbytes):
        if nbytes == WS_SIZE and OPT['top']:
            off = OPT['top'] << 20
            self(f"s_add_u32 s{d}, s{base}, {off}\ns_addc_u32 s{d+1}, s{base+1}, 0\ns_and_b32 s{d+1}, s{d+1}, 0xffff\ns_mov_b32 s{d+2}, {nbytes-off}\ns_mov_b32 s{d+3}, 0x20000")
        else: super().srd(d, base, nbytes)
    def scan_incl(self, v):
        for s in (1, 2, 4, 8): self(f"v_add_u32_dpp v{v}, v{v}, v{v} row_shr:{s} {DPPF} bound_ctrl:0")
        self(f"v_add_u32_dpp v{v}, v{v}, v{v} row_bcast:15 row_mask:0xa bank_mask:0xf")
        self(f"v_add_u32_dpp v{v}, v{v}, v{v} row_bcast:31 row_mask:0xc bank_mask:0xf")
    def red63(self, op, v):
        for s in (1, 2, 4, 8): self(f"{op}_dpp v{v}, v{v}, v{v} row_shr:{s} {DPPF} bound_ctrl:0")
        self(f"{op}_dpp v{v}, v{v}, v{v} row_bcast:15 row_mask:0xa bank_mask:0xf")
        self(f"{op}_dpp v{v}, v{v}, v{v} row_bcast:31 row_mask:0xc bank_mask:0xf")

SWAPS = ((0, 85), (6, 91), (12, 95))
def levelpos(a, sw, d0, d1):
    t, u = d1+1, d1+2
    a(f"s_mul_i32 s{t}, s{sw}, 1338\ns_lshr_b32 s{t}, s{t}, 16\ns_mul_i32 s{t}, s{t}, 98\ns_lshl_b32 s{d0}, s{sw}, 1\ns_sub_u32 s{u}, s{d0}, s{t}")
    a(f"s_mov_b32 s{d0}, s{u}\ns_add_u32 s{d1}, s{u}, 1")
    for x, y in SWAPS:
        a(f"s_cmp_eq_u32 s{u}, {x}\ns_cselect_b32 s{d0}, {y}, s{d0}\ns_cmp_eq_u32 s{u}, {y-1}\ns_cselect_b32 s{d1}, {x}, s{d1}")
    a(f"s_add_u32 s{d0}, s{d0}, s{t}\ns_add_u32 s{d1}, s{d1}, s{t}")
def k1(a):
    name = 'p1_kernel'
    a.launch(name, NCH + NWIN + 8, 512, 40960)
    a.begin(name)
    a(f"s_cmp_ge_u32 s2, {NCH+NWIN+8}\ns_cbranch_scc1 K1_end")
    if OPT['k1o']: a(f"s_add_u32 s3, s2, {NCH}\ns_sub_u32 s2, s2, {NWIN+8}\ns_cselect_b32 s2, s3, s2")
    a.st_init()
    a("s_load_dwordx4 s[4:7], s[0:1], 0\ns_load_dwordx4 s[8:11], s[0:1], 16\ns_load_dwordx2 s[14:15], s[0:1], 88")
    a("v_lshlrev_b32 v1, 2, v0\nv_mov_b32 v2, 0\nv_mov_b32 v24, 1\nv_lshrrev_b32 v3, 6, v0\nv_and_b32 v25, 63, v0\nv_readfirstlane_b32 s37, v3")
    a(f"s_cmp_ge_u32 s2, {NCH+NWIN}\ns_cbranch_scc1 K1_mm\ns_cmp_ge_u32 s2, {NCH}\ns_cbranch_scc1 K1_win")
    a(f"v_lshlrev_b32 v3, 4, v0\ns_mul_i32 s38, s2, {CH*4}\ns_waitcnt lgkmcnt(0)")
    a.srd(16, 6, E*4); a.srd(20, 8, E*4); a.srd(28, 14, WS_SIZE)
    a("s_cmp_ge_u32 s37, 7\ns_cbranch_scc1 K1_nl\nv_cmp_gt_u32 vcc, 400, v0\ns_and_saveexec_b64 s[34:35], vcc")
    a(f"buffer_load_dwordx4 v[4:7], v3, s[16:19], s38 offen{NT(512)}\nbuffer_load_dwordx4 v[8:11], v3, s[20:23], s38 offen{NT(512)}\ns_mov_b64 exec, s[34:35]\nK1_nl:")
    a(f"s_cmp_lg_u32 s2, 64\ns_cbranch_scc1 K1_noy\ns_cmp_ge_u32 s37, 4\ns_cbranch_scc1 K1_noy\ns_mov_b32 s3, {WS_WDN}\nv_lshlrev_b32 v16, {OPT['wds']}, v0\nbuffer_store_dword v2, v16, s[28:31], s3 offen\nK1_noy:")
    a("s_cmp_ge_u32 s2, 64\ns_cbranch_scc1 K1_noz\ns_cmp_ge_u32 s37, 3\ns_cbranch_scc1 K1_noz")
    a(f"s_mul_i32 s3, s2, {FGS}\ns_add_u32 s3, s3, {WS_FLAGS}\nv_lshrrev_b32 v16, 3, v0\nv_min_u32 v16, 16, v16\nv_lshlrev_b32 v16, 7, v16\nv_and_b32 v17, 7, v0\nv_lshl_add_u32 v16, v17, 2, v16\nbuffer_store_dword v2, v16, s[28:31], s3 offen\nK1_noz:")
    if OPT['iw']:
        a(f"s_cmp_eq_u32 s37, 7\ns_cbranch_scc0 K1_niw\ns_cmp_ge_u32 s2, 192\ns_cbranch_scc1 K1_niw\ns_mul_i32 s3, s2, 21846\ns_lshr_b32 s3, s3, 16\ns_mul_i32 s40, s3, 3\ns_sub_u32 s40, s2, s40\ns_mul_i32 s3, s3, {RS}\ns_lshl_b32 s40, s40, 13\ns_add_u32 s3, s3, s40\ns_add_u32 s3, s3, {WS_IDX}")
        a("v_lshlrev_b32 v29, 7, v25\nbuffer_load_dword v29, v29, s[28:31], s3 offen\nK1_niw:")
    if OPT['cpf'] & 1:
        a("s_cmp_eq_u32 s37, 7\ns_cbranch_scc0 K1_npf\ns_cmp_lt_u32 s2, 16\ns_cbranch_scc0 K1_npf\nv_lshlrev_b32 v28, 2, v25"); a.codepf('hop_kernel', 'K3_join', 28, 30, 52); a("K1_npf:")
    a("v_mov_b32 v12, -1\nv_mov_b32 v13, -1\nv_mov_b32 v14, -1\nv_mov_b32 v15, -1\nv_mov_b32 v26, 12544\nv_mov_b32 v27, 25088")
    a("ds_write_b128 v3, v[12:15] offset:1024\nds_write_b128 v3, v[12:15] offset:9216\nds_write_b128 v3, v[12:15] offset:17408")
    a("s_cmp_ge_u32 s37, 4\ns_cbranch_scc1 K1_nc\nds_write_b32 v1, v2\ns_cmp_ge_u32 s37, 1\ns_cbranch_scc1 K1_nc\nds_write_b128 v3, v[12:15] offset:25600\nK1_nc:")
    a("s_waitcnt lgkmcnt(0)\ns_barrier")
    a("s_cmp_ge_u32 s37, 7\ns_cbranch_scc1 K1_ns\nv_cmp_gt_u32 vcc, 400, v0\ns_and_saveexec_b64 s[34:35], vcc\ns_waitcnt vmcnt(0)")
    a.st(1)
    for i in range(4):
        a(f"v_lshrrev_b32 v{12+i}, 7, v{8+i}\nv_and_b32 v16, 127, v{8+i}\nv_lshl_or_b32 v{4+i}, v16, 16, v{4+i}\nv_lshlrev_b32 v16, 2, v{12+i}\nds_add_rtn_u32 v{8+i}, v16, v24")
    for i in range(4):
        a(f"s_waitcnt lgkmcnt(3)" if i == 0 else "s_waitcnt lgkmcnt(3)")
        a(f"v_and_b32 v16, 15, v{8+i}\nv_lshlrev_b32 v16, 2, v16\nv_lshl_add_u32 v16, v{12+i}, 6, v16\nv_lshrrev_b32 v17, 4, v{8+i}\nv_mad_u32_u24 v16, v17, s39, v16".replace("s39", "v26"))
        a(f"v_cmp_gt_u32 vcc, 32, v{8+i}\nv_cndmask_b32 v16, v27, v16, vcc\nds_write_b32 v16, v{4+i} offset:1024")
    a("s_mov_b64 exec, s[34:35]\nK1_ns:\ns_waitcnt lgkmcnt(0)\ns_barrier")
    a("s_and_b32 s3, s2, 7\ns_lshl_b32 s3, s3, 5\ns_lshr_b32 s39, s2, 3\ns_add_u32 s3, s3, s39\ns_lshl_b32 s3, s3, 6")
    a(f"s_add_u32 s39, s3, {WS_PART}\ns_add_u32 s40, s3, {WS_PARTB}")
    a("v_lshrrev_b32 v16, 2, v0\nv_and_b32 v17, 3, v0\nv_lshlrev_b32 v17, 4, v17\nv_mov_b32 v18, " + str(PWS) + "\nv_mad_u32_u24 v17, v16, v18, v17\nv_and_b32 v18, 0xfffffffc, v0")
    a("ds_read_b128 v[4:7], v3 offset:1024\nds_read_b128 v[8:11], v3 offset:9216\nds_read_b32 v19, v18\nds_read_b32 v20, v18 offset:512")
    a(f"v_add_u32 v21, {128*PWS}, v17\nv_cmp_gt_u32 vcc, {784-512}, v0\ns_mov_b64 s[42:43], vcc")
    a("s_waitcnt lgkmcnt(3)\nbuffer_store_dwordx4 v[4:7], v17, s[28:31], s39 offen" + WT(2) + "\ns_waitcnt lgkmcnt(0)")
    a("v_cndmask_b32 v20, 0, v20, s[42:43]\nv_max_u32 v22, v19, v20\ns_mov_b64 exec, s[42:43]\ns_cbranch_execz K1_n2")
    a("buffer_store_dwordx4 v[8:11], v21, s[28:31], s39 offen" + WT(2) + "\nK1_n2:\ns_mov_b64 exec, -1")
    a("v_cmp_le_u32 vcc, 16, v22\ns_cbranch_vccz K1_nb")
    a(f"ds_read_b128 v[4:7], v3 offset:{1024+12544}\nds_read_b128 v[8:11], v3 offset:{1024+12544+8192}\ns_waitcnt lgkmcnt(0)")
    a("v_cmp_le_u32 vcc, 16, v19\ns_mov_b64 exec, vcc\ns_cbranch_execz K1_b1\nbuffer_store_dwordx4 v[4:7], v17, s[28:31], s40 offen\nK1_b1:\ns_mov_b64 exec, -1")
    a("v_cmp_le_u32 vcc, 16, v20\ns_mov_b64 exec, vcc\ns_cbranch_execz K1_b2\nbuffer_store_dwordx4 v[8:11], v21, s[28:31], s40 offen\nK1_b2:\ns_mov_b64 exec, -1")
    a("K1_nb:")
    a(f"v_cmp_lt_u32 vcc, 32, v22\ns_cmp_lg_u64 vcc, 0\ns_cselect_b32 s3, 1, 0\nv_mov_b32 v4, s3\ns_lshr_b32 s39, s39, 1\ns_and_b32 s39, s39, 0x1fe0\ns_lshl_b32 s3, s37, 2\ns_add_u32 s39, s39, s3\ns_add_u32 s39, s39, {WS_IRR}")
    a("s_mov_b64 exec, 1\nbuffer_store_dword v4, v2, s[28:31], s39 offen")
    a.st(2); a.st_out(0, 28, 's37', 10); a("s_endpgm")
    B = 32768
    a("K1_win:")
    a(f"s_sub_u32 s36, s2, {NCH}\ns_lshl_b32 s38, s36, 7\ns_waitcnt lgkmcnt(0)")
    a.srd(16, 4, N*256); a.srd(24, 10, N*2); a.srd(28, 14, WS_SIZE)
    a("v_lshlrev_b32 v3, 4, v25\ns_lshl_b32 s39, s36, 15\ns_lshl_b32 s40, s37, 12\ns_add_u32 s39, s39, s40")
    a("v_add_u32 v5, s38, v0\nv_lshlrev_b32 v6, 1, v5\ns_cmp_ge_u32 s37, 2\ns_cbranch_scc1 K1_w0\nbuffer_load_ushort v4, v6, s[24:27], 0 offen" + NT(128) + "\nK1_w0:")
    for it in range(4): a(f"buffer_load_dwordx4 v[{32+4*it}:{35+4*it}], v3, s[16:19], s39 offen offset:{it*1024}{NT(2)}")
    a(f"ds_write_b32 v1, v2 offset:{B}")
    levelpos(a, 36, 44, 45)
    for d, x in ((50, 44), (53, 45)):
        a(f"s_sub_u32 s48, s{x}, s46\ns_mul_i32 s49, s48, 43\ns_lshr_b32 s49, s49, 8\ns_mul_i32 s49, s49, 6\ns_cmp_ge_u32 s48, 84\ns_cselect_b32 s49, 84, s49\ns_cmp_ge_u32 s48, 91\ns_cselect_b32 s49, 91, s49")
        a(f"s_sub_u32 s48, s48, s49\ns_cmp_ge_u32 s48, 4\ns_cselect_b32 s{d+1}, 1, 2\ns_cselect_b32 s{d+2}, 4, 0\ns_cmp_eq_u32 s48, 6\ns_cselect_b32 s{d+1}, 0, s{d+1}\ns_cselect_b32 s{d+2}, 6, s{d+2}")
        a(f"s_sub_u32 s48, s48, s{d+2}\ns_sub_u32 s{d}, s{x}, s48\ns_lshl_b32 s{d}, s{d}, 6\ns_add_u32 s{d}, s{d}, s48")
    a("s_lshl_b32 s44, s44, 6\ns_lshl_b32 s45, s45, 6\ns_sub_u32 s45, s45, 64\ns_waitcnt lgkmcnt(0)\ns_barrier\ns_cmp_ge_u32 s37, 2\ns_cbranch_scc1 K1_w1\ns_waitcnt vmcnt(4)"); a.st(4)
    a("v_lshlrev_b32 v4, 16, v4\nv_mov_b32 v23, 0x2b800000\nv_cmp_eq_f32 vcc, 0, v4\nv_cndmask_b32 v4, v4, v23, vcc\nv_mul_f32 v7, v4, v4\nv_rcp_f32 v7, v7\nv_rndne_f32 v7, v7\nv_cvt_u32_f32 v7, v7\nv_med3_u32 v7, v7, 1, 63")
    a(f"v_cmp_gt_u32 vcc, {N}, v5\nv_cndmask_b32 v7, 0, v7, vcc\nv_lshlrev_b32 v7, 2, v7\nds_add_rtn_u32 v8, v7, v24 offset:{B}\ns_waitcnt lgkmcnt(0)\nK1_w1:\ns_barrier")
    a("s_cmp_ge_u32 s37, 2\ns_cbranch_scc1 K1_w2")
    a(f"v_lshlrev_b32 v9, 2, v25\nds_read_b32 v20, v9 offset:{B}\ns_waitcnt lgkmcnt(0)\nv_mov_b32 v21, v20")
    a.scan_incl(21)
    a("v_sub_u32 v21, v21, v20\nds_bpermute_b32 v21, v7, v21\ns_waitcnt lgkmcnt(0)\nv_add_u32 v8, v8, v21")
    a(f"v_lshlrev_b32 v9, 2, v8\nds_write_b32 v1, v9 offset:{B+512}\nds_write_b32 v9, v4 offset:{B+1024}\nv_lshrrev_b32 v7, 2, v7\nv_sub_u32 v7, v7, v24 clamp\nds_write_b32 v9, v7 offset:{B+1536}")
    a("v_mov_b32 v10, s44\nv_mov_b32 v11, s45\nv_cmp_gt_u32 vcc, 64, v8\nv_cndmask_b32 v10, v11, v10, vcc\nv_add_u32 v10, v10, v8\nv_lshlrev_b32 v11, 2, v10")
    a(f"s_mov_b32 s3, {WS_NEWID}\nbuffer_store_short v10, v6, s[28:31], s3 offen\ns_mov_b32 s3, {WS_LOC}\nbuffer_store_short v8, v6, s[28:31], s3 offen")
    a("v_mov_b32 v14, s50\nv_mov_b32 v15, s53\nv_cndmask_b32 v14, v15, v14, vcc\nv_mov_b32 v15, s51\nv_mov_b32 v16, s54\nv_cndmask_b32 v15, v16, v15, vcc\nv_and_b32 v16, 63, v8\nv_lshlrev_b32 v16, v15, v16\nv_add_lshl_u32 v14, v14, v16, 2")
    a(f"s_mov_b32 s3, {WS_PERM}\nbuffer_store_dword v5, v14, s[28:31], s3 offen\nv_mul_f32 v12, v4, v4\nv_rcp_f32 v13, v4\ns_mov_b32 s3, {WS_DISP}\nbuffer_store_dword v12, v11, s[28:31], s3 offen\ns_mov_b32 s3, {WS_SINV}\nbuffer_store_dword v13, v14, s[28:31], s3 offen")
    a("s_waitcnt lgkmcnt(0)\nK1_w2:\ns_barrier")
    a.st(1)
    a(f"s_cmp_ge_u32 s37, 2\ns_cbranch_scc1 K1_nt\nds_read_b32 v6, v1 offset:{B+1536}\ns_waitcnt lgkmcnt(0)\nv_mov_b32 v7, v6")
    for sft in (1, 2, 4, 8): a(f"v_max_u32_dpp v6, v6, v6 row_shr:{sft} {DPPF} bound_ctrl:0\nv_add_u32_dpp v7, v7, v7 row_shr:{sft} {DPPF} bound_ctrl:0")
    for bc, m in ((15, '0xa'), (31, '0xc')): a(f"v_max_u32_dpp v6, v6, v6 row_bcast:{bc} row_mask:{m} bank_mask:0xf\nv_add_u32_dpp v7, v7, v7 row_bcast:{bc} row_mask:{m} bank_mask:0xf")
    a("v_readlane_b32 s40, v6, 63\nv_readlane_b32 s41, v7, 63")
    a(f"s_mul_i32 s41, s41, {OPT['tal']}\ns_lshr_b32 s41, s41, 10\ns_add_u32 s41, s41, {OPT['tbe']}\ns_max_u32 s41, s41, s40\ns_add_u32 s41, s41, 3\ns_lshr_b32 s41, s41, 2\ns_min_u32 s41, s41, 16\ns_max_u32 s41, s41, 1")
    a(f"s_add_u32 s3, s45, 64\ns_cmp_eq_u32 s37, 0\ns_cselect_b32 s3, s44, s3\ns_lshr_b32 s3, s3, 4\ns_add_u32 s3, s3, {WS_TQ}\nv_mov_b32 v6, s41\ns_mov_b64 exec, 1\nbuffer_store_dword v6, v2, s[28:31], s3 offen\ns_mov_b64 exec, -1\nK1_nt:")
    a("v_lshrrev_b32 v9, 4, v25\nv_lshlrev_b32 v9, 2, v9\ns_lshl_b32 s3, s37, 6\nv_add_u32 v9, s3, v9\nv_and_b32 v12, 15, v25\nv_lshlrev_b32 v13, 4, v12\nv_lshlrev_b32 v12, 11, v12")
    for it in range(4): a(f"ds_read_b32 v{16+it}, v9 offset:{B+512+16*it}")
    a(f"v_and_b32 v14, 31, v25\nv_lshlrev_b32 v15, 4, v14\nds_read_b128 v[28:31], v15 offset:{B+1024}")
    for it in range(4):
        a(f"s_waitcnt lgkmcnt({4 if it == 0 else 4+3})" if False else "")
    a("s_waitcnt lgkmcnt(0)")
    for it in range(4):
        a(f"v_xor_b32 v{16+it}, v{16+it}, v13\nv_add_u32 v{16+it}, v{16+it}, v12")
    a("s_cmp_ge_u32 s37, 2\ns_cbranch_scc1 K1_w3\ns_waitcnt vmcnt(6)\ns_branch K1_w4\nK1_w3:\ns_waitcnt vmcnt(0)\nK1_w4:"); a.st(5)
    for it in range(4):
        for i in range(4): a(f"ds_write_b32 v{16+it}, v{32+4*it+i} offset:{i*512}")
    a("v_lshrrev_b32 v20, 5, v25\ns_lshl_b32 s3, s37, 5\nv_xor_b32 v21, s3, v15\nv_lshl_add_u32 v21, v20, 9, v21\ns_lshl_b32 s3, s37, 12\nv_add_u32 v21, s3, v21\nv_xor_b32 v22, 16, v21")
    a("v_mov_b32 v10, s44\nv_mov_b32 v11, s45\nv_cmp_gt_u32 vcc, 16, v14\nv_cndmask_b32 v10, v11, v10, vcc\nv_lshl_add_u32 v10, v14, 2, v10")
    a(f"s_mov_b32 s3, {GS}\nv_mul_lo_u32 v20, v20, s3\nv_lshl_add_u32 v10, v10, 2, v20")
    a(f"s_mul_i32 s42, s37, {8*GS}\ns_add_u32 s42, s42, {WS_G}")
    a("s_waitcnt lgkmcnt(0)\ns_barrier")
    a.st(2)
    for j in range(4): a(f"ds_read_b128 v[{32+4*j}:{35+4*j}], v{21 if j < 2 else 22} offset:{j*1024}")
    for j in range(4):
        a(f"s_waitcnt lgkmcnt({3-j})")
        for i in range(4):
            a(f"v_lshlrev_b32 v4, 16, v{32+4*j+i}\nv_and_b32 v5, 0xffff0000, v{32+4*j+i}\nv_mul_f32 v4, v{28+i}, v4\nv_mul_f32 v5, v{28+i}, v5\nv_cvt_pk_bf16_f32 v{48+4*(j&1)+i}, v4, v5")
        a(f"buffer_store_dwordx4 v[{48+4*(j&1)}:{51+4*(j&1)}], v10, s[28:31], s42 offen{WT(1)}")
        if j < 3: a(f"s_add_u32 s42, s42, {2*GS}")
    a.st(3); a.st_out(0, 28, 's37', 10); a("s_endpgm")
    a(f"K1_mm:\ns_sub_u32 s36, s2, {NCH+NWIN}\ns_lshr_b32 s34, s36, 2\ns_and_b32 s35, s36, 3\ns_load_dwordx8 s[40:47], s[0:1], 32\ns_load_dwordx2 s[48:49], s[0:1], 64\nv_lshlrev_b32 v9, 4, v25\nv_lshlrev_b32 v10, 1, v0")
    a("v_lshrrev_b32 v5, 4, v25\nv_and_b32 v6, 15, v25\nv_xor_b32 v6, v6, v5\nv_lshlrev_b32 v6, 4, v6\nv_lshl_add_u32 v6, v5, 8, v6\nv_lshlrev_b32 v8, 4, v25\nv_and_b32 v3, 31, v25\nv_lshrrev_b32 v4, 5, v25")
    a("s_waitcnt lgkmcnt(0)\ns_cmp_eq_u32 s34, 0\ns_cselect_b32 s52, s40, s44\ns_cselect_b32 s53, s41, s45\ns_cselect_b32 s54, s42, s46\ns_cselect_b32 s55, s43, s47\ns_cselect_b64 s[56:57], -1, 0")
    a.srd(20, 52, 32768); a.srd(24, 54, 32768); a.srd(28, 14, WS_SIZE); a.srd(16, 48, 256)
    a("buffer_load_ushort v10, v10, s[16:19], 0 offen")
    a("s_and_b32 s39, s37, 3\ns_lshl_b32 s39, s39, 6\nv_xor_b32 v7, s39, v6\ns_lshl_b32 s39, s37, 10\ns_mov_b32 m0, s39\ns_lshl_b32 s38, s35, 13\ns_add_u32 s38, s38, s39\nbuffer_load_dwordx4 v7, s[20:23], s38 offen" + NT(256) + " lds")
    a("s_lshl_b32 s38, s37, 12\ns_add_u32 m0, s38, 8192")
    for i in range(4): a(f"v_xor_b32 v7, {64*i}, v6\nv_cndmask_b32 v7, v8, v7, s[56:57]\nbuffer_load_dwordx4 v7, s[24:27], s38 offen offset:{1024*i}{NT(256)} lds")
    a("s_and_b32 s39, s37, 3\ns_lshr_b32 s40, s37, 2\ns_lshl_b32 s41, s40, 7")
    a("v_and_b32 v5, 15, v3\nv_xor_b32 v5, v5, v4\nv_lshlrev_b32 v5, 4, v5\nv_lshl_add_u32 v5, v3, 8, v5\nv_xor_b32 v5, s41, v5\ns_lshl_b32 s42, s39, 13\ns_add_u32 s42, s42, 8192\nv_add_u32 v7, s42, v5")
    a("s_waitcnt vmcnt(0)\ns_barrier")
    for u in range(4): a(f"v_xor_b32 v8, {32*u}, v5\nds_read_b128 v[{16+4*u}:{19+4*u}], v8")
    a("s_cmp_eq_u32 s34, 0\ns_cbranch_scc0 K1_mb")
    for u in range(4): a(f"v_xor_b32 v8, {32*u}, v7\nds_read_b128 v[{32+4*u}:{35+4*u}], v8")
    a("s_branch K1_mc\nK1_mb:")
    a("v_lshlrev_b32 v6, 11, v4\nv_lshl_add_u32 v6, v3, 1, v6\ns_lshl_b32 s42, s39, 6\ns_lshl_b32 s43, s40, 14\ns_add_u32 s42, s42, s43\ns_add_u32 s42, s42, 8192\nv_add_u32 v6, s42, v6")
    for u in range(4):
        for t in range(8): a(f"ds_read_u16 v{(48 if t&1 else 32)+4*u+t//2}, v6 offset:{(16*u+t)*256}")
    a("s_waitcnt lgkmcnt(0)")
    for i in range(16): a(f"v_lshl_or_b32 v{32+i}, v{48+i}, 16, v{32+i}")
    a("K1_mc:\ns_waitcnt lgkmcnt(0)")
    for u in range(4): a(f"v_mfma_f32_32x32x16_bf16 v[48:63], v[{16+4*u}:{19+4*u}], v[{32+4*u}:{35+4*u}], {'0' if u == 0 else 'v[48:63]'}")
    a(f"s_lshl_b32 s42, s36, 15\ns_lshl_b32 s43, s39, 13\ns_add_u32 s42, s42, s43\ns_lshl_b32 s43, s40, 12\ns_add_u32 s42, s42, s43\ns_add_u32 s42, s42, {WS_PM}")
    a(f"s_mov_b32 s3, {WS_WFR+WFR_SW+256}\nv_lshlrev_b32 v10, 16, v10\ns_cmp_lg_u32 s36, 0\ns_cbranch_scc1 K1_nw\nbuffer_store_dword v10, v1, s[28:31], s3 offen\nK1_nw:")
    for i in range(4): a(f"buffer_store_dwordx4 v[{48+4*i}:{51+4*i}], v9, s[28:31], s42 offen offset:{1024*i}")
    a.st(3); a.st_out(0, 28, 's37', 10)
    a("K1_end:\ns_endpgm")
    a.end(name, 64, 102 if OPT['stamp'] else 64)

L2_CNT = 0; L2_LU = 512; L2_BU = 1024; L2_LOC = 2048; L2_IRR = 2304; L2_O = 2560; L2_L = L2_O + 16384; TB = QN*8 + 64; L2_NEW = TB
def k2_window(a):
    Ev, NS, ND = 20, 24, 28
    MK = lambda j: f"s[{40+2*j}:{41+2*j}]"
    a(f"v_lshlrev_b32 v3, 4, v0\ns_mul_i32 s34, s2, {PWS}\ns_add_u32 s65, s34, {WS_PART}\nbuffer_load_dwordx4 v[{Ev}:{Ev+3}], v3, s[28:31], s65 offen{NT(32)}")
    a(f"v_lshlrev_b32 v4, 3, v0\ns_mov_b32 s35, {WS_IRR}\nbuffer_load_dwordx2 v[6:7], v4, s[28:31], s35 offen")
    a("v_lshlrev_b32 v5, 4, v2")
    a(f"s_lshl_b32 s34, s33, 10\ns_add_u32 s35, s34, {WS_NEWID}\ns_add_u32 s34, s34, {L2_NEW}")
    for i in range(4):
        if i == 3: a("s_cmp_lg_u32 s33, 0\ns_cbranch_scc1 K2_nd")
        a(f"s_mov_b32 m0, s34\nbuffer_load_dwordx4 v5, s[28:31], s35 offen lds")
        if i < 3: a("s_add_u32 s34, s34, 16384\ns_add_u32 s35, s35, 16384")
    a(f"s_lshl_b32 s35, s2, 8\ns_add_u32 s35, s35, {WS_LOC}\ns_mov_b32 m0, {L2_LOC}\nv_lshlrev_b32 v8, 2, v2\nbuffer_load_dword v8, s[28:31], s35 offen lds")
    a("K2_nd:")
    a("v_lshlrev_b32 v8, 2, v0\nv_mov_b32 v10, 0\ns_cmp_ge_u32 s33, 8\ns_cbranch_scc1 K2_nz\ns_and_b32 s35, s33, 6\ns_cmp_eq_u32 s35, 2\ns_cbranch_scc1 K2_nz\ns_cmp_ge_u32 s33, 2\ns_cselect_b32 s35, -1, 0\nv_mov_b32 v9, s35\nds_write_b32 v8, v9\nds_write_b32 v10, v10 offset:" + str(L2_IRR) + "\nK2_nz:")
    a("v_bfe_u32 v9, v0, 2, 5\nv_lshrrev_b32 v11, 7, v0\nv_lshl_add_u32 v9, v9, 3, v11")
    a(f"v_cmp_gt_u32 vcc, {NCH}, v9\ns_mov_b64 s[38:39], vcc\nv_mov_b32 v12, 1\nv_mov_b32 v13, 0xfc\ns_mov_b32 s64, 0\ns_mov_b32 s66, {L2_L}\ns_mov_b32 s67, 0")
    levelpos(a, 2, 60, 61)
    a("s_cmp_lt_u32 s33, 8\ns_cselect_b32 s60, s60, s61\ns_sub_u32 s61, s60, s62\ns_mul_i32 s63, s61, 43\ns_lshr_b32 s63, s63, 8\ns_cmp_ge_u32 s61, 84\ns_cselect_b32 s63, 14, s63\ns_cmp_ge_u32 s61, 91\ns_cselect_b32 s63, 15, s63")
    a("s_mul_i32 s68, s63, 6\ns_cselect_b32 s68, 91, s68\ns_sub_u32 s69, s61, s68\ns_add_u32 s68, s68, s62")
    a(f"s_lshl_b32 s68, s68, 2\ns_add_u32 s68, s68, {WS_TQ}\ns_buffer_load_dwordx8 s[48:55], s[28:31], s68")
    a(f"s_mul_i32 s62, s62, 10700\ns_lshr_b32 s62, s62, 16\ns_add_u32 s62, s62, s63\ns_mul_i32 s68, s62, {RS}\ns_add_u32 s68, s68, {WS_IDX}")
    a("s_waitcnt lgkmcnt(0)")
    a("s_mov_b32 s56, 0\ns_and_b32 s57, s48, 0xffff")
    for i in range(6): a(f"s_cmp_gt_u32 s69, {i}\ns_cselect_b32 s58, s57, 0\ns_cselect_b32 s57, s{49+i}, s57\ns_add_u32 s56, s56, s58\ns_and_b32 s57, s57, 0xffff")
    a(f"s_and_b32 s58, s33, 7\ns_cbranch_scc1 K2_nlu\ns_lshl_b32 s58, s57, 2\ns_min_u32 s58, s58, 32\ns_lshl_b64 s[58:59], -1, s58\ns_not_b32 s58, s58\nv_mov_b32 v9, s58\ns_lshl_b32 s58, s33, 5\nv_lshl_add_u32 v8, v2, 2, s58\nds_write_b32 v8, v9 offset:{L2_LU}\nK2_nlu:")
    a("s_waitcnt vmcnt(0) lgkmcnt(0)\ns_barrier"); a.st(11); a.st(20)
    gwarm(a)
    if OPT['tp'] == 0: tabledma(a, 5, 'c', 2)
    a("v_or_b32 v6, v6, v7\nv_cmp_ne_u32 vcc, 0, v6\ns_and_b64 vcc, vcc, s[38:39]\ns_cbranch_vccz K2_reg\nds_write_b32 v10, v12 offset:" + str(L2_IRR) + "\nK2_reg:")
    a("K2_loop:\ns_mov_b64 exec, s[38:39]")
    for j in range(4): a(f"v_cmp_ne_u32 {MK(j)}, -1, v{Ev+j}")
    for j in range(4):
        a(f"s_mov_b64 exec, {MK(j)}")
        a(f"v_lshlrev_b32_sdwa v15, 1, v{Ev+j} {SD} src1_sel:WORD_0\nv_lshrrev_b32 v16, 15, v{Ev+j}")
        a(f"ds_read_u16 v{ND+j}, v16 offset:{L2_LOC}\nds_read_u16 v{NS+j}, v15 offset:{L2_NEW}")
    a("s_waitcnt lgkmcnt(0)"); a.st(21)
    for j in range(4):
        a(f"s_mov_b64 exec, {MK(j)}\nv_lshlrev_b32 v{ND+j}, 2, v{ND+j}\nds_add_rtn_u32 v{32+j}, v{ND+j}, v12 offset:{L2_CNT}")
        a(f"v_and_or_b32 v{36+j}, v{ND+j}, v13, s66\nv_lshrrev_b32 v16, 8, v{ND+j}\nv_lshl_add_u32 v{36+j}, v16, 13, v{36+j}")
    a("s_waitcnt lgkmcnt(0)")
    for j in range(4):
        a(f"s_mov_b64 exec, {MK(j)}")
        a(f"v_lshrrev_b32 v16, 1, v{32+j}\nv_lshl_add_u32 v15, v16, 8, v{36+j}\nv_and_b32 v16, 1, v{32+j}\nv_lshl_add_u32 v15, v16, 1, v15")
        a(f"v_cmp_gt_u32 vcc, 64, v{32+j}\ns_and_b64 exec, exec, vcc\nds_write_b16 v15, v{NS+j}")
    a(f"s_mov_b64 exec, -1\ns_cmp_lg_u32 s64, 0\ns_cbranch_scc1 K2_pa\nv_cndmask_b32 v15, 0, v12, {MK(3)}\ns_mov_b32 s64, 1")
    a(f"v_mov_b32_dpp v15, v15 quad_perm:[3,3,3,3] {DPPF}\nv_cmp_ne_u32 s[38:39], 0, v15\ns_cmp_eq_u64 s[38:39], 0\ns_cbranch_scc1 K2_pa")
    a(f"s_mov_b64 exec, s[38:39]\ns_add_u32 s65, s65, {WS_PARTB-WS_PART}\nbuffer_load_dwordx4 v[{Ev}:{Ev+3}], v3, s[28:31], s65 offen\ns_waitcnt vmcnt(0)\ns_branch K2_loop")
    a("K2_pa:\ns_waitcnt lgkmcnt(0)"); a.st(22); a("s_barrier"); a.st(12); a.st(23)
    if OPT['tp'] == 1: tabledma(a, 5, 'c', 2)
    a("s_mov_b32 s41, s57\ns_mov_b32 s61, s56\ns_lshr_b32 s34, s33, 3\ns_and_b32 s36, s33, 7\ns_lshl_b32 s35, s34, 8\nv_lshl_add_u32 v4, v2, 2, s35\nds_read_b32 v5, v4")
    a(f"s_lshl_b32 s37, s34, 13\ns_add_u32 s37, s37, {L2_L}\ns_lshr_b32 s46, s36, 1\ns_lshl_b32 s46, s46, 8\ns_and_b32 s47, s36, 1\ns_lshl_b32 s47, s47, 1\ns_add_u32 s46, s46, s47\ns_add_u32 s46, s46, s37\nv_lshl_add_u32 v16, v2, 2, s46")
    for t in range(4): a(f"ds_read_u16 v{20+t}, v16 offset:{t*1024}")
    a("s_lshl_b32 s42, s41, 2\ns_waitcnt lgkmcnt(4)\nv_cmp_lt_u32 vcc, s42, v5\ns_min_u32 s42, s42, 32\ns_lshl_b64 s[44:45], -1, s42\ns_not_b32 s44, s44")
    a("s_cbranch_vccz K2_ntq")
    a(f"ds_write_b32 v10, v12 offset:{L2_IRR}\nK2_ntq:")
    a("v_min_u32 v15, s42, v5\nv_subrev_u32 v15, s36, v15\nv_add_u32 v15, 7, v15\nv_lshrrev_b32 v15, 3, v15")
    a(f"s_sub_u32 s43, s42, {OPT['xr']}\ns_max_i32 s43, s43, 2\ns_bfm_b32 s45, s43, 0\ns_cmp_eq_u32 s43, 32\ns_cselect_b32 s45, -1, s45")
    a("s_lshl_b32 s46, s36, 2\nv_add_u32 v17, s46, v2\nv_and_b32 v17, 31, v17\nv_mul_u32_u24 v17, s43, v17\nv_lshrrev_b32 v17, 5, v17")
    a(f"s_lshl_b32 s46, s34, 9\ns_add_u32 s46, s46, {L2_BU}\nv_lshrrev_b32 v8, 5, v2\nv_lshlrev_b32 v8, 8, v8\nv_add_u32 v8, s46, v8")
    a(f"s_lshl_b32 s47, s34, 13\ns_add_u32 s47, s47, {L2_O}\nv_lshl_add_u32 v19, v2, 2, s47")
    a("v_mov_b32 v24, s44\nv_mov_b32 v26, -1\nv_mov_b32 v27, -1\nv_mov_b32 v41, 0x7c\ns_waitcnt lgkmcnt(0)")
    a("v_lshl_or_b32 v20, v21, 16, v20\nv_lshl_or_b32 v21, v23, 16, v22\nv_cmp_lt_u32 vcc, 0, v15")
    a.st(24)
    a("K2_rd:\ns_mov_b64 exec, vcc\ns_cbranch_execz K2_sd")
    a("v_and_b32 v28, v24, v26\nv_lshlrev_b32 v25, 2, v20\nv_and_b32 v31, s45, v28\nv_cmp_ne_u32 s[48:49], 0, v31\nv_cmp_ne_u32 s[52:53], 0, v28\nv_and_or_b32 v25, v25, v41, v8")
    a("v_cndmask_b32 v31, v28, v31, s[48:49]\nv_alignbit_b32 v31, v31, v31, v17\nv_ffbl_b32 v31, v31\nv_add_u32 v37, v31, v17\ns_cmp_ge_u32 s67, " + str(OPT['fr']) + "\ns_cselect_b64 s[56:57], -1, 0\ns_mov_b64 s[50:51], s[56:57]\ns_andn2_b64 s[54:55], exec, s[52:53]\ns_cbranch_scc0 K2_l1")
    a("s_mov_b64 exec, s[54:55]\nv_and_b32 v29, v24, v27\nv_cmp_eq_u32 s[50:51], 0, v29\nv_add_u32 v25, 128, v25\nv_cndmask_b32 v29, v29, v24, s[50:51]\nv_ffbh_u32 v29, v29\nv_sub_u32 v37, 31, v29\ns_or_b64 s[50:51], s[50:51], s[56:57]\ns_mov_b64 exec, vcc\nK2_l1:")
    a(f"v_lshlrev_b32 v34, v37, v12\nv_not_b32 v33, v34\nds_and_rtn_b32 v24, v4, v33 offset:{L2_LU}\nds_and_rtn_b32 v36, v25, v33\nv_and_b32 v37, 31, v37\nv_lshl_add_u32 v37, v37, 8, v19")
    a("s_waitcnt lgkmcnt(0)\nv_and_b32 v35, v24, v34\nv_and_b32 v38, v36, v34\nv_cndmask_b32 v39, v38, v34, s[50:51]\nv_and_b32 v39, v39, v35\nv_cmp_ne_u32 s[48:49], 0, v39")
    a(f"s_andn2_b64 exec, exec, s[48:49]\nds_or_b32 v4, v35 offset:{L2_LU}\nds_or_b32 v25, v38\nv_cndmask_b32 v26, v26, v36, s[52:53]\nv_cndmask_b32 v27, v36, v27, s[52:53]")
    a("s_mov_b64 exec, s[48:49]\nds_write_b16 v37, v20\nv_and_b32 v24, v24, v33\nv_alignbit_b32 v20, v21, v20, 16\nv_lshrrev_b32 v21, 16, v21\nv_mov_b64 v[26:27], -1\nv_subrev_u32 v15, 1, v15")
    a("s_mov_b64 exec, vcc\nv_cmp_lt_u32 vcc, 0, v15\ns_add_u32 s67, s67, 1\ns_cmp_lt_u32 s67, 4096\ns_cbranch_scc1 K2_rd")
    a(f"s_mov_b64 exec, -1\nds_write_b32 v10, v12 offset:{L2_IRR}")
    a("K2_sd:\ns_mov_b64 exec, -1")
    if OPT['tp'] >= 2: a("v_lshlrev_b32 v44, 4, v2"); tabledma(a, 44, 'c', 2 if OPT['tp'] == 2 else 3 if OPT['tp'] == 3 else 6)
    a("s_waitcnt lgkmcnt(0)"); a.st(25); a("s_barrier"); a.st(13); a.st(26)
    a("s_cmp_ge_u32 s36, s41\ns_cbranch_scc1 K2_end")
    a(f"s_lshl_b32 s46, s36, 10\nv_add_u32 v11, s46, v19\nv_and_b32 v18, 31, v2\nv_lshl_add_u32 v18, v18, 2, v8")
    a(f"ds_read_b32 v16, v4 offset:{L2_LU}\nds_read_b32 v18, v18\nds_read2st64_b32 v[20:21], v11 offset0:0 offset1:1\nds_read2st64_b32 v[22:23], v11 offset0:2 offset1:3")
    a(f"s_lshl_b32 s47, s36, 9\ns_add_u32 s37, s37, s47\nv_lshl_add_u32 v12, v2, 2, s37\nds_read2st64_b32 v[24:25], v12 offset0:16 offset1:17")
    a(f"v_mov_b32 v13, 0xffff\nv_lshlrev_b32 v15, 4, v2\ns_add_u32 s61, s61, s36\ns_lshr_b32 s39, s61, 1\ns_lshl_b32 s39, s39, 10\ns_and_b32 s61, s61, 1\ns_lshl_b32 s61, s61, 3\ns_add_u32 s39, s39, s61\ns_add_u32 s39, s39, s68\ns_lshl_b32 s38, s36, 2\ns_mov_b32 s50, -1\ns_mov_b32 s51, 0\ns_waitcnt lgkmcnt(3)")
    a("v_lshrrev_b32 v16, s38, v16\nv_lshrrev_b32 v18, s38, v18")
    for t in range(4):
        a(f"v_and_b32 v26, {1 << t}, v18\nv_cmp_ne_u32 s[{52+2*t}:{53+2*t}], 0, v26")
    for r in range(52, 60): a(f"s_ff1_i32_b32 s{r}, s{r}\ns_and_b32 s{r}, s{r}, 31\ns_add_u32 s{r}, s{r}, {ZB}")
    a("s_waitcnt lgkmcnt(0)")
    for t in range(4):
        a(f"v_mov_b32 v26, s{52+2*t}\nv_mov_b32 v27, s{53+2*t}\nv_cndmask_b32 v26, v27, v26, s[50:51]\nv_and_b32 v27, {1 << t}, v16\nv_cmp_ne_u32 vcc, 0, v27\nv_cndmask_b32 v{20+t}, v{20+t}, v26, vcc")
    a("v_and_b32 v20, v13, v20\nv_and_b32 v22, v13, v22\nv_lshl_or_b32 v20, v21, 17, v20\nv_lshl_or_b32 v21, v23, 17, v22\nbuffer_store_dwordx2 v[20:21], v15, s[28:31], s39 offen sc1")
    a("s_add_u32 s36, s36, 8\ns_cmp_ge_u32 s36, s41\ns_cbranch_scc1 K2_end")
    a(f"v_mov_b32 v43, -1\ns_add_u32 s38, s38, 32\nv_subrev_u32 v5, s38, v5\nv_mov_b32 v14, {ZB | (ZB << 16)}")
    for h in range(2):
        a(f"v_cmp_lt_i32 vcc, {2*h}, v5\nv_cndmask_b32 v26, 0, v13, vcc\nv_cmp_lt_i32 vcc, {2*h+1}, v5\nv_cndmask_b32 v26, v26, v40, vcc".replace("v40", "v43"))
        a(f"v_bfi_b32 v{24+h}, v26, v{24+h}, v14\nv_and_b32 v26, 0xffff0000, v{24+h}\nv_add_u32 v{24+h}, v{24+h}, v26")
    a("s_add_u32 s39, s39, 4096\nbuffer_store_dwordx2 v[24:25], v15, s[28:31], s39 offen sc1\ns_branch K2_end")

def f2u(x): return struct.unpack('<I', struct.pack('<f', x))[0]
SCL = f2u(math.log2(math.e)/math.sqrt(128.0))
FO = lambda i: 16*(i & 1) + 8*(i >> 1)
def k2_weights(a):
    S0 = 66048
    a(f"s_sub_u32 s34, s2, {NWIN}")
    a(f"s_lshl_b32 s39, s34, 17\ns_lshl_b32 s60, s33, 13\ns_add_u32 s39, s39, s60\ns_add_u32 s39, s39, {WS_PM}\ns_add_u32 s60, s39, 4096\nv_lshlrev_b32 v8, 4, v2")
    for i in range(4): a(f"buffer_load_dwordx4 v[{80+4*i}:{83+4*i}], v8, s[28:31], s39 offen offset:{1024*i}\nbuffer_load_dwordx4 v[{96+4*i}:{99+4*i}], v8, s[28:31], s60 offen offset:{1024*i}")
    a("s_lshr_b32 s35, s33, 2\ns_and_b32 s36, s33, 3\nv_and_b32 v3, 31, v2\nv_lshrrev_b32 v4, 5, v2")
    a(f"v_lshlrev_b32 v7, 2, v0\ns_cmp_ge_u32 s33, 8\ns_cbranch_scc1 K2w_nw\ns_mov_b32 s3, {WS_WFR+WFR_SW+256}\nbuffer_load_dword v8, v7, s[28:31], s3 offen")
    a(f"v_add_u32 v7, {S0}, v7\ns_waitcnt vmcnt(0)\nds_write_b32 v7, v8\nK2w_nw:")
    a("s_waitcnt vmcnt(0) lgkmcnt(0)\ns_barrier")
    gwarm(a)
    for i in range(16): a(f"v_add_f32 v{80+i}, v{80+i}, v{96+i}")
    a(f"s_mul_i32 s39, s35, {32*516}\ns_lshl_b32 s60, s36, 7\ns_add_u32 s39, s39, s60\nv_mul_u32_u24 v6, {4*516}, v4\nv_lshl_add_u32 v6, v3, 2, v6\nv_add_u32 v6, s39, v6")
    a(f"s_add_u32 s60, s60, {S0}\nv_lshl_add_u32 v7, v3, 2, s60\nds_read_b32 v8, v7")
    for r in range(16): a(f"ds_write_b32 v6, v{80+r} offset:{(8*(r>>2)+(r&3))*516}")
    a("v_add_f32 v9, v80, v81")
    for r in range(2, 16): a(f"v_add_f32 v9, v9, v{80+r}")
    a("ds_add_f32 v7, v9 offset:1536\ns_waitcnt lgkmcnt(1)")
    for r in range(16): a(f"v_mul_f32 v{48+r}, v8, v{80+r}")
    for q in (80, 48):
        for i in range(8): a(f"v_add_f32_dpp v{q+i}, v{q+i}, v{q+i} row_ror:8 row_mask:0xf bank_mask:0x3")
        for i in range(8): a(f"v_add_f32_dpp v{q+i}, v{q+8+i}, v{q+8+i} row_ror:8 row_mask:0xf bank_mask:0xc")
        for i in range(4): a(f"v_add_f32_dpp v{q+i}, v{q+i}, v{q+i} row_half_mirror row_mask:0xf bank_mask:0x5")
        for i in range(4): a(f"v_add_f32_dpp v{q+i}, v{q+4+i}, v{q+4+i} row_half_mirror row_mask:0xf bank_mask:0xa")
        for i in range(4): a(f"v_add_f32_dpp v{q+i}, v{q+i}, v{q+i} quad_perm:[1,0,3,2] {DPPF}")
        for i in range(4): a(f"v_add_f32_dpp v{q+i}, v{q+i}, v{q+i} quad_perm:[2,3,0,1] {DPPF}")
        a(f"v_permlane16_swap_b32 v{q}, v{q+1}\nv_permlane16_swap_b32 v{q+2}, v{q+3}\nv_add_f32 v{q}, v{q}, v{q+1}\nv_add_f32 v{q+2}, v{q+2}, v{q+3}")
    a(f"v_bfe_u32 v10, v2, 2, 2\nv_lshlrev_b32 v10, 5, v10\nv_bfe_u32 v11, v2, 4, 1\nv_lshl_add_u32 v10, v11, 2, v10\nv_lshl_add_u32 v10, v4, 4, v10\ns_lshl_b32 s60, s35, 7\ns_add_u32 s60, s60, {S0}\nv_add_u32 v10, s60, v10")
    a("s_mov_b32 exec_lo, 0x11111111\ns_mov_b32 exec_hi, 0x11111111\nds_add_f32 v10, v80 offset:512\nds_add_f32 v10, v82 offset:520\nds_add_f32 v10, v48 offset:1024\nds_add_f32 v10, v50 offset:1032\ns_mov_b64 exec, -1")
    a("s_waitcnt lgkmcnt(0)"); a("s_barrier")
    a(f"v_lshlrev_b32 v5, 3, v2\nv_add_u32 v5, {S0}, v5\nds_read_b64 v[8:9], v5\nds_read_b64 v[10:11], v5 offset:512\nds_read_b64 v[12:13], v5 offset:1024\ns_waitcnt lgkmcnt(0)")
    a("v_add_f32 v8, v8, v9\nv_add_f32 v10, v10, v11\nv_add_f32 v12, v12, v13")
    for v in (8, 10, 12): a.red63('v_add_f32', v)
    a("v_readlane_b32 s60, v8, 63\nv_readlane_b32 s61, v10, 63\nv_readlane_b32 s62, v12, 63")
    a(f"s_mov_b32 s63, {f2u(1/128.)}\ns_mov_b32 s64, {f2u(-1/128.)}\ns_mov_b32 s65, {SCL}\nv_lshlrev_b32 v15, 4, v2")
    a(f"s_lshl_b32 s66, s33, 11\ns_lshl_b32 s67, s34, 15\ns_add_u32 s66, s66, s67\ns_add_u32 s66, s66, {WS_WFR}")
    a("s_lshr_b32 s35, s33, 1\ns_and_b32 s36, s33, 1\nv_and_b32 v3, 15, v2\nv_lshrrev_b32 v4, 4, v2")
    a("s_cmp_eq_u32 s34, 0\ns_cbranch_scc0 K2w_fb")
    a("v_and_b32 v5, 1, v3\nv_lshrrev_b32 v6, 2, v3\nv_lshl_or_b32 v5, v6, 1, v5\nv_bfe_u32 v6, v3, 1, 1\nv_lshl_or_b32 v5, v6, 4, v5")
    a("s_lshr_b32 s37, s35, 1\ns_lshl_b32 s37, s37, 5\ns_and_b32 s38, s35, 1\ns_lshl_b32 s38, s38, 3\ns_add_u32 s37, s37, s38\nv_add_u32 v5, s37, v5")
    a(f"v_lshlrev_b32 v7, 2, v5\nv_add_u32 v7, {S0}, v7\nds_read_b32 v14, v7 offset:512")
    a(f"s_lshl_b32 s37, s36, 8\nv_lshl_add_u32 v6, v4, 3, s37\nv_mul_u32_u24 v5, 516, v5\nv_add_u32 v5, v5, v6\nv_add_u32 v6, {S0+1536}, v6")
    for h in range(2):
        for i in range(4):
            a(f"ds_read2_b32 v[{16+16*h+2*i}:{17+16*h+2*i}], v5 offset0:{32*h+FO(i)} offset1:{32*h+FO(i)+1}")
            a(f"ds_read2_b32 v[{24+16*h+2*i}:{25+16*h+2*i}], v6 offset0:{32*h+FO(i)} offset1:{32*h+FO(i)+1}")
    a("v_mov_b32 v8, s61\nv_mul_f32 v8, s63, v8\ns_waitcnt lgkmcnt(0)\nv_sub_f32 v14, v8, v14\nv_mul_f32 v14, s63, v14")
    for h in range(2):
        for j in range(8):
            x = 16+16*h+j
            a(f"v_add_f32 v{x}, v{x}, v14\nv_fmac_f32 v{x}, s64, v{x+8}\nv_mul_f32 v{x}, s65, v{x}")
        for i in range(4): a(f"v_cvt_pk_bf16_f32 v{48+4*h+i}, v{16+16*h+2*i}, v{17+16*h+2*i}")
        a(f"buffer_store_dwordx4 v[{48+4*h}:{51+4*h}], v15, s[28:31], s66 offen offset:{1024*h}")
    a("s_branch K2w_end\nK2w_fb:")
    a("s_lshr_b32 s37, s35, 1\ns_lshl_b32 s37, s37, 7\ns_and_b32 s38, s35, 1\ns_lshl_b32 s38, s38, 2\ns_add_u32 s37, s37, s38\nv_lshl_add_u32 v5, v3, 3, s37")
    a(f"v_add_u32 v7, {S0+1536}, v5\nds_read_b32 v14, v7")
    a(f"s_mul_i32 s37, s36, {64*516}\nv_mul_u32_u24 v6, {2*516}, v4\nv_add3_u32 v5, v5, v6, s37")
    for h in range(2):
        for i in range(4):
            for c in range(2): a(f"ds_read_b32 v{16+8*h+2*i+c}, v5 offset:{(32*h+FO(i)+c)*516}")
    a("s_waitcnt lgkmcnt(0)")
    for h in range(2):
        for j in range(8): a(f"v_fmac_f32 v{16+8*h+j}, s64, v14")
        for i in range(4): a(f"v_cvt_pk_bf16_f32 v{48+4*h+i}, v{16+8*h+2*i}, v{17+8*h+2*i}")
        a(f"buffer_store_dwordx4 v[{48+4*h}:{51+4*h}], v15, s[28:31], s66 offen offset:{1024*h}")
    a("s_cmp_ge_u32 s33, 4\ns_cbranch_scc1 K2w_end")
    a("v_and_b32 v5, 3, v2\nv_max_u32 v7, 1, v5\nv_lshlrev_b32 v7, 9, v7\nv_lshl_add_u32 v7, v4, 3, v7")
    a(f"s_lshl_b32 s37, s33, 7\ns_add_u32 s37, s37, {S0-512}\nv_add_u32 v7, s37, v7")
    for i in range(4): a(f"ds_read2_b32 v[{16+2*i}:{17+2*i}], v7 offset0:{FO(i)} offset1:{FO(i)+1}")
    a("v_mov_b32 v8, s61\nv_mov_b32 v9, s62\nv_cmp_eq_u32 s[40:41], 2, v5\nv_cmp_eq_u32 s[42:43], 3, v5\nv_cmp_eq_u32 s[44:45], 0, v5")
    a("v_cndmask_b32 v8, 0, v8, s[40:41]\nv_cndmask_b32 v8, v8, v9, s[42:43]")
    a("s_waitcnt lgkmcnt(0)")
    for j in range(8): a(f"v_fmac_f32 v{16+j}, s64, v8\nv_cndmask_b32 v{16+j}, v{16+j}, 1.0, s[44:45]")
    for i in range(4): a(f"v_cvt_pk_bf16_f32 v{48+i}, v{16+2*i}, v{17+2*i}")
    a(f"s_lshl_b32 s37, s33, 10\ns_add_u32 s37, s37, {WS_WFR+WFR_E}\nbuffer_store_dwordx4 v[48:51], v15, s[28:31], s37 offen")
    a(f"v_mov_b32 v8, s60\ns_mov_b32 s37, {WS_WFR+WFR_SW}\ns_mov_b64 exec, 1\nbuffer_store_dword v8, v15, s[28:31], s37 offen")


NQ = 44; DEP = 2; NBUF = 3
QB = QN*4
L3_CNT = TB + GS; L3_SIZE = L3_CNT + 64
ACC, AOP, ADR, BUF, TMP, GK, DIS, IDX = 2, 6, 8, 12, 24, 26, 33, 40
SPIN = 1 << 20
OPT_PD = lambda: {0: (27, 18, 9), 1: (30, 14, 6), 2: (24, 12, 5), 3: (31, 22, 8)}[OPT['pd']]
LSC = lambda b: ('sc1', 'nt', 'sc1 nt', 'sc0 nt', 'sc0', '')[OPT['lnt'] if b == 2 else OPT['pnt']]
TSC = lambda: ('', ' nt', ' sc1', ' sc0 sc1', ' sc0', ' sc1 nt')[OPT['tsc']]
XP = 3
NL = NQ//2
def gwarm(a):
    if OPT['gw'] != 1: return
    a(f"s_mul_i32 s52, s18, {GS}\ns_mul_i32 s53, s16, {QB}\ns_add_u32 s52, s52, s53\ns_lshl_b32 s53, s20, 8\ns_add_u32 s52, s52, s53\ns_add_u32 s52, s52, {WS_G+KS}")
    a(f"v_lshlrev_b32 v126, 7, v2\ns_mov_b64 exec, 0x3fff\nbuffer_load_dword v127, v126, s[8:11], s52 offen\ns_mov_b64 exec, -1")
def tabledma(a, v16, sfx, part=3):
    base = lambda k: a(f"s_mul_i32 s53, s18, {GS}\ns_lshl_b32 s52, s19, 10\ns_add_u32 s53, s53, s52\ns_add_u32 s53, s53, {WS_G+k*1024}\ns_add_u32 s52, s52, {TB+k*1024}")
    def run(n):
        for i in range(n):
            if i == 3: a(f"s_cmp_ge_u32 s19, 2\ns_cbranch_scc1 K3_nt{sfx}")
            a(f"s_mov_b32 m0, s52\nbuffer_load_dwordx4 v{v16}, s[8:11], s53 offen{NT(16)} lds")
            if i < n-1: a("s_add_u32 s52, s52, 16384\ns_add_u32 s53, s53, 16384")
    if part & 2: base(50); run(3)
    if part & 1:
        base(0); run(4)
        a(f"K3_nt{sfx}:")
    if part in (2, 9): return
    a(f"s_mul_i32 s52, s16, 98\ns_add_u32 s52, s52, s20\ns_lshl_b32 s52, s52, 8\ns_add_u32 s52, s52, {WS_DISP}\nv_lshlrev_b32 v{v16}, 2, v2")
    for i in range(7): a(f"buffer_load_dword v{DIS+i}, v{v16}, s[8:11], s52 offen offset:{i*256}")
    a(f"v_mul_u32_u24 v{v16}, 24, v2\nv_mov_b32 v45, 364\nv_cmp_eq_u32 vcc, 15, v2\nv_cndmask_b32 v{v16}, v{v16}, v45, vcc\ns_mul_i32 s52, s16, 392\ns_add_u32 s52, s52, {WS_TQ}\ns_mov_b64 exec, 0xffff")
    a(f"buffer_load_dwordx4 v[120:123], v{v16}, s[8:11], s52 offen\nbuffer_load_dwordx3 v[124:126], v{v16}, s[8:11], s52 offen offset:16\ns_mov_b64 exec, -1")
def k3(a):
    global XP
    XP = OPT['xp']
    name = 'hop_kernel'
    a.launch(name, 256, 1024, L3_SIZE)
    a.begin(name)
    a("s_cmp_ge_u32 s2, 256\ns_cbranch_scc1 K3_end")
    a.st_init()
    a("s_load_dwordx2 s[4:5], s[0:1], 88")
    a("v_lshrrev_b32 v1, 6, v0\nv_and_b32 v2, 63, v0\nv_readfirstlane_b32 s19, v1")
    a("s_lshr_b32 s16, s2, 3\ns_and_b32 s16, s16, 3\ns_and_b32 s17, s2, 7\ns_lshl_b32 s17, s17, 3\ns_lshr_b32 s18, s2, 5\ns_or_b32 s18, s18, s17")
    a("s_mul_i32 s20, s19, 6\ns_cmp_eq_u32 s19, 15\ns_cselect_b32 s20, 91, s20\ns_cmp_ge_u32 s19, 14\ns_cselect_b32 s21, 7, 6\ns_mov_b32 s33, s19")
    a("s_waitcnt lgkmcnt(0)")
    a.srd(8, 4, WS_SIZE); a.srd(28, 4, WS_SIZE)
    def ids():
        a("s_getreg_b32 s50, hwreg(HW_REG_XCC_ID)\ns_and_b32 s50, s50, 0xff\ns_add_u32 s50, s50, 1")
        a(f"s_mul_i32 s51, s18, {FGS}\ns_add_u32 s51, s51, {WS_FLAGS}")
    a("s_cmp_lg_u32 s19, 15\ns_cbranch_scc1 K3_nox"); ids()
    a(f"s_lshl_b32 s52, s16, 2\ns_add_u32 s52, s52, s51\nv_mov_b32 v4, s50\nv_mov_b32 v6, 0\nv_mov_b32 v7, {L3_CNT}\ns_mov_b64 exec, 1")
    a("buffer_store_dword v4, v6, s[8:11], s52 offen offset:2048 sc1\nds_write_b32 v7, v6\ns_mov_b64 exec, -1\nK3_nox:")
    a(f"s_cmp_ge_u32 s2, {NWIN+2}\ns_cbranch_scc1 K2_idle\ns_cmp_ge_u32 s2, {NWIN}\ns_cbranch_scc1 K2_wts")
    k2_window(a)
    a("K2_end:\ns_mov_b64 exec, -1"); a.st(27); a("s_waitcnt vmcnt(0) lgkmcnt(0)"); a.st(28)
    a(f"s_barrier\ns_cmp_lg_u32 s19, 0\ns_cbranch_scc1 K2_lo\nv_mov_b32 v10, 0\nds_read_b32 v4, v10 offset:{L2_IRR}")
    a(f"s_lshl_b32 s52, s2, {OPT['wds']}\ns_add_u32 s52, s52, {WS_WDN}\ns_mov_b64 exec, 1\ns_waitcnt lgkmcnt(0)\nv_add_u32 v4, 1, v4\nbuffer_store_dword v4, v10, s[8:11], s52 offen sc1\ns_mov_b64 exec, -1\nK2_lo:\nv_lshlrev_b32 v44, 4, v2")
    if OPT['tp'] != 3: tabledma(a, 44, 'a', 9 if OPT['tp'] == 4 else 1)
    a("s_branch K3_join")
    a("K2_wts:")
    k2_weights(a)
    a("K2w_end:\ns_mov_b64 exec, -1\ns_waitcnt lgkmcnt(0)\ns_barrier\ns_branch K2_tab\nK2_idle:"); gwarm(a)
    if OPT['cpf'] & 2:
        a("s_cmp_eq_u32 s19, 15\ns_cbranch_scc0 K2_tab\nv_lshlrev_b32 v3, 2, v2"); a.codepf('K3_join', 'K3_end', 3, 4, 52, 127)
    a("K2_tab:\nv_lshlrev_b32 v44, 4, v2"); tabledma(a, 44, 'b')
    if OPT['gw'] >= 2:
        a(f"s_cmp_lt_u32 s2, 200\ns_cbranch_scc1 K3_join\ns_cmp_ge_u32 s19, 14\ns_cbranch_scc1 K3_join\ns_lshr_b32 s52, s2, 3\ns_sub_u32 s52, s52, 25\ns_mul_i32 s52, s52, {896*128}\ns_and_b32 s53, s2, 7\ns_mul_i32 s53, s53, {8*GS}")
        a(f"s_add_u32 s52, s52, s53\ns_add_u32 s52, s52, {WS_G+KS}\nv_lshlrev_b32 v118, 7, v0")
        if OPT['gw'] == 2: a("s_waitcnt vmcnt(0)")
        a("buffer_load_dword v119, v118, s[8:11], s52 offen")
    a("K3_join:"); a.st(1); a.st(29); ids()
    a("s_mul_i32 s48, s16, 98\ns_add_u32 s48, s48, s20")
    a(f"s_lshl_b32 s49, s48, 2\ns_add_u32 s49, s49, {WS_TQ}\ns_buffer_load_dwordx8 s[40:47], s[8:11], s49")
    a(f"v_mov_b32 v5, v2\nv_lshlrev_b32 v0, 2, v5\nv_lshlrev_b32 v8, 4, v5\ns_mul_i32 s39, s18, {GS}\ns_add_u32 s39, s39, {WS_G}")
    a(f"s_lshl_b32 s69, s16, 4\ns_add_u32 s69, s69, s19\ns_mul_i32 s69, s69, {RS}\ns_add_u32 s69, s69, {WS_IDX}")
    def idxld(p, va=8):
        if p and p % 4 == 0: a("s_add_u32 s69, s69, 4096")
        a(f"buffer_load_dwordx4 v[{IDX+4*p}:{IDX+4*p+3}], v{va}, s[8:11], s69 offen offset:{(p&3)*1024}{NT(8)}")
    a("s_waitcnt lgkmcnt(0)")
    a("s_cmp_eq_u32 s21, 7\ns_cselect_b32 s46, s46, 0")
    for i in range(1, 7): a(f"s_add_u32 s{40+i}, s{40+i}, s{39+i}")
    a(f"s_min_u32 s47, s46, {NQ}\ns_sub_u32 s28, s47, {DEP+1}\ns_mov_b64 s[32:33], 0")
    for i in range(7): a(f"s_sub_u32 s{40+i}, s{40+i}, 1\ns_bitset1_b64 s[32:33], s{40+i}")
    a("s_add_u32 s52, s28, 1\ns_lshr_b64 s[34:35], s[32:33], s52\ns_mov_b64 s[24:25], s[32:33]\ns_bitset1_b64 s[24:25], s28")
    def wpoll(sfx):
        a(f"K3_wp{sfx}:\nbuffer_load_dword v4, v6, s[8:11], s52 offen sc1\ns_waitcnt vmcnt(0)\nv_cmp_eq_u32 vcc, 0, v4\ns_cbranch_vccz K3_wd{sfx}\ns_add_u32 s64, s64, 1\ns_cmp_gt_u32 s64, {SPIN}\ns_cbranch_scc1 K3_wd{sfx}\ns_sleep {OPT['slw']}\ns_branch K3_wp{sfx}\nK3_wd{sfx}:")
    a(f"s_mov_b32 s64, 0\ns_mul_i32 s52, s16, {49 << OPT['wds']}\ns_add_u32 s52, s52, {WS_WDN}")
    if OPT['pw']:
        a("v_add_u32 v6, s20, v5\nv_mov_b32 v7, v6")
        for x, y in SWAPS:
            for p, q in ((x, y), (y, x)): a(f"v_mov_b32 v9, {q}\nv_cmp_eq_u32 vcc, {p}, v6\nv_cndmask_b32 v7, v7, v9, vcc")
        a("v_lshrrev_b32 v7, 1, v7\nv_lshlrev_b32 v6, 7, v7\ns_bfm_b64 exec, s21, 0"); wpoll('a'); a("s_mov_b64 exec, -1")
    a(f"s_waitcnt vmcnt(0)\nv_add3_u32 v{BUF}, v120, v121, v122\nv_add3_u32 v{BUF}, v{BUF}, v123, v124\nv_add_u32 v{BUF}, v{BUF}, v125\ns_mov_b64 exec, 0xc000\nv_add_u32 v{BUF}, v{BUF}, v126\ns_mov_b64 exec, -1")
    if OPT['pw']:
        for p in range(XP+1): idxld(p)
    a("s_cmp_lg_u32 s19, 0\ns_cbranch_scc1 K3_nw\nv_lshlrev_b32 v6, " + str(OPT['wds']-2) + ", v0\ns_mov_b32 exec_hi, 0x1ffff"); wpoll('b')
    a(f"v_cmp_ne_u32 vcc, 1, v4\ns_cmp_lg_u64 vcc, 0\ns_cselect_b32 s52, 1, 0\nv_mov_b32 v4, s52\nv_mov_b32 v6, {L3_CNT}\nds_write_b32 v6, v4 offset:4\ns_mov_b64 exec, -1\nK3_nw:")
    a(f"s_waitcnt lgkmcnt(0)"); a.st(2); a.st(30); a("s_barrier"); a.st(3); a.st(31)
    if not OPT['pw']:
        for p in range(XP+1): idxld(p)
    a(f"s_lshl_b32 m0, s48, 8\nv_mov_b32 v6, {L3_CNT}\nds_read_b32 v{BUF+7}, v6 offset:4")
    for i in range(7): a(f"ds_read_addtid_b32 v{GK+i} offset:{TB+i*256}")
    a(f"buffer_load_dword v{TMP}, v0, s[8:11], s51 offen offset:2048 sc1")
    LA = OPT['la']; LD = {}; nxt = XP+1
    def late(lo, hi):
        if hi > lo: a(f"v_lshlrev_b32 v{TMP+1}, 2, v0")
        for p in range(lo, hi): a(f"s_cmp_gt_u32 s47, {2*p}\ns_cselect_b64 exec, -1, 1"); idxld(p, TMP+1)
        a("s_mov_b64 exec, -1")
    late(nxt, nxt+LA); nxt += LA
    for p in range(0, NQ, 4):
        if p < NQ-DEP-1: LD[p] = (nxt, min(nxt+2, NL)); nxt = LD[p][1]
    EM = sum(1 << p for p in LD)
    if OPT['prio'] == 8:
        a("s_mov_b64 s[92:93], 0")
        for d in OPT_PD(): a(f"s_sub_i32 s52, s47, {d}\ns_max_i32 s52, s52, 0\ns_bitset1_b64 s[92:93], s52")
        a("s_or_b64 s[24:25], s[24:25], s[92:93]")
    a(f"s_mov_b64 s[88:89], s[24:25]\ns_or_b32 s24, s24, {EM & 0xffffffff}\ns_or_b32 s25, s25, {EM >> 32}")
    issued = lambda p: max([XP+1+LA] + [hi for q, (lo, hi) in LD.items() if q < p])
    tb = 32; lb = 2; TBS_ = TOS
    a(f"v_lshrrev_b32 v1, {1+lb}, v5\nv_mul_u32_u24 v1, {TBS_}, v1\nv_and_b32 v4, {(2 << lb)-1}, v5\nv_lshl_add_u32 v1, v4, 4, v1\nv_and_b32 v4, 3, v5")
    a(f"v_cmp_eq_u32 s[54:55], 0, v4\nv_cmp_eq_u32 s[56:57], 1, v4\nv_mov_b32 v2, 0x3f80\nv_mov_b32 v3, 0x3f800000")
    a(f"v_cndmask_b32 v{AOP}, 0, v2, s[54:55]\nv_cndmask_b32 v{AOP}, v{AOP}, v3, s[56:57]\nv_mov_b32 v{AOP+1}, v{AOP}")
    for i in range(4): a(f"v_mov_b32 v{ACC+i}, 0")
    a("s_lshl_b32 s52, s19, 7\ns_add_u32 s65, s52, s51")
    a("s_lshl_b32 s58, s16, 2\ns_add_u32 s58, s58, s65")
    a(f"s_lshl_b32 s59, s20, 8\ns_mul_i32 s60, s16, {QB}\ns_add_u32 s60, s60, s59")
    a(f"s_mul_i32 s61, s48, {(64//tb)*TBS_}\ns_lshl_b32 s52, s18, {5+lb}\ns_add_u32 s61, s61, s52\ns_add_u32 s61, s61, {WS_TOK}")
    for r in range(1, 4): a(f"s_add_u32 s52, s16, {r}\ns_and_b32 s52, s52, 3\ns_mul_i32 s52, s52, {QB}\ns_add_u32 s{65+r}, s52, s59")
    a(f"s_mov_b32 s22, 1")
    def ad1(p, h):
        r = IDX+2*p+(h >> 1)
        a(f"v_lshrrev_b32 v{ADR+h}, 15, v{r}" if h & 1 else f"v_lshlrev_b32_sdwa v{ADR+h}, 2, v{r} {SD} src1_sel:WORD_0")
    def adr(p):
        for h in range(4): ad1(p, h)
    def rd(p):
        for h in range(4): a(f"ds_read_b32 v{BUF+4*(p%NBUF)+h}, v{ADR+h} offset:{TB}")
    def mf(p, h):
        b = BUF+4*(p%NBUF)+2*h
        if OPT['exp'] & 2: return
        a(f"v_mfma_f32_4x4x4_16b_bf16 v[{ACC}:{ACC+3}], v[{AOP}:{AOP+1}], v[{b}:{b+1}], v[{ACC}:{ACC+3}]")
    def vw(p): pass
    CALL = "s_swappc_b64 s[30:31], s[26:27]"
    T0, T1 = TMP, TMP+1
    a(f"s_mov_b64 exec, 15\ns_waitcnt vmcnt({LA})\nK3_xp:\nv_cmp_eq_u32 vcc, 0, v{TMP}\ns_cbranch_vccz K3_xb\ns_add_u32 s64, s64, 1\ns_cmp_gt_u32 s64, {SPIN}\ns_cbranch_scc1 K3_xb")
    a(f"buffer_load_dword v{TMP}, v0, s[8:11], s51 offen offset:2048 sc1\ns_waitcnt vmcnt(0)\ns_branch K3_xp\nK3_xb:")
    a(f"v_cmp_ne_u32 vcc, s50, v{TMP}\ns_cmp_lg_u64 vcc, 0\ns_cselect_b32 s23, 1, 0\ns_mov_b64 exec, -1")
    a("s_mov_b64 exec, 0xffff")
    a(f"s_waitcnt lgkmcnt(0)\nv_lshl_add_u32 v{BUF}, v{BUF+7}, 8, v{BUF}\nv_cmp_lt_u32 vcc, {NQ}, v{BUF}\ns_cmp_lg_u64 vcc, 0\ns_cselect_b32 s29, 1, {OPT['slow']}\ns_mov_b64 exec, -1")
    a("s_getpc_b64 s[40:41]\nK3_pc:\ns_add_u32 s40, s40, K3_fl0_0-K3_pc\ns_addc_u32 s41, s41, 0\ns_mul_i32 s42, s23, K3_fl1_0-K3_fl0_0\ns_mov_b32 s43, K3_fl2_0-K3_fl0_0")
    a(f"s_add_u32 s45, s23, 1\ns_mul_i32 s45, s45, {KS}\ns_add_u32 s45, s45, s39")
    a("s_waitcnt lgkmcnt(0)")
    if OPT['exp'] & 4:
        a("s_waitcnt vmcnt(0)\nv_lshrrev_b32 v24, 2, v0\nv_lshl_or_b32 v24, v24, 17, v24")
        for p in range(2*NQ): a(f"v_add_u32 v{IDX+p}, {(p*64) | (p*64+64*99) << 17}, v24")
    a("K3_hop:")
    a(f"s_mov_b32 s52, s39\ns_mov_b32 s39, s45\ns_add_u32 s53, s39, {KS}\ns_cmp_eq_u32 s23, 0\ns_cselect_b32 s45, s52, s53")
    a(f"s_add_u32 s61, s61, {tb*256}\ns_add_u32 s37, s39, s60")
    if OPT['px']: a("s_mov_b32 s35, 0\ns_bfe_u32 s90, s22, 0x10001\ns_xor_b32 s91, s90, 1\ns_lshl_b32 s91, s91, 16\ns_sub_u32 s62, 0, s90\ns_mov_b32 s63, 0x07060302")
    a("s_cmp_eq_u32 s22, 7\ns_cselect_b32 s42, s43, s42\ns_add_u32 s26, s40, s42\ns_addc_u32 s27, s41, 0")
    if OPT['prio'] == 1: a("s_cmp_ge_u32 s19, 8\ns_cbranch_scc1 K3_p2\ns_setprio 3\ns_branch K3_p3\nK3_p2:\ns_setprio 2\nK3_p3:")
    if OPT['prio'] in (2, 4, 5, 6, 7, 8): a("s_setprio 3\ns_mov_b32 s94, 2")
    if OPT['prio'] == 3: a("s_setprio 1")
    HOIST = OPT['hoist']
    if not HOIST:
        a("s_cmp_lg_u32 s29, 0\ns_cbranch_scc1 K3_slow")
        for p in range(DEP): adr(p); rd(p)
        adr(DEP)
    def tok(part):
        if OPT['exp'] & 8: return
        if part == 0: a(f"buffer_store_dwordx4 v[{GK}:{GK+3}], v1, s[8:11], s38 offen{TSC()}")
        if part == 1:
            a(f"v_lshrrev_b32 v{T0}, {4+lb}, v0\nv_mul_u32_u24 v{T0}, {TBS_}, v{T0}\nv_and_b32 v{T1}, {(16 << lb)-4}, v0\nv_lshl_add_u32 v{T0}, v{T1}, 1, v{T0}\ns_add_u32 s38, s38, {(256//tb)*TBS_}")
            a(f"buffer_store_dwordx2 v[{GK+4}:{GK+5}], v{T0}, s[8:11], s38 offen{TSC()}")
        if part == 2:
            l = a.lab('K3_t')
            a(f"s_cmp_eq_u32 s21, 7\ns_cbranch_scc0 {l}\nv_lshrrev_b32 v{T0}, {5+lb}, v0\nv_mul_u32_u24 v{T0}, {TBS_}, v{T0}\nv_and_b32 v{T1}, {(32 << lb)-4}, v0\nv_add_u32 v{T0}, v{T0}, v{T1}\ns_add_u32 s38, s38, {(128//tb)*TBS_}")
            a(f"buffer_store_dword v{GK+6}, v{T0}, s[8:11], s38 offen{TSC()}\n{l}:")
    a(f"s_sub_u32 s38, s61, {tb*256}")
    if HOIST:
        adr(0); a("s_cmp_lg_u32 s29, 0\ns_waitcnt lgkmcnt(0)"); a.st(8); a("s_barrier"); a.st(9)
        if OPT['stamp'] in (1, 2, 4): a("s_cmp_lg_u32 s29, 0")
        a("s_cbranch_scc1 K3_slow")
        rd(0); adr(1); rd(1); adr(2)
    tok(0)
    if OPT['cpf'] & 4:
        a("s_cmp_eq_u32 s22, 7\ns_cbranch_scc0 K3_npf\ns_cmp_eq_u32 s19, 0\ns_cbranch_scc0 K3_npf"); a.codepf('att_kernel', 'K4_end', 0, T0, 52, ACC+3); a("K3_npf:")
    for p in range(NQ-DEP):
        rd(p+DEP); a(f"s_waitcnt lgkmcnt({4*DEP})"); mf(p, 0)
        if p+DEP+1 < NQ:
            vw(p+DEP+1)
            ad1(p+DEP+1, 0); ad1(p+DEP+1, 1); mf(p, 1); ad1(p+DEP+1, 2); ad1(p+DEP+1, 3)
        else: mf(p, 1)
        if OPT['prio'] == 2 and p in (9, 18, 27): a(f"s_setprio {2 - (9, 18, 27).index(p)}")
        if OPT['prio'] == 1 and p in (11, 23): a(f"s_cmp_ge_u32 s19, 8\ns_cbranch_scc0 K3_q{p}\ns_setprio {1 if p == 11 else 0}\nK3_q{p}:")
        a(f"s_bitcmp1_b64 s[24:25], {p}\ns_cbranch_scc1 K3_st{p}\nK3_bk{p}:")
    a("s_endpgm")
    for p in range(NQ-DEP):
        a(f"K3_st{p}:")
        if p in LD: a(f"s_cmp_eq_u32 s22, 1\ns_cbranch_scc0 K3_nl{p}"); late(*LD[p]); a(f"s_waitcnt vmcnt({LD[p][1] - 1 - min((p+4+DEP+1)//2, NL-1)})\nK3_nl{p}:")
        a(f"s_bitcmp1_b64 s[32:33], {p}\ns_cbranch_scc0 K3_nf{p}\n{CALL}\nK3_nf{p}:")
        if OPT['prio'] == 8: a(f"s_bitcmp1_b64 s[92:93], {p}\ns_cbranch_scc0 K3_np{p}\ns_call_b64 s[30:31], K3_prio\nK3_np{p}:")
        a(f"s_cmp_eq_u32 s28, {p}\ns_cbranch_scc1 K3_dr{(p+1)%NBUF}\ns_branch K3_bk{p}")
    for r in range(NBUF):
        a(f"K3_dr{r}:")
        for i in range(DEP):
            a(f"s_waitcnt lgkmcnt({4*(DEP-1-i)})"); mf(r+i, 0); mf(r+i, 1)
            if i < DEP-1: a(f"s_bitcmp1_b32 s34, {i}\ns_cbranch_scc0 K3_dn{r}_{i}\n{CALL}\nK3_dn{r}_{i}:")
            else: a(f"{CALL}\ns_branch K3_hend")
    if OPT['prio'] == 8: a("K3_prio:\ns_setprio 0\ns_cmp_eq_u32 s94, 0\ns_cbranch_scc1 K3_pr9\ns_setprio 1\ns_cmp_eq_u32 s94, 1\ns_cbranch_scc1 K3_pr9\ns_setprio 2\nK3_pr9:\ns_sub_u32 s94, s94, 1\ns_setpc_b64 s[30:31]")
    for m in range(3):
        for l in range(7):
            tg = m == 0 and OPT['px']; sc = ' sc1' if m else NT(4)
            a(f".p2align 7\nK3_fl{m}_{l}:\ns_add_u32 s26, s26, 128\ns_addc_u32 s27, s27, 0")
            PR = {4: {1: 2, 3: 1, 4: 0}, 5: {0: 2, 2: 1, 4: 0}, 6: {2: 2, 3: 1, 4: 0}, 7: {1: 2, 2: 1, 3: 0}}.get(OPT['prio'], {})
            if l in PR: a(f"s_setprio {PR[l]}")
            if l in (1, 2): tok(l)
            if m == 0 and l == 0 and OPT['wb6']:
                a(f"s_cmp_lt_u32 s22, {OPT['wb6']}\ns_cbranch_scc1 K3_nwc\ns_cmp_lg_u32 s19, 0\ns_cbranch_scc1 K3_nwc\ns_cmp_ge_u32 s2, 8\ns_cbranch_scc1 K3_nwc\nbuffer_wbl2 sc1\nK3_nwc:")
            if m == 2 and l == OPT['wb'] - 1:
                a(f"s_cmp_lg_u32 s19, {OPT['wbw']}\ns_cbranch_scc1 K3_nwb\ns_cmp_ge_u32 s2, 8\ns_cbranch_scc1 K3_nwb\nbuffer_wbl2 sc1\nK3_nwb:")
            a(f"v_mul_f32 v{T0}, v{DIS+l}, v{ACC}\nv_mul_f32 v{T1}, v{DIS+l}, v{ACC+1}\nv_mov_b64 v[{ACC}:{ACC+1}], 0")
            if tg: a(f"v_add_u32 v{T0}, s91, v{T0}\nv_cvt_pk_bf16_f32 v{T1}, v{T1}, v{T1}\nv_perm_b32 v{T0}, v{T1}, v{T0}, s63\nv_bfi_b32 v{GK+l}, 1, s90, v{T0}")
            else: a(f"v_cvt_pk_bf16_f32 v{GK+l}, v{T0}, v{T1}")
            if m < 2 and l == 3: a(f"v_lshlrev_b32 v{T0}, 2, v0\nbuffer_store_dwordx4 v[{GK}:{GK+3}], v{T0}, s[8:11], s37 offen{sc}")
            if m < 2 and l == 5: a(f"v_lshlrev_b32 v{T0}, 1, v0\nbuffer_store_dwordx2 v[{GK+4}:{GK+5}], v{T0}, s[8:11], s37 offen offset:1024{sc}")
            if m < 2 and l == 6: a(f"buffer_store_dword v{GK+6}, v0, s[8:11], s37 offen offset:1536{sc}")
            a("s_setpc_b64 s[30:31]")
            a(f".if (. - K3_fl{m}_{l}) > 128\n.error \"flush too long\"\n.endif")
    AC0 = 0
    a(f"K3_slow:\ns_load_dwordx4 s[72:75], s[0:1], 8")
    a(f"s_sub_u32 s38, s61, {tb*256}"); tok(0)
    a(f"s_lshl_b32 s52, s20, 9\ns_add_u32 s52, s52, {AC0}\nv_lshl_add_u32 v8, v0, 1, s52\nv_mov_b32 v10, 0\nv_mov_b32 v11, 0")
    for l in range(6): a(f"ds_write_b64 v8, v[10:11] offset:{l*512}")
    a("s_cmp_eq_u32 s21, 7\ns_cbranch_scc0 K3_s6\nds_write_b64 v8, v[10:11] offset:3072\nK3_s6:\ns_waitcnt lgkmcnt(0)")
    a.srd(76, 72, E*4); a.srd(80, 74, E*4)
    a(f"s_barrier\ns_lshl_b32 s52, s19, 8\ns_mul_i32 s53, s16, {QN}\ns_mov_b32 s54, {WS_NEWID}")
    a("K3_sl:\nbuffer_load_dword v12, v0, s[76:79], s52 offen\nbuffer_load_dword v13, v0, s[80:83], s52 offen\nv_add_u32 v14, s52, v0\ns_waitcnt vmcnt(0)\nv_lshlrev_b32 v12, 1, v12\nv_lshlrev_b32 v13, 1, v13")
    a("buffer_load_ushort v12, v12, s[8:11], s54 offen\nbuffer_load_ushort v13, v13, s[8:11], s54 offen\ns_waitcnt vmcnt(0)\nv_lshlrev_b32 v12, 2, v12\nds_read_b32 v12, v12 offset:" + str(TB) + "\nv_subrev_u32 v13, s53, v13")
    a(f"v_cmp_gt_u32 vcc, {E*4}, v14\ns_mov_b64 exec, vcc\nv_cmp_gt_u32 vcc, {QN}, v13\ns_mov_b64 exec, vcc\nv_lshlrev_b32 v13, 3, v13\nv_add_u32 v13, {AC0}, v13\ns_waitcnt lgkmcnt(0)")
    a(f"v_lshlrev_b32 v15, 16, v12\nv_and_b32 v12, 0xffff0000, v12\nds_add_f32 v13, v15\nds_add_f32 v13, v12 offset:4\ns_mov_b64 exec, -1\ns_add_u32 s52, s52, 4096\ns_cmp_lt_u32 s52, {E*4}\ns_cbranch_scc1 K3_sl")
    a("s_waitcnt lgkmcnt(0)\ns_barrier")
    for l in range(7):
        if l == 6: a("s_cmp_eq_u32 s21, 7\ns_cbranch_scc0 K3_hend")
        a(f"ds_read_b64 v[{ACC}:{ACC+1}], v8 offset:{l*512}\ns_waitcnt lgkmcnt(0)\n{CALL}")
    a("K3_hend:"); a.st(4)
    if OPT['stamp'] in (1, 2): a("s_cmp_eq_u32 s22, 1\ns_cselect_b32 s80, s74, s80\ns_cselect_b32 s74, 0, s74")
    a("s_mov_b64 s[24:25], s[88:89]\ns_cmp_eq_u32 s22, 7\ns_cbranch_scc1 K3_fin")
    if OPT['prio']: a(f"s_setprio {OPT['wprio']}")
    a(f"v_mov_b32 v{T0}, s22\nv_mov_b32 v{T1}, 1\nv_mov_b32 v{ACC}, {L3_CNT}\ns_mov_b64 exec, 1\nds_add_u32 v{ACC}, v{T1}")
    if OPT['px']: a("s_cmp_gt_u32 s22, 2\ns_cselect_b32 s52, s23, 1\ns_cmp_eq_u32 s52, 0\ns_cbranch_scc1 K3_px")
    a("s_waitcnt vmcnt(0)"); a.st(5)
    a("s_cmp_eq_u32 s23, 0\ns_cbranch_scc0 K3_g1")
    a(f"buffer_store_dword v{T0}, v0, s[8:11], s58 offen\ns_branch K3_g2\nK3_g1:\nbuffer_store_dword v{T0}, v0, s[8:11], s58 offen sc1\nK3_g2:")
    a(f"s_mov_b64 exec, 15")
    NPL = OPT['npl']
    PL = lambda i: f"buffer_load_dword v{BUF+i}, v0, s[8:11], s65 offen {LSC(1)}"
    for i in range(NPL-1): a(PL(i) + f"\ns_sleep {OPT['slg']}")
    a(f"K3_poll:\ns_add_u32 s64, s64, 1\ns_cmp_gt_u32 s64, {SPIN}\ns_cbranch_scc1 K3_pb")
    for i in range(NPL):
        a(PL((i+NPL-1) % NPL) + f"\ns_waitcnt vmcnt({NPL-1})\nv_cmp_gt_u32 vcc, s22, v{BUF+i}\ns_cbranch_vccz K3_pb\ns_sleep {OPT['slg']}")
    a("s_branch K3_poll\nK3_pb:")
    X = AOP+1; AR = (14, 18, 2); B1 = (22, 23, T1)
    if OPT['px']: a("s_mov_b32 s35, 2")
    a(f"K3_px:\ns_mov_b64 exec, -1\nv_lshlrev_b32 v{T0}, 1, v0")
    for r in range(3): a(f"s_add_u32 s{53+r}, s{66+r}, s39")
    a(f"K3_pA:\nv_lshlrev_b32 v{X}, 2, v0")
    for r in range(3): a(f"buffer_load_dwordx4 v[{AR[r]}:{AR[r]+3}], v{X}, s[8:11], s{53+r} offen {LSC(2)}")
    a("K3_pB:")
    for r in range(3): a(f"buffer_load_dwordx2 v[{8+2*r}:{9+2*r}], v{T0}, s[8:11], s{53+r} offen offset:1024 {LSC(2)}")
    a("s_cmp_eq_u32 s21, 7\ns_cbranch_scc0 K3_p6")
    for r in range(3): a(f"buffer_load_dword v{B1[r]}, v0, s[8:11], s{53+r} offen offset:1536 {LSC(2)}")
    a("K3_p6:")
    if OPT['px']:
        def chk(rs, first=True):
            for i, r in enumerate(rs): a(f"v_xor_b32 v{X}, s62, v{r}" if (first and i == 0) else f"v_bitop3_b32 v{X}, v{X}, v{r}, s62 bitop3:0xf6")
        a("s_cmp_eq_u32 s35, 2\ns_cbranch_scc1 K3_pD\ns_waitcnt vmcnt(0)\ns_cmp_eq_u32 s35, 1\ns_cbranch_scc1 K3_pC")
        chk(list(range(14, 22)) + [2, 3, 4, 5])
        a(f"v_and_b32 v{X}, 1, v{X}\nv_cmp_ne_u32 vcc, 0, v{X}\ns_cbranch_vccz K3_pE\ns_add_u32 s64, s64, 1\ns_cmp_gt_u32 s64, {SPIN}\ns_cbranch_scc1 K3_pD\ns_sleep {OPT['slp']}\ns_branch K3_pA\nK3_pE:\ns_mov_b32 s35, 1\nK3_pC:")
        chk(range(8, 14)); a("s_cmp_eq_u32 s21, 7\ns_cbranch_scc0 K3_p7"); chk(B1, False); a("K3_p7:")
        a(f"v_and_b32 v{X}, 1, v{X}\nv_cmp_ne_u32 vcc, 0, v{X}\ns_cbranch_vccz K3_pD\ns_add_u32 s64, s64, 1\ns_cmp_gt_u32 s64, {SPIN}\ns_cbranch_scc1 K3_pD\ns_sleep {OPT['slp']}\ns_branch K3_pB")
    a("K3_pD:"); a.st(10 if False else 7)
    a(f"s_lshl_b32 s52, s22, 4\nv_mov_b32 v{T0}, {L3_CNT}\ns_mov_b64 exec, 1\nK3_aw:\nds_read_b32 v{X}, v{T0}\ns_waitcnt lgkmcnt(0)\nv_readfirstlane_b32 s53, v{X}\ns_cmp_ge_u32 s53, s52\ns_cbranch_scc1 K3_ad\ns_add_u32 s64, s64, 1\ns_cmp_gt_u32 s64, {SPIN}\ns_cbranch_scc1 K3_ad\ns_sleep {OPT['sll']}\ns_branch K3_aw\nK3_ad:\ns_mov_b64 exec, -1"); a.st(6)
    a("s_mov_b32 m0, s60")
    for i in range(6): a(f"ds_write_addtid_b32 v{GK+i} offset:{TB+i*256}")
    a(f"s_cmp_eq_u32 s21, 7\ns_cbranch_scc0 K3_w6\nds_write_addtid_b32 v{GK+6} offset:{TB+1536}\ns_waitcnt vmcnt(0)")
    for r in range(3): a(f"s_mov_b32 m0, s{66+r}\nds_write_addtid_b32 v{B1[r]} offset:{TB+1536}")
    a("K3_w6:")
    for r in range(3):
        a(f"s_mov_b32 m0, s{66+r}\ns_waitcnt vmcnt({5-r})")
        for i in range(4): a(f"ds_write_addtid_b32 v{AR[r]+i} offset:{TB+i*256}")
    for r in range(3):
        a(f"s_mov_b32 m0, s{66+r}\ns_waitcnt vmcnt({2-r})")
        for i in range(2): a(f"ds_write_addtid_b32 v{8+2*r+i} offset:{TB+1024+i*256}")
    a(f"v_mov_b32 v{X}, v{AOP}")
    for i in range(4): a(f"v_mov_b32 v{ACC+i}, 0")
    a("s_add_u32 s22, s22, 1")
    if not HOIST: a("s_waitcnt vmcnt(0) lgkmcnt(0)"); a.st(8); a("s_barrier"); a.st(9)
    a("s_branch K3_hop")
    a("K3_fin:")
    a("s_mov_b32 s38, s61"); tok(0); tok(1); tok(2); a.st_out(2, 8, 's19', 10)
    a("K3_end:\ns_endpgm")
    a.end(name, 128, 102)

import sched
L4_E = 131072; L4_SCR = L4_E + 8192; L4_SIZE = L4_SCR + 4096
TK = 16; QQ = 48; AL = 64; TA = 76; WF = 80; NWF = 2; IB = 88; SV = (100, 101); AC = 104; PK = 136; SS = 152; ZS = 160; ZD = 164; OO = 168; CT = 232; VM = 238; PA = 240; RL = 244; EA = (248, 96); PM = (252, 254)
EPS = f2u(1e-5); I128 = f2u(1/128.); LOG2E = f2u(math.log2(math.e))
def k4(a):
    assert OPT['sel'] and not OPT['fin']
    global VM
    if OPT['sel']: VM = 10
    name = 'att_kernel'
    a.launch(name, 256, 256, L4_SIZE)
    a.begin(name)
    W8 = sched.Waits(); sched.VMEM_LAT = OPT['vl']; sched.STRETCH = OPT['str']/100; sched.QLAT = OPT['ql']; sched.TH = OPT['th']; sched.EDF = OPT['edf']
    L = []
    def o(text, R=(), W=(), rr=(), pri=0):
        for t in text.split('\n'):
            x = sched.Op(t, R, W, pri); x.r |= {('v', r) for r in rr}; L.append(x)
    def flush(do_sched):
        ops = sched.schedule(L, True) if do_sched else list(L)
        for t in W8.emit(ops): a(t)
        L.clear()
    a("s_cmp_ge_u32 s2, 256\ns_cbranch_scc1 K4_end")
    a.st_init()
    a("s_load_dwordx2 s[4:5], s[0:1], 88\ns_load_dwordx2 s[6:7], s[0:1], 72")
    a("v_lshrrev_b32 v4, 6, v0\nv_and_b32 v0, 63, v0\nv_readfirstlane_b32 s19, v4\nv_lshlrev_b32 v2, 4, v0")
    a("v_lshrrev_b32 v5, 3, v0\nv_and_b32 v6, 7, v0\nv_xor_b32 v6, v6, v5\ns_lshl_b32 s3, s19, 1\nv_xor_b32 v6, s3, v6\nv_lshlrev_b32 v6, 4, v6\nv_lshl_add_u32 v103, v5, 7, v6\nv_xor_b32 v12, 16, v103")
    a("s_mul_i32 s20, s2, 3\ns_lshl_b32 s44, s19, 14")
    if OPT['exp'] & 16384: a("v_lshrrev_b32 v13, 2, v0\nv_lshlrev_b32 v13, 7, v13\nv_and_b32 v14, 3, v0\nv_lshl_add_u32 v13, v14, 4, v13")
    a(f"v_lshrrev_b32 v5, 5, v0\nv_bfe_u32 v6, v0, 3, 1\nv_xor_b32 v6, v6, v5\nv_lshlrev_b32 v3, 3, v5\nv_lshl_add_u32 v102, v6, 2, v3\nv_add_u32 v102, {WS_SINV-WS_PERM}, v102")
    if OPT['fin']: a("v_and_b32 v3, 3, v0\nv_lshlrev_b32 v3, 2, v3")
    a("s_waitcnt lgkmcnt(0)")
    a.srd(8, 4, WS_SIZE); a.srd(12, 6, N*256)
    a(f"s_mov_b32 s3, {WS_WFR+WFR_SW}\ns_buffer_load_dword s24, s[8:11], s3")
    QS = lambda g: 52 + g
    def tdma(t, R=()):
        b = t & 1
        o(f"s_mul_i32 s21, s{60+t}, {TOS}\ns_add_u32 s21, s21, s44\ns_add_u32 s21, s21, {WS_TOK}")
        for x in range(0 if (t > 0 and OPT['exp'] & 64) else 4):
            if x: o("s_add_u32 s21, s21, 4096")
            o(f"s_add_u32 m0, s44, {b*65536 + 4096*x}")
            for y in (((0, 2) if OPT['exp'] & 16384 else (0, 1)) if (t == 0 and OPT['exp'] & 49152) else range(4)): o(f"buffer_load_dwordx4 {'v13' if (t == 0 and OPT['exp'] & 16384) else 'v103' if x < 2 else 'v12'}, s[8:11], s21 offen offset:{y*1024}{NT(1)} lds", W=[f'dma{t}_{x}{y}', 'q'], R=R, pri=OPT['dp'])
    DM = lambda t: [f'dma{t}_{x}{y}' for x in range(4) for y in range(4)]
    def small(g):
        o(f"s_lshl_b32 s23, s{QS(g)}, 4\ns_add_u32 s23, s23, {WS_PERM}" + ("\ns_add_u32 s23, s23, s59" if g == 6 else ""))
        o(f"buffer_load_dword v{SV[g&1]}, v102, s[8:11], s23 offen", pri=2000)
        o(f"buffer_load_dword v{PM[g&1]}, v3, s[8:11], s23 offen" if OPT['fin'] else f"buffer_load_dwordx2 v[{PM[g&1]}:{PM[g&1]+1}], v3, s[8:11], s23 offen", pri=2000)
    def wdma(lo, hi, tag):
        for i in range(lo, hi):
            o(f"s_add_u32 m0, s25, {4096*i}\ns_add_u32 s27, s26, {4096*i}"); o("buffer_load_dwordx4 v2, s[8:11], s27 offen lds", W=[tag + str(i), 'q'])
    for t in range(3): a(f"s_add_u32 s{60+t}, s20, {t}")
    for g in range(6): a(f"s_lshl_b32 s3, s{60+g//2}, 3\ns_add_u32 s3, s3, s19\ns_add_u32 s{QS(g)}, s3, {4*(g&1)}")
    a(f"s_lshr_b32 s58, s2, 1\ns_add_u32 s58, s58, 6144\ns_lshr_b32 s63, s58, 3\ns_and_b32 s3, s2, 3\ns_cmp_eq_u32 s19, s3\ns_cselect_b32 s31, 1, 0")
    a("s_xor_b32 s49, s58, s19\ns_and_b32 s49, s49, 7\ns_lshl_b32 s49, s49, 4\ns_and_b32 s59, s2, 1\ns_lshl_b32 s59, s59, 2\ns_or_b32 s49, s49, s59")
    a(f"s_lshl_b32 s25, s19, 10\ns_add_u32 s26, s25, {WS_WFR}\ns_add_u32 s25, s25, 0x10000")
    WO_ = [16, 2, 3, 4, 5, 6, 7]; np_ = OPT['npre']
    wdma(0, 2, 'w'); tdma(0); small(0)
    for i in WO_[:np_]: wdma(i, i+1, 'w')
    flush(False)
    a("v_and_b32 v4, 7, v0\nv_lshrrev_b32 v7, 4, v0\nv_xor_b32 v1, v4, v7\nv_xor_b32 v1, s19, v1\nv_lshlrev_b32 v1, 4, v1\nv_lshl_add_u32 v1, v4, 13, v1\nv_lshl_add_u32 v1, v7, 7, v1\nv_and_or_b32 v1, v0, 8, v1")
    a(f"v_cmp_eq_u32 vcc, 0, v6\nv_subrev_u32 v238, 1, v6")
    a("v_and_b32 v8, 1, v0\nv_lshlrev_b32 v8, 4, v8\nv_mov_b32 v9, 0x3f80\nv_lshlrev_b32 v9, v8, v9\nv_bfe_u32 v8, v0, 1, 1\nv_bfe_u32 v10, v0, 3, 1\nv_bfe_u32 v11, v0, 2, 1")
    for y in range(2):
        a(f"v_xor_b32 v13, {y}, v10\nv_lshl_or_b32 v13, v13, 1, v8\nv_or_b32 v14, {2*y}, v11\nv_cmp_eq_u32 s[40:41], v14, v7\nv_cndmask_b32 v14, 0, v9, s[40:41]")
        for d in range(4): a(f"v_cmp_eq_u32 s[40:41], {d}, v13\nv_cndmask_b32 v{IB+4*y+d}, 0, v14, s[40:41]")
    a(f"s_lshl_b32 s25, s19, 10\ns_add_u32 s25, s25, {L4_SCR}")
    a("v_lshl_add_u32 v9, v7, 4, s25\nv_lshl_add_u32 v8, v6, 6, v9")
    a("v_lshl_add_u32 v4, v4, 2, s25\nv_lshl_add_u32 v4, v5, 5, v4\nv_lshl_add_u32 v4, v6, 6, v4")
    if OPT['gram']:
        a("v_and_b32 v11, 3, v0\nv_cmp_eq_u32 s[32:33], 1, v11\nv_cmp_eq_u32 s[34:35], 2, v11\nv_cmp_eq_u32 s[36:37], 3, v11\nv_bfe_u32 v11, v0, 2, 2\nv_cmp_eq_u32 s[38:39], v11, v7")
    if OPT['sel']:
        a("v_and_b32 v11, 3, v0\nv_cmp_eq_u32 s[40:41], v11, v7\nv_mov_b32 v13, 0x3f80\nv_cndmask_b32 v13, 0, v13, s[40:41]\nv_bfe_u32 v11, v0, 3, 1\nv_bfe_u32 v14, v0, 2, 1\nv_lshl_or_b32 v11, v14, 1, v11")
        for d in range(4): a(f"v_cmp_eq_u32 s[40:41], {d}, v11\nv_cndmask_b32 v{CT+d}, 0, v13, s[40:41]\nv_lshlrev_b32 v{CT+4+d}, 16, v{CT+d}")
        a("v_and_b32 v11, 1, v7\nv_and_b32 v13, 15, v0\nv_subrev_u32 v10, 1, v6")
    if OPT['fin']:
        a("v_and_b32 v14, 15, v0\nv_lshlrev_b32 v2, 1, v5\nv_cmp_eq_u32 s[42:43], v14, v2\nv_or_b32 v2, 1, v2\nv_cmp_eq_u32 s[50:51], v14, v2\nv_lshlrev_b32 v2, 4, v0")
    if not OPT['sel']: a("v_and_b32 v11, 1, v7\nv_and_b32 v10, 7, v0\nv_lshlrev_b32 v13, 2, v11\nv_xor_b32 v10, v10, v13\nv_xor_b32 v10, s19, v10\nv_lshlrev_b32 v10, 4, v10\nv_and_b32 v13, 15, v0\nv_lshl_add_u32 v10, v13, 7, v10\nv_lshl_add_u32 v10, v11, 15, v10\nv_add_u32 v10, v10, v3")
    if OPT['fin']: a("v_lshlrev_b32 v7, 4, v7\nv_cmp_lt_u32 s[40:41], 3, v13\nv_bfrev_b32 v11, 1\nv_cndmask_b32 v11, 0, v11, s[40:41]\nv_or_b32 v7, v7, v11")
    else: a("v_lshlrev_b32 v7, 2, v13\nv_lshl_add_u32 v7, v11, 7, v7")
    a(f"v_add_u32 v15, {L4_E}, v2\ns_mov_b32 s48, 0xffff0000\nv_add_u32 v0, 0x10000, v2")
    a(f"s_mov_b32 s28, {I128}\ns_mov_b32 s29, {EPS}\ns_mov_b32 s30, {LOG2E}")
    a("s_waitcnt lgkmcnt(0)")
    a.st(1)
    for t in W8.drain(DM(0)): a(t)
    a.st(2); a("s_barrier"); a.st(3)
    if OPT['exp'] & 4096: a("s_cmp_ge_u32 s19, 1\ns_cbranch_scc1 K4_fin")
    ring = [0]
    ROR = f"row_ror:8 {DPPF}"
    CLAST = [] if OPT['sel'] else [OO+32+28+3, OO+32+28+2, OO+32+28+1]
    def group(g, last):
        T = lambda j, s: f"v[{TK+16*j+4*s}:{TK+16*j+4*s+3}]"
        R4 = lambda b: f"v[{b}:{b+3}]"
        sv = SV[g & 1]; pm = PM[g & 1]; t = g >> 1; LB = [f'tile{t}']; xa = (t & 1)*65536 + (64 if g & 1 else 0)
        JS = (0,) if g == 6 else (0, 1)
        def W(f):
            r = 4*f
            if g == 0:
                if f == 32: o("s_barrier", R=[f'w{i}' for i in range(8, 16)], W=['wb', 'bar'])
                o(f"ds_read_b128 a[{r}:{r+3}], v0 offset:{f*1024}", R=['wb'] if f >= 32 else ['wa'] if f >= 8 else [])
                if f == 63:
                    o("s_barrier", W=['wfree', 'bar']); L[-1].r |= {('a', x) for x in range(256)}
                    tdma(1, ['wfree'])
            return f"a[{r}:{r+3}]"
        if g in (2, 4):
            o("s_barrier", R=DM(t), W=LB + ['bar'], rr=CLAST + list(range(TK, TK+32)))
            tdma(t+1, LB)
        if g == 6: o("v_xor_b32 v1, s49, v1" + ("" if OPT['sel'] else "\nv_xor_b32 v10, s49, v10")); xa = 65536
        for x in range(2*len(JS)): o(f"v_xor_b32 v{TA+x}, {xa ^ ((x & 1)*576) ^ ((x >> 1)*4)}, v1")
        for s_ in range(4):
            for j in JS:
                for b in range(2): o(f"ds_read2st64_b32 v[{TK+16*j+4*s_+2*b}:{TK+16*j+4*s_+2*b+1}], v{TA+2*j+b} offset0:{8*s_} offset1:{8*s_+4}", R=LB)
        if g < last: small(g+1)
        o(f"v_lshl_add_u32 v{pm}, v{pm}, 8, v7" + ("" if OPT['fin'] else f"\nv_lshl_add_u32 v{pm+1}, v{pm+1}, 8, v7"))
        acc = lambda p, j, hh: AC + 16*(p & 1) + 8*j + 4*hh
        def chains(p):
            for hh in range(2):
                for s_ in range(4):
                    w = W(8*p + 4*hh + s_)
                    for j in JS:
                        c = R4(acc(p, j, hh)); ab = f"{w}, {T(j, s_)}" if p < 4 else f"{T(j, s_)}, {w}"
                        o(f"v_mfma_f32_16x16x32_bf16 {c}, {ab}, {'0' if s_ == 0 else c}")
        def pack(p):
            for j in JS:
                for d in range(4): o(f"v_cvt_pk_bf16_f32 v{PK+8*(p&1)+4*j+d}, v{acc(p, j, 0)+2*d}, v{acc(p, j, 0)+2*d+1}")
        def smf(p):
            for j in JS: o(f"v_mfma_f32_16x16x32_bf16 {R4(SS+4*j)}, {R4(PK+8*(p&1)+4*j)}, {T(j, p)}, {'0' if p == 0 else R4(SS+4*j)}")
        O = lambda j, J: OO + 32*j + 4*J
        def cinit():
            if OPT['sel']: return
            for r in range(4): o(f"v_xor_b32 v{TA+r}, {xa ^ (r*8192 + r*16)}, v10")
            for B in range(4):
                for r in range(4):
                    c = CT + 2*((4*B + r) % 3)
                    o(f"ds_read_b64 v[{c}:{c+1}], v{TA+r} offset:{B*2048}", R=LB)
                    for j in JS: o(f"v_lshlrev_b32 v{O(j, 2*B)+r}, 16, v{c+j}\nv_and_b32 v{O(j, 2*B+1)+r}, s48, v{c+j}")
        def pz(B):
            for j in JS:
                for hh in range(2):
                    z = PK + 8*(B & 1) + 4*j + 2*hh
                    o(f"v_mfma_f32_16x16x16_bf16 {R4(O(j, 2*B+hh))}, v[{PA+2*j}:{PA+2*j+1}], v[{z}:{z+1}], {R4(O(j, 2*B+hh))}")
        def sel(B):
            if not OPT['sel']: return
            for j in JS:
                for hh in range(2): o(f"v_mfma_f32_16x16x32_bf16 {R4(O(j, 2*B+hh))}, {T(j, B)}, {R4(CT+4*hh)}, 0")
        def sq(B):
            for j in JS:
                for hh in range(2):
                    for r in range(4):
                        x = O(j, 2*B+hh)+r
                        o(f"v_mul_f32 v{QQ+4*j+r}, v{x}, v{x}" if B == 0 and hh == 0 else f"v_fmac_f32 v{QQ+4*j+r}, v{x}, v{x}")
            if OPT['fin']:
                for hh in range(2):
                    for d in range(4): x = O(d >> 1, 2*B+hh) + 2*(d & 1); o(f"v_cvt_pk_bf16_f32 v{O(0, 2*B+hh)+d}, v{x}, v{x+1}")
        chains(0)
        D = AC + 16
        if OPT['gram']:
            for s_ in range(4):
                for j in JS: o(f"v_mfma_f32_16x16x32_bf16 {R4(D+4*j)}, {T(j, s_)}, {T(j, s_)}, {'0' if s_ == 0 else R4(D+4*j)}")
        for u in range(0 if OPT['gram'] else 16*len(JS)): d = D + 2*(u >> 4) + (u & 1); o(f"v_dot2_f32_bf16 v{d}, v{TK+u}, v{TK+u}, {'0' if (u & 15) < 2 else f'v{d}'}")
        if g == 0: o("s_barrier", R=[f'w{i}' for i in WO_], W=['wa', 'bar'], rr=[AC+12, D, D+1, D+2, D+3])
        for s_ in range(4):
            r = WF + 4*(ring[0] % NWF); ring[0] += 1
            o(f"ds_read_b128 {R4(r)}, v15 offset:{s_*1024}", R=['wa'])
            for j in JS: o(f"v_mfma_f32_16x16x32_bf16 {R4(EA[j])}, {R4(r)}, {T(j, s_)}, {'0' if s_ == 0 else R4(EA[j])}")
        E = EA[0]
        for r in range(4): o(f"v_cndmask_b32_dpp v{E+r}, v{EA[1]+r}, v{E+r}, vcc {ROR}")
        if OPT['gram']:
            for j in JS:
                x = D+4*j
                for r in range(1, 4): o(f"v_cndmask_b32 v{x}, v{x}, v{x+r}, s[{30+2*r}:{31+2*r}]")
            o(f"v_cndmask_b32 v11, 0, v{D}, s[38:39]\nv_cndmask_b32 v2, 0, v{D}, s[38:39]\nv_cndmask_b32 v{D+2}, 0, v{D+4}, s[38:39]")
        else: o(f"v_add_f32 v11, v{D}, v{D+1}\nv_add_f32 v{D+2}, v{D+2}, v{D+3}\nv_mov_b32 v2, v11")
        o(f"v_mov_b32_dpp v11, v{D+2} row_ror:8 row_mask:0xf bank_mask:0xc\nv_mov_b32_dpp v2, v{D+2} row_ror:8 row_mask:0xf bank_mask:0x3")
        o(f"v_permlane32_swap_b32 v11, v2\nv_add_f32 v11, v11, v2\nv_mov_b32 v2, v11\nv_permlane16_swap_b32 v11, v2\nv_add_f32 v11, v11, v2\nv_mul_f32 v2, s28, v{E}\nv_mul_f32 v2, v2, v2\nv_fma_f32 v11, v11, s28, -v2")
        o(f"v_mul_f32 v2, v{sv}, v{sv}\nv_max_f32 v11, 0, v11\nv_fma_f32 v11, v11, v2, s29\nv_rsq_f32 v11, v11\nv_mul_f32 v11, v11, v{sv}")
        o("ds_write_b32 v4, v11", W=['sa']); o(f"ds_write_b32 v4, v{E+2} offset:128\nds_write_b32 v4, v{E+3} offset:256", W=['sb'])
        o(f"ds_read_b128 {R4(RL)}, v8", R=['sa'])
        o(f"ds_read_b128 {R4(ZS)}, v8 offset:128\nds_read_b128 {R4(ZD)}, v8 offset:256", R=['sb'])
        cinit()
        pack(0); smf(0)
        for p in range(1, 4): chains(p); pack(p); smf(p)
        chains(4); pack(4); sel(0); sel(1); chains(5); pack(5); sel(2); sel(3)
        X = SS
        for r in range(4): o(f"v_cndmask_b32_dpp v{X+r}, v{SS+4+r}, v{X+r}, vcc {ROR}")
        for r in range(4): o(f"v_mul_f32 v{X+r}, v{X+r}, v{RL+r}")
        t0, t1 = X+4, X+5
        o(f"v_max3_f32 v{t0}, v{X}, v{X+1}, v{X+2}\nv_max_f32 v{t0}, v{t0}, v{X+3}\nv_mov_b32 v{t1}, v{t0}\nv_permlane16_swap_b32 v{t0}, v{t1}\nv_max_f32 v{t0}, v{t0}, v{t1}\nv_mul_f32 v{t0}, v{t0}, v11")
        for r in range(4): o(f"v_fma_f32 v{X+r}, v{X+r}, v11, -v{t0}")
        for r in range(4): o(f"v_exp_f32 v{X+r}, v{X+r}")
        o(f"v_add_f32 v{t0}, v{X}, v{X+1}\nv_add_f32 v{t1}, v{X+2}, v{X+3}\nv_add_f32 v{t0}, v{t0}, v{t1}\nv_mov_b32 v{t1}, v{t0}\nv_permlane16_swap_b32 v{t0}, v{t1}\nv_add_f32 v{t0}, v{t0}, v{t1}\nv_mul_f32 v{t0}, v{t0}, v{sv}\nv_rcp_f32 v{t0}, v{t0}")
        for r in range(4): o(f"v_mul_f32 v{X+r}, v{X+r}, v{RL+r}")
        for r in range(4): o(f"v_mul_f32 v{X+r}, v{X+r}, v{t0}")
        o(f"v_cvt_pk_bf16_f32 v{X+6}, v{X}, v{X+1}\nv_cvt_pk_bf16_f32 v{X+7}, v{X+2}, v{X+3}")
        for d in range(2): o(f"v_and_b32 v{PA+d}, v{X+6+d}, v{VM}" + ("" if g == 6 else f"\nv_and_b32_dpp v{PA+2+d}, v{X+6+d}, v{VM} {ROR}"))
        o(f"v_mul_f32 v13, v{X}, v{ZS}\nv_mul_f32 v14, v{X}, v{ZD}")
        for r in range(1, 4): o(f"v_fmac_f32 v13, v{X+r}, v{ZS+r}\nv_fmac_f32 v14, v{X+r}, v{ZD+r}")
        o(f"v_permlane16_swap_b32 v13, v14\nv_add_f32 v13, v13, v14\nv_mov_b32 v14, v13\nv_permlane16_swap_b32 v13, v14\nv_add_f32 v13, v13, v{E}\nv_add_f32 v14, v14, v{E+1}")
        pz(0); sq(0)
        chains(6); pz(1); sq(1); pack(6)
        chains(7); pz(2); sq(2); pack(7)
        pz(3); sq(3)
        for d in range(4): o(f"v_cvt_pk_bf16_f32 v{AL+d}, v{QQ+2*d}, v{QQ+2*d+1}" if d < 2*len(JS) else f"v_mov_b32 v{AL+d}, 0")
        for y in range(2):
            x = AL+4+4*y
            o(f"v_mfma_f32_16x16x32_bf16 {R4(x)}, {R4(AL)}, {R4(IB+4*y)}, 0", pri=-OPT['lq'])
            o(f"v_add_f32 v{x}, v{x}, v{x+1}\nv_add_f32 v{x+2}, v{x+2}, v{x+3}\nv_add_f32 v{x}, v{x}, v{x+2}")
        o(f"v_permlane32_swap_b32 v{AL+4}, v{AL+8}\nv_add_f32 v5, v{AL+4}, v{AL+8}\nv_mov_b32 v{AL+8}, v5\nv_permlane16_swap_b32 v5, v{AL+8}\nv_add_f32 v5, v5, v{AL+8}")
        o(f"v_mul_f32 v13, s28, v13\nv_fma_f32 v14, -v13, s24, v14\nv_mul_f32 v13, v13, v13\nv_mul_f32 v14, s30, v14\nv_mul_f32 v6, v{sv}, v{sv}\nv_mul_f32 v14, v14, v{sv}")
        o("v_fma_f32 v5, v5, s28, -v13\nv_max_f32 v5, 0, v5\nv_fma_f32 v5, v5, v6, s29\nv_rsq_f32 v5, v5\nv_mul_f32 v5, v5, v14")
        o(f"v_max_f32_dpp v6, v5, v5 quad_perm:[1,0,3,2] {DPPF}\nv_max_f32_dpp v6, v6, v6 quad_perm:[2,3,0,1] {DPPF}\nv_max_f32_dpp v6, v6, v6 row_half_mirror {DPPF}")
        o("v_sub_f32 v5, v5, v6\nv_exp_f32 v5, v5")
        o(f"v_add_f32_dpp v6, v5, v5 quad_perm:[1,0,3,2] {DPPF}\nv_add_f32_dpp v6, v6, v6 quad_perm:[2,3,0,1] {DPPF}\nv_add_f32_dpp v6, v6, v6 row_half_mirror {DPPF}")
        o(f"v_rcp_f32 v6, v6\nv_mul_f32 v5, v5, v{sv}\nv_mul_f32 v5, v5, v6")
        o("ds_write_b32 v4, v5 offset:512", W=['sd'])
        for j in JS: o(f"ds_read_b128 {R4(AL+4*j)}, v9 offset:{512+64*j}", R=['sd'])
        OSC = ('', ' nt', ' sc1', ' sc0 sc1', ' sc1 nt')[OPT['osc']]
        if OPT['fin']:
            for d in range(4): o(f"v_cvt_pk_bf16_f32 v{AL+8+d}, v{AL+2*d}, v{AL+2*d+1}\nv_cndmask_b32 v{AL+8+d}, 0, v{AL+8+d}, {'s[42:43]' if d < 2 else 's[50:51]'}")
            for B in range(4):
                for hh in range(2): o(f"v_mfma_f32_16x16x32_bf16 {R4(QQ+8*(B&1)+4*hh)}, {R4(O(0, 2*B+hh))}, {R4(AL+8)}, 0", pri=-OPT['lf'])
                x = O(1, 2*B)
                for r in range(4): o(f"v_cvt_pk_bf16_f32 v{x+r}, v{QQ+8*(B&1)+r}, v{QQ+8*(B&1)+4+r}")
                o(f"buffer_store_dwordx4 {R4(x)}, v{pm}, s[12:15], 0 offen offset:{64*B}{OSC}")
        for j in JS:
            for J in (0, 4, 1, 5, 2, 6, 3, 7):
                x = QQ + 8*j + J
                o(f"v_mul_f32 v{x}, v{AL+4*j}, v{O(j, J)}")
                for r in range(1, 4): o(f"v_fmac_f32 v{x}, v{AL+4*j+r}, v{O(j, J)+r}")
                if J >= 4:
                    o(f"v_permlane16_swap_b32 v{x-4}, v{x}\nv_add_f32 v{x-4}, v{x-4}, v{x}")
                    if J & 1: o(f"v_cvt_pk_bf16_f32 v{x}, v{x-5}, v{x-4}\nbuffer_store_dword v{x}, v{pm+j}, s[12:15], 0 offen offset:{64*((J-4)>>1)}{('', ' nt', ' sc1', ' sc0 sc1', ' sc1 nt')[OPT['osc']]}")
    a(f"s_lshl_b32 s25, s19, 10\ns_add_u32 s25, s25, 0x10000")
    for i in WO_[np_:]:
        wdma(i, i+1, 'w'); L[-1].w.discard(('p', 'q')); L[-1].bias = L[-2].bias = L[-3].bias = 5000
    wdma(8, 16, 'w')
    if OPT['t1p']:
        o(f"s_mul_i32 s45, s61, {TOS}\ns_add_u32 s45, s45, s44\ns_add_u32 s45, s45, {WS_TOK}\ns_add_u32 s46, s45, 8192\nv_lshlrev_b32 v{QQ+2}, 3, v2", pri=OPT['t1p'])
        o(f"buffer_load_dword v{QQ}, v{QQ+2}, s[8:11], s45 offen\nbuffer_load_dword v{QQ+1}, v{QQ+2}, s[8:11], s46 offen", pri=OPT['t1p'], R=['w15'] if OPT['t1w'] else [])
    for g in range(6): group(g, 6)
    n6 = len(L)
    o("s_barrier", R=DM(3), W=['tile3', 'bar'], rr=CLAST + list(range(TK, TK+32)))
    group(6, 6)
    for x in L[n6:]: x.extra = True
    for x in L[n6+1:]: x.r.add(('p', 'tile3'))
    ops = sched.schedule(L, True); L.clear()
    cut = min(i for i, x in enumerate(ops) if getattr(x, 'extra', False))
    nb = 3
    for t in W8.emit(ops[:cut+1]):
        if t == 's_barrier' and OPT['stamp'] in (1, 2): a.st(nb); a(t); a.st(13); nb += 1
        else: a(t)
    a("s_cmp_eq_u32 s31, 0\ns_cbranch_scc0 K4_x")
    import copy
    W9 = copy.deepcopy(W8)
    for t in W8.emit([x for x in ops[cut+1:] if not getattr(x, 'extra', False)]): a(t)
    a.st(9); a("s_branch K4_fin\nK4_x:")
    for t in W9.emit(ops[cut+1:]): a(t)
    a.st(10)
    a("K4_fin:"); a.st_out(3, 8, 's19', 10)
    a("K4_end:\ns_endpgm")
    a.end(name, 512, 102, 256)

def k5(a):
    name = 'dbg_kernel'
    a.launch(name, 1, 1024, 4096); a.begin(name)
    a("s_cmp_ge_u32 s2, 1\ns_cbranch_scc1 K5_end\ns_load_dwordx2 s[4:5], s[0:1], 88\ns_load_dwordx2 s[6:7], s[0:1], 72\ns_waitcnt lgkmcnt(0)")
    a.srd(8, 4, WS_SIZE); a.srd(12, 6, N*256)
    a("v_mov_b32 v20, 0\nv_lshlrev_b32 v21, 2, v0\nv_mov_b32 v22, -1\nv_cmp_gt_u32 vcc, 4, v0\nv_cndmask_b32 v22, v20, v22, vcc\nds_write_b32 v21, v22\ns_waitcnt lgkmcnt(0)\ns_barrier")
    for x, (kid, nwg, lw) in enumerate(((0, 454, 3), (2, 256, 4), (3, 256, 2))):
        for i in range(4):
            a(f"v_add_u32 v1, {1024*i}, v0\nv_lshrrev_b32 v2, {lw}, v1\nv_and_b32 v3, {(1 << lw)-1}, v1\nv_lshlrev_b32 v4, 10, v2\nv_lshl_add_u32 v4, v3, 6, v4\nv_cmp_gt_u32 vcc, {nwg}, v2\ns_and_saveexec_b64 s[20:21], vcc\ns_cbranch_execz K5_s{x}{i}")
            a(f"s_mov_b32 s3, {WS_STAMP + kid*0x80000}\nbuffer_load_dwordx2 v[6:7], v4, s[8:11], s3 offen\ns_waitcnt vmcnt(0)\nds_min_u32 v20, v6 offset:{4*x}\nds_max_u32 v20, v7 offset:{16+4*x}\nK5_s{x}{i}:\ns_mov_b64 exec, s[20:21]")
    a("s_waitcnt lgkmcnt(0)\ns_barrier\nds_read_b128 v[8:11], v20\nds_read_b128 v[12:15], v20 offset:16\ns_waitcnt lgkmcnt(0)")
    a("v_sub_u32 v16, v12, v8\nv_sub_u32 v17, v9, v12\nv_sub_u32 v18, v13, v9\nv_sub_u32 v19, v10, v13\nv_sub_u32 v23, v14, v10\ns_mov_b64 exec, 1")
    a(f"v_cmp_gt_u32 vcc, {OPT['dg']}, v17\ns_cbranch_vccz K5_end\nv_cmp_lt_u32 vcc, {OPT['dk']}, v16\ns_cbranch_vccz K5_end\nv_cmp_gt_u32 vcc, 6000, v18\ns_cbranch_vccz K5_end\nv_cmp_lt_u32 vcc, {OPT['d3']}, v18\ns_cbranch_vccz K5_end\nv_cmp_lt_u32 vcc, {OPT['d4']}, v23\ns_cbranch_vccz K5_end\nv_sub_u32 v25, v14, v8\nv_cmp_lt_u32 vcc, {OPT['dt']}, v25\ns_cbranch_vccz K5_end")
    for i, (r, sh) in enumerate(((16, 2), (17, 2), (18, 5), (18, 0), (19, 2), (23, 4), (23, 0))):
        a(f"v_lshrrev_b32 v24, {sh}, v{r}")
        if sh == 0: a(f"v_and_b32 v24, {31 if r == 18 else 15}, v24")
        a(f"v_cvt_f32_u32 v24, v24\nbuffer_store_short_d16_hi v24, v20, s[12:15], 0 offen offset:{2*i}")
    a("K5_end:\ns_endpgm")
    a.end(name, 32, 32)

def build(ks, path, pre=''):
    a = K()
    for k in ks: k(a)
    open(path, 'w').write(a.text(pre))

if __name__ == '__main__':
    for x in sys.argv[1:]:
        k, v = x.split('='); OPT[k] = int(v)
    ref = open('standalone__hybrid_graph_tf_nagphormer__graph.s.ref').read().split('\n')
    pre = '\n'.join(l for l in ref if l.startswith(';') and 'launch' not in l and 'grid=' not in l) + '\n'
    pre += '''; p1_kernel : edges -> pieces per window of 128 nodes; per window a degree order, x*dis transposed to column-pair tables; weight products
'''
    build([k1, k3, k4] + ([k5] if OPT['dbg'] else []), 'stage.s', pre)
```
